```python
import torch

def _softmax(x, axis=-1):
    return torch.softmax(x, dim=axis)
def _gelu(x):
    return torch.nn.functional.gelu(x, approximate="tanh")
def _silu(x):
    return torch.nn.functional.silu(x)
def _sigmoid(x):
    return torch.sigmoid(x)
def _layernorm(x, axis=-1, eps=1e-5):
    m = x.mean(dim=axis, keepdim=True)
    v = x.var(dim=axis, keepdim=True, unbiased=False)
    return (x - m) / torch.sqrt(v + eps)
def _scatter_add(tgt, idx, src, axis=0):
    return tgt.clone().index_add_(axis, idx, src)
def _segment_sum(src, seg, n):
    out = torch.zeros((n,) + src.shape[1:], dtype=src.dtype)
    return out.index_add_(0, seg, src)
def _pad(x, pw):
    flat = tuple(v for pair in reversed(pw) for v in pair)
    return torch.nn.functional.pad(x, flat)

kernel_name = 'parallel_sum__ssm_conv_h3__moe_arch_mod__prompt'

def setup_inputs():

    _w = (lambda a: (lambda t: t.to(torch.bfloat16) if t.is_floating_point() else t)(torch.as_tensor(a)))
    def _A_setup():
        B, S, D = 1, 2048, 576
        ks = 4
        return {
            "q": _w((lambda *s: torch.randn(*s, dtype=torch.bfloat16) * 0.05)(B, S, D)),
            "k": _w((lambda *s: torch.randn(*s, dtype=torch.bfloat16) * 0.8)(B, S, D)),
            "v": _w((lambda *s: torch.randn(*s, dtype=torch.bfloat16) * 0.8)(B, S, D)),
            "shift_k": _w((lambda *s: torch.randn(*s, dtype=torch.bfloat16) * 0.8)(D, ks) * 0.5),
            "ssm_k": _w((lambda *s: torch.randn(*s, dtype=torch.bfloat16) * 0.8)(D, S) * (1.0 / S ** 0.5)),
            "ssm_D": _w((lambda *s: torch.randn(*s, dtype=torch.bfloat16) * 0.8)(D)),
        }
    _A_in = _A_setup()

    def _B_setup():
        B, S, D, F, C = 1, 2048, 576, 4608, 8
        return {
            "x": _w((lambda *s: torch.randn(*s, dtype=torch.bfloat16) * 0.05)(B, S, D)),
            "w_r": _w((lambda *s: torch.randn(*s, dtype=torch.bfloat16) * 0.05)(D)),
            "w_gate": _w((lambda *s: torch.randn(*s, dtype=torch.bfloat16) * 0.05)(D, F)),
            "w_up": _w((lambda *s: torch.randn(*s, dtype=torch.bfloat16) * 0.05)(D, F)),
            "w_down": _w((lambda *s: torch.randn(*s, dtype=torch.bfloat16) * 0.05)(F, D)),
        }
    _B_in = _B_setup()

    return {
        "A_q": _A_in["q"],
        "A_k": _A_in["k"],
        "A_v": _A_in["v"],
        "A_shift_k": _A_in["shift_k"],
        "A_ssm_k": _A_in["ssm_k"],
        "A_ssm_D": _A_in["ssm_D"],
        "B_x": _B_in["x"],
        "B_w_r": _B_in["w_r"],
        "B_w_gate": _B_in["w_gate"],
        "B_w_up": _B_in["w_up"],
        "B_w_down": _B_in["w_down"],
    }

def reference(A_q, A_k, A_v, A_shift_k, A_ssm_k, A_ssm_D, B_x, B_w_r, B_w_gate, B_w_up, B_w_down):
    def _A_ref(q, k, v, shift_k, ssm_k, ssm_D):
        B, S, D = q.shape
        ks = shift_k.shape[-1]
        k_pad = _pad(k, ((0, 0), (ks - 1, 0), (0, 0)))
        k_shift = torch.zeros_like(k)
        for t in range(ks):
            k_shift = k_shift + k_pad[:, t:t + S, :] * shift_k[:, ks - 1 - t][None, None, :]
        kv = k_shift * v
        L = 2 * S
        kv_pad = _pad(kv, ((0, 0), (0, S), (0, 0)))
        kf_pad = _pad(ssm_k, ((0, 0), (0, S)))
        kv_f = (lambda x, axes=(-2,-1): torch.fft.rfft2(x.float(), dim=axes))(kv_pad[:, None, :, :], axes=(1, 2))
        kf_f = (lambda x, axes=(-2,-1): torch.fft.rfft2(x.float(), dim=axes))(kf_pad[:, None, :], axes=(1, 2))
        kf_f = (lambda x, *d: x.permute(*d))(kf_f, 1, 2, 0)
        y_f = kv_f * kf_f[None, :, :, :]
        y = (lambda x, s, axes=(-2,-1): torch.fft.irfft2(x, s=s, dim=axes).to(torch.bfloat16))(y_f, (1, L), axes=(1, 2))[:, 0, :S, :]
        y = y + kv * ssm_D[None, None, :]
        return q * y

    def _B_ref(x, w_r, w_gate, w_up, w_down):
        B, S, D = x.shape
        C = 8
        r = x @ w_r
        idx = torch.argsort(-r, axis=-1)[:, :C]
        idx_e = (lambda x, n, axis: torch.repeat_interleave(x, n, dim=axis))(idx.reshape(B, C, 1), D, axis=2)
        x_sel = (lambda x, i, axis: torch.take_along_dim(x, i, dim=axis))(x, idx_e, axis=1)
        g = _silu(x_sel @ w_gate)
        u = x_sel @ w_up
        y = (g * u) @ w_down
        r_sel = _sigmoid((lambda x, i, axis: torch.take_along_dim(x, i, dim=axis))(r, idx, axis=1))
        y = y * r_sel.reshape(B, C, 1)
        b_off = (torch.arange(B) * S).reshape(B, 1)
        flat_idx = (idx + b_off).reshape(B * C)
        zero = (x * 0.0).reshape(B * S, D)
        upd = _scatter_add(zero, flat_idx, y.reshape(B * C, D), axis=0)
        return x + upd.reshape(B, S, D)

    x = A_q
    xn = _layernorm(x, axis=-1)
    return x + _A_ref(xn, A_k, A_v, A_shift_k, A_ssm_k, A_ssm_D) + _B_ref(xn, B_w_r, B_w_gate, B_w_up, B_w_down)
```

```python
class Asm:
    def __init__(self):
        self.lines = []
        self.uid = 0
    def __call__(self, s=""):
        for l in s.split("\n"):
            self.lines.append("    " + l.strip() if l.strip() and not l.strip().endswith(":") else l.strip())
    def label(self, name):
        self.lines.append(name + ":")
    def newlabel(self, base="L"):
        self.uid += 1
        return f"{base}_{self.uid}"
    def text(self):
        return "\n".join(self.lines) + "\n"

def vr(a, n=1):
    return f"v{a}" if n == 1 else f"v[{a}:{a+n-1}]"
def ar(a, n=1):
    return f"a{a}" if n == 1 else f"a[{a}:{a+n-1}]"
def sr(a, n=1):
    return f"s{a}" if n == 1 else f"s[{a}:{a+n-1}]"

NAME = "parallel_sum__ssm_conv_h3__moe_arch_mod__prompt"
HDR = open('cdna_kernels/' + NAME + '.s.ref').read().split('; Override')[0]

def kd(name, vgpr, sgpr, acc, extra=""):
    return f""".section .rodata,"a"
.p2align 6
.amdhsa_kernel {name}
  .amdhsa_next_free_vgpr {vgpr}
  .amdhsa_next_free_sgpr {sgpr}
  .amdhsa_accum_offset {acc}
  .amdhsa_group_segment_fixed_size 0
  .amdhsa_kernarg_size 112
  .amdhsa_user_sgpr_count 2
  .amdhsa_user_sgpr_kernarg_segment_ptr 1
  .amdhsa_system_sgpr_workgroup_id_x 1
{extra}.end_amdhsa_kernel
.text
"""
def head(name):
    return f""".globl {name}
.p2align 8
.type {name},@function
{name}:
"""
```

```python
import sys, struct
sys.path.insert(0, "dev")
from asmlib import *

OUTFN = sys.argv[1] if len(sys.argv) > 1 else "k.s"
OPTS = set(sys.argv[2:])
PROF = "prof" in OPTS
STAGE_NOMOE = "nomoe" in OPTS

WS_KVT = 0x000000
WS_XT  = 0x240000
WS_RG  = 0x480000
WS_SG  = 0x484000
WS_FL  = 0x488000
WS_FL2 = 0x488800
WS_SEL = 0x489800
WS_T1G = 0x48A000
WS_PART= 0x4A0000
WS_PROF = 0x800000
SPIN_MAX = 400000
NCONV = 144
NMOE = 96
NT = "nt"

S_WG, S_WAVE = 2, 3
S_Q, S_K, S_V, S_SK, S_H, S_D, S_BX, S_WR, S_WGT, S_WUP, S_WD, S_OUT, S_DBG, S_WS = 4, 6, 8, 10, 12, 14, 16, 18, 20, 22, 24, 26, 28, 30
SRD_K, SRD_V, SRD_Q, SRD_O = 32, 36, 40, 44
S_NONCE = 48
S_MASK, S_SELLO, S_SELHI = 50, 51, 52
S_T = 54

A = Asm()
def f32bits(x): return struct.unpack("<I", struct.pack("<f", x))[0]
def p2(r): return f"v[{r}:{r+1}]"
def p4(r): return f"v[{r}:{r+3}]"
NSTAMP = 10
def stamp(i):
    if PROF: A(f"s_memtime s[{80+2*i}:{81+2*i}]")
def prof_begin():
    if PROF:
        A("s_memrealtime s[100:101]")
        stamp(0)
        for i in range(1, NSTAMP):
            A(f"s_mov_b64 s[{80+2*i}:{81+2*i}], 0")
def prof_end():
    if not PROF: return
    A(f"s_memrealtime s[{S_T+2}:{S_T+3}]")
    A("s_waitcnt lgkmcnt(0)")
    A(f"s_lshl_b32 s{S_T}, s{S_WG}, 3")
    A(f"s_add_u32 s{S_T}, s{S_T}, s{S_WAVE}")
    A(f"s_lshl_b32 s{S_T}, s{S_T}, 6")
    A(f"s_add_u32 s{S_T}, s{S_T}, {WS_PROF}")
    A(f"v_mov_b32 v1, s{S_T}")
    A("s_mov_b64 exec, 1")
    A("v_mov_b32 v2, s100")
    A(f"global_store_dword v1, v2, s[{S_WS}:{S_WS+1}]")
    A(f"v_mov_b32 v2, s{S_T+2}")
    A(f"global_store_dword v1, v2, s[{S_WS}:{S_WS+1}] offset:4")
    for i in range(1, NSTAMP):
        A(f"s_sub_u32 s{S_T+1}, s{80+2*i}, s80")
        A(f"v_mov_b32 v2, s{S_T+1}")
        A(f"global_store_dword v1, v2, s[{S_WS}:{S_WS+1}] offset:{4+4*i}")
    A("s_mov_b64 exec, -1")

def rnd(v, src=None):
    A(f"v_cvt_pk_bf16_f32 v{v}, 0, v{v if src is None else src}")
def srd(dst, base, nbytes):
    A(f"s_mov_b32 s{dst}, s{base}")
    A(f"s_and_b32 s{dst+1}, s{base+1}, 0xffff")
    A(f"s_mov_b32 s{dst+2}, {nbytes}")
    A(f"s_mov_b32 s{dst+3}, 0x00020000")
def add64(dst, src, imm):
    A(f"s_add_u32 s{dst}, s{src}, {imm}")
    A(f"s_addc_u32 s{dst+1}, s{src+1}, 0")
def add64s(dst, src, sreg):
    A(f"s_add_u32 s{dst}, s{src}, s{sreg}")
    A(f"s_addc_u32 s{dst+1}, s{src+1}, 0")

DIAG = "diag" in OPTS
def timeout_mark(site):
    if not DIAG: return
    A(f"s_mov_b64 s[{S_T+14}:{S_T+15}], exec")
    A("s_mov_b64 exec, 1")
    A(f"v_mov_b32 v126, {4*site}")
    A("v_mov_b32 v127, 1")
    A(f"global_atomic_add v126, v127, s[{S_DBG}:{S_DBG+1}] sc1")
    A(f"s_mov_b64 exec, s[{S_T+14}:{S_T+15}]")

def get_nonce(vtmp):
    L = A.newlabel("L_nonce"); Ld = A.newlabel("L_nonced")
    A(f"v_mov_b32 v{vtmp}, 0")
    A(f"s_mov_b32 s{S_T}, 0")
    A.label(L)
    A(f"global_load_dword v{vtmp+1}, v{vtmp}, s[{S_DBG}:{S_DBG+1}] sc1")
    A(f"s_waitcnt vmcnt(0)")
    A(f"v_readfirstlane_b32 s{S_NONCE}, v{vtmp+1}")
    A(f"s_add_u32 s{S_T}, s{S_T}, 1")
    A(f"s_cmp_lg_u32 s{S_NONCE}, 0")
    A(f"s_cbranch_scc1 {Ld}")
    A(f"s_cmp_lt_u32 s{S_T}, {SPIN_MAX}")
    A(f"s_cbranch_scc1 {L}")
    timeout_mark(1)
    A.label(Ld)

def nonce_writer():
    L = A.newlabel("L_nw")
    A(f"s_cmp_ge_u32 s{S_WG}, 8")
    A(f"s_cbranch_scc1 {L}")
    A(f"s_cmp_lg_u32 s{S_WAVE}, 7")
    A(f"s_cbranch_scc1 {L}")
    A(f"s_memrealtime s[{S_T}:{S_T+1}]")
    A("s_waitcnt lgkmcnt(0)")
    A(f"s_or_b32 s{S_T}, s{S_T}, 1")
    A(f"v_mov_b32 v10, s{S_T}")
    A("v_mov_b32 v11, 0")
    A("v_mov_b32 v12, 0")
    A("s_mov_b64 exec, 1")
    A(f"global_atomic_cmpswap v12, v[10:11], s[{S_DBG}:{S_DBG+1}] sc1")
    A("s_mov_b64 exec, -1")
    A.label(L)

def prologue():
    A(f"s_cmp_ge_u32 s{S_WG}, 256")
    A("s_cbranch_scc1 L_end")
    prof_begin()
    A("s_load_dwordx16 s[4:19], s[0:1], 0")
    A("s_load_dwordx8 s[20:27], s[0:1], 64")
    A("s_load_dwordx4 s[28:31], s[0:1], 96")
    A("v_lshrrev_b32 v1, 6, v0")
    A("v_and_b32 v0, 63, v0")
    A(f"v_readfirstlane_b32 s{S_WAVE}, v1")
    A(f"s_mov_b32 s{S_MASK}, 0xffff0000")
    A(f"s_mov_b32 s{S_SELLO}, 0x05040100")
    A(f"s_mov_b32 s{S_SELHI}, 0x07060302")
    A("s_waitcnt lgkmcnt(0)")
    stamp(1)
    srd(SRD_K, S_K, 2359296)
    srd(SRD_O, S_OUT, 2359296)
    nonce_writer()

L_P   = 0
P_CPY = 4128
P_CH  = 4 * P_CPY
L_Q   = L_P + 4 * P_CH
Q_CPY = 1152
Q_CH  = 4 * Q_CPY
L_PRE = L_Q + 4 * Q_CH
PRE_CH = 12288
L_SELM = L_PRE + 4 * PRE_CH
L_CONV_END = L_SELM + 2048 + 64
L_TB  = L_PRE
L_TB2 = L_PRE + 16384


TBLK = 1040
L_TK = L_PRE
L_TV = L_TK + 17 * TBLK
assert L_TV + 16 * TBLK <= L_SELM
L_TQ = (L_CONV_END + 15) // 16 * 16
L_TOTAL = L_TQ + 16 * TBLK

def dma(voff, srdreg, soff, m0):
    A(f"s_mov_b32 m0, {m0}")
    A("s_nop 0")
    A(f"buffer_load_dwordx4 v{voff}, s[{srdreg}:{srdreg+3}], {soff} offen {NT} lds")

def conv_tile():
    T = S_T
    A(f"s_mul_hi_u32 s77, s{S_WG}, {(2**32 + 8)//9}")
    A(f"s_mul_i32 s76, s77, 9")
    A(f"s_sub_u32 s76, s{S_WG}, s76")
    srd(SRD_V, S_V, 2359296)
    srd(SRD_Q, S_Q, 2359296)
    A("v_lshrrev_b32 v1, 3, v0")
    A("v_and_b32 v2, 7, v0")
    A(f"s_mul_i32 s{T+2}, s77, {128*1152}")
    A(f"s_lshl_b32 s{T+3}, s76, 7")
    A(f"s_add_u32 s{T+2}, s{T+2}, s{T+3}")
    A(f"v_mul_u32_u24 v3, 1152, v1")
    A(f"v_lshl_add_u32 v3, v2, 4, v3")
    A(f"v_add_u32 v3, s{T+2}, v3")
    A(f"s_mul_i32 s{T+4}, s{S_WAVE}, {2*9216}")
    A(f"s_add_u32 s{T+5}, s{T+4}, 9216")
    A(f"s_mul_i32 s{T+6}, s{S_WAVE}, {2*TBLK}")
    A(f"s_add_u32 s{T+7}, s{T+6}, {L_TK + TBLK}")
    A(f"s_add_u32 s{T+8}, s{T+6}, {L_TK + 2*TBLK}")
    dma(3, SRD_K, f"s{T+4}", f"s{T+7}")
    dma(3, SRD_K, f"s{T+5}", f"s{T+8}")
    Lh = A.newlabel("L_nohalo")
    A(f"s_cmp_lg_u32 s{S_WAVE}, 0")
    A(f"s_cbranch_scc1 {Lh}")
    A(f"v_subrev_u32 v4, 9216, v3")
    A(f"s_cmp_lg_u32 s77, 0")
    A(f"s_cbranch_scc1 {Lh}_a")
    A("v_bfrev_b32 v4, 1")
    A.label(Lh + "_a")
    dma(4, SRD_K, "0", L_TK)
    A.label(Lh)
    A(f"s_add_u32 s{T+7}, s{T+6}, {L_TV}")
    A(f"s_add_u32 s{T+8}, s{T+6}, {L_TV + TBLK}")
    dma(3, SRD_V, f"s{T+4}", f"s{T+7}")
    dma(3, SRD_V, f"s{T+5}", f"s{T+8}")
    A(f"s_lshr_b32 s{T+9}, s{S_WAVE}, 1")
    A(f"s_and_b32 s{T+10}, s{S_WAVE}, 1")
    A(f"s_lshl_b32 s{T+11}, s76, 9")
    A(f"s_lshl_b32 s{T+12}, s{T+9}, 7")
    A(f"s_add_u32 s{T+11}, s{T+11}, s{T+12}")
    A("v_lshlrev_b32 v5, 4, v1")
    A(f"v_add_u32 v5, s{T+11}, v5")
    TR = 40
    A(f"global_load_dwordx4 {p4(TR)}, v5, s[{S_SK}:{S_SK+1}]")
    A("s_waitcnt vmcnt(63)")
    A(f"s_add_u32 s{T+7}, s{T+6}, {L_TQ}")
    A(f"s_add_u32 s{T+8}, s{T+6}, {L_TQ + TBLK}")
    dma(3, SRD_Q, f"s{T+4}", f"s{T+7}")
    dma(3, SRD_Q, f"s{T+5}", f"s{T+8}")
    A(f"s_and_b32 s{T+13}, s{S_WG}, 7")
    A(f"s_mul_i32 s{T+13}, s{T+13}, 18")
    A(f"s_lshr_b32 s{T+12}, s{S_WG}, 3")
    A(f"s_add_u32 s{T+13}, s{T+13}, s{T+12}")
    A(f"s_lshl_b32 s71, s{T+13}, 2")
    A(f"s_and_b32 s{T+12}, s{S_WAVE}, 3")
    A(f"s_add_u32 s78, s71, s{T+12}")
    A(f"s_lshl_b32 s79, s78, 12")
    HR = 62
    Lh = A.newlabel("L_noh")
    A(f"s_cmp_ge_u32 s{S_WAVE}, 4")
    A(f"s_cbranch_scc1 {Lh}")
    A("v_lshlrev_b32 v8, 4, v0")
    A("v_add_u32 v8, s79, v8")
    for q in range(4):
        A(f"global_load_dwordx4 {p4(HR+4*q)}, v8, s[{S_H}:{S_H+1}] offset:{1024*q} {NT}")
    A.label(Lh)
    A(f"s_lshl_b32 s{T+12}, s{T+10}, 3")
    A(f"v_add_u32 v6, s{T+12}, v2")
    A(f"s_lshl_b32 s{T+12}, s{T+9}, 3")
    A(f"v_add_u32 v7, s{T+12}, v1")
    A(f"v_mul_u32_u24 v9, {TBLK}, v6")
    A(f"v_lshl_add_u32 v9, v7, 2, v9")
    A(f"v_add_u32 v9, {L_PRE}, v9")
    A(f"s_lshl_b32 s{T+11}, s76, 18")
    A(f"s_lshl_b32 s{T+12}, s77, 8")
    A(f"s_add_u32 s{T+11}, s{T+11}, s{T+12}")
    A("v_lshlrev_b32 v8, 13, v7")
    A("v_lshl_add_u32 v8, v6, 4, v8")
    A(f"v_add_u32 v8, s{T+11}, v8")
    Lw = A.newlabel("L_w"); Lw2 = A.newlabel("L_w2")
    A(f"s_cmp_ge_u32 s{S_WAVE}, 4")
    A(f"s_cbranch_scc1 {Lw}")
    A("s_waitcnt vmcnt(6)")
    A(f"s_branch {Lw2}")
    A.label(Lw)
    A("s_waitcnt vmcnt(2)")
    A.label(Lw2)
    A("s_barrier")
    stamp(2)
    KR, VR = 10, 21
    for j in range(11):
        off = L_TK - L_PRE + (640 + 128*j if j < 3 else TBLK + 128*(j-3))
        A(f"ds_read_b32 v{KR+j}, v9 offset:{off}")
    for j in range(8):
        A(f"ds_read_b32 v{VR+j}, v9 offset:{L_TV - L_PRE + 128*j}")
    TP = 44
    A(f"v_lshlrev_b32 v{TP+0}, 16, v{TR}"); A(f"v_lshlrev_b32 v{TP+1}, 16, v{TR+2}")
    A(f"v_and_b32 v{TP+2}, s{S_MASK}, v{TR}"); A(f"v_and_b32 v{TP+3}, s{S_MASK}, v{TR+2}")
    A(f"v_lshlrev_b32 v{TP+4}, 16, v{TR+1}"); A(f"v_lshlrev_b32 v{TP+5}, 16, v{TR+3}")
    A(f"v_and_b32 v{TP+6}, s{S_MASK}, v{TR+1}"); A(f"v_and_b32 v{TP+7}, s{S_MASK}, v{TR+3}")
    KP = 80
    A("s_waitcnt lgkmcnt(8)")
    for j in range(11):
        A(f"v_lshlrev_b32 v{KP+2*j}, 16, v{KR+j}")
        A(f"v_and_b32 v{KP+2*j+1}, s{S_MASK}, v{KR+j}")
    A("s_waitcnt lgkmcnt(0)")
    R = 102
    for i0 in range(0, 8, 2):
        toks = (i0, i0+1)
        a = {toks[0]: 52, toks[1]: 56}; b = {toks[0]: 54, toks[1]: 58}
        tp = lambda tap: p2(TP+2*tap)
        def both(fn):
            for i in toks: fn(i)
        both(lambda i: A(f"v_pk_mul_f32 {p2(a[i])}, {p2(KP+2*i)}, {tp(3)}"))
        both(lambda i: A(f"v_pk_mul_f32 {p2(b[i])}, {p2(KP+2*(i+1))}, {tp(2)}"))
        both(lambda i: (rnd(a[i]), rnd(a[i]+1)))
        both(lambda i: (rnd(b[i]), rnd(b[i]+1)))
        both(lambda i: A(f"v_pk_add_f32 {p2(a[i])}, {p2(a[i])}, {p2(b[i])}"))
        both(lambda i: A(f"v_pk_mul_f32 {p2(b[i])}, {p2(KP+2*(i+2))}, {tp(1)}"))
        both(lambda i: (rnd(a[i]), rnd(a[i]+1)))
        both(lambda i: (rnd(b[i]), rnd(b[i]+1)))
        both(lambda i: A(f"v_pk_add_f32 {p2(a[i])}, {p2(a[i])}, {p2(b[i])}"))
        both(lambda i: A(f"v_pk_mul_f32 {p2(b[i])}, {p2(KP+2*(i+3))}, {tp(0)}"))
        both(lambda i: (rnd(a[i]), rnd(a[i]+1)))
        both(lambda i: (rnd(b[i]), rnd(b[i]+1)))
        both(lambda i: A(f"v_pk_add_f32 {p2(a[i])}, {p2(a[i])}, {p2(b[i])}"))
        both(lambda i: (A(f"v_lshlrev_b32 v{b[i]}, 16, v{VR+i}"), A(f"v_and_b32 v{b[i]+1}, s{S_MASK}, v{VR+i}")))
        both(lambda i: (rnd(a[i]), rnd(a[i]+1)))
        both(lambda i: A(f"v_pk_mul_f32 {p2(R+2*i)}, {p2(a[i])}, {p2(b[i])}"))
    O = 120
    for q in range(4):
        A(f"v_cvt_pk_bf16_f32 v{O+q}, v{R+4*q}, v{R+4*q+2}")
        A(f"v_cvt_pk_bf16_f32 v{O+4+q}, v{R+4*q+1}, v{R+4*q+3}")
    add64(T+2, S_WS, WS_KVT)
    add64(T+4, S_WS, WS_KVT+4096)
    A(f"global_store_dwordx4 v8, {p4(O)}, s[{T+2}:{T+3}] sc1")
    A(f"global_store_dwordx4 v8, {p4(O+4)}, s[{T+4}:{T+5}] sc1")
    stamp(3)
    get_nonce(100)
    A("s_barrier")
    stamp(4)
    L = A.newlabel("L_nf")
    A(f"s_cmp_lg_u32 s{S_WAVE}, 0")
    A(f"s_cbranch_scc1 {L}")
    A(f"s_lshl_b32 s{T+1}, s76, 7")
    A(f"s_lshl_b32 s{T+2}, s77, 2")
    A(f"s_add_u32 s{T+1}, s{T+1}, s{T+2}")
    A(f"s_add_u32 s{T+1}, s{T+1}, {WS_FL}")
    A(f"v_mov_b32 v100, s{T+1}")
    A(f"v_mov_b32 v101, s{S_NONCE}")
    A("s_mov_b64 exec, 1")
    A(f"global_store_dword v100, v101, s[{S_WS}:{S_WS+1}] sc1")
    A("s_mov_b64 exec, -1")
    A.label(L)
    return HR

def x_tile():
    T = S_T
    A("; x tile")
    A("v_and_b32 v2, 7, v0"); A("v_lshrrev_b32 v1, 3, v0")
    A(f"s_sub_u32 s72, s{S_WAVE}, 4")
    A(f"s_lshl_b32 s{T+12}, s72, 3")
    A(f"v_add_u32 v7, s{T+12}, v1")
    A(f"v_mul_u32_u24 v9, {TBLK}, v2")
    A(f"v_lshl_add_u32 v9, v7, 2, v9")
    A(f"v_add_u32 v9, {L_TQ}, v9")
    A(f"s_lshl_b32 s{T+11}, s76, 18")
    A(f"s_lshl_b32 s{T+12}, s77, 8")
    A(f"s_add_u32 s{T+11}, s{T+11}, s{T+12}")
    A("v_lshlrev_b32 v8, 13, v7")
    A("v_lshl_add_u32 v8, v2, 4, v8")
    A(f"v_add_u32 v8, s{T+11}, v8")
    for gh in range(2):
        for j in range(8):
            A(f"ds_read_b32 v{16+8*gh+j}, v9 offset:{8*TBLK*gh + 128*j}")
    add64(T+2, S_WS, WS_XT)
    add64(T+4, S_WS, WS_XT+4096)
    for gh in range(2):
        A(f"s_waitcnt lgkmcnt({8*(1-gh)})")
        X = 32 + 8*gh
        for q in range(4):
            A(f"v_perm_b32 v{X+q}, v{16+8*gh+2*q+1}, v{16+8*gh+2*q}, s{S_SELLO}")
            A(f"v_perm_b32 v{X+4+q}, v{16+8*gh+2*q+1}, v{16+8*gh+2*q}, s{S_SELHI}")
        A(f"global_store_dwordx4 v8, {p4(X)}, s[{T+2}:{T+3}] offset:{128*gh} sc1")
        A(f"global_store_dwordx4 v8, {p4(X+4)}, s[{T+4}:{T+5}] offset:{128*gh} sc1")
    A("s_waitcnt vmcnt(0)")
    A(f"s_lshl_b32 s{T+1}, s76, 2")
    A(f"s_add_u32 s{T+1}, s{T+1}, s72")
    A(f"s_lshl_b32 s{T+1}, s{T+1}, 6")
    A(f"s_lshl_b32 s{T+2}, s77, 2")
    A(f"s_add_u32 s{T+1}, s{T+1}, s{T+2}")
    A(f"s_add_u32 s{T+1}, s{T+1}, {WS_FL2}")
    A(f"v_mov_b32 v100, s{T+1}")
    A(f"v_mov_b32 v101, s{S_NONCE}")
    A("s_mov_b64 exec, 1")
    A(f"global_store_dword v100, v101, s[{S_WS}:{S_WS+1}] sc1")
    A("s_mov_b64 exec, -1")

def poll_flags(vt, both=False):
    T = S_T
    L = A.newlabel("L_pf"); Ld = A.newlabel("L_pfd")
    A(f"s_lshr_b32 s{T+1}, s71, 6")
    A(f"s_lshl_b32 s{T+1}, s{T+1}, 7")
    A(f"s_add_u32 s{T+1}, s{T+1}, {WS_FL}")
    A(f"v_and_b32 v{vt}, 15, v0")
    A(f"v_lshlrev_b32 v{vt}, 2, v{vt}")
    if both:
        A(f"s_lshr_b32 s{T+2}, s71, 4")
        A(f"s_lshl_b32 s{T+2}, s{T+2}, 6")
        A(f"s_add_u32 s{T+2}, s{T+2}, {WS_FL2}")
        A(f"v_mov_b32 v{vt+1}, s{T+1}")
        A(f"v_mov_b32 v{vt+2}, s{T+2}")
        A(f"v_and_b32 v{vt+3}, 16, v0")
        A(f"v_cmp_eq_u32 vcc, 0, v{vt+3}")
        A("s_nop 1")
        A(f"v_cndmask_b32 v{vt+1}, v{vt+2}, v{vt+1}, vcc")
        A(f"v_add_u32 v{vt}, v{vt+1}, v{vt}")
    else:
        A(f"v_add_u32 v{vt}, s{T+1}, v{vt}")
    A(f"s_mov_b32 s{T}, 0")
    A.label(L)
    A(f"global_load_dword v{vt+1}, v{vt}, s[{S_WS}:{S_WS+1}] sc1")
    A("s_waitcnt vmcnt(0)")
    A(f"v_cmp_ne_u32 vcc, s{S_NONCE}, v{vt+1}")
    A(f"s_add_u32 s{T}, s{T}, 1")
    A("s_nop 3")
    A("s_cmp_eq_u64 vcc, 0")
    A(f"s_cbranch_scc1 {Ld}")
    A(f"s_cmp_lt_u32 s{T}, {SPIN_MAX}")
    A(f"s_cbranch_scc1 {L}")
    timeout_mark(2 + (A.uid % 12))
    A.label(Ld)

def conv_mfma_wave(HR):
    T = S_T
    A(f"s_mul_i32 s74, s{S_WAVE}, {P_CH}")
    A(f"s_mul_i32 s75, s{S_WAVE}, {Q_CH}")
    A(f"s_add_u32 s75, s75, {L_Q}")
    A("v_lshlrev_b32 v1, 4, v0")
    A("v_add_u32 v1, s74, v1")
    PV = 80
    for q in range(4):
        a = HR + 4*q
        if q == 0:
            A(f"v_mov_b32 v{PV}, 0"); A(f"v_mov_b32 v{PV+1}, 0")
        else:
            A(f"v_mov_b32_dpp v{PV}, v{a-1} wave_ror:1 row_mask:0xf bank_mask:0xf")
            A(f"v_mov_b32_dpp v{PV+1}, v{a-2} wave_ror:1 row_mask:0xf bank_mask:0xf")
        A("s_nop 1")
        A(f"v_mov_b32_dpp v{PV}, v{a+3} wave_shr:1 row_mask:0xf bank_mask:0xf")
        A(f"v_mov_b32_dpp v{PV+1}, v{a+2} wave_shr:1 row_mask:0xf bank_mask:0xf")
        A(f"ds_write_b128 v1, {p4(a)} offset:{0*P_CPY+32+1024*q}")
        s1 = 84
        A(f"v_alignbit_b32 v{s1}, v{a}, v{PV}, 16")
        A(f"v_alignbit_b32 v{s1+1}, v{a+1}, v{a}, 16")
        A(f"v_alignbit_b32 v{s1+2}, v{a+2}, v{a+1}, 16")
        A(f"v_alignbit_b32 v{s1+3}, v{a+3}, v{a+2}, 16")
        A(f"ds_write_b128 v1, {p4(s1)} offset:{1*P_CPY+32+1024*q}")
        s2 = 88
        A(f"v_mov_b32 v{s2}, v{PV}"); A(f"v_mov_b32 v{s2+1}, v{a}"); A(f"v_mov_b32 v{s2+2}, v{a+1}"); A(f"v_mov_b32 v{s2+3}, v{a+2}")
        A(f"ds_write_b128 v1, {p4(s2)} offset:{2*P_CPY+32+1024*q}")
        s3 = 92
        A(f"v_alignbit_b32 v{s3}, v{PV}, v{PV+1}, 16")
        A(f"v_mov_b32 v{s3+1}, v{s1}"); A(f"v_mov_b32 v{s3+2}, v{s1+1}"); A(f"v_mov_b32 v{s3+3}, v{s1+2}")
        A(f"ds_write_b128 v1, {p4(s3)} offset:{3*P_CPY+32+1024*q}")
    for i in range(4): A(f"v_mov_b32 v{84+i}, 0")
    A("v_lshrrev_b32 v2, 1, v0")
    A(f"v_mul_u32_u24 v2, {P_CPY}, v2")
    A("v_and_b32 v3, 1, v0")
    A("v_lshl_add_u32 v2, v3, 4, v2")
    A("v_add_u32 v2, s74, v2")
    A("s_mov_b64 exec, 0xff")
    A(f"ds_write_b128 v2, {p4(84)}")
    A("s_mov_b64 exec, -1")
    A("v_lshrrev_b32 v2, 3, v0")
    A(f"v_mul_u32_u24 v2, {Q_CPY}, v2")
    A("v_and_b32 v3, 7, v0")
    A("v_lshl_add_u32 v2, v3, 4, v2")
    A("v_add_u32 v2, s75, v2")
    A("s_mov_b64 exec, 0xffffffff")
    A(f"ds_write_b128 v2, {p4(84)}")
    A("s_mov_b64 exec, -1")
    poll_flags(100)
    stamp(5)
    add64(T+2, S_WS, WS_KVT)
    A("v_lshlrev_b32 v1, 6, v0")
    A("v_add_u32 v1, s79, v1")
    KV = 80
    for i in range(4):
        A(f"global_load_dwordx4 {p4(KV+4*i)}, v1, s[{T+2}:{T+3}] offset:{16*i} sc1")
    A("v_lshlrev_b32 v2, 4, v0")
    A("v_add_u32 v2, s75, v2")
    A("s_waitcnt vmcnt(0)")
    QO = 96
    for s in range(4):
        sel = S_SELLO if (s & 1) == 0 else S_SELHI
        for q in range(4):
            A(f"v_perm_b32 v{QO+4*s+q}, v{KV+4*q+2+s//2}, v{KV+4*q+s//2}, s{sel}")
        A(f"ds_write_b128 v2, {p4(QO+4*s)} offset:{s*Q_CPY+128}")
    A("v_and_b32 v3, 3, v0")
    A("v_bfe_u32 v4, v0, 2, 2")
    A("v_sub_u32 v3, v3, v4")
    A("v_lshlrev_b32 v3, 3, v3")
    A("v_lshrrev_b32 v4, 4, v0")
    A("v_lshl_add_u32 v3, v4, 6, v3")
    A("v_add_u32 v3, s74, v3")
    A("v_add_u32 v3, 32, v3")
    A("v_and_b32 v5, 15, v0")
    A("v_lshlrev_b32 v5, 3, v5")
    A("v_lshlrev_b32 v4, 4, v4")
    A("v_sub_u32 v5, v5, v4")
    A("v_add_u32 v5, s75, v5")
    A("v_add_u32 v5, 120, v5")
    ACC = 16
    for i in range(32): A(f"v_mov_b32 v{ACC+i}, 0")
    A("s_waitcnt lgkmcnt(0)")
    def issue_reads(b, gaddr, faddr):
        ins = []
        for s1 in range(8):
            g = 64*b + 4*s1
            ins.append(f"ds_read_b64_tr_b16 a[{g}:{g+1}], v{gaddr} offset:{512*s1+32}")
            ins.append(f"ds_read_b64_tr_b16 a[{g+2}:{g+3}], v{gaddr} offset:{512*s1}")
        for c1 in range(8):
            f = 64*b + 32 + 4*c1
            ins.append(f"ds_read_b64 a[{f}:{f+1}], v{faddr} offset:{128*c1}")
            ins.append(f"ds_read_b64 a[{f+2}:{f+3}], v{faddr} offset:{128*c1+8}")
        o = []
        for i in range(8):
            o += ins[2*i:2*i+2] + ins[16+2*i:16+2*i+2]
        return o
    def mfmas(b):
        ms = []
        pairs = [(s1, c1) for s1 in range(8) for c1 in range(8) if s1 + c1 <= 7]
        pairs.sort(key=lambda p: (max(p), p[0]+p[1]))
        for (s1, c1) in pairs:
            t = ACC + 4*(s1+c1)
            g = 64*b + 4*s1; f = 64*b + 32 + 4*c1
            ms.append(f"v_mfma_f32_16x16x32_bf16 v[{t}:{t+3}], a[{g}:{g+3}], a[{f}:{f+3}], v[{t}:{t+3}]")
        return ms
    def setaddr(cls):
        sg, e = cls >> 1, cls & 1
        A(f"v_add_u32 v6, {sg*P_CPY + 256*e}, v3")
        A(f"v_add_u32 v7, {sg*Q_CPY - 64*e}, v5") if (sg*Q_CPY - 64*e) >= 0 else A(f"v_subrev_u32 v7, {64*e - sg*Q_CPY}, v5")
    stamp(6)
    setaddr(0)
    for ins in issue_reads(0, 6, 7): A(ins)
    for cls in range(8):
        b = cls & 1
        if cls < 7:
            setaddr(cls+1)
            rd = issue_reads(1-b, 6, 7)
        else:
            rd = []
        A("s_waitcnt lgkmcnt(0)")
        ms = mfmas(b)
        for i, m in enumerate(ms):
            A(m)
            if i < len(rd): A(rd[i])
    stamp(7)
    return ACC


def tagcheck_loop(load_fn, tagregs, vacc, vtmp):
    T = S_T
    L = A.newlabel("L_pl"); Ld = A.newlabel("L_pld")
    A(f"s_mov_b32 s{T}, 0")
    A.label(L)
    load_fn()
    A("s_waitcnt vmcnt(0)")
    A(f"v_xor_b32 v{vacc}, s{S_NONCE}, v{tagregs[0]}")
    rest = tagregs[1:]
    i = 0
    while i < len(rest):
        if i + 1 < len(rest):
            A(f"v_xor_b32 v{vtmp}, s{S_NONCE}, v{rest[i]}")
            A(f"v_xor_b32 v{vtmp+1}, s{S_NONCE}, v{rest[i+1]}")
            A(f"v_or3_b32 v{vacc}, v{vacc}, v{vtmp}, v{vtmp+1}")
            i += 2
        else:
            A(f"v_xor_b32 v{vtmp}, s{S_NONCE}, v{rest[i]}")
            A(f"v_or_b32 v{vacc}, v{vacc}, v{vtmp}")
            i += 1
    A(f"v_cmp_ne_u32 vcc, 0, v{vacc}")
    A(f"s_add_u32 s{T}, s{T}, 1")
    A("s_nop 3")
    A("s_cmp_eq_u64 vcc, 0")
    A(f"s_cbranch_scc1 {Ld}")
    A(f"s_cmp_lt_u32 s{T}, {SPIN_MAX}")
    A(f"s_cbranch_scc1 {L}")
    timeout_mark(2 + (A.uid % 12))
    A.label(Ld)

def H_REG(ch, a): return 16 + 12*ch + 4*a
def conv_helper_wave():
    T = S_T
    x_tile()
    stamp(5)
    A("v_and_b32 v1, 15, v0")
    A("v_lshrrev_b32 v2, 4, v0")
    A("v_lshlrev_b32 v1, 4, v1")
    A("v_lshl_add_u32 v1, v2, 2, v1")
    A(f"s_lshl_b32 s{T+1}, s71, 1")
    A(f"v_mov_b32 v2, s{T+1}")
    A(f"global_load_dwordx2 v[12:13], v2, s[{S_D}:{S_D+1}]")
    if not STAGE_NOMOE:
        Ls = A.newlabel("L_nosel")
        A(f"s_cmp_lg_u32 s{S_WAVE}, 4")
        A(f"s_cbranch_scc1 {Ls}")
        for i in range(4): A(f"v_mov_b32 v{64+i}, 0")
        A("v_lshlrev_b32 v3, 5, v0")
        A(f"v_add_u32 v3, {L_SELM}, v3")
        A(f"ds_write_b128 v3, {p4(64)}")
        A(f"ds_write_b128 v3, {p4(64)} offset:16")
        A("v_and_b32 v3, 7, v0")
        A("v_lshlrev_b32 v3, 3, v3")
        add64(T+2, S_WS, WS_SEL)
        tagcheck_loop(lambda: A(f"global_load_dwordx2 v[64:65], v3, s[{T+2}:{T+3}] sc1"), [65], 66, 67)
        A("v_mov_b32 v65, 0x80")
        A("s_mov_b64 exec, 0xff")
        A(f"v_add_u32 v66, {L_SELM}, v64")
        A(f"ds_write_b8 v66, v65")
        A("v_lshlrev_b32 v3, 2, v0")
        A(f"v_add_u32 v3, {L_SELM+2048}, v3")
        A(f"ds_write_b32 v3, v64")
        A("s_mov_b64 exec, -1")
        A.label(Ls)
    A(f"s_lshl_b32 s{T+1}, s72, 12")
    A("v_lshlrev_b32 v3, 3, v1")
    A(f"v_add_u32 v3, s{T+1}, v3")
    ST = 64
    add64(T+2, S_WS, WS_SG)
    def ld():
        for tt in range(2):
            A(f"global_load_dwordx4 {p4(ST+8*tt)}, v3, s[{T+2}:{T+3}] offset:{2048*tt} sc1")
            A(f"global_load_dwordx4 {p4(ST+8*tt+4)}, v3, s[{T+2}:{T+3}] offset:{2048*tt+16} sc1")
    tagcheck_loop(ld, [ST+8*tt+2*r+1 for tt in range(2) for r in range(4)], 10, 14)
    M, RS = 80, 88
    for tt in range(2):
        for r in range(4):
            st = ST + 8*tt + 2*r
            A(f"v_lshlrev_b32 v{M+4*tt+r}, 16, v{st}")
            A(f"v_and_b32 v{RS+4*tt+r}, s{S_MASK}, v{st}")
    for i in range(8): A(f"v_rcp_f32 v{RS+i}, v{RS+i}")
    poll_flags(100, both=True)
    stamp(6)
    A(f"s_lshl_b32 s{T+1}, s71, 12")
    A(f"s_lshl_b32 s{T+2}, s72, 10")
    A(f"s_add_u32 s{T+1}, s{T+1}, s{T+2}")
    A("v_lshlrev_b32 v4, 1, v1")
    A(f"v_add_u32 v4, s{T+1}, v4")
    for ch in range(1, 4): A(f"v_add_u32 v{4+ch}, {4096*ch}, v4")
    add64(T+2, S_WS, WS_KVT)
    add64(T+4, S_WS, WS_XT)
    XR, KR = 96, 112
    for ch in range(4):
        for tt in range(2):
            A(f"global_load_dwordx2 {p2(XR+4*ch+2*tt)}, v{4+ch}, s[{T+4}:{T+5}] offset:{512*tt} sc1")
            A(f"global_load_dwordx2 {p2(KR+4*ch+2*tt)}, v{4+ch}, s[{T+2}:{T+3}] offset:{512*tt} sc1")
    A("s_waitcnt vmcnt(16)")
    A(f"v_lshlrev_b32 v8, 16, v12"); A(f"v_and_b32 v9, s{S_MASK}, v12")
    A(f"v_lshlrev_b32 v10, 16, v13"); A(f"v_and_b32 v11, s{S_MASK}, v13")
    A(f"s_lshl_b32 s{T+1}, s72, 10")
    A(f"s_add_u32 s{T+1}, s{T+1}, {L_PRE}")
    A("v_lshlrev_b32 v3, 4, v0")
    A(f"v_add_u32 v3, s{T+1}, v3")
    for ch in range(4):
        A(f"s_waitcnt vmcnt({4*(3-ch)})")
        for tt in range(2):
            if tt == 0: X, XN, TK = 64, 68, 72
            else: X, XN, TK = H_REG(ch,0), H_REG(ch,1), H_REG(ch,2)
            xr = XR+4*ch+2*tt; kr = KR+4*ch+2*tt
            A(f"v_lshlrev_b32 v{X}, 16, v{xr}");   A(f"v_and_b32 v{X+1}, s{S_MASK}, v{xr}")
            A(f"v_lshlrev_b32 v{X+2}, 16, v{xr+1}"); A(f"v_and_b32 v{X+3}, s{S_MASK}, v{xr+1}")
            A(f"v_lshlrev_b32 v{TK}, 16, v{kr}");   A(f"v_and_b32 v{TK+1}, s{S_MASK}, v{kr}")
            A(f"v_lshlrev_b32 v{TK+2}, 16, v{kr+1}"); A(f"v_and_b32 v{TK+3}, s{S_MASK}, v{kr+1}")
            for r in range(4): A(f"v_sub_f32 v{XN+r}, v{X+r}, v{M+4*tt+r}")
            for r in range(4): A(f"v_mul_f32 v{TK+r}, v{TK+r}, v{8+ch}")
            for r in range(4): rnd(XN+r)
            for r in range(4): rnd(TK+r)
            for r in range(4): A(f"v_mul_f32 v{XN+r}, v{XN+r}, v{RS+4*tt+r}")
            for r in range(4): rnd(XN+r)
            if tt == 0:
                for a, rg in enumerate((X, XN, TK)):
                    A(f"ds_write_b128 v3, {p4(rg)} offset:{ch*PRE_CH + a*4096}")
                A("s_nop 1")
    stamp(7)

def epi(Y, X, XN, TK, O):
    for r in range(4): rnd(Y+r)
    for h in (0, 2): A(f"v_pk_add_f32 {p2(Y+h)}, {p2(Y+h)}, {p2(TK+h)}")
    for r in range(4): rnd(Y+r)
    for h in (0, 2): A(f"v_pk_mul_f32 {p2(Y+h)}, {p2(XN+h)}, {p2(Y+h)}")
    for r in range(4): rnd(Y+r)
    for h in (0, 2): A(f"v_pk_add_f32 {p2(Y+h)}, {p2(X+h)}, {p2(Y+h)}")
    for r in range(4): rnd(Y+r)
    A(f"v_cvt_pk_bf16_f32 v{O+2}, v{Y}, v{Y+1}")
    A(f"v_cvt_pk_bf16_f32 v{O+3}, v{Y+2}, v{Y+3}")
    for h in (0, 2): A(f"v_pk_add_f32 {p2(Y+h)}, {p2(Y+h)}, {p2(XN+h)}")
    A(f"v_cvt_pk_bf16_f32 v{O}, v{Y}, v{Y+1}")
    A(f"v_cvt_pk_bf16_f32 v{O+1}, v{Y+2}, v{Y+3}")

def conv_wg():
    T = S_T
    HR = conv_tile()
    A(f"s_cmp_ge_u32 s{S_WAVE}, 4")
    A("s_cbranch_scc1 L_helper")
    ACC = conv_mfma_wave(HR)
    A("s_nop 7"); A("s_nop 7")
    A("v_lshlrev_b32 v1, 4, v0")
    A("v_add_u32 v1, s74, v1")
    for k in range(4):
        A(f"ds_write_b128 v1, {p4(ACC+4*(2*k+1))} offset:{1024*k}")
    A("s_waitcnt lgkmcnt(0)")
    A("s_barrier")
    stamp(8)
    A(f"s_mul_i32 s73, s{S_WAVE}, {PRE_CH}")
    A(f"s_add_u32 s73, s73, {L_PRE}")
    A("v_lshlrev_b32 v8, 4, v0")
    A("v_add_u32 v8, s73, v8")
    PR = 64
    for k in range(4):
        for a in range(3):
            A(f"ds_read_b128 {p4(PR+12*k+4*a)}, v8 offset:{a*4096 + k*1024}")
    A("v_and_b32 v1, 15, v0")
    A("v_lshrrev_b32 v2, 4, v0")
    A("v_lshlrev_b32 v1, 5, v1")
    A("v_lshl_add_u32 v1, v2, 3, v1")
    A("v_add_u32 v1, s74, v1")
    for k in range(4):
        A(f"s_waitcnt lgkmcnt({min(15, 3*(3-k) + 2*k)})")
        epi(ACC+4*(2*k), PR+12*k, PR+12*k+4, PR+12*k+8, 120)
        A(f"ds_write_b64 v1, {p2(120)} offset:{4096+512*(2*k)}")
        A(f"ds_write_b64 v1, {p2(122)} offset:{8192+512*(2*k)}")
    A("s_branch L_conv_fin")
    A.label("L_helper")
    conv_helper_wave()
    A("s_waitcnt lgkmcnt(0)")
    A("s_barrier")
    stamp(8)
    A(f"s_lshl_b32 s{T+1}, s72, 10")
    A("v_lshlrev_b32 v1, 4, v0")
    A(f"v_add_u32 v1, s{T+1}, v1")
    YR = 64
    for ch in range(4):
        A(f"ds_read_b128 {p4(YR+4*ch)}, v1 offset:{L_P + ch*P_CH}")
    A("v_and_b32 v1, 15, v0")
    A("v_lshrrev_b32 v2, 4, v0")
    A("v_lshlrev_b32 v1, 5, v1")
    A("v_lshl_add_u32 v1, v2, 3, v1")
    A(f"s_lshl_b32 s{T+1}, s72, 10")
    A(f"v_add_u32 v1, s{T+1}, v1")
    A("s_waitcnt lgkmcnt(0)")
    for ch in range(4):
        epi(YR+4*ch, H_REG(ch,0), H_REG(ch,1), H_REG(ch,2), 120)
        A(f"ds_write_b64 v1, {p2(120)} offset:{L_P + ch*P_CH + 4096 + 512}")
        A(f"ds_write_b64 v1, {p2(122)} offset:{L_P + ch*P_CH + 8192 + 512}")
    A.label("L_conv_fin")
    A("s_waitcnt lgkmcnt(0)")
    A("s_barrier")
    stamp(9)
    A(f"s_lshl_b32 s{T+1}, s{S_WAVE}, 6")
    A(f"v_add_u32 v1, s{T+1}, v0")
    A("v_lshlrev_b32 v2, 3, v1")
    for ch in range(4):
        A(f"ds_read_b64 {p2(16+2*ch)}, v2 offset:{L_P + ch*P_CH + 4096}")
    if not STAGE_NOMOE:
        A("v_lshlrev_b32 v3, 2, v1")
        A(f"v_add_u32 v3, {L_SELM}, v3")
        A(f"ds_read_b32 v24, v3")
    A(f"s_lshl_b32 s{T+2}, s71, 1")
    A(f"v_mul_u32_u24 v4, 4608, v1")
    A(f"v_add_u32 v4, s{T+2}, v4")
    A("s_waitcnt lgkmcnt(0)")
    for h in range(2):
        A(f"v_perm_b32 v{32+8*h+0}, v{18+h}, v{16+h}, s{S_SELLO}")
        A(f"v_perm_b32 v{32+8*h+1}, v{22+h}, v{20+h}, s{S_SELLO}")
        A(f"v_perm_b32 v{32+8*h+2}, v{18+h}, v{16+h}, s{S_SELHI}")
        A(f"v_perm_b32 v{32+8*h+3}, v{22+h}, v{20+h}, s{S_SELHI}")
    for r in range(4):
        if STAGE_NOMOE:
            A(f"v_add_u32 v5, {1152*r}, v4")
        else:
            A(f"v_lshlrev_b32 v5, {24-8*r}, v24")
            A(f"v_and_b32 v5, 0x80000000, v5")
            A(f"v_or_b32 v5, v5, v4")
            if r: A(f"v_add_u32 v5, {1152*r}, v5")
        src = 32 + 8*(r//2) + 2*(r & 1)
        A(f"buffer_store_dwordx2 {p2(src)}, v5, s[{SRD_O}:{SRD_O+3}], 0 offen")
    if not STAGE_NOMOE:
        Lx = A.newlabel("L_not1")
        A(f"s_cmp_lg_u32 s{S_WAVE}, 0")
        A(f"s_cbranch_scc1 {Lx}")
        A("s_mov_b64 exec, 0xffffffff")
        A("v_lshrrev_b32 v1, 2, v0")
        A("v_and_b32 v2, 3, v0")
        A("v_lshlrev_b32 v3, 2, v1")
        A(f"v_add_u32 v3, {L_SELM+2048}, v3")
        A(f"ds_read_b32 v6, v3")
        A(f"v_mul_u32_u24 v7, {P_CH}, v2")
        A("s_waitcnt lgkmcnt(0)")
        A("v_lshl_add_u32 v7, v6, 1, v7")
        A(f"ds_read_u16 v8, v7 offset:{L_P+8192}")
        A(f"v_mul_u32_u24 v10, 576, v1")
        A(f"v_add3_u32 v10, v10, v2, s71")
        A(f"v_lshlrev_b32 v10, 3, v10")
        add64(T+4, S_WS, WS_T1G)
        A(f"v_mov_b32 v9, s{S_NONCE}")
        A("s_waitcnt lgkmcnt(0)")
        A("v_lshlrev_b32 v8, 16, v8")
        A(f"global_store_dwordx2 v10, v[8:9], s[{T+4}:{T+5}] sc1")
        A("s_mov_b64 exec, -1")
        A.label(Lx)
    A("s_branch L_fin")

def dpp_sum16(v):
    for sh in (8, 4, 2, 1):
        A("s_nop 1")
        A(f"v_add_f32_dpp v{v}, v{v}, v{v} row_ror:{sh} row_mask:0xf bank_mask:0xf")

def ln_loads():
    T = S_T
    A(f"s_sub_u32 s{T}, s{S_WG}, {NCONV}")
    A(f"s_lshl_b32 s{T}, s{T}, 5")
    A(f"s_lshl_b32 s{T+1}, s{S_WAVE}, 2")
    A(f"s_add_u32 s{T}, s{T}, s{T+1}")
    A("v_lshrrev_b32 v1, 4, v0")
    A("v_and_b32 v2, 15, v0")
    A(f"v_add_u32 v3, s{T}, v1")
    A(f"v_mul_u32_u24 v4, 1152, v3")
    A(f"v_lshl_add_u32 v5, v2, 4, v4")
    A(f"v_lshl_add_u32 v6, v2, 3, v4")
    A(f"v_lshlrev_b32 v7, 4, v2")
    A(f"v_lshlrev_b32 v8, 3, v2")
    Q = 10; W = 28
    for i in range(4):
        A(f"global_load_dwordx4 {p4(Q+4*i)}, v5, s[{S_Q}:{S_Q+1}] offset:{256*i} {NT}")
    A(f"global_load_dwordx2 {p2(Q+16)}, v6, s[{S_Q}:{S_Q+1}] offset:1024 {NT}")
    for i in range(4):
        A(f"global_load_dwordx4 {p4(W+4*i)}, v7, s[{S_WR}:{S_WR+1}] offset:{256*i}")
    A(f"global_load_dwordx2 {p2(W+16)}, v8, s[{S_WR}:{S_WR+1}] offset:1024")

def ln_compute(nafter):
    T = S_T
    Q = 10; W = 28
    A(f"s_waitcnt vmcnt({nafter})")
    stamp(2)
    X = 64
    for i in range(18):
        A(f"v_lshlrev_b32 v{X+2*i}, 16, v{Q+i}")
        A(f"v_and_b32 v{X+2*i+1}, s{S_MASK}, v{Q+i}")
    a0, a1 = 100, 102
    A(f"v_pk_add_f32 {p2(a0)}, {p2(X)}, {p2(X+2)}")
    A(f"v_pk_add_f32 {p2(a1)}, {p2(X+4)}, {p2(X+6)}")
    for i in range(4, 18, 2):
        A(f"v_pk_add_f32 {p2(a0)}, {p2(a0)}, {p2(X+2*i)}")
        A(f"v_pk_add_f32 {p2(a1)}, {p2(a1)}, {p2(X+2*i+2)}")
    A(f"v_pk_add_f32 {p2(a0)}, {p2(a0)}, {p2(a1)}")
    A(f"v_add_f32 v104, v{a0}, v{a0+1}")
    dpp_sum16(104)
    A(f"v_mul_f32 v104, 0x{f32bits(1.0/576):08x}, v104")
    for r in (a0, a0+1, a1, a1+1): A(f"v_mov_b32 v{r}, 0")
    for i in range(0, 18, 2):
        A(f"v_pk_add_f32 v[106:107], {p2(X+2*i)}, v[104:105] op_sel_hi:[1,0] neg_lo:[0,1] neg_hi:[0,1]")
        A(f"v_pk_add_f32 v[108:109], {p2(X+2*i+2)}, v[104:105] op_sel_hi:[1,0] neg_lo:[0,1] neg_hi:[0,1]")
        A(f"v_pk_fma_f32 {p2(a0)}, v[106:107], v[106:107], {p2(a0)}")
        A(f"v_pk_fma_f32 {p2(a1)}, v[108:109], v[108:109], {p2(a1)}")
    A(f"v_pk_add_f32 {p2(a0)}, {p2(a0)}, {p2(a1)}")
    A(f"v_add_f32 v106, v{a0}, v{a0+1}")
    dpp_sum16(106)
    A(f"v_mul_f32 v106, 0x{f32bits(1.0/576):08x}, v106")
    rnd(106)
    A(f"v_add_f32 v106, 0x{f32bits(1e-5):08x}, v106")
    rnd(106)
    A("v_sqrt_f32 v107, v106")
    A("s_nop 0")
    A("v_rcp_f32 v108, v107")
    A("v_fma_f32 v109, -v107, v107, v106")
    A("v_mul_f32 v108, 0.5, v108")
    A("v_fma_f32 v107, v109, v108, v107")
    rnd(107)
    A("v_rcp_f32 v108, v107")
    A("s_nop 0")
    A("v_fma_f32 v109, -v107, v108, 1.0")
    A("v_fma_f32 v110, v109, v108, v108")
    rnd(104)
    A("v_mov_b32 v112, 0")
    for i in range(18):
        t = 114 + 2*(i % 2)
        A(f"v_pk_add_f32 {p2(t)}, {p2(X+2*i)}, v[104:105] op_sel_hi:[1,0] neg_lo:[0,1] neg_hi:[0,1]")
        rnd(t); rnd(t+1)
        A(f"v_pk_mul_f32 {p2(t)}, {p2(t)}, v[110:111] op_sel_hi:[1,0]")
        A(f"v_cvt_pk_bf16_f32 v{t}, v{t}, v{t+1}")
        A(f"v_dot2_f32_bf16 v112, v{t}, v{W+i}, v112")
    A("s_nop 2")
    dpp_sum16(112)
    rnd(112)
    A("v_or_b32 v112, v112, v3")
    A("v_cvt_pk_bf16_f32 v114, v104, v107")
    stamp(3)

def ln_publish():
    T = S_T
    A(f"v_mov_b32 v113, s{S_NONCE}")
    A(f"v_mov_b32 v115, s{S_NONCE}")
    A("v_lshlrev_b32 v116, 3, v3")
    add64(T+2, S_WS, WS_RG)
    add64(T+4, S_WS, WS_SG)
    A("v_cmp_eq_u32 vcc, 0, v2")
    A(f"s_and_saveexec_b64 s[{T+6}:{T+7}], vcc")
    A(f"global_store_dwordx2 v116, v[112:113], s[{T+2}:{T+3}] sc1")
    A(f"global_store_dwordx2 v116, v[114:115], s[{T+4}:{T+5}] sc1")
    A(f"s_mov_b64 exec, s[{T+6}:{T+7}]")


M_WG = 0
M_WU = 55296
M_XS = 110592
XS_RS = 1168
M_H = M_XS + 8*XS_RS
H_RS = 144
M_GU = M_H + 8*H_RS
M_LIST = M_GU + 3072
M_MISC = M_LIST + 8192 + 64
M_RED = M_MISC + 128
M_END = M_RED + 2048
assert M_END <= L_CONV_END, M_END

def lds_bar(idx, nw, va, vb):
    T = S_T
    L = A.newlabel("L_lb")
    A("s_waitcnt lgkmcnt(0)")
    A(f"v_mov_b32 v{va}, {M_MISC + 4*idx}")
    A(f"v_mov_b32 v{vb}, 1")
    A("s_mov_b64 exec, 1")
    A(f"ds_add_u32 v{va}, v{vb}")
    A("s_mov_b64 exec, -1")
    A(f"s_mov_b32 s{T+1}, 0")
    A.label(L)
    A(f"ds_read_b32 v{vb}, v{va}")
    A("s_waitcnt lgkmcnt(0)")
    A(f"v_readfirstlane_b32 s{T}, v{vb}")
    A(f"s_add_u32 s{T+1}, s{T+1}, 1")
    A(f"s_cmp_ge_u32 s{T+1}, {SPIN_MAX*8}")
    A(f"s_cbranch_scc1 {L}_d")
    A(f"s_cmp_lt_u32 s{T}, {nw}")
    A(f"s_cbranch_scc1 {L}")
    A.label(L + "_d")

def moe_dma():
    T = S_T
    srd(SRD_K, S_WGT, 5308416)
    srd(SRD_V, S_WUP, 5308416)
    A("v_mul_u32_u24 v1, 43, v0")
    A("v_lshrrev_b32 v1, 8, v1")
    A("v_mul_u32_u24 v2, 6, v1")
    A("v_sub_u32 v2, v0, v2")
    A("v_mul_u32_u24 v1, 9216, v1")
    A("v_lshl_add_u32 v1, v2, 4, v1")
    A(f"s_mul_i32 s{T+1}, s70, 96")
    A(f"v_add_u32 v1, s{T+1}, v1")
    A(f"s_sub_u32 s{T+2}, s{S_WAVE}, 4")
    A(f"s_mul_i32 s{T+3}, s{T+2}, 73728")
    A(f"s_mul_i32 s{T+4}, s{T+2}, 768")
    A("s_mov_b32 exec_hi, 0xffff")
    for i in range(18):
        A(f"s_add_u32 m0, s{T+4}, {M_WG}")
        A("s_nop 0")
        A(f"buffer_load_dwordx4 v1, s[{SRD_K}:{SRD_K+3}], s{T+3} offen {NT} lds")
        A(f"s_add_u32 m0, s{T+4}, {M_WU}")
        A("s_nop 0")
        A(f"buffer_load_dwordx4 v1, s[{SRD_V}:{SRD_V+3}], s{T+3} offen {NT} lds")
        A(f"s_add_u32 s{T+3}, s{T+3}, {4*73728}")
        A(f"s_add_u32 s{T+4}, s{T+4}, {4*768}")
    A("s_mov_b64 exec, -1")

DW0, DW1 = 64, 96
def moe_down_loads():
    T = S_T
    A("v_and_b32 v1, 15, v0")
    A("v_lshrrev_b32 v2, 2, v1")
    A("v_and_b32 v3, 3, v1")
    A("v_mul_u32_u24 v2, 3, v2")
    A("v_add_u32 v2, v2, v3")
    A("v_mul_u32_u24 v2, 12, v2")
    A("v_lshrrev_b32 v4, 4, v0")
    A("v_mul_u32_u24 v5, 9216, v4")
    A("v_add_u32 v2, v2, v5")
    A(f"s_mul_i32 s{T+1}, s70, {48*1152}")
    A(f"s_mul_i32 s{T+2}, s{S_WAVE}, 144")
    A(f"s_add_u32 s{T+1}, s{T+1}, s{T+2}")
    A(f"v_add_u32 v2, s{T+1}, v2")
    A(f"v_add_u32 v5, 4608, v2")
    A(f"v_add_u32 v6, 36864, v2")
    A(f"v_add_u32 v7, {36864+4608}, v2")
    for i in range(32): A(f"v_mov_b32 v{DW1+i}, 0")
    A("v_cmp_ne_u32 vcc, 3, v3")
    A(f"s_mov_b64 s[{T+4}:{T+5}], vcc")
    A(f"s_mov_b64 exec, vcc")
    for jj in range(8):
        A(f"global_load_dwordx3 v[{DW0+4*jj}:{DW0+4*jj+2}], v{2 if jj<4 else 5}, s[{S_WD}:{S_WD+1}] offset:{1152*(jj%4)} {NT}")
    A(f"s_mov_b32 exec_hi, 0")
    for jj in range(8):
        A(f"global_load_dwordx3 v[{DW1+4*jj}:{DW1+4*jj+2}], v{6 if jj<4 else 7}, s[{S_WD}:{S_WD+1}] offset:{1152*(jj%4)} {NT}")
    A("s_mov_b64 exec, -1")

def moe_top8():
    T = S_T
    A(f"s_lshl_b32 s{T+1}, s{S_WAVE}, 6")
    A(f"v_add_u32 v1, s{T+1}, v0")
    A("v_lshlrev_b32 v2, 6, v1")
    add64(T+2, S_WS, WS_RG)
    K = 16
    def ld():
        for i in range(4):
            A(f"global_load_dwordx4 {p4(K+4*i)}, v2, s[{T+2}:{T+3}] offset:{16*i} sc1")
    tagcheck_loop(ld, [K+2*i+1 for i in range(8)], 10, 12)
    stamp(5)
    keys = [K+2*i for i in range(8)]
    A(f"v_max3_f32 v40, v{keys[0]}, v{keys[1]}, v{keys[2]}")
    A(f"v_max3_f32 v41, v{keys[3]}, v{keys[4]}, v{keys[5]}")
    A(f"v_max3_f32 v40, v40, v{keys[6]}, v{keys[7]}")
    A(f"v_max_f32 v40, v40, v41")
    for sh in (8, 4, 2, 1):
        A("s_nop 1")
        A(f"v_max_f32_dpp v40, v40, v40 row_ror:{sh} row_mask:0xf bank_mask:0xf")
    A("s_nop 1")
    A(f"v_readlane_b32 s{T+4}, v40, 16")
    A(f"v_readlane_b32 s{T+5}, v40, 48")
    A(f"v_readlane_b32 s{T+6}, v40, 32")
    A("s_nop 1")
    A(f"v_max_f32 v41, s{T+4}, v40")
    A(f"v_mov_b32 v42, s{T+6}")
    A(f"v_max_f32 v42, s{T+5}, v42")
    A(f"s_lshl_b32 s{T+4}, s{S_WAVE}, 3")
    A(f"s_add_u32 s{T+4}, s{T+4}, {M_MISC+16}")
    A(f"v_mov_b32 v43, s{T+4}")
    A("s_mov_b64 exec, 1")
    A(f"ds_write_b32 v43, v41")
    A(f"ds_write_b32 v43, v42 offset:4")
    A("s_mov_b64 exec, -1")
    lds_bar(1, 4, 44, 45)
    A(f"v_mov_b32 v43, {M_MISC+16}")
    A(f"ds_read_b128 {p4(44)}, v43")
    A(f"ds_read_b128 {p4(48)}, v43 offset:16")
    A("s_waitcnt lgkmcnt(0)")
    A("v_min3_f32 v40, v44, v45, v46")
    A("v_min3_f32 v41, v47, v48, v49")
    A("v_min3_f32 v40, v40, v50, v51")
    A("v_min_f32 v40, v40, v41")
    A("v_mov_b32 v41, 0")
    for i in range(8):
        A(f"v_cmp_ge_f32 s[{T+4+2*(i%4)}:{T+5+2*(i%4)}], v{keys[i]}, v40")
        if i % 4 == 3:
            for q in range(4):
                A(f"v_addc_co_u32 v41, vcc, 0, v41, s[{T+4+2*q}:{T+5+2*q}]")
    A(f"v_mov_b32 v43, {M_MISC}")
    A("v_cmp_lt_u32 vcc, 0, v41")
    A(f"s_and_saveexec_b64 s[{T+12}:{T+13}], vcc")
    A("ds_add_rtn_u32 v42, v43, v41")
    A(f"s_mov_b64 exec, s[{T+12}:{T+13}]")
    A("s_waitcnt lgkmcnt(0)")
    A("v_lshlrev_b32 v42, 2, v42")
    A(f"v_add_u32 v42, {M_LIST}, v42")
    A(f"v_mov_b32 v43, {M_RED}")
    for i in range(8):
        A(f"v_cmp_ge_f32 vcc, v{keys[i]}, v40")
        A("s_nop 1")
        A(f"v_cndmask_b32 v44, v43, v42, vcc")
        A(f"v_cndmask_b32 v45, 0, 4, vcc")
        A(f"ds_write_b32 v44, v{keys[i]}")
        A(f"v_add_u32 v42, v42, v45")
    lds_bar(2, 4, 44, 45)
    A(f"v_mov_b32 v43, {M_MISC}")
    A("ds_read_b32 v44, v43")
    A("s_waitcnt lgkmcnt(0)")
    A(f"v_readfirstlane_b32 s{T+8}, v44")
    A(f"s_mov_b32 s{T+9}, 0")
    Lc = A.newlabel("L_chunk"); Lj = A.newlabel("L_j")
    A.label(Lc)
    A(f"v_add_u32 v44, s{T+9}, v0")
    A("v_lshlrev_b32 v44, 2, v44")
    A(f"v_add_u32 v44, {M_LIST}, v44")
    A("ds_read_b32 v46, v44")
    A("v_mov_b32 v47, 0")
    A(f"v_mov_b32 v45, {M_LIST}")
    A(f"s_mov_b32 s{T+10}, 0")
    A.label(Lj)
    A(f"ds_read_b128 {p4(48)}, v45")
    A("v_add_u32 v45, 16, v45")
    A(f"s_add_u32 s{T+10}, s{T+10}, 4")
    A("s_waitcnt lgkmcnt(0)")
    for q in range(4):
        A(f"v_cmp_gt_f32 s[{T+2*q}:{T+2*q+1}], v{48+q}, v46")
    for q in range(4):
        A(f"v_addc_co_u32 v47, vcc, 0, v47, s[{T+2*q}:{T+2*q+1}]")
    A(f"s_cmp_lt_u32 s{T+10}, s{T+8}")
    A(f"s_cbranch_scc1 {Lj}")
    A(f"v_add_u32 v44, s{T+9}, v0")
    A(f"v_cmp_gt_u32 vcc, s{T+8}, v44")
    A(f"v_cmp_gt_u32 s[{T}:{T+1}], 8, v47")
    A("s_nop 1")
    A(f"s_and_b64 vcc, vcc, s[{T}:{T+1}]")
    A(f"s_and_saveexec_b64 s[{T+12}:{T+13}], vcc")
    A("v_lshlrev_b32 v47, 2, v47")
    A(f"v_add_u32 v47, {M_MISC+32}, v47")
    A("ds_write_b32 v47, v46")
    A(f"s_mov_b64 exec, s[{T+12}:{T+13}]")
    A(f"s_add_u32 s{T+9}, s{T+9}, 64")
    A(f"s_cmp_lt_u32 s{T+9}, s{T+8}")
    A(f"s_cbranch_scc1 {Lc}")
    A("s_waitcnt lgkmcnt(0)")
    stamp(6)

def moe_xs():
    T = S_T
    A(f"s_lshl_b32 s{T+1}, s{S_WAVE}, 2")
    A(f"s_add_u32 s{T+1}, s{T+1}, {M_MISC+32}")
    A(f"v_mov_b32 v1, s{T+1}")
    A("ds_read_b32 v16, v1")
    A("ds_read_b32 v17, v1 offset:16")
    A("s_waitcnt lgkmcnt(0)")
    add64(T+2, S_WS, WS_SG)
    A("s_mov_b32 exec_hi, 0xf")
    for h in range(2):
        A(f"v_and_b32 v{18+h}, 0x7ff, v{16+h}")
        A(f"v_mul_u32_u24 v{20+h}, 1152, v{18+h}")
        A(f"v_lshl_add_u32 v{20+h}, v0, 5, v{20+h}")
        A(f"global_load_dwordx4 {p4(24+8*h)}, v{20+h}, s[{S_Q}:{S_Q+1}]")
        A(f"global_load_dwordx4 {p4(28+8*h)}, v{20+h}, s[{S_Q}:{S_Q+1}] offset:16")
        A(f"v_lshlrev_b32 v{22+h}, 3, v{18+h}")
    def ld():
        A(f"global_load_dwordx2 v[40:41], v22, s[{T+2}:{T+3}] sc1")
        A(f"global_load_dwordx2 v[42:43], v23, s[{T+2}:{T+3}] sc1")
    tagcheck_loop(ld, [41, 43], 10, 12)
    for h in range(2):
        st = 40 + 2*h
        A(f"v_lshlrev_b32 v44, 16, v{st}")
        A(f"v_and_b32 v45, s{S_MASK}, v{st}")
        A("v_rcp_f32 v46, v45")
        A("s_nop 0")
        A("v_fma_f32 v47, -v45, v46, 1.0")
        A("v_fma_f32 v46, v47, v46, v46")
        for i in range(8):
            r = 24 + 8*h + i
            A(f"v_lshlrev_b32 v48, 16, v{r}")
            A(f"v_and_b32 v49, s{S_MASK}, v{r}")
            A("v_pk_add_f32 v[48:49], v[48:49], v[44:45] op_sel_hi:[1,0] neg_lo:[0,1] neg_hi:[0,1]")
            rnd(48); rnd(49)
            A("v_pk_mul_f32 v[48:49], v[48:49], v[46:47] op_sel_hi:[1,0]")
            A(f"v_cvt_pk_bf16_f32 v{r}, v48, v49")
        A(f"s_mul_i32 s{T+4}, s{S_WAVE}, {XS_RS}")
        A(f"s_add_u32 s{T+4}, s{T+4}, {M_XS + 4*XS_RS*h}")
        A("v_lshlrev_b32 v50, 5, v0")
        A(f"v_add_u32 v50, s{T+4}, v50")
        A(f"ds_write_b128 v50, {p4(24+8*h)}")
        A(f"ds_write_b128 v50, {p4(28+8*h)} offset:16")
        A(f"v_and_b32 v51, s{S_MASK}, v{16+h}")
        A(f"v_mul_f32 v51, 0x{f32bits(-1.4426950408889634):08x}, v51")
        A("v_exp_f32 v51, v51")
        A("s_nop 0")
        A("v_add_f32 v51, 1.0, v51")
        A("v_rcp_f32 v51, v51")
        A("s_nop 0")
        rnd(51)
        A(f"s_lshl_b32 s{T+4}, s{S_WAVE}, 2")
        A(f"s_add_u32 s{T+4}, s{T+4}, {M_MISC + 64 + 16*h}")
        A(f"v_mov_b32 v52, s{T+4}")
        A("ds_write_b32 v52, v51")
    A("s_mov_b64 exec, -1")
    L = A.newlabel("L_nsp")
    A("s_cmp_lg_u32 s70, 0")
    A(f"s_cbranch_scc1 {L}")
    A(f"s_cmp_lg_u32 s{S_WAVE}, 0")
    A(f"s_cbranch_scc1 {L}")
    A("v_lshlrev_b32 v1, 2, v0")
    A(f"v_add_u32 v1, {M_MISC+32}, v1")
    A("s_mov_b64 exec, 0xff")
    A("ds_read_b32 v2, v1")
    add64(T+2, S_WS, WS_SEL)
    A(f"v_mov_b32 v3, s{S_NONCE}")
    A("v_lshlrev_b32 v4, 3, v0")
    A("s_waitcnt lgkmcnt(0)")
    A("v_and_b32 v2, 0x7ff, v2")
    A(f"global_store_dwordx2 v4, v[2:3], s[{T+2}:{T+3}] sc1")
    A("s_mov_b64 exec, -1")
    A.label(L)

def moe_gateup():
    T = S_T
    L = A.newlabel("L_nogu")
    A(f"s_cmp_ge_u32 s{S_WAVE}, 6")
    A(f"s_cbranch_scc1 {L}")
    A(f"s_cmp_ge_u32 s{S_WAVE}, 3")
    A(f"s_cselect_b32 s{T+1}, 1, 0")
    A(f"s_mul_i32 s{T+2}, s{T+1}, 3")
    A(f"s_sub_u32 s{T+2}, s{S_WAVE}, s{T+2}")
    A("v_lshrrev_b32 v1, 4, v0")
    A("v_bfe_u32 v2, v0, 2, 2")
    A("v_lshl_add_u32 v2, v1, 3, v2")
    A("v_mul_u32_u24 v2, 96, v2")
    A("v_and_b32 v3, 3, v0")
    A("v_lshl_add_u32 v2, v3, 3, v2")
    A(f"s_mul_i32 s{T+3}, s{T+1}, {M_WU}")
    A(f"s_lshl_b32 s{T+4}, s{T+2}, 5")
    A(f"s_add_u32 s{T+3}, s{T+3}, s{T+4}")
    A(f"v_add_u32 v2, s{T+3}, v2")
    A("v_and_b32 v3, 7, v0")
    A(f"v_mul_u32_u24 v3, {XS_RS}, v3")
    A("v_lshl_add_u32 v3, v1, 4, v3")
    A(f"v_add_u32 v3, {M_XS}, v3")
    for i in range(4): A(f"v_mov_b32 v{8+i}, 0")
    def rd(t):
        b = 8*(t % 8)
        A(f"ds_read_b64_tr_b16 a[{b}:{b+1}], v2 offset:{3072*t}")
        A(f"ds_read_b64_tr_b16 a[{b+2}:{b+3}], v2 offset:{3072*t+384}")
        A(f"ds_read_b128 a[{b+4}:{b+7}], v3 offset:{64*t}")
    for t in range(5): rd(t)
    for t in range(18):
        rem = min(17, t+4) - t
        A(f"s_waitcnt lgkmcnt({3*rem})")
        b = 8*(t % 8)
        A(f"v_mfma_f32_16x16x32_bf16 v[8:11], a[{b}:{b+3}], a[{b+4}:{b+7}], v[8:11]")
        if t + 5 < 18: rd(t+5)
    A("s_nop 7"); A("s_nop 1")
    A("v_and_b32 v3, 15, v0")
    A("v_mul_u32_u24 v4, 192, v3")
    A("v_lshl_add_u32 v4, v1, 4, v4")
    A(f"s_mul_i32 s{T+3}, s{T+1}, 1536")
    A(f"s_lshl_b32 s{T+4}, s{T+2}, 6")
    A(f"s_add_u32 s{T+3}, s{T+3}, s{T+4}")
    A(f"s_add_u32 s{T+3}, s{T+3}, {M_GU}")
    A(f"v_add_u32 v4, s{T+3}, v4")
    A("v_cmp_gt_u32 vcc, 8, v3")
    A(f"s_and_saveexec_b64 s[{T+12}:{T+13}], vcc")
    A(f"ds_write_b128 v4, {p4(8)}")
    A(f"s_mov_b64 exec, s[{T+12}:{T+13}]")
    A.label(L)

def moe_h():
    T = S_T
    L = A.newlabel("L_noh2")
    A(f"s_cmp_ge_u32 s{S_WAVE}, 6")
    A(f"s_cbranch_scc1 {L}")
    A(f"s_lshl_b32 s{T+1}, s{S_WAVE}, 6")
    A(f"v_add_u32 v1, s{T+1}, v0")
    A("v_lshlrev_b32 v2, 2, v1")
    A(f"v_add_u32 v2, {M_GU}, v2")
    A("ds_read_b32 v8, v2")
    A("ds_read_b32 v9, v2 offset:1536")
    A("v_mul_u32_u24 v3, 1366, v1")
    A("v_lshrrev_b32 v3, 16, v3")
    A("v_mul_u32_u24 v4, 48, v3")
    A("v_sub_u32 v4, v1, v4")
    A(f"v_mul_u32_u24 v3, {H_RS}, v3")
    A("v_lshl_add_u32 v3, v4, 1, v3")
    A(f"v_add_u32 v3, {M_H}, v3")
    A("s_waitcnt lgkmcnt(0)")
    rnd(8); rnd(9)
    A(f"v_mul_f32 v10, 0x{f32bits(-1.4426950408889634):08x}, v8")
    A("v_exp_f32 v10, v10")
    A("s_nop 0")
    A("v_add_f32 v10, 1.0, v10")
    A("v_rcp_f32 v10, v10")
    A("s_nop 0")
    A("v_mul_f32 v10, v8, v10")
    rnd(10)
    A("v_mul_f32 v10, v10, v9")
    A("v_cvt_pk_bf16_f32 v10, v10, v10")
    A("ds_write_b16 v3, v10")
    A.label(L)

FR0, FR1 = 16, 40
def moe_down_perm():
    for ks, (R, F) in enumerate(((DW0, FR0), (DW1, FR1))):
        for e in range(6):
            sel = S_SELLO if (e & 1) == 0 else S_SELHI
            for q in range(4):
                A(f"v_perm_b32 v{F+4*e+q}, v{R+4*(2*q+1)+e//2}, v{R+4*(2*q)+e//2}, s{sel}")

def moe_down():
    T = S_T
    A("v_and_b32 v1, 7, v0")
    A(f"v_mul_u32_u24 v1, {H_RS}, v1")
    A("v_lshrrev_b32 v2, 4, v0")
    A("v_lshl_add_u32 v1, v2, 4, v1")
    A(f"v_add_u32 v1, {M_H}, v1")
    A(f"ds_read_b128 {p4(64)}, v1")
    A(f"ds_read_b128 {p4(68)}, v1 offset:64")
    ACC = 72
    for i in range(24): A(f"v_mov_b32 v{ACC+i}, 0")
    A("s_waitcnt lgkmcnt(0)")
    for ks, F, B in ((0, FR0, 64), (1, FR1, 68)):
        for e in range(6):
            A(f"v_mfma_f32_16x16x32_bf16 {p4(ACC+4*e)}, {p4(F+4*e)}, {p4(B)}, {p4(ACC+4*e)}")
    A("v_and_b32 v3, 15, v0")
    A("v_lshlrev_b32 v4, 4, v3")
    A("v_lshl_add_u32 v4, v2, 7, v4")
    A(f"s_mul_i32 s{T+1}, s70, 24576")
    A(f"s_mul_i32 s{T+2}, s{S_WAVE}, 3072")
    A(f"s_add_u32 s{T+1}, s{T+1}, s{T+2}")
    A(f"v_add_u32 v4, s{T+1}, v4")
    add64(T+2, S_WS, WS_PART)
    A("s_nop 4")
    for e in range(6): A(f"v_mov_b32 v{ACC+4*e+3}, s{S_NONCE}")
    A("v_cmp_gt_u32 vcc, 8, v3")
    A(f"s_and_saveexec_b64 s[{T+12}:{T+13}], vcc")
    for e in range(6):
        A(f"global_store_dwordx4 v4, {p4(ACC+4*e)}, s[{T+2}:{T+3}] offset:{512*e} sc1")
    A(f"s_mov_b64 exec, s[{T+12}:{T+13}]")

def moe_reduce():
    T = S_T
    A("v_lshrrev_b32 v1, 4, v0")
    A(f"s_mul_i32 s{T+1}, s{S_WAVE}, 12")
    A(f"v_add_u32 v1, s{T+1}, v1")
    A(f"v_mul_u32_u24 v1, 24576, v1")
    A("v_and_b32 v2, 15, v0")
    A("v_lshl_add_u32 v1, v2, 4, v1")
    A(f"s_lshl_b32 s{T+1}, s70, 8")
    A(f"v_add_u32 v1, s{T+1}, v1")
    A(f"v_add_u32 v3, {4*24576}, v1")
    A(f"v_add_u32 v4, {8*24576}, v1")
    add64(T+2, S_WS, WS_PART)
    def ld():
        A(f"global_load_dwordx4 {p4(16)}, v1, s[{T+2}:{T+3}] sc1")
        A(f"global_load_dwordx4 {p4(20)}, v3, s[{T+2}:{T+3}] sc1")
        A(f"global_load_dwordx4 {p4(24)}, v4, s[{T+2}:{T+3}] sc1")
    tagcheck_loop(ld, [19, 23, 27], 10, 12)
    stamp(8)
    for r in range(3):
        A(f"v_add_f32 v{16+r}, v{16+r}, v{20+r}")
        A(f"v_add_f32 v{16+r}, v{16+r}, v{24+r}")
    for r in range(3):
        A(f"v_mov_b32 v{20+r}, v{16+r}")
    A("s_nop 1")
    for r in range(3):
        A(f"v_permlane32_swap_b32 v{16+r}, v{20+r}")
    for r in range(3):
        A(f"v_add_f32 v{16+r}, v{16+r}, v{20+r}")
    for r in range(3):
        A(f"v_mov_b32 v{20+r}, v{16+r}")
    A("s_nop 1")
    for r in range(3):
        A(f"v_permlane16_swap_b32 v{16+r}, v{20+r}")
    for r in range(3):
        A(f"v_add_f32 v{16+r}, v{16+r}, v{20+r}")
    A(f"s_lshl_b32 s{T+1}, s{S_WAVE}, 8")
    A("v_lshlrev_b32 v5, 4, v2")
    A(f"v_add_u32 v5, s{T+1}, v5")
    A(f"v_add_u32 v5, {M_RED}, v5")
    A("s_mov_b64 exec, 0xffff")
    A(f"ds_write_b128 v5, {p4(16)}")
    A("s_mov_b64 exec, -1")
    A("s_waitcnt lgkmcnt(0)")
    A("s_barrier")
    L = A.newlabel("L_nofin")
    A(f"s_cmp_lg_u32 s{S_WAVE}, 0")
    A(f"s_cbranch_scc1 {L}")
    A("s_mov_b32 exec_hi, 0xffff")
    A(f"s_and_b32 s{T+1}, s70, 1")
    A(f"s_lshr_b32 s{T+2}, s70, 1")
    A(f"s_mul_i32 s{T+3}, s{T+2}, 43")
    A(f"s_lshr_b32 s{T+3}, s{T+3}, 8")
    A(f"s_mul_i32 s{T+4}, s{T+3}, 6")
    A(f"s_sub_u32 s{T+4}, s{T+2}, s{T+4}")
    A(f"s_mul_i32 s{T+5}, s{T+3}, 72")
    A(f"s_add_u32 s{T+5}, s{T+5}, s{T+4}")
    A(f"s_mul_i32 s{T+6}, s{T+1}, 36")
    A(f"s_add_u32 s{T+5}, s{T+5}, s{T+6}")
    A("v_lshrrev_b32 v1, 4, v0")
    A("v_and_b32 v2, 15, v0")
    A("v_lshrrev_b32 v3, 3, v2")
    A("v_and_b32 v4, 7, v2")
    A("v_mul_u32_u24 v5, 18, v3")
    A("v_mul_u32_u24 v6, 6, v1")
    A(f"v_add3_u32 v5, v5, v6, s{T+5}")
    A("v_lshlrev_b32 v6, 4, v2")
    A("v_lshl_add_u32 v6, v1, 2, v6")
    A(f"v_add_u32 v6, {M_RED}, v6")
    for w in range(8): A(f"ds_read_b32 v{16+w}, v6 offset:{256*w}")
    A(f"v_mul_u32_u24 v7, {XS_RS}, v4")
    A("v_lshl_add_u32 v7, v5, 1, v7")
    A(f"v_add_u32 v7, {M_XS}, v7")
    A("ds_read_u16 v24, v7")
    A("v_lshlrev_b32 v8, 2, v4")
    A(f"v_add_u32 v8, {M_MISC}, v8")
    A("ds_read_b32 v25, v8 offset:32")
    A("ds_read_b32 v26, v8 offset:64")
    A("v_mul_u32_u24 v9, 576, v4")
    A("v_add_u32 v9, v9, v5")
    A("v_lshlrev_b32 v9, 3, v9")
    add64(T+2, S_WS, WS_T1G)
    tagcheck_loop(lambda: A(f"global_load_dwordx2 v[28:29], v9, s[{T+2}:{T+3}] sc1"), [29], 10, 12)
    A("s_waitcnt lgkmcnt(0)")
    A("v_add_f32 v16, v16, v17"); A("v_add_f32 v18, v18, v19"); A("v_add_f32 v20, v20, v21"); A("v_add_f32 v22, v22, v23")
    A("v_add_f32 v16, v16, v18"); A("v_add_f32 v20, v20, v22"); A("v_add_f32 v16, v16, v20")
    rnd(16)
    A("v_mul_f32 v16, v16, v26")
    rnd(16)
    A("v_lshlrev_b32 v24, 16, v24")
    A("v_add_f32 v16, v24, v16")
    rnd(16)
    A("v_add_f32 v16, v28, v16")
    A("v_cvt_pk_bf16_f32 v16, v16, v16")
    A("v_and_b32 v25, 0x7ff, v25")
    A("v_mul_u32_u24 v25, 1152, v25")
    A("v_lshl_add_u32 v25, v5, 1, v25")
    A(f"global_store_short v25, v16, s[{S_OUT}:{S_OUT+1}]")
    A("s_mov_b64 exec, -1")
    A.label(L)

def moe_wg():
    T = S_T
    A(f"s_sub_u32 s69, s{S_WG}, {NCONV}")
    A(f"s_cmp_ge_u32 s69, {NMOE}")
    A("s_cbranch_scc1 L_fin")
    A("s_and_b32 s70, s69, 7")
    A("s_mul_i32 s70, s70, 12")
    A(f"s_lshr_b32 s{T+1}, s69, 3")
    A(f"s_add_u32 s70, s70, s{T+1}")
    A(f"s_lshl_b32 s{T+1}, s{S_WAVE}, 10")
    A("v_lshlrev_b32 v1, 4, v0")
    A(f"v_add_u32 v1, s{T+1}, v1")
    A(f"v_add_u32 v1, {M_LIST}, v1")
    for i in range(4): A(f"v_mov_b32 v{4+i}, 0xff800000")
    A(f"ds_write_b128 v1, {p4(4)}")
    L0 = A.newlabel("L_ni")
    A(f"s_cmp_lg_u32 s{S_WAVE}, 0")
    A(f"s_cbranch_scc1 {L0}")
    A("v_lshlrev_b32 v1, 4, v0")
    A(f"v_add_u32 v2, {M_LIST+8192}, v1")
    A("s_mov_b64 exec, 0xf")
    A(f"ds_write_b128 v2, {p4(4)}")
    A("s_mov_b64 exec, -1")
    for i in range(4): A(f"v_mov_b32 v{4+i}, 0")
    A(f"v_add_u32 v2, {M_MISC}, v1")
    A("s_mov_b64 exec, 0xff")
    A(f"ds_write_b128 v2, {p4(4)}")
    A("s_mov_b64 exec, -1")
    A(f"v_add_u32 v2, {M_H}, v1")
    A(f"ds_write_b128 v2, {p4(4)}")
    A(f"v_add_u32 v2, {M_H+1024}, v1")
    A("s_mov_b64 exec, 0xff")
    A(f"ds_write_b128 v2, {p4(4)}")
    A("s_mov_b64 exec, -1")
    A.label(L0)
    A("s_cmp_ge_u32 s69, 64")
    A("s_cbranch_scc1 L_moe_noln")
    ln_loads()
    ln_compute(0)
    get_nonce(120)
    ln_publish()
    A.label("L_moe_noln")
    stamp(4)
    A("s_waitcnt lgkmcnt(0)")
    A("s_barrier")
    A(f"s_cmp_ge_u32 s{S_WAVE}, 4")
    A("s_cbranch_scc1 L_moe_loader")
    get_nonce(120)
    moe_top8()
    moe_xs()
    stamp(7)
    moe_down_loads()
    A("s_branch L_moe_join")
    A.label("L_moe_loader")
    moe_dma()
    moe_down_loads()
    get_nonce_after = True
    A("s_waitcnt vmcnt(16)")
    A.label("L_moe_join")
    A("s_waitcnt lgkmcnt(0)")
    A("s_barrier")
    moe_gateup()
    A("s_waitcnt lgkmcnt(0)")
    A("s_barrier")
    moe_h()
    A("s_waitcnt vmcnt(0)")
    get_nonce(10)
    moe_down_perm()
    A("s_waitcnt lgkmcnt(0)")
    A("s_barrier")
    moe_down()
    moe_reduce()
    A("s_branch L_fin")

def main():
    prologue()
    A(f"s_cmp_ge_u32 s{S_WG}, {NCONV}")
    A("s_cbranch_scc1 L_moe")
    conv_wg()
    A.label("L_moe")
    moe_wg()
    A.label("L_fin")
    prof_end()
    A.label("L_end")
    A("s_endpgm")

main()
K = NAME + "_kernel"
LDS = L_TOTAL
txt = HDR + f"; @launch grid=(256,1,1) block=(512,1,1) lds={LDS}\n" + '.amdgcn_target "amdgcn-amd-amdhsa--gfx950"\n.text\n' + head(K) + A.text() + kd(K, 256, 102, 128, "  .amdhsa_float_denorm_mode_32 3\n")
open(OUTFN, "w").write(txt)
print("wrote", OUTFN, len(txt), "LDS", LDS)
```

```python
import sys, struct
sys.path.insert(0, "dev")
from asmlib import *

OUTFN = sys.argv[1] if len(sys.argv) > 1 else "k.s"
OPTS = set(sys.argv[2:])
PROF = "prof" in OPTS
STAGE_NOMOE = "nomoe" in OPTS

WS_KVT = 0x000000
WS_XT  = 0x240000
WS_RG  = 0x480000
WS_SG  = 0x484000
WS_FL  = 0x488000
WS_FL2 = 0x488800
WS_SEL = 0x489800
WS_T1G = 0x48A000
WS_PART= 0x4A0000
WS_PROF = 0x800000
SPIN_MAX = 400000
NCONV = 144
NMOE = 96
NT = "nt"

S_WG, S_WAVE = 2, 3
S_Q, S_K, S_V, S_SK, S_H, S_D, S_BX, S_WR, S_WGT, S_WUP, S_WD, S_OUT, S_DBG, S_WS = 4, 6, 8, 10, 12, 14, 16, 18, 20, 22, 24, 26, 28, 30
SRD_K, SRD_V, SRD_Q, SRD_O = 32, 36, 40, 44
S_NONCE = 48
S_MASK, S_SELLO, S_SELHI = 50, 51, 52
S_T = 54

A = Asm()
def f32bits(x): return struct.unpack("<I", struct.pack("<f", x))[0]
def p2(r): return f"v[{r}:{r+1}]"
def p4(r): return f"v[{r}:{r+3}]"
NSTAMP = 10
def stamp(i):
    if PROF: A(f"s_memtime s[{80+2*i}:{81+2*i}]")
def prof_begin():
    if PROF:
        A("s_memrealtime s[100:101]")
        stamp(0)
        for i in range(1, NSTAMP):
            A(f"s_mov_b64 s[{80+2*i}:{81+2*i}], 0")
def prof_end():
    if not PROF: return
    A(f"s_memrealtime s[{S_T+2}:{S_T+3}]")
    A("s_waitcnt lgkmcnt(0)")
    A(f"s_lshl_b32 s{S_T}, s{S_WG}, 3")
    A(f"s_add_u32 s{S_T}, s{S_T}, s{S_WAVE}")
    A(f"s_lshl_b32 s{S_T}, s{S_T}, 6")
    A(f"s_add_u32 s{S_T}, s{S_T}, {WS_PROF}")
    A(f"v_mov_b32 v1, s{S_T}")
    A("s_mov_b64 exec, 1")
    A("v_mov_b32 v2, s100")
    A(f"global_store_dword v1, v2, s[{S_WS}:{S_WS+1}]")
    A(f"v_mov_b32 v2, s{S_T+2}")
    A(f"global_store_dword v1, v2, s[{S_WS}:{S_WS+1}] offset:4")
    for i in range(1, NSTAMP):
        A(f"s_sub_u32 s{S_T+1}, s{80+2*i}, s80")
        A(f"v_mov_b32 v2, s{S_T+1}")
        A(f"global_store_dword v1, v2, s[{S_WS}:{S_WS+1}] offset:{4+4*i}")
    A("s_mov_b64 exec, -1")

def rnd(v, src=None):
    A(f"v_cvt_pk_bf16_f32 v{v}, 0, v{v if src is None else src}")
def srd(dst, base, nbytes):
    A(f"s_mov_b32 s{dst}, s{base}")
    A(f"s_and_b32 s{dst+1}, s{base+1}, 0xffff")
    A(f"s_mov_b32 s{dst+2}, {nbytes}")
    A(f"s_mov_b32 s{dst+3}, 0x00020000")
def add64(dst, src, imm):
    A(f"s_add_u32 s{dst}, s{src}, {imm}")
    A(f"s_addc_u32 s{dst+1}, s{src+1}, 0")
def add64s(dst, src, sreg):
    A(f"s_add_u32 s{dst}, s{src}, s{sreg}")
    A(f"s_addc_u32 s{dst+1}, s{src+1}, 0")

DIAG = "diag" in OPTS
def timeout_mark(site):
    if not DIAG: return
    A(f"s_mov_b64 s[{S_T+14}:{S_T+15}], exec")
    A("s_mov_b64 exec, 1")
    A(f"v_mov_b32 v126, {4*site}")
    A("v_mov_b32 v127, 1")
    A(f"global_atomic_add v126, v127, s[{S_DBG}:{S_DBG+1}] sc1")
    A(f"s_mov_b64 exec, s[{S_T+14}:{S_T+15}]")

def get_nonce(vtmp):
    L = A.newlabel("L_nonce"); Ld = A.newlabel("L_nonced")
    A(f"v_mov_b32 v{vtmp}, 0")
    A(f"s_mov_b32 s{S_T}, 0")
    A.label(L)
    A(f"global_load_dword v{vtmp+1}, v{vtmp}, s[{S_DBG}:{S_DBG+1}] sc1")
    A(f"s_waitcnt vmcnt(0)")
    A(f"v_readfirstlane_b32 s{S_NONCE}, v{vtmp+1}")
    A(f"s_add_u32 s{S_T}, s{S_T}, 1")
    A(f"s_cmp_lg_u32 s{S_NONCE}, 0")
    A(f"s_cbranch_scc1 {Ld}")
    A(f"s_cmp_lt_u32 s{S_T}, {SPIN_MAX}")
    A(f"s_cbranch_scc1 {L}")
    timeout_mark(1)
    A.label(Ld)

def nonce_writer():
    L = A.newlabel("L_nw")
    A(f"s_cmp_ge_u32 s{S_WG}, 8")
    A(f"s_cbranch_scc1 {L}")
    A(f"s_cmp_lg_u32 s{S_WAVE}, 7")
    A(f"s_cbranch_scc1 {L}")
    A(f"s_memrealtime s[{S_T}:{S_T+1}]")
    A("s_waitcnt lgkmcnt(0)")
    A(f"s_or_b32 s{S_T}, s{S_T}, 1")
    A(f"v_mov_b32 v10, s{S_T}")
    A("v_mov_b32 v11, 0")
    A("v_mov_b32 v12, 0")
    A("s_mov_b64 exec, 1")
    A(f"global_atomic_cmpswap v12, v[10:11], s[{S_DBG}:{S_DBG+1}] sc1")
    A("s_mov_b64 exec, -1")
    A.label(L)

DUR = "dur" in OPTS
def dur_begin():
    if DUR: A("s_memrealtime s[100:101]")
def dur_end():
    if not DUR: return
    L = A.newlabel("L_dur")
    A(f"s_memrealtime s[{S_T+2}:{S_T+3}]")
    A("s_waitcnt lgkmcnt(0) vmcnt(0)")
    A(f"s_and_b32 s{S_T}, s{S_WAVE}, 3")
    A(f"s_cmp_lg_u32 s{S_T}, 0")
    A(f"s_cbranch_scc1 {L}")
    A(f"s_not_b32 s{S_T}, s100")
    A("v_mov_b32 v1, 8")
    A(f"v_mov_b32 v2, s{S_T}")
    A(f"v_mov_b32 v3, s{S_T+2}")
    A("s_mov_b64 exec, 1")
    A(f"global_atomic_umax v1, v2, s[{S_DBG}:{S_DBG+1}] sc1")
    A(f"s_cmp_ge_u32 s{S_WG}, {NCONV}")
    A(f"s_cselect_b32 s{S_T}, 16, 12")
    A(f"v_mov_b32 v1, s{S_T}")
    A(f"global_atomic_umax v1, v3, s[{S_DBG}:{S_DBG+1}] sc1")
    A("s_mov_b64 exec, -1")
    A.label(L)

def prologue():
    A(f"s_cmp_ge_u32 s{S_WG}, 256")
    A("s_cbranch_scc1 L_end")
    prof_begin()
    dur_begin()
    A("s_load_dwordx16 s[4:19], s[0:1], 0")
    A("s_load_dwordx8 s[20:27], s[0:1], 64")
    A("s_load_dwordx4 s[28:31], s[0:1], 96")
    A("v_lshrrev_b32 v1, 6, v0")
    A("v_and_b32 v0, 63, v0")
    A(f"v_readfirstlane_b32 s{S_WAVE}, v1")
    A(f"s_mov_b32 s{S_MASK}, 0xffff0000")
    A(f"s_mov_b32 s{S_SELLO}, 0x05040100")
    A(f"s_mov_b32 s{S_SELHI}, 0x07060302")
    A("s_waitcnt lgkmcnt(0)")
    stamp(1)
    srd(SRD_K, S_K, 2359296)
    srd(SRD_O, S_OUT, 2359296)
    nonce_writer()

L_P   = 0
P_CPY = 4128
P_CH  = 4 * P_CPY
L_Q   = L_P + 4 * P_CH
Q_CPY = 1152
Q_CH  = 4 * Q_CPY
L_PRE = L_Q + 4 * Q_CH
PRE_CH = 12288
L_SELM = L_PRE + 4 * PRE_CH
L_CONV_END = L_SELM + 2048 + 64
L_TB  = L_PRE
L_TB2 = L_PRE + 16384


TBLK = 1040
L_TK = L_PRE
L_TV = L_TK + 17 * TBLK
assert L_TV + 16 * TBLK <= L_SELM
L_TQ = (L_CONV_END + 15) // 16 * 16
L_TOTAL = L_TQ + 16 * TBLK

def dma(voff, srdreg, soff, m0):
    A(f"s_mov_b32 m0, {m0}")
    A("s_nop 0")
    A(f"buffer_load_dwordx4 v{voff}, s[{srdreg}:{srdreg+3}], {soff} offen {NT} lds")

def conv_tile():
    T = S_T
    A(f"s_mul_hi_u32 s77, s{S_WG}, {(2**32 + 8)//9}")
    A(f"s_mul_i32 s76, s77, 9")
    A(f"s_sub_u32 s76, s{S_WG}, s76")
    srd(SRD_V, S_V, 2359296)
    srd(SRD_Q, S_Q, 2359296)
    A("v_lshrrev_b32 v1, 3, v0")
    A("v_and_b32 v2, 7, v0")
    A(f"s_mul_i32 s{T+2}, s77, {128*1152}")
    A(f"s_lshl_b32 s{T+3}, s76, 7")
    A(f"s_add_u32 s{T+2}, s{T+2}, s{T+3}")
    A(f"v_mul_u32_u24 v3, 1152, v1")
    A(f"v_lshl_add_u32 v3, v2, 4, v3")
    A(f"v_add_u32 v3, s{T+2}, v3")
    A(f"s_mul_i32 s{T+4}, s{S_WAVE}, {2*9216}")
    A(f"s_add_u32 s{T+5}, s{T+4}, 9216")
    A(f"s_mul_i32 s{T+6}, s{S_WAVE}, {2*TBLK}")
    A(f"s_add_u32 s{T+7}, s{T+6}, {L_TK + TBLK}")
    A(f"s_add_u32 s{T+8}, s{T+6}, {L_TK + 2*TBLK}")
    dma(3, SRD_K, f"s{T+4}", f"s{T+7}")
    dma(3, SRD_K, f"s{T+5}", f"s{T+8}")
    Lh = A.newlabel("L_nohalo")
    A(f"s_cmp_lg_u32 s{S_WAVE}, 0")
    A(f"s_cbranch_scc1 {Lh}")
    A(f"v_subrev_u32 v4, 9216, v3")
    A(f"s_cmp_lg_u32 s77, 0")
    A(f"s_cbranch_scc1 {Lh}_a")
    A("v_bfrev_b32 v4, 1")
    A.label(Lh + "_a")
    dma(4, SRD_K, "0", L_TK)
    A.label(Lh)
    A(f"s_add_u32 s{T+7}, s{T+6}, {L_TV}")
    A(f"s_add_u32 s{T+8}, s{T+6}, {L_TV + TBLK}")
    dma(3, SRD_V, f"s{T+4}", f"s{T+7}")
    dma(3, SRD_V, f"s{T+5}", f"s{T+8}")
    A(f"s_lshr_b32 s{T+9}, s{S_WAVE}, 1")
    A(f"s_and_b32 s{T+10}, s{S_WAVE}, 1")
    A(f"s_lshl_b32 s{T+11}, s76, 9")
    A(f"s_lshl_b32 s{T+12}, s{T+9}, 7")
    A(f"s_add_u32 s{T+11}, s{T+11}, s{T+12}")
    A("v_lshlrev_b32 v5, 4, v1")
    A(f"v_add_u32 v5, s{T+11}, v5")
    TR = 40
    A(f"global_load_dwordx4 {p4(TR)}, v5, s[{S_SK}:{S_SK+1}]")
    A("s_waitcnt vmcnt(63)")
    A(f"s_add_u32 s{T+7}, s{T+6}, {L_TQ}")
    A(f"s_add_u32 s{T+8}, s{T+6}, {L_TQ + TBLK}")
    dma(3, SRD_Q, f"s{T+4}", f"s{T+7}")
    dma(3, SRD_Q, f"s{T+5}", f"s{T+8}")
    A(f"s_and_b32 s{T+13}, s{S_WG}, 7")
    A(f"s_mul_i32 s{T+13}, s{T+13}, 18")
    A(f"s_lshr_b32 s{T+12}, s{S_WG}, 3")
    A(f"s_add_u32 s{T+13}, s{T+13}, s{T+12}")
    A(f"s_lshl_b32 s71, s{T+13}, 2")
    A(f"s_and_b32 s{T+12}, s{S_WAVE}, 3")
    A(f"s_add_u32 s78, s71, s{T+12}")
    A(f"s_lshl_b32 s79, s78, 12")
    HR = 62
    Lh = A.newlabel("L_noh")
    A(f"s_cmp_ge_u32 s{S_WAVE}, 4")
    A(f"s_cbranch_scc1 {Lh}")
    A("v_lshlrev_b32 v8, 4, v0")
    A("v_add_u32 v8, s79, v8")
    for q in range(4):
        A(f"global_load_dwordx4 {p4(HR+4*q)}, v8, s[{S_H}:{S_H+1}] offset:{1024*q} {NT}")
    A.label(Lh)
    A(f"s_lshl_b32 s{T+12}, s{T+10}, 3")
    A(f"v_add_u32 v6, s{T+12}, v2")
    A(f"s_lshl_b32 s{T+12}, s{T+9}, 3")
    A(f"v_add_u32 v7, s{T+12}, v1")
    A(f"v_mul_u32_u24 v9, {TBLK}, v6")
    A(f"v_lshl_add_u32 v9, v7, 2, v9")
    A(f"v_add_u32 v9, {L_PRE}, v9")
    A(f"s_lshl_b32 s{T+11}, s76, 18")
    A(f"s_lshl_b32 s{T+12}, s77, 8")
    A(f"s_add_u32 s{T+11}, s{T+11}, s{T+12}")
    A("v_lshlrev_b32 v8, 13, v7")
    A("v_lshl_add_u32 v8, v6, 4, v8")
    A(f"v_add_u32 v8, s{T+11}, v8")
    Lw = A.newlabel("L_w"); Lw2 = A.newlabel("L_w2")
    A(f"s_cmp_ge_u32 s{S_WAVE}, 4")
    A(f"s_cbranch_scc1 {Lw}")
    A("s_waitcnt vmcnt(6)")
    A(f"s_branch {Lw2}")
    A.label(Lw)
    A("s_waitcnt vmcnt(2)")
    A.label(Lw2)
    A("s_barrier")
    stamp(2)
    KR, VR = 10, 21
    for j in range(11):
        off = L_TK - L_PRE + (640 + 128*j if j < 3 else TBLK + 128*(j-3))
        A(f"ds_read_b32 v{KR+j}, v9 offset:{off}")
    for j in range(8):
        A(f"ds_read_b32 v{VR+j}, v9 offset:{L_TV - L_PRE + 128*j}")
    TP = 44
    A(f"v_lshlrev_b32 v{TP+0}, 16, v{TR}"); A(f"v_lshlrev_b32 v{TP+1}, 16, v{TR+2}")
    A(f"v_and_b32 v{TP+2}, s{S_MASK}, v{TR}"); A(f"v_and_b32 v{TP+3}, s{S_MASK}, v{TR+2}")
    A(f"v_lshlrev_b32 v{TP+4}, 16, v{TR+1}"); A(f"v_lshlrev_b32 v{TP+5}, 16, v{TR+3}")
    A(f"v_and_b32 v{TP+6}, s{S_MASK}, v{TR+1}"); A(f"v_and_b32 v{TP+7}, s{S_MASK}, v{TR+3}")
    KP = 80
    A("s_waitcnt lgkmcnt(8)")
    for j in range(11):
        A(f"v_lshlrev_b32 v{KP+2*j}, 16, v{KR+j}")
        A(f"v_and_b32 v{KP+2*j+1}, s{S_MASK}, v{KR+j}")
    A("s_waitcnt lgkmcnt(0)")
    R = 102
    for i0 in range(0, 8, 2):
        toks = (i0, i0+1)
        a = {toks[0]: 52, toks[1]: 56}; b = {toks[0]: 54, toks[1]: 58}
        tp = lambda tap: p2(TP+2*tap)
        def both(fn):
            for i in toks: fn(i)
        both(lambda i: A(f"v_pk_mul_f32 {p2(a[i])}, {p2(KP+2*i)}, {tp(3)}"))
        both(lambda i: A(f"v_pk_mul_f32 {p2(b[i])}, {p2(KP+2*(i+1))}, {tp(2)}"))
        both(lambda i: (rnd(a[i]), rnd(a[i]+1)))
        both(lambda i: (rnd(b[i]), rnd(b[i]+1)))
        both(lambda i: A(f"v_pk_add_f32 {p2(a[i])}, {p2(a[i])}, {p2(b[i])}"))
        both(lambda i: A(f"v_pk_mul_f32 {p2(b[i])}, {p2(KP+2*(i+2))}, {tp(1)}"))
        both(lambda i: (rnd(a[i]), rnd(a[i]+1)))
        both(lambda i: (rnd(b[i]), rnd(b[i]+1)))
        both(lambda i: A(f"v_pk_add_f32 {p2(a[i])}, {p2(a[i])}, {p2(b[i])}"))
        both(lambda i: A(f"v_pk_mul_f32 {p2(b[i])}, {p2(KP+2*(i+3))}, {tp(0)}"))
        both(lambda i: (rnd(a[i]), rnd(a[i]+1)))
        both(lambda i: (rnd(b[i]), rnd(b[i]+1)))
        both(lambda i: A(f"v_pk_add_f32 {p2(a[i])}, {p2(a[i])}, {p2(b[i])}"))
        both(lambda i: (A(f"v_lshlrev_b32 v{b[i]}, 16, v{VR+i}"), A(f"v_and_b32 v{b[i]+1}, s{S_MASK}, v{VR+i}")))
        both(lambda i: (rnd(a[i]), rnd(a[i]+1)))
        both(lambda i: A(f"v_pk_mul_f32 {p2(R+2*i)}, {p2(a[i])}, {p2(b[i])}"))
    O = 120
    for q in range(4):
        A(f"v_cvt_pk_bf16_f32 v{O+q}, v{R+4*q}, v{R+4*q+2}")
        A(f"v_cvt_pk_bf16_f32 v{O+4+q}, v{R+4*q+1}, v{R+4*q+3}")
    add64(T+2, S_WS, WS_KVT)
    add64(T+4, S_WS, WS_KVT+4096)
    A(f"global_store_dwordx4 v8, {p4(O)}, s[{T+2}:{T+3}] sc1")
    A(f"global_store_dwordx4 v8, {p4(O+4)}, s[{T+4}:{T+5}] sc1")
    stamp(3)
    get_nonce(100)
    A("s_barrier")
    stamp(4)
    L = A.newlabel("L_nf")
    A(f"s_cmp_lg_u32 s{S_WAVE}, 0")
    A(f"s_cbranch_scc1 {L}")
    A(f"s_lshl_b32 s{T+1}, s76, 7")
    A(f"s_lshl_b32 s{T+2}, s77, 2")
    A(f"s_add_u32 s{T+1}, s{T+1}, s{T+2}")
    A(f"s_add_u32 s{T+1}, s{T+1}, {WS_FL}")
    A(f"v_mov_b32 v100, s{T+1}")
    A(f"v_mov_b32 v101, s{S_NONCE}")
    A("s_mov_b64 exec, 1")
    A(f"global_store_dword v100, v101, s[{S_WS}:{S_WS+1}] sc1")
    A("s_mov_b64 exec, -1")
    A.label(L)
    return HR

def x_tile():
    T = S_T
    A("; x tile")
    A("v_and_b32 v2, 7, v0"); A("v_lshrrev_b32 v1, 3, v0")
    A(f"s_sub_u32 s72, s{S_WAVE}, 4")
    A(f"s_lshl_b32 s{T+12}, s72, 3")
    A(f"v_add_u32 v7, s{T+12}, v1")
    A(f"v_mul_u32_u24 v9, {TBLK}, v2")
    A(f"v_lshl_add_u32 v9, v7, 2, v9")
    A(f"v_add_u32 v9, {L_TQ}, v9")
    A(f"s_lshl_b32 s{T+11}, s76, 18")
    A(f"s_lshl_b32 s{T+12}, s77, 8")
    A(f"s_add_u32 s{T+11}, s{T+11}, s{T+12}")
    A("v_lshlrev_b32 v8, 13, v7")
    A("v_lshl_add_u32 v8, v2, 4, v8")
    A(f"v_add_u32 v8, s{T+11}, v8")
    for gh in range(2):
        for j in range(8):
            A(f"ds_read_b32 v{16+8*gh+j}, v9 offset:{8*TBLK*gh + 128*j}")
    add64(T+2, S_WS, WS_XT)
    add64(T+4, S_WS, WS_XT+4096)
    for gh in range(2):
        A(f"s_waitcnt lgkmcnt({8*(1-gh)})")
        X = 32 + 8*gh
        for q in range(4):
            A(f"v_perm_b32 v{X+q}, v{16+8*gh+2*q+1}, v{16+8*gh+2*q}, s{S_SELLO}")
            A(f"v_perm_b32 v{X+4+q}, v{16+8*gh+2*q+1}, v{16+8*gh+2*q}, s{S_SELHI}")
        A(f"global_store_dwordx4 v8, {p4(X)}, s[{T+2}:{T+3}] offset:{128*gh} sc1")
        A(f"global_store_dwordx4 v8, {p4(X+4)}, s[{T+4}:{T+5}] offset:{128*gh} sc1")
    A("s_waitcnt vmcnt(0)")
    A(f"s_lshl_b32 s{T+1}, s76, 2")
    A(f"s_add_u32 s{T+1}, s{T+1}, s72")
    A(f"s_lshl_b32 s{T+1}, s{T+1}, 6")
    A(f"s_lshl_b32 s{T+2}, s77, 2")
    A(f"s_add_u32 s{T+1}, s{T+1}, s{T+2}")
    A(f"s_add_u32 s{T+1}, s{T+1}, {WS_FL2}")
    A(f"v_mov_b32 v100, s{T+1}")
    A(f"v_mov_b32 v101, s{S_NONCE}")
    A("s_mov_b64 exec, 1")
    A(f"global_store_dword v100, v101, s[{S_WS}:{S_WS+1}] sc1")
    A("s_mov_b64 exec, -1")

def poll_flags(vt, both=False):
    T = S_T
    L = A.newlabel("L_pf"); Ld = A.newlabel("L_pfd")
    A(f"s_lshr_b32 s{T+1}, s71, 6")
    A(f"s_lshl_b32 s{T+1}, s{T+1}, 7")
    A(f"s_add_u32 s{T+1}, s{T+1}, {WS_FL}")
    A(f"v_and_b32 v{vt}, 15, v0")
    A(f"v_lshlrev_b32 v{vt}, 2, v{vt}")
    if both:
        A(f"s_lshr_b32 s{T+2}, s71, 4")
        A(f"s_lshl_b32 s{T+2}, s{T+2}, 6")
        A(f"s_add_u32 s{T+2}, s{T+2}, {WS_FL2}")
        A(f"v_mov_b32 v{vt+1}, s{T+1}")
        A(f"v_mov_b32 v{vt+2}, s{T+2}")
        A(f"v_and_b32 v{vt+3}, 16, v0")
        A(f"v_cmp_eq_u32 vcc, 0, v{vt+3}")
        A("s_nop 1")
        A(f"v_cndmask_b32 v{vt+1}, v{vt+2}, v{vt+1}, vcc")
        A(f"v_add_u32 v{vt}, v{vt+1}, v{vt}")
    else:
        A(f"v_add_u32 v{vt}, s{T+1}, v{vt}")
    A(f"s_mov_b32 s{T}, 0")
    A.label(L)
    A(f"global_load_dword v{vt+1}, v{vt}, s[{S_WS}:{S_WS+1}] sc1")
    A("s_waitcnt vmcnt(0)")
    A(f"v_cmp_ne_u32 vcc, s{S_NONCE}, v{vt+1}")
    A(f"s_add_u32 s{T}, s{T}, 1")
    A("s_nop 3")
    A("s_cmp_eq_u64 vcc, 0")
    A(f"s_cbranch_scc1 {Ld}")
    A(f"s_cmp_lt_u32 s{T}, {SPIN_MAX}")
    A(f"s_cbranch_scc1 {L}")
    timeout_mark(2 + (A.uid % 12))
    A.label(Ld)

def conv_mfma_wave(HR):
    T = S_T
    A(f"s_mul_i32 s74, s{S_WAVE}, {P_CH}")
    A(f"s_mul_i32 s75, s{S_WAVE}, {Q_CH}")
    A(f"s_add_u32 s75, s75, {L_Q}")
    A("v_lshlrev_b32 v1, 4, v0")
    A("v_add_u32 v1, s74, v1")
    PV = 80
    for q in range(4):
        a = HR + 4*q
        if q == 0:
            A(f"v_mov_b32 v{PV}, 0"); A(f"v_mov_b32 v{PV+1}, 0")
        else:
            A(f"v_mov_b32_dpp v{PV}, v{a-1} wave_ror:1 row_mask:0xf bank_mask:0xf")
            A(f"v_mov_b32_dpp v{PV+1}, v{a-2} wave_ror:1 row_mask:0xf bank_mask:0xf")
        A("s_nop 1")
        A(f"v_mov_b32_dpp v{PV}, v{a+3} wave_shr:1 row_mask:0xf bank_mask:0xf")
        A(f"v_mov_b32_dpp v{PV+1}, v{a+2} wave_shr:1 row_mask:0xf bank_mask:0xf")
        A(f"ds_write_b128 v1, {p4(a)} offset:{0*P_CPY+32+1024*q}")
        s1 = 84
        A(f"v_alignbit_b32 v{s1}, v{a}, v{PV}, 16")
        A(f"v_alignbit_b32 v{s1+1}, v{a+1}, v{a}, 16")
        A(f"v_alignbit_b32 v{s1+2}, v{a+2}, v{a+1}, 16")
        A(f"v_alignbit_b32 v{s1+3}, v{a+3}, v{a+2}, 16")
        A(f"ds_write_b128 v1, {p4(s1)} offset:{1*P_CPY+32+1024*q}")
        s2 = 88
        A(f"v_mov_b32 v{s2}, v{PV}"); A(f"v_mov_b32 v{s2+1}, v{a}"); A(f"v_mov_b32 v{s2+2}, v{a+1}"); A(f"v_mov_b32 v{s2+3}, v{a+2}")
        A(f"ds_write_b128 v1, {p4(s2)} offset:{2*P_CPY+32+1024*q}")
        s3 = 92
        A(f"v_alignbit_b32 v{s3}, v{PV}, v{PV+1}, 16")
        A(f"v_mov_b32 v{s3+1}, v{s1}"); A(f"v_mov_b32 v{s3+2}, v{s1+1}"); A(f"v_mov_b32 v{s3+3}, v{s1+2}")
        A(f"ds_write_b128 v1, {p4(s3)} offset:{3*P_CPY+32+1024*q}")
    for i in range(4): A(f"v_mov_b32 v{84+i}, 0")
    A("v_lshrrev_b32 v2, 1, v0")
    A(f"v_mul_u32_u24 v2, {P_CPY}, v2")
    A("v_and_b32 v3, 1, v0")
    A("v_lshl_add_u32 v2, v3, 4, v2")
    A("v_add_u32 v2, s74, v2")
    A("s_mov_b64 exec, 0xff")
    A(f"ds_write_b128 v2, {p4(84)}")
    A("s_mov_b64 exec, -1")
    A("v_lshrrev_b32 v2, 3, v0")
    A(f"v_mul_u32_u24 v2, {Q_CPY}, v2")
    A("v_and_b32 v3, 7, v0")
    A("v_lshl_add_u32 v2, v3, 4, v2")
    A("v_add_u32 v2, s75, v2")
    A("s_mov_b64 exec, 0xffffffff")
    A(f"ds_write_b128 v2, {p4(84)}")
    A("s_mov_b64 exec, -1")
    poll_flags(100)
    stamp(5)
    add64(T+2, S_WS, WS_KVT)
    A("v_lshlrev_b32 v1, 6, v0")
    A("v_add_u32 v1, s79, v1")
    KV = 80
    for i in range(4):
        A(f"global_load_dwordx4 {p4(KV+4*i)}, v1, s[{T+2}:{T+3}] offset:{16*i} sc1")
    A("v_lshlrev_b32 v2, 4, v0")
    A("v_add_u32 v2, s75, v2")
    A("s_waitcnt vmcnt(0)")
    QO = 96
    for s in range(4):
        sel = S_SELLO if (s & 1) == 0 else S_SELHI
        for q in range(4):
            A(f"v_perm_b32 v{QO+4*s+q}, v{KV+4*q+2+s//2}, v{KV+4*q+s//2}, s{sel}")
        A(f"ds_write_b128 v2, {p4(QO+4*s)} offset:{s*Q_CPY+128}")
    A("v_and_b32 v3, 3, v0")
    A("v_bfe_u32 v4, v0, 2, 2")
    A("v_sub_u32 v3, v3, v4")
    A("v_lshlrev_b32 v3, 3, v3")
    A("v_lshrrev_b32 v4, 4, v0")
    A("v_lshl_add_u32 v3, v4, 6, v3")
    A("v_add_u32 v3, s74, v3")
    A("v_add_u32 v3, 32, v3")
    A("v_and_b32 v5, 15, v0")
    A("v_lshlrev_b32 v5, 3, v5")
    A("v_lshlrev_b32 v4, 4, v4")
    A("v_sub_u32 v5, v5, v4")
    A("v_add_u32 v5, s75, v5")
    A("v_add_u32 v5, 120, v5")
    ACC = 16
    for i in range(32): A(f"v_mov_b32 v{ACC+i}, 0")
    A("s_waitcnt lgkmcnt(0)")
    def issue_reads(b, gaddr, faddr):
        ins = []
        for s1 in range(8):
            g = 64*b + 4*s1
            ins.append(f"ds_read_b64_tr_b16 a[{g}:{g+1}], v{gaddr} offset:{512*s1+32}")
            ins.append(f"ds_read_b64_tr_b16 a[{g+2}:{g+3}], v{gaddr} offset:{512*s1}")
        for c1 in range(8):
            f = 64*b + 32 + 4*c1
            ins.append(f"ds_read_b64 a[{f}:{f+1}], v{faddr} offset:{128*c1}")
            ins.append(f"ds_read_b64 a[{f+2}:{f+3}], v{faddr} offset:{128*c1+8}")
        o = []
        for i in range(8):
            o += ins[2*i:2*i+2] + ins[16+2*i:16+2*i+2]
        return o
    def mfmas(b):
        ms = []
        pairs = [(s1, c1) for s1 in range(8) for c1 in range(8) if s1 + c1 <= 7]
        pairs.sort(key=lambda p: (max(p), p[0]+p[1]))
        for (s1, c1) in pairs:
            t = ACC + 4*(s1+c1)
            g = 64*b + 4*s1; f = 64*b + 32 + 4*c1
            ms.append(f"v_mfma_f32_16x16x32_bf16 v[{t}:{t+3}], a[{g}:{g+3}], a[{f}:{f+3}], v[{t}:{t+3}]")
        return ms
    def setaddr(cls):
        sg, e = cls >> 1, cls & 1
        A(f"v_add_u32 v6, {sg*P_CPY + 256*e}, v3")
        A(f"v_add_u32 v7, {sg*Q_CPY - 64*e}, v5") if (sg*Q_CPY - 64*e) >= 0 else A(f"v_subrev_u32 v7, {64*e - sg*Q_CPY}, v5")
    stamp(6)
    setaddr(0)
    for ins in issue_reads(0, 6, 7): A(ins)
    for cls in range(8):
        b = cls & 1
        if cls < 7:
            setaddr(cls+1)
            rd = issue_reads(1-b, 6, 7)
        else:
            rd = []
        A("s_waitcnt lgkmcnt(0)")
        ms = mfmas(b)
        for i, m in enumerate(ms):
            A(m)
            if i < len(rd): A(rd[i])
    stamp(7)
    return ACC


def tagcheck_loop(load_fn, tagregs, vacc, vtmp):
    T = S_T
    L = A.newlabel("L_pl"); Ld = A.newlabel("L_pld")
    A(f"s_mov_b32 s{T}, 0")
    A.label(L)
    load_fn()
    A("s_waitcnt vmcnt(0)")
    A(f"v_xor_b32 v{vacc}, s{S_NONCE}, v{tagregs[0]}")
    rest = tagregs[1:]
    i = 0
    while i < len(rest):
        if i + 1 < len(rest):
            A(f"v_xor_b32 v{vtmp}, s{S_NONCE}, v{rest[i]}")
            A(f"v_xor_b32 v{vtmp+1}, s{S_NONCE}, v{rest[i+1]}")
            A(f"v_or3_b32 v{vacc}, v{vacc}, v{vtmp}, v{vtmp+1}")
            i += 2
        else:
            A(f"v_xor_b32 v{vtmp}, s{S_NONCE}, v{rest[i]}")
            A(f"v_or_b32 v{vacc}, v{vacc}, v{vtmp}")
            i += 1
    A(f"v_cmp_ne_u32 vcc, 0, v{vacc}")
    A(f"s_add_u32 s{T}, s{T}, 1")
    A("s_nop 3")
    A("s_cmp_eq_u64 vcc, 0")
    A(f"s_cbranch_scc1 {Ld}")
    A(f"s_cmp_lt_u32 s{T}, {SPIN_MAX}")
    A(f"s_cbranch_scc1 {L}")
    timeout_mark(2 + (A.uid % 12))
    A.label(Ld)

def H_REG(ch, a): return 16 + 12*ch + 4*a
def conv_helper_wave():
    T = S_T
    x_tile()
    stamp(5)
    A("v_and_b32 v1, 15, v0")
    A("v_lshrrev_b32 v2, 4, v0")
    A("v_lshlrev_b32 v1, 4, v1")
    A("v_lshl_add_u32 v1, v2, 2, v1")
    A(f"s_lshl_b32 s{T+1}, s71, 1")
    A(f"v_mov_b32 v2, s{T+1}")
    A(f"global_load_dwordx2 v[12:13], v2, s[{S_D}:{S_D+1}]")
    if not STAGE_NOMOE:
        Ls = A.newlabel("L_nosel")
        A(f"s_cmp_lg_u32 s{S_WAVE}, 4")
        A(f"s_cbranch_scc1 {Ls}")
        for i in range(4): A(f"v_mov_b32 v{64+i}, 0")
        A("v_lshlrev_b32 v3, 5, v0")
        A(f"v_add_u32 v3, {L_SELM}, v3")
        A(f"ds_write_b128 v3, {p4(64)}")
        A(f"ds_write_b128 v3, {p4(64)} offset:16")
        A("v_and_b32 v3, 7, v0")
        A("v_lshlrev_b32 v3, 3, v3")
        add64(T+2, S_WS, WS_SEL)
        tagcheck_loop(lambda: A(f"global_load_dwordx2 v[64:65], v3, s[{T+2}:{T+3}] sc1"), [65], 66, 67)
        A("v_mov_b32 v65, 0x80")
        A("s_mov_b64 exec, 0xff")
        A(f"v_add_u32 v66, {L_SELM}, v64")
        A(f"ds_write_b8 v66, v65")
        A("v_lshlrev_b32 v3, 2, v0")
        A(f"v_add_u32 v3, {L_SELM+2048}, v3")
        A(f"ds_write_b32 v3, v64")
        A("s_mov_b64 exec, -1")
        A.label(Ls)
    A(f"s_lshl_b32 s{T+1}, s72, 12")
    A("v_lshlrev_b32 v3, 3, v1")
    A(f"v_add_u32 v3, s{T+1}, v3")
    ST = 64
    add64(T+2, S_WS, WS_SG)
    def ld():
        for tt in range(2):
            A(f"global_load_dwordx4 {p4(ST+8*tt)}, v3, s[{T+2}:{T+3}] offset:{2048*tt} sc1")
            A(f"global_load_dwordx4 {p4(ST+8*tt+4)}, v3, s[{T+2}:{T+3}] offset:{2048*tt+16} sc1")
    tagcheck_loop(ld, [ST+8*tt+2*r+1 for tt in range(2) for r in range(4)], 10, 14)
    M, RS = 80, 88
    for tt in range(2):
        for r in range(4):
            st = ST + 8*tt + 2*r
            A(f"v_lshlrev_b32 v{M+4*tt+r}, 16, v{st}")
            A(f"v_and_b32 v{RS+4*tt+r}, s{S_MASK}, v{st}")
    for i in range(8): A(f"v_rcp_f32 v{RS+i}, v{RS+i}")
    poll_flags(100, both=True)
    stamp(6)
    A(f"s_lshl_b32 s{T+1}, s71, 12")
    A(f"s_lshl_b32 s{T+2}, s72, 10")
    A(f"s_add_u32 s{T+1}, s{T+1}, s{T+2}")
    A("v_lshlrev_b32 v4, 1, v1")
    A(f"v_add_u32 v4, s{T+1}, v4")
    for ch in range(1, 4): A(f"v_add_u32 v{4+ch}, {4096*ch}, v4")
    add64(T+2, S_WS, WS_KVT)
    add64(T+4, S_WS, WS_XT)
    XR, KR = 96, 112
    for ch in range(4):
        for tt in range(2):
            A(f"global_load_dwordx2 {p2(XR+4*ch+2*tt)}, v{4+ch}, s[{T+4}:{T+5}] offset:{512*tt} sc1")
            A(f"global_load_dwordx2 {p2(KR+4*ch+2*tt)}, v{4+ch}, s[{T+2}:{T+3}] offset:{512*tt} sc1")
    A("s_waitcnt vmcnt(16)")
    A(f"v_lshlrev_b32 v8, 16, v12"); A(f"v_and_b32 v9, s{S_MASK}, v12")
    A(f"v_lshlrev_b32 v10, 16, v13"); A(f"v_and_b32 v11, s{S_MASK}, v13")
    A(f"s_lshl_b32 s{T+1}, s72, 10")
    A(f"s_add_u32 s{T+1}, s{T+1}, {L_PRE}")
    A("v_lshlrev_b32 v3, 4, v0")
    A(f"v_add_u32 v3, s{T+1}, v3")
    for ch in range(4):
        A(f"s_waitcnt vmcnt({4*(3-ch)})")
        for tt in range(2):
            if tt == 0: X, XN, TK = 64, 68, 72
            else: X, XN, TK = H_REG(ch,0), H_REG(ch,1), H_REG(ch,2)
            xr = XR+4*ch+2*tt; kr = KR+4*ch+2*tt
            A(f"v_lshlrev_b32 v{X}, 16, v{xr}");   A(f"v_and_b32 v{X+1}, s{S_MASK}, v{xr}")
            A(f"v_lshlrev_b32 v{X+2}, 16, v{xr+1}"); A(f"v_and_b32 v{X+3}, s{S_MASK}, v{xr+1}")
            A(f"v_lshlrev_b32 v{TK}, 16, v{kr}");   A(f"v_and_b32 v{TK+1}, s{S_MASK}, v{kr}")
            A(f"v_lshlrev_b32 v{TK+2}, 16, v{kr+1}"); A(f"v_and_b32 v{TK+3}, s{S_MASK}, v{kr+1}")
            for r in range(4): A(f"v_sub_f32 v{XN+r}, v{X+r}, v{M+4*tt+r}")
            for r in range(4): A(f"v_mul_f32 v{TK+r}, v{TK+r}, v{8+ch}")
            for r in range(4): rnd(XN+r)
            for r in range(4): rnd(TK+r)
            for r in range(4): A(f"v_mul_f32 v{XN+r}, v{XN+r}, v{RS+4*tt+r}")
            for r in range(4): rnd(XN+r)
            if tt == 0:
                for a, rg in enumerate((X, XN, TK)):
                    A(f"ds_write_b128 v3, {p4(rg)} offset:{ch*PRE_CH + a*4096}")
                A("s_nop 1")
    stamp(7)

def epi(Y, X, XN, TK, O):
    for r in range(4): rnd(Y+r)
    for h in (0, 2): A(f"v_pk_add_f32 {p2(Y+h)}, {p2(Y+h)}, {p2(TK+h)}")
    for r in range(4): rnd(Y+r)
    for h in (0, 2): A(f"v_pk_mul_f32 {p2(Y+h)}, {p2(XN+h)}, {p2(Y+h)}")
    for r in range(4): rnd(Y+r)
    for h in (0, 2): A(f"v_pk_add_f32 {p2(Y+h)}, {p2(X+h)}, {p2(Y+h)}")
    for r in range(4): rnd(Y+r)
    A(f"v_cvt_pk_bf16_f32 v{O+2}, v{Y}, v{Y+1}")
    A(f"v_cvt_pk_bf16_f32 v{O+3}, v{Y+2}, v{Y+3}")
    for h in (0, 2): A(f"v_pk_add_f32 {p2(Y+h)}, {p2(Y+h)}, {p2(XN+h)}")
    A(f"v_cvt_pk_bf16_f32 v{O}, v{Y}, v{Y+1}")
    A(f"v_cvt_pk_bf16_f32 v{O+1}, v{Y+2}, v{Y+3}")

def conv_wg():
    T = S_T
    HR = conv_tile()
    A(f"s_cmp_ge_u32 s{S_WAVE}, 4")
    A("s_cbranch_scc1 L_helper")
    ACC = conv_mfma_wave(HR)
    A("s_nop 7"); A("s_nop 7")
    A("v_lshlrev_b32 v1, 4, v0")
    A("v_add_u32 v1, s74, v1")
    for k in range(4):
        A(f"ds_write_b128 v1, {p4(ACC+4*(2*k+1))} offset:{1024*k}")
    A("s_waitcnt lgkmcnt(0)")
    A("s_barrier")
    stamp(8)
    A(f"s_mul_i32 s73, s{S_WAVE}, {PRE_CH}")
    A(f"s_add_u32 s73, s73, {L_PRE}")
    A("v_lshlrev_b32 v8, 4, v0")
    A("v_add_u32 v8, s73, v8")
    PR = 64
    for k in range(4):
        for a in range(3):
            A(f"ds_read_b128 {p4(PR+12*k+4*a)}, v8 offset:{a*4096 + k*1024}")
    A("v_and_b32 v1, 15, v0")
    A("v_lshrrev_b32 v2, 4, v0")
    A("v_lshlrev_b32 v1, 5, v1")
    A("v_lshl_add_u32 v1, v2, 3, v1")
    A("v_add_u32 v1, s74, v1")
    for k in range(4):
        A(f"s_waitcnt lgkmcnt({min(15, 3*(3-k) + 2*k)})")
        epi(ACC+4*(2*k), PR+12*k, PR+12*k+4, PR+12*k+8, 120)
        A(f"ds_write_b64 v1, {p2(120)} offset:{4096+512*(2*k)}")
        A(f"ds_write_b64 v1, {p2(122)} offset:{8192+512*(2*k)}")
    A("s_branch L_conv_fin")
    A.label("L_helper")
    conv_helper_wave()
    A("s_waitcnt lgkmcnt(0)")
    A("s_barrier")
    stamp(8)
    A(f"s_lshl_b32 s{T+1}, s72, 10")
    A("v_lshlrev_b32 v1, 4, v0")
    A(f"v_add_u32 v1, s{T+1}, v1")
    YR = 64
    for ch in range(4):
        A(f"ds_read_b128 {p4(YR+4*ch)}, v1 offset:{L_P + ch*P_CH}")
    A("v_and_b32 v1, 15, v0")
    A("v_lshrrev_b32 v2, 4, v0")
    A("v_lshlrev_b32 v1, 5, v1")
    A("v_lshl_add_u32 v1, v2, 3, v1")
    A(f"s_lshl_b32 s{T+1}, s72, 10")
    A(f"v_add_u32 v1, s{T+1}, v1")
    A("s_waitcnt lgkmcnt(0)")
    for ch in range(4):
        epi(YR+4*ch, H_REG(ch,0), H_REG(ch,1), H_REG(ch,2), 120)
        A(f"ds_write_b64 v1, {p2(120)} offset:{L_P + ch*P_CH + 4096 + 512}")
        A(f"ds_write_b64 v1, {p2(122)} offset:{L_P + ch*P_CH + 8192 + 512}")
    A.label("L_conv_fin")
    A("s_waitcnt lgkmcnt(0)")
    A("s_barrier")
    stamp(9)
    A(f"s_lshl_b32 s{T+1}, s{S_WAVE}, 6")
    A(f"v_add_u32 v1, s{T+1}, v0")
    A("v_lshlrev_b32 v2, 3, v1")
    for ch in range(4):
        A(f"ds_read_b64 {p2(16+2*ch)}, v2 offset:{L_P + ch*P_CH + 4096}")
    if not STAGE_NOMOE:
        A("v_lshlrev_b32 v3, 2, v1")
        A(f"v_add_u32 v3, {L_SELM}, v3")
        A(f"ds_read_b32 v24, v3")
    A(f"s_lshl_b32 s{T+2}, s71, 1")
    A(f"v_mul_u32_u24 v4, 4608, v1")
    A(f"v_add_u32 v4, s{T+2}, v4")
    A("s_waitcnt lgkmcnt(0)")
    for h in range(2):
        A(f"v_perm_b32 v{32+8*h+0}, v{18+h}, v{16+h}, s{S_SELLO}")
        A(f"v_perm_b32 v{32+8*h+1}, v{22+h}, v{20+h}, s{S_SELLO}")
        A(f"v_perm_b32 v{32+8*h+2}, v{18+h}, v{16+h}, s{S_SELHI}")
        A(f"v_perm_b32 v{32+8*h+3}, v{22+h}, v{20+h}, s{S_SELHI}")
    for r in range(4):
        if STAGE_NOMOE:
            A(f"v_add_u32 v5, {1152*r}, v4")
        else:
            A(f"v_lshlrev_b32 v5, {24-8*r}, v24")
            A(f"v_and_b32 v5, 0x80000000, v5")
            A(f"v_or_b32 v5, v5, v4")
            if r: A(f"v_add_u32 v5, {1152*r}, v5")
        src = 32 + 8*(r//2) + 2*(r & 1)
        A(f"buffer_store_dwordx2 {p2(src)}, v5, s[{SRD_O}:{SRD_O+3}], 0 offen")
    if not STAGE_NOMOE:
        Lx = A.newlabel("L_not1")
        A(f"s_cmp_lg_u32 s{S_WAVE}, 0")
        A(f"s_cbranch_scc1 {Lx}")
        A("s_mov_b64 exec, 0xffffffff")
        A("v_lshrrev_b32 v1, 2, v0")
        A("v_and_b32 v2, 3, v0")
        A("v_lshlrev_b32 v3, 2, v1")
        A(f"v_add_u32 v3, {L_SELM+2048}, v3")
        A(f"ds_read_b32 v6, v3")
        A(f"v_mul_u32_u24 v7, {P_CH}, v2")
        A("s_waitcnt lgkmcnt(0)")
        A("v_lshl_add_u32 v7, v6, 1, v7")
        A(f"ds_read_u16 v8, v7 offset:{L_P+8192}")
        A(f"v_mul_u32_u24 v10, 576, v1")
        A(f"v_add3_u32 v10, v10, v2, s71")
        A(f"v_lshlrev_b32 v10, 3, v10")
        add64(T+4, S_WS, WS_T1G)
        A(f"v_mov_b32 v9, s{S_NONCE}")
        A("s_waitcnt lgkmcnt(0)")
        A("v_lshlrev_b32 v8, 16, v8")
        A(f"global_store_dwordx2 v10, v[8:9], s[{T+4}:{T+5}] sc1")
        A("s_mov_b64 exec, -1")
        A.label(Lx)
    A("s_branch L_fin")

def dpp_sum16(v):
    for sh in (8, 4, 2, 1):
        A("s_nop 1")
        A(f"v_add_f32_dpp v{v}, v{v}, v{v} row_ror:{sh} row_mask:0xf bank_mask:0xf")

def ln_loads():
    T = S_T
    A(f"s_sub_u32 s{T}, s{S_WG}, {NCONV}")
    A(f"s_lshl_b32 s{T}, s{T}, 5")
    A(f"s_lshl_b32 s{T+1}, s{S_WAVE}, 2")
    A(f"s_add_u32 s{T}, s{T}, s{T+1}")
    A("v_lshrrev_b32 v1, 4, v0")
    A("v_and_b32 v2, 15, v0")
    A(f"v_add_u32 v3, s{T}, v1")
    A(f"v_mul_u32_u24 v4, 1152, v3")
    A(f"v_lshl_add_u32 v5, v2, 4, v4")
    A(f"v_lshl_add_u32 v6, v2, 3, v4")
    A(f"v_lshlrev_b32 v7, 4, v2")
    A(f"v_lshlrev_b32 v8, 3, v2")
    Q = 10; W = 28
    for i in range(4):
        A(f"global_load_dwordx4 {p4(Q+4*i)}, v5, s[{S_Q}:{S_Q+1}] offset:{256*i} {NT}")
    A(f"global_load_dwordx2 {p2(Q+16)}, v6, s[{S_Q}:{S_Q+1}] offset:1024 {NT}")
    for i in range(4):
        A(f"global_load_dwordx4 {p4(W+4*i)}, v7, s[{S_WR}:{S_WR+1}] offset:{256*i}")
    A(f"global_load_dwordx2 {p2(W+16)}, v8, s[{S_WR}:{S_WR+1}] offset:1024")

def ln_compute(nafter):
    T = S_T
    Q = 10; W = 28
    A(f"s_waitcnt vmcnt({nafter})")
    stamp(2)
    X = 64
    for i in range(18):
        A(f"v_lshlrev_b32 v{X+2*i}, 16, v{Q+i}")
        A(f"v_and_b32 v{X+2*i+1}, s{S_MASK}, v{Q+i}")
    a0, a1 = 100, 102
    A(f"v_pk_add_f32 {p2(a0)}, {p2(X)}, {p2(X+2)}")
    A(f"v_pk_add_f32 {p2(a1)}, {p2(X+4)}, {p2(X+6)}")
    for i in range(4, 18, 2):
        A(f"v_pk_add_f32 {p2(a0)}, {p2(a0)}, {p2(X+2*i)}")
        A(f"v_pk_add_f32 {p2(a1)}, {p2(a1)}, {p2(X+2*i+2)}")
    A(f"v_pk_add_f32 {p2(a0)}, {p2(a0)}, {p2(a1)}")
    A(f"v_add_f32 v104, v{a0}, v{a0+1}")
    dpp_sum16(104)
    A(f"v_mul_f32 v104, 0x{f32bits(1.0/576):08x}, v104")
    for r in (a0, a0+1, a1, a1+1): A(f"v_mov_b32 v{r}, 0")
    for i in range(0, 18, 2):
        A(f"v_pk_add_f32 v[106:107], {p2(X+2*i)}, v[104:105] op_sel_hi:[1,0] neg_lo:[0,1] neg_hi:[0,1]")
        A(f"v_pk_add_f32 v[108:109], {p2(X+2*i+2)}, v[104:105] op_sel_hi:[1,0] neg_lo:[0,1] neg_hi:[0,1]")
        A(f"v_pk_fma_f32 {p2(a0)}, v[106:107], v[106:107], {p2(a0)}")
        A(f"v_pk_fma_f32 {p2(a1)}, v[108:109], v[108:109], {p2(a1)}")
    A(f"v_pk_add_f32 {p2(a0)}, {p2(a0)}, {p2(a1)}")
    A(f"v_add_f32 v106, v{a0}, v{a0+1}")
    dpp_sum16(106)
    A(f"v_mul_f32 v106, 0x{f32bits(1.0/576):08x}, v106")
    rnd(106)
    A(f"v_add_f32 v106, 0x{f32bits(1e-5):08x}, v106")
    rnd(106)
    A("v_sqrt_f32 v107, v106")
    A("s_nop 0")
    A("v_rcp_f32 v108, v107")
    A("v_fma_f32 v109, -v107, v107, v106")
    A("v_mul_f32 v108, 0.5, v108")
    A("v_fma_f32 v107, v109, v108, v107")
    rnd(107)
    A("v_rcp_f32 v108, v107")
    A("s_nop 0")
    A("v_fma_f32 v109, -v107, v108, 1.0")
    A("v_fma_f32 v110, v109, v108, v108")
    rnd(104)
    A("v_mov_b32 v112, 0")
    for i in range(18):
        t = 114 + 2*(i % 2)
        A(f"v_pk_add_f32 {p2(t)}, {p2(X+2*i)}, v[104:105] op_sel_hi:[1,0] neg_lo:[0,1] neg_hi:[0,1]")
        rnd(t); rnd(t+1)
        A(f"v_pk_mul_f32 {p2(t)}, {p2(t)}, v[110:111] op_sel_hi:[1,0]")
        A(f"v_cvt_pk_bf16_f32 v{t}, v{t}, v{t+1}")
        A(f"v_dot2_f32_bf16 v112, v{t}, v{W+i}, v112")
    A("s_nop 2")
    dpp_sum16(112)
    rnd(112)
    A("v_or_b32 v112, v112, v3")
    A("v_cvt_pk_bf16_f32 v114, v104, v107")
    stamp(3)

def ln_publish():
    T = S_T
    A(f"v_mov_b32 v113, s{S_NONCE}")
    A(f"v_mov_b32 v115, s{S_NONCE}")
    A("v_lshlrev_b32 v116, 3, v3")
    add64(T+2, S_WS, WS_RG)
    add64(T+4, S_WS, WS_SG)
    A("v_cmp_eq_u32 vcc, 0, v2")
    A(f"s_and_saveexec_b64 s[{T+6}:{T+7}], vcc")
    A(f"global_store_dwordx2 v116, v[112:113], s[{T+2}:{T+3}] sc1")
    A(f"global_store_dwordx2 v116, v[114:115], s[{T+4}:{T+5}] sc1")
    A(f"s_mov_b64 exec, s[{T+6}:{T+7}]")


M_WG = 0
M_WU = 55296
M_XS = 110592
XS_RS = 1168
M_H = M_XS + 8*XS_RS
H_RS = 144
M_GU = M_H + 8*H_RS
M_LIST = M_GU + 3072
M_MISC = M_LIST + 8192 + 64
M_RED = M_MISC + 128
M_END = M_RED + 2048
assert M_END <= L_CONV_END, M_END

def lds_bar(idx, nw, va, vb):
    T = S_T
    L = A.newlabel("L_lb")
    A("s_waitcnt lgkmcnt(0)")
    A(f"v_mov_b32 v{va}, {M_MISC + 4*idx}")
    A(f"v_mov_b32 v{vb}, 1")
    A("s_mov_b64 exec, 1")
    A(f"ds_add_u32 v{va}, v{vb}")
    A("s_mov_b64 exec, -1")
    A(f"s_mov_b32 s{T+1}, 0")
    A.label(L)
    A(f"ds_read_b32 v{vb}, v{va}")
    A("s_waitcnt lgkmcnt(0)")
    A(f"v_readfirstlane_b32 s{T}, v{vb}")
    A(f"s_add_u32 s{T+1}, s{T+1}, 1")
    A(f"s_cmp_ge_u32 s{T+1}, {SPIN_MAX*8}")
    A(f"s_cbranch_scc1 {L}_d")
    A(f"s_cmp_lt_u32 s{T}, {nw}")
    A(f"s_cbranch_scc1 {L}")
    A.label(L + "_d")

def moe_dma():
    T = S_T
    srd(SRD_K, S_WGT, 5308416)
    srd(SRD_V, S_WUP, 5308416)
    A("v_mul_u32_u24 v1, 43, v0")
    A("v_lshrrev_b32 v1, 8, v1")
    A("v_mul_u32_u24 v2, 6, v1")
    A("v_sub_u32 v2, v0, v2")
    A("v_mul_u32_u24 v1, 9216, v1")
    A("v_lshl_add_u32 v1, v2, 4, v1")
    A(f"s_mul_i32 s{T+1}, s70, 96")
    A(f"v_add_u32 v1, s{T+1}, v1")
    A(f"s_sub_u32 s{T+2}, s{S_WAVE}, 4")
    A(f"s_mul_i32 s{T+3}, s{T+2}, 73728")
    A(f"s_mul_i32 s{T+4}, s{T+2}, 768")
    A("s_mov_b32 exec_hi, 0xffff")
    for i in range(18):
        A(f"s_add_u32 m0, s{T+4}, {M_WG}")
        A("s_nop 0")
        A(f"buffer_load_dwordx4 v1, s[{SRD_K}:{SRD_K+3}], s{T+3} offen {NT} lds")
        A(f"s_add_u32 m0, s{T+4}, {M_WU}")
        A("s_nop 0")
        A(f"buffer_load_dwordx4 v1, s[{SRD_V}:{SRD_V+3}], s{T+3} offen {NT} lds")
        A(f"s_add_u32 s{T+3}, s{T+3}, {4*73728}")
        A(f"s_add_u32 s{T+4}, s{T+4}, {4*768}")
    A("s_mov_b64 exec, -1")

DW0, DW1 = 64, 96
def moe_down_loads():
    T = S_T
    A("v_and_b32 v1, 15, v0")
    A("v_lshrrev_b32 v2, 2, v1")
    A("v_and_b32 v3, 3, v1")
    A("v_mul_u32_u24 v2, 3, v2")
    A("v_add_u32 v2, v2, v3")
    A("v_mul_u32_u24 v2, 12, v2")
    A("v_lshrrev_b32 v4, 4, v0")
    A("v_mul_u32_u24 v5, 9216, v4")
    A("v_add_u32 v2, v2, v5")
    A(f"s_mul_i32 s{T+1}, s70, {48*1152}")
    A(f"s_mul_i32 s{T+2}, s{S_WAVE}, 144")
    A(f"s_add_u32 s{T+1}, s{T+1}, s{T+2}")
    A(f"v_add_u32 v2, s{T+1}, v2")
    A(f"v_add_u32 v5, 4608, v2")
    A(f"v_add_u32 v6, 36864, v2")
    A(f"v_add_u32 v7, {36864+4608}, v2")
    for i in range(32): A(f"v_mov_b32 v{DW1+i}, 0")
    A("v_cmp_ne_u32 vcc, 3, v3")
    A(f"s_mov_b64 s[{T+4}:{T+5}], vcc")
    A(f"s_mov_b64 exec, vcc")
    for jj in range(8):
        A(f"global_load_dwordx3 v[{DW0+4*jj}:{DW0+4*jj+2}], v{2 if jj<4 else 5}, s[{S_WD}:{S_WD+1}] offset:{1152*(jj%4)} {NT}")
    A(f"s_mov_b32 exec_hi, 0")
    for jj in range(8):
        A(f"global_load_dwordx3 v[{DW1+4*jj}:{DW1+4*jj+2}], v{6 if jj<4 else 7}, s[{S_WD}:{S_WD+1}] offset:{1152*(jj%4)} {NT}")
    A("s_mov_b64 exec, -1")

def moe_top8():
    T = S_T
    A(f"s_lshl_b32 s{T+1}, s{S_WAVE}, 6")
    A(f"v_add_u32 v1, s{T+1}, v0")
    A("v_lshlrev_b32 v2, 6, v1")
    add64(T+2, S_WS, WS_RG)
    K = 16
    def ld():
        for i in range(4):
            A(f"global_load_dwordx4 {p4(K+4*i)}, v2, s[{T+2}:{T+3}] offset:{16*i} sc1")
    tagcheck_loop(ld, [K+2*i+1 for i in range(8)], 10, 12)
    stamp(5)
    keys = [K+2*i for i in range(8)]
    A(f"v_max3_f32 v40, v{keys[0]}, v{keys[1]}, v{keys[2]}")
    A(f"v_max3_f32 v41, v{keys[3]}, v{keys[4]}, v{keys[5]}")
    A(f"v_max3_f32 v40, v40, v{keys[6]}, v{keys[7]}")
    A(f"v_max_f32 v40, v40, v41")
    for sh in (8, 4, 2, 1):
        A("s_nop 1")
        A(f"v_max_f32_dpp v40, v40, v40 row_ror:{sh} row_mask:0xf bank_mask:0xf")
    A("s_nop 1")
    A(f"v_readlane_b32 s{T+4}, v40, 16")
    A(f"v_readlane_b32 s{T+5}, v40, 48")
    A(f"v_readlane_b32 s{T+6}, v40, 32")
    A("s_nop 1")
    A(f"v_max_f32 v41, s{T+4}, v40")
    A(f"v_mov_b32 v42, s{T+6}")
    A(f"v_max_f32 v42, s{T+5}, v42")
    A(f"s_lshl_b32 s{T+4}, s{S_WAVE}, 3")
    A(f"s_add_u32 s{T+4}, s{T+4}, {M_MISC+16}")
    A(f"v_mov_b32 v43, s{T+4}")
    A("s_mov_b64 exec, 1")
    A(f"ds_write_b32 v43, v41")
    A(f"ds_write_b32 v43, v42 offset:4")
    A("s_mov_b64 exec, -1")
    lds_bar(1, 4, 44, 45)
    A(f"v_mov_b32 v43, {M_MISC+16}")
    A(f"ds_read_b128 {p4(44)}, v43")
    A(f"ds_read_b128 {p4(48)}, v43 offset:16")
    A("s_waitcnt lgkmcnt(0)")
    A("v_min3_f32 v40, v44, v45, v46")
    A("v_min3_f32 v41, v47, v48, v49")
    A("v_min3_f32 v40, v40, v50, v51")
    A("v_min_f32 v40, v40, v41")
    A("v_mov_b32 v41, 0")
    for i in range(8):
        A(f"v_cmp_ge_f32 s[{T+4+2*(i%4)}:{T+5+2*(i%4)}], v{keys[i]}, v40")
        if i % 4 == 3:
            for q in range(4):
                A(f"v_addc_co_u32 v41, vcc, 0, v41, s[{T+4+2*q}:{T+5+2*q}]")
    A(f"v_mov_b32 v43, {M_MISC}")
    A("v_cmp_lt_u32 vcc, 0, v41")
    A(f"s_and_saveexec_b64 s[{T+12}:{T+13}], vcc")
    A("ds_add_rtn_u32 v42, v43, v41")
    A(f"s_mov_b64 exec, s[{T+12}:{T+13}]")
    A("s_waitcnt lgkmcnt(0)")
    A("v_lshlrev_b32 v42, 2, v42")
    A(f"v_add_u32 v42, {M_LIST}, v42")
    A(f"v_mov_b32 v43, {M_RED}")
    for i in range(8):
        A(f"v_cmp_ge_f32 vcc, v{keys[i]}, v40")
        A("s_nop 1")
        A(f"v_cndmask_b32 v44, v43, v42, vcc")
        A(f"v_cndmask_b32 v45, 0, 4, vcc")
        A(f"ds_write_b32 v44, v{keys[i]}")
        A(f"v_add_u32 v42, v42, v45")
    lds_bar(2, 4, 44, 45)
    A(f"v_mov_b32 v43, {M_MISC}")
    A("ds_read_b32 v44, v43")
    A("s_waitcnt lgkmcnt(0)")
    A(f"v_readfirstlane_b32 s{T+8}, v44")
    A(f"s_mov_b32 s{T+9}, 0")
    Lc = A.newlabel("L_chunk"); Lj = A.newlabel("L_j")
    A.label(Lc)
    A(f"v_add_u32 v44, s{T+9}, v0")
    A("v_lshlrev_b32 v44, 2, v44")
    A(f"v_add_u32 v44, {M_LIST}, v44")
    A("ds_read_b32 v46, v44")
    A("v_mov_b32 v47, 0")
    A(f"v_mov_b32 v45, {M_LIST}")
    A(f"s_mov_b32 s{T+10}, 0")
    A.label(Lj)
    A(f"ds_read_b128 {p4(48)}, v45")
    A("v_add_u32 v45, 16, v45")
    A(f"s_add_u32 s{T+10}, s{T+10}, 4")
    A("s_waitcnt lgkmcnt(0)")
    for q in range(4):
        A(f"v_cmp_gt_f32 s[{T+2*q}:{T+2*q+1}], v{48+q}, v46")
    for q in range(4):
        A(f"v_addc_co_u32 v47, vcc, 0, v47, s[{T+2*q}:{T+2*q+1}]")
    A(f"s_cmp_lt_u32 s{T+10}, s{T+8}")
    A(f"s_cbranch_scc1 {Lj}")
    A(f"v_add_u32 v44, s{T+9}, v0")
    A(f"v_cmp_gt_u32 vcc, s{T+8}, v44")
    A(f"v_cmp_gt_u32 s[{T}:{T+1}], 8, v47")
    A("s_nop 1")
    A(f"s_and_b64 vcc, vcc, s[{T}:{T+1}]")
    A(f"s_and_saveexec_b64 s[{T+12}:{T+13}], vcc")
    A("v_lshlrev_b32 v47, 2, v47")
    A(f"v_add_u32 v47, {M_MISC+32}, v47")
    A("ds_write_b32 v47, v46")
    A(f"s_mov_b64 exec, s[{T+12}:{T+13}]")
    A(f"s_add_u32 s{T+9}, s{T+9}, 64")
    A(f"s_cmp_lt_u32 s{T+9}, s{T+8}")
    A(f"s_cbranch_scc1 {Lc}")
    A("s_waitcnt lgkmcnt(0)")
    stamp(6)

def moe_xs():
    T = S_T
    A(f"s_lshl_b32 s{T+1}, s{S_WAVE}, 2")
    A(f"s_add_u32 s{T+1}, s{T+1}, {M_MISC+32}")
    A(f"v_mov_b32 v1, s{T+1}")
    A("ds_read_b32 v16, v1")
    A("ds_read_b32 v17, v1 offset:16")
    A("s_waitcnt lgkmcnt(0)")
    add64(T+2, S_WS, WS_SG)
    A("s_mov_b32 exec_hi, 0xf")
    for h in range(2):
        A(f"v_and_b32 v{18+h}, 0x7ff, v{16+h}")
        A(f"v_mul_u32_u24 v{20+h}, 1152, v{18+h}")
        A(f"v_lshl_add_u32 v{20+h}, v0, 5, v{20+h}")
        A(f"global_load_dwordx4 {p4(24+8*h)}, v{20+h}, s[{S_Q}:{S_Q+1}]")
        A(f"global_load_dwordx4 {p4(28+8*h)}, v{20+h}, s[{S_Q}:{S_Q+1}] offset:16")
        A(f"v_lshlrev_b32 v{22+h}, 3, v{18+h}")
    def ld():
        A(f"global_load_dwordx2 v[40:41], v22, s[{T+2}:{T+3}] sc1")
        A(f"global_load_dwordx2 v[42:43], v23, s[{T+2}:{T+3}] sc1")
    tagcheck_loop(ld, [41, 43], 10, 12)
    for h in range(2):
        st = 40 + 2*h
        A(f"v_lshlrev_b32 v44, 16, v{st}")
        A(f"v_and_b32 v45, s{S_MASK}, v{st}")
        A("v_rcp_f32 v46, v45")
        A("s_nop 0")
        A("v_fma_f32 v47, -v45, v46, 1.0")
        A("v_fma_f32 v46, v47, v46, v46")
        for i in range(8):
            r = 24 + 8*h + i
            A(f"v_lshlrev_b32 v48, 16, v{r}")
            A(f"v_and_b32 v49, s{S_MASK}, v{r}")
            A("v_pk_add_f32 v[48:49], v[48:49], v[44:45] op_sel_hi:[1,0] neg_lo:[0,1] neg_hi:[0,1]")
            rnd(48); rnd(49)
            A("v_pk_mul_f32 v[48:49], v[48:49], v[46:47] op_sel_hi:[1,0]")
            A(f"v_cvt_pk_bf16_f32 v{r}, v48, v49")
        A(f"s_mul_i32 s{T+4}, s{S_WAVE}, {XS_RS}")
        A(f"s_add_u32 s{T+4}, s{T+4}, {M_XS + 4*XS_RS*h}")
        A("v_lshlrev_b32 v50, 5, v0")
        A(f"v_add_u32 v50, s{T+4}, v50")
        A(f"ds_write_b128 v50, {p4(24+8*h)}")
        A(f"ds_write_b128 v50, {p4(28+8*h)} offset:16")
        A(f"v_and_b32 v51, s{S_MASK}, v{16+h}")
        A(f"v_mul_f32 v51, 0x{f32bits(-1.4426950408889634):08x}, v51")
        A("v_exp_f32 v51, v51")
        A("s_nop 0")
        A("v_add_f32 v51, 1.0, v51")
        A("v_rcp_f32 v51, v51")
        A("s_nop 0")
        rnd(51)
        A(f"s_lshl_b32 s{T+4}, s{S_WAVE}, 2")
        A(f"s_add_u32 s{T+4}, s{T+4}, {M_MISC + 64 + 16*h}")
        A(f"v_mov_b32 v52, s{T+4}")
        A("ds_write_b32 v52, v51")
    A("s_mov_b64 exec, -1")
    L = A.newlabel("L_nsp")
    A("s_cmp_lg_u32 s70, 0")
    A(f"s_cbranch_scc1 {L}")
    A(f"s_cmp_lg_u32 s{S_WAVE}, 0")
    A(f"s_cbranch_scc1 {L}")
    A("v_lshlrev_b32 v1, 2, v0")
    A(f"v_add_u32 v1, {M_MISC+32}, v1")
    A("s_mov_b64 exec, 0xff")
    A("ds_read_b32 v2, v1")
    add64(T+2, S_WS, WS_SEL)
    A(f"v_mov_b32 v3, s{S_NONCE}")
    A("v_lshlrev_b32 v4, 3, v0")
    A("s_waitcnt lgkmcnt(0)")
    A("v_and_b32 v2, 0x7ff, v2")
    A(f"global_store_dwordx2 v4, v[2:3], s[{T+2}:{T+3}] sc1")
    A("s_mov_b64 exec, -1")
    A.label(L)

def moe_gateup():
    T = S_T
    L = A.newlabel("L_nogu")
    A(f"s_cmp_ge_u32 s{S_WAVE}, 6")
    A(f"s_cbranch_scc1 {L}")
    A(f"s_cmp_ge_u32 s{S_WAVE}, 3")
    A(f"s_cselect_b32 s{T+1}, 1, 0")
    A(f"s_mul_i32 s{T+2}, s{T+1}, 3")
    A(f"s_sub_u32 s{T+2}, s{S_WAVE}, s{T+2}")
    A("v_lshrrev_b32 v1, 4, v0")
    A("v_bfe_u32 v2, v0, 2, 2")
    A("v_lshl_add_u32 v2, v1, 3, v2")
    A("v_mul_u32_u24 v2, 96, v2")
    A("v_and_b32 v3, 3, v0")
    A("v_lshl_add_u32 v2, v3, 3, v2")
    A(f"s_mul_i32 s{T+3}, s{T+1}, {M_WU}")
    A(f"s_lshl_b32 s{T+4}, s{T+2}, 5")
    A(f"s_add_u32 s{T+3}, s{T+3}, s{T+4}")
    A(f"v_add_u32 v2, s{T+3}, v2")
    A("v_and_b32 v3, 7, v0")
    A(f"v_mul_u32_u24 v3, {XS_RS}, v3")
    A("v_lshl_add_u32 v3, v1, 4, v3")
    A(f"v_add_u32 v3, {M_XS}, v3")
    for i in range(4): A(f"v_mov_b32 v{8+i}, 0")
    def rd(t):
        b = 8*(t % 8)
        A(f"ds_read_b64_tr_b16 a[{b}:{b+1}], v2 offset:{3072*t}")
        A(f"ds_read_b64_tr_b16 a[{b+2}:{b+3}], v2 offset:{3072*t+384}")
        A(f"ds_read_b128 a[{b+4}:{b+7}], v3 offset:{64*t}")
    for t in range(5): rd(t)
    for t in range(18):
        rem = min(17, t+4) - t
        A(f"s_waitcnt lgkmcnt({3*rem})")
        b = 8*(t % 8)
        A(f"v_mfma_f32_16x16x32_bf16 v[8:11], a[{b}:{b+3}], a[{b+4}:{b+7}], v[8:11]")
        if t + 5 < 18: rd(t+5)
    A("s_nop 7"); A("s_nop 1")
    A("v_and_b32 v3, 15, v0")
    A("v_mul_u32_u24 v4, 192, v3")
    A("v_lshl_add_u32 v4, v1, 4, v4")
    A(f"s_mul_i32 s{T+3}, s{T+1}, 1536")
    A(f"s_lshl_b32 s{T+4}, s{T+2}, 6")
    A(f"s_add_u32 s{T+3}, s{T+3}, s{T+4}")
    A(f"s_add_u32 s{T+3}, s{T+3}, {M_GU}")
    A(f"v_add_u32 v4, s{T+3}, v4")
    A("v_cmp_gt_u32 vcc, 8, v3")
    A(f"s_and_saveexec_b64 s[{T+12}:{T+13}], vcc")
    A(f"ds_write_b128 v4, {p4(8)}")
    A(f"s_mov_b64 exec, s[{T+12}:{T+13}]")
    A.label(L)

def moe_h():
    T = S_T
    L = A.newlabel("L_noh2")
    A(f"s_cmp_ge_u32 s{S_WAVE}, 6")
    A(f"s_cbranch_scc1 {L}")
    A(f"s_lshl_b32 s{T+1}, s{S_WAVE}, 6")
    A(f"v_add_u32 v1, s{T+1}, v0")
    A("v_lshlrev_b32 v2, 2, v1")
    A(f"v_add_u32 v2, {M_GU}, v2")
    A("ds_read_b32 v8, v2")
    A("ds_read_b32 v9, v2 offset:1536")
    A("v_mul_u32_u24 v3, 1366, v1")
    A("v_lshrrev_b32 v3, 16, v3")
    A("v_mul_u32_u24 v4, 48, v3")
    A("v_sub_u32 v4, v1, v4")
    A(f"v_mul_u32_u24 v3, {H_RS}, v3")
    A("v_lshl_add_u32 v3, v4, 1, v3")
    A(f"v_add_u32 v3, {M_H}, v3")
    A("s_waitcnt lgkmcnt(0)")
    rnd(8); rnd(9)
    A(f"v_mul_f32 v10, 0x{f32bits(-1.4426950408889634):08x}, v8")
    A("v_exp_f32 v10, v10")
    A("s_nop 0")
    A("v_add_f32 v10, 1.0, v10")
    A("v_rcp_f32 v10, v10")
    A("s_nop 0")
    A("v_mul_f32 v10, v8, v10")
    rnd(10)
    A("v_mul_f32 v10, v10, v9")
    A("v_cvt_pk_bf16_f32 v10, v10, v10")
    A("ds_write_b16 v3, v10")
    A.label(L)

FR0, FR1 = 16, 40
def moe_down_perm():
    for ks, (R, F) in enumerate(((DW0, FR0), (DW1, FR1))):
        for e in range(6):
            sel = S_SELLO if (e & 1) == 0 else S_SELHI
            for q in range(4):
                A(f"v_perm_b32 v{F+4*e+q}, v{R+4*(2*q+1)+e//2}, v{R+4*(2*q)+e//2}, s{sel}")

def moe_down():
    T = S_T
    A("v_and_b32 v1, 7, v0")
    A(f"v_mul_u32_u24 v1, {H_RS}, v1")
    A("v_lshrrev_b32 v2, 4, v0")
    A("v_lshl_add_u32 v1, v2, 4, v1")
    A(f"v_add_u32 v1, {M_H}, v1")
    A(f"ds_read_b128 {p4(64)}, v1")
    A(f"ds_read_b128 {p4(68)}, v1 offset:64")
    ACC = 72
    for i in range(24): A(f"v_mov_b32 v{ACC+i}, 0")
    A("s_waitcnt lgkmcnt(0)")
    for ks, F, B in ((0, FR0, 64), (1, FR1, 68)):
        for e in range(6):
            A(f"v_mfma_f32_16x16x32_bf16 {p4(ACC+4*e)}, {p4(F+4*e)}, {p4(B)}, {p4(ACC+4*e)}")
    A("v_and_b32 v3, 15, v0")
    A("v_lshlrev_b32 v4, 4, v3")
    A("v_lshl_add_u32 v4, v2, 7, v4")
    A(f"s_mul_i32 s{T+1}, s70, 24576")
    A(f"s_mul_i32 s{T+2}, s{S_WAVE}, 3072")
    A(f"s_add_u32 s{T+1}, s{T+1}, s{T+2}")
    A(f"v_add_u32 v4, s{T+1}, v4")
    add64(T+2, S_WS, WS_PART)
    A("s_nop 4")
    for e in range(6): A(f"v_mov_b32 v{ACC+4*e+3}, s{S_NONCE}")
    A("v_cmp_gt_u32 vcc, 8, v3")
    A(f"s_and_saveexec_b64 s[{T+12}:{T+13}], vcc")
    for e in range(6):
        A(f"global_store_dwordx4 v4, {p4(ACC+4*e)}, s[{T+2}:{T+3}] offset:{512*e} sc1")
    A(f"s_mov_b64 exec, s[{T+12}:{T+13}]")

def moe_reduce():
    T = S_T
    A("v_lshrrev_b32 v1, 4, v0")
    A(f"s_mul_i32 s{T+1}, s{S_WAVE}, 12")
    A(f"v_add_u32 v1, s{T+1}, v1")
    A(f"v_mul_u32_u24 v1, 24576, v1")
    A("v_and_b32 v2, 15, v0")
    A("v_lshl_add_u32 v1, v2, 4, v1")
    A(f"s_lshl_b32 s{T+1}, s70, 8")
    A(f"v_add_u32 v1, s{T+1}, v1")
    A(f"v_add_u32 v3, {4*24576}, v1")
    A(f"v_add_u32 v4, {8*24576}, v1")
    add64(T+2, S_WS, WS_PART)
    def ld():
        A(f"global_load_dwordx4 {p4(16)}, v1, s[{T+2}:{T+3}] sc1")
        A(f"global_load_dwordx4 {p4(20)}, v3, s[{T+2}:{T+3}] sc1")
        A(f"global_load_dwordx4 {p4(24)}, v4, s[{T+2}:{T+3}] sc1")
    tagcheck_loop(ld, [19, 23, 27], 10, 12)
    stamp(8)
    for r in range(3):
        A(f"v_add_f32 v{16+r}, v{16+r}, v{20+r}")
        A(f"v_add_f32 v{16+r}, v{16+r}, v{24+r}")
    for r in range(3):
        A(f"v_mov_b32 v{20+r}, v{16+r}")
    A("s_nop 1")
    for r in range(3):
        A(f"v_permlane32_swap_b32 v{16+r}, v{20+r}")
    for r in range(3):
        A(f"v_add_f32 v{16+r}, v{16+r}, v{20+r}")
    for r in range(3):
        A(f"v_mov_b32 v{20+r}, v{16+r}")
    A("s_nop 1")
    for r in range(3):
        A(f"v_permlane16_swap_b32 v{16+r}, v{20+r}")
    for r in range(3):
        A(f"v_add_f32 v{16+r}, v{16+r}, v{20+r}")
    A(f"s_lshl_b32 s{T+1}, s{S_WAVE}, 8")
    A("v_lshlrev_b32 v5, 4, v2")
    A(f"v_add_u32 v5, s{T+1}, v5")
    A(f"v_add_u32 v5, {M_RED}, v5")
    A("s_mov_b64 exec, 0xffff")
    A(f"ds_write_b128 v5, {p4(16)}")
    A("s_mov_b64 exec, -1")
    A("s_waitcnt lgkmcnt(0)")
    A("s_barrier")
    L = A.newlabel("L_nofin")
    A(f"s_cmp_lg_u32 s{S_WAVE}, 0")
    A(f"s_cbranch_scc1 {L}")
    A("s_mov_b32 exec_hi, 0xffff")
    A(f"s_and_b32 s{T+1}, s70, 1")
    A(f"s_lshr_b32 s{T+2}, s70, 1")
    A(f"s_mul_i32 s{T+3}, s{T+2}, 43")
    A(f"s_lshr_b32 s{T+3}, s{T+3}, 8")
    A(f"s_mul_i32 s{T+4}, s{T+3}, 6")
    A(f"s_sub_u32 s{T+4}, s{T+2}, s{T+4}")
    A(f"s_mul_i32 s{T+5}, s{T+3}, 72")
    A(f"s_add_u32 s{T+5}, s{T+5}, s{T+4}")
    A(f"s_mul_i32 s{T+6}, s{T+1}, 36")
    A(f"s_add_u32 s{T+5}, s{T+5}, s{T+6}")
    A("v_lshrrev_b32 v1, 4, v0")
    A("v_and_b32 v2, 15, v0")
    A("v_lshrrev_b32 v3, 3, v2")
    A("v_and_b32 v4, 7, v2")
    A("v_mul_u32_u24 v5, 18, v3")
    A("v_mul_u32_u24 v6, 6, v1")
    A(f"v_add3_u32 v5, v5, v6, s{T+5}")
    A("v_lshlrev_b32 v6, 4, v2")
    A("v_lshl_add_u32 v6, v1, 2, v6")
    A(f"v_add_u32 v6, {M_RED}, v6")
    for w in range(8): A(f"ds_read_b32 v{16+w}, v6 offset:{256*w}")
    A(f"v_mul_u32_u24 v7, {XS_RS}, v4")
    A("v_lshl_add_u32 v7, v5, 1, v7")
    A(f"v_add_u32 v7, {M_XS}, v7")
    A("ds_read_u16 v24, v7")
    A("v_lshlrev_b32 v8, 2, v4")
    A(f"v_add_u32 v8, {M_MISC}, v8")
    A("ds_read_b32 v25, v8 offset:32")
    A("ds_read_b32 v26, v8 offset:64")
    A("v_mul_u32_u24 v9, 576, v4")
    A("v_add_u32 v9, v9, v5")
    A("v_lshlrev_b32 v9, 3, v9")
    add64(T+2, S_WS, WS_T1G)
    tagcheck_loop(lambda: A(f"global_load_dwordx2 v[28:29], v9, s[{T+2}:{T+3}] sc1"), [29], 10, 12)
    A("s_waitcnt lgkmcnt(0)")
    A("v_add_f32 v16, v16, v17"); A("v_add_f32 v18, v18, v19"); A("v_add_f32 v20, v20, v21"); A("v_add_f32 v22, v22, v23")
    A("v_add_f32 v16, v16, v18"); A("v_add_f32 v20, v20, v22"); A("v_add_f32 v16, v16, v20")
    rnd(16)
    A("v_mul_f32 v16, v16, v26")
    rnd(16)
    A("v_lshlrev_b32 v24, 16, v24")
    A("v_add_f32 v16, v24, v16")
    rnd(16)
    A("v_add_f32 v16, v28, v16")
    A("v_cvt_pk_bf16_f32 v16, v16, v16")
    A("v_and_b32 v25, 0x7ff, v25")
    A("v_mul_u32_u24 v25, 1152, v25")
    A("v_lshl_add_u32 v25, v5, 1, v25")
    A(f"global_store_short v25, v16, s[{S_OUT}:{S_OUT+1}]")
    A("s_mov_b64 exec, -1")
    A.label(L)

def moe_wg():
    T = S_T
    A(f"s_sub_u32 s69, s{S_WG}, {NCONV}")
    A(f"s_cmp_ge_u32 s69, {NMOE}")
    A("s_cbranch_scc1 L_fin")
    A("s_and_b32 s70, s69, 7")
    A("s_mul_i32 s70, s70, 12")
    A(f"s_lshr_b32 s{T+1}, s69, 3")
    A(f"s_add_u32 s70, s70, s{T+1}")
    A(f"s_lshl_b32 s{T+1}, s{S_WAVE}, 10")
    A("v_lshlrev_b32 v1, 4, v0")
    A(f"v_add_u32 v1, s{T+1}, v1")
    A(f"v_add_u32 v1, {M_LIST}, v1")
    for i in range(4): A(f"v_mov_b32 v{4+i}, 0xff800000")
    A(f"ds_write_b128 v1, {p4(4)}")
    L0 = A.newlabel("L_ni")
    A(f"s_cmp_lg_u32 s{S_WAVE}, 0")
    A(f"s_cbranch_scc1 {L0}")
    A("v_lshlrev_b32 v1, 4, v0")
    A(f"v_add_u32 v2, {M_LIST+8192}, v1")
    A("s_mov_b64 exec, 0xf")
    A(f"ds_write_b128 v2, {p4(4)}")
    A("s_mov_b64 exec, -1")
    for i in range(4): A(f"v_mov_b32 v{4+i}, 0")
    A(f"v_add_u32 v2, {M_MISC}, v1")
    A("s_mov_b64 exec, 0xff")
    A(f"ds_write_b128 v2, {p4(4)}")
    A("s_mov_b64 exec, -1")
    A(f"v_add_u32 v2, {M_H}, v1")
    A(f"ds_write_b128 v2, {p4(4)}")
    A(f"v_add_u32 v2, {M_H+1024}, v1")
    A("s_mov_b64 exec, 0xff")
    A(f"ds_write_b128 v2, {p4(4)}")
    A("s_mov_b64 exec, -1")
    A.label(L0)
    A("s_cmp_ge_u32 s69, 64")
    A("s_cbranch_scc1 L_moe_noln")
    ln_loads()
    ln_compute(0)
    get_nonce(120)
    ln_publish()
    A.label("L_moe_noln")
    stamp(4)
    A("s_waitcnt lgkmcnt(0)")
    A("s_barrier")
    A(f"s_cmp_ge_u32 s{S_WAVE}, 4")
    A("s_cbranch_scc1 L_moe_loader")
    get_nonce(120)
    moe_top8()
    moe_xs()
    stamp(7)
    moe_down_loads()
    A("s_branch L_moe_join")
    A.label("L_moe_loader")
    moe_dma()
    moe_down_loads()
    get_nonce_after = True
    A("s_waitcnt vmcnt(16)")
    A.label("L_moe_join")
    A("s_waitcnt lgkmcnt(0)")
    A("s_barrier")
    moe_gateup()
    A("s_waitcnt lgkmcnt(0)")
    A("s_barrier")
    moe_h()
    A("s_waitcnt vmcnt(0)")
    get_nonce(10)
    moe_down_perm()
    A("s_waitcnt lgkmcnt(0)")
    A("s_barrier")
    moe_down()
    moe_reduce()
    A("s_branch L_fin")

def main():
    prologue()
    A(f"s_cmp_ge_u32 s{S_WG}, {NCONV}")
    A("s_cbranch_scc1 L_moe")
    conv_wg()
    A.label("L_moe")
    moe_wg()
    A.label("L_fin")
    prof_end()
    dur_end()
    A.label("L_end")
    A("s_endpgm")

main()
K = NAME + "_kernel"
LDS = L_TOTAL
txt = HDR + f"; @launch grid=(256,1,1) block=(512,1,1) lds={LDS}\n" + '.amdgcn_target "amdgcn-amd-amdhsa--gfx950"\n.text\n' + head(K) + A.text() + kd(K, 256, 102, 128, "  .amdhsa_float_denorm_mode_32 3\n")
open(OUTFN, "w").write(txt)
print("wrote", OUTFN, len(txt), "LDS", LDS)
```

```python
import sys, struct, os
sys.path.insert(0, "dev")
from asmlib import *

OUTFN = sys.argv[1] if len(sys.argv) > 1 else "k.s"
OPTS = set(sys.argv[2:])
PROF = "prof" in OPTS
NT = "nt" if "nt" in OPTS else ""

WS_KVT = 0x000000
WS_XT = 0x240000
WS_RG = 0x480000
WS_SG = 0x484000
WS_FL = 0x488000
WS_FL2 = 0x488800
WS_SEL = 0x489800
WS_T1G = 0x48A000
WS_XSG = 0x494000
WS_PART = 0x4A0000
WS_PROF = 0x800000
SPIN_MAX = 400000
NCONV, NMOE = 144, 72
NLN = 40

S_WG, S_WAVE = 2, 3
S_Q, S_K, S_V, S_SK, S_H, S_D, S_BX, S_WR, S_WGT, S_WUP, S_WD, S_OUT, S_DBG, S_WS = 4, 6, 8, 10, 12, 14, 16, 18, 20, 22, 24, 26, 28, 30
SRD_K, SRD_V, SRD_Q, SRD_O = 32, 36, 40, 44
S_NONCE = 48
S_MASK, S_SELLO, S_SELHI = 50, 51, 52
S_T = 54

A = Asm()
def f32bits(x): return struct.unpack("<I", struct.pack("<f", x))[0]
def p2(r): return f"v[{r}:{r+1}]"
def p4(r): return f"v[{r}:{r+3}]"
def sp(r): return f"s[{r}:{r+1}]"

NSTAMP = 10
def stamp(i):
    if PROF: A(f"s_memtime s[{80+2*i}:{81+2*i}]")
def prof_begin():
    if PROF:
        A("s_memrealtime s[100:101]")
        stamp(0)
        for i in range(1, NSTAMP):
            A(f"s_mov_b64 s[{80+2*i}:{81+2*i}], 0")
def prof_end():
    if not PROF: return
    A(f"s_memrealtime s[{S_T+2}:{S_T+3}]")
    A("s_waitcnt lgkmcnt(0)")
    A(f"s_lshl_b32 s{S_T}, s{S_WG}, 3")
    A(f"s_add_u32 s{S_T}, s{S_T}, s{S_WAVE}")
    A(f"s_lshl_b32 s{S_T}, s{S_T}, 6")
    A(f"s_add_u32 s{S_T}, s{S_T}, {WS_PROF}")
    A(f"v_mov_b32 v1, s{S_T}")
    A("s_mov_b64 exec, 1")
    A("v_mov_b32 v2, s100")
    A(f"global_store_dword v1, v2, {sp(S_WS)}")
    A(f"v_mov_b32 v2, s{S_T+2}")
    A(f"global_store_dword v1, v2, {sp(S_WS)} offset:4")
    for i in range(1, NSTAMP):
        A(f"s_sub_u32 s{S_T+1}, s{80+2*i}, s80")
        A(f"v_mov_b32 v2, s{S_T+1}")
        A(f"global_store_dword v1, v2, {sp(S_WS)} offset:{4+4*i}")
    A("s_mov_b64 exec, -1")

def rnd(v, src=None):
    A(f"v_cvt_pk_bf16_f32 v{v}, 0, v{v if src is None else src}")
def srd(dst, base, nbytes):
    A(f"s_mov_b32 s{dst}, s{base}")
    A(f"s_and_b32 s{dst+1}, s{base+1}, 0xffff")
    A(f"s_mov_b32 s{dst+2}, {nbytes}")
    A(f"s_mov_b32 s{dst+3}, 0x00020000")
def add64(dst, src, imm):
    A(f"s_add_u32 s{dst}, s{src}, {imm}")
    A(f"s_addc_u32 s{dst+1}, s{src+1}, 0")

def get_nonce(vtmp):
    L = A.newlabel("L_nonce"); Ld = A.newlabel("L_nonced")
    A(f"v_mov_b32 v{vtmp}, 0")
    A(f"s_mov_b32 s{S_T}, 0")
    A.label(L)
    A(f"global_load_dword v{vtmp+1}, v{vtmp}, {sp(S_DBG)} sc1")
    A(f"s_waitcnt vmcnt(0)")
    A(f"v_readfirstlane_b32 s{S_NONCE}, v{vtmp+1}")
    A(f"s_add_u32 s{S_T}, s{S_T}, 1")
    A(f"s_cmp_lg_u32 s{S_NONCE}, 0")
    A(f"s_cbranch_scc1 {Ld}")
    A(f"s_cmp_lt_u32 s{S_T}, {SPIN_MAX}")
    A(f"s_cbranch_scc1 {L}")
    A.label(Ld)

def tag_acc(tagregs, vacc, vtmp):
    A(f"v_xor_b32 v{vacc}, s{S_NONCE}, v{tagregs[0]}")
    rest = tagregs[1:]
    i = 0
    while i < len(rest):
        if i + 1 < len(rest):
            A(f"v_xor_b32 v{vtmp}, s{S_NONCE}, v{rest[i]}")
            A(f"v_xor_b32 v{vtmp+1}, s{S_NONCE}, v{rest[i+1]}")
            A(f"v_or3_b32 v{vacc}, v{vacc}, v{vtmp}, v{vtmp+1}")
            i += 2
        else:
            A(f"v_xor_b32 v{vtmp}, s{S_NONCE}, v{rest[i]}")
            A(f"v_or_b32 v{vacc}, v{vacc}, v{vtmp}")
            i += 1

def tagcheck_loop(load_fn, tagregs, vacc, vtmp, sleep=1):
    T = S_T
    L = A.newlabel("L_pl"); Ld = A.newlabel("L_pld")
    A(f"s_mov_b32 s{T}, 0")
    A.label(L)
    load_fn()
    A("s_waitcnt vmcnt(0)")
    tag_acc(tagregs, vacc, vtmp)
    A(f"v_cmp_ne_u32 vcc, 0, v{vacc}")
    A(f"s_add_u32 s{T}, s{T}, 1")
    A("s_nop 3")
    A("s_cmp_eq_u64 vcc, 0")
    A(f"s_cbranch_scc1 {Ld}")
    if sleep: A(f"s_sleep {sleep}")
    A(f"s_cmp_lt_u32 s{T}, {SPIN_MAX}")
    A(f"s_cbranch_scc1 {L}")
    A.label(Ld)

def nonce_writer():
    L = A.newlabel("L_nw")
    A(f"s_cmp_ge_u32 s{S_WG}, 8")
    A(f"s_cbranch_scc1 {L}")
    A(f"s_cmp_lg_u32 s{S_WAVE}, 7")
    A(f"s_cbranch_scc1 {L}")
    A(f"s_memrealtime {sp(S_T)}")
    A("s_waitcnt lgkmcnt(0)")
    A(f"s_or_b32 s{S_T}, s{S_T}, 1")
    A(f"v_mov_b32 v10, s{S_T}")
    A("v_mov_b32 v11, 0")
    A("v_mov_b32 v12, 0")
    A("s_mov_b64 exec, 1")
    A(f"global_atomic_cmpswap v12, v[10:11], {sp(S_DBG)} sc1")
    A("s_mov_b64 exec, -1")
    A.label(L)

def code_prefetch():
    T = S_T
    L = A.newlabel("L_cpf")
    A(f"s_cmp_lg_u32 s{S_WAVE}, 6")
    A(f"s_cbranch_scc1 {L}")
    A(f"s_lshr_b32 s{T+2}, s{S_WG}, 3")
    A(f"s_cmp_ge_u32 s{T+2}, (L_end - {NAME}_kernel + 1023) / 1024")
    A(f"s_cbranch_scc1 {L}")
    A(f"s_getpc_b64 {sp(T)}")
    A.label(L + "_pc")
    A(f"s_sub_u32 s{T}, s{T}, {L}_pc - {NAME}_kernel")
    A(f"s_subb_u32 s{T+1}, s{T+1}, 0")
    A(f"s_lshl_b32 s{T+2}, s{T+2}, 10")
    A("v_lshlrev_b32 v1, 4, v0")
    A(f"v_add_u32 v1, s{T+2}, v1")
    A(f"global_load_dwordx4 a[124:127], v1, {sp(T)}")
    A.label(L)

def prologue():
    A(f"s_cmp_ge_u32 s{S_WG}, 256")
    A("s_cbranch_scc1 L_end")
    prof_begin()
    A("s_load_dwordx16 s[4:19], s[0:1], 0")
    A("s_load_dwordx8 s[20:27], s[0:1], 64")
    A("s_load_dwordx4 s[28:31], s[0:1], 96")
    A("v_lshrrev_b32 v1, 6, v0")
    A("v_and_b32 v0, 63, v0")
    A(f"v_readfirstlane_b32 s{S_WAVE}, v1")
    A(f"s_mov_b32 s{S_MASK}, 0xffff0000")
    A(f"s_mov_b32 s{S_SELLO}, 0x05040100")
    A(f"s_mov_b32 s{S_SELHI}, 0x07060302")
    A("s_waitcnt lgkmcnt(0)")
    stamp(1)
    nonce_writer()
    code_prefetch()

def dpp_sum16(v):
    for sh in (8, 4, 2, 1):
        A("s_nop 1")
        A(f"v_add_f32_dpp v{v}, v{v}, v{v} row_ror:{sh} row_mask:0xf bank_mask:0xf")

LN_Q, LN_W, LN_Q2 = 10, 28, 46
def ln_loads(stok, Q, with_w):
    T = S_T
    A(f"s_lshl_b32 s{T+1}, s{S_WAVE}, 2")
    A(f"s_add_u32 s{T}, s{stok}, s{T+1}")
    A("v_lshrrev_b32 v1, 4, v0")
    A("v_and_b32 v2, 15, v0")
    A(f"v_add_u32 v3, s{T}, v1")
    A(f"v_mul_u32_u24 v4, 1152, v3")
    A(f"v_lshl_add_u32 v5, v2, 4, v4")
    A(f"v_lshl_add_u32 v6, v2, 3, v4")
    for i in range(4):
        A(f"global_load_dwordx4 {p4(Q+4*i)}, v5, {sp(S_Q)} offset:{256*i} {NT}")
    A(f"global_load_dwordx2 {p2(Q+16)}, v6, {sp(S_Q)} offset:1024 {NT}")
    if with_w:
        W = LN_W
        A(f"v_lshlrev_b32 v7, 4, v2")
        A(f"v_lshlrev_b32 v8, 3, v2")
        for i in range(4):
            A(f"global_load_dwordx4 {p4(W+4*i)}, v7, {sp(S_WR)} offset:{256*i}")
        A(f"global_load_dwordx2 {p2(W+16)}, v8, {sp(S_WR)} offset:1024")

def ln_compute_publish(Q, vtok):
    T = S_T
    W = LN_W
    X = 64
    for i in range(18):
        A(f"v_lshlrev_b32 v{X+2*i}, 16, v{Q+i}")
        A(f"v_and_b32 v{X+2*i+1}, s{S_MASK}, v{Q+i}")
    a0, a1 = 100, 102
    A(f"v_pk_add_f32 {p2(a0)}, {p2(X)}, {p2(X+2)}")
    A(f"v_pk_add_f32 {p2(a1)}, {p2(X+4)}, {p2(X+6)}")
    for i in range(4, 18, 2):
        A(f"v_pk_add_f32 {p2(a0)}, {p2(a0)}, {p2(X+2*i)}")
        A(f"v_pk_add_f32 {p2(a1)}, {p2(a1)}, {p2(X+2*i+2)}")
    A(f"v_pk_add_f32 {p2(a0)}, {p2(a0)}, {p2(a1)}")
    A(f"v_add_f32 v104, v{a0}, v{a0+1}")
    dpp_sum16(104)
    A(f"v_mul_f32 v104, 0x{f32bits(1.0/576):08x}, v104")
    for r in (a0, a0+1, a1, a1+1): A(f"v_mov_b32 v{r}, 0")
    for i in range(0, 18, 2):
        A(f"v_pk_add_f32 v[106:107], {p2(X+2*i)}, v[104:105] op_sel_hi:[1,0] neg_lo:[0,1] neg_hi:[0,1]")
        A(f"v_pk_add_f32 v[108:109], {p2(X+2*i+2)}, v[104:105] op_sel_hi:[1,0] neg_lo:[0,1] neg_hi:[0,1]")
        A(f"v_pk_fma_f32 {p2(a0)}, v[106:107], v[106:107], {p2(a0)}")
        A(f"v_pk_fma_f32 {p2(a1)}, v[108:109], v[108:109], {p2(a1)}")
    A(f"v_pk_add_f32 {p2(a0)}, {p2(a0)}, {p2(a1)}")
    A(f"v_add_f32 v106, v{a0}, v{a0+1}")
    dpp_sum16(106)
    A(f"v_mul_f32 v106, 0x{f32bits(1.0/576):08x}, v106")
    rnd(106)
    A(f"v_add_f32 v106, 0x{f32bits(1e-5):08x}, v106")
    rnd(106)
    A("v_sqrt_f32 v107, v106")
    A("s_nop 0")
    A("v_rcp_f32 v108, v107")
    A("v_fma_f32 v109, -v107, v107, v106")
    A("v_mul_f32 v108, 0.5, v108")
    A("v_fma_f32 v107, v109, v108, v107")
    rnd(107)
    A("v_rcp_f32 v108, v107")
    A("s_nop 0")
    A("v_fma_f32 v109, -v107, v108, 1.0")
    A("v_fma_f32 v110, v109, v108, v108")
    rnd(104)
    A("v_mov_b32 v112, 0")
    for i in range(18):
        t = 114 + 2*(i % 2)
        A(f"v_pk_add_f32 {p2(t)}, {p2(X+2*i)}, v[104:105] op_sel_hi:[1,0] neg_lo:[0,1] neg_hi:[0,1]")
        rnd(t); rnd(t+1)
        A(f"v_pk_mul_f32 {p2(t)}, {p2(t)}, v[110:111] op_sel_hi:[1,0]")
        A(f"v_cvt_pk_bf16_f32 v{t}, v{t}, v{t+1}")
        A(f"v_dot2_f32_bf16 v112, v{t}, v{W+i}, v112")
    A("s_nop 2")
    dpp_sum16(112)
    rnd(112)
    A(f"v_or_b32 v112, v112, v{vtok}")
    A("v_cvt_pk_bf16_f32 v114, v104, v107")
    A(f"v_mov_b32 v113, s{S_NONCE}")
    A(f"v_mov_b32 v115, s{S_NONCE}")
    A(f"v_lshlrev_b32 v116, 3, v{vtok}")
    add64(T+2, S_WS, WS_RG)
    add64(T+4, S_WS, WS_SG)
    A("v_cmp_eq_u32 vcc, 0, v2")
    A(f"s_and_saveexec_b64 {sp(T+6)}, vcc")
    A(f"global_store_dwordx2 v116, v[112:113], {sp(T+2)} sc1")
    A(f"global_store_dwordx2 v116, v[114:115], {sp(T+4)} sc1")
    A(f"s_mov_b64 exec, {sp(T+6)}")

P_CH = 4128
L_P = 0
L_Q = L_P + 4 * P_CH
Q_CPY = 1152
Q_CH = 4 * Q_CPY
L_YB = L_Q + 4 * Q_CH
L_MC = L_YB + 32768
L_SELT = L_MC + 64
TBLK = 1040
L_TK = (L_SELT + 2048 + 15) // 16 * 16
L_TV = L_TK + 17 * TBLK
L_TQ = L_TV + 16 * TBLK
L_CONV_END = L_TQ + 16 * TBLK

def dma(voff, srdreg, soff, m0, flag=None):
    A(f"s_mov_b32 m0, {m0}")
    A("s_nop 0")
    A(f"buffer_load_dwordx4 v{voff}, s[{srdreg}:{srdreg+3}], {soff} offen {NT if flag is None else flag} lds")

def conv_tile():
    T = S_T
    A(f"s_mul_hi_u32 s77, s{S_WG}, {(2**32 + 8)//9}")
    A(f"s_mul_i32 s76, s77, 9")
    A(f"s_sub_u32 s76, s{S_WG}, s76")
    srd(SRD_K, S_K, 2359296)
    srd(SRD_V, S_V, 2359296)
    A("v_lshrrev_b32 v1, 3, v0")
    A("v_and_b32 v2, 7, v0")
    A(f"s_mul_i32 s{T+2}, s77, {128*1152}")
    A(f"s_lshl_b32 s{T+3}, s76, 7")
    A(f"s_add_u32 s{T+2}, s{T+2}, s{T+3}")
    A(f"v_mul_u32_u24 v3, 1152, v1")
    A(f"v_lshl_add_u32 v3, v2, 4, v3")
    A(f"v_add_u32 v3, s{T+2}, v3")
    A(f"s_mul_i32 s{T+4}, s{S_WAVE}, {2*9216}")
    A(f"s_add_u32 s{T+5}, s{T+4}, 9216")
    A(f"s_mul_i32 s{T+6}, s{S_WAVE}, {2*TBLK}")
    A(f"s_add_u32 s{T+7}, s{T+6}, {L_TK + TBLK}")
    A(f"s_add_u32 s{T+8}, s{T+6}, {L_TK + 2*TBLK}")
    dma(3, SRD_K, f"s{T+4}", f"s{T+7}")
    dma(3, SRD_K, f"s{T+5}", f"s{T+8}")
    A(f"s_add_u32 s{T+7}, s{T+6}, {L_TV}")
    A(f"s_add_u32 s{T+8}, s{T+6}, {L_TV + TBLK}")
    dma(3, SRD_V, f"s{T+4}", f"s{T+7}")
    dma(3, SRD_V, f"s{T+5}", f"s{T+8}")
    Lh = A.newlabel("L_nohalo")
    A(f"s_cmp_lg_u32 s{S_WAVE}, 0")
    A(f"s_cbranch_scc1 {Lh}")
    A(f"v_subrev_u32 v4, 9216, v3")
    A(f"s_cmp_lg_u32 s77, 0")
    A(f"s_cbranch_scc1 {Lh}_a")
    A("v_bfrev_b32 v4, 1")
    A.label(Lh + "_a")
    dma(4, SRD_K, "0", L_TK)
    A.label(Lh)
    A(f"s_lshr_b32 s{T+9}, s{S_WAVE}, 1")
    A(f"s_and_b32 s{T+10}, s{S_WAVE}, 1")
    A(f"s_lshl_b32 s{T+11}, s76, 9")
    A(f"s_lshl_b32 s{T+12}, s{T+9}, 7")
    A(f"s_add_u32 s{T+11}, s{T+11}, s{T+12}")
    A("v_lshlrev_b32 v5, 4, v1")
    A(f"v_add_u32 v5, s{T+11}, v5")
    TR = 48
    A(f"global_load_dwordx4 {p4(TR)}, v5, {sp(S_SK)}")
    A(f"s_and_b32 s{T+13}, s{S_WG}, 7")
    A(f"s_mul_i32 s{T+13}, s{T+13}, 18")
    A(f"s_lshr_b32 s{T+12}, s{S_WG}, 3")
    A(f"s_add_u32 s{T+13}, s{T+13}, s{T+12}")
    A(f"s_lshl_b32 s71, s{T+13}, 2")
    A(f"s_and_b32 s{T+12}, s{S_WAVE}, 3")
    A(f"s_add_u32 s78, s71, s{T+12}")
    A(f"s_lshl_b32 s79, s78, 12")
    A(f"s_sub_u32 s72, s{S_WAVE}, 4")
    A(f"s_lshl_b32 s{T+12}, s{T+10}, 3")
    A(f"v_add_u32 v6, s{T+12}, v2")
    A(f"s_lshl_b32 s{T+12}, s{T+9}, 3")
    A(f"v_add_u32 v7, s{T+12}, v1")
    A(f"v_mul_u32_u24 v9, {TBLK}, v6")
    A(f"v_lshl_add_u32 v9, v7, 2, v9")
    A(f"v_add_u32 v9, {L_TK}, v9")
    A(f"s_lshl_b32 s{T+11}, s76, 18")
    A(f"s_lshl_b32 s{T+12}, s77, 8")
    A(f"s_add_u32 s{T+11}, s{T+11}, s{T+12}")
    A("v_lshlrev_b32 v8, 13, v7")
    A("v_lshl_add_u32 v8, v6, 4, v8")
    A(f"v_add_u32 v8, s{T+11}, v8")
    Lz = A.newlabel("L_noz")
    A(f"s_cmp_lg_u32 s{S_WAVE}, 7")
    A(f"s_cbranch_scc1 {Lz}")
    for i in range(4): A(f"v_mov_b32 v{52+i}, 0")
    A("v_lshlrev_b32 v56, 5, v0")
    A(f"v_add_u32 v56, {L_SELT}, v56")
    A(f"ds_write_b128 v56, {p4(52)}")
    A(f"ds_write_b128 v56, {p4(52)} offset:16")
    A("v_lshlrev_b32 v56, 4, v0")
    A(f"v_add_u32 v56, {L_MC}, v56")
    A("s_mov_b64 exec, 0xf")
    A(f"ds_write_b128 v56, {p4(52)}")
    A("s_mov_b64 exec, -1")
    A.label(Lz)
    A("s_waitcnt vmcnt(0) lgkmcnt(0)")
    A("s_barrier")
    stamp(2)
    srd(SRD_Q, S_Q, 2359296)
    A(f"s_add_u32 s{T+7}, s{T+6}, {L_TQ}")
    A(f"s_add_u32 s{T+8}, s{T+6}, {L_TQ + TBLK}")
    KR, VR = 10, 21
    for j in range(11):
        off = (640 + 128*j if j < 3 else TBLK + 128*(j-3))
        A(f"ds_read_b32 v{KR+j}, v9 offset:{off}")
    for j in range(8):
        A(f"ds_read_b32 v{VR+j}, v9 offset:{L_TV - L_TK + 128*j}")
    dma(3, SRD_Q, f"s{T+4}", f"s{T+7}")
    dma(3, SRD_Q, f"s{T+5}", f"s{T+8}")
    Lh = A.newlabel("L_noh")
    A(f"s_cmp_ge_u32 s{S_WAVE}, 4")
    A(f"s_cbranch_scc1 {Lh}")
    srd(SRD_V, S_H, 2359296)
    A("v_lshlrev_b32 v4, 4, v0")
    A(f"s_mul_i32 s74, s{S_WAVE}, {P_CH}")
    for q in range(4):
        A(f"s_add_u32 s{T+7}, s79, {1024*q}")
        A(f"s_add_u32 s{T+8}, s74, {32 + 1024*q}")
        dma(4, SRD_V, f"s{T+7}", f"s{T+8}")
    A.label(Lh)
    TP = 52
    A(f"v_lshlrev_b32 v{TP+0}, 16, v{TR}"); A(f"v_lshlrev_b32 v{TP+1}, 16, v{TR+2}")
    A(f"v_and_b32 v{TP+2}, s{S_MASK}, v{TR}"); A(f"v_and_b32 v{TP+3}, s{S_MASK}, v{TR+2}")
    A(f"v_lshlrev_b32 v{TP+4}, 16, v{TR+1}"); A(f"v_lshlrev_b32 v{TP+5}, 16, v{TR+3}")
    A(f"v_and_b32 v{TP+6}, s{S_MASK}, v{TR+1}"); A(f"v_and_b32 v{TP+7}, s{S_MASK}, v{TR+3}")
    KP = 80
    A("s_waitcnt lgkmcnt(8)")
    for j in range(11):
        A(f"v_lshlrev_b32 v{KP+2*j}, 16, v{KR+j}")
        A(f"v_and_b32 v{KP+2*j+1}, s{S_MASK}, v{KR+j}")
    A("s_waitcnt lgkmcnt(0)")
    R = 102
    for i0 in range(0, 8, 2):
        toks = (i0, i0+1)
        a = {toks[0]: 60, toks[1]: 64}; b = {toks[0]: 62, toks[1]: 66}
        tp = lambda tap: p2(TP+2*tap)
        def both(fn):
            for i in toks: fn(i)
        both(lambda i: A(f"v_pk_mul_f32 {p2(a[i])}, {p2(KP+2*i)}, {tp(3)}"))
        both(lambda i: A(f"v_pk_mul_f32 {p2(b[i])}, {p2(KP+2*(i+1))}, {tp(2)}"))
        both(lambda i: (rnd(a[i]), rnd(a[i]+1)))
        both(lambda i: (rnd(b[i]), rnd(b[i]+1)))
        both(lambda i: A(f"v_pk_add_f32 {p2(a[i])}, {p2(a[i])}, {p2(b[i])}"))
        both(lambda i: A(f"v_pk_mul_f32 {p2(b[i])}, {p2(KP+2*(i+2))}, {tp(1)}"))
        both(lambda i: (rnd(a[i]), rnd(a[i]+1)))
        both(lambda i: (rnd(b[i]), rnd(b[i]+1)))
        both(lambda i: A(f"v_pk_add_f32 {p2(a[i])}, {p2(a[i])}, {p2(b[i])}"))
        both(lambda i: A(f"v_pk_mul_f32 {p2(b[i])}, {p2(KP+2*(i+3))}, {tp(0)}"))
        both(lambda i: (rnd(a[i]), rnd(a[i]+1)))
        both(lambda i: (rnd(b[i]), rnd(b[i]+1)))
        both(lambda i: A(f"v_pk_add_f32 {p2(a[i])}, {p2(a[i])}, {p2(b[i])}"))
        both(lambda i: (A(f"v_lshlrev_b32 v{b[i]}, 16, v{VR+i}"), A(f"v_and_b32 v{b[i]+1}, s{S_MASK}, v{VR+i}")))
        both(lambda i: (rnd(a[i]), rnd(a[i]+1)))
        both(lambda i: A(f"v_pk_mul_f32 {p2(R+2*i)}, {p2(a[i])}, {p2(b[i])}"))
    O = 120
    for q in range(4):
        A(f"v_cvt_pk_bf16_f32 v{O+q}, v{R+4*q}, v{R+4*q+2}")
        A(f"v_cvt_pk_bf16_f32 v{O+4+q}, v{R+4*q+1}, v{R+4*q+3}")
    add64(T+2, S_WS, WS_KVT)
    add64(T+4, S_WS, WS_KVT+4096)
    A(f"global_store_dwordx4 v8, {p4(O)}, {sp(T+2)} sc1")
    A(f"global_store_dwordx4 v8, {p4(O+4)}, {sp(T+4)} sc1")
    stamp(3)
    get_nonce(100)
    A("s_barrier")
    stamp(4)
    L = A.newlabel("L_nf")
    A(f"s_cmp_lg_u32 s{S_WAVE}, 0")
    A(f"s_cbranch_scc1 {L}")
    A(f"s_lshl_b32 s{T+1}, s76, 7")
    A(f"s_lshl_b32 s{T+2}, s77, 2")
    A(f"s_add_u32 s{T+1}, s{T+1}, s{T+2}")
    A(f"s_add_u32 s{T+1}, s{T+1}, {WS_FL}")
    A(f"v_mov_b32 v100, s{T+1}")
    A(f"v_mov_b32 v101, s{S_NONCE}")
    A("s_mov_b64 exec, 1")
    A(f"global_store_dword v100, v101, {sp(S_WS)} sc1")
    A("s_mov_b64 exec, -1")
    A.label(L)

def x_tile():
    T = S_T
    A("; x tile")
    A("v_and_b32 v2, 7, v0"); A("v_lshrrev_b32 v1, 3, v0")
    A(f"s_lshl_b32 s{T+12}, s72, 3")
    A(f"v_add_u32 v7, s{T+12}, v1")
    A(f"v_mul_u32_u24 v9, {TBLK}, v2")
    A(f"v_lshl_add_u32 v9, v7, 2, v9")
    A(f"v_add_u32 v9, {L_TQ}, v9")
    A(f"s_lshl_b32 s{T+11}, s76, 18")
    A(f"s_lshl_b32 s{T+12}, s77, 8")
    A(f"s_add_u32 s{T+11}, s{T+11}, s{T+12}")
    A("v_lshlrev_b32 v8, 13, v7")
    A("v_lshl_add_u32 v8, v2, 4, v8")
    A(f"v_add_u32 v8, s{T+11}, v8")
    for gh in range(2):
        for j in range(8):
            A(f"ds_read_b32 v{64+8*gh+j}, v9 offset:{8*TBLK*gh + 128*j}")
    add64(T+2, S_WS, WS_XT)
    add64(T+4, S_WS, WS_XT+4096)
    for gh in range(2):
        A(f"s_waitcnt lgkmcnt({8*(1-gh)})")
        X = 80 + 8*gh
        for q in range(4):
            A(f"v_perm_b32 v{X+q}, v{64+8*gh+2*q+1}, v{64+8*gh+2*q}, s{S_SELLO}")
            A(f"v_perm_b32 v{X+4+q}, v{64+8*gh+2*q+1}, v{64+8*gh+2*q}, s{S_SELHI}")
        A(f"global_store_dwordx4 v8, {p4(X)}, {sp(T+2)} offset:{128*gh} sc1")
        A(f"global_store_dwordx4 v8, {p4(X+4)}, {sp(T+4)} offset:{128*gh} sc1")

def x_flag():
    T = S_T
    A("s_waitcnt vmcnt(0)")
    A(f"s_lshl_b32 s{T+1}, s76, 2")
    A(f"s_add_u32 s{T+1}, s{T+1}, s72")
    A(f"s_lshl_b32 s{T+1}, s{T+1}, 6")
    A(f"s_lshl_b32 s{T+2}, s77, 2")
    A(f"s_add_u32 s{T+1}, s{T+1}, s{T+2}")
    A(f"s_add_u32 s{T+1}, s{T+1}, {WS_FL2}")
    A(f"v_mov_b32 v100, s{T+1}")
    A(f"v_mov_b32 v101, s{S_NONCE}")
    A("s_mov_b64 exec, 1")
    A(f"global_store_dword v100, v101, {sp(S_WS)} sc1")
    A("s_mov_b64 exec, -1")

def poll_flags(vt, second):
    T = S_T
    if not second:
        A(f"s_lshr_b32 s{T+1}, s71, 6")
        A(f"s_lshl_b32 s{T+1}, s{T+1}, 7")
        A(f"s_add_u32 s{T+1}, s{T+1}, {WS_FL}")
    else:
        A(f"s_lshr_b32 s{T+1}, s71, 4")
        A(f"s_lshl_b32 s{T+1}, s{T+1}, 6")
        A(f"s_add_u32 s{T+1}, s{T+1}, {WS_FL2}")
    A(f"v_and_b32 v{vt}, 15, v0")
    A(f"v_lshlrev_b32 v{vt}, 2, v{vt}")
    A(f"v_add_u32 v{vt}, s{T+1}, v{vt}")
    tagcheck_loop(lambda: A(f"global_load_dword v{vt+1}, v{vt}, {sp(S_WS)} sc1"), [vt+1], vt+2, vt+3, sleep=1)

class LdsQ:
    def __init__(self): self.q = []
    def issue(self, instr, tag=None):
        A(instr); self.q.append(tag)
    def wait(self, tag):
        idxs = [i for i, t in enumerate(self.q) if t == tag]
        if not idxs: return
        last = idxs[-1]
        n = len(self.q) - 1 - last
        A(f"s_waitcnt lgkmcnt({min(n, 15)})")
        if n <= 15: self.q = self.q[last+1:]
        else: self.q = self.q[len(self.q)-15:]

def conv_mfma_wave():
    T = S_T
    A(f"s_mul_i32 s75, s{S_WAVE}, {Q_CH}")
    A(f"s_add_u32 s75, s75, {L_Q}")
    for i in range(4): A(f"v_mov_b32 v{16+i}, 0")
    A("v_lshlrev_b32 v2, 4, v0")
    A("v_add_u32 v2, s74, v2")
    A("s_mov_b64 exec, 3")
    A(f"ds_write_b128 v2, {p4(16)}")
    A("s_mov_b64 exec, -1")
    A("v_lshrrev_b32 v2, 3, v0")
    A(f"v_mul_u32_u24 v2, {Q_CPY}, v2")
    A("v_and_b32 v3, 7, v0")
    A("v_lshl_add_u32 v2, v3, 4, v2")
    A("v_add_u32 v2, s75, v2")
    A("s_mov_b64 exec, 0xffffffff")
    A(f"ds_write_b128 v2, {p4(16)}")
    A("s_mov_b64 exec, -1")
    A("v_and_b32 v3, 3, v0")
    A("v_bfe_u32 v4, v0, 2, 2")
    A("v_sub_u32 v3, v3, v4")
    A("v_lshlrev_b32 v3, 3, v3")
    A("v_lshrrev_b32 v4, 4, v0")
    A("v_lshl_add_u32 v3, v4, 6, v3")
    A("v_add_u32 v3, s74, v3")
    A("v_add_u32 v3, 32, v3")
    A("s_waitcnt lgkmcnt(0)")
    G = 64
    def greg(e, s1): return G + 4*(8*e + s1)
    for s1 in range(8):
        for e in range(2):
            g = greg(e, s1)
            A(f"ds_read_b64_tr_b16 {p2(g)}, v3 offset:{512*s1+256*e+32}")
            A(f"ds_read_b64_tr_b16 {p2(g+2)}, v3 offset:{512*s1+256*e}")
        if s1 % 3 == 2: A("s_waitcnt lgkmcnt(4)")
    A("v_and_b32 v5, 15, v0")
    A("v_lshlrev_b32 v6, 3, v5")
    A("v_lshlrev_b32 v7, 4, v4")
    A("v_sub_u32 v6, v6, v7")
    A("v_add_u32 v6, s75, v6")
    A("v_add_u32 v6, 56, v6")
    A("v_lshlrev_b32 v7, 6, v5")
    A("v_lshl_add_u32 v7, v4, 4, v7")
    A(f"s_lshl_b32 s{T+1}, s{S_WAVE}, 13")
    A(f"s_add_u32 s{T+1}, s{T+1}, {L_YB}")
    A(f"v_add_u32 v7, s{T+1}, v7")
    A("v_subrev_u32 v8, 16, v0")
    A("v_add_u32 v9, 47, v0")
    A("v_cmp_gt_u32 vcc, 16, v0")
    A("s_nop 1")
    A("v_cndmask_b32 v8, v8, v9, vcc")
    A("v_mov_b32 v9, 63")
    A("v_cmp_eq_u32 vcc, 0, v0")
    A("s_nop 1")
    A("v_cndmask_b32 v8, v8, v9, vcc")
    A("v_lshlrev_b32 v8, 2, v8")
    A(f"v_mov_b32 v9, {L_MC}")
    A("v_mov_b32 v10, 1")
    A(f"s_mov_b64 {sp(66)}, 1")
    for i in range(3): A(f"v_mov_b32 v{40+i}, 0")
    add64(T+2, S_WS, WS_KVT)
    A("v_lshlrev_b32 v1, 6, v0")
    A("v_add_u32 v1, s79, v1")
    A("v_lshlrev_b32 v2, 4, v0")
    A("v_add_u32 v2, s75, v2")
    stamp(5)
    A(f"s_mov_b64 {sp(64)}, {sp(T+2)}")
    poll_flags(12, False)
    stamp(6)
    KV = 16
    for i in range(4):
        A(f"global_load_dwordx4 {p4(KV+4*i)}, v1, {sp(64)} offset:{16*i} sc1")
    A("s_waitcnt vmcnt(0)")
    QO = 48
    for s in range(4):
        sel = S_SELLO if (s & 1) == 0 else S_SELHI
        for q in range(4):
            A(f"v_perm_b32 v{QO+4*s+q}, v{KV+4*q+2+s//2}, v{KV+4*q+s//2}, s{sel}")
        A(f"ds_write_b128 v2, {p4(QO+4*s)} offset:{s*Q_CPY+128}")
    A("s_mov_b64 exec, 1")
    A("ds_add_u32 v9, v10 offset:32")
    A("s_mov_b64 exec, -1")
    A("s_waitcnt lgkmcnt(0)")
    stamp(7)
    lq = LdsQ()
    FB = 48
    classes = [(c1, sg, e) for c1 in range(8) for sg in range(4) for e in range(2)]
    def fread(k):
        c1, sg, e = classes[k]
        b = FB + 4*(k % 4)
        off = sg*Q_CPY + 128*c1 + 64*(1-e)
        lq.issue(f"ds_read_b64 {p2(b)}, v6 offset:{off}", ("F", k))
        lq.issue(f"ds_read_b64 {p2(b+2)}, v6 offset:{off+8}", ("F", k))
    def acc(sg, t): return (sg*8 + t)*4
    def combine_ops(t):
        a = 16
        ops = []
        for sg in range(4):
            for r in range(4):
                ops.append(lambda sg=sg, r=r: A(f"v_accvgpr_read_b32 v{a+4*sg+r}, a{acc(sg,t)+r}"))
        a0, a1, a2, a3 = a, a+4, a+8, a+12
        C = 32 + 0
        ops.append(lambda: A(f"v_add_f32 v{C}, v{a1+3}, v{a2+2}"))
        ops.append(lambda: A(f"v_add_f32 v{C+1}, v{a2+3}, v{a3+2}"))
        ops.append(lambda: A(f"v_add_f32 v{C}, v{C}, v{a3+1}"))
        P = 36 + 4*(t & 1)
        Pp = 36 + 4*((t+1) & 1)
        ops.append(lambda: lq.issue(f"ds_bpermute_b32 v{P}, v8, v{C}", ("B", t)))
        ops.append(lambda: lq.issue(f"ds_bpermute_b32 v{P+1}, v8, v{C+1}", ("B", t)))
        ops.append(lambda: lq.issue(f"ds_bpermute_b32 v{P+2}, v8, v{a3+3}", ("B", t)))
        ops.append(lambda: A(f"v_add_f32 v{a0+1}, v{a0+1}, v{a1}"))
        ops.append(lambda: A(f"v_add_f32 v{a0+2}, v{a0+2}, v{a1+1}"))
        ops.append(lambda: A(f"v_add_f32 v{a0+3}, v{a0+3}, v{a1+2}"))
        ops.append(lambda: A(f"v_add_f32 v{a0+2}, v{a0+2}, v{a2}"))
        ops.append(lambda: A(f"v_add_f32 v{a0+3}, v{a0+3}, v{a2+1}"))
        ops.append(lambda: A(f"v_add_f32 v{a0+3}, v{a0+3}, v{a3}"))
        ops.append(lambda: lq.wait(("B", t)))
        for i in range(3):
            ops.append(lambda i=i: A(f"v_cndmask_b32 v{44+i}, v{P+i}, v{Pp+i}, {sp(66)}"))
        for i in range(3):
            ops.append(lambda i=i: A(f"v_add_f32 v{a0+i}, v{a0+i}, v{44+i}"))
        ops.append(lambda: lq.issue(f"ds_write_b128 v7, {p4(a0)} offset:{1024*t}", ("W", t)))
        def sig():
            A("s_mov_b64 exec, 1")
            lq.issue(f"ds_add_u32 v9, v10 offset:{4*t}", ("S", t))
            A("s_mov_b64 exec, -1")
        ops.append(sig)
        return ops
    fread(0); fread(1)
    pending = []
    k = 0
    for c1 in range(8):
        nm_step = 8*(8-c1)
        if c1 > 0:
            pending = combine_ops(c1-1)
        per = 0
        if pending:
            avail = max(1, nm_step - 3)
            per = -(-len(pending) // avail)
        mi = 0
        for sg in range(4):
            for e in range(2):
                if k + 2 < len(classes): fread(k+2)
                lq.wait(("F", k))
                b = FB + 4*(k % 4)
                for s1 in range(8-c1):
                    t = s1 + c1
                    d = acc(sg, t)
                    cin = "0" if (c1 == 0 and e == 0) else f"a[{d}:{d+3}]"
                    A(f"v_mfma_f32_16x16x32_bf16 a[{d}:{d+3}], {p4(greg(e, s1))}, {p4(b)}, {cin}")
                    mi += 1
                    if pending and mi >= 3:
                        for _ in range(per):
                            if pending: pending.pop(0)()
                k += 1
        while pending: pending.pop(0)()
    A("s_nop 7"); A("s_nop 1")
    for op in combine_ops(7): op()
    stamp(8)

def PRE(t, a): return 16 + 12*t + 4*a
def conv_helper_wave():
    T = S_T
    x_tile()
    x_flag()
    stamp(5)
    A(f"s_lshl_b32 s{T+1}, s72, 6")
    A(f"v_add_u32 v1, s{T+1}, v0")
    A(f"s_lshl_b32 s{T+1}, s71, 1")
    A(f"v_mov_b32 v2, s{T+1}")
    A(f"global_load_dwordx2 v[12:13], v2, {sp(S_D)}")
    Ls = A.newlabel("L_nosel")
    A(f"s_cmp_lg_u32 s{S_WAVE}, 4")
    A(f"s_cbranch_scc1 {Ls}")
    A("v_and_b32 v3, 7, v0")
    A("v_lshlrev_b32 v4, 3, v3")
    add64(T+2, S_WS, WS_SEL)
    tagcheck_loop(lambda: A(f"global_load_dwordx2 v[112:113], v4, {sp(T+2)} sc1"), [113], 114, 115, sleep=4)
    A("v_and_b32 v112, 0x7ff, v112")
    A(f"v_add_u32 v112, {L_SELT}, v112")
    A("v_or_b32 v113, 0x80, v3")
    A("s_mov_b64 exec, 0xff")
    A("ds_write_b8 v112, v113")
    A("s_mov_b64 exec, -1")
    A(f"v_mov_b32 v112, {L_MC}")
    A("v_mov_b32 v113, 1")
    A("s_mov_b64 exec, 1")
    A("ds_add_u32 v112, v113 offset:36")
    A("s_mov_b64 exec, -1")
    A.label(Ls)
    poll_flags(112, True)
    stamp(6)
    A("v_lshlrev_b32 v3, 3, v1")
    A(f"s_lshl_b32 s{T+1}, s71, 12")
    A("v_lshlrev_b32 v4, 1, v1")
    A(f"v_add_u32 v4, s{T+1}, v4")
    for ch in range(1, 4): A(f"v_add_u32 v{4+ch}, {4096*ch}, v4")
    A("s_waitcnt vmcnt(0)")
    A(f"v_lshlrev_b32 v8, 16, v12"); A(f"v_and_b32 v9, s{S_MASK}, v12")
    A(f"v_lshlrev_b32 v10, 16, v13"); A(f"v_and_b32 v11, s{S_MASK}, v13")
    A("v_and_b32 v12, 3, v1")
    A(f"v_mul_u32_u24 v12, {Q_CPY}, v12")
    A("v_lshrrev_b32 v13, 2, v1")
    A("v_lshl_add_u32 v12, v13, 1, v12")
    A(f"v_add_u32 v12, {L_Q + 128}, v12")
    ST, XR = 112, 120
    for half in range(2):
        add64(T+2, S_WS, WS_SG)
        add64(T+4, S_WS, WS_XT)
        def ld():
            for tt in range(4):
                t = 4*half + tt
                a = "v3" if t < 2 else "v14"
                if t >= 2 and (t % 2 == 0): A(f"v_add_u32 v14, {4096*(t//2)}, v3")
                A(f"global_load_dwordx2 {p2(ST+2*tt)}, {a}, {sp(T+2)} offset:{2048*(t & 1)} sc1")
            for tt in range(4):
                t = 4*half + tt
                for ch in range(4):
                    A(f"global_load_short_d16_hi v{PRE(t,0)+ch}, v{4+ch}, {sp(T+4)} offset:{512*t} sc1")
        tagcheck_loop(ld, [ST+2*tt+1 for tt in range(4)], 15, 13, sleep=2)
        if half == 0:
            L = A.newlabel("L_qr")
            A(f"v_mov_b32 v15, {L_MC}")
            A(f"s_mov_b32 s{T+1}, 0")
            A.label(L)
            A("ds_read_b32 v2, v15 offset:32")
            A("s_waitcnt lgkmcnt(0)")
            A(f"v_readfirstlane_b32 s{T}, v2")
            A(f"s_add_u32 s{T+1}, s{T+1}, 1")
            A(f"s_cmp_ge_u32 s{T+1}, {SPIN_MAX*4}")
            A(f"s_cbranch_scc1 {L}_d")
            A(f"s_cmp_lt_u32 s{T}, 4")
            A(f"s_cbranch_scc1 {L}")
            A.label(L + "_d")
            stamp(7)
        for tt in range(4):
            t = 4*half + tt
            X, XN, TK = PRE(t, 0), PRE(t, 1), PRE(t, 2)
            for ch in range(4):
                A(f"ds_read_u16_d16_hi v{TK+ch}, v12 offset:{ch*Q_CH + 128*t}")
            A(f"v_lshlrev_b32 v2, 16, v{ST+2*tt}")
            A(f"v_and_b32 v15, s{S_MASK}, v{ST+2*tt}")
            A("v_rcp_f32 v15, v15")
            for ch in range(4): A(f"v_sub_f32 v{XN+ch}, v{X+ch}, v2")
            for ch in range(4): rnd(XN+ch)
            for ch in range(4): A(f"v_mul_f32 v{XN+ch}, v{XN+ch}, v15")
            for ch in range(4): rnd(XN+ch)
            A("s_waitcnt lgkmcnt(0)")
            for ch in range(4): A(f"v_mul_f32 v{TK+ch}, v{TK+ch}, v{8+ch}")
            for ch in range(4): rnd(TK+ch)
    A("v_lshlrev_b32 v2, 2, v1")
    A(f"v_add_u32 v2, {L_YB}, v2")
    A(f"v_add_u32 v3, {L_SELT}, v1")
    A(f"v_mul_u32_u24 v4, 1152, v1")
    A(f"s_lshl_b32 s{T+1}, s71, 1")
    A(f"v_add_u32 v4, s{T+1}, v4")
    A(f"v_mov_b32 v5, {L_MC}")
    srd(SRD_O, S_OUT, 2359296)
    add64(T+4, S_WS, WS_T1G)
    A(f"s_mov_b64 {sp(64)}, {sp(T+4)}")
    Y = 112
    L = A.newlabel("L_sr")
    A(f"s_mov_b32 s{T+1}, 0")
    A.label(L)
    A("ds_read_b32 v6, v5 offset:36")
    A("s_waitcnt lgkmcnt(0)")
    A(f"v_readfirstlane_b32 s{T}, v6")
    A(f"s_add_u32 s{T+1}, s{T+1}, 1")
    A(f"s_cmp_ge_u32 s{T+1}, {SPIN_MAX*4}")
    A(f"s_cbranch_scc1 {L}_d")
    A(f"s_cmp_lt_u32 s{T}, 1")
    A(f"s_cbranch_scc1 {L}")
    A.label(L + "_d")
    for t in range(8):
        L = A.newlabel("L_ty")
        A(f"s_mov_b32 s{T+1}, 0")
        A.label(L)
        A(f"ds_read_b32 v6, v5 offset:{4*t}")
        A("s_waitcnt lgkmcnt(0)")
        A(f"v_readfirstlane_b32 s{T}, v6")
        A(f"s_add_u32 s{T+1}, s{T+1}, 1")
        A(f"s_cmp_ge_u32 s{T+1}, {SPIN_MAX*4}")
        A(f"s_cbranch_scc1 {L}_d")
        A(f"s_cmp_lt_u32 s{T}, 4")
        A(f"s_cbranch_scc1 {L}")
        A.label(L + "_d")
        for ch in range(4):
            A(f"ds_read_b32 v{Y+ch}, v2 offset:{ch*8192 + 1024*t}")
        A(f"ds_read_u8 v7, v3 offset:{256*t}")
        X, XN, TK = PRE(t, 0), PRE(t, 1), PRE(t, 2)
        A("s_waitcnt lgkmcnt(1)")
        for ch in range(4): rnd(Y+ch)
        for ch in range(4): A(f"v_add_f32 v{Y+ch}, v{Y+ch}, v{TK+ch}")
        for ch in range(4): rnd(Y+ch)
        for ch in range(4): A(f"v_mul_f32 v{Y+ch}, v{XN+ch}, v{Y+ch}")
        for ch in range(4): rnd(Y+ch)
        for ch in range(4): A(f"v_add_f32 v{Y+ch}, v{X+ch}, v{Y+ch}")
        for ch in range(4): rnd(Y+ch)
        for ch in range(4): A(f"v_add_f32 v{Y+4+ch}, v{Y+ch}, v{XN+ch}")
        A(f"v_cvt_pk_bf16_f32 v{Y+8}, v{Y+4}, v{Y+5}")
        A(f"v_cvt_pk_bf16_f32 v{Y+9}, v{Y+6}, v{Y+7}")
        A("s_waitcnt lgkmcnt(0)")
        A("v_lshlrev_b32 v8, 24, v7") if False else None
        A(f"v_lshlrev_b32 v{Y+10}, 24, v7")
        A(f"v_and_b32 v{Y+10}, 0x80000000, v{Y+10}")
        A(f"v_add_u32 v{Y+11}, {256*1152*t}, v4") if t else A(f"v_mov_b32 v{Y+11}, v4")
        A(f"v_or_b32 v{Y+10}, v{Y+10}, v{Y+11}")
        A(f"buffer_store_dwordx2 {p2(Y+8)}, v{Y+10}, s[{SRD_O}:{SRD_O+3}], 0 offen")
        Lx = A.newlabel("L_nt1")
        A("v_cmp_lt_u32 vcc, 0x7f, v7")
        A("s_nop 3")
        A("s_cmp_eq_u64 vcc, 0")
        A(f"s_cbranch_scc1 {Lx}")
        A(f"s_mov_b64 exec, vcc")
        A("v_and_b32 v7, 7, v7")
        A("v_mul_u32_u24 v7, 576, v7")
        A("v_add_u32 v7, s71, v7")
        A("v_lshlrev_b32 v7, 3, v7")
        for ch in range(4):
            A(f"v_mov_b32 v{Y+12}, v{Y+ch}")
            A(f"v_mov_b32 v{Y+13}, s{S_NONCE}")
            A(f"global_store_dwordx2 v7, {p2(Y+12)}, {sp(64)} offset:{8*ch} sc1")
            A("s_nop 1")
        A("s_mov_b64 exec, -1")
        A.label(Lx)
    stamp(8)

def conv_wg():
    conv_tile()
    A(f"s_cmp_ge_u32 s{S_WAVE}, 4")
    A("s_cbranch_scc1 L_helper")
    conv_mfma_wave()
    A("s_branch L_fin")
    A.label("L_helper")
    conv_helper_wave()
    A("s_branch L_fin")

M_WG = 0
M_WU = 73728
M_XS = 147456
XS_RS = 1168
M_H = M_XS + 8*XS_RS
H_RS = 144
M_GU = M_H + 8*H_RS
M_RED = M_GU
M_MISC = M_GU + 4096
M_END = M_MISC + 160
M_LIST = 0
S_DUMP = 16384

def moe_dma():
    T = S_T
    srd(SRD_K, S_WGT, 5308416)
    srd(SRD_V, S_WUP, 5308416)
    A("v_lshrrev_b32 v1, 3, v0")
    A("v_and_b32 v2, 7, v0")
    A("v_bfe_u32 v3, v0, 4, 1")
    A(f"s_and_b32 s{T+1}, s{S_WAVE}, 1")
    A(f"s_lshl_b32 s{T+1}, s{T+1}, 1")
    A(f"v_add_u32 v3, s{T+1}, v3")
    A("v_lshlrev_b32 v3, 1, v3")
    A("v_xor_b32 v2, v2, v3")
    A("v_mul_u32_u24 v1, 9216, v1")
    A("v_lshl_add_u32 v1, v2, 4, v1")
    A(f"s_lshl_b32 s{T+1}, s70, 7")
    A(f"v_add_u32 v1, s{T+1}, v1")
    A(f"s_mul_i32 s{T+3}, s{S_WAVE}, 73728")
    A(f"s_lshl_b32 s{T+4}, s{S_WAVE}, 10")
    A(f"s_mov_b32 s{T+5}, 0")
    L = A.newlabel("L_dma")
    A.label(L)
    A(f"s_add_u32 m0, s{T+4}, {M_WG}")
    A("s_nop 0")
    A(f"buffer_load_dwordx4 v1, s[{SRD_K}:{SRD_K+3}], s{T+3} offen {NT} lds")
    A(f"s_add_u32 m0, s{T+4}, {M_WU}")
    A(f"s_add_u32 s{T+5}, s{T+5}, 1")
    A(f"buffer_load_dwordx4 v1, s[{SRD_V}:{SRD_V+3}], s{T+3} offen {NT} lds")
    A(f"s_add_u32 s{T+3}, s{T+3}, {8*73728}")
    A(f"s_add_u32 s{T+4}, s{T+4}, {8*1024}")
    A(f"s_cmp_lt_u32 s{T+5}, 9")
    A(f"s_cbranch_scc1 {L}")

DWR = 64
def moe_xs_addr():
    T = S_T
    A(f"s_lshl_b32 s{T+1}, s{S_WAVE}, 6")
    A(f"v_add_u32 v1, s{T+1}, v0")
    A("v_and_b32 v2, 255, v1")
    A("v_mul_u32_u24 v2, 48, v2")
    A(f"v_add_u32 v2, 0x100000, v2")
    A("v_and_b32 v3, 7, v0")
    A("v_lshlrev_b32 v3, 3, v3")
    A(f"v_add_u32 v3, {WS_SEL - WS_XSG + 0x100000}, v3")
    add64(64, S_WS, WS_XSG - 0x100000)
    A("v_mov_b32 v4, 0")
def moe_xs_loads():
    for g in range(3):
        A(f"global_load_dwordx4 {p4(16+4*g)}, v2, {sp(64)} offset:{16*g} sc1")
    A(f"global_load_dwordx2 v[28:29], v3, {sp(64)} sc1")
def moe_down_loads():
    T = S_T
    A(f"s_mul_i32 s{T+1}, s70, 73728")
    A("v_lshlrev_b32 v5, 4, v1")
    A(f"v_add_u32 v5, s{T+1}, v5")
    srd(SRD_Q, S_WD, 5308416)
    for i in range(9):
        A(f"s_mov_b32 s{T+2}, {8192*i}")
        A(f"buffer_load_dwordx4 {p4(DWR+4*i)}, v5, s[{SRD_Q}:{SRD_Q+3}], s{T+2} offen {NT}")
def moe_down_addr():
    for i in range(9):
        a = 100 + i
        A(f"v_add_u32 v5, {512*i}, v1")
        A(f"v_mul_u32_u24 v6, 3641, v5")
        A(f"v_lshrrev_b32 v6, 18, v6")
        A(f"v_mul_u32_u24 v7, 72, v6")
        A(f"v_sub_u32 v7, v5, v7")
        A(f"v_bfe_u32 v8, v6, 1, 1")
        A(f"v_bfe_u32 v9, v6, 3, 1")
        A(f"v_lshl_add_u32 v8, v9, 1, v8")
        A(f"v_lshlrev_b32 v8, 1, v8")
        A(f"v_xor_b32 v7, v7, v8")
        A(f"v_mul_u32_u24 v6, 1152, v6")
        A(f"v_lshl_add_u32 v{a}, v7, 4, v6")

def moe_xs_finish():
    T = S_T
    L = A.newlabel("L_xs"); Ld = A.newlabel("L_xsd")
    A(f"s_mov_b32 s{T}, 0")
    A.label(L)
    A(f"v_readfirstlane_b32 s{S_NONCE}, v30")
    A("s_nop 3")
    tag_acc([19, 23, 27, 29], 10, 12)
    A(f"v_cmp_ne_u32 vcc, 0, v10")
    A(f"s_add_u32 s{T}, s{T}, 1")
    A("s_nop 3")
    A(f"s_cmp_eq_u32 s{S_NONCE}, 0")
    A(f"s_cbranch_scc1 {L}_r")
    A("s_cmp_eq_u64 vcc, 0")
    A(f"s_cbranch_scc1 {Ld}")
    A.label(L + "_r")
    A(f"s_cmp_ge_u32 s{T}, {SPIN_MAX}")
    A(f"s_cbranch_scc1 {Ld}")
    A("s_sleep 2")
    moe_xs_loads()
    A(f"global_load_dword v30, v4, {sp(S_DBG)} sc1")
    A("s_waitcnt vmcnt(0)")
    A(f"s_branch {L}")
    A.label(Ld)
    Lw = A.newlabel("L_xw")
    A(f"s_cmp_ge_u32 s{S_WAVE}, 4")
    A(f"s_cbranch_scc1 {Lw}")
    A("v_lshrrev_b32 v6, 5, v1")
    A("v_and_b32 v7, 31, v1")
    A(f"v_mul_u32_u24 v6, {XS_RS}, v6")
    A("v_mul_u32_u24 v7, 36, v7")
    A("v_add_u32 v6, v6, v7")
    A(f"v_add_u32 v6, {M_XS}, v6")
    A("ds_write2_b32 v6, v16, v17 offset0:0 offset1:1")
    A("ds_write2_b32 v6, v18, v20 offset0:2 offset1:3")
    A("ds_write2_b32 v6, v21, v22 offset0:4 offset1:5")
    A("ds_write2_b32 v6, v24, v25 offset0:6 offset1:7")
    A("ds_write_b32 v6, v26 offset:32")
    A(f"s_cmp_lg_u32 s{S_WAVE}, 0")
    A(f"s_cbranch_scc1 {Lw}")
    A(f"v_and_b32 v18, s{S_MASK}, v28")
    A(f"v_mul_f32 v18, 0x{f32bits(-1.4426950408889634):08x}, v18")
    A("v_exp_f32 v18, v18")
    A("s_nop 0")
    A("v_add_f32 v18, 1.0, v18")
    A("v_rcp_f32 v18, v18")
    A("s_nop 0")
    rnd(18)
    A("v_lshlrev_b32 v6, 2, v0")
    A(f"v_add_u32 v6, {M_MISC+32}, v6")
    A("s_mov_b64 exec, 0xff")
    A("ds_write_b32 v6, v28")
    A("ds_write_b32 v6, v18 offset:32")
    A("s_mov_b64 exec, -1")
    A.label(Lw)

def moe_gateup():
    T = S_T
    A(f"s_lshr_b32 s{T+1}, s{S_WAVE}, 2")
    A(f"s_and_b32 s{T+2}, s{S_WAVE}, 3")
    A("v_lshrrev_b32 v6, 4, v0")
    A("v_bfe_u32 v7, v0, 2, 2")
    A("v_and_b32 v8, 3, v0")
    A("v_lshrrev_b32 v9, 1, v7")
    A("v_and_b32 v10, 1, v6")
    A("v_lshl_add_u32 v9, v10, 1, v9")
    A("v_lshlrev_b32 v9, 1, v9")
    A("v_lshrrev_b32 v10, 1, v8")
    A(f"s_lshl_b32 s{T+3}, s{T+2}, 1")
    A(f"v_add_u32 v10, s{T+3}, v10")
    A("v_xor_b32 v10, v10, v9")
    A("v_lshlrev_b32 v2, 10, v6")
    A("v_lshl_add_u32 v2, v7, 7, v2")
    A("v_lshl_add_u32 v2, v10, 4, v2")
    A("v_and_b32 v8, 1, v8")
    A("v_lshl_add_u32 v2, v8, 3, v2")
    A(f"s_mul_i32 s{T+3}, s{T+1}, {M_WU}")
    A(f"v_add_u32 v2, s{T+3}, v2")
    A(f"v_add_u32 v5, {4096*9}, v2")
    A("v_and_b32 v3, 7, v0")
    A(f"v_mul_u32_u24 v3, {XS_RS}, v3")
    A("v_lshl_add_u32 v3, v6, 4, v3")
    A(f"v_add_u32 v3, {M_XS}, v3")
    def rd(t):
        b = 8*(t % 8)
        a, o = (2, 4096*t) if t < 9 else (5, 4096*(t-9))
        A(f"ds_read_b64_tr_b16 a[{b}:{b+1}], v{a} offset:{o}")
        A(f"ds_read_b64_tr_b16 a[{b+2}:{b+3}], v{a} offset:{o+512}")
        A(f"ds_read_b128 a[{b+4}:{b+7}], v3 offset:{64*t}")
    for t in range(5): rd(t)
    for t in range(18):
        rem = min(17, t+4) - t
        A(f"s_waitcnt lgkmcnt({3*rem})")
        b = 8*(t % 8)
        cin = "0" if t == 0 else "v[8:11]"
        A(f"v_mfma_f32_16x16x32_bf16 v[8:11], a[{b}:{b+3}], a[{b+4}:{b+7}], {cin}")
        if t + 5 < 18: rd(t+5)
    A("v_and_b32 v3, 15, v0")
    A("v_lshlrev_b32 v4, 8, v3")
    A("v_lshl_add_u32 v4, v6, 4, v4")
    A(f"s_lshl_b32 s{T+3}, s{T+1}, 11")
    A(f"s_lshl_b32 s{T+4}, s{T+2}, 6")
    A(f"s_add_u32 s{T+3}, s{T+3}, s{T+4}")
    A(f"s_add_u32 s{T+3}, s{T+3}, {M_GU}")
    A(f"v_add_u32 v4, s{T+3}, v4")
    A("v_cmp_gt_u32 vcc, 8, v3")
    A(f"s_and_saveexec_b64 {sp(T+12)}, vcc")
    A("s_nop 2")
    A(f"ds_write_b128 v4, {p4(8)}")
    A(f"s_mov_b64 exec, {sp(T+12)}")

def moe_h_and_down_stage():
    T = S_T
    A("v_lshlrev_b32 v2, 2, v1")
    A(f"v_add_u32 v2, {M_GU}, v2")
    A("ds_read_b32 v8, v2")
    A("ds_read_b32 v9, v2 offset:2048")
    A("v_lshrrev_b32 v3, 6, v1")
    A(f"v_mul_u32_u24 v3, {H_RS}, v3")
    A("v_lshl_add_u32 v3, v0, 1, v3")
    A(f"v_add_u32 v3, {M_H}, v3")
    A("s_waitcnt lgkmcnt(0)")
    rnd(8); rnd(9)
    A(f"v_mul_f32 v10, 0x{f32bits(-1.4426950408889634):08x}, v8")
    A("v_exp_f32 v10, v10")
    A("s_nop 0")
    A("v_add_f32 v10, 1.0, v10")
    A("v_rcp_f32 v10, v10")
    A("s_nop 0")
    A("v_mul_f32 v10, v8, v10")
    rnd(10)
    A("v_mul_f32 v10, v10, v9")
    A("v_cvt_pk_bf16_f32 v10, v10, v10")
    A("ds_write_b16 v3, v10")
    A("s_waitcnt vmcnt(0)")
    for i in range(9):
        A(f"ds_write_b128 v{100+i}, {p4(DWR+4*i)}")

def moe_down():
    T = S_T
    A("v_and_b32 v2, 7, v0")
    A(f"v_mul_u32_u24 v2, {H_RS}, v2")
    A("v_lshrrev_b32 v6, 4, v0")
    A("v_lshl_add_u32 v2, v6, 4, v2")
    A(f"v_add_u32 v2, {M_H}, v2")
    A(f"ds_read_b128 {p4(16)}, v2")
    A(f"ds_read_b128 {p4(20)}, v2 offset:64")
    A("v_bfe_u32 v7, v0, 2, 2")
    A("v_and_b32 v8, 3, v0")
    A("v_lshrrev_b32 v9, 1, v7")
    A("v_and_b32 v10, 1, v6")
    A("v_lshl_add_u32 v9, v10, 1, v9")
    A("v_lshlrev_b32 v9, 1, v9")
    A("v_lshl_add_u32 v3, v6, 3, v7")
    A("v_mul_u32_u24 v3, 1152, v3")
    A("v_and_b32 v10, 1, v8")
    A("v_lshl_add_u32 v3, v10, 3, v3")
    A("v_lshrrev_b32 v8, 1, v8")
    A(f"s_lshl_b32 s{T+1}, s{S_WAVE}, 1")
    A(f"v_add_u32 v8, s{T+1}, v8")
    A("v_xor_b32 v8, v8, v9")
    A("v_lshl_add_u32 v3, v8, 4, v3")
    A(f"v_add_u32 v7, 36864, v3")
    FR = 24
    for i in range(5):
        for ks, a in ((0, 3), (1, 7)):
            r = FR + 8*i + 4*ks
            A(f"ds_read_b64_tr_b16 {p2(r)}, v{a} offset:{256*i}")
            A(f"ds_read_b64_tr_b16 {p2(r+2)}, v{a} offset:{256*i+4608}")
        if i == 2: A("s_waitcnt lgkmcnt(4)")
    ACC = 64
    A("v_and_b32 v4, 15, v0")
    A("v_lshlrev_b32 v5, 4, v4")
    A("v_lshl_add_u32 v5, v6, 7, v5")
    A(f"s_mul_i32 s{T+1}, s70, 18432")
    A(f"s_lshl_b32 s{T+2}, s{S_WAVE}, 9")
    A(f"s_add_u32 s{T+1}, s{T+1}, s{T+2}")
    A(f"v_add_u32 v5, s{T+1}, v5")
    add64(T+2, S_WS, WS_PART)
    A(f"s_mov_b32 s{T+4}, 0x07060503"); A(f"s_mov_b32 s{T+5}, 0x06050302"); A(f"s_mov_b32 s{T+6}, 0x05030201")
    A("s_waitcnt lgkmcnt(0)")
    for i in range(5):
        A(f"v_mfma_f32_16x16x32_bf16 {p4(ACC+4*i)}, {p4(FR+8*i)}, {p4(16)}, 0")
    for i in range(5):
        A(f"v_mfma_f32_16x16x32_bf16 {p4(ACC+4*i)}, {p4(FR+8*i+4)}, {p4(20)}, {p4(ACC+4*i)}")
    A("v_cmp_gt_u32 vcc, 8, v4")
    A(f"s_mov_b64 {sp(T+12)}, vcc")
    A("s_nop 4")
    G = 24
    for i in range(5):
        a = ACC + 4*i; g = G + 4*i
        A(f"v_perm_b32 v{g}, v{a}, v{a+1}, s{T+4}")
        A(f"v_perm_b32 v{g+1}, v{a+1}, v{a+2}, s{T+5}")
        A(f"v_perm_b32 v{g+2}, v{a+2}, v{a+3}, s{T+6}")
        A(f"v_mov_b32 v{g+3}, s{S_NONCE}")
    A(f"s_mov_b64 exec, {sp(T+12)}")
    for i in range(4):
        if i == 0:
            A(f"global_store_dwordx4 v5, {p4(G)}, {sp(T+2)} sc1")
        else:
            A(f"v_add_u32 v8, {4096*i}, v5")
            A(f"global_store_dwordx4 v8, {p4(G+4*i)}, {sp(T+2)} sc1")
    Lx = A.newlabel("L_n5")
    A(f"s_cmp_ge_u32 s{S_WAVE}, 4")
    A(f"s_cbranch_scc1 {Lx}")
    A(f"v_add_u32 v8, {4096*4}, v5")
    A(f"global_store_dwordx4 v8, {p4(G+16)}, {sp(T+2)} sc1")
    A.label(Lx)
    A("s_mov_b64 exec, -1")

def moe_reduce():
    T = S_T
    A("v_lshrrev_b32 v6, 4, v0")
    A(f"s_mul_i32 s{T+1}, s{S_WAVE}, 9")
    A(f"v_add_u32 v1, s{T+1}, v6")
    A(f"v_mul_u32_u24 v1, 18432, v1")
    A("v_and_b32 v2, 15, v0")
    A("v_lshl_add_u32 v1, v2, 4, v1")
    A(f"s_lshl_b32 s{T+1}, s70, 8")
    A(f"v_add_u32 v1, s{T+1}, v1")
    A(f"v_add_u32 v3, {4*18432}, v1")
    A(f"v_mul_u32_u24 v4, 18432, v6")
    A(f"v_sub_u32 v4, v1, v4")
    A(f"v_add_u32 v4, {8*18432}, v4")
    add64(T+2, S_WS, WS_PART)
    def ld():
        A(f"global_load_dwordx4 {p4(16)}, v1, {sp(T+2)} sc1")
        A(f"global_load_dwordx4 {p4(20)}, v3, {sp(T+2)} sc1")
        A(f"global_load_dwordx4 {p4(24)}, v4, {sp(T+2)} sc1")
    tagcheck_loop(ld, [19, 23, 27], 10, 12, sleep=1)
    stamp(8)
    A(f"s_mov_b32 s{T+4}, 0x0403020c"); A(f"s_mov_b32 s{T+5}, 0x0504030c"); A(f"s_mov_b32 s{T+6}, 0xffffff00")
    U = 32
    for i in range(3):
        g = 16 + 4*i; u = U + 4*i
        A(f"v_and_b32 v{u}, s{T+6}, v{g}")
        A(f"v_perm_b32 v{u+1}, v{g}, v{g+1}, s{T+4}")
        A(f"v_perm_b32 v{u+2}, v{g+1}, v{g+2}, s{T+5}")
        A(f"v_lshlrev_b32 v{u+3}, 8, v{g+2}")
    for r in range(4):
        A(f"v_add_f32 v{U+r}, v{U+r}, v{U+4+r}")
    for swap in ("v_permlane32_swap_b32", "v_permlane16_swap_b32"):
        for r in range(4): A(f"v_mov_b32 v{44+r}, v{U+r}")
        A("s_nop 1")
        for r in range(4): A(f"{swap} v{U+r}, v{44+r}")
        for r in range(4): A(f"v_add_f32 v{U+r}, v{U+r}, v{44+r}")
    for r in range(4):
        A(f"v_add_f32 v{U+r}, v{U+r}, v{U+8+r}")
    A(f"s_lshl_b32 s{T+1}, s{S_WAVE}, 8")
    A("v_lshlrev_b32 v5, 4, v2")
    A(f"v_add_u32 v5, s{T+1}, v5")
    A(f"v_add_u32 v5, {M_RED}, v5")
    A("s_mov_b64 exec, 0xffff")
    A(f"ds_write_b128 v5, {p4(U)}")
    A("s_mov_b64 exec, -1")
    A("s_waitcnt lgkmcnt(0)")
    A("s_barrier")
    L = A.newlabel("L_nofin")
    A(f"s_cmp_lg_u32 s{S_WAVE}, 0")
    A(f"s_cbranch_scc1 {L}")
    A("v_lshrrev_b32 v1, 2, v0")
    A("v_and_b32 v2, 3, v0")
    A(f"s_lshl_b32 s{T+1}, s70, 4")
    A(f"v_add_u32 v3, s{T+1}, v1")
    A("v_and_b32 v4, 7, v3")
    A("v_lshrrev_b32 v5, 3, v3")
    A("v_lshl_add_u32 v5, v5, 2, v2")
    A("v_lshlrev_b32 v6, 4, v1")
    A("v_lshl_add_u32 v6, v2, 2, v6")
    A(f"v_add_u32 v6, {M_RED}, v6")
    for w in range(8): A(f"ds_read_b32 v{16+w}, v6 offset:{256*w}")
    A(f"v_mul_u32_u24 v7, {XS_RS}, v4")
    A("v_lshl_add_u32 v7, v5, 1, v7")
    A(f"v_add_u32 v7, {M_XS}, v7")
    A("ds_read_u16 v24, v7")
    A("v_lshlrev_b32 v8, 2, v4")
    A(f"v_add_u32 v8, {M_MISC}, v8")
    A("ds_read_b32 v25, v8 offset:32")
    A("ds_read_b32 v26, v8 offset:64")
    A("v_mul_u32_u24 v9, 576, v4")
    A("v_add_u32 v9, v9, v5")
    A("v_lshlrev_b32 v9, 3, v9")
    add64(T+2, S_WS, WS_T1G)
    tagcheck_loop(lambda: A(f"global_load_dwordx2 v[28:29], v9, {sp(T+2)} sc1"), [29], 10, 12)
    A("s_waitcnt lgkmcnt(0)")
    A("v_add_f32 v16, v16, v17"); A("v_add_f32 v18, v18, v19"); A("v_add_f32 v20, v20, v21"); A("v_add_f32 v22, v22, v23")
    A("v_add_f32 v16, v16, v18"); A("v_add_f32 v20, v20, v22"); A("v_add_f32 v16, v16, v20")
    rnd(16)
    A("v_mul_f32 v16, v16, v26")
    rnd(16)
    A("v_lshlrev_b32 v24, 16, v24")
    A("v_add_f32 v16, v24, v16")
    rnd(16)
    A("v_add_f32 v16, v28, v16")
    A("v_cvt_pk_bf16_f32 v16, v16, v16")
    A("v_and_b32 v25, 0x7ff, v25")
    A("v_mul_u32_u24 v25, 1152, v25")
    A("v_lshl_add_u32 v25, v5, 1, v25")
    A(f"global_store_short v25, v16, {sp(S_OUT)}")
    A.label(L)

def lds_init_list():
    T = S_T
    A(f"s_lshl_b32 s{T+1}, s{S_WAVE}, 10")
    A("v_lshlrev_b32 v110, 4, v0")
    A(f"v_add_u32 v111, s{T+1}, v110")
    A(f"v_add_u32 v111, {M_LIST}, v111")
    for i in range(4): A(f"v_mov_b32 v{112+i}, 0xff800000")
    A(f"ds_write_b128 v111, {p4(112)}")
    L0 = A.newlabel("L_ni")
    A(f"s_cmp_lg_u32 s{S_WAVE}, 0")
    A(f"s_cbranch_scc1 {L0}")
    A(f"v_add_u32 v111, {M_LIST+8192}, v110")
    A("s_mov_b64 exec, 0xf")
    A(f"ds_write_b128 v111, {p4(112)}")
    A("s_mov_b64 exec, -1")
    for i in range(4): A(f"v_mov_b32 v{116+i}, 0")
    A(f"v_add_u32 v111, {M_MISC}, v110")
    A("s_mov_b64 exec, 0x3ff")
    A(f"ds_write_b128 v111, {p4(116)}")
    A("s_mov_b64 exec, -1")
    A.label(L0)

def sel_top8():
    T = S_T
    A(f"s_lshl_b32 s{T+1}, s{S_WAVE}, 6")
    A(f"v_add_u32 v1, s{T+1}, v0")
    A("v_lshlrev_b32 v2, 5, v1")
    add64(T+2, S_WS, WS_RG)
    K = 16
    def ld():
        for i in range(2):
            A(f"global_load_dwordx4 {p4(K+4*i)}, v2, {sp(T+2)} offset:{16*i} sc1")
    tagcheck_loop(ld, [K+2*i+1 for i in range(4)], 10, 12, sleep=1)
    stamp(5)
    keys = [K+2*i for i in range(4)]
    A(f"v_max3_f32 v40, v{keys[0]}, v{keys[1]}, v{keys[2]}")
    A(f"v_max_f32 v40, v40, v{keys[3]}")
    for sh in (8, 4, 2, 1):
        A("s_nop 1")
        A(f"v_max_f32_dpp v40, v40, v40 row_ror:{sh} row_mask:0xf bank_mask:0xf")
    A("s_nop 1")
    A(f"v_readlane_b32 s{T+4}, v40, 16")
    A(f"v_readlane_b32 s{T+5}, v40, 32")
    A(f"v_readlane_b32 s{T+6}, v40, 48")
    A("s_nop 1")
    A(f"v_max_f32 v40, s{T+4}, v40")
    A(f"v_max_f32 v40, s{T+5}, v40")
    A(f"v_max_f32 v40, s{T+6}, v40")
    A(f"s_lshl_b32 s{T+4}, s{S_WAVE}, 2")
    A(f"s_add_u32 s{T+4}, s{T+4}, {M_MISC+96}")
    A(f"v_mov_b32 v43, s{T+4}")
    A("s_mov_b64 exec, 1")
    A(f"ds_write_b32 v43, v40")
    A("s_mov_b64 exec, -1")
    A("s_waitcnt lgkmcnt(0)")
    A("s_barrier")
    A(f"v_mov_b32 v43, {M_MISC+96}")
    A(f"ds_read_b128 {p4(44)}, v43")
    A(f"ds_read_b128 {p4(48)}, v43 offset:16")
    A("s_waitcnt lgkmcnt(0)")
    A("v_min3_f32 v40, v44, v45, v46")
    A("v_min3_f32 v41, v47, v48, v49")
    A("v_min3_f32 v40, v40, v50, v51")
    A("v_min_f32 v40, v40, v41")
    A("v_mov_b32 v41, 0")
    for i in range(4):
        A(f"v_cmp_ge_f32 {sp(T+4+2*i)}, v{keys[i]}, v40")
    for q in range(4):
        A(f"v_addc_co_u32 v41, vcc, 0, v41, {sp(T+4+2*q)}")
    A(f"v_mov_b32 v43, {M_MISC}")
    A("v_cmp_lt_u32 vcc, 0, v41")
    A(f"s_and_saveexec_b64 {sp(T+12)}, vcc")
    A("ds_add_rtn_u32 v42, v43, v41")
    A(f"s_mov_b64 exec, {sp(T+12)}")
    A("s_waitcnt lgkmcnt(0)")
    A("v_lshlrev_b32 v42, 2, v42")
    A(f"v_add_u32 v42, {M_LIST}, v42")
    A(f"v_mov_b32 v43, {S_DUMP}")
    for i in range(4):
        A(f"v_cndmask_b32 v44, v43, v42, {sp(T+4+2*i)}")
        A(f"v_cndmask_b32 v45, 0, 4, {sp(T+4+2*i)}")
        A(f"ds_write_b32 v44, v{keys[i]}")
        A(f"v_add_u32 v42, v42, v45")
    A("s_waitcnt lgkmcnt(0)")
    A("s_barrier")
    A(f"v_mov_b32 v43, {M_MISC}")
    A("ds_read_b32 v44, v43")
    A("s_waitcnt lgkmcnt(0)")
    A(f"v_readfirstlane_b32 s{T+8}, v44")
    A(f"s_mov_b32 s{T+9}, 0")
    Lc = A.newlabel("L_chunk"); Lj = A.newlabel("L_j")
    A.label(Lc)
    A(f"v_add_u32 v44, s{T+9}, v0")
    A("v_lshlrev_b32 v44, 2, v44")
    A(f"v_add_u32 v44, {M_LIST}, v44")
    A("ds_read_b32 v46, v44")
    A("v_mov_b32 v47, 0")
    A(f"v_mov_b32 v45, {M_LIST}")
    A(f"s_mov_b32 s{T+10}, 0")
    A.label(Lj)
    A(f"ds_read_b128 {p4(48)}, v45")
    A(f"ds_read_b128 {p4(52)}, v45 offset:16")
    A("v_add_u32 v45, 32, v45")
    A(f"s_add_u32 s{T+10}, s{T+10}, 8")
    A("s_waitcnt lgkmcnt(1)")
    for q in range(4):
        A(f"v_cmp_gt_f32 {sp(T+2*q)}, v{48+q}, v46")
    for q in range(4):
        A(f"v_addc_co_u32 v47, vcc, 0, v47, {sp(T+2*q)}")
    A("s_waitcnt lgkmcnt(0)")
    for q in range(4):
        A(f"v_cmp_gt_f32 {sp(T+2*q)}, v{52+q}, v46")
    for q in range(4):
        A(f"v_addc_co_u32 v47, vcc, 0, v47, {sp(T+2*q)}")
    A(f"s_cmp_lt_u32 s{T+10}, s{T+8}")
    A(f"s_cbranch_scc1 {Lj}")
    A(f"v_add_u32 v44, s{T+9}, v0")
    A(f"v_cmp_gt_u32 vcc, s{T+8}, v44")
    A(f"v_cmp_gt_u32 {sp(T)}, 8, v47")
    A("s_nop 1")
    A(f"s_and_b64 vcc, vcc, {sp(T)}")
    A(f"s_and_saveexec_b64 {sp(T+12)}, vcc")
    A("v_lshlrev_b32 v47, 2, v47")
    A(f"v_add_u32 v47, {M_MISC+32}, v47")
    A("ds_write_b32 v47, v46")
    A(f"s_mov_b64 exec, {sp(T+12)}")
    A(f"s_add_u32 s{T+9}, s{T+9}, 64")
    A(f"s_cmp_lt_u32 s{T+9}, s{T+8}")
    A(f"s_cbranch_scc1 {Lc}")
    A("s_waitcnt lgkmcnt(0)")
    stamp(6)

def sel_xs():
    T = S_T
    A(f"s_lshl_b32 s{T+1}, s{S_WAVE}, 2")
    A(f"s_add_u32 s{T+1}, s{T+1}, {M_MISC+32}")
    A(f"v_mov_b32 v1, s{T+1}")
    A("ds_read_b32 v16, v1")
    A("s_waitcnt lgkmcnt(0)")
    add64(T+2, S_WS, WS_SG)
    A("s_mov_b32 exec_hi, 0")
    A(f"v_and_b32 v18, 0x7ff, v16")
    A(f"v_mul_u32_u24 v20, 1152, v18")
    A(f"v_mul_u32_u24 v21, 36, v0")
    A(f"v_add_u32 v20, v20, v21")
    A(f"global_load_dwordx4 {p4(24)}, v20, {sp(S_Q)}")
    A(f"global_load_dwordx4 {p4(28)}, v20, {sp(S_Q)} offset:16")
    A(f"global_load_dword v32, v20, {sp(S_Q)} offset:32")
    A(f"v_lshlrev_b32 v22, 3, v18")
    A(f"v_mov_b32 v17, s{S_NONCE}")
    add64(T+4, S_WS, WS_SEL)
    A(f"s_lshl_b32 s{T+6}, s{S_WAVE}, 3")
    A(f"v_mov_b32 v19, s{T+6}")
    A("s_mov_b64 exec, 1")
    A(f"global_store_dwordx2 v19, v[16:17], {sp(T+4)} sc1")
    A("s_mov_b64 exec, 0xffffffff")
    tagcheck_loop(lambda: A(f"global_load_dwordx2 v[40:41], v22, {sp(T+2)} sc1"), [41], 10, 12)
    A(f"v_lshlrev_b32 v44, 16, v40")
    A(f"v_and_b32 v45, s{S_MASK}, v40")
    A("v_rcp_f32 v46, v45")
    A("s_nop 0")
    A("v_fma_f32 v47, -v45, v46, 1.0")
    A("v_fma_f32 v46, v47, v46, v46")
    G = 52
    for i in range(9):
        r = 24 + i
        t = 48 + 2*(i & 1)
        A(f"v_lshlrev_b32 v{t}, 16, v{r}")
        A(f"v_and_b32 v{t+1}, s{S_MASK}, v{r}")
        A(f"v_pk_add_f32 {p2(t)}, {p2(t)}, v[44:45] op_sel_hi:[1,0] neg_lo:[0,1] neg_hi:[0,1]")
        rnd(t); rnd(t+1)
        A(f"v_pk_mul_f32 {p2(t)}, {p2(t)}, v[46:47] op_sel_hi:[1,0]")
        A(f"v_cvt_pk_bf16_f32 v{G + 4*(i//3) + i%3}, v{t}, v{t+1}")
    for g in range(3): A(f"v_mov_b32 v{G+4*g+3}, s{S_NONCE}")
    A(f"s_mul_i32 s{T+4}, s{S_WAVE}, 1536")
    A("v_mul_u32_u24 v50, 48, v0")
    A(f"v_add_u32 v50, s{T+4}, v50")
    add64(T+2, S_WS, WS_XSG)
    for g in range(3):
        A(f"global_store_dwordx4 v50, {p4(G+4*g)}, {sp(T+2)} offset:{16*g} sc1")
    A("s_mov_b64 exec, -1")
    stamp(7)

def spare_wg():
    T = S_T
    A(f"s_sub_u32 s69, s69, {NMOE}")
    A("s_lshl_b32 s68, s69, 5")
    A("s_add_u32 s67, s68, 1280")
    ln_loads(68, LN_Q, True)
    A("v_mov_b32 v9, v3")
    L2 = A.newlabel("L_np2"); L3 = A.newlabel("L_np3")
    A("s_cmp_ge_u32 s69, 24")
    A(f"s_cbranch_scc1 {L2}")
    ln_loads(67, LN_Q2, False)
    A.label(L2)
    lds_init_list()
    get_nonce(120)
    stamp(3)
    ln_compute_publish(LN_Q, 9)
    A("s_cmp_ge_u32 s69, 24")
    A(f"s_cbranch_scc1 {L3}")
    ln_compute_publish(LN_Q2, 3)
    A.label(L3)
    stamp(4)
    A(f"s_cmp_lg_u32 s69, {NLN-1}")
    A("s_cbranch_scc1 L_fin")
    A("s_waitcnt lgkmcnt(0)")
    A("s_barrier")
    sel_top8()
    sel_xs()
    A("s_branch L_fin")

def moe_wg():
    T = S_T
    A(f"s_sub_u32 s69, s{S_WG}, {NCONV}")
    A(f"s_cmp_ge_u32 s69, {NMOE}")
    A("s_cbranch_scc1 L_spare")
    A("s_and_b32 s70, s69, 7")
    A("s_mul_i32 s70, s70, 9")
    A(f"s_lshr_b32 s{T+1}, s69, 3")
    A(f"s_add_u32 s70, s70, s{T+1}")
    moe_dma()
    moe_xs_addr()
    moe_down_addr()
    A("s_waitcnt vmcnt(4)")
    stamp(4)
    moe_xs_loads()
    A(f"global_load_dword v30, v4, {sp(S_DBG)} sc1")
    moe_down_loads()
    A("s_waitcnt vmcnt(9)")
    stamp(5)
    moe_xs_finish()
    stamp(6)
    A("s_waitcnt lgkmcnt(0)")
    A("s_barrier")
    moe_gateup()
    A("s_waitcnt lgkmcnt(0)")
    A("s_barrier")
    moe_h_and_down_stage()
    A("s_waitcnt lgkmcnt(0)")
    A("s_barrier")
    stamp(7)
    moe_down()
    moe_reduce()
    A("s_branch L_fin")
    A.label("L_spare")
    spare_wg()

def main():
    prologue()
    A(f"s_cmp_ge_u32 s{S_WG}, {NCONV}")
    A("s_cbranch_scc1 L_moe")
    conv_wg()
    A.label("L_moe")
    moe_wg()
    A.label("L_fin")
    prof_end()
    A.label("L_end")
    A("s_endpgm")

main()
K = NAME + "_kernel"
LDS = max(L_CONV_END, M_END)
txt = HDR + f"; @launch grid=(256,1,1) block=(512,1,1) lds={LDS}\n" + '.amdgcn_target "amdgcn-amd-amdhsa--gfx950"\n.text\n' + head(K) + A.text() + kd(K, 256, 102, 128, "  .amdhsa_float_denorm_mode_32 3\n")
open(OUTFN, "w").write(txt)
print("wrote", OUTFN, len(txt), "LDS", LDS)
```

```python
import sys, struct, os
sys.path.insert(0, "dev")
from asmlib import *

OUTFN = sys.argv[1] if len(sys.argv) > 1 else "k.s"
OPTS = set(sys.argv[2:])
PROF = "prof" in OPTS
NT = "nt" if "nt" in OPTS else ""

WS_KVT = 0x000000
WS_XT = 0x240000
WS_RG = 0x480000
WS_SG = 0x484000
WS_FL = 0x488000
WS_FL2 = 0x488800
WS_SEL = 0x489800
WS_T1G = 0x48A000
WS_XSG = 0x494000
WS_PART = 0x4A0000
WS_PROF = 0x800000
WS_YG = 0x1000000
SPIN_MAX = 400000
NCONV, NMOE = 144, 72
NLN = 40

S_WG, S_WAVE = 2, 3
S_Q, S_K, S_V, S_SK, S_H, S_D, S_BX, S_WR, S_WGT, S_WUP, S_WD, S_OUT, S_DBG, S_WS = 4, 6, 8, 10, 12, 14, 16, 18, 20, 22, 24, 26, 28, 30
SRD_K, SRD_V, SRD_Q, SRD_O = 32, 36, 40, 44
S_NONCE = 48
S_MASK, S_SELLO, S_SELHI = 50, 51, 52
S_T = 54

A = Asm()
def f32bits(x): return struct.unpack("<I", struct.pack("<f", x))[0]
def p2(r): return f"v[{r}:{r+1}]"
def p4(r): return f"v[{r}:{r+3}]"
def sp(r): return f"s[{r}:{r+1}]"

NSTAMP = 10
def stamp(i):
    if PROF: A(f"s_memtime s[{80+2*i}:{81+2*i}]")
def prof_begin():
    if PROF:
        A("s_memrealtime s[100:101]")
        stamp(0)
        for i in range(1, NSTAMP):
            A(f"s_mov_b64 s[{80+2*i}:{81+2*i}], 0")
def prof_end():
    if not PROF: return
    A(f"s_memrealtime s[{S_T+2}:{S_T+3}]")
    A("s_waitcnt lgkmcnt(0)")
    A(f"s_lshl_b32 s{S_T}, s{S_WG}, 3")
    A(f"s_add_u32 s{S_T}, s{S_T}, s{S_WAVE}")
    A(f"s_lshl_b32 s{S_T}, s{S_T}, 6")
    A(f"s_add_u32 s{S_T}, s{S_T}, {WS_PROF}")
    A(f"v_mov_b32 v1, s{S_T}")
    A("s_mov_b64 exec, 1")
    A("v_mov_b32 v2, s100")
    A(f"global_store_dword v1, v2, {sp(S_WS)}")
    A(f"v_mov_b32 v2, s{S_T+2}")
    A(f"global_store_dword v1, v2, {sp(S_WS)} offset:4")
    for i in range(1, NSTAMP):
        A(f"s_sub_u32 s{S_T+1}, s{80+2*i}, s80")
        A(f"v_mov_b32 v2, s{S_T+1}")
        A(f"global_store_dword v1, v2, {sp(S_WS)} offset:{4+4*i}")
    A("s_mov_b64 exec, -1")

TL = "tl" in OPTS
def tl(slot, wg, wave):
    if not TL: return
    L = A.newlabel("L_tl")
    A(f"s_cmp_lg_u32 s{S_WG}, {wg}")
    A(f"s_cbranch_scc1 {L}")
    A(f"s_cmp_lg_u32 s{S_WAVE}, {wave}")
    A(f"s_cbranch_scc1 {L}")
    A("s_memrealtime s[98:99]")
    A("s_mov_b64 s[100:101], exec")
    A("s_mov_b64 exec, 1")
    A(f"v_accvgpr_write_b32 a126, v126") if False else None
    A(f"v_mov_b32 v126, {4*slot}")
    A("s_waitcnt lgkmcnt(0)")
    A("v_mov_b32 v127, s98")
    A(f"global_store_dword v126, v127, {sp(S_DBG)}")
    A("s_mov_b64 exec, s[100:101]")
    A.label(L)

def rnd(v, src=None):
    A(f"v_cvt_pk_bf16_f32 v{v}, 0, v{v if src is None else src}")
def srd(dst, base, nbytes):
    A(f"s_mov_b32 s{dst}, s{base}")
    A(f"s_and_b32 s{dst+1}, s{base+1}, 0xffff")
    A(f"s_mov_b32 s{dst+2}, {nbytes}")
    A(f"s_mov_b32 s{dst+3}, 0x00020000")
def add64(dst, src, imm):
    A(f"s_add_u32 s{dst}, s{src}, {imm}")
    A(f"s_addc_u32 s{dst+1}, s{src+1}, 0")

def get_nonce(vtmp):
    L = A.newlabel("L_nonce"); Ld = A.newlabel("L_nonced")
    A(f"v_mov_b32 v{vtmp}, 0")
    A(f"s_mov_b32 s{S_T}, 0")
    A.label(L)
    A(f"global_load_dword v{vtmp+1}, v{vtmp}, {sp(S_DBG)} sc1")
    A(f"s_waitcnt vmcnt(0)")
    A(f"v_readfirstlane_b32 s{S_NONCE}, v{vtmp+1}")
    A(f"s_add_u32 s{S_T}, s{S_T}, 1")
    A(f"s_cmp_lg_u32 s{S_NONCE}, 0")
    A(f"s_cbranch_scc1 {Ld}")
    A(f"s_cmp_lt_u32 s{S_T}, {SPIN_MAX}")
    A(f"s_cbranch_scc1 {L}")
    A.label(Ld)

def tag_acc(tagregs, vacc, vtmp):
    A(f"v_xor_b32 v{vacc}, s{S_NONCE}, v{tagregs[0]}")
    rest = tagregs[1:]
    i = 0
    while i < len(rest):
        if i + 1 < len(rest):
            A(f"v_xor_b32 v{vtmp}, s{S_NONCE}, v{rest[i]}")
            A(f"v_xor_b32 v{vtmp+1}, s{S_NONCE}, v{rest[i+1]}")
            A(f"v_or3_b32 v{vacc}, v{vacc}, v{vtmp}, v{vtmp+1}")
            i += 2
        else:
            A(f"v_xor_b32 v{vtmp}, s{S_NONCE}, v{rest[i]}")
            A(f"v_or_b32 v{vacc}, v{vacc}, v{vtmp}")
            i += 1

def tagcheck_loop(load_fn, tagregs, vacc, vtmp, sleep=1):
    T = S_T
    L = A.newlabel("L_pl"); Ld = A.newlabel("L_pld")
    A(f"s_mov_b32 s{T}, 0")
    A.label(L)
    load_fn()
    A("s_waitcnt vmcnt(0)")
    tag_acc(tagregs, vacc, vtmp)
    A(f"v_cmp_ne_u32 vcc, 0, v{vacc}")
    A(f"s_add_u32 s{T}, s{T}, 1")
    A("s_nop 3")
    A("s_cmp_eq_u64 vcc, 0")
    A(f"s_cbranch_scc1 {Ld}")
    if sleep: A(f"s_sleep {sleep}")
    A(f"s_cmp_lt_u32 s{T}, {SPIN_MAX}")
    A(f"s_cbranch_scc1 {L}")
    A.label(Ld)

def nonce_writer():
    L = A.newlabel("L_nw")
    A(f"s_cmp_ge_u32 s{S_WG}, 8")
    A(f"s_cbranch_scc1 {L}")
    A(f"s_cmp_lg_u32 s{S_WAVE}, 7")
    A(f"s_cbranch_scc1 {L}")
    A(f"s_memrealtime {sp(S_T)}")
    A("s_waitcnt lgkmcnt(0)")
    A(f"s_or_b32 s{S_T}, s{S_T}, 1")
    A(f"v_mov_b32 v10, s{S_T}")
    A("v_mov_b32 v11, 0")
    A("v_mov_b32 v12, 0")
    A("s_mov_b64 exec, 1")
    A(f"global_atomic_cmpswap v12, v[10:11], {sp(S_DBG)} sc1")
    A("s_mov_b64 exec, -1")
    A.label(L)

def code_prefetch():
    T = S_T
    L = A.newlabel("L_cpf")
    A(f"s_cmp_lg_u32 s{S_WAVE}, 6")
    A(f"s_cbranch_scc1 {L}")
    A(f"s_lshr_b32 s{T+2}, s{S_WG}, 3")
    A(f"s_cmp_ge_u32 s{T+2}, (L_end - {NAME}_kernel + 1023) / 1024")
    A(f"s_cbranch_scc1 {L}")
    A(f"s_getpc_b64 {sp(T)}")
    A.label(L + "_pc")
    A(f"s_sub_u32 s{T}, s{T}, {L}_pc - {NAME}_kernel")
    A(f"s_subb_u32 s{T+1}, s{T+1}, 0")
    A(f"s_lshl_b32 s{T+2}, s{T+2}, 10")
    A("v_lshlrev_b32 v1, 4, v0")
    A(f"v_add_u32 v1, s{T+2}, v1")
    A(f"global_load_dwordx4 a[124:127], v1, {sp(T)}")
    A.label(L)

def prologue():
    A(f"s_cmp_ge_u32 s{S_WG}, 256")
    A("s_cbranch_scc1 L_end")
    prof_begin()
    A("s_load_dwordx16 s[4:19], s[0:1], 0")
    A("s_load_dwordx8 s[20:27], s[0:1], 64")
    A("s_load_dwordx4 s[28:31], s[0:1], 96")
    A("v_lshrrev_b32 v1, 6, v0")
    A("v_and_b32 v0, 63, v0")
    A(f"v_readfirstlane_b32 s{S_WAVE}, v1")
    A(f"s_mov_b32 s{S_MASK}, 0xffff0000")
    A(f"s_mov_b32 s{S_SELLO}, 0x05040100")
    A(f"s_mov_b32 s{S_SELHI}, 0x07060302")
    A("s_waitcnt lgkmcnt(0)")
    stamp(1)
    for x in range(8): tl(1 + x, x, 1)
    nonce_writer()
    code_prefetch()

def dpp_sum16(v):
    for sh in (8, 4, 2, 1):
        A("s_nop 1")
        A(f"v_add_f32_dpp v{v}, v{v}, v{v} row_ror:{sh} row_mask:0xf bank_mask:0xf")

LN_Q, LN_W, LN_Q2 = 10, 28, 46
def ln_loads(stok, Q, with_w):
    T = S_T
    A(f"s_mov_b32 s{T}, s{stok}")
    A("v_lshrrev_b32 v1, 4, v0")
    A("v_and_b32 v2, 15, v0")
    A(f"v_add_u32 v3, s{T}, v1")
    A(f"v_mul_u32_u24 v4, 1152, v3")
    A(f"v_lshl_add_u32 v5, v2, 4, v4")
    A(f"v_lshl_add_u32 v6, v2, 3, v4")
    for i in range(4):
        A(f"global_load_dwordx4 {p4(Q+4*i)}, v5, {sp(S_Q)} offset:{256*i} {NT}")
    A(f"global_load_dwordx2 {p2(Q+16)}, v6, {sp(S_Q)} offset:1024 {NT}")
    if with_w:
        W = LN_W
        A(f"v_lshlrev_b32 v7, 4, v2")
        A(f"v_lshlrev_b32 v8, 3, v2")
        for i in range(4):
            A(f"global_load_dwordx4 {p4(W+4*i)}, v7, {sp(S_WR)} offset:{256*i}")
        A(f"global_load_dwordx2 {p2(W+16)}, v8, {sp(S_WR)} offset:1024")

def dpp_sum16x(vs):
    for sh in (8, 4, 2, 1):
        if len(vs) < 3: A("s_nop 1")
        for v in vs:
            A(f"v_add_f32_dpp v{v}, v{v}, v{v} row_ror:{sh} row_mask:0xf bank_mask:0xf")

def ln_compute_publish(Q, vtok, first, vc=2, hook=None, publish=True):
    T = S_T
    W = LN_W
    A(f"s_mov_b32 s{T+8}, 0x3f803f80"); A(f"s_mov_b32 s{T+9}, 0x00003f80"); A(f"s_mov_b32 s{T+10}, 0x3f800000")
    accs = [64, 65, 66, 67] + ([68, 69] if first else [])
    for a in accs: A(f"v_mov_b32 v{a}, 0")
    for i in range(18):
        A(f"v_dot2_f32_bf16 v{64+(i&1)}, v{Q+i}, s{T+8}, v{64+(i&1)}")
        A(f"v_dot2_f32_bf16 v{66+(i&1)}, v{Q+i}, v{W+i}, v{66+(i&1)}")
        if first: A(f"v_dot2_f32_bf16 v{68+(i&1)}, v{W+i}, s{T+8}, v{68+(i&1)}")
    A("s_nop 2")
    A("v_add_f32 v64, v64, v65")
    A("v_add_f32 v66, v66, v67")
    if first:
        A("v_add_f32 v122, v68, v69")
        A("s_nop 0")
        dpp_sum16x([64, 66, 122])
    else:
        A("s_nop 0")
        dpp_sum16x([64, 66])
    A(f"v_mul_f32 v64, 0x{f32bits(1.0/576):08x}, v64")
    A("v_sub_f32 v65, 0, v64")
    for a in (68, 69, 70, 71): A(f"v_mov_b32 v{a}, 0")
    for i in range(0, 18, 2):
        A(f"v_dot2_f32_bf16 v72, v{Q+i}, s{T+9}, v65")
        A(f"v_dot2_f32_bf16 v73, v{Q+i}, s{T+10}, v65")
        A(f"v_dot2_f32_bf16 v74, v{Q+i+1}, s{T+9}, v65")
        A(f"v_dot2_f32_bf16 v75, v{Q+i+1}, s{T+10}, v65")
        A("s_nop 1")
        A(f"v_fma_f32 v68, v72, v72, v68")
        A(f"v_fma_f32 v69, v73, v73, v69")
        A(f"v_fma_f32 v70, v74, v74, v70")
        A(f"v_fma_f32 v71, v75, v75, v71")
    A("v_add_f32 v68, v68, v69"); A("v_add_f32 v70, v70, v71"); A("v_add_f32 v68, v68, v70")
    dpp_sum16x([68])
    A(f"v_mul_f32 v68, 0x{f32bits(1.0/576):08x}, v68")
    rnd(68)
    A(f"v_add_f32 v68, 0x{f32bits(1e-5):08x}, v68")
    rnd(68)
    A("v_sqrt_f32 v69, v68")
    A("s_nop 0")
    A("v_rcp_f32 v70, v69")
    A("v_fma_f32 v71, -v69, v69, v68")
    A("v_mul_f32 v70, 0.5, v70")
    A("v_fma_f32 v69, v71, v70, v69")
    rnd(69)
    A("v_rcp_f32 v70, v69")
    rnd(64)
    A("v_fma_f32 v66, -v64, v122, v66")
    A("v_mul_f32 v112, v66, v70")
    rnd(112)
    A(f"v_or_b32 v112, v112, v{vtok}")
    A("v_cvt_pk_bf16_f32 v114, v64, v69")
    if not publish:
        A("v_mov_b32 v32, v112"); A("v_mov_b32 v34, v114")
        return
    if hook: hook()
    ln_publish(vtok, vc)

def ln_publish(vtok, vc):
    T = S_T
    A(f"v_mov_b32 v113, s{S_NONCE}")
    A(f"v_mov_b32 v115, s{S_NONCE}")
    A(f"v_lshlrev_b32 v116, 3, v{vtok}")
    add64(T+2, S_WS, WS_RG)
    add64(T+4, S_WS, WS_SG)
    A(f"v_cmp_eq_u32 vcc, 0, v{vc}")
    A(f"s_and_saveexec_b64 {sp(T+6)}, vcc")
    A(f"global_store_dwordx2 v116, v[112:113], {sp(T+2)} sc1")
    A(f"global_store_dwordx2 v116, v[114:115], {sp(T+4)} sc1")
    A(f"s_mov_b64 exec, {sp(T+6)}")

P_CH = 4128
L_P = 0
L_Q = L_P + 4 * P_CH
Q_CPY = 1152
Q_CH = 4 * Q_CPY
L_KVL = L_Q + 4 * Q_CH
L_MC = L_KVL + 16384
L_SELT = L_MC + 64
L_ST = L_SELT + 128
TBLK = 1040
L_TK = (L_ST + 1024 + 15) // 16 * 16
L_TV = L_TK + 17 * TBLK
L_TQ = L_TV + 16 * TBLK
L_OT = L_TK
L_CONV_END = L_TQ + 16 * TBLK

def dma(voff, srdreg, soff, m0, flag=None):
    A(f"s_mov_b32 m0, {m0}")
    A("s_nop 0")
    A(f"buffer_load_dwordx4 v{voff}, s[{srdreg}:{srdreg+3}], {soff} offen {NT if flag is None else flag} lds")

def conv_tile():
    T = S_T
    Lln = A.newlabel("L_cln")
    A(f"s_sub_u32 s72, s{S_WAVE}, 4")
    A(f"s_cmp_ge_u32 s72, 3")
    A(f"s_cbranch_scc1 {Lln}")
    A(f"s_mul_i32 s68, s{S_WG}, 12")
    A(f"s_lshl_b32 s{T+1}, s72, 2")
    A(f"s_add_u32 s68, s68, s{T+1}")
    ln_loads(68, LN_Q, True)
    A("v_mov_b32 v46, v3")
    A("v_mov_b32 v47, v2")
    A.label(Lln)
    A(f"s_mul_hi_u32 s77, s{S_WG}, {(2**32 + 8)//9}")
    A(f"s_mul_i32 s76, s77, 9")
    A(f"s_sub_u32 s76, s{S_WG}, s76")
    srd(SRD_K, S_K, 2359296)
    srd(SRD_V, S_V, 2359296)
    A("v_lshrrev_b32 v1, 3, v0")
    A("v_and_b32 v2, 7, v0")
    A(f"s_mul_i32 s{T+2}, s77, {128*1152}")
    A(f"s_lshl_b32 s{T+3}, s76, 7")
    A(f"s_add_u32 s{T+2}, s{T+2}, s{T+3}")
    A(f"v_mul_u32_u24 v3, 1152, v1")
    A(f"v_lshl_add_u32 v3, v2, 4, v3")
    A(f"v_add_u32 v3, s{T+2}, v3")
    A(f"s_mul_i32 s{T+4}, s{S_WAVE}, {2*9216}")
    A(f"s_add_u32 s{T+5}, s{T+4}, 9216")
    A(f"s_mul_i32 s{T+6}, s{S_WAVE}, {2*TBLK}")
    A(f"s_add_u32 s{T+7}, s{T+6}, {L_TK + TBLK}")
    A(f"s_add_u32 s{T+8}, s{T+6}, {L_TK + 2*TBLK}")
    dma(3, SRD_K, f"s{T+4}", f"s{T+7}")
    dma(3, SRD_K, f"s{T+5}", f"s{T+8}")
    A(f"s_add_u32 s{T+7}, s{T+6}, {L_TV}")
    A(f"s_add_u32 s{T+8}, s{T+6}, {L_TV + TBLK}")
    dma(3, SRD_V, f"s{T+4}", f"s{T+7}")
    dma(3, SRD_V, f"s{T+5}", f"s{T+8}")
    Lh = A.newlabel("L_nohalo")
    A(f"s_cmp_lg_u32 s{S_WAVE}, 0")
    A(f"s_cbranch_scc1 {Lh}")
    A(f"v_subrev_u32 v4, 9216, v3")
    A(f"s_cmp_lg_u32 s77, 0")
    A(f"s_cbranch_scc1 {Lh}_a")
    A("v_bfrev_b32 v4, 1")
    A.label(Lh + "_a")
    dma(4, SRD_K, "0", L_TK)
    A.label(Lh)
    A(f"s_lshr_b32 s{T+9}, s{S_WAVE}, 1")
    A(f"s_and_b32 s{T+10}, s{S_WAVE}, 1")
    A(f"s_lshl_b32 s{T+11}, s76, 9")
    A(f"s_lshl_b32 s{T+12}, s{T+9}, 7")
    A(f"s_add_u32 s{T+11}, s{T+11}, s{T+12}")
    A("v_lshlrev_b32 v5, 4, v1")
    A(f"v_add_u32 v5, s{T+11}, v5")
    TR = 48
    A(f"global_load_dwordx4 {p4(TR)}, v5, {sp(S_SK)}")
    A(f"s_and_b32 s{T+13}, s{S_WG}, 7")
    A(f"s_mul_i32 s{T+13}, s{T+13}, 18")
    A(f"s_lshr_b32 s{T+12}, s{S_WG}, 3")
    A(f"s_add_u32 s{T+13}, s{T+13}, s{T+12}")
    A(f"s_lshl_b32 s71, s{T+13}, 2")
    A(f"s_and_b32 s{T+12}, s{S_WAVE}, 3")
    A(f"s_add_u32 s78, s71, s{T+12}")
    A(f"s_lshl_b32 s79, s78, 12")
    A("v_mov_b32 v120, 0")
    A(f"global_load_dword v121, v120, {sp(S_DBG)} sc1")
    A(f"s_lshl_b32 s{T+12}, s{T+10}, 3")
    A(f"v_add_u32 v6, s{T+12}, v2")
    A(f"s_lshl_b32 s{T+12}, s{T+9}, 3")
    A(f"v_add_u32 v7, s{T+12}, v1")
    A(f"v_mul_u32_u24 v9, {TBLK}, v6")
    A(f"v_lshl_add_u32 v9, v7, 2, v9")
    A(f"v_add_u32 v9, {L_TK}, v9")
    A(f"s_lshl_b32 s{T+11}, s76, 18")
    A(f"s_lshl_b32 s{T+12}, s77, 8")
    A(f"s_add_u32 s{T+11}, s{T+11}, s{T+12}")
    A("v_lshlrev_b32 v8, 13, v7")
    A("v_lshl_add_u32 v8, v6, 4, v8")
    A(f"v_add_u32 v8, s{T+11}, v8")
    Lz = A.newlabel("L_noz")
    A(f"s_cmp_lg_u32 s{S_WAVE}, 7")
    A(f"s_cbranch_scc1 {Lz}")
    for i in range(4): A(f"v_mov_b32 v{52+i}, 0")
    A("v_lshlrev_b32 v56, 4, v0")
    A(f"v_add_u32 v56, {L_MC}, v56")
    A("s_mov_b64 exec, 0xfff")
    A(f"ds_write_b128 v56, {p4(52)}")
    A("s_mov_b64 exec, -1")
    A.label(Lz)
    Lln2 = A.newlabel("L_cln2")
    A(f"s_cmp_ge_u32 s72, 3")
    A(f"s_cbranch_scc1 {Lln2}")
    A("s_waitcnt vmcnt(6)")
    ln_compute_publish(LN_Q, 46, True, vc=47, hook=lambda: None, publish=False)
    A.label(Lln2)
    A("s_waitcnt vmcnt(0) lgkmcnt(0)")
    A(f"v_readfirstlane_b32 s{S_NONCE}, v121")
    A("s_mov_b32 s73, 0")
    Lp = A.newlabel("L_lnp")
    A(f"s_cmp_ge_u32 s72, 3")
    A(f"s_cbranch_scc1 {Lp}")
    A(f"s_cmp_eq_u32 s{S_NONCE}, 0")
    A(f"s_cbranch_scc1 {Lp}")
    A("v_mov_b32 v112, v32"); A("v_mov_b32 v114, v34")
    ln_publish(46, 47)
    A("s_mov_b32 s73, 1")
    A.label(Lp)
    A("s_barrier")
    stamp(2)
    KR, VR = 10, 21
    for j in range(11):
        off = (640 + 128*j if j < 3 else TBLK + 128*(j-3))
        A(f"ds_read_b32 v{KR+j}, v9 offset:{off}")
    for j in range(8):
        A(f"ds_read_b32 v{VR+j}, v9 offset:{L_TV - L_TK + 128*j}")
    A("v_mov_b32 v30, 0")
    A(f"global_load_dword v31, v30, {sp(S_DBG)} sc1")
    TP = 52
    A(f"v_lshlrev_b32 v{TP+0}, 16, v{TR}"); A(f"v_lshlrev_b32 v{TP+1}, 16, v{TR+2}")
    A(f"v_and_b32 v{TP+2}, s{S_MASK}, v{TR}"); A(f"v_and_b32 v{TP+3}, s{S_MASK}, v{TR+2}")
    A(f"v_lshlrev_b32 v{TP+4}, 16, v{TR+1}"); A(f"v_lshlrev_b32 v{TP+5}, 16, v{TR+3}")
    A(f"v_and_b32 v{TP+6}, s{S_MASK}, v{TR+1}"); A(f"v_and_b32 v{TP+7}, s{S_MASK}, v{TR+3}")
    KP = 80
    A("s_waitcnt lgkmcnt(8)")
    for j in range(11):
        A(f"v_lshlrev_b32 v{KP+2*j}, 16, v{KR+j}")
        A(f"v_and_b32 v{KP+2*j+1}, s{S_MASK}, v{KR+j}")
    R = 102
    tp = lambda tap: p2(TP+2*tap)
    for i in range(8): A(f"v_pk_mul_f32 {p2(R+2*i)}, {p2(KP+2*i)}, {tp(3)}")
    for i in range(8): A(f"v_pk_fma_f32 {p2(R+2*i)}, {p2(KP+2*(i+1))}, {tp(2)}, {p2(R+2*i)}")
    for i in range(8): A(f"v_pk_fma_f32 {p2(R+2*i)}, {p2(KP+2*(i+2))}, {tp(1)}, {p2(R+2*i)}")
    for i in range(8): A(f"v_pk_fma_f32 {p2(R+2*i)}, {p2(KP+2*(i+3))}, {tp(0)}, {p2(R+2*i)}")
    A("s_waitcnt lgkmcnt(0)")
    VP = 60
    for i in range(8):
        A(f"v_lshlrev_b32 v{VP+2*i}, 16, v{VR+i}"); A(f"v_and_b32 v{VP+2*i+1}, s{S_MASK}, v{VR+i}")
    for i in range(8): A(f"v_pk_mul_f32 {p2(R+2*i)}, {p2(R+2*i)}, {p2(VP+2*i)}")
    O = 120
    for q in range(4):
        A(f"v_cvt_pk_bf16_f32 v{O+q}, v{R+4*q}, v{R+4*q+2}")
        A(f"v_cvt_pk_bf16_f32 v{O+4+q}, v{R+4*q+1}, v{R+4*q+3}")
    add64(T+2, S_WS, WS_KVT)
    add64(T+8, S_WS, WS_KVT+4096)
    A(f"global_store_dwordx4 v8, {p4(O)}, {sp(T+2)} sc1")
    A(f"global_store_dwordx4 v8, {p4(O+4)}, {sp(T+8)} sc1")
    A(f"s_lshl_b32 s{T+1}, s{S_WAVE}, 11")
    A("v_lshlrev_b32 v4, 5, v0")
    A(f"v_add_u32 v4, s{T+1}, v4")
    A(f"v_add_u32 v4, {L_KVL}, v4")
    A(f"ds_write_b128 v4, {p4(O)}")
    A(f"ds_write_b128 v4, {p4(O+4)} offset:16")
    stamp(3)
    Lh = A.newlabel("L_noh"); Lh2 = A.newlabel("L_noh2")
    A(f"s_cmp_ge_u32 s{S_WAVE}, 4")
    A(f"s_cbranch_scc1 {Lh}")
    srd(SRD_V, S_H, 2359296)
    A("v_lshlrev_b32 v4, 4, v0")
    A(f"s_mul_i32 s74, s{S_WAVE}, {P_CH}")
    for q in range(4):
        A(f"s_add_u32 s{T+9}, s79, {1024*q}")
        A(f"s_add_u32 s{T+10}, s74, {32 + 1024*q}")
        dma(4, SRD_V, f"s{T+9}", f"s{T+10}")
    A("s_waitcnt vmcnt(4)")
    A(f"s_branch {Lh2}")
    A.label(Lh)
    A("s_waitcnt vmcnt(0)")
    A.label(Lh2)
    A(f"v_readfirstlane_b32 s{S_NONCE}, v31")
    Ln = A.newlabel("L_hasn")
    A(f"s_cmp_lg_u32 s{S_NONCE}, 0")
    A(f"s_cbranch_scc1 {Ln}")
    get_nonce(30)
    A.label(Ln)
    Lp2 = A.newlabel("L_lnp2")
    A(f"s_cmp_ge_u32 s72, 3")
    A(f"s_cbranch_scc1 {Lp2}")
    A("s_cmp_eq_u32 s73, 1")
    A(f"s_cbranch_scc1 {Lp2}")
    A("v_mov_b32 v112, v32"); A("v_mov_b32 v114, v34")
    ln_publish(46, 47)
    A.label(Lp2)
    A("s_barrier")
    stamp(4)
    L = A.newlabel("L_nf")
    A(f"s_cmp_lg_u32 s{S_WAVE}, 0")
    A(f"s_cbranch_scc1 {L}")
    A(f"s_lshl_b32 s{T+1}, s76, 7")
    A(f"s_lshl_b32 s{T+2}, s77, 2")
    A(f"s_add_u32 s{T+1}, s{T+1}, s{T+2}")
    A(f"s_add_u32 s{T+1}, s{T+1}, {WS_FL}")
    A(f"v_mov_b32 v100, s{T+1}")
    A(f"v_mov_b32 v101, s{S_NONCE}")
    A("s_mov_b64 exec, 1")
    A(f"global_store_dword v100, v101, {sp(S_WS)} sc1")
    A("s_mov_b64 exec, -1")
    A.label(L)

def x_tile():
    T = S_T
    A("; x tile")
    A("v_and_b32 v2, 7, v0"); A("v_lshrrev_b32 v1, 3, v0")
    A(f"s_lshl_b32 s{T+12}, s72, 3")
    A(f"v_add_u32 v7, s{T+12}, v1")
    A(f"v_mul_u32_u24 v9, {TBLK}, v2")
    A(f"v_lshl_add_u32 v9, v7, 2, v9")
    A(f"v_add_u32 v9, {L_TQ}, v9")
    A(f"s_lshl_b32 s{T+11}, s76, 18")
    A(f"s_lshl_b32 s{T+12}, s77, 8")
    A(f"s_add_u32 s{T+11}, s{T+11}, s{T+12}")
    A("v_lshlrev_b32 v8, 13, v7")
    A("v_lshl_add_u32 v8, v2, 4, v8")
    A(f"v_add_u32 v8, s{T+11}, v8")
    for gh in range(2):
        for j in range(8):
            A(f"ds_read_b32 v{64+8*gh+j}, v9 offset:{8*TBLK*gh + 128*j}")
    add64(T+2, S_WS, WS_XT)
    add64(T+4, S_WS, WS_XT+4096)
    for gh in range(2):
        A(f"s_waitcnt lgkmcnt({8*(1-gh)})")
        X = 80 + 8*gh
        for q in range(4):
            A(f"v_perm_b32 v{X+q}, v{64+8*gh+2*q+1}, v{64+8*gh+2*q}, s{S_SELLO}")
            A(f"v_perm_b32 v{X+4+q}, v{64+8*gh+2*q+1}, v{64+8*gh+2*q}, s{S_SELHI}")
        A(f"global_store_dwordx4 v8, {p4(X)}, {sp(T+2)} offset:{128*gh} sc1")
        A(f"global_store_dwordx4 v8, {p4(X+4)}, {sp(T+4)} offset:{128*gh} sc1")

def x_flag():
    T = S_T
    A("s_waitcnt vmcnt(0)")
    A(f"s_lshl_b32 s{T+1}, s76, 2")
    A(f"s_add_u32 s{T+1}, s{T+1}, s72")
    A(f"s_lshl_b32 s{T+1}, s{T+1}, 6")
    A(f"s_lshl_b32 s{T+2}, s77, 2")
    A(f"s_add_u32 s{T+1}, s{T+1}, s{T+2}")
    A(f"s_add_u32 s{T+1}, s{T+1}, {WS_FL2}")
    A(f"v_mov_b32 v100, s{T+1}")
    A(f"v_mov_b32 v101, s{S_NONCE}")
    A("s_mov_b64 exec, 1")
    A(f"global_store_dword v100, v101, {sp(S_WS)} sc1")
    A("s_mov_b64 exec, -1")

def poll_flags(vt, second):
    T = S_T
    if not second:
        A(f"s_lshr_b32 s{T+1}, s71, 6")
        A(f"s_lshl_b32 s{T+1}, s{T+1}, 7")
        A(f"s_add_u32 s{T+1}, s{T+1}, {WS_FL}")
    else:
        A(f"s_lshr_b32 s{T+1}, s71, 4")
        A(f"s_lshl_b32 s{T+1}, s{T+1}, 6")
        A(f"s_add_u32 s{T+1}, s{T+1}, {WS_FL2}")
    A(f"v_and_b32 v{vt}, 15, v0")
    A(f"v_lshlrev_b32 v{vt}, 2, v{vt}")
    A(f"v_add_u32 v{vt}, s{T+1}, v{vt}")
    tagcheck_loop(lambda: A(f"global_load_dword v{vt+1}, v{vt}, {sp(S_WS)} sc1"), [vt+1], vt+2, vt+3, sleep=1)

class LdsQ:
    def __init__(self): self.q = []
    def issue(self, instr, tag=None):
        A(instr); self.q.append(tag)
    def wait(self, tag):
        idxs = [i for i, t in enumerate(self.q) if t == tag]
        if not idxs: return
        last = idxs[-1]
        n = len(self.q) - 1 - last
        A(f"s_waitcnt lgkmcnt({min(n, 15)})")
        if n <= 15: self.q = self.q[last+1:]
        else: self.q = self.q[len(self.q)-15:]

def conv_mfma_wave():
    T = S_T
    A(f"s_mul_i32 s75, s{S_WAVE}, {Q_CH}")
    A(f"s_add_u32 s75, s75, {L_Q}")
    for i in range(4): A(f"v_mov_b32 v{16+i}, 0")
    A("v_lshlrev_b32 v2, 4, v0")
    A("v_add_u32 v2, s74, v2")
    A("s_mov_b64 exec, 3")
    A(f"ds_write_b128 v2, {p4(16)}")
    A("s_mov_b64 exec, -1")
    A("v_lshrrev_b32 v2, 3, v0")
    A(f"v_mul_u32_u24 v2, {Q_CPY}, v2")
    A("v_and_b32 v3, 7, v0")
    A("v_lshl_add_u32 v2, v3, 4, v2")
    A("v_add_u32 v2, s75, v2")
    A("s_mov_b64 exec, 0xffffffff")
    A(f"ds_write_b128 v2, {p4(16)}")
    A("s_mov_b64 exec, -1")
    A("v_and_b32 v3, 3, v0")
    A("v_bfe_u32 v4, v0, 2, 2")
    A("v_sub_u32 v3, v3, v4")
    A("v_lshlrev_b32 v3, 3, v3")
    A("v_lshrrev_b32 v4, 4, v0")
    A("v_lshl_add_u32 v3, v4, 6, v3")
    A("v_add_u32 v3, s74, v3")
    A("v_add_u32 v3, 32, v3")
    A("s_waitcnt vmcnt(0) lgkmcnt(0)")
    G = 64
    def greg(e, s1): return G + 4*(8*e + s1)
    for s1 in range(8):
        for e in range(2):
            g = greg(e, s1)
            A(f"ds_read_b64_tr_b16 {p2(g)}, v3 offset:{512*s1+256*e+32}")
            A(f"ds_read_b64_tr_b16 {p2(g+2)}, v3 offset:{512*s1+256*e}")
        if s1 % 3 == 2: A("s_waitcnt lgkmcnt(4)")
    A("v_and_b32 v5, 15, v0")
    A("v_lshlrev_b32 v6, 3, v5")
    A("v_lshlrev_b32 v7, 4, v4")
    A("v_sub_u32 v6, v6, v7")
    A("v_add_u32 v6, s75, v6")
    A("v_add_u32 v6, 56, v6")
    A("v_lshlrev_b32 v7, 6, v5")
    A("v_lshl_add_u32 v7, v4, 4, v7")
    A(f"s_lshl_b32 s{T+1}, s78, 13")
    A(f"v_add_u32 v7, s{T+1}, v7")
    A(f"v_add_u32 v11, 4096, v7")
    add64(62, S_WS, WS_YG)
    A("v_subrev_u32 v8, 16, v0")
    A("v_add_u32 v9, 47, v0")
    A("v_cmp_gt_u32 vcc, 16, v0")
    A("s_nop 1")
    A("v_cndmask_b32 v8, v8, v9, vcc")
    A("v_mov_b32 v9, 63")
    A("v_cmp_eq_u32 vcc, 0, v0")
    A("s_nop 1")
    A("v_cndmask_b32 v8, v8, v9, vcc")
    A("v_lshlrev_b32 v8, 2, v8")
    A(f"v_mov_b32 v9, {L_MC}")
    A("v_mov_b32 v10, 1")
    A(f"s_mov_b64 {sp(66)}, 1")
    for i in range(3): A(f"v_mov_b32 v{40+i}, 0")
    add64(T+2, S_WS, WS_KVT)
    A("v_lshlrev_b32 v1, 4, v0")
    A("v_add_u32 v1, s79, v1")
    A("v_lshlrev_b32 v2, 2, v0")
    A("v_add_u32 v2, s75, v2")
    stamp(5)
    A(f"s_mov_b64 {sp(64)}, {sp(T+2)}")
    poll_flags(12, False)
    stamp(6)
    tl(14, 7, 0) if False else None
    KV = 16
    for q in range(4):
        A(f"global_load_dwordx4 {p4(KV+4*q)}, v1, {sp(64)} offset:{1024*q} sc1")
    QO = 48
    for q in range(4):
        A(f"s_waitcnt vmcnt({3-q})")
        for sg in range(4):
            sel = S_SELLO if (sg & 1) == 0 else S_SELHI
            A(f"v_perm_b32 v{QO+4*q+sg}, v{KV+4*q+2+sg//2}, v{KV+4*q+sg//2}, s{sel}")
            A(f"ds_write_b32 v2, v{QO+4*q+sg} offset:{sg*Q_CPY+128+256*q}")
    A("s_waitcnt lgkmcnt(0)")
    stamp(7)
    lq = LdsQ()
    classes = [(c1, sg, e) for c1 in range(8) for sg in range(4) for e in range(2)]
    free = [48, 52, 56, 60]
    fbuf = {}
    def fread(k):
        c1, sg, e = classes[k]
        b = free.pop(0); fbuf[k] = b
        off = sg*Q_CPY + 128*c1 + 64*(1-e)
        lq.issue(f"ds_read_b64 {p2(b)}, v6 offset:{off}", ("F", k))
        lq.issue(f"ds_read_b64 {p2(b+2)}, v6 offset:{off+8}", ("F", k))
    def acc(sg, t): return (sg*8 + t)*4
    def combine_ops(t):
        a = 16
        ops = []
        for sg in range(4):
            for r in range(4):
                ops.append(lambda sg=sg, r=r: A(f"v_accvgpr_read_b32 v{a+4*sg+r}, a{acc(sg,t)+r}"))
        a0, a1, a2, a3 = a, a+4, a+8, a+12
        C = 32 + 0
        ops.append(lambda: A(f"v_add_f32 v{C}, v{a1+3}, v{a2+2}"))
        ops.append(lambda: A(f"v_add_f32 v{C+1}, v{a2+3}, v{a3+2}"))
        ops.append(lambda: A(f"v_add_f32 v{C}, v{C}, v{a3+1}"))
        P = 36 + 4*(t & 1)
        Pp = 36 + 4*((t+1) & 1)
        ops.append(lambda: lq.issue(f"ds_bpermute_b32 v{P}, v8, v{C}", ("B", t)))
        ops.append(lambda: lq.issue(f"ds_bpermute_b32 v{P+1}, v8, v{C+1}", ("B", t)))
        ops.append(lambda: lq.issue(f"ds_bpermute_b32 v{P+2}, v8, v{a3+3}", ("B", t)))
        ops.append(lambda: A(f"v_add_f32 v{a0+1}, v{a0+1}, v{a1}"))
        ops.append(lambda: A(f"v_add_f32 v{a0+2}, v{a0+2}, v{a1+1}"))
        ops.append(lambda: A(f"v_add_f32 v{a0+3}, v{a0+3}, v{a1+2}"))
        ops.append(lambda: A(f"v_add_f32 v{a0+2}, v{a0+2}, v{a2}"))
        ops.append(lambda: A(f"v_add_f32 v{a0+3}, v{a0+3}, v{a2+1}"))
        ops.append(lambda: A(f"v_add_f32 v{a0+3}, v{a0+3}, v{a3}"))
        ops.append(lambda: lq.wait(("B", t)))
        for i in range(3):
            ops.append(lambda i=i: A(f"v_cndmask_b32 v{44+i}, v{P+i}, v{Pp+i}, {sp(66)}"))
        for i in range(3):
            ops.append(lambda i=i: A(f"v_add_f32 v{a0+i}, v{a0+i}, v{44+i}"))
        YQ = 12 if False else 44
        ops.append(lambda: A(f"v_cvt_pk_bf16_f32 v44, v{a0}, v{a0+1}"))
        ops.append(lambda: A(f"v_mov_b32 v45, s{S_NONCE}"))
        ops.append(lambda: A(f"v_cvt_pk_bf16_f32 v46, v{a0+2}, v{a0+3}"))
        ops.append(lambda: A(f"v_mov_b32 v47, s{S_NONCE}"))
        ops.append(lambda: A(f"global_store_dwordx4 v{7 if t < 4 else 11}, {p4(44)}, {sp(62)} offset:{1024*(t % 4)} sc1"))
        ops.append(lambda: A("s_nop 1"))
        return ops
    nxt = 0
    def topup(maxn=2):
        nonlocal nxt
        n = 0
        while free and nxt < len(classes) and n < maxn and len(lq.q) <= 10:
            fread(nxt); nxt += 1; n += 1
    topup(3)
    pending = []
    k = 0
    for c1 in range(8):
        nm_step = 8*(8-c1)
        if c1 > 0:
            pending = combine_ops(c1-1)
            free.extend([greg(0, 8-c1), greg(1, 8-c1)])
        per = 0
        if pending:
            avail = max(1, nm_step - 3)
            per = -(-len(pending) // avail)
        mi = 0
        for sg in range(4):
            for e in range(2):
                while nxt <= k: topup(1)
                lq.wait(("F", k))
                b = fbuf[k]
                for s1 in range(8-c1):
                    t = s1 + c1
                    d = acc(sg, t)
                    cin = "0" if (c1 == 0 and e == 0) else f"a[{d}:{d+3}]"
                    A(f"v_mfma_f32_16x16x32_bf16 a[{d}:{d+3}], {p4(greg(e, s1))}, {p4(b)}, {cin}")
                    mi += 1
                    if s1 == 0: topup(1)
                    if pending and mi >= 3:
                        for _ in range(per):
                            if pending: pending.pop(0)()
                free.append(b)
                k += 1
        while pending: pending.pop(0)()
    A("s_nop 7"); A("s_nop 1")
    for op in combine_ops(7): op()
    A("s_mov_b64 exec, 1")
    A("ds_add_u32 v9, v10")
    A("s_mov_b64 exec, -1")
    stamp(8)
    tl(13, 7, 0)

def lds_spin(addr_off, target, va, vb, sleep=1):
    T = S_T
    L = A.newlabel("L_ls")
    A(f"v_mov_b32 v{va}, {L_MC}")
    A(f"s_mov_b32 s{T+1}, 0")
    A.label(L)
    A(f"ds_read_b32 v{vb}, v{va} offset:{addr_off}")
    A("s_waitcnt lgkmcnt(0)")
    A(f"v_readfirstlane_b32 s{T}, v{vb}")
    A(f"s_add_u32 s{T+1}, s{T+1}, 1")
    A(f"s_cmp_ge_u32 s{T+1}, {SPIN_MAX*4}")
    A(f"s_cbranch_scc1 {L}_d")
    A(f"s_cmp_ge_u32 s{T}, {target}")
    A(f"s_cbranch_scc1 {L}_d")
    if sleep: A(f"s_sleep {sleep}")
    A(f"s_branch {L}")
    A.label(L + "_d")

def conv_helper_prep():
    T = S_T
    srd(SRD_Q, S_Q, 2359296)
    A(f"s_mul_i32 s{T+4}, s72, {4*9216}")
    A(f"s_mul_i32 s{T+6}, s72, {4*TBLK}")
    A(f"s_add_u32 s{T+6}, s{T+6}, {L_TQ}")
    for i in range(4):
        dma(3, SRD_Q, f"s{T+4}", f"s{T+6}")
        A(f"s_add_u32 s{T+4}, s{T+4}, 9216")
        A(f"s_add_u32 s{T+6}, s{T+6}, {TBLK}")
    L4 = A.newlabel("L_h4"); L5 = A.newlabel("L_h5"); Le = A.newlabel("L_he")
    A(f"s_cmp_eq_u32 s{S_WAVE}, 4")
    A(f"s_cbranch_scc1 {L4}")
    A(f"s_cmp_eq_u32 s{S_WAVE}, 5")
    A(f"s_cbranch_scc1 {L5}")
    A(f"s_branch {Le}")
    A.label(L4)
    A(f"s_lshl_b32 s{T+1}, s77, 10")
    A("v_lshlrev_b32 v10, 4, v0")
    A(f"v_add_u32 v11, s{T+1}, v10")
    add64(T+2, S_WS, WS_SG)
    tagcheck_loop(lambda: A(f"global_load_dwordx4 {p4(12)}, v11, {sp(T+2)} sc1"), [13, 15], 16, 17, sleep=4)
    A("v_lshlrev_b32 v20, 16, v12"); A(f"v_and_b32 v21, s{S_MASK}, v12")
    A("v_lshlrev_b32 v22, 16, v14"); A(f"v_and_b32 v23, s{S_MASK}, v14")
    A("v_rcp_f32 v21, v21"); A("v_rcp_f32 v23, v23")
    A(f"v_add_u32 v10, {L_ST}, v10")
    A("s_nop 0")
    A(f"ds_write_b128 v10, {p4(20)}")
    A(f"s_branch {Le}")
    A.label(L5)
    A("v_and_b32 v10, 7, v0")
    A("v_lshlrev_b32 v11, 3, v10")
    add64(T+2, S_WS, WS_SEL)
    tagcheck_loop(lambda: A(f"global_load_dwordx2 v[12:13], v11, {sp(T+2)} sc1"), [13], 16, 17, sleep=4)
    A("v_and_b32 v12, 0x7ff, v12")
    A(f"s_lshl_b32 s{T+1}, s77, 7")
    A(f"v_subrev_u32 v12, s{T+1}, v12")
    A("v_cmp_gt_u32 vcc, 128, v12")
    A("v_or_b32 v13, 0x80, v10")
    A(f"v_add_u32 v12, {L_SELT}, v12")
    A("s_and_b32 vcc_lo, vcc_lo, 0xff")
    A("s_mov_b32 vcc_hi, 0")
    A("s_mov_b64 exec, vcc")
    Lk = A.newlabel("L_nsel")
    A(f"s_cbranch_execz {Lk}")
    A("ds_write_b8 v12, v13")
    A.label(Lk)
    A("s_mov_b64 exec, -1")
    A.label(Le)
    A("s_waitcnt vmcnt(0) lgkmcnt(0)")
    A(f"v_mov_b32 v10, {L_MC}")
    A("v_mov_b32 v11, 1")
    A("s_mov_b64 exec, 1")
    A("ds_add_u32 v10, v11 offset:4")
    A("s_mov_b64 exec, -1")
    stamp(5)
    lds_spin(0, 4, 10, 11, sleep=2)
    stamp(6)

def conv_epilogue():
    T = S_T
    A("; ---- epilogue ----")
    lds_spin(4, 4, 10, 11, sleep=1)
    A("v_and_b32 v2, 7, v0"); A("v_lshrrev_b32 v1, 3, v0")
    A(f"s_and_b32 s{T+1}, s{S_WAVE}, 1"); A(f"s_lshl_b32 s{T+1}, s{T+1}, 3")
    A(f"v_add_u32 v6, s{T+1}, v2")
    A(f"s_lshr_b32 s{T+2}, s{S_WAVE}, 1"); A(f"s_lshl_b32 s{T+2}, s{T+2}, 3")
    A(f"v_add_u32 v7, s{T+2}, v1")
    A(f"s_lshl_b32 s{T+1}, s76, 19")
    A(f"s_lshl_b32 s{T+2}, s77, 9")
    A(f"s_add_u32 s{T+1}, s{T+1}, s{T+2}")
    A("v_lshlrev_b32 v8, 14, v7")
    A("v_lshl_add_u32 v8, v6, 5, v8")
    A(f"v_add_u32 v8, s{T+1}, v8")
    A("v_add_u32 v9, 8192, v8")
    add64(62, S_WS, WS_YG)
    A(f"v_mul_u32_u24 v10, {TBLK}, v6")
    A("v_lshl_add_u32 v10, v7, 2, v10")
    A(f"v_add_u32 v11, {L_TQ}, v10")
    XR = 16
    for i in range(8): A(f"ds_read_b32 v{XR+i}, v11 offset:{128*i}")
    A(f"s_lshl_b32 s{T+1}, s{S_WAVE}, 11")
    A("v_lshlrev_b32 v12, 5, v0")
    A(f"v_add_u32 v12, s{T+1}, v12")
    A(f"v_add_u32 v12, {L_KVL}, v12")
    KV = 24
    A(f"ds_read_b128 {p4(KV)}, v12")
    A(f"ds_read_b128 {p4(KV+4)}, v12 offset:16")
    A("v_lshlrev_b32 v12, 6, v6")
    A(f"v_add_u32 v12, {L_ST}, v12")
    SR = 32
    for i in range(4): A(f"ds_read_b128 {p4(SR+4*i)}, v12 offset:{16*i}")
    A("v_lshlrev_b32 v12, 3, v6")
    A(f"v_add_u32 v12, {L_SELT}, v12")
    A("ds_read_b64 v[48:49], v12")
    A(f"s_lshl_b32 s{T+1}, s76, 7")
    A("v_lshlrev_b32 v13, 2, v7")
    A(f"v_add_u32 v13, s{T+1}, v13")
    A(f"global_load_dword v50, v13, {sp(S_D)}")
    YR = 64
    def ld():
        A(f"global_load_dwordx4 {p4(YR)}, v8, {sp(62)} sc1")
        A(f"global_load_dwordx4 {p4(YR+4)}, v8, {sp(62)} offset:16 sc1")
        A(f"global_load_dwordx4 {p4(YR+8)}, v9, {sp(62)} sc1")
        A(f"global_load_dwordx4 {p4(YR+12)}, v9, {sp(62)} offset:16 sc1")
    A("s_waitcnt lgkmcnt(0)")
    XN, SS = 80, 96
    for i in range(8):
        m, rs = SR+2*i, SR+2*i+1
        A(f"v_lshlrev_b32 v{SS+2*i}, 16, v{XR+i}"); A(f"v_and_b32 v{SS+2*i+1}, s{S_MASK}, v{XR+i}")
        A(f"v_sub_f32 v{XN+2*i}, v{SS+2*i}, v{m}"); A(f"v_sub_f32 v{XN+2*i+1}, v{SS+2*i+1}, v{m}")
        A(f"v_mul_f32 v{XN+2*i}, v{XN+2*i}, v{rs}"); A(f"v_mul_f32 v{XN+2*i+1}, v{XN+2*i+1}, v{rs}")
        A(f"v_pk_add_f32 {p2(SS+2*i)}, {p2(SS+2*i)}, {p2(XN+2*i)}")
    stamp(7)
    tagcheck_loop(ld, [YR+2*j+1 for j in range(8)], 14, 52, sleep=1)
    A(f"v_lshlrev_b32 v52, 16, v50"); A(f"v_and_b32 v53, s{S_MASK}, v50")
    O = 112
    for i in range(8):
        for c in range(2):
            yr = YR + 8*c + 2*(i >> 1); kr = KV + 4*c + (i >> 1)
            t0, t1 = 54 + 2*c, 55 + 2*c
            if i & 1:
                A(f"v_and_b32 v{t0}, s{S_MASK}, v{yr}"); A(f"v_and_b32 v{t1}, s{S_MASK}, v{kr}")
            else:
                A(f"v_lshlrev_b32 v{t0}, 16, v{yr}"); A(f"v_lshlrev_b32 v{t1}, 16, v{kr}")
            A(f"v_fma_f32 v{t0}, v{t1}, v{52+c}, v{t0}")
            A(f"v_fma_f32 v{SS+2*i+c}, v{XN+2*i+c}, v{t0}, v{SS+2*i+c}")
        A(f"v_cvt_pk_bf16_f32 v{O+i}, v{SS+2*i}, v{SS+2*i+1}")
    A(f"v_add_u32 v11, {L_OT}, v10")
    for i in range(8): A(f"ds_write_b32 v11, v{O+i} offset:{128*i}")
    Lx = A.newlabel("L_nt1")
    A("v_or_b32 v12, v48, v49")
    A("v_cmp_ne_u32 vcc, 0, v12")
    A("s_nop 3")
    A("s_cmp_eq_u64 vcc, 0")
    A(f"s_cbranch_scc1 {Lx}")
    add64(64, S_WS, WS_T1G)
    A(f"s_lshl_b32 s{T+1}, s76, 6")
    A("v_lshlrev_b32 v13, 1, v7")
    A(f"v_add_u32 v13, s{T+1}, v13")
    for i in range(8):
        Li = A.newlabel("L_t1i")
        A(f"v_bfe_u32 v12, v{48 + (i >> 2)}, {8*(i & 3)}, 8")
        A("v_cmp_lt_u32 vcc, 0x7f, v12")
        A(f"s_and_saveexec_b64 {sp(T+12)}, vcc")
        A(f"s_cbranch_execz {Li}")
        A("v_and_b32 v12, 7, v12")
        A("v_mul_u32_u24 v12, 576, v12")
        A("v_add_u32 v12, v12, v13")
        A("v_lshlrev_b32 v12, 3, v12")
        A(f"v_sub_f32 v56, v{SS+2*i}, v{XN+2*i}")
        A(f"v_mov_b32 v57, s{S_NONCE}")
        A(f"v_sub_f32 v58, v{SS+2*i+1}, v{XN+2*i+1}")
        A(f"v_mov_b32 v59, s{S_NONCE}")
        A(f"global_store_dwordx4 v12, {p4(56)}, {sp(64)} sc1")
        A.label(Li)
        A(f"s_mov_b64 exec, {sp(T+12)}")
    A.label(Lx)
    A("s_waitcnt lgkmcnt(0)")
    A("s_barrier")
    A(f"s_lshl_b32 s{T+1}, s{S_WAVE}, 3")
    A(f"v_add_u32 v1, s{T+1}, v1")
    A("v_lshrrev_b32 v3, 3, v1")
    A(f"v_mul_u32_u24 v3, {TBLK}, v3")
    A("v_and_b32 v4, 7, v1")
    A("v_lshl_add_u32 v3, v4, 7, v3")
    A("v_lshl_add_u32 v3, v2, 4, v3")
    A(f"v_add_u32 v3, {L_OT}, v3")
    A(f"ds_read_b128 {p4(16)}, v3")
    A(f"ds_read_b128 {p4(20)}, v3 offset:{8*TBLK}")
    A(f"v_add_u32 v4, {L_SELT}, v1")
    A("ds_read_u8 v24, v4")
    A("ds_read_u8 v25, v4 offset:64")
    srd(SRD_O, S_OUT, 2359296)
    A(f"s_mul_i32 s{T+1}, s77, {128*1152}")
    A(f"s_lshl_b32 s{T+2}, s76, 7")
    A(f"s_add_u32 s{T+1}, s{T+1}, s{T+2}")
    A("v_mul_u32_u24 v5, 1152, v1")
    A("v_lshl_add_u32 v5, v2, 4, v5")
    A(f"v_add_u32 v5, s{T+1}, v5")
    A(f"v_add_u32 v6, {64*1152}, v5")
    A("s_waitcnt lgkmcnt(0)")
    for h, (va, vs, vd) in enumerate(((5, 24, 16), (6, 25, 20))):
        A(f"v_lshlrev_b32 v{vs}, 24, v{vs}")
        A(f"v_and_b32 v{vs}, 0x80000000, v{vs}")
        A(f"v_or_b32 v{va}, v{va}, v{vs}")
        A(f"buffer_store_dwordx4 {p4(vd)}, v{va}, s[{SRD_O}:{SRD_O+3}], 0 offen")
    stamp(9)

def conv_wg():
    conv_tile()
    A(f"s_cmp_ge_u32 s{S_WAVE}, 4")
    A("s_cbranch_scc1 L_helper")
    conv_mfma_wave()
    A("s_branch L_epi")
    A.label("L_helper")
    conv_helper_prep()
    A.label("L_epi")
    conv_epilogue()
    A("s_branch L_fin")

M_WG = 0
M_WU = 73728
M_XS = 147456
XS_RS = 1168
M_H = M_XS + 8*XS_RS
H_RS = 144
M_GU = M_H + 8*H_RS
M_RED = M_GU
M_MISC = M_GU + 4096
M_END = M_MISC + 160
M_LIST = 0
S_DUMP = 16384

def moe_dma():
    T = S_T
    srd(SRD_K, S_WGT, 5308416)
    srd(SRD_V, S_WUP, 5308416)
    A("v_lshrrev_b32 v1, 3, v0")
    A("v_and_b32 v2, 7, v0")
    A("v_bfe_u32 v3, v0, 4, 1")
    A(f"s_and_b32 s{T+1}, s{S_WAVE}, 1")
    A(f"s_lshl_b32 s{T+1}, s{T+1}, 1")
    A(f"v_add_u32 v3, s{T+1}, v3")
    A("v_lshlrev_b32 v3, 1, v3")
    A("v_xor_b32 v2, v2, v3")
    A("v_mul_u32_u24 v1, 9216, v1")
    A("v_lshl_add_u32 v1, v2, 4, v1")
    A(f"s_lshl_b32 s{T+1}, s70, 7")
    A(f"v_add_u32 v1, s{T+1}, v1")
    A(f"s_mul_i32 s{T+3}, s{S_WAVE}, 73728")
    A(f"s_lshl_b32 s{T+4}, s{S_WAVE}, 10")
    A(f"s_mov_b32 s{T+5}, 0")
    L = A.newlabel("L_dma")
    A.label(L)
    A(f"s_add_u32 m0, s{T+4}, {M_WG}")
    A("s_nop 0")
    A(f"buffer_load_dwordx4 v1, s[{SRD_K}:{SRD_K+3}], s{T+3} offen {NT} lds")
    A(f"s_add_u32 m0, s{T+4}, {M_WU}")
    A(f"s_add_u32 s{T+5}, s{T+5}, 1")
    A(f"buffer_load_dwordx4 v1, s[{SRD_V}:{SRD_V+3}], s{T+3} offen {NT} lds")
    A(f"s_add_u32 s{T+3}, s{T+3}, {8*73728}")
    A(f"s_add_u32 s{T+4}, s{T+4}, {8*1024}")
    A(f"s_cmp_lt_u32 s{T+5}, 9")
    A(f"s_cbranch_scc1 {L}")

def moe_xs_addr():
    T = S_T
    A(f"s_lshl_b32 s{T+1}, s{S_WAVE}, 6")
    A(f"v_add_u32 v1, s{T+1}, v0")
    A("v_and_b32 v2, 255, v1")
    A("v_mul_u32_u24 v2, 48, v2")
    A(f"v_add_u32 v2, 0x100000, v2")
    A("v_and_b32 v3, 7, v0")
    A("v_lshlrev_b32 v3, 3, v3")
    A(f"v_add_u32 v3, {WS_SEL - WS_XSG + 0x100000}, v3")
    add64(64, S_WS, WS_XSG - 0x100000)
    A("v_mov_b32 v4, 0")
def moe_xs_loads():
    for g in range(3):
        A(f"global_load_dwordx4 {p4(16+4*g)}, v2, {sp(64)} offset:{16*g} sc1")
    A(f"global_load_dwordx2 v[28:29], v3, {sp(64)} sc1")
DRA, DRB = 64, 96
def moe_down_loads():
    T = S_T
    A("v_lshrrev_b32 v6, 4, v0")
    A("v_mul_u32_u24 v5, 9216, v6")
    A("v_and_b32 v6, 15, v0")
    A("v_lshl_add_u32 v5, v6, 3, v5")
    A(f"s_mul_i32 s{T+1}, s70, 73728")
    A(f"s_lshl_b32 s{T+2}, s{S_WAVE}, 7")
    A(f"s_add_u32 s{T+1}, s{T+1}, s{T+2}")
    A(f"v_add_u32 v5, s{T+1}, v5")
    srd(SRD_Q, S_WD, 5308416)
    def panel(R, extra):
        for ks in range(2):
            for jj in range(8):
                so = 36864*ks + 4608*(jj//4) + extra
                A(f"s_mov_b32 s{T+3}, {so}")
                r = R + 16*ks + 2*jj
                A(f"buffer_load_dwordx2 {p2(r)}, v5, s[{SRD_Q}:{SRD_Q+3}], s{T+3} offen offset:{1152*(jj%4)} {NT}")
    panel(DRA, 0)
    L = A.newlabel("L_np8")
    A(f"s_cmp_lg_u32 s{S_WAVE}, 0")
    A(f"s_cbranch_scc1 {L}")
    panel(DRB, 1024)
    A.label(L)

def down_perm(R, F):
    for ks in range(2):
        for e in range(4):
            sel = S_SELLO if (e & 1) == 0 else S_SELHI
            for q in range(4):
                A(f"v_perm_b32 v{F+16*ks+4*e+q}, v{R+16*ks+2*(2*q+1)+e//2}, v{R+16*ks+2*(2*q)+e//2}, s{sel}")

def moe_xs_finish():
    T = S_T
    L = A.newlabel("L_xs"); Ld = A.newlabel("L_xsd")
    A(f"s_mov_b32 s{T}, 0")
    A.label(L)
    A(f"v_readfirstlane_b32 s{S_NONCE}, v30")
    A("s_nop 3")
    tag_acc([19, 23, 27, 29], 10, 12)
    A(f"v_cmp_ne_u32 vcc, 0, v10")
    A(f"s_add_u32 s{T}, s{T}, 1")
    A("s_nop 3")
    A(f"s_cmp_eq_u32 s{S_NONCE}, 0")
    A(f"s_cbranch_scc1 {L}_r")
    A("s_cmp_eq_u64 vcc, 0")
    A(f"s_cbranch_scc1 {Ld}")
    A.label(L + "_r")
    A(f"s_cmp_ge_u32 s{T}, {SPIN_MAX}")
    A(f"s_cbranch_scc1 {Ld}")
    A.label(L + "_l")
    A("s_sleep 4")
    A(f"global_load_dwordx2 v[28:29], v3, {sp(64)} sc1")
    A(f"global_load_dword v30, v4, {sp(S_DBG)} sc1")
    A("s_waitcnt vmcnt(0)")
    A(f"v_readfirstlane_b32 s{S_NONCE}, v30")
    A(f"s_add_u32 s{T}, s{T}, 1")
    A("s_nop 3")
    A(f"v_cmp_ne_u32 vcc, s{S_NONCE}, v29")
    A(f"s_cmp_ge_u32 s{T}, {SPIN_MAX}")
    A(f"s_cbranch_scc1 {Ld}")
    A("s_cmp_eq_u64 vcc, 0")
    A(f"s_cbranch_scc0 {L}_l")
    A(f"s_cmp_eq_u32 s{S_NONCE}, 0")
    A(f"s_cbranch_scc1 {L}_l")
    moe_xs_loads()
    A("s_waitcnt vmcnt(0)")
    A(f"s_branch {L}")
    A.label(Ld)
    Lw = A.newlabel("L_xw")
    A(f"s_cmp_ge_u32 s{S_WAVE}, 4")
    A(f"s_cbranch_scc1 {Lw}")
    A("v_lshrrev_b32 v6, 5, v1")
    A("v_and_b32 v7, 31, v1")
    A(f"v_mul_u32_u24 v6, {XS_RS}, v6")
    A("v_mul_u32_u24 v7, 36, v7")
    A("v_add_u32 v6, v6, v7")
    A(f"v_add_u32 v6, {M_XS}, v6")
    A("ds_write2_b32 v6, v16, v17 offset0:0 offset1:1")
    A("ds_write2_b32 v6, v18, v20 offset0:2 offset1:3")
    A("ds_write2_b32 v6, v21, v22 offset0:4 offset1:5")
    A("ds_write2_b32 v6, v24, v25 offset0:6 offset1:7")
    A("ds_write_b32 v6, v26 offset:32")
    A(f"s_cmp_lg_u32 s{S_WAVE}, 0")
    A(f"s_cbranch_scc1 {Lw}")
    A(f"v_and_b32 v18, s{S_MASK}, v28")
    A(f"v_mul_f32 v18, 0x{f32bits(-1.4426950408889634):08x}, v18")
    A("v_exp_f32 v18, v18")
    A("s_nop 0")
    A("v_add_f32 v18, 1.0, v18")
    A("v_rcp_f32 v18, v18")
    A("s_nop 0")
    rnd(18)
    A("v_lshlrev_b32 v6, 2, v0")
    A(f"v_add_u32 v6, {M_MISC+32}, v6")
    A("s_mov_b64 exec, 0xff")
    A("ds_write_b32 v6, v28")
    A("ds_write_b32 v6, v18 offset:32")
    A("s_mov_b64 exec, -1")
    A.label(Lw)

def moe_gateup():
    T = S_T
    A(f"s_lshr_b32 s{T+1}, s{S_WAVE}, 2")
    A(f"s_and_b32 s{T+2}, s{S_WAVE}, 3")
    A("v_lshrrev_b32 v6, 4, v0")
    A("v_bfe_u32 v7, v0, 2, 2")
    A("v_and_b32 v8, 3, v0")
    A("v_lshrrev_b32 v9, 1, v7")
    A("v_and_b32 v10, 1, v6")
    A("v_lshl_add_u32 v9, v10, 1, v9")
    A("v_lshlrev_b32 v9, 1, v9")
    A("v_lshrrev_b32 v10, 1, v8")
    A(f"s_lshl_b32 s{T+3}, s{T+2}, 1")
    A(f"v_add_u32 v10, s{T+3}, v10")
    A("v_xor_b32 v10, v10, v9")
    A("v_lshlrev_b32 v2, 10, v6")
    A("v_lshl_add_u32 v2, v7, 7, v2")
    A("v_lshl_add_u32 v2, v10, 4, v2")
    A("v_and_b32 v8, 1, v8")
    A("v_lshl_add_u32 v2, v8, 3, v2")
    A(f"s_mul_i32 s{T+3}, s{T+1}, {M_WU}")
    A(f"v_add_u32 v2, s{T+3}, v2")
    A(f"v_add_u32 v5, {4096*9}, v2")
    A("v_and_b32 v3, 7, v0")
    A(f"v_mul_u32_u24 v3, {XS_RS}, v3")
    A("v_lshl_add_u32 v3, v6, 4, v3")
    A(f"v_add_u32 v3, {M_XS}, v3")
    def rd(t):
        b = 8*(t % 8)
        a, o = (2, 4096*t) if t < 9 else (5, 4096*(t-9))
        A(f"ds_read_b64_tr_b16 a[{b}:{b+1}], v{a} offset:{o}")
        A(f"ds_read_b64_tr_b16 a[{b+2}:{b+3}], v{a} offset:{o+512}")
        A(f"ds_read_b128 a[{b+4}:{b+7}], v3 offset:{64*t}")
    for t in range(5): rd(t)
    for t in range(18):
        rem = min(17, t+4) - t
        A(f"s_waitcnt lgkmcnt({3*rem})")
        b = 8*(t % 8)
        cin = "0" if t == 0 else "v[8:11]"
        A(f"v_mfma_f32_16x16x32_bf16 v[8:11], a[{b}:{b+3}], a[{b+4}:{b+7}], {cin}")
        if t + 5 < 18: rd(t+5)
    A("v_and_b32 v3, 15, v0")
    A("v_lshlrev_b32 v4, 8, v3")
    A("v_lshl_add_u32 v4, v6, 4, v4")
    A(f"s_lshl_b32 s{T+3}, s{T+1}, 11")
    A(f"s_lshl_b32 s{T+4}, s{T+2}, 6")
    A(f"s_add_u32 s{T+3}, s{T+3}, s{T+4}")
    A(f"s_add_u32 s{T+3}, s{T+3}, {M_GU}")
    A(f"v_add_u32 v4, s{T+3}, v4")
    A("v_cmp_gt_u32 vcc, 8, v3")
    A(f"s_and_saveexec_b64 {sp(T+12)}, vcc")
    A("s_nop 2")
    A(f"ds_write_b128 v4, {p4(8)}")
    A(f"s_mov_b64 exec, {sp(T+12)}")

def moe_h_and_down_stage():
    T = S_T
    A("v_lshlrev_b32 v2, 2, v1")
    A(f"v_add_u32 v2, {M_GU}, v2")
    A("ds_read_b32 v8, v2")
    A("ds_read_b32 v9, v2 offset:2048")
    A("v_lshrrev_b32 v3, 6, v1")
    A(f"v_mul_u32_u24 v3, {H_RS}, v3")
    A("v_lshl_add_u32 v3, v0, 1, v3")
    A(f"v_add_u32 v3, {M_H}, v3")
    A("s_waitcnt lgkmcnt(0)")
    rnd(8); rnd(9)
    A(f"v_mul_f32 v10, 0x{f32bits(-1.4426950408889634):08x}, v8")
    A("v_exp_f32 v10, v10")
    A("s_nop 0")
    A("v_add_f32 v10, 1.0, v10")
    A("v_rcp_f32 v10, v10")
    A("s_nop 0")
    A("v_mul_f32 v10, v8, v10")
    rnd(10)
    A("v_mul_f32 v10, v10, v9")
    A("v_cvt_pk_bf16_f32 v10, v10, v10")
    A("ds_write_b16 v3, v10")
    A("s_waitcnt vmcnt(0)")
    down_perm(DRA, 32)
    L = A.newlabel("L_np8b")
    A(f"s_cmp_lg_u32 s{S_WAVE}, 0")
    A(f"s_cbranch_scc1 {L}")
    down_perm(DRB, 64)
    A.label(L)

def moe_down():
    T = S_T
    A("v_and_b32 v2, 7, v0")
    A(f"v_mul_u32_u24 v2, {H_RS}, v2")
    A("v_lshrrev_b32 v6, 4, v0")
    A("v_lshl_add_u32 v2, v6, 4, v2")
    A(f"v_add_u32 v2, {M_H}, v2")
    A(f"ds_read_b128 {p4(16)}, v2")
    A(f"ds_read_b128 {p4(20)}, v2 offset:64")
    A("v_and_b32 v4, 15, v0")
    A("v_lshlrev_b32 v5, 4, v4")
    A("v_lshl_add_u32 v5, v6, 9, v5")
    A(f"s_mul_i32 s{T+1}, s70, 18432")
    A(f"s_lshl_b32 s{T+2}, s{S_WAVE}, 11")
    A(f"s_add_u32 s{T+1}, s{T+1}, s{T+2}")
    A(f"v_add_u32 v5, s{T+1}, v5")
    add64(T+2, S_WS, WS_PART)
    A(f"s_mov_b32 s{T+4}, 0x07060503"); A(f"s_mov_b32 s{T+5}, 0x06050302"); A(f"s_mov_b32 s{T+6}, 0x05030201")
    A("v_cmp_gt_u32 vcc, 8, v4")
    A(f"s_mov_b64 {sp(T+12)}, vcc")
    A("s_waitcnt lgkmcnt(0)")
    def panel(F, ACC, G, vaddr):
        for e in range(4):
            A(f"v_mfma_f32_16x16x32_bf16 {p4(ACC+4*e)}, {p4(F+4*e)}, {p4(16)}, 0")
        for e in range(4):
            A(f"v_mfma_f32_16x16x32_bf16 {p4(ACC+4*e)}, {p4(F+16+4*e)}, {p4(20)}, {p4(ACC+4*e)}")
        A("s_nop 7"); A("s_nop 1")
        for r in range(4):
            g = G + 4*r
            a, b, c, d = ACC+r, ACC+4+r, ACC+8+r, ACC+12+r
            A(f"v_perm_b32 v{g}, v{a}, v{b}, s{T+4}")
            A(f"v_perm_b32 v{g+1}, v{b}, v{c}, s{T+5}")
            A(f"v_perm_b32 v{g+2}, v{c}, v{d}, s{T+6}")
            A(f"v_mov_b32 v{g+3}, s{S_NONCE}")
        A(f"s_mov_b64 exec, {sp(T+12)}")
        for r in range(4):
            A(f"global_store_dwordx4 v{vaddr}, {p4(G+4*r)}, {sp(T+2)} offset:{128*r} sc1")
        A("s_mov_b64 exec, -1")
    panel(32, 96, 112, 5)
    L = A.newlabel("L_np8c")
    A(f"s_cmp_lg_u32 s{S_WAVE}, 0")
    A(f"s_cbranch_scc1 {L}")
    A(f"v_add_u32 v7, {8*2048}, v5")
    panel(64, 96, 32, 7)
    A.label(L)

def moe_reduce():
    T = S_T
    A("v_lshrrev_b32 v6, 4, v0")
    A(f"s_mul_i32 s{T+1}, s{S_WAVE}, 9")
    A(f"v_add_u32 v1, s{T+1}, v6")
    A(f"v_mul_u32_u24 v1, 18432, v1")
    A("v_and_b32 v2, 15, v0")
    A("v_lshl_add_u32 v1, v2, 4, v1")
    A(f"s_lshl_b32 s{T+1}, s70, 8")
    A(f"v_add_u32 v1, s{T+1}, v1")
    A(f"v_add_u32 v3, {4*18432}, v1")
    A(f"v_mul_u32_u24 v4, 18432, v6")
    A(f"v_sub_u32 v4, v1, v4")
    A(f"v_add_u32 v4, {8*18432}, v4")
    A("v_lshrrev_b32 v50, 2, v0")
    A("v_and_b32 v51, 3, v0")
    A(f"s_lshl_b32 s{T+1}, s70, 4")
    A(f"v_add_u32 v52, s{T+1}, v50")
    A("v_and_b32 v53, 7, v52")
    A("v_lshrrev_b32 v54, 3, v52")
    A("v_lshl_add_u32 v54, v54, 2, v51")
    A("v_mul_u32_u24 v55, 576, v53")
    A("v_add_u32 v55, v55, v54")
    A("v_lshlrev_b32 v55, 3, v55")
    A(f"v_add_u32 v55, {WS_T1G}, v55")
    add64(T+2, S_WS, WS_PART)
    def ld():
        A(f"global_load_dwordx4 {p4(16)}, v1, {sp(T+2)} sc1")
        A(f"global_load_dwordx4 {p4(20)}, v3, {sp(T+2)} sc1")
        A(f"global_load_dwordx4 {p4(24)}, v4, {sp(T+2)} sc1")
        A(f"global_load_dwordx2 v[28:29], v55, {sp(S_WS)} sc1")
    tagcheck_loop(ld, [19, 23, 27, 29], 10, 12, sleep=1)
    stamp(8)
    tl(12, 151, 0)
    A(f"s_mov_b32 s{T+4}, 0x0403020c"); A(f"s_mov_b32 s{T+5}, 0x0504030c"); A(f"s_mov_b32 s{T+6}, 0xffffff00")
    U = 32
    for i in range(3):
        g = 16 + 4*i; u = U + 4*i
        A(f"v_and_b32 v{u}, s{T+6}, v{g}")
        A(f"v_perm_b32 v{u+1}, v{g}, v{g+1}, s{T+4}")
        A(f"v_perm_b32 v{u+2}, v{g+1}, v{g+2}, s{T+5}")
        A(f"v_lshlrev_b32 v{u+3}, 8, v{g+2}")
    for r in range(4):
        A(f"v_add_f32 v{U+r}, v{U+r}, v{U+4+r}")
    for swap in ("v_permlane32_swap_b32", "v_permlane16_swap_b32"):
        for r in range(4): A(f"v_mov_b32 v{44+r}, v{U+r}")
        A("s_nop 1")
        for r in range(4): A(f"{swap} v{U+r}, v{44+r}")
        for r in range(4): A(f"v_add_f32 v{U+r}, v{U+r}, v{44+r}")
    for r in range(4):
        A(f"v_add_f32 v{U+r}, v{U+r}, v{U+8+r}")
    A(f"s_lshl_b32 s{T+1}, s{S_WAVE}, 8")
    A("v_lshlrev_b32 v5, 4, v2")
    A(f"v_add_u32 v5, s{T+1}, v5")
    A(f"v_add_u32 v5, {M_RED}, v5")
    A("s_mov_b64 exec, 0xffff")
    A(f"ds_write_b128 v5, {p4(U)}")
    A("s_mov_b64 exec, -1")
    A("s_waitcnt lgkmcnt(0)")
    A("s_barrier")
    L = A.newlabel("L_nofin")
    A(f"s_cmp_lg_u32 s{S_WAVE}, 0")
    A(f"s_cbranch_scc1 {L}")
    A("v_lshlrev_b32 v6, 4, v50")
    A("v_lshl_add_u32 v6, v51, 2, v6")
    A(f"v_add_u32 v6, {M_RED}, v6")
    for w in range(8): A(f"ds_read_b32 v{16+w}, v6 offset:{256*w}")
    A(f"v_mul_u32_u24 v7, {XS_RS}, v53")
    A("v_lshl_add_u32 v7, v54, 1, v7")
    A(f"v_add_u32 v7, {M_XS}, v7")
    A("ds_read_u16 v24, v7")
    A("v_lshlrev_b32 v8, 2, v53")
    A(f"v_add_u32 v8, {M_MISC}, v8")
    A("ds_read_b32 v25, v8 offset:32")
    A("ds_read_b32 v26, v8 offset:64")
    A("v_mov_b32 v5, v54")
    A("s_waitcnt lgkmcnt(0)")
    A("v_add_f32 v16, v16, v17"); A("v_add_f32 v18, v18, v19"); A("v_add_f32 v20, v20, v21"); A("v_add_f32 v22, v22, v23")
    A("v_add_f32 v16, v16, v18"); A("v_add_f32 v20, v20, v22"); A("v_add_f32 v16, v16, v20")
    rnd(16)
    A("v_mul_f32 v16, v16, v26")
    rnd(16)
    A("v_lshlrev_b32 v24, 16, v24")
    A("v_add_f32 v16, v24, v16")
    rnd(16)
    A("v_add_f32 v16, v28, v16")
    A("v_cvt_pk_bf16_f32 v16, v16, v16")
    A("v_and_b32 v25, 0x7ff, v25")
    A("v_mul_u32_u24 v25, 1152, v25")
    A("v_lshl_add_u32 v25, v5, 1, v25")
    A(f"global_store_short v25, v16, {sp(S_OUT)}")
    A.label(L)

def lds_init_list():
    T = S_T
    A(f"s_lshl_b32 s{T+1}, s{S_WAVE}, 10")
    A("v_lshlrev_b32 v110, 4, v0")
    A(f"v_add_u32 v111, s{T+1}, v110")
    A(f"v_add_u32 v111, {M_LIST}, v111")
    for i in range(4): A(f"v_mov_b32 v{112+i}, 0xff800000")
    A(f"ds_write_b128 v111, {p4(112)}")
    L0 = A.newlabel("L_ni")
    A(f"s_cmp_lg_u32 s{S_WAVE}, 0")
    A(f"s_cbranch_scc1 {L0}")
    A(f"v_add_u32 v111, {M_LIST+8192}, v110")
    A("s_mov_b64 exec, 0xf")
    A(f"ds_write_b128 v111, {p4(112)}")
    A("s_mov_b64 exec, -1")
    for i in range(4): A(f"v_mov_b32 v{116+i}, 0")
    A(f"v_add_u32 v111, {M_MISC}, v110")
    A("s_mov_b64 exec, 0x3ff")
    A(f"ds_write_b128 v111, {p4(116)}")
    A("s_mov_b64 exec, -1")
    A.label(L0)

def sel_top8():
    T = S_T
    A(f"s_lshl_b32 s{T+1}, s{S_WAVE}, 6")
    A(f"v_add_u32 v1, s{T+1}, v0")
    A("v_lshlrev_b32 v2, 5, v1")
    add64(T+2, S_WS, WS_RG)
    K = 16
    def ld():
        for i in range(2):
            A(f"global_load_dwordx4 {p4(K+4*i)}, v2, {sp(T+2)} offset:{16*i} sc1")
    tagcheck_loop(ld, [K+2*i+1 for i in range(4)], 10, 12, sleep=1)
    stamp(5)
    tl(9, 255, 0)
    keys = [K+2*i for i in range(4)]
    A(f"v_max3_f32 v40, v{keys[0]}, v{keys[1]}, v{keys[2]}")
    A(f"v_max_f32 v40, v40, v{keys[3]}")
    for sh in (8, 4, 2, 1):
        A("s_nop 1")
        A(f"v_max_f32_dpp v40, v40, v40 row_ror:{sh} row_mask:0xf bank_mask:0xf")
    A("s_nop 1")
    A(f"v_readlane_b32 s{T+4}, v40, 16")
    A(f"v_readlane_b32 s{T+5}, v40, 32")
    A(f"v_readlane_b32 s{T+6}, v40, 48")
    A("s_nop 1")
    A(f"v_max_f32 v40, s{T+4}, v40")
    A(f"v_max_f32 v40, s{T+5}, v40")
    A(f"v_max_f32 v40, s{T+6}, v40")
    A(f"s_lshl_b32 s{T+4}, s{S_WAVE}, 2")
    A(f"s_add_u32 s{T+4}, s{T+4}, {M_MISC+96}")
    A(f"v_mov_b32 v43, s{T+4}")
    A("s_mov_b64 exec, 1")
    A(f"ds_write_b32 v43, v40")
    A("s_mov_b64 exec, -1")
    A("s_waitcnt lgkmcnt(0)")
    A("s_barrier")
    A(f"v_mov_b32 v43, {M_MISC+96}")
    A(f"ds_read_b128 {p4(44)}, v43")
    A(f"ds_read_b128 {p4(48)}, v43 offset:16")
    A("s_waitcnt lgkmcnt(0)")
    A("v_min3_f32 v40, v44, v45, v46")
    A("v_min3_f32 v41, v47, v48, v49")
    A("v_min3_f32 v40, v40, v50, v51")
    A("v_min_f32 v40, v40, v41")
    A("v_mov_b32 v41, 0")
    for i in range(4):
        A(f"v_cmp_ge_f32 {sp(T+4+2*i)}, v{keys[i]}, v40")
    for q in range(4):
        A(f"v_addc_co_u32 v41, vcc, 0, v41, {sp(T+4+2*q)}")
    A(f"v_mov_b32 v43, {M_MISC}")
    A("v_cmp_lt_u32 vcc, 0, v41")
    A(f"s_and_saveexec_b64 {sp(T+12)}, vcc")
    A("ds_add_rtn_u32 v42, v43, v41")
    A(f"s_mov_b64 exec, {sp(T+12)}")
    A("s_waitcnt lgkmcnt(0)")
    A("v_lshlrev_b32 v42, 2, v42")
    A(f"v_add_u32 v42, {M_LIST}, v42")
    A(f"v_mov_b32 v43, {S_DUMP}")
    for i in range(4):
        A(f"v_cndmask_b32 v44, v43, v42, {sp(T+4+2*i)}")
        A(f"v_cndmask_b32 v45, 0, 4, {sp(T+4+2*i)}")
        A(f"ds_write_b32 v44, v{keys[i]}")
        A(f"v_add_u32 v42, v42, v45")
    A("s_waitcnt lgkmcnt(0)")
    A("s_barrier")
    A(f"v_mov_b32 v43, {M_MISC}")
    A("ds_read_b32 v44, v43")
    A("s_waitcnt lgkmcnt(0)")
    A(f"v_readfirstlane_b32 s{T+8}, v44")
    A(f"s_mov_b32 s{T+9}, 0")
    Lc = A.newlabel("L_chunk"); Lj = A.newlabel("L_j")
    A.label(Lc)
    A(f"v_add_u32 v44, s{T+9}, v0")
    A("v_lshlrev_b32 v44, 2, v44")
    A(f"v_add_u32 v44, {M_LIST}, v44")
    A("ds_read_b32 v46, v44")
    A("v_mov_b32 v47, 0")
    A(f"v_mov_b32 v45, {M_LIST}")
    A(f"s_mov_b32 s{T+10}, 0")
    A.label(Lj)
    A(f"ds_read_b128 {p4(48)}, v45")
    A(f"ds_read_b128 {p4(52)}, v45 offset:16")
    A("v_add_u32 v45, 32, v45")
    A(f"s_add_u32 s{T+10}, s{T+10}, 8")
    A("s_waitcnt lgkmcnt(1)")
    for q in range(4):
        A(f"v_cmp_gt_f32 {sp(T+2*q)}, v{48+q}, v46")
    for q in range(4):
        A(f"v_addc_co_u32 v47, vcc, 0, v47, {sp(T+2*q)}")
    A("s_waitcnt lgkmcnt(0)")
    for q in range(4):
        A(f"v_cmp_gt_f32 {sp(T+2*q)}, v{52+q}, v46")
    for q in range(4):
        A(f"v_addc_co_u32 v47, vcc, 0, v47, {sp(T+2*q)}")
    A(f"s_cmp_lt_u32 s{T+10}, s{T+8}")
    A(f"s_cbranch_scc1 {Lj}")
    A(f"v_add_u32 v44, s{T+9}, v0")
    A(f"v_cmp_gt_u32 vcc, s{T+8}, v44")
    A(f"v_cmp_gt_u32 {sp(T)}, 8, v47")
    A("s_nop 1")
    A(f"s_and_b64 vcc, vcc, {sp(T)}")
    A(f"s_and_saveexec_b64 {sp(T+12)}, vcc")
    A("v_lshlrev_b32 v47, 2, v47")
    A(f"v_add_u32 v47, {M_MISC+32}, v47")
    A("ds_write_b32 v47, v46")
    A(f"s_mov_b64 exec, {sp(T+12)}")
    A(f"s_add_u32 s{T+9}, s{T+9}, 64")
    A(f"s_cmp_lt_u32 s{T+9}, s{T+8}")
    A(f"s_cbranch_scc1 {Lc}")
    A("s_waitcnt lgkmcnt(0)")
    stamp(6)

def sel_xs():
    T = S_T
    A(f"s_lshl_b32 s{T+1}, s{S_WAVE}, 2")
    A(f"s_add_u32 s{T+1}, s{T+1}, {M_MISC+32}")
    A(f"v_mov_b32 v1, s{T+1}")
    A("ds_read_b32 v16, v1")
    A("s_waitcnt lgkmcnt(0)")
    add64(T+2, S_WS, WS_SG)
    A("s_mov_b32 exec_hi, 0")
    A(f"v_and_b32 v18, 0x7ff, v16")
    A(f"v_mul_u32_u24 v20, 1152, v18")
    A(f"v_mul_u32_u24 v21, 36, v0")
    A(f"v_add_u32 v20, v20, v21")
    A(f"global_load_dwordx4 {p4(24)}, v20, {sp(S_Q)}")
    A(f"global_load_dwordx4 {p4(28)}, v20, {sp(S_Q)} offset:16")
    A(f"global_load_dword v32, v20, {sp(S_Q)} offset:32")
    A(f"v_lshlrev_b32 v22, 3, v18")
    A(f"v_mov_b32 v17, s{S_NONCE}")
    add64(T+4, S_WS, WS_SEL)
    A(f"s_lshl_b32 s{T+6}, s{S_WAVE}, 3")
    A(f"v_mov_b32 v19, s{T+6}")
    A("s_mov_b64 exec, 1")
    A(f"global_store_dwordx2 v19, v[16:17], {sp(T+4)} sc1")
    A("s_mov_b64 exec, 0xffffffff")
    tagcheck_loop(lambda: A(f"global_load_dwordx2 v[40:41], v22, {sp(T+2)} sc1"), [41], 10, 12)
    A(f"v_lshlrev_b32 v44, 16, v40")
    A(f"v_and_b32 v45, s{S_MASK}, v40")
    A("v_rcp_f32 v46, v45")
    A("s_nop 0")
    A("v_fma_f32 v47, -v45, v46, 1.0")
    A("v_fma_f32 v46, v47, v46, v46")
    G = 52
    for i in range(9):
        r = 24 + i
        t = 48 + 2*(i & 1)
        A(f"v_lshlrev_b32 v{t}, 16, v{r}")
        A(f"v_and_b32 v{t+1}, s{S_MASK}, v{r}")
        A(f"v_pk_add_f32 {p2(t)}, {p2(t)}, v[44:45] op_sel_hi:[1,0] neg_lo:[0,1] neg_hi:[0,1]")
        rnd(t); rnd(t+1)
        A(f"v_pk_mul_f32 {p2(t)}, {p2(t)}, v[46:47] op_sel_hi:[1,0]")
        A(f"v_cvt_pk_bf16_f32 v{G + 4*(i//3) + i%3}, v{t}, v{t+1}")
    for g in range(3): A(f"v_mov_b32 v{G+4*g+3}, s{S_NONCE}")
    A(f"s_mul_i32 s{T+4}, s{S_WAVE}, 1536")
    A("v_mul_u32_u24 v50, 48, v0")
    A(f"v_add_u32 v50, s{T+4}, v50")
    add64(T+2, S_WS, WS_XSG)
    for g in range(3):
        A(f"global_store_dwordx4 v50, {p4(G+4*g)}, {sp(T+2)} offset:{16*g} sc1")
    A("s_mov_b64 exec, -1")
    stamp(7)
    tl(10, 255, 7)

def spare_wg():
    T = S_T
    A(f"s_sub_u32 s69, s69, {NMOE}")
    Ls = A.newlabel("L_sln")
    A(f"s_cmp_ge_u32 s{S_WAVE}, 2")
    A(f"s_cbranch_scc1 {Ls}")
    A("s_lshl_b32 s68, s69, 3")
    A("s_add_u32 s68, s68, 1728")
    A(f"s_lshl_b32 s{T+1}, s{S_WAVE}, 2")
    A(f"s_add_u32 s68, s68, s{T+1}")
    ln_loads(68, LN_Q, True)
    A("s_waitcnt vmcnt(0)")
    ln_compute_publish(LN_Q, 3, True, hook=lambda: get_nonce(124))
    A.label(Ls)
    stamp(4)
    A(f"s_cmp_lg_u32 s69, {NLN-1}")
    A("s_cbranch_scc1 L_fin")
    lds_init_list()
    get_nonce(124)
    A("s_waitcnt lgkmcnt(0)")
    A("s_barrier")
    sel_top8()
    sel_xs()
    A("s_branch L_fin")

def moe_wg():
    T = S_T
    A(f"s_sub_u32 s69, s{S_WG}, {NCONV}")
    A(f"s_cmp_ge_u32 s69, {NMOE}")
    A("s_cbranch_scc1 L_spare")
    A("s_and_b32 s70, s69, 7")
    A("s_mul_i32 s70, s70, 9")
    A(f"s_lshr_b32 s{T+1}, s69, 3")
    A(f"s_add_u32 s70, s70, s{T+1}")
    if "mdelay" in OPTS:
        for _ in range(int(os.environ.get("MD", "1"))): A("s_sleep 64")
    moe_dma()
    moe_xs_addr()
    A("s_waitcnt vmcnt(4)")
    stamp(4)
    moe_xs_loads()
    A(f"global_load_dword v30, v4, {sp(S_DBG)} sc1")
    moe_down_loads()
    Lq = A.newlabel("L_w32")
    A(f"s_cmp_lg_u32 s{S_WAVE}, 0")
    A(f"s_cbranch_scc1 {Lq}")
    A("s_waitcnt vmcnt(32)")
    A.label(Lq)
    A(f"s_cmp_eq_u32 s{S_WAVE}, 0")
    A(f"s_cbranch_scc1 {Lq}_b")
    A("s_waitcnt vmcnt(16)")
    A.label(Lq + "_b")
    stamp(5)
    moe_xs_finish()
    stamp(6)
    tl(11, 151, 7)
    A("s_waitcnt lgkmcnt(0)")
    A("s_barrier")
    moe_gateup()
    A("s_waitcnt lgkmcnt(0)")
    A("s_barrier")
    moe_h_and_down_stage()
    A("s_waitcnt lgkmcnt(0)")
    A("s_barrier")
    stamp(7)
    moe_down()
    moe_reduce()
    A("s_branch L_fin")
    A.label("L_spare")
    spare_wg()

def main():
    prologue()
    A(f"s_cmp_ge_u32 s{S_WG}, {NCONV}")
    A("s_cbranch_scc1 L_moe")
    conv_wg()
    A.label("L_moe")
    moe_wg()
    A.label("L_fin")
    tl(15, 7, 7)
    prof_end()
    A.label("L_end")
    A("s_endpgm")

main()
K = NAME + "_kernel"
LDS = max(L_CONV_END, M_END)
txt = HDR + f"; @launch grid=(256,1,1) block=(512,1,1) lds={LDS}\n" + '.amdgcn_target "amdgcn-amd-amdhsa--gfx950"\n.text\n' + head(K) + A.text() + kd(K, 256, 102, 128, "  .amdhsa_float_denorm_mode_32 3\n")
open(OUTFN, "w").write(txt)
print("wrote", OUTFN, len(txt), "LDS", LDS)
```

```python
import sys, struct, os
sys.path.insert(0, "dev")
from asmlib import *

OUTFN = sys.argv[1] if len(sys.argv) > 1 else "k.s"
OPTS = set(sys.argv[2:])
PROF = "prof" in OPTS
NT = "nt" if "nt" in OPTS else ""

WS_KVT = 0x000000
WS_XT = 0x240000
WS_RG = 0x480000
WS_SG = 0x484000
WS_FL = 0x488000
WS_FL2 = 0x488800
WS_SEL = 0x489800
WS_T1G = 0x48A000
WS_XSG = 0x494000
WS_PART = 0x4A0000
WS_PROF = 0x800000
WS_YG = 0x1000000
SPIN_MAX = 400000
NCONV, NMOE = 144, 72
NLN = 40

S_WG, S_WAVE = 2, 3
S_Q, S_K, S_V, S_SK, S_H, S_D, S_BX, S_WR, S_WGT, S_WUP, S_WD, S_OUT, S_DBG, S_WS = 4, 6, 8, 10, 12, 14, 16, 18, 20, 22, 24, 26, 28, 30
SRD_K, SRD_V, SRD_Q, SRD_O = 32, 36, 40, 44
S_NONCE = 48
S_MASK, S_SELLO, S_SELHI = 50, 51, 52
S_T = 54

A = Asm()
def f32bits(x): return struct.unpack("<I", struct.pack("<f", x))[0]
def p2(r): return f"v[{r}:{r+1}]"
def p4(r): return f"v[{r}:{r+3}]"
def sp(r): return f"s[{r}:{r+1}]"

NSTAMP = 10
def stamp(i):
    if PROF: A(f"s_memtime s[{80+2*i}:{81+2*i}]")
def prof_begin():
    if PROF:
        A("s_memrealtime s[100:101]")
        stamp(0)
        for i in range(1, NSTAMP):
            A(f"s_mov_b64 s[{80+2*i}:{81+2*i}], 0")
def prof_end():
    if not PROF: return
    A(f"s_memrealtime s[{S_T+2}:{S_T+3}]")
    A("s_waitcnt lgkmcnt(0)")
    A(f"s_lshl_b32 s{S_T}, s{S_WG}, 3")
    A(f"s_add_u32 s{S_T}, s{S_T}, s{S_WAVE}")
    A(f"s_lshl_b32 s{S_T}, s{S_T}, 6")
    A(f"s_add_u32 s{S_T}, s{S_T}, {WS_PROF}")
    A(f"v_mov_b32 v1, s{S_T}")
    A("s_mov_b64 exec, 1")
    A("v_mov_b32 v2, s100")
    A(f"global_store_dword v1, v2, {sp(S_WS)}")
    A(f"v_mov_b32 v2, s{S_T+2}")
    A(f"global_store_dword v1, v2, {sp(S_WS)} offset:4")
    for i in range(1, NSTAMP):
        A(f"s_sub_u32 s{S_T+1}, s{80+2*i}, s80")
        A(f"v_mov_b32 v2, s{S_T+1}")
        A(f"global_store_dword v1, v2, {sp(S_WS)} offset:{4+4*i}")
    A("s_mov_b64 exec, -1")

TL = "tl" in OPTS
TLSET = os.environ.get("TLSET", "A")
def tl(slot, wg, wave, setname="A"):
    if not TL or setname != TLSET: return
    L = A.newlabel("L_tl")
    A(f"s_cmp_lg_u32 s{S_WG}, {wg}")
    A(f"s_cbranch_scc1 {L}")
    A(f"s_cmp_lg_u32 s{S_WAVE}, {wave}")
    A(f"s_cbranch_scc1 {L}")
    A("s_memrealtime s[98:99]")
    A("s_mov_b64 s[100:101], exec")
    A("s_mov_b64 exec, 1")
    A("v_readfirstlane_b32 s96, v126")
    A("v_readfirstlane_b32 s97, v127")
    A(f"v_mov_b32 v126, {4*slot}")
    A("s_waitcnt lgkmcnt(0)")
    A("v_mov_b32 v127, s98")
    A(f"global_store_dword v126, v127, {sp(S_DBG)}")
    A("s_nop 4")
    A("v_mov_b32 v126, s96")
    A("v_mov_b32 v127, s97")
    A("s_mov_b64 exec, s[100:101]")
    A.label(L)

def rnd(v, src=None):
    A(f"v_cvt_pk_bf16_f32 v{v}, 0, v{v if src is None else src}")
def srd(dst, base, nbytes):
    A(f"s_mov_b32 s{dst}, s{base}")
    A(f"s_and_b32 s{dst+1}, s{base+1}, 0xffff")
    A(f"s_mov_b32 s{dst+2}, {nbytes}")
    A(f"s_mov_b32 s{dst+3}, 0x00020000")
def add64(dst, src, imm):
    A(f"s_add_u32 s{dst}, s{src}, {imm}")
    A(f"s_addc_u32 s{dst+1}, s{src+1}, 0")

def get_nonce(vtmp):
    L = A.newlabel("L_nonce"); Ld = A.newlabel("L_nonced")
    A(f"v_mov_b32 v{vtmp}, 0")
    A(f"s_mov_b32 s{S_T}, 0")
    A.label(L)
    A(f"global_load_dword v{vtmp+1}, v{vtmp}, {sp(S_DBG)} sc1")
    A(f"s_waitcnt vmcnt(0)")
    A(f"v_readfirstlane_b32 s{S_NONCE}, v{vtmp+1}")
    A(f"s_add_u32 s{S_T}, s{S_T}, 1")
    A(f"s_cmp_lg_u32 s{S_NONCE}, 0")
    A(f"s_cbranch_scc1 {Ld}")
    A(f"s_cmp_lt_u32 s{S_T}, {SPIN_MAX}")
    A(f"s_cbranch_scc1 {L}")
    A.label(Ld)

def tag_acc(tagregs, vacc, vtmp):
    A(f"v_xor_b32 v{vacc}, s{S_NONCE}, v{tagregs[0]}")
    rest = tagregs[1:]
    i = 0
    while i < len(rest):
        if i + 1 < len(rest):
            A(f"v_xor_b32 v{vtmp}, s{S_NONCE}, v{rest[i]}")
            A(f"v_xor_b32 v{vtmp+1}, s{S_NONCE}, v{rest[i+1]}")
            A(f"v_or3_b32 v{vacc}, v{vacc}, v{vtmp}, v{vtmp+1}")
            i += 2
        else:
            A(f"v_xor_b32 v{vtmp}, s{S_NONCE}, v{rest[i]}")
            A(f"v_or_b32 v{vacc}, v{vacc}, v{vtmp}")
            i += 1

def tagcheck_loop(load_fn, tagregs, vacc, vtmp, sleep=1):
    T = S_T
    L = A.newlabel("L_pl"); Ld = A.newlabel("L_pld")
    A(f"s_mov_b32 s{T}, 0")
    A.label(L)
    load_fn()
    A("s_waitcnt vmcnt(0)")
    tag_acc(tagregs, vacc, vtmp)
    A(f"v_cmp_ne_u32 vcc, 0, v{vacc}")
    A(f"s_add_u32 s{T}, s{T}, 1")
    A("s_nop 3")
    A("s_cmp_eq_u64 vcc, 0")
    A(f"s_cbranch_scc1 {Ld}")
    if sleep: A(f"s_sleep {sleep}")
    A(f"s_cmp_lt_u32 s{T}, {SPIN_MAX}")
    A(f"s_cbranch_scc1 {L}")
    A.label(Ld)

def nonce_writer():
    L = A.newlabel("L_nw")
    A(f"s_cmp_ge_u32 s{S_WG}, 8")
    A(f"s_cbranch_scc1 {L}")
    A(f"s_cmp_lg_u32 s{S_WAVE}, 7")
    A(f"s_cbranch_scc1 {L}")
    A(f"s_memrealtime {sp(S_T)}")
    A("s_waitcnt lgkmcnt(0)")
    A(f"s_or_b32 s{S_T}, s{S_T}, 1")
    A(f"v_mov_b32 v10, s{S_T}")
    A("v_mov_b32 v11, 0")
    A("v_mov_b32 v12, 0")
    A("s_mov_b64 exec, 1")
    A(f"global_atomic_cmpswap v12, v[10:11], {sp(S_DBG)} sc1")
    A("s_mov_b64 exec, -1")
    A.label(L)

def code_prefetch():
    T = S_T
    L = A.newlabel("L_cpf")
    A(f"s_cmp_lg_u32 s{S_WAVE}, 6")
    A(f"s_cbranch_scc1 {L}")
    A(f"s_lshr_b32 s{T+2}, s{S_WG}, 3")
    A(f"s_cmp_ge_u32 s{T+2}, (L_end - {NAME}_kernel + 1023) / 1024")
    A(f"s_cbranch_scc1 {L}")
    A(f"s_getpc_b64 {sp(T)}")
    A.label(L + "_pc")
    A(f"s_sub_u32 s{T}, s{T}, {L}_pc - {NAME}_kernel")
    A(f"s_subb_u32 s{T+1}, s{T+1}, 0")
    A(f"s_lshl_b32 s{T+2}, s{T+2}, 10")
    A("v_lshlrev_b32 v1, 4, v0")
    A(f"v_add_u32 v1, s{T+2}, v1")
    A(f"global_load_dwordx4 a[124:127], v1, {sp(T)}")
    A.label(L)

def prologue():
    A(f"s_cmp_ge_u32 s{S_WG}, 256")
    A("s_cbranch_scc1 L_end")
    prof_begin()
    A("s_load_dwordx16 s[4:19], s[0:1], 0")
    A("s_load_dwordx8 s[20:27], s[0:1], 64")
    A("s_load_dwordx4 s[28:31], s[0:1], 96")
    A("v_lshrrev_b32 v1, 6, v0")
    A("v_and_b32 v0, 63, v0")
    A(f"v_readfirstlane_b32 s{S_WAVE}, v1")
    A(f"s_mov_b32 s{S_MASK}, 0xffff0000")
    A(f"s_mov_b32 s{S_SELLO}, 0x05040100")
    A(f"s_mov_b32 s{S_SELHI}, 0x07060302")
    A("s_waitcnt lgkmcnt(0)")
    stamp(1)
    tl(1, 0, 0); tl(2, 7, 0); tl(3, 4, 0)
    nonce_writer()
    code_prefetch()

def dpp_sum16(v):
    for sh in (8, 4, 2, 1):
        A("s_nop 1")
        A(f"v_add_f32_dpp v{v}, v{v}, v{v} row_ror:{sh} row_mask:0xf bank_mask:0xf")

LN_Q, LN_W, LN_Q2 = 10, 28, 46
def ln_loads(stok, Q, with_w):
    T = S_T
    A(f"s_mov_b32 s{T}, s{stok}")
    A("v_lshrrev_b32 v1, 4, v0")
    A("v_and_b32 v2, 15, v0")
    A(f"v_add_u32 v3, s{T}, v1")
    A(f"v_mul_u32_u24 v4, 1152, v3")
    A(f"v_lshl_add_u32 v5, v2, 4, v4")
    A(f"v_lshl_add_u32 v6, v2, 3, v4")
    for i in range(4):
        A(f"global_load_dwordx4 {p4(Q+4*i)}, v5, {sp(S_Q)} offset:{256*i} {NT}")
    A(f"global_load_dwordx2 {p2(Q+16)}, v6, {sp(S_Q)} offset:1024 {NT}")
    if with_w:
        W = LN_W
        A(f"v_lshlrev_b32 v7, 4, v2")
        A(f"v_lshlrev_b32 v8, 3, v2")
        for i in range(4):
            A(f"global_load_dwordx4 {p4(W+4*i)}, v7, {sp(S_WR)} offset:{256*i}")
        A(f"global_load_dwordx2 {p2(W+16)}, v8, {sp(S_WR)} offset:1024")

def dpp_sum16x(vs):
    for sh in (8, 4, 2, 1):
        if len(vs) < 3: A("s_nop 1")
        for v in vs:
            A(f"v_add_f32_dpp v{v}, v{v}, v{v} row_ror:{sh} row_mask:0xf bank_mask:0xf")

def ln_compute_publish(Q, vtok, first, vc=2, hook=None, publish=True):
    T = S_T
    W = LN_W
    A(f"s_mov_b32 s{T+8}, 0x3f803f80"); A(f"s_mov_b32 s{T+9}, 0x00003f80"); A(f"s_mov_b32 s{T+10}, 0x3f800000")
    accs = [64, 65, 66, 67] + ([68, 69] if first else [])
    for a in accs: A(f"v_mov_b32 v{a}, 0")
    for i in range(18):
        A(f"v_dot2_f32_bf16 v{64+(i&1)}, v{Q+i}, s{T+8}, v{64+(i&1)}")
        A(f"v_dot2_f32_bf16 v{66+(i&1)}, v{Q+i}, v{W+i}, v{66+(i&1)}")
        if first: A(f"v_dot2_f32_bf16 v{68+(i&1)}, v{W+i}, s{T+8}, v{68+(i&1)}")
    A("s_nop 2")
    A("v_add_f32 v64, v64, v65")
    A("v_add_f32 v66, v66, v67")
    if first:
        A("v_add_f32 v122, v68, v69")
        A("s_nop 0")
        dpp_sum16x([64, 66, 122])
    else:
        A("s_nop 0")
        dpp_sum16x([64, 66])
    A(f"v_mul_f32 v64, 0x{f32bits(1.0/576):08x}, v64")
    A("v_sub_f32 v65, 0, v64")
    for a in (68, 69, 70, 71): A(f"v_mov_b32 v{a}, 0")
    for i in range(0, 18, 2):
        A(f"v_dot2_f32_bf16 v72, v{Q+i}, s{T+9}, v65")
        A(f"v_dot2_f32_bf16 v73, v{Q+i}, s{T+10}, v65")
        A(f"v_dot2_f32_bf16 v74, v{Q+i+1}, s{T+9}, v65")
        A(f"v_dot2_f32_bf16 v75, v{Q+i+1}, s{T+10}, v65")
        A("s_nop 1")
        A(f"v_fma_f32 v68, v72, v72, v68")
        A(f"v_fma_f32 v69, v73, v73, v69")
        A(f"v_fma_f32 v70, v74, v74, v70")
        A(f"v_fma_f32 v71, v75, v75, v71")
    A("v_add_f32 v68, v68, v69"); A("v_add_f32 v70, v70, v71"); A("v_add_f32 v68, v68, v70")
    dpp_sum16x([68])
    A(f"v_mul_f32 v68, 0x{f32bits(1.0/576):08x}, v68")
    rnd(68)
    A(f"v_add_f32 v68, 0x{f32bits(1e-5):08x}, v68")
    rnd(68)
    A("v_sqrt_f32 v69, v68")
    A("s_nop 0")
    A("v_rcp_f32 v70, v69")
    A("v_fma_f32 v71, -v69, v69, v68")
    A("v_mul_f32 v70, 0.5, v70")
    A("v_fma_f32 v69, v71, v70, v69")
    rnd(69)
    A("v_rcp_f32 v70, v69")
    rnd(64)
    A("v_fma_f32 v66, -v64, v122, v66")
    A("v_mul_f32 v112, v66, v70")
    rnd(112)
    A(f"v_or_b32 v112, v112, v{vtok}")
    A("v_cvt_pk_bf16_f32 v114, v64, v69")
    if not publish:
        A("v_mov_b32 v32, v112"); A("v_mov_b32 v34, v114")
        return
    if hook: hook()
    ln_publish(vtok, vc)

def ln_publish(vtok, vc):
    T = S_T
    A(f"v_mov_b32 v113, s{S_NONCE}")
    A(f"v_mov_b32 v115, s{S_NONCE}")
    A(f"v_lshlrev_b32 v116, 3, v{vtok}")
    add64(T+2, S_WS, WS_RG)
    add64(T+4, S_WS, WS_SG)
    A(f"v_cmp_eq_u32 vcc, 0, v{vc}")
    A(f"s_and_saveexec_b64 {sp(T+6)}, vcc")
    A(f"global_store_dwordx2 v116, v[112:113], {sp(T+2)} sc1")
    A(f"global_store_dwordx2 v116, v[114:115], {sp(T+4)} sc1")
    A(f"s_mov_b64 exec, {sp(T+6)}")

P_CH = 4128
L_P = 0
L_Q = L_P + 4 * P_CH
Q_CPY = 1152
Q_CH = 4 * Q_CPY
L_KVL = L_Q + 4 * Q_CH
L_MC = L_KVL + 16384
L_SELT = L_MC + 64
L_ST = L_SELT + 128
TBLK = 1040
L_TK = (L_ST + 1024 + 15) // 16 * 16
L_TV = L_TK + 17 * TBLK
L_TQ = L_TV + 16 * TBLK
L_OT = L_TK
L_CONV_END = L_TQ + 16 * TBLK

def dma(voff, srdreg, soff, m0, flag=None):
    A(f"s_mov_b32 m0, {m0}")
    A("s_nop 0")
    A(f"buffer_load_dwordx4 v{voff}, s[{srdreg}:{srdreg+3}], {soff} offen {NT if flag is None else flag} lds")

def conv_tile():
    T = S_T
    Lln = A.newlabel("L_cln")
    A(f"s_sub_u32 s72, s{S_WAVE}, 4")
    A(f"s_cmp_ge_u32 s72, 3")
    A(f"s_cbranch_scc1 {Lln}")
    A(f"s_mul_i32 s68, s{S_WG}, 12")
    A(f"s_lshl_b32 s{T+1}, s72, 2")
    A(f"s_add_u32 s68, s68, s{T+1}")
    ln_loads(68, LN_Q, True)
    A("v_mov_b32 v46, v3")
    A("v_mov_b32 v47, v2")
    A.label(Lln)
    A(f"s_mul_hi_u32 s77, s{S_WG}, {(2**32 + 8)//9}")
    A(f"s_mul_i32 s76, s77, 9")
    A(f"s_sub_u32 s76, s{S_WG}, s76")
    srd(SRD_K, S_K, 2359296)
    srd(SRD_V, S_V, 2359296)
    A("v_lshrrev_b32 v1, 3, v0")
    A("v_and_b32 v2, 7, v0")
    A(f"s_mul_i32 s{T+2}, s77, {128*1152}")
    A(f"s_lshl_b32 s{T+3}, s76, 7")
    A(f"s_add_u32 s{T+2}, s{T+2}, s{T+3}")
    A(f"v_mul_u32_u24 v3, 1152, v1")
    A(f"v_lshl_add_u32 v3, v2, 4, v3")
    A(f"v_add_u32 v3, s{T+2}, v3")
    A(f"s_mul_i32 s{T+4}, s{S_WAVE}, {2*9216}")
    A(f"s_add_u32 s{T+5}, s{T+4}, 9216")
    A(f"s_mul_i32 s{T+6}, s{S_WAVE}, {2*TBLK}")
    A(f"s_add_u32 s{T+7}, s{T+6}, {L_TK + TBLK}")
    A(f"s_add_u32 s{T+8}, s{T+6}, {L_TK + 2*TBLK}")
    dma(3, SRD_K, f"s{T+4}", f"s{T+7}")
    dma(3, SRD_K, f"s{T+5}", f"s{T+8}")
    A(f"s_add_u32 s{T+7}, s{T+6}, {L_TV}")
    A(f"s_add_u32 s{T+8}, s{T+6}, {L_TV + TBLK}")
    dma(3, SRD_V, f"s{T+4}", f"s{T+7}")
    dma(3, SRD_V, f"s{T+5}", f"s{T+8}")
    Lh = A.newlabel("L_nohalo")
    A(f"s_cmp_lg_u32 s{S_WAVE}, 0")
    A(f"s_cbranch_scc1 {Lh}")
    A(f"v_subrev_u32 v4, 9216, v3")
    A(f"s_cmp_lg_u32 s77, 0")
    A(f"s_cbranch_scc1 {Lh}_a")
    A("v_bfrev_b32 v4, 1")
    A.label(Lh + "_a")
    dma(4, SRD_K, "0", L_TK)
    A.label(Lh)
    A(f"s_lshr_b32 s{T+9}, s{S_WAVE}, 1")
    A(f"s_and_b32 s{T+10}, s{S_WAVE}, 1")
    A(f"s_lshl_b32 s{T+11}, s76, 9")
    A(f"s_lshl_b32 s{T+12}, s{T+9}, 7")
    A(f"s_add_u32 s{T+11}, s{T+11}, s{T+12}")
    A("v_lshlrev_b32 v5, 4, v1")
    A(f"v_add_u32 v5, s{T+11}, v5")
    TR = 48
    A(f"global_load_dwordx4 {p4(TR)}, v5, {sp(S_SK)}")
    A(f"s_and_b32 s{T+13}, s{S_WG}, 7")
    A(f"s_mul_i32 s{T+13}, s{T+13}, 18")
    A(f"s_lshr_b32 s{T+12}, s{S_WG}, 3")
    A(f"s_add_u32 s{T+13}, s{T+13}, s{T+12}")
    A(f"s_lshl_b32 s71, s{T+13}, 2")
    A(f"s_and_b32 s{T+12}, s{S_WAVE}, 3")
    A(f"s_add_u32 s78, s71, s{T+12}")
    A(f"s_lshl_b32 s79, s78, 12")
    A("v_mov_b32 v120, 0")
    A(f"global_load_dword v121, v120, {sp(S_DBG)} sc1")
    A(f"s_lshl_b32 s{T+12}, s{T+10}, 3")
    A(f"v_add_u32 v6, s{T+12}, v2")
    A(f"s_lshl_b32 s{T+12}, s{T+9}, 3")
    A(f"v_add_u32 v7, s{T+12}, v1")
    A(f"v_mul_u32_u24 v9, {TBLK}, v6")
    A(f"v_lshl_add_u32 v9, v7, 2, v9")
    A(f"v_add_u32 v9, {L_TK}, v9")
    A(f"s_lshl_b32 s{T+11}, s76, 18")
    A(f"s_lshl_b32 s{T+12}, s77, 8")
    A(f"s_add_u32 s{T+11}, s{T+11}, s{T+12}")
    A("v_lshlrev_b32 v8, 13, v7")
    A("v_lshl_add_u32 v8, v6, 4, v8")
    A(f"v_add_u32 v8, s{T+11}, v8")
    Lz = A.newlabel("L_noz")
    A(f"s_cmp_lg_u32 s{S_WAVE}, 7")
    A(f"s_cbranch_scc1 {Lz}")
    for i in range(4): A(f"v_mov_b32 v{52+i}, 0")
    A("v_lshlrev_b32 v56, 4, v0")
    A(f"v_add_u32 v56, {L_MC}, v56")
    A("s_mov_b64 exec, 0xfff")
    A(f"ds_write_b128 v56, {p4(52)}")
    A("s_mov_b64 exec, -1")
    A.label(Lz)
    Lln2 = A.newlabel("L_cln2")
    A(f"s_cmp_ge_u32 s72, 3")
    A(f"s_cbranch_scc1 {Lln2}")
    A("s_waitcnt vmcnt(6)")
    ln_compute_publish(LN_Q, 46, True, vc=47, hook=lambda: None, publish=False)
    A.label(Lln2)
    A("s_waitcnt vmcnt(0) lgkmcnt(0)")
    A(f"v_readfirstlane_b32 s{S_NONCE}, v121")
    A("s_mov_b32 s73, 0")
    Lp = A.newlabel("L_lnp")
    A(f"s_cmp_ge_u32 s72, 3")
    A(f"s_cbranch_scc1 {Lp}")
    A(f"s_cmp_eq_u32 s{S_NONCE}, 0")
    A(f"s_cbranch_scc1 {Lp}")
    A("v_mov_b32 v112, v32"); A("v_mov_b32 v114, v34")
    ln_publish(46, 47)
    A("s_mov_b32 s73, 1")
    A.label(Lp)
    A("s_barrier")
    stamp(2)
    tl(4, 7, 0)
    KR, VR = 10, 21
    for j in range(11):
        off = (640 + 128*j if j < 3 else TBLK + 128*(j-3))
        A(f"ds_read_b32 v{KR+j}, v9 offset:{off}")
    for j in range(8):
        A(f"ds_read_b32 v{VR+j}, v9 offset:{L_TV - L_TK + 128*j}")
    A("v_mov_b32 v30, 0")
    A(f"global_load_dword v31, v30, {sp(S_DBG)} sc1")
    TP = 52
    A(f"v_lshlrev_b32 v{TP+0}, 16, v{TR}"); A(f"v_lshlrev_b32 v{TP+1}, 16, v{TR+2}")
    A(f"v_and_b32 v{TP+2}, s{S_MASK}, v{TR}"); A(f"v_and_b32 v{TP+3}, s{S_MASK}, v{TR+2}")
    A(f"v_lshlrev_b32 v{TP+4}, 16, v{TR+1}"); A(f"v_lshlrev_b32 v{TP+5}, 16, v{TR+3}")
    A(f"v_and_b32 v{TP+6}, s{S_MASK}, v{TR+1}"); A(f"v_and_b32 v{TP+7}, s{S_MASK}, v{TR+3}")
    KP = 80
    A("s_waitcnt lgkmcnt(8)")
    for j in range(11):
        A(f"v_lshlrev_b32 v{KP+2*j}, 16, v{KR+j}")
        A(f"v_and_b32 v{KP+2*j+1}, s{S_MASK}, v{KR+j}")
    R = 102
    tp = lambda tap: p2(TP+2*tap)
    for i in range(8): A(f"v_pk_mul_f32 {p2(R+2*i)}, {p2(KP+2*i)}, {tp(3)}")
    for i in range(8): A(f"v_pk_fma_f32 {p2(R+2*i)}, {p2(KP+2*(i+1))}, {tp(2)}, {p2(R+2*i)}")
    for i in range(8): A(f"v_pk_fma_f32 {p2(R+2*i)}, {p2(KP+2*(i+2))}, {tp(1)}, {p2(R+2*i)}")
    for i in range(8): A(f"v_pk_fma_f32 {p2(R+2*i)}, {p2(KP+2*(i+3))}, {tp(0)}, {p2(R+2*i)}")
    A("s_waitcnt lgkmcnt(0)")
    VP = 60
    for i in range(8):
        A(f"v_lshlrev_b32 v{VP+2*i}, 16, v{VR+i}"); A(f"v_and_b32 v{VP+2*i+1}, s{S_MASK}, v{VR+i}")
    for i in range(8): A(f"v_pk_mul_f32 {p2(R+2*i)}, {p2(R+2*i)}, {p2(VP+2*i)}")
    O = 120
    for q in range(4):
        A(f"v_cvt_pk_bf16_f32 v{O+q}, v{R+4*q}, v{R+4*q+2}")
        A(f"v_cvt_pk_bf16_f32 v{O+4+q}, v{R+4*q+1}, v{R+4*q+3}")
    add64(T+2, S_WS, WS_KVT)
    add64(T+8, S_WS, WS_KVT+4096)
    A(f"global_store_dwordx4 v8, {p4(O)}, {sp(T+2)} sc1")
    A(f"global_store_dwordx4 v8, {p4(O+4)}, {sp(T+8)} sc1")
    A(f"s_lshl_b32 s{T+1}, s{S_WAVE}, 11")
    A("v_lshlrev_b32 v4, 5, v0")
    A(f"v_add_u32 v4, s{T+1}, v4")
    A(f"v_add_u32 v4, {L_KVL}, v4")
    A(f"ds_write_b128 v4, {p4(O)}")
    A(f"ds_write_b128 v4, {p4(O+4)} offset:16")
    stamp(3)
    Lh = A.newlabel("L_noh"); Lh2 = A.newlabel("L_noh2")
    A(f"s_cmp_ge_u32 s{S_WAVE}, 4")
    A(f"s_cbranch_scc1 {Lh}")
    srd(SRD_V, S_H, 2359296)
    A("v_lshlrev_b32 v4, 4, v0")
    A(f"s_mul_i32 s74, s{S_WAVE}, {P_CH}")
    for q in range(4):
        A(f"s_add_u32 s{T+9}, s79, {1024*q}")
        A(f"s_add_u32 s{T+10}, s74, {32 + 1024*q}")
        dma(4, SRD_V, f"s{T+9}", f"s{T+10}")
    A("s_waitcnt vmcnt(4)")
    A(f"s_branch {Lh2}")
    A.label(Lh)
    A("s_waitcnt vmcnt(0)")
    A.label(Lh2)
    A(f"v_readfirstlane_b32 s{S_NONCE}, v31")
    Ln = A.newlabel("L_hasn")
    A(f"s_cmp_lg_u32 s{S_NONCE}, 0")
    A(f"s_cbranch_scc1 {Ln}")
    get_nonce(30)
    A.label(Ln)
    Lp2 = A.newlabel("L_lnp2")
    A(f"s_cmp_ge_u32 s72, 3")
    A(f"s_cbranch_scc1 {Lp2}")
    A("s_cmp_eq_u32 s73, 1")
    A(f"s_cbranch_scc1 {Lp2}")
    A("v_mov_b32 v112, v32"); A("v_mov_b32 v114, v34")
    ln_publish(46, 47)
    A.label(Lp2)
    A("s_barrier")
    stamp(4)
    tl(5, 7, 0)
    L = A.newlabel("L_nf")
    A(f"s_cmp_lg_u32 s{S_WAVE}, 0")
    A(f"s_cbranch_scc1 {L}")
    A(f"s_lshl_b32 s{T+1}, s76, 7")
    A(f"s_lshl_b32 s{T+2}, s77, 2")
    A(f"s_add_u32 s{T+1}, s{T+1}, s{T+2}")
    A(f"s_add_u32 s{T+1}, s{T+1}, {WS_FL}")
    A(f"v_mov_b32 v100, s{T+1}")
    A(f"v_mov_b32 v101, s{S_NONCE}")
    A("s_mov_b64 exec, 1")
    A(f"global_store_dword v100, v101, {sp(S_WS)} sc1")
    A("s_mov_b64 exec, -1")
    A.label(L)

def x_tile():
    T = S_T
    A("; x tile")
    A("v_and_b32 v2, 7, v0"); A("v_lshrrev_b32 v1, 3, v0")
    A(f"s_lshl_b32 s{T+12}, s72, 3")
    A(f"v_add_u32 v7, s{T+12}, v1")
    A(f"v_mul_u32_u24 v9, {TBLK}, v2")
    A(f"v_lshl_add_u32 v9, v7, 2, v9")
    A(f"v_add_u32 v9, {L_TQ}, v9")
    A(f"s_lshl_b32 s{T+11}, s76, 18")
    A(f"s_lshl_b32 s{T+12}, s77, 8")
    A(f"s_add_u32 s{T+11}, s{T+11}, s{T+12}")
    A("v_lshlrev_b32 v8, 13, v7")
    A("v_lshl_add_u32 v8, v2, 4, v8")
    A(f"v_add_u32 v8, s{T+11}, v8")
    for gh in range(2):
        for j in range(8):
            A(f"ds_read_b32 v{64+8*gh+j}, v9 offset:{8*TBLK*gh + 128*j}")
    add64(T+2, S_WS, WS_XT)
    add64(T+4, S_WS, WS_XT+4096)
    for gh in range(2):
        A(f"s_waitcnt lgkmcnt({8*(1-gh)})")
        X = 80 + 8*gh
        for q in range(4):
            A(f"v_perm_b32 v{X+q}, v{64+8*gh+2*q+1}, v{64+8*gh+2*q}, s{S_SELLO}")
            A(f"v_perm_b32 v{X+4+q}, v{64+8*gh+2*q+1}, v{64+8*gh+2*q}, s{S_SELHI}")
        A(f"global_store_dwordx4 v8, {p4(X)}, {sp(T+2)} offset:{128*gh} sc1")
        A(f"global_store_dwordx4 v8, {p4(X+4)}, {sp(T+4)} offset:{128*gh} sc1")

def x_flag():
    T = S_T
    A("s_waitcnt vmcnt(0)")
    A(f"s_lshl_b32 s{T+1}, s76, 2")
    A(f"s_add_u32 s{T+1}, s{T+1}, s72")
    A(f"s_lshl_b32 s{T+1}, s{T+1}, 6")
    A(f"s_lshl_b32 s{T+2}, s77, 2")
    A(f"s_add_u32 s{T+1}, s{T+1}, s{T+2}")
    A(f"s_add_u32 s{T+1}, s{T+1}, {WS_FL2}")
    A(f"v_mov_b32 v100, s{T+1}")
    A(f"v_mov_b32 v101, s{S_NONCE}")
    A("s_mov_b64 exec, 1")
    A(f"global_store_dword v100, v101, {sp(S_WS)} sc1")
    A("s_mov_b64 exec, -1")

def poll_flags(vt, second):
    T = S_T
    if not second:
        A(f"s_lshr_b32 s{T+1}, s71, 6")
        A(f"s_lshl_b32 s{T+1}, s{T+1}, 7")
        A(f"s_add_u32 s{T+1}, s{T+1}, {WS_FL}")
    else:
        A(f"s_lshr_b32 s{T+1}, s71, 4")
        A(f"s_lshl_b32 s{T+1}, s{T+1}, 6")
        A(f"s_add_u32 s{T+1}, s{T+1}, {WS_FL2}")
    A(f"v_and_b32 v{vt}, 15, v0")
    A(f"v_lshlrev_b32 v{vt}, 2, v{vt}")
    A(f"v_add_u32 v{vt}, s{T+1}, v{vt}")
    tagcheck_loop(lambda: A(f"global_load_dword v{vt+1}, v{vt}, {sp(S_WS)} sc1"), [vt+1], vt+2, vt+3, sleep=1)

class LdsQ:
    def __init__(self): self.q = []
    def issue(self, instr, tag=None):
        A(instr); self.q.append(tag)
    def wait(self, tag):
        idxs = [i for i, t in enumerate(self.q) if t == tag]
        if not idxs: return
        last = idxs[-1]
        n = len(self.q) - 1 - last
        A(f"s_waitcnt lgkmcnt({min(n, 15)})")
        if n <= 15: self.q = self.q[last+1:]
        else: self.q = self.q[len(self.q)-15:]

def conv_mfma_wave():
    T = S_T
    A(f"s_mul_i32 s75, s{S_WAVE}, {Q_CH}")
    A(f"s_add_u32 s75, s75, {L_Q}")
    for i in range(4): A(f"v_mov_b32 v{16+i}, 0")
    A("v_lshlrev_b32 v2, 4, v0")
    A("v_add_u32 v2, s74, v2")
    A("s_mov_b64 exec, 3")
    A(f"ds_write_b128 v2, {p4(16)}")
    A("s_mov_b64 exec, -1")
    A("v_lshrrev_b32 v2, 3, v0")
    A(f"v_mul_u32_u24 v2, {Q_CPY}, v2")
    A("v_and_b32 v3, 7, v0")
    A("v_lshl_add_u32 v2, v3, 4, v2")
    A("v_add_u32 v2, s75, v2")
    A("s_mov_b64 exec, 0xffffffff")
    A(f"ds_write_b128 v2, {p4(16)}")
    A("s_mov_b64 exec, -1")
    A("v_and_b32 v3, 3, v0")
    A("v_bfe_u32 v4, v0, 2, 2")
    A("v_sub_u32 v3, v3, v4")
    A("v_lshlrev_b32 v3, 3, v3")
    A("v_lshrrev_b32 v4, 4, v0")
    A("v_lshl_add_u32 v3, v4, 6, v3")
    A("v_add_u32 v3, s74, v3")
    A("v_add_u32 v3, 32, v3")
    A("s_waitcnt vmcnt(0) lgkmcnt(0)")
    G = 64
    def greg(e, s1): return G + 4*(8*e + s1)
    for s1 in range(8):
        for e in range(2):
            g = greg(e, s1)
            A(f"ds_read_b64_tr_b16 {p2(g)}, v3 offset:{512*s1+256*e+32}")
            A(f"ds_read_b64_tr_b16 {p2(g+2)}, v3 offset:{512*s1+256*e}")
        if s1 % 3 == 2: A("s_waitcnt lgkmcnt(4)")
    A("v_and_b32 v5, 15, v0")
    A("v_lshlrev_b32 v6, 3, v5")
    A("v_lshlrev_b32 v7, 4, v4")
    A("v_sub_u32 v6, v6, v7")
    A("v_add_u32 v6, s75, v6")
    A("v_add_u32 v6, 56, v6")
    A("v_lshlrev_b32 v7, 6, v5")
    A("v_lshl_add_u32 v7, v4, 4, v7")
    A(f"s_lshl_b32 s{T+1}, s78, 13")
    A(f"v_add_u32 v7, s{T+1}, v7")
    A(f"v_add_u32 v11, 4096, v7")
    add64(62, S_WS, WS_YG)
    A("v_subrev_u32 v8, 16, v0")
    A("v_add_u32 v9, 47, v0")
    A("v_cmp_gt_u32 vcc, 16, v0")
    A("s_nop 1")
    A("v_cndmask_b32 v8, v8, v9, vcc")
    A("v_mov_b32 v9, 63")
    A("v_cmp_eq_u32 vcc, 0, v0")
    A("s_nop 1")
    A("v_cndmask_b32 v8, v8, v9, vcc")
    A("v_lshlrev_b32 v8, 2, v8")
    A(f"v_mov_b32 v9, {L_MC}")
    A("v_mov_b32 v10, 1")
    A(f"s_mov_b64 {sp(66)}, 1")
    for i in range(3): A(f"v_mov_b32 v{40+i}, 0")
    add64(T+2, S_WS, WS_KVT)
    A("v_lshlrev_b32 v1, 4, v0")
    A("v_add_u32 v1, s79, v1")
    A("v_lshlrev_b32 v2, 2, v0")
    A("v_add_u32 v2, s75, v2")
    stamp(5)
    A(f"s_mov_b64 {sp(64)}, {sp(T+2)}")
    poll_flags(12, False)
    stamp(6)
    tl(6, 7, 0)
    KV = 16
    for q in range(4):
        A(f"global_load_dwordx4 {p4(KV+4*q)}, v1, {sp(64)} offset:{1024*q} sc1")
    QO = 48
    for q in range(4):
        A(f"s_waitcnt vmcnt({3-q})")
        for sg in range(4):
            sel = S_SELLO if (sg & 1) == 0 else S_SELHI
            A(f"v_perm_b32 v{QO+4*q+sg}, v{KV+4*q+2+sg//2}, v{KV+4*q+sg//2}, s{sel}")
            A(f"ds_write_b32 v2, v{QO+4*q+sg} offset:{sg*Q_CPY+128+256*q}")
    A("s_waitcnt lgkmcnt(0)")
    stamp(7)
    tl(7, 7, 0)
    lq = LdsQ()
    classes = [(c1, sg, e) for c1 in range(8) for sg in range(4) for e in range(2)]
    free = [48, 52, 56, 60]
    fbuf = {}
    def fread(k):
        c1, sg, e = classes[k]
        b = free.pop(0); fbuf[k] = b
        off = sg*Q_CPY + 128*c1 + 64*(1-e)
        lq.issue(f"ds_read_b64 {p2(b)}, v6 offset:{off}", ("F", k))
        lq.issue(f"ds_read_b64 {p2(b+2)}, v6 offset:{off+8}", ("F", k))
    def acc(sg, t): return (sg*8 + t)*4
    def combine_ops(t):
        a = 16
        ops = []
        for sg in range(4):
            for r in range(4):
                ops.append(lambda sg=sg, r=r: A(f"v_accvgpr_read_b32 v{a+4*sg+r}, a{acc(sg,t)+r}"))
        a0, a1, a2, a3 = a, a+4, a+8, a+12
        C = 32 + 0
        ops.append(lambda: A(f"v_add_f32 v{C}, v{a1+3}, v{a2+2}"))
        ops.append(lambda: A(f"v_add_f32 v{C+1}, v{a2+3}, v{a3+2}"))
        ops.append(lambda: A(f"v_add_f32 v{C}, v{C}, v{a3+1}"))
        P = 36 + 4*(t & 1)
        Pp = 36 + 4*((t+1) & 1)
        ops.append(lambda: lq.issue(f"ds_bpermute_b32 v{P}, v8, v{C}", ("B", t)))
        ops.append(lambda: lq.issue(f"ds_bpermute_b32 v{P+1}, v8, v{C+1}", ("B", t)))
        ops.append(lambda: lq.issue(f"ds_bpermute_b32 v{P+2}, v8, v{a3+3}", ("B", t)))
        ops.append(lambda: A(f"v_add_f32 v{a0+1}, v{a0+1}, v{a1}"))
        ops.append(lambda: A(f"v_add_f32 v{a0+2}, v{a0+2}, v{a1+1}"))
        ops.append(lambda: A(f"v_add_f32 v{a0+3}, v{a0+3}, v{a1+2}"))
        ops.append(lambda: A(f"v_add_f32 v{a0+2}, v{a0+2}, v{a2}"))
        ops.append(lambda: A(f"v_add_f32 v{a0+3}, v{a0+3}, v{a2+1}"))
        ops.append(lambda: A(f"v_add_f32 v{a0+3}, v{a0+3}, v{a3}"))
        ops.append(lambda: lq.wait(("B", t)))
        for i in range(3):
            ops.append(lambda i=i: A(f"v_cndmask_b32 v{44+i}, v{P+i}, v{Pp+i}, {sp(66)}"))
        for i in range(3):
            ops.append(lambda i=i: A(f"v_add_f32 v{a0+i}, v{a0+i}, v{44+i}"))
        YQ = 12 if False else 44
        ops.append(lambda: A(f"v_cvt_pk_bf16_f32 v44, v{a0}, v{a0+1}"))
        ops.append(lambda: A(f"v_mov_b32 v45, s{S_NONCE}"))
        ops.append(lambda: A(f"v_cvt_pk_bf16_f32 v46, v{a0+2}, v{a0+3}"))
        ops.append(lambda: A(f"v_mov_b32 v47, s{S_NONCE}"))
        ops.append(lambda: A(f"global_store_dwordx4 v{7 if t < 4 else 11}, {p4(44)}, {sp(62)} offset:{1024*(t % 4)} sc1"))
        ops.append(lambda: A("s_nop 1"))
        return ops
    nxt = 0
    def topup(maxn=2):
        nonlocal nxt
        n = 0
        while free and nxt < len(classes) and n < maxn and len(lq.q) <= 10:
            fread(nxt); nxt += 1; n += 1
    topup(3)
    pending = []
    k = 0
    for c1 in range(8):
        nm_step = 8*(8-c1)
        if c1 > 0:
            pending = combine_ops(c1-1)
            free.extend([greg(0, 8-c1), greg(1, 8-c1)])
        per = 0
        if pending:
            avail = max(1, nm_step - 3)
            per = -(-len(pending) // avail)
        mi = 0
        for sg in range(4):
            for e in range(2):
                while nxt <= k: topup(1)
                lq.wait(("F", k))
                b = fbuf[k]
                for s1 in range(8-c1):
                    t = s1 + c1
                    d = acc(sg, t)
                    cin = "0" if (c1 == 0 and e == 0) else f"a[{d}:{d+3}]"
                    A(f"v_mfma_f32_16x16x32_bf16 a[{d}:{d+3}], {p4(greg(e, s1))}, {p4(b)}, {cin}")
                    mi += 1
                    if s1 == 0: topup(1)
                    if pending and mi >= 3:
                        for _ in range(per):
                            if pending: pending.pop(0)()
                free.append(b)
                k += 1
        while pending: pending.pop(0)()
    A("s_nop 7"); A("s_nop 1")
    for op in combine_ops(7): op()
    A("s_mov_b64 exec, 1")
    A("ds_add_u32 v9, v10")
    A("s_mov_b64 exec, -1")
    stamp(8)
    tl(8, 7, 0)

def lds_spin(addr_off, target, va, vb, sleep=1):
    T = S_T
    L = A.newlabel("L_ls")
    A(f"v_mov_b32 v{va}, {L_MC}")
    A(f"s_mov_b32 s{T+1}, 0")
    A.label(L)
    A(f"ds_read_b32 v{vb}, v{va} offset:{addr_off}")
    A("s_waitcnt lgkmcnt(0)")
    A(f"v_readfirstlane_b32 s{T}, v{vb}")
    A(f"s_add_u32 s{T+1}, s{T+1}, 1")
    A(f"s_cmp_ge_u32 s{T+1}, {SPIN_MAX*4}")
    A(f"s_cbranch_scc1 {L}_d")
    A(f"s_cmp_ge_u32 s{T}, {target}")
    A(f"s_cbranch_scc1 {L}_d")
    if sleep: A(f"s_sleep {sleep}")
    A(f"s_branch {L}")
    A.label(L + "_d")

def conv_helper_prep():
    T = S_T
    srd(SRD_Q, S_Q, 2359296)
    A(f"s_mul_i32 s{T+4}, s72, {4*9216}")
    A(f"s_mul_i32 s{T+6}, s72, {4*TBLK}")
    A(f"s_add_u32 s{T+6}, s{T+6}, {L_TQ}")
    for i in range(4):
        dma(3, SRD_Q, f"s{T+4}", f"s{T+6}")
        A(f"s_add_u32 s{T+4}, s{T+4}, 9216")
        A(f"s_add_u32 s{T+6}, s{T+6}, {TBLK}")
    L4 = A.newlabel("L_h4"); L5 = A.newlabel("L_h5"); Le = A.newlabel("L_he")
    A(f"s_cmp_eq_u32 s{S_WAVE}, 4")
    A(f"s_cbranch_scc1 {L4}")
    A(f"s_cmp_eq_u32 s{S_WAVE}, 5")
    A(f"s_cbranch_scc1 {L5}")
    A(f"s_branch {Le}")
    A.label(L4)
    A(f"s_lshl_b32 s{T+1}, s77, 10")
    A("v_lshlrev_b32 v10, 4, v0")
    A(f"v_add_u32 v11, s{T+1}, v10")
    add64(T+2, S_WS, WS_SG)
    tagcheck_loop(lambda: A(f"global_load_dwordx4 {p4(12)}, v11, {sp(T+2)} sc1"), [13, 15], 16, 17, sleep=4)
    A("v_lshlrev_b32 v20, 16, v12"); A(f"v_and_b32 v21, s{S_MASK}, v12")
    A("v_lshlrev_b32 v22, 16, v14"); A(f"v_and_b32 v23, s{S_MASK}, v14")
    A("v_rcp_f32 v21, v21"); A("v_rcp_f32 v23, v23")
    A(f"v_add_u32 v10, {L_ST}, v10")
    A("s_nop 0")
    A(f"ds_write_b128 v10, {p4(20)}")
    A(f"s_branch {Le}")
    A.label(L5)
    A("v_and_b32 v10, 7, v0")
    A("v_lshlrev_b32 v11, 3, v10")
    add64(T+2, S_WS, WS_SEL)
    tagcheck_loop(lambda: A(f"global_load_dwordx2 v[12:13], v11, {sp(T+2)} sc1"), [13], 16, 17, sleep=4)
    A("v_and_b32 v12, 0x7ff, v12")
    A(f"s_lshl_b32 s{T+1}, s77, 7")
    A(f"v_subrev_u32 v12, s{T+1}, v12")
    A("v_cmp_gt_u32 vcc, 128, v12")
    A("v_or_b32 v13, 0x80, v10")
    A(f"v_add_u32 v12, {L_SELT}, v12")
    A("s_and_b32 vcc_lo, vcc_lo, 0xff")
    A("s_mov_b32 vcc_hi, 0")
    A("s_mov_b64 exec, vcc")
    Lk = A.newlabel("L_nsel")
    A(f"s_cbranch_execz {Lk}")
    A("ds_write_b8 v12, v13")
    A.label(Lk)
    A("s_mov_b64 exec, -1")
    A.label(Le)
    A("s_waitcnt vmcnt(0) lgkmcnt(0)")
    A(f"v_mov_b32 v10, {L_MC}")
    A("v_mov_b32 v11, 1")
    A("s_mov_b64 exec, 1")
    A("ds_add_u32 v10, v11 offset:4")
    A("s_mov_b64 exec, -1")
    stamp(5)
    lds_spin(0, 4, 10, 11, sleep=2)
    stamp(6)

def conv_epilogue():
    T = S_T
    A("; ---- epilogue ----")
    lds_spin(4, 4, 10, 11, sleep=1)
    A("v_and_b32 v2, 7, v0"); A("v_lshrrev_b32 v1, 3, v0")
    A(f"s_and_b32 s{T+1}, s{S_WAVE}, 1"); A(f"s_lshl_b32 s{T+1}, s{T+1}, 3")
    A(f"v_add_u32 v6, s{T+1}, v2")
    A(f"s_lshr_b32 s{T+2}, s{S_WAVE}, 1"); A(f"s_lshl_b32 s{T+2}, s{T+2}, 3")
    A(f"v_add_u32 v7, s{T+2}, v1")
    A(f"s_lshl_b32 s{T+1}, s76, 19")
    A(f"s_lshl_b32 s{T+2}, s77, 9")
    A(f"s_add_u32 s{T+1}, s{T+1}, s{T+2}")
    A("v_lshlrev_b32 v8, 14, v7")
    A("v_lshl_add_u32 v8, v6, 5, v8")
    A(f"v_add_u32 v8, s{T+1}, v8")
    A("v_add_u32 v9, 8192, v8")
    add64(62, S_WS, WS_YG)
    A(f"v_mul_u32_u24 v10, {TBLK}, v6")
    A("v_lshl_add_u32 v10, v7, 2, v10")
    A(f"v_add_u32 v11, {L_TQ}, v10")
    XR = 16
    for i in range(8): A(f"ds_read_b32 v{XR+i}, v11 offset:{128*i}")
    A(f"s_lshl_b32 s{T+1}, s{S_WAVE}, 11")
    A("v_lshlrev_b32 v12, 5, v0")
    A(f"v_add_u32 v12, s{T+1}, v12")
    A(f"v_add_u32 v12, {L_KVL}, v12")
    KV = 24
    A(f"ds_read_b128 {p4(KV)}, v12")
    A(f"ds_read_b128 {p4(KV+4)}, v12 offset:16")
    A("v_lshlrev_b32 v12, 6, v6")
    A(f"v_add_u32 v12, {L_ST}, v12")
    SR = 32
    for i in range(4): A(f"ds_read_b128 {p4(SR+4*i)}, v12 offset:{16*i}")
    A("v_lshlrev_b32 v12, 3, v6")
    A(f"v_add_u32 v12, {L_SELT}, v12")
    A("ds_read_b64 v[48:49], v12")
    A(f"s_lshl_b32 s{T+1}, s76, 7")
    A("v_lshlrev_b32 v13, 2, v7")
    A(f"v_add_u32 v13, s{T+1}, v13")
    A(f"global_load_dword v50, v13, {sp(S_D)}")
    YR = 64
    def ld():
        A(f"global_load_dwordx4 {p4(YR)}, v8, {sp(62)} sc1")
        A(f"global_load_dwordx4 {p4(YR+4)}, v8, {sp(62)} offset:16 sc1")
        A(f"global_load_dwordx4 {p4(YR+8)}, v9, {sp(62)} sc1")
        A(f"global_load_dwordx4 {p4(YR+12)}, v9, {sp(62)} offset:16 sc1")
    A("s_waitcnt lgkmcnt(0)")
    XN, SS = 80, 96
    for i in range(8):
        m, rs = SR+2*i, SR+2*i+1
        A(f"v_lshlrev_b32 v{SS+2*i}, 16, v{XR+i}"); A(f"v_and_b32 v{SS+2*i+1}, s{S_MASK}, v{XR+i}")
        A(f"v_sub_f32 v{XN+2*i}, v{SS+2*i}, v{m}"); A(f"v_sub_f32 v{XN+2*i+1}, v{SS+2*i+1}, v{m}")
        A(f"v_mul_f32 v{XN+2*i}, v{XN+2*i}, v{rs}"); A(f"v_mul_f32 v{XN+2*i+1}, v{XN+2*i+1}, v{rs}")
        A(f"v_pk_add_f32 {p2(SS+2*i)}, {p2(SS+2*i)}, {p2(XN+2*i)}")
    stamp(7)
    tagcheck_loop(ld, [YR+2*j+1 for j in range(8)], 14, 52, sleep=1)
    A(f"v_lshlrev_b32 v52, 16, v50"); A(f"v_and_b32 v53, s{S_MASK}, v50")
    O = 112
    for i in range(8):
        for c in range(2):
            yr = YR + 8*c + 2*(i >> 1); kr = KV + 4*c + (i >> 1)
            t0, t1 = 54 + 2*c, 55 + 2*c
            if i & 1:
                A(f"v_and_b32 v{t0}, s{S_MASK}, v{yr}"); A(f"v_and_b32 v{t1}, s{S_MASK}, v{kr}")
            else:
                A(f"v_lshlrev_b32 v{t0}, 16, v{yr}"); A(f"v_lshlrev_b32 v{t1}, 16, v{kr}")
            A(f"v_fma_f32 v{t0}, v{t1}, v{52+c}, v{t0}")
            A(f"v_fma_f32 v{SS+2*i+c}, v{XN+2*i+c}, v{t0}, v{SS+2*i+c}")
        A(f"v_cvt_pk_bf16_f32 v{O+i}, v{SS+2*i}, v{SS+2*i+1}")
    A(f"v_add_u32 v11, {L_OT}, v10")
    for i in range(8): A(f"ds_write_b32 v11, v{O+i} offset:{128*i}")
    Lx = A.newlabel("L_nt1")
    A("v_or_b32 v12, v48, v49")
    A("v_cmp_ne_u32 vcc, 0, v12")
    A("s_nop 3")
    A("s_cmp_eq_u64 vcc, 0")
    A(f"s_cbranch_scc1 {Lx}")
    add64(64, S_WS, WS_T1G)
    A(f"s_lshl_b32 s{T+1}, s76, 6")
    A("v_lshlrev_b32 v13, 1, v7")
    A(f"v_add_u32 v13, s{T+1}, v13")
    for i in range(8):
        Li = A.newlabel("L_t1i")
        A(f"v_bfe_u32 v12, v{48 + (i >> 2)}, {8*(i & 3)}, 8")
        A("v_cmp_lt_u32 vcc, 0x7f, v12")
        A(f"s_and_saveexec_b64 {sp(T+12)}, vcc")
        A(f"s_cbranch_execz {Li}")
        A("v_and_b32 v12, 7, v12")
        A("v_mul_u32_u24 v12, 576, v12")
        A("v_add_u32 v12, v12, v13")
        A("v_lshlrev_b32 v12, 3, v12")
        A(f"v_sub_f32 v56, v{SS+2*i}, v{XN+2*i}")
        A(f"v_mov_b32 v57, s{S_NONCE}")
        A(f"v_sub_f32 v58, v{SS+2*i+1}, v{XN+2*i+1}")
        A(f"v_mov_b32 v59, s{S_NONCE}")
        A(f"global_store_dwordx4 v12, {p4(56)}, {sp(64)} sc1")
        A.label(Li)
        A(f"s_mov_b64 exec, {sp(T+12)}")
    A.label(Lx)
    A("s_waitcnt lgkmcnt(0)")
    A("s_barrier")
    A(f"s_lshl_b32 s{T+1}, s{S_WAVE}, 3")
    A(f"v_add_u32 v1, s{T+1}, v1")
    A("v_lshrrev_b32 v3, 3, v1")
    A(f"v_mul_u32_u24 v3, {TBLK}, v3")
    A("v_and_b32 v4, 7, v1")
    A("v_lshl_add_u32 v3, v4, 7, v3")
    A("v_lshl_add_u32 v3, v2, 4, v3")
    A(f"v_add_u32 v3, {L_OT}, v3")
    A(f"ds_read_b128 {p4(16)}, v3")
    A(f"ds_read_b128 {p4(20)}, v3 offset:{8*TBLK}")
    A(f"v_add_u32 v4, {L_SELT}, v1")
    A("ds_read_u8 v24, v4")
    A("ds_read_u8 v25, v4 offset:64")
    srd(SRD_O, S_OUT, 2359296)
    A(f"s_mul_i32 s{T+1}, s77, {128*1152}")
    A(f"s_lshl_b32 s{T+2}, s76, 7")
    A(f"s_add_u32 s{T+1}, s{T+1}, s{T+2}")
    A("v_mul_u32_u24 v5, 1152, v1")
    A("v_lshl_add_u32 v5, v2, 4, v5")
    A(f"v_add_u32 v5, s{T+1}, v5")
    A(f"v_add_u32 v6, {64*1152}, v5")
    A("s_waitcnt lgkmcnt(0)")
    for h, (va, vs, vd) in enumerate(((5, 24, 16), (6, 25, 20))):
        A(f"v_lshlrev_b32 v{vs}, 24, v{vs}")
        A(f"v_and_b32 v{vs}, 0x80000000, v{vs}")
        A(f"v_or_b32 v{va}, v{va}, v{vs}")
        A(f"buffer_store_dwordx4 {p4(vd)}, v{va}, s[{SRD_O}:{SRD_O+3}], 0 offen")
    stamp(9)
    tl(9, 7, 0)

def conv_wg():
    conv_tile()
    A(f"s_cmp_ge_u32 s{S_WAVE}, 4")
    A("s_cbranch_scc1 L_helper")
    conv_mfma_wave()
    A("s_branch L_epi")
    A.label("L_helper")
    conv_helper_prep()
    A.label("L_epi")
    conv_epilogue()
    A("s_branch L_fin")

M_WG = 0
M_WU = 73728
M_XS = 147456
XS_RS = 1168
M_H = M_XS + 8*XS_RS
H_RS = 144
M_GU = M_H + 8*H_RS
M_RED = M_GU
M_MISC = M_GU + 4096
M_END = M_MISC + 160
M_LIST = 0
S_DUMP = 16384

def moe_dma():
    T = S_T
    srd(SRD_K, S_WGT, 5308416)
    srd(SRD_V, S_WUP, 5308416)
    A("v_lshrrev_b32 v1, 3, v0")
    A("v_and_b32 v2, 7, v0")
    A("v_bfe_u32 v3, v0, 4, 1")
    A(f"s_and_b32 s{T+1}, s{S_WAVE}, 1")
    A(f"s_lshl_b32 s{T+1}, s{T+1}, 1")
    A(f"v_add_u32 v3, s{T+1}, v3")
    A("v_lshlrev_b32 v3, 1, v3")
    A("v_xor_b32 v2, v2, v3")
    A("v_mul_u32_u24 v1, 9216, v1")
    A("v_lshl_add_u32 v1, v2, 4, v1")
    A(f"s_lshl_b32 s{T+1}, s70, 7")
    A(f"v_add_u32 v1, s{T+1}, v1")
    A(f"s_mul_i32 s{T+3}, s{S_WAVE}, 73728")
    A(f"s_lshl_b32 s{T+4}, s{S_WAVE}, 10")
    A(f"s_mov_b32 s{T+5}, 0")
    L = A.newlabel("L_dma")
    A.label(L)
    A(f"s_add_u32 m0, s{T+4}, {M_WG}")
    A("s_nop 0")
    A(f"buffer_load_dwordx4 v1, s[{SRD_K}:{SRD_K+3}], s{T+3} offen {NT} lds")
    A(f"s_add_u32 m0, s{T+4}, {M_WU}")
    A(f"s_add_u32 s{T+5}, s{T+5}, 1")
    A(f"buffer_load_dwordx4 v1, s[{SRD_V}:{SRD_V+3}], s{T+3} offen {NT} lds")
    A(f"s_add_u32 s{T+3}, s{T+3}, {8*73728}")
    A(f"s_add_u32 s{T+4}, s{T+4}, {8*1024}")
    A(f"s_cmp_lt_u32 s{T+5}, 9")
    A(f"s_cbranch_scc1 {L}")

def moe_xs_addr():
    T = S_T
    A(f"s_lshl_b32 s{T+1}, s{S_WAVE}, 6")
    A(f"v_add_u32 v1, s{T+1}, v0")
    A("v_and_b32 v2, 255, v1")
    A("v_mul_u32_u24 v2, 48, v2")
    A(f"v_add_u32 v2, 0x100000, v2")
    A("v_and_b32 v3, 7, v0")
    A("v_lshlrev_b32 v3, 3, v3")
    A(f"v_add_u32 v3, {WS_SEL - WS_XSG + 0x100000}, v3")
    add64(64, S_WS, WS_XSG - 0x100000)
    A("v_mov_b32 v4, 0")
def moe_xs_loads():
    for g in range(3):
        A(f"global_load_dwordx4 {p4(16+4*g)}, v2, {sp(64)} offset:{16*g} sc1")
    A(f"global_load_dwordx2 v[28:29], v3, {sp(64)} sc1")
DRA, DRB = 64, 96
def moe_down_loads():
    T = S_T
    A("v_lshrrev_b32 v6, 4, v0")
    A("v_mul_u32_u24 v5, 9216, v6")
    A("v_and_b32 v6, 15, v0")
    A("v_lshl_add_u32 v5, v6, 3, v5")
    A(f"s_mul_i32 s{T+1}, s70, 73728")
    A(f"s_lshl_b32 s{T+2}, s{S_WAVE}, 7")
    A(f"s_add_u32 s{T+1}, s{T+1}, s{T+2}")
    A(f"v_add_u32 v5, s{T+1}, v5")
    srd(SRD_Q, S_WD, 5308416)
    def panel(R, extra):
        for ks in range(2):
            for jj in range(8):
                so = 36864*ks + 4608*(jj//4) + extra
                A(f"s_mov_b32 s{T+3}, {so}")
                r = R + 16*ks + 2*jj
                A(f"buffer_load_dwordx2 {p2(r)}, v5, s[{SRD_Q}:{SRD_Q+3}], s{T+3} offen offset:{1152*(jj%4)} {NT}")
    panel(DRA, 0)
    L = A.newlabel("L_np8")
    A(f"s_cmp_lg_u32 s{S_WAVE}, 0")
    A(f"s_cbranch_scc1 {L}")
    panel(DRB, 1024)
    A.label(L)

def down_perm(R, F):
    for ks in range(2):
        for e in range(4):
            sel = S_SELLO if (e & 1) == 0 else S_SELHI
            for q in range(4):
                A(f"v_perm_b32 v{F+16*ks+4*e+q}, v{R+16*ks+2*(2*q+1)+e//2}, v{R+16*ks+2*(2*q)+e//2}, s{sel}")

def moe_xs_finish():
    T = S_T
    L = A.newlabel("L_xs"); Ld = A.newlabel("L_xsd")
    A(f"s_mov_b32 s{T}, 0")
    A.label(L)
    A(f"v_readfirstlane_b32 s{S_NONCE}, v30")
    A("s_nop 3")
    tag_acc([19, 23, 27, 29], 10, 12)
    A(f"v_cmp_ne_u32 vcc, 0, v10")
    A(f"s_add_u32 s{T}, s{T}, 1")
    A("s_nop 3")
    A(f"s_cmp_eq_u32 s{S_NONCE}, 0")
    A(f"s_cbranch_scc1 {L}_r")
    A("s_cmp_eq_u64 vcc, 0")
    A(f"s_cbranch_scc1 {Ld}")
    A.label(L + "_r")
    A(f"s_cmp_ge_u32 s{T}, {SPIN_MAX}")
    A(f"s_cbranch_scc1 {Ld}")
    A.label(L + "_l")
    A("s_sleep 4")
    A(f"global_load_dwordx2 v[28:29], v3, {sp(64)} sc1")
    A(f"global_load_dword v30, v4, {sp(S_DBG)} sc1")
    A("s_waitcnt vmcnt(0)")
    A(f"v_readfirstlane_b32 s{S_NONCE}, v30")
    A(f"s_add_u32 s{T}, s{T}, 1")
    A("s_nop 3")
    A(f"v_cmp_ne_u32 vcc, s{S_NONCE}, v29")
    A(f"s_cmp_ge_u32 s{T}, {SPIN_MAX}")
    A(f"s_cbranch_scc1 {Ld}")
    A("s_cmp_eq_u64 vcc, 0")
    A(f"s_cbranch_scc0 {L}_l")
    A(f"s_cmp_eq_u32 s{S_NONCE}, 0")
    A(f"s_cbranch_scc1 {L}_l")
    moe_xs_loads()
    A("s_waitcnt vmcnt(0)")
    A(f"s_branch {L}")
    A.label(Ld)
    Lw = A.newlabel("L_xw")
    A(f"s_cmp_ge_u32 s{S_WAVE}, 4")
    A(f"s_cbranch_scc1 {Lw}")
    A("v_lshrrev_b32 v6, 5, v1")
    A("v_and_b32 v7, 31, v1")
    A(f"v_mul_u32_u24 v6, {XS_RS}, v6")
    A("v_mul_u32_u24 v7, 36, v7")
    A("v_add_u32 v6, v6, v7")
    A(f"v_add_u32 v6, {M_XS}, v6")
    A("ds_write2_b32 v6, v16, v17 offset0:0 offset1:1")
    A("ds_write2_b32 v6, v18, v20 offset0:2 offset1:3")
    A("ds_write2_b32 v6, v21, v22 offset0:4 offset1:5")
    A("ds_write2_b32 v6, v24, v25 offset0:6 offset1:7")
    A("ds_write_b32 v6, v26 offset:32")
    A(f"s_cmp_lg_u32 s{S_WAVE}, 0")
    A(f"s_cbranch_scc1 {Lw}")
    A(f"v_and_b32 v18, s{S_MASK}, v28")
    A(f"v_mul_f32 v18, 0x{f32bits(-1.4426950408889634):08x}, v18")
    A("v_exp_f32 v18, v18")
    A("s_nop 0")
    A("v_add_f32 v18, 1.0, v18")
    A("v_rcp_f32 v18, v18")
    A("s_nop 0")
    rnd(18)
    A("v_lshlrev_b32 v6, 2, v0")
    A(f"v_add_u32 v6, {M_MISC+32}, v6")
    A("s_mov_b64 exec, 0xff")
    A("ds_write_b32 v6, v28")
    A("ds_write_b32 v6, v18 offset:32")
    A("s_mov_b64 exec, -1")
    A.label(Lw)

def moe_gateup():
    T = S_T
    A(f"s_lshr_b32 s{T+1}, s{S_WAVE}, 2")
    A(f"s_and_b32 s{T+2}, s{S_WAVE}, 3")
    A("v_lshrrev_b32 v6, 4, v0")
    A("v_bfe_u32 v7, v0, 2, 2")
    A("v_and_b32 v8, 3, v0")
    A("v_lshrrev_b32 v9, 1, v7")
    A("v_and_b32 v10, 1, v6")
    A("v_lshl_add_u32 v9, v10, 1, v9")
    A("v_lshlrev_b32 v9, 1, v9")
    A("v_lshrrev_b32 v10, 1, v8")
    A(f"s_lshl_b32 s{T+3}, s{T+2}, 1")
    A(f"v_add_u32 v10, s{T+3}, v10")
    A("v_xor_b32 v10, v10, v9")
    A("v_lshlrev_b32 v2, 10, v6")
    A("v_lshl_add_u32 v2, v7, 7, v2")
    A("v_lshl_add_u32 v2, v10, 4, v2")
    A("v_and_b32 v8, 1, v8")
    A("v_lshl_add_u32 v2, v8, 3, v2")
    A(f"s_mul_i32 s{T+3}, s{T+1}, {M_WU}")
    A(f"v_add_u32 v2, s{T+3}, v2")
    A(f"v_add_u32 v5, {4096*9}, v2")
    A("v_and_b32 v3, 7, v0")
    A(f"v_mul_u32_u24 v3, {XS_RS}, v3")
    A("v_lshl_add_u32 v3, v6, 4, v3")
    A(f"v_add_u32 v3, {M_XS}, v3")
    def rd(t):
        b = 8*(t % 8)
        a, o = (2, 4096*t) if t < 9 else (5, 4096*(t-9))
        A(f"ds_read_b64_tr_b16 a[{b}:{b+1}], v{a} offset:{o}")
        A(f"ds_read_b64_tr_b16 a[{b+2}:{b+3}], v{a} offset:{o+512}")
        A(f"ds_read_b128 a[{b+4}:{b+7}], v3 offset:{64*t}")
    for t in range(5): rd(t)
    for t in range(18):
        rem = min(17, t+4) - t
        A(f"s_waitcnt lgkmcnt({3*rem})")
        b = 8*(t % 8)
        cin = "0" if t == 0 else "v[8:11]"
        A(f"v_mfma_f32_16x16x32_bf16 v[8:11], a[{b}:{b+3}], a[{b+4}:{b+7}], {cin}")
        if t + 5 < 18: rd(t+5)
    A("v_and_b32 v3, 15, v0")
    A("v_lshlrev_b32 v4, 8, v3")
    A("v_lshl_add_u32 v4, v6, 4, v4")
    A(f"s_lshl_b32 s{T+3}, s{T+1}, 11")
    A(f"s_lshl_b32 s{T+4}, s{T+2}, 6")
    A(f"s_add_u32 s{T+3}, s{T+3}, s{T+4}")
    A(f"s_add_u32 s{T+3}, s{T+3}, {M_GU}")
    A(f"v_add_u32 v4, s{T+3}, v4")
    A("v_cmp_gt_u32 vcc, 8, v3")
    A(f"s_and_saveexec_b64 {sp(T+12)}, vcc")
    A("s_nop 2")
    A(f"ds_write_b128 v4, {p4(8)}")
    A(f"s_mov_b64 exec, {sp(T+12)}")

def moe_h_and_down_stage():
    T = S_T
    A("v_lshlrev_b32 v2, 2, v1")
    A(f"v_add_u32 v2, {M_GU}, v2")
    A("ds_read_b32 v8, v2")
    A("ds_read_b32 v9, v2 offset:2048")
    A("v_lshrrev_b32 v3, 6, v1")
    A(f"v_mul_u32_u24 v3, {H_RS}, v3")
    A("v_lshl_add_u32 v3, v0, 1, v3")
    A(f"v_add_u32 v3, {M_H}, v3")
    A("s_waitcnt lgkmcnt(0)")
    rnd(8); rnd(9)
    A(f"v_mul_f32 v10, 0x{f32bits(-1.4426950408889634):08x}, v8")
    A("v_exp_f32 v10, v10")
    A("s_nop 0")
    A("v_add_f32 v10, 1.0, v10")
    A("v_rcp_f32 v10, v10")
    A("s_nop 0")
    A("v_mul_f32 v10, v8, v10")
    rnd(10)
    A("v_mul_f32 v10, v10, v9")
    A("v_cvt_pk_bf16_f32 v10, v10, v10")
    A("ds_write_b16 v3, v10")
    A("s_waitcnt vmcnt(0)")
    down_perm(DRA, 32)
    L = A.newlabel("L_np8b")
    A(f"s_cmp_lg_u32 s{S_WAVE}, 0")
    A(f"s_cbranch_scc1 {L}")
    down_perm(DRB, 64)
    A.label(L)

def moe_down():
    T = S_T
    A("v_and_b32 v2, 7, v0")
    A(f"v_mul_u32_u24 v2, {H_RS}, v2")
    A("v_lshrrev_b32 v6, 4, v0")
    A("v_lshl_add_u32 v2, v6, 4, v2")
    A(f"v_add_u32 v2, {M_H}, v2")
    A(f"ds_read_b128 {p4(16)}, v2")
    A(f"ds_read_b128 {p4(20)}, v2 offset:64")
    A("v_and_b32 v4, 15, v0")
    A("v_lshlrev_b32 v5, 4, v4")
    A("v_lshl_add_u32 v5, v6, 9, v5")
    A(f"s_mul_i32 s{T+1}, s70, 18432")
    A(f"s_lshl_b32 s{T+2}, s{S_WAVE}, 11")
    A(f"s_add_u32 s{T+1}, s{T+1}, s{T+2}")
    A(f"v_add_u32 v5, s{T+1}, v5")
    add64(T+2, S_WS, WS_PART)
    A(f"s_mov_b32 s{T+4}, 0x07060503"); A(f"s_mov_b32 s{T+5}, 0x06050302"); A(f"s_mov_b32 s{T+6}, 0x05030201")
    A("v_cmp_gt_u32 vcc, 8, v4")
    A(f"s_mov_b64 {sp(T+12)}, vcc")
    A("s_waitcnt lgkmcnt(0)")
    def panel(F, ACC, G, vaddr):
        for e in range(4):
            A(f"v_mfma_f32_16x16x32_bf16 {p4(ACC+4*e)}, {p4(F+4*e)}, {p4(16)}, 0")
        for e in range(4):
            A(f"v_mfma_f32_16x16x32_bf16 {p4(ACC+4*e)}, {p4(F+16+4*e)}, {p4(20)}, {p4(ACC+4*e)}")
        A("s_nop 7"); A("s_nop 1")
        for r in range(4):
            g = G + 4*r
            a, b, c, d = ACC+r, ACC+4+r, ACC+8+r, ACC+12+r
            A(f"v_perm_b32 v{g}, v{a}, v{b}, s{T+4}")
            A(f"v_perm_b32 v{g+1}, v{b}, v{c}, s{T+5}")
            A(f"v_perm_b32 v{g+2}, v{c}, v{d}, s{T+6}")
            A(f"v_mov_b32 v{g+3}, s{S_NONCE}")
        A(f"s_mov_b64 exec, {sp(T+12)}")
        for r in range(4):
            A(f"global_store_dwordx4 v{vaddr}, {p4(G+4*r)}, {sp(T+2)} offset:{128*r} sc1")
        A("s_mov_b64 exec, -1")
    panel(32, 96, 112, 5)
    L = A.newlabel("L_np8c")
    A(f"s_cmp_lg_u32 s{S_WAVE}, 0")
    A(f"s_cbranch_scc1 {L}")
    A(f"v_add_u32 v7, {8*2048}, v5")
    panel(64, 96, 32, 7)
    A.label(L)

def moe_reduce():
    T = S_T
    A("v_lshrrev_b32 v6, 4, v0")
    A(f"s_mul_i32 s{T+1}, s{S_WAVE}, 9")
    A(f"v_add_u32 v1, s{T+1}, v6")
    A(f"v_mul_u32_u24 v1, 18432, v1")
    A("v_and_b32 v2, 15, v0")
    A("v_lshl_add_u32 v1, v2, 4, v1")
    A(f"s_lshl_b32 s{T+1}, s70, 8")
    A(f"v_add_u32 v1, s{T+1}, v1")
    A(f"v_add_u32 v3, {4*18432}, v1")
    A(f"v_mul_u32_u24 v4, 18432, v6")
    A(f"v_sub_u32 v4, v1, v4")
    A(f"v_add_u32 v4, {8*18432}, v4")
    A("v_lshrrev_b32 v50, 2, v0")
    A("v_and_b32 v51, 3, v0")
    A(f"s_lshl_b32 s{T+1}, s70, 4")
    A(f"v_add_u32 v52, s{T+1}, v50")
    A("v_and_b32 v53, 7, v52")
    A("v_lshrrev_b32 v54, 3, v52")
    A("v_lshl_add_u32 v54, v54, 2, v51")
    A("v_mul_u32_u24 v55, 576, v53")
    A("v_add_u32 v55, v55, v54")
    A("v_lshlrev_b32 v55, 3, v55")
    A(f"v_add_u32 v55, {WS_T1G}, v55")
    add64(T+2, S_WS, WS_PART)
    def ld():
        A(f"global_load_dwordx4 {p4(16)}, v1, {sp(T+2)} sc1")
        A(f"global_load_dwordx4 {p4(20)}, v3, {sp(T+2)} sc1")
        A(f"global_load_dwordx4 {p4(24)}, v4, {sp(T+2)} sc1")
        A(f"global_load_dwordx2 v[28:29], v55, {sp(S_WS)} sc1")
    tagcheck_loop(ld, [19, 23, 27, 29], 10, 12, sleep=1)
    stamp(8)
    tl(14, 151, 0)
    A(f"s_mov_b32 s{T+4}, 0x0403020c"); A(f"s_mov_b32 s{T+5}, 0x0504030c"); A(f"s_mov_b32 s{T+6}, 0xffffff00")
    U = 32
    for i in range(3):
        g = 16 + 4*i; u = U + 4*i
        A(f"v_and_b32 v{u}, s{T+6}, v{g}")
        A(f"v_perm_b32 v{u+1}, v{g}, v{g+1}, s{T+4}")
        A(f"v_perm_b32 v{u+2}, v{g+1}, v{g+2}, s{T+5}")
        A(f"v_lshlrev_b32 v{u+3}, 8, v{g+2}")
    for r in range(4):
        A(f"v_add_f32 v{U+r}, v{U+r}, v{U+4+r}")
    for swap in ("v_permlane32_swap_b32", "v_permlane16_swap_b32"):
        for r in range(4): A(f"v_mov_b32 v{44+r}, v{U+r}")
        A("s_nop 1")
        for r in range(4): A(f"{swap} v{U+r}, v{44+r}")
        for r in range(4): A(f"v_add_f32 v{U+r}, v{U+r}, v{44+r}")
    for r in range(4):
        A(f"v_add_f32 v{U+r}, v{U+r}, v{U+8+r}")
    A(f"s_lshl_b32 s{T+1}, s{S_WAVE}, 8")
    A("v_lshlrev_b32 v5, 4, v2")
    A(f"v_add_u32 v5, s{T+1}, v5")
    A(f"v_add_u32 v5, {M_RED}, v5")
    A("s_mov_b64 exec, 0xffff")
    A(f"ds_write_b128 v5, {p4(U)}")
    A("s_mov_b64 exec, -1")
    A("s_waitcnt lgkmcnt(0)")
    A("s_barrier")
    L = A.newlabel("L_nofin")
    A(f"s_cmp_lg_u32 s{S_WAVE}, 0")
    A(f"s_cbranch_scc1 {L}")
    A("v_lshlrev_b32 v6, 4, v50")
    A("v_lshl_add_u32 v6, v51, 2, v6")
    A(f"v_add_u32 v6, {M_RED}, v6")
    for w in range(8): A(f"ds_read_b32 v{16+w}, v6 offset:{256*w}")
    A(f"v_mul_u32_u24 v7, {XS_RS}, v53")
    A("v_lshl_add_u32 v7, v54, 1, v7")
    A(f"v_add_u32 v7, {M_XS}, v7")
    A("ds_read_u16 v24, v7")
    A("v_lshlrev_b32 v8, 2, v53")
    A(f"v_add_u32 v8, {M_MISC}, v8")
    A("ds_read_b32 v25, v8 offset:32")
    A("ds_read_b32 v26, v8 offset:64")
    A("v_mov_b32 v5, v54")
    A("s_waitcnt lgkmcnt(0)")
    A("v_add_f32 v16, v16, v17"); A("v_add_f32 v18, v18, v19"); A("v_add_f32 v20, v20, v21"); A("v_add_f32 v22, v22, v23")
    A("v_add_f32 v16, v16, v18"); A("v_add_f32 v20, v20, v22"); A("v_add_f32 v16, v16, v20")
    rnd(16)
    A("v_mul_f32 v16, v16, v26")
    rnd(16)
    A("v_lshlrev_b32 v24, 16, v24")
    A("v_add_f32 v16, v24, v16")
    rnd(16)
    A("v_add_f32 v16, v28, v16")
    A("v_cvt_pk_bf16_f32 v16, v16, v16")
    A("v_and_b32 v25, 0x7ff, v25")
    A("v_mul_u32_u24 v25, 1152, v25")
    A("v_lshl_add_u32 v25, v5, 1, v25")
    A(f"global_store_short v25, v16, {sp(S_OUT)}")
    A.label(L)

def lds_init_list():
    T = S_T
    A(f"s_lshl_b32 s{T+1}, s{S_WAVE}, 10")
    A("v_lshlrev_b32 v110, 4, v0")
    A(f"v_add_u32 v111, s{T+1}, v110")
    A(f"v_add_u32 v111, {M_LIST}, v111")
    for i in range(4): A(f"v_mov_b32 v{112+i}, 0xff800000")
    A(f"ds_write_b128 v111, {p4(112)}")
    L0 = A.newlabel("L_ni")
    A(f"s_cmp_lg_u32 s{S_WAVE}, 0")
    A(f"s_cbranch_scc1 {L0}")
    A(f"v_add_u32 v111, {M_LIST+8192}, v110")
    A("s_mov_b64 exec, 0xf")
    A(f"ds_write_b128 v111, {p4(112)}")
    A("s_mov_b64 exec, -1")
    for i in range(4): A(f"v_mov_b32 v{116+i}, 0")
    A(f"v_add_u32 v111, {M_MISC}, v110")
    A("s_mov_b64 exec, 0x3ff")
    A(f"ds_write_b128 v111, {p4(116)}")
    A("s_mov_b64 exec, -1")
    A.label(L0)

def sel_top8():
    T = S_T
    A(f"s_lshl_b32 s{T+1}, s{S_WAVE}, 6")
    A(f"v_add_u32 v1, s{T+1}, v0")
    A("v_lshlrev_b32 v2, 5, v1")
    add64(T+2, S_WS, WS_RG)
    K = 16
    def ld():
        for i in range(2):
            A(f"global_load_dwordx4 {p4(K+4*i)}, v2, {sp(T+2)} offset:{16*i} sc1")
    tagcheck_loop(ld, [K+2*i+1 for i in range(4)], 10, 12, sleep=1)
    stamp(5)
    tl(10, 255, 0)
    keys = [K+2*i for i in range(4)]
    A(f"v_max3_f32 v40, v{keys[0]}, v{keys[1]}, v{keys[2]}")
    A(f"v_max_f32 v40, v40, v{keys[3]}")
    for sh in (8, 4, 2, 1):
        A("s_nop 1")
        A(f"v_max_f32_dpp v40, v40, v40 row_ror:{sh} row_mask:0xf bank_mask:0xf")
    A("s_nop 1")
    A(f"v_readlane_b32 s{T+4}, v40, 16")
    A(f"v_readlane_b32 s{T+5}, v40, 32")
    A(f"v_readlane_b32 s{T+6}, v40, 48")
    A("s_nop 1")
    A(f"v_max_f32 v40, s{T+4}, v40")
    A(f"v_max_f32 v40, s{T+5}, v40")
    A(f"v_max_f32 v40, s{T+6}, v40")
    A(f"s_lshl_b32 s{T+4}, s{S_WAVE}, 2")
    A(f"s_add_u32 s{T+4}, s{T+4}, {M_MISC+96}")
    A(f"v_mov_b32 v43, s{T+4}")
    A("s_mov_b64 exec, 1")
    A(f"ds_write_b32 v43, v40")
    A("s_mov_b64 exec, -1")
    A("s_waitcnt lgkmcnt(0)")
    A("s_barrier")
    A(f"v_mov_b32 v43, {M_MISC+96}")
    A(f"ds_read_b128 {p4(44)}, v43")
    A(f"ds_read_b128 {p4(48)}, v43 offset:16")
    A("s_waitcnt lgkmcnt(0)")
    A("v_min3_f32 v40, v44, v45, v46")
    A("v_min3_f32 v41, v47, v48, v49")
    A("v_min3_f32 v40, v40, v50, v51")
    A("v_min_f32 v40, v40, v41")
    A("v_mov_b32 v41, 0")
    for i in range(4):
        A(f"v_cmp_ge_f32 {sp(T+4+2*i)}, v{keys[i]}, v40")
    for q in range(4):
        A(f"v_addc_co_u32 v41, vcc, 0, v41, {sp(T+4+2*q)}")
    A(f"v_mov_b32 v43, {M_MISC}")
    A("v_cmp_lt_u32 vcc, 0, v41")
    A(f"s_and_saveexec_b64 {sp(T+12)}, vcc")
    A("ds_add_rtn_u32 v42, v43, v41")
    A(f"s_mov_b64 exec, {sp(T+12)}")
    A("s_waitcnt lgkmcnt(0)")
    A("v_lshlrev_b32 v42, 2, v42")
    A(f"v_add_u32 v42, {M_LIST}, v42")
    A(f"v_mov_b32 v43, {S_DUMP}")
    for i in range(4):
        A(f"v_cndmask_b32 v44, v43, v42, {sp(T+4+2*i)}")
        A(f"v_cndmask_b32 v45, 0, 4, {sp(T+4+2*i)}")
        A(f"ds_write_b32 v44, v{keys[i]}")
        A(f"v_add_u32 v42, v42, v45")
    A("s_waitcnt lgkmcnt(0)")
    A("s_barrier")
    A(f"v_mov_b32 v43, {M_MISC}")
    A("ds_read_b32 v44, v43")
    A("s_waitcnt lgkmcnt(0)")
    A(f"v_readfirstlane_b32 s{T+8}, v44")
    A(f"s_mov_b32 s{T+9}, 0")
    Lc = A.newlabel("L_chunk"); Lj = A.newlabel("L_j")
    A.label(Lc)
    A(f"v_add_u32 v44, s{T+9}, v0")
    A("v_lshlrev_b32 v44, 2, v44")
    A(f"v_add_u32 v44, {M_LIST}, v44")
    A("ds_read_b32 v46, v44")
    A("v_mov_b32 v47, 0")
    A(f"v_mov_b32 v45, {M_LIST}")
    A(f"s_mov_b32 s{T+10}, 0")
    A.label(Lj)
    A(f"ds_read_b128 {p4(48)}, v45")
    A(f"ds_read_b128 {p4(52)}, v45 offset:16")
    A("v_add_u32 v45, 32, v45")
    A(f"s_add_u32 s{T+10}, s{T+10}, 8")
    A("s_waitcnt lgkmcnt(1)")
    for q in range(4):
        A(f"v_cmp_gt_f32 {sp(T+2*q)}, v{48+q}, v46")
    for q in range(4):
        A(f"v_addc_co_u32 v47, vcc, 0, v47, {sp(T+2*q)}")
    A("s_waitcnt lgkmcnt(0)")
    for q in range(4):
        A(f"v_cmp_gt_f32 {sp(T+2*q)}, v{52+q}, v46")
    for q in range(4):
        A(f"v_addc_co_u32 v47, vcc, 0, v47, {sp(T+2*q)}")
    A(f"s_cmp_lt_u32 s{T+10}, s{T+8}")
    A(f"s_cbranch_scc1 {Lj}")
    A(f"v_add_u32 v44, s{T+9}, v0")
    A(f"v_cmp_gt_u32 vcc, s{T+8}, v44")
    A(f"v_cmp_gt_u32 {sp(T)}, 8, v47")
    A("s_nop 1")
    A(f"s_and_b64 vcc, vcc, {sp(T)}")
    A(f"s_and_saveexec_b64 {sp(T+12)}, vcc")
    A("v_lshlrev_b32 v47, 2, v47")
    A(f"v_add_u32 v47, {M_MISC+32}, v47")
    A("ds_write_b32 v47, v46")
    A(f"s_mov_b64 exec, {sp(T+12)}")
    A(f"s_add_u32 s{T+9}, s{T+9}, 64")
    A(f"s_cmp_lt_u32 s{T+9}, s{T+8}")
    A(f"s_cbranch_scc1 {Lc}")
    A("s_waitcnt lgkmcnt(0)")
    stamp(6)

def sel_xs():
    T = S_T
    A(f"s_lshl_b32 s{T+1}, s{S_WAVE}, 2")
    A(f"s_add_u32 s{T+1}, s{T+1}, {M_MISC+32}")
    A(f"v_mov_b32 v1, s{T+1}")
    A("ds_read_b32 v16, v1")
    A("s_waitcnt lgkmcnt(0)")
    add64(T+2, S_WS, WS_SG)
    A("s_mov_b32 exec_hi, 0")
    A(f"v_and_b32 v18, 0x7ff, v16")
    A(f"v_mul_u32_u24 v20, 1152, v18")
    A(f"v_mul_u32_u24 v21, 36, v0")
    A(f"v_add_u32 v20, v20, v21")
    A(f"global_load_dwordx4 {p4(24)}, v20, {sp(S_Q)}")
    A(f"global_load_dwordx4 {p4(28)}, v20, {sp(S_Q)} offset:16")
    A(f"global_load_dword v32, v20, {sp(S_Q)} offset:32")
    A(f"v_lshlrev_b32 v22, 3, v18")
    A(f"v_mov_b32 v17, s{S_NONCE}")
    add64(T+4, S_WS, WS_SEL)
    A(f"s_lshl_b32 s{T+6}, s{S_WAVE}, 3")
    A(f"v_mov_b32 v19, s{T+6}")
    A("s_mov_b64 exec, 1")
    A(f"global_store_dwordx2 v19, v[16:17], {sp(T+4)} sc1")
    A("s_mov_b64 exec, 0xffffffff")
    tagcheck_loop(lambda: A(f"global_load_dwordx2 v[40:41], v22, {sp(T+2)} sc1"), [41], 10, 12)
    A(f"v_lshlrev_b32 v44, 16, v40")
    A(f"v_and_b32 v45, s{S_MASK}, v40")
    A("v_rcp_f32 v46, v45")
    A("s_nop 0")
    A("v_fma_f32 v47, -v45, v46, 1.0")
    A("v_fma_f32 v46, v47, v46, v46")
    G = 52
    for i in range(9):
        r = 24 + i
        t = 48 + 2*(i & 1)
        A(f"v_lshlrev_b32 v{t}, 16, v{r}")
        A(f"v_and_b32 v{t+1}, s{S_MASK}, v{r}")
        A(f"v_pk_add_f32 {p2(t)}, {p2(t)}, v[44:45] op_sel_hi:[1,0] neg_lo:[0,1] neg_hi:[0,1]")
        rnd(t); rnd(t+1)
        A(f"v_pk_mul_f32 {p2(t)}, {p2(t)}, v[46:47] op_sel_hi:[1,0]")
        A(f"v_cvt_pk_bf16_f32 v{G + 4*(i//3) + i%3}, v{t}, v{t+1}")
    for g in range(3): A(f"v_mov_b32 v{G+4*g+3}, s{S_NONCE}")
    A(f"s_mul_i32 s{T+4}, s{S_WAVE}, 1536")
    A("v_mul_u32_u24 v50, 48, v0")
    A(f"v_add_u32 v50, s{T+4}, v50")
    add64(T+2, S_WS, WS_XSG)
    for g in range(3):
        A(f"global_store_dwordx4 v50, {p4(G+4*g)}, {sp(T+2)} offset:{16*g} sc1")
    A("s_mov_b64 exec, -1")
    stamp(7)
    tl(11, 255, 7)

def spare_wg():
    T = S_T
    A(f"s_sub_u32 s69, s69, {NMOE}")
    Ls = A.newlabel("L_sln")
    A(f"s_cmp_ge_u32 s{S_WAVE}, 2")
    A(f"s_cbranch_scc1 {Ls}")
    A("s_lshl_b32 s68, s69, 3")
    A("s_add_u32 s68, s68, 1728")
    A(f"s_lshl_b32 s{T+1}, s{S_WAVE}, 2")
    A(f"s_add_u32 s68, s68, s{T+1}")
    ln_loads(68, LN_Q, True)
    A("s_waitcnt vmcnt(0)")
    ln_compute_publish(LN_Q, 3, True, hook=lambda: get_nonce(124))
    A.label(Ls)
    stamp(4)
    A(f"s_cmp_lg_u32 s69, {NLN-1}")
    A("s_cbranch_scc1 L_fin")
    lds_init_list()
    get_nonce(124)
    A("s_waitcnt lgkmcnt(0)")
    A("s_barrier")
    sel_top8()
    sel_xs()
    A("s_branch L_fin")

def moe_wg():
    T = S_T
    A(f"s_sub_u32 s69, s{S_WG}, {NCONV}")
    A(f"s_cmp_ge_u32 s69, {NMOE}")
    A("s_cbranch_scc1 L_spare")
    A("s_and_b32 s70, s69, 7")
    A("s_mul_i32 s70, s70, 9")
    A(f"s_lshr_b32 s{T+1}, s69, 3")
    A(f"s_add_u32 s70, s70, s{T+1}")
    if "mdelay" in OPTS:
        for _ in range(int(os.environ.get("MD", "1"))): A("s_sleep 64")
    moe_dma()
    moe_xs_addr()
    A("s_waitcnt vmcnt(4)")
    stamp(4)
    moe_xs_loads()
    A(f"global_load_dword v30, v4, {sp(S_DBG)} sc1")
    moe_down_loads()
    Lq = A.newlabel("L_w32")
    A(f"s_cmp_lg_u32 s{S_WAVE}, 0")
    A(f"s_cbranch_scc1 {Lq}")
    A("s_waitcnt vmcnt(32)")
    A.label(Lq)
    A(f"s_cmp_eq_u32 s{S_WAVE}, 0")
    A(f"s_cbranch_scc1 {Lq}_b")
    A("s_waitcnt vmcnt(16)")
    A.label(Lq + "_b")
    stamp(5)
    moe_xs_finish()

    stamp(6)
    A("s_waitcnt lgkmcnt(0)")
    A("s_barrier")
    moe_gateup()
    A("s_waitcnt lgkmcnt(0)")
    A("s_barrier")
    moe_h_and_down_stage()
    A("s_waitcnt lgkmcnt(0)")
    A("s_barrier")
    stamp(7)
    moe_down()
    moe_reduce()
    A("s_branch L_fin")
    A.label("L_spare")
    spare_wg()

def main():
    prologue()
    A(f"s_cmp_ge_u32 s{S_WG}, {NCONV}")
    A("s_cbranch_scc1 L_moe")
    conv_wg()
    A.label("L_moe")
    moe_wg()
    A.label("L_fin")
    tl(15, 151, 0)
    prof_end()
    A.label("L_end")
    A("s_endpgm")

main()
K = NAME + "_kernel"
LDS = max(L_CONV_END, M_END)
txt = HDR + f"; @launch grid=(256,1,1) block=(512,1,1) lds={LDS}\n" + '.amdgcn_target "amdgcn-amd-amdhsa--gfx950"\n.text\n' + head(K) + A.text() + kd(K, 256, 102, 128, "  .amdhsa_float_denorm_mode_32 3\n")
open(OUTFN, "w").write(txt)
print("wrote", OUTFN, len(txt), "LDS", LDS)
```

```python
import sys, struct, os
sys.path.insert(0, "dev")
from asmlib import *

OUTFN = sys.argv[1] if len(sys.argv) > 1 else "k.s"
OPTS = set(sys.argv[2:])
PROF = "prof" in OPTS
NT = "nt" if "nt" in OPTS else ""

WS_KVT = 0x000000
WS_XT = 0x240000
WS_RG = 0x480000
WS_SG = 0x484000
WS_FL = 0x488000
WS_FL2 = 0x488800
WS_SEL = 0x489800
WS_T1G = 0x48A000
WS_XSG = 0x494000
WS_PART = 0x4A0000
WS_PROF = 0x800000
WS_YG = 0x1000000
SPIN_MAX = 400000
NCONV, NMOE = 144, 72
NLN = 40
SELIDX = 39

S_WG, S_WAVE = 2, 3
S_Q, S_K, S_V, S_SK, S_H, S_D, S_BX, S_WR, S_WGT, S_WUP, S_WD, S_OUT, S_DBG, S_WS = 4, 6, 8, 10, 12, 14, 16, 18, 20, 22, 24, 26, 28, 30
SRD_K, SRD_V, SRD_Q, SRD_O = 32, 36, 40, 44
S_NONCE = 48
S_MASK, S_SELLO, S_SELHI = 50, 51, 52
S_T = 54

A = Asm()
def f32bits(x): return struct.unpack("<I", struct.pack("<f", x))[0]
def p2(r): return f"v[{r}:{r+1}]"
def p4(r): return f"v[{r}:{r+3}]"
def sp(r): return f"s[{r}:{r+1}]"

NSTAMP = 10
def stamp(i):
    if PROF: A(f"s_memtime s[{80+2*i}:{81+2*i}]")
def prof_begin():
    if PROF:
        A("s_memrealtime s[100:101]")
        stamp(0)
        for i in range(1, NSTAMP):
            A(f"s_mov_b64 s[{80+2*i}:{81+2*i}], 0")
def prof_end():
    if not PROF: return
    A(f"s_memrealtime s[{S_T+2}:{S_T+3}]")
    A("s_waitcnt lgkmcnt(0)")
    A(f"s_lshl_b32 s{S_T}, s{S_WG}, 3")
    A(f"s_add_u32 s{S_T}, s{S_T}, s{S_WAVE}")
    A(f"s_lshl_b32 s{S_T}, s{S_T}, 6")
    A(f"s_add_u32 s{S_T}, s{S_T}, {WS_PROF}")
    A(f"v_mov_b32 v1, s{S_T}")
    A("s_mov_b64 exec, 1")
    A("v_mov_b32 v2, s100")
    A(f"global_store_dword v1, v2, {sp(S_WS)}")
    A(f"v_mov_b32 v2, s{S_T+2}")
    A(f"global_store_dword v1, v2, {sp(S_WS)} offset:4")
    for i in range(1, NSTAMP):
        A(f"s_sub_u32 s{S_T+1}, s{80+2*i}, s80")
        A(f"v_mov_b32 v2, s{S_T+1}")
        A(f"global_store_dword v1, v2, {sp(S_WS)} offset:{4+4*i}")
    A("s_mov_b64 exec, -1")

TL = "tl" in OPTS
TLSET = os.environ.get("TLSET", "A")
def tl(slot, wg, wave, setname="A"):
    if not TL or setname != TLSET: return
    L = A.newlabel("L_tl")
    A(f"s_cmp_lg_u32 s{S_WG}, {wg}")
    A(f"s_cbranch_scc1 {L}")
    A(f"s_cmp_lg_u32 s{S_WAVE}, {wave}")
    A(f"s_cbranch_scc1 {L}")
    A("s_memrealtime s[98:99]")
    A("s_mov_b64 s[100:101], exec")
    A("s_mov_b64 exec, 1")
    A("v_readfirstlane_b32 s96, v126")
    A("v_readfirstlane_b32 s97, v127")
    A(f"v_mov_b32 v126, {4*slot}")
    A("s_waitcnt lgkmcnt(0)")
    A("v_mov_b32 v127, s98")
    A(f"global_store_dword v126, v127, {sp(S_DBG)}")
    A("s_nop 4")
    A("v_mov_b32 v126, s96")
    A("v_mov_b32 v127, s97")
    A("s_mov_b64 exec, s[100:101]")
    A.label(L)

def rnd(v, src=None):
    A(f"v_cvt_pk_bf16_f32 v{v}, 0, v{v if src is None else src}")
def srd(dst, base, nbytes):
    A(f"s_mov_b32 s{dst}, s{base}")
    A(f"s_and_b32 s{dst+1}, s{base+1}, 0xffff")
    A(f"s_mov_b32 s{dst+2}, {nbytes}")
    A(f"s_mov_b32 s{dst+3}, 0x00020000")
def add64(dst, src, imm):
    A(f"s_add_u32 s{dst}, s{src}, {imm}")
    A(f"s_addc_u32 s{dst+1}, s{src+1}, 0")

def get_nonce(vtmp):
    L = A.newlabel("L_nonce"); Ld = A.newlabel("L_nonced")
    A(f"v_mov_b32 v{vtmp}, 0")
    A(f"s_mov_b32 s{S_T}, 0")
    A.label(L)
    A(f"global_load_dword v{vtmp+1}, v{vtmp}, {sp(S_DBG)} sc1")
    A(f"s_waitcnt vmcnt(0)")
    A(f"v_readfirstlane_b32 s{S_NONCE}, v{vtmp+1}")
    A(f"s_add_u32 s{S_T}, s{S_T}, 1")
    A(f"s_cmp_lg_u32 s{S_NONCE}, 0")
    A(f"s_cbranch_scc1 {Ld}")
    A(f"s_cmp_lt_u32 s{S_T}, {SPIN_MAX}")
    A(f"s_cbranch_scc1 {L}")
    A.label(Ld)

def tag_acc(tagregs, vacc, vtmp):
    A(f"v_xor_b32 v{vacc}, s{S_NONCE}, v{tagregs[0]}")
    rest = tagregs[1:]
    i = 0
    while i < len(rest):
        if i + 1 < len(rest):
            A(f"v_xor_b32 v{vtmp}, s{S_NONCE}, v{rest[i]}")
            A(f"v_xor_b32 v{vtmp+1}, s{S_NONCE}, v{rest[i+1]}")
            A(f"v_or3_b32 v{vacc}, v{vacc}, v{vtmp}, v{vtmp+1}")
            i += 2
        else:
            A(f"v_xor_b32 v{vtmp}, s{S_NONCE}, v{rest[i]}")
            A(f"v_or_b32 v{vacc}, v{vacc}, v{vtmp}")
            i += 1

def tagcheck_loop(load_fn, tagregs, vacc, vtmp, sleep=1):
    T = S_T
    L = A.newlabel("L_pl"); Ld = A.newlabel("L_pld")
    A(f"s_mov_b32 s{T}, 0")
    A.label(L)
    load_fn()
    A("s_waitcnt vmcnt(0)")
    tag_acc(tagregs, vacc, vtmp)
    A(f"v_cmp_ne_u32 vcc, 0, v{vacc}")
    A(f"s_add_u32 s{T}, s{T}, 1")
    A("s_nop 3")
    A("s_cmp_eq_u64 vcc, 0")
    A(f"s_cbranch_scc1 {Ld}")
    if sleep: A(f"s_sleep {sleep}")
    A(f"s_cmp_lt_u32 s{T}, {SPIN_MAX}")
    A(f"s_cbranch_scc1 {L}")
    A.label(Ld)

def nonce_writer():
    L = A.newlabel("L_nw")
    A(f"s_cmp_ge_u32 s{S_WG}, 8")
    A(f"s_cbranch_scc1 {L}")
    A(f"s_cmp_lg_u32 s{S_WAVE}, 7")
    A(f"s_cbranch_scc1 {L}")
    A(f"s_memrealtime {sp(S_T)}")
    A("s_waitcnt lgkmcnt(0)")
    A(f"s_or_b32 s{S_T}, s{S_T}, 1")
    A(f"v_mov_b32 v10, s{S_T}")
    A("v_mov_b32 v11, 0")
    A("v_mov_b32 v12, 0")
    A("s_mov_b64 exec, 1")
    A(f"global_atomic_cmpswap v12, v[10:11], {sp(S_DBG)} sc1")
    A("s_mov_b64 exec, -1")
    A.label(L)

def code_prefetch():
    T = S_T
    L = A.newlabel("L_cpf")
    A(f"s_cmp_lg_u32 s{S_WAVE}, 6")
    A(f"s_cbranch_scc1 {L}")
    A(f"s_lshr_b32 s{T+2}, s{S_WG}, 3")
    A(f"s_cmp_ge_u32 s{T+2}, (L_end - {NAME}_kernel + 1023) / 1024")
    A(f"s_cbranch_scc1 {L}")
    A(f"s_getpc_b64 {sp(T)}")
    A.label(L + "_pc")
    A(f"s_sub_u32 s{T}, s{T}, {L}_pc - {NAME}_kernel")
    A(f"s_subb_u32 s{T+1}, s{T+1}, 0")
    A(f"s_lshl_b32 s{T+2}, s{T+2}, 10")
    A("v_lshlrev_b32 v1, 4, v0")
    A(f"v_add_u32 v1, s{T+2}, v1")
    A(f"global_load_dwordx4 a[124:127], v1, {sp(T)}")
    A.label(L)

def prologue():
    A(f"s_cmp_ge_u32 s{S_WG}, 256")
    A("s_cbranch_scc1 L_end")
    prof_begin()
    A("s_load_dwordx16 s[4:19], s[0:1], 0")
    A("s_load_dwordx8 s[20:27], s[0:1], 64")
    A("s_load_dwordx4 s[28:31], s[0:1], 96")
    A("v_lshrrev_b32 v1, 6, v0")
    A("v_and_b32 v0, 63, v0")
    A(f"v_readfirstlane_b32 s{S_WAVE}, v1")
    A(f"s_mov_b32 s{S_MASK}, 0xffff0000")
    A(f"s_mov_b32 s{S_SELLO}, 0x05040100")
    A(f"s_mov_b32 s{S_SELHI}, 0x07060302")
    A("s_waitcnt lgkmcnt(0)")
    stamp(1)
    tl(1, 0, 0); tl(2, 7, 0); tl(3, 4, 0)
    nonce_writer()
    code_prefetch()

def dpp_sum16(v):
    for sh in (8, 4, 2, 1):
        A("s_nop 1")
        A(f"v_add_f32_dpp v{v}, v{v}, v{v} row_ror:{sh} row_mask:0xf bank_mask:0xf")

LN_Q, LN_W, LN_Q2 = 10, 28, 46
def ln_loads(stok, Q, with_w):
    T = S_T
    A(f"s_mov_b32 s{T}, s{stok}")
    A("v_lshrrev_b32 v1, 4, v0")
    A("v_and_b32 v2, 15, v0")
    A(f"v_add_u32 v3, s{T}, v1")
    A(f"v_mul_u32_u24 v4, 1152, v3")
    A(f"v_lshl_add_u32 v5, v2, 4, v4")
    A(f"v_lshl_add_u32 v6, v2, 3, v4")
    for i in range(4):
        A(f"global_load_dwordx4 {p4(Q+4*i)}, v5, {sp(S_Q)} offset:{256*i} {NT}")
    A(f"global_load_dwordx2 {p2(Q+16)}, v6, {sp(S_Q)} offset:1024 {NT}")
    if with_w:
        W = LN_W
        A(f"v_lshlrev_b32 v7, 4, v2")
        A(f"v_lshlrev_b32 v8, 3, v2")
        for i in range(4):
            A(f"global_load_dwordx4 {p4(W+4*i)}, v7, {sp(S_WR)} offset:{256*i}")
        A(f"global_load_dwordx2 {p2(W+16)}, v8, {sp(S_WR)} offset:1024")

def dpp_sum16x(vs):
    for sh in (8, 4, 2, 1):
        if len(vs) < 3: A("s_nop 1")
        for v in vs:
            A(f"v_add_f32_dpp v{v}, v{v}, v{v} row_ror:{sh} row_mask:0xf bank_mask:0xf")

def ln_compute_publish(Q, vtok, first, vc=2, hook=None, publish=True):
    T = S_T
    W = LN_W
    A(f"s_mov_b32 s{T+8}, 0x3f803f80"); A(f"s_mov_b32 s{T+9}, 0x00003f80"); A(f"s_mov_b32 s{T+10}, 0x3f800000")
    accs = [64, 65, 66, 67] + ([68, 69] if first else [])
    for a in accs: A(f"v_mov_b32 v{a}, 0")
    for i in range(18):
        A(f"v_dot2_f32_bf16 v{64+(i&1)}, v{Q+i}, s{T+8}, v{64+(i&1)}")
        A(f"v_dot2_f32_bf16 v{66+(i&1)}, v{Q+i}, v{W+i}, v{66+(i&1)}")
        if first: A(f"v_dot2_f32_bf16 v{68+(i&1)}, v{W+i}, s{T+8}, v{68+(i&1)}")
    A("s_nop 2")
    A("v_add_f32 v64, v64, v65")
    A("v_add_f32 v66, v66, v67")
    if first:
        A("v_add_f32 v122, v68, v69")
        A("s_nop 0")
        dpp_sum16x([64, 66, 122])
    else:
        A("s_nop 0")
        dpp_sum16x([64, 66])
    A(f"v_mul_f32 v64, 0x{f32bits(1.0/576):08x}, v64")
    A("v_sub_f32 v65, 0, v64")
    for a in (68, 69, 70, 71): A(f"v_mov_b32 v{a}, 0")
    for i in range(0, 18, 2):
        A(f"v_dot2_f32_bf16 v72, v{Q+i}, s{T+9}, v65")
        A(f"v_dot2_f32_bf16 v73, v{Q+i}, s{T+10}, v65")
        A(f"v_dot2_f32_bf16 v74, v{Q+i+1}, s{T+9}, v65")
        A(f"v_dot2_f32_bf16 v75, v{Q+i+1}, s{T+10}, v65")
        A("s_nop 1")
        A(f"v_fma_f32 v68, v72, v72, v68")
        A(f"v_fma_f32 v69, v73, v73, v69")
        A(f"v_fma_f32 v70, v74, v74, v70")
        A(f"v_fma_f32 v71, v75, v75, v71")
    A("v_add_f32 v68, v68, v69"); A("v_add_f32 v70, v70, v71"); A("v_add_f32 v68, v68, v70")
    dpp_sum16x([68])
    A(f"v_mul_f32 v68, 0x{f32bits(1.0/576):08x}, v68")
    rnd(68)
    A(f"v_add_f32 v68, 0x{f32bits(1e-5):08x}, v68")
    rnd(68)
    A("v_sqrt_f32 v69, v68")
    A("s_nop 0")
    A("v_rcp_f32 v70, v69")
    A("v_fma_f32 v71, -v69, v69, v68")
    A("v_mul_f32 v70, 0.5, v70")
    A("v_fma_f32 v69, v71, v70, v69")
    rnd(69)
    A("v_rcp_f32 v70, v69")
    rnd(64)
    A("v_fma_f32 v66, -v64, v122, v66")
    A("v_mul_f32 v112, v66, v70")
    rnd(112)
    A(f"v_or_b32 v112, v112, v{vtok}")
    A("v_cvt_pk_bf16_f32 v114, v64, v69")
    if not publish:
        A("v_mov_b32 v32, v112"); A("v_mov_b32 v34, v114")
        return
    if hook: hook()
    ln_publish(vtok, vc)

def ln_publish(vtok, vc):
    T = S_T
    A(f"v_mov_b32 v113, s{S_NONCE}")
    A(f"v_mov_b32 v115, s{S_NONCE}")
    A(f"v_lshlrev_b32 v116, 3, v{vtok}")
    add64(T+2, S_WS, WS_RG)
    add64(T+4, S_WS, WS_SG)
    A(f"v_cmp_eq_u32 vcc, 0, v{vc}")
    A(f"s_and_saveexec_b64 {sp(T+6)}, vcc")
    A(f"global_store_dwordx2 v116, v[112:113], {sp(T+2)} sc1")
    A(f"global_store_dwordx2 v116, v[114:115], {sp(T+4)} sc1")
    A(f"s_mov_b64 exec, {sp(T+6)}")

P_CH = 4128
L_P = 0
L_Q = L_P + 4 * P_CH
Q_CPY = 1152
Q_CH = 4 * Q_CPY
L_KVL = L_Q + 4 * Q_CH
L_MC = L_KVL + 16384
L_SELT = L_MC + 64
L_ST = L_SELT + 128
TBLK = 1040
L_TK = (L_ST + 1024 + 15) // 16 * 16
L_TV = L_TK + 17 * TBLK
L_TQ = L_TV + 16 * TBLK
L_OT = L_TK
L_CONV_END = L_TQ + 16 * TBLK

def dma(voff, srdreg, soff, m0, flag=None):
    A(f"s_mov_b32 m0, {m0}")
    A("s_nop 0")
    A(f"buffer_load_dwordx4 v{voff}, s[{srdreg}:{srdreg+3}], {soff} offen {NT if flag is None else flag} lds")

def conv_tile():
    T = S_T
    A(f"s_sub_u32 s72, s{S_WAVE}, 4")
    A(f"s_mul_hi_u32 s77, s{S_WG}, {(2**32 + 8)//9}")
    A(f"s_mul_i32 s76, s77, 9")
    A(f"s_sub_u32 s76, s{S_WG}, s76")
    srd(SRD_K, S_K, 2359296)
    srd(SRD_V, S_V, 2359296)
    A("v_lshrrev_b32 v1, 3, v0")
    A("v_and_b32 v2, 7, v0")
    A(f"s_mul_i32 s{T+2}, s77, {128*1152}")
    A(f"s_lshl_b32 s{T+3}, s76, 7")
    A(f"s_add_u32 s{T+2}, s{T+2}, s{T+3}")
    A(f"v_mul_u32_u24 v3, 1152, v1")
    A(f"v_lshl_add_u32 v3, v2, 4, v3")
    A(f"v_add_u32 v3, s{T+2}, v3")
    A(f"s_mul_i32 s{T+4}, s{S_WAVE}, {2*9216}")
    A(f"s_mul_i32 s{T+6}, s{S_WAVE}, {2*TBLK}")
    for i in range(2):
        A(f"s_add_u32 s{T+7}, s{T+6}, {L_TK + TBLK + i*TBLK}")
        A(f"s_add_u32 s{T+5}, s{T+4}, {9216*i}")
        dma(3, SRD_K, f"s{T+5}", f"s{T+7}")
        A(f"s_add_u32 s{T+7}, s{T+6}, {L_TV + i*TBLK}")
        dma(3, SRD_V, f"s{T+5}", f"s{T+7}")
    L7 = A.newlabel("L_w7")
    A(f"s_cmp_lg_u32 s{S_WAVE}, 7")
    A(f"s_cbranch_scc1 {L7}")
    A(f"v_subrev_u32 v4, 9216, v3")
    A(f"s_cmp_lg_u32 s77, 0")
    A(f"s_cbranch_scc1 {L7}_a")
    A("v_bfrev_b32 v4, 1")
    A.label(L7 + "_a")
    dma(4, SRD_K, "0", L_TK)
    for i in range(4): A(f"v_mov_b32 v{52+i}, 0")
    A("v_lshlrev_b32 v56, 4, v0")
    A(f"v_add_u32 v56, {L_MC}, v56")
    A("s_mov_b64 exec, 0xfff")
    A(f"ds_write_b128 v56, {p4(52)}")
    A("s_mov_b64 exec, -1")
    A.label(L7)
    TR = 48
    A(f"s_lshr_b32 s{T+9}, s{S_WAVE}, 1")
    A(f"s_and_b32 s{T+10}, s{S_WAVE}, 1")
    A(f"s_lshl_b32 s{T+11}, s76, 9")
    A(f"s_lshl_b32 s{T+12}, s{T+9}, 7")
    A(f"s_add_u32 s{T+11}, s{T+11}, s{T+12}")
    A("v_lshlrev_b32 v5, 4, v1")
    A(f"v_add_u32 v5, s{T+11}, v5")
    A(f"global_load_dwordx4 {p4(TR)}, v5, {sp(S_SK)}")
    A("v_mov_b32 v120, 0")
    A(f"global_load_dword v121, v120, {sp(S_DBG)} sc1")
    A(f"s_and_b32 s{T+13}, s{S_WG}, 7")
    A(f"s_mul_i32 s{T+13}, s{T+13}, 18")
    A(f"s_lshr_b32 s{T+12}, s{S_WG}, 3")
    A(f"s_add_u32 s{T+13}, s{T+13}, s{T+12}")
    A(f"s_lshl_b32 s71, s{T+13}, 2")
    A(f"s_and_b32 s{T+12}, s{S_WAVE}, 3")
    A(f"s_add_u32 s78, s71, s{T+12}")
    A(f"s_lshl_b32 s79, s78, 12")
    A(f"s_lshl_b32 s{T+12}, s{T+10}, 3")
    A(f"v_add_u32 v6, s{T+12}, v2")
    A(f"s_lshl_b32 s{T+12}, s{T+9}, 3")
    A(f"v_add_u32 v7, s{T+12}, v1")
    A(f"v_mul_u32_u24 v9, {TBLK}, v6")
    A(f"v_lshl_add_u32 v9, v7, 2, v9")
    A(f"v_add_u32 v9, {L_TK}, v9")
    A(f"s_lshl_b32 s{T+11}, s76, 19")
    A(f"s_lshl_b32 s{T+12}, s77, 9")
    A(f"s_add_u32 s{T+11}, s{T+11}, s{T+12}")
    A(f"s_lshl_b32 s{T+12}, s{T+10}, 8")
    A(f"s_add_u32 s{T+11}, s{T+11}, s{T+12}")
    A("v_lshlrev_b32 v8, 14, v7")
    A("v_lshl_add_u32 v8, v2, 4, v8")
    A(f"v_add_u32 v8, s{T+11}, v8")
    if "hearly" in OPTS:
        Lh = A.newlabel("L_noh"); Lh2 = A.newlabel("L_noh2")
        A(f"s_cmp_ge_u32 s{S_WAVE}, 4")
        A(f"s_cbranch_scc1 {Lh}")
        srd(SRD_Q, S_H, 2359296)
        A("v_lshlrev_b32 v4, 4, v0")
        A(f"s_mul_i32 s74, s{S_WAVE}, {P_CH}")
        for q in range(4):
            A(f"s_add_u32 s{T+9}, s79, {1024*q}")
            A(f"s_add_u32 s{T+5}, s74, {32 + 1024*q}")
            dma(4, SRD_Q, f"s{T+9}", f"s{T+5}")
        A("s_waitcnt vmcnt(4) lgkmcnt(0)")
        A(f"s_branch {Lh2}")
        A.label(Lh)
        A("s_waitcnt vmcnt(0) lgkmcnt(0)")
        A.label(Lh2)
    else:
        A("s_waitcnt vmcnt(0) lgkmcnt(0)")
    A(f"v_readfirstlane_b32 s{S_NONCE}, v121")
    A("s_barrier")
    stamp(2)
    tl(4, 7, 0)
    KR, VR = 10, 21
    for j in range(11):
        off = (640 + 128*j if j < 3 else TBLK + 128*(j-3))
        A(f"ds_read_b32 v{KR+j}, v9 offset:{off}")
    for j in range(8):
        A(f"ds_read_b32 v{VR+j}, v9 offset:{L_TV - L_TK + 128*j}")
    Ln = A.newlabel("L_hasn")
    A(f"s_cmp_lg_u32 s{S_NONCE}, 0")
    A(f"s_cbranch_scc1 {Ln}")
    get_nonce(30)
    A.label(Ln)
    TP = 52
    A(f"v_lshlrev_b32 v{TP+0}, 16, v{TR}"); A(f"v_lshlrev_b32 v{TP+1}, 16, v{TR+2}")
    A(f"v_and_b32 v{TP+2}, s{S_MASK}, v{TR}"); A(f"v_and_b32 v{TP+3}, s{S_MASK}, v{TR+2}")
    A(f"v_lshlrev_b32 v{TP+4}, 16, v{TR+1}"); A(f"v_lshlrev_b32 v{TP+5}, 16, v{TR+3}")
    A(f"v_and_b32 v{TP+6}, s{S_MASK}, v{TR+1}"); A(f"v_and_b32 v{TP+7}, s{S_MASK}, v{TR+3}")
    KP = 80
    A("s_waitcnt lgkmcnt(8)")
    for j in range(11):
        A(f"v_lshlrev_b32 v{KP+2*j}, 16, v{KR+j}")
        A(f"v_and_b32 v{KP+2*j+1}, s{S_MASK}, v{KR+j}")
    R = 102
    tp = lambda tap: p2(TP+2*tap)
    for i in range(8): A(f"v_pk_mul_f32 {p2(R+2*i)}, {p2(KP+2*i)}, {tp(3)}")
    for i in range(8): A(f"v_pk_fma_f32 {p2(R+2*i)}, {p2(KP+2*(i+1))}, {tp(2)}, {p2(R+2*i)}")
    for i in range(8): A(f"v_pk_fma_f32 {p2(R+2*i)}, {p2(KP+2*(i+2))}, {tp(1)}, {p2(R+2*i)}")
    for i in range(8): A(f"v_pk_fma_f32 {p2(R+2*i)}, {p2(KP+2*(i+3))}, {tp(0)}, {p2(R+2*i)}")
    A("s_waitcnt lgkmcnt(0)")
    VP = 60
    for i in range(8):
        A(f"v_lshlrev_b32 v{VP+2*i}, 16, v{VR+i}"); A(f"v_and_b32 v{VP+2*i+1}, s{S_MASK}, v{VR+i}")
    for i in range(8): A(f"v_pk_mul_f32 {p2(R+2*i)}, {p2(R+2*i)}, {p2(VP+2*i)}")
    GQ = 80
    for c in range(2):
        for q in range(4):
            A(f"v_cvt_pk_bf16_f32 v{GQ+8*c+2*q}, v{R+4*q+c}, v{R+4*q+2+c}")
            A(f"v_mov_b32 v{GQ+8*c+2*q+1}, s{S_NONCE}")
    add64(T+2, S_WS, WS_KVT)
    add64(T+8, S_WS, WS_KVT+8192)
    A(f"global_store_dwordx4 v8, {p4(GQ)}, {sp(T+2)} sc1")
    A(f"global_store_dwordx4 v8, {p4(GQ+4)}, {sp(T+2)} offset:128 sc1")
    A(f"global_store_dwordx4 v8, {p4(GQ+8)}, {sp(T+8)} sc1")
    A(f"global_store_dwordx4 v8, {p4(GQ+12)}, {sp(T+8)} offset:128 sc1")
    for c in range(2):
        for q in range(4): A(f"v_mov_b32 v{120+4*c+q}, v{GQ+8*c+2*q}")
    A(f"s_lshl_b32 s{T+1}, s{S_WAVE}, 11")
    A("v_lshlrev_b32 v4, 5, v0")
    A(f"v_add_u32 v4, s{T+1}, v4")
    A(f"v_add_u32 v4, {L_KVL}, v4")
    A(f"ds_write_b128 v4, {p4(120)}")
    A(f"ds_write_b128 v4, {p4(124)} offset:16")
    stamp(3)
    if "hearly" not in OPTS:
        Lh = A.newlabel("L_noh")
        A(f"s_cmp_ge_u32 s{S_WAVE}, 4")
        A(f"s_cbranch_scc1 {Lh}")
        srd(SRD_V, S_H, 2359296)
        A("v_lshlrev_b32 v4, 4, v0")
        A(f"s_mul_i32 s74, s{S_WAVE}, {P_CH}")
        for q in range(4):
            A(f"s_add_u32 s{T+9}, s79, {1024*q}")
            A(f"s_add_u32 s{T+10}, s74, {32 + 1024*q}")
            dma(4, SRD_V, f"s{T+9}", f"s{T+10}")
        A.label(Lh)
    A("s_waitcnt lgkmcnt(0)")
    A("s_barrier")
    stamp(4)
    tl(5, 7, 0)
    if "dbgA" in OPTS: A("s_branch L_fin")

class LdsQ:
    def __init__(self): self.q = []
    def issue(self, instr, tag=None):
        A(instr); self.q.append(tag)
    def wait(self, tag):
        idxs = [i for i, t in enumerate(self.q) if t == tag]
        if not idxs: return
        last = idxs[-1]
        n = len(self.q) - 1 - last
        A(f"s_waitcnt lgkmcnt({min(n, 15)})")
        if n <= 15: self.q = self.q[last+1:]
        else: self.q = self.q[len(self.q)-15:]

def conv_mfma_wave():
    T = S_T
    A(f"s_mul_i32 s75, s{S_WAVE}, {Q_CH}")
    A(f"s_add_u32 s75, s75, {L_Q}")
    for i in range(4): A(f"v_mov_b32 v{16+i}, 0")
    A("v_lshlrev_b32 v2, 4, v0")
    A("v_add_u32 v2, s74, v2")
    A("s_mov_b64 exec, 3")
    A(f"ds_write_b128 v2, {p4(16)}")
    A("s_mov_b64 exec, -1")
    A("v_lshrrev_b32 v2, 3, v0")
    A(f"v_mul_u32_u24 v2, {Q_CPY}, v2")
    A("v_and_b32 v3, 7, v0")
    A("v_lshl_add_u32 v2, v3, 4, v2")
    A("v_add_u32 v2, s75, v2")
    A("s_mov_b64 exec, 0xffffffff")
    A(f"ds_write_b128 v2, {p4(16)}")
    A("s_mov_b64 exec, -1")
    A("v_and_b32 v3, 3, v0")
    A("v_bfe_u32 v4, v0, 2, 2")
    A("v_sub_u32 v3, v3, v4")
    A("v_lshlrev_b32 v3, 3, v3")
    A("v_lshrrev_b32 v4, 4, v0")
    A("v_lshl_add_u32 v3, v4, 6, v3")
    A("v_add_u32 v3, s74, v3")
    A("v_add_u32 v3, 32, v3")
    A("s_waitcnt vmcnt(4) lgkmcnt(0)" if "hearly" in OPTS else "s_waitcnt vmcnt(0) lgkmcnt(0)")
    G = 64
    def greg(e, s1): return G + 4*(8*e + s1)
    for s1 in range(8):
        for e in range(2):
            g = greg(e, s1)
            A(f"ds_read_b64_tr_b16 {p2(g)}, v3 offset:{512*s1+256*e+32}")
            A(f"ds_read_b64_tr_b16 {p2(g+2)}, v3 offset:{512*s1+256*e}")
        if s1 % 3 == 2: A("s_waitcnt lgkmcnt(4)")
    A("v_and_b32 v5, 15, v0")
    A("v_lshlrev_b32 v6, 3, v5")
    A("v_lshlrev_b32 v7, 4, v4")
    A("v_sub_u32 v6, v6, v7")
    A("v_add_u32 v6, s75, v6")
    A("v_add_u32 v6, 56, v6")
    A("v_lshlrev_b32 v7, 6, v5")
    A("v_lshl_add_u32 v7, v4, 4, v7")
    A(f"s_lshl_b32 s{T+1}, s78, 13")
    A(f"v_add_u32 v7, s{T+1}, v7")
    A(f"v_add_u32 v11, 4096, v7")
    add64(62, S_WS, WS_YG)
    A("v_subrev_u32 v8, 16, v0")
    A("v_add_u32 v9, 47, v0")
    A("v_cmp_gt_u32 vcc, 16, v0")
    A("s_nop 1")
    A("v_cndmask_b32 v8, v8, v9, vcc")
    A("v_mov_b32 v9, 63")
    A("v_cmp_eq_u32 vcc, 0, v0")
    A("s_nop 1")
    A("v_cndmask_b32 v8, v8, v9, vcc")
    A("v_lshlrev_b32 v8, 2, v8")
    A(f"v_mov_b32 v9, {L_MC}")
    A("v_mov_b32 v10, 1")
    A(f"s_mov_b64 {sp(66)}, 1")
    add64(64, S_WS, WS_KVT)
    A(f"s_lshl_b32 s{T+1}, s78, 13")
    A("v_lshlrev_b32 v1, 4, v0")
    A(f"v_add_u32 v1, s{T+1}, v1")
    A("v_add_u32 v12, 4096, v1")
    A("v_lshrrev_b32 v2, 4, v0")
    A("v_lshlrev_b32 v2, 4, v2")
    A("v_and_b32 v13, 7, v0")
    A("v_lshl_add_u32 v2, v13, 1, v2")
    A("v_bfe_u32 v13, v0, 3, 1")
    A("v_add_u32 v2, v2, v13")
    A("v_lshlrev_b32 v2, 1, v2")
    A("v_add_u32 v2, s75, v2")
    A("v_and_b32 v13, 15, v0")
    A("v_lshlrev_b32 v13, 9, v13")
    A(f"v_add_u32 v13, s{T+1}, v13")
    A("v_add_u32 v13, 504, v13")
    stamp(5)
    tagcheck_loop(lambda: A(f"global_load_dwordx2 v[14:15], v13, {sp(64)} sc1"), [15], 16, 17, sleep=1)
    stamp(6)
    tl(6, 7, 0)
    KV = 16
    def ldkv():
        for q in range(8):
            A(f"global_load_dwordx4 {p4(KV+4*q)}, v{1 if q < 4 else 12}, {sp(64)} offset:{1024*(q % 4)} sc1")
    tagcheck_loop(ldkv, [KV+4*q+1+2*h for q in range(8) for h in range(2)], 14, 48, sleep=1)
    for q in range(8):
        r = KV + 4*q
        o = 128 + 128*q
        A(f"ds_write_b16 v2, v{r} offset:{0*Q_CPY+o}")
        A(f"ds_write_b16_d16_hi v2, v{r} offset:{1*Q_CPY+o}")
        A(f"ds_write_b16 v2, v{r+2} offset:{2*Q_CPY+o}")
        A(f"ds_write_b16_d16_hi v2, v{r+2} offset:{3*Q_CPY+o}")
    A("s_waitcnt lgkmcnt(0)")
    for i in range(3): A(f"v_mov_b32 v{40+i}, 0")
    stamp(7)
    tl(7, 7, 0)
    lq = LdsQ()
    classes = [(c1, sg, e) for c1 in range(8) for sg in range(4) for e in range(2)]
    free = [48, 52, 56, 60]
    fbuf = {}
    def fread(k):
        c1, sg, e = classes[k]
        b = free.pop(0); fbuf[k] = b
        off = sg*Q_CPY + 128*c1 + 64*(1-e)
        lq.issue(f"ds_read_b64 {p2(b)}, v6 offset:{off}", ("F", k))
        lq.issue(f"ds_read_b64 {p2(b+2)}, v6 offset:{off+8}", ("F", k))
    def acc(sg, t): return (sg*8 + t)*4
    def combine_ops(t):
        a = 16
        ops = []
        for sg in range(4):
            for r in range(4):
                ops.append(lambda sg=sg, r=r: A(f"v_accvgpr_read_b32 v{a+4*sg+r}, a{acc(sg,t)+r}"))
        a0, a1, a2, a3 = a, a+4, a+8, a+12
        C = 32 + 0
        ops.append(lambda: A(f"v_add_f32 v{C}, v{a1+3}, v{a2+2}"))
        ops.append(lambda: A(f"v_add_f32 v{C+1}, v{a2+3}, v{a3+2}"))
        ops.append(lambda: A(f"v_add_f32 v{C}, v{C}, v{a3+1}"))
        P = 36 + 4*(t & 1)
        Pp = 36 + 4*((t+1) & 1)
        ops.append(lambda: lq.issue(f"ds_bpermute_b32 v{P}, v8, v{C}", ("B", t)))
        ops.append(lambda: lq.issue(f"ds_bpermute_b32 v{P+1}, v8, v{C+1}", ("B", t)))
        ops.append(lambda: lq.issue(f"ds_bpermute_b32 v{P+2}, v8, v{a3+3}", ("B", t)))
        ops.append(lambda: A(f"v_add_f32 v{a0+1}, v{a0+1}, v{a1}"))
        ops.append(lambda: A(f"v_add_f32 v{a0+2}, v{a0+2}, v{a1+1}"))
        ops.append(lambda: A(f"v_add_f32 v{a0+3}, v{a0+3}, v{a1+2}"))
        ops.append(lambda: A(f"v_add_f32 v{a0+2}, v{a0+2}, v{a2}"))
        ops.append(lambda: A(f"v_add_f32 v{a0+3}, v{a0+3}, v{a2+1}"))
        ops.append(lambda: A(f"v_add_f32 v{a0+3}, v{a0+3}, v{a3}"))
        ops.append(lambda: lq.wait(("B", t)))
        for i in range(3):
            ops.append(lambda i=i: A(f"v_cndmask_b32 v{44+i}, v{P+i}, v{Pp+i}, {sp(66)}"))
        for i in range(3):
            ops.append(lambda i=i: A(f"v_add_f32 v{a0+i}, v{a0+i}, v{44+i}"))
        YQ = 12 if False else 44
        ops.append(lambda: A(f"v_cvt_pk_bf16_f32 v44, v{a0}, v{a0+1}"))
        ops.append(lambda: A(f"v_mov_b32 v45, s{S_NONCE}"))
        ops.append(lambda: A(f"v_cvt_pk_bf16_f32 v46, v{a0+2}, v{a0+3}"))
        ops.append(lambda: A(f"v_mov_b32 v47, s{S_NONCE}"))
        ops.append(lambda: A(f"global_store_dwordx4 v{7 if t < 4 else 11}, {p4(44)}, {sp(62)} offset:{1024*(t % 4)} sc1"))
        ops.append(lambda: A("s_nop 1"))
        return ops
    nxt = 0
    def topup(maxn=2):
        nonlocal nxt
        n = 0
        while free and nxt < len(classes) and n < maxn and len(lq.q) <= 10:
            fread(nxt); nxt += 1; n += 1
    topup(3)
    pending = []
    k = 0
    for c1 in range(8):
        nm_step = 8*(8-c1)
        if c1 > 0:
            pending = combine_ops(c1-1)
            free.extend([greg(0, 8-c1), greg(1, 8-c1)])
        per = 0
        if pending:
            avail = max(1, nm_step - 3)
            per = -(-len(pending) // avail)
        mi = 0
        for sg in range(4):
            for e in range(2):
                while nxt <= k: topup(1)
                lq.wait(("F", k))
                b = fbuf[k]
                for s1 in range(8-c1):
                    t = s1 + c1
                    d = acc(sg, t)
                    cin = "0" if (c1 == 0 and e == 0) else f"a[{d}:{d+3}]"
                    A(f"v_mfma_f32_16x16x32_bf16 a[{d}:{d+3}], {p4(greg(e, s1))}, {p4(b)}, {cin}")
                    mi += 1
                    if s1 == 0: topup(1)
                    if pending and mi >= 3:
                        for _ in range(per):
                            if pending: pending.pop(0)()
                free.append(b)
                k += 1
        while pending: pending.pop(0)()
    A("s_nop 7"); A("s_nop 1")
    for op in combine_ops(7): op()
    A("s_mov_b64 exec, 1")
    A("ds_add_u32 v9, v10")
    A("s_mov_b64 exec, -1")
    stamp(8)
    tl(8, 7, 0)

def lds_spin(addr_off, target, va, vb, sleep=1):
    T = S_T
    L = A.newlabel("L_ls")
    A(f"v_mov_b32 v{va}, {L_MC}")
    A(f"s_mov_b32 s{T+1}, 0")
    A.label(L)
    A(f"ds_read_b32 v{vb}, v{va} offset:{addr_off}")
    A("s_waitcnt lgkmcnt(0)")
    A(f"v_readfirstlane_b32 s{T}, v{vb}")
    A(f"s_add_u32 s{T+1}, s{T+1}, 1")
    A(f"s_cmp_ge_u32 s{T+1}, {SPIN_MAX*4}")
    A(f"s_cbranch_scc1 {L}_d")
    A(f"s_cmp_ge_u32 s{T}, {target}")
    A(f"s_cbranch_scc1 {L}_d")
    if sleep: A(f"s_sleep {sleep}")
    A(f"s_branch {L}")
    A.label(L + "_d")

def conv_helper_prep():
    T = S_T
    srd(SRD_Q, S_Q, 2359296)
    A(f"s_mul_i32 s{T+4}, s72, {4*9216}")
    A(f"s_mul_i32 s{T+6}, s72, {4*TBLK}")
    A(f"s_add_u32 s{T+6}, s{T+6}, {L_TQ}")
    for i in range(4):
        dma(3, SRD_Q, f"s{T+4}", f"s{T+6}")
        A(f"s_add_u32 s{T+4}, s{T+4}, 9216")
        A(f"s_add_u32 s{T+6}, s{T+6}, {TBLK}")
    L4 = A.newlabel("L_h4"); L5 = A.newlabel("L_h5"); Le = A.newlabel("L_he")
    A(f"s_cmp_eq_u32 s{S_WAVE}, 4")
    A(f"s_cbranch_scc1 {L4}")
    A(f"s_cmp_eq_u32 s{S_WAVE}, 5")
    A(f"s_cbranch_scc1 {L5}")
    A(f"s_branch {Le}")
    A.label(L4)
    A(f"s_lshl_b32 s{T+1}, s77, 10")
    A("v_lshlrev_b32 v10, 4, v0")
    A(f"v_add_u32 v11, s{T+1}, v10")
    add64(T+2, S_WS, WS_SG)
    tagcheck_loop(lambda: A(f"global_load_dwordx4 {p4(12)}, v11, {sp(T+2)} sc1"), [13, 15], 16, 17, sleep=4)
    A("v_lshlrev_b32 v20, 16, v12"); A(f"v_and_b32 v21, s{S_MASK}, v12")
    A("v_lshlrev_b32 v22, 16, v14"); A(f"v_and_b32 v23, s{S_MASK}, v14")
    A("v_rcp_f32 v21, v21"); A("v_rcp_f32 v23, v23")
    A(f"v_add_u32 v10, {L_ST}, v10")
    A("s_nop 0")
    A(f"ds_write_b128 v10, {p4(20)}")
    A(f"s_branch {Le}")
    A.label(L5)
    A("v_and_b32 v10, 7, v0")
    A("v_lshlrev_b32 v11, 3, v10")
    add64(T+2, S_WS, WS_SEL)
    tagcheck_loop(lambda: A(f"global_load_dwordx2 v[12:13], v11, {sp(T+2)} sc1"), [13], 16, 17, sleep=4)
    A("v_and_b32 v12, 0x7ff, v12")
    A(f"s_lshl_b32 s{T+1}, s77, 7")
    A(f"v_subrev_u32 v12, s{T+1}, v12")
    A("v_cmp_gt_u32 vcc, 128, v12")
    A("v_or_b32 v13, 0x80, v10")
    A(f"v_add_u32 v12, {L_SELT}, v12")
    A("s_and_b32 vcc_lo, vcc_lo, 0xff")
    A("s_mov_b32 vcc_hi, 0")
    A("s_mov_b64 exec, vcc")
    Lk = A.newlabel("L_nsel")
    A(f"s_cbranch_execz {Lk}")
    A("ds_write_b8 v12, v13")
    A.label(Lk)
    A("s_mov_b64 exec, -1")
    A.label(Le)
    A("s_waitcnt vmcnt(0) lgkmcnt(0)")
    A(f"v_mov_b32 v10, {L_MC}")
    A("v_mov_b32 v11, 1")
    A("s_mov_b64 exec, 1")
    A("ds_add_u32 v10, v11 offset:4")
    A("s_mov_b64 exec, -1")
    stamp(5)
    lds_spin(0, 4, 10, 11, sleep=2)
    stamp(6)

def conv_epilogue():
    T = S_T
    A("; ---- epilogue ----")
    lds_spin(4, 4, 10, 11, sleep=1)
    A("v_and_b32 v2, 7, v0"); A("v_lshrrev_b32 v1, 3, v0")
    A(f"s_and_b32 s{T+1}, s{S_WAVE}, 1"); A(f"s_lshl_b32 s{T+1}, s{T+1}, 3")
    A(f"v_add_u32 v6, s{T+1}, v2")
    A(f"s_lshr_b32 s{T+2}, s{S_WAVE}, 1"); A(f"s_lshl_b32 s{T+2}, s{T+2}, 3")
    A(f"v_add_u32 v7, s{T+2}, v1")
    A(f"s_lshl_b32 s{T+1}, s76, 19")
    A(f"s_lshl_b32 s{T+2}, s77, 9")
    A(f"s_add_u32 s{T+1}, s{T+1}, s{T+2}")
    A("v_lshlrev_b32 v8, 14, v7")
    A("v_lshl_add_u32 v8, v6, 5, v8")
    A(f"v_add_u32 v8, s{T+1}, v8")
    A("v_add_u32 v9, 8192, v8")
    add64(62, S_WS, WS_YG)
    A(f"v_mul_u32_u24 v10, {TBLK}, v6")
    A("v_lshl_add_u32 v10, v7, 2, v10")
    A(f"v_add_u32 v11, {L_TQ}, v10")
    XR = 16
    for i in range(8): A(f"ds_read_b32 v{XR+i}, v11 offset:{128*i}")
    A(f"s_lshl_b32 s{T+1}, s{S_WAVE}, 11")
    A("v_lshlrev_b32 v12, 5, v0")
    A(f"v_add_u32 v12, s{T+1}, v12")
    A(f"v_add_u32 v12, {L_KVL}, v12")
    KV = 24
    A(f"ds_read_b128 {p4(KV)}, v12")
    A(f"ds_read_b128 {p4(KV+4)}, v12 offset:16")
    A("v_lshlrev_b32 v12, 6, v6")
    A(f"v_add_u32 v12, {L_ST}, v12")
    SR = 32
    for i in range(4): A(f"ds_read_b128 {p4(SR+4*i)}, v12 offset:{16*i}")
    A("v_lshlrev_b32 v12, 3, v6")
    A(f"v_add_u32 v12, {L_SELT}, v12")
    A("ds_read_b64 v[48:49], v12")
    A(f"s_lshl_b32 s{T+1}, s76, 7")
    A("v_lshlrev_b32 v13, 2, v7")
    A(f"v_add_u32 v13, s{T+1}, v13")
    A(f"global_load_dword v50, v13, {sp(S_D)}")
    YR = 64
    def ld():
        A(f"global_load_dwordx4 {p4(YR)}, v8, {sp(62)} sc1")
        A(f"global_load_dwordx4 {p4(YR+4)}, v8, {sp(62)} offset:16 sc1")
        A(f"global_load_dwordx4 {p4(YR+8)}, v9, {sp(62)} sc1")
        A(f"global_load_dwordx4 {p4(YR+12)}, v9, {sp(62)} offset:16 sc1")
    A("s_waitcnt lgkmcnt(0)")
    XN, SS = 80, 96
    for i in range(8):
        m, rs = SR+2*i, SR+2*i+1
        A(f"v_lshlrev_b32 v{SS+2*i}, 16, v{XR+i}"); A(f"v_and_b32 v{SS+2*i+1}, s{S_MASK}, v{XR+i}")
        A(f"v_sub_f32 v{XN+2*i}, v{SS+2*i}, v{m}"); A(f"v_sub_f32 v{XN+2*i+1}, v{SS+2*i+1}, v{m}")
        A(f"v_mul_f32 v{XN+2*i}, v{XN+2*i}, v{rs}"); A(f"v_mul_f32 v{XN+2*i+1}, v{XN+2*i+1}, v{rs}")
        A(f"v_pk_add_f32 {p2(SS+2*i)}, {p2(SS+2*i)}, {p2(XN+2*i)}")
    stamp(7)
    tagcheck_loop(ld, [YR+2*j+1 for j in range(8)], 14, 52, sleep=1)
    A(f"v_lshlrev_b32 v52, 16, v50"); A(f"v_and_b32 v53, s{S_MASK}, v50")
    O = 112
    for i in range(8):
        for c in range(2):
            yr = YR + 8*c + 2*(i >> 1); kr = KV + 4*c + (i >> 1)
            t0, t1 = 54 + 2*c, 55 + 2*c
            if i & 1:
                A(f"v_and_b32 v{t0}, s{S_MASK}, v{yr}"); A(f"v_and_b32 v{t1}, s{S_MASK}, v{kr}")
            else:
                A(f"v_lshlrev_b32 v{t0}, 16, v{yr}"); A(f"v_lshlrev_b32 v{t1}, 16, v{kr}")
            A(f"v_fma_f32 v{t0}, v{t1}, v{52+c}, v{t0}")
            A(f"v_fma_f32 v{SS+2*i+c}, v{XN+2*i+c}, v{t0}, v{SS+2*i+c}")
        A(f"v_cvt_pk_bf16_f32 v{O+i}, v{SS+2*i}, v{SS+2*i+1}")
    A(f"v_add_u32 v11, {L_OT}, v10")
    for i in range(8): A(f"ds_write_b32 v11, v{O+i} offset:{128*i}")
    Lx = A.newlabel("L_nt1")
    A("v_or_b32 v12, v48, v49")
    A("v_cmp_ne_u32 vcc, 0, v12")
    A("s_nop 3")
    A("s_cmp_eq_u64 vcc, 0")
    A(f"s_cbranch_scc1 {Lx}")
    add64(64, S_WS, WS_T1G)
    A(f"s_lshl_b32 s{T+1}, s76, 6")
    A("v_lshlrev_b32 v13, 1, v7")
    A(f"v_add_u32 v13, s{T+1}, v13")
    for i in range(8):
        Li = A.newlabel("L_t1i")
        A(f"v_bfe_u32 v12, v{48 + (i >> 2)}, {8*(i & 3)}, 8")
        A("v_cmp_lt_u32 vcc, 0x7f, v12")
        A(f"s_and_saveexec_b64 {sp(T+12)}, vcc")
        A(f"s_cbranch_execz {Li}")
        A("v_and_b32 v12, 7, v12")
        A("v_mul_u32_u24 v12, 576, v12")
        A("v_add_u32 v12, v12, v13")
        A("v_lshlrev_b32 v12, 3, v12")
        A(f"v_sub_f32 v56, v{SS+2*i}, v{XN+2*i}")
        A(f"v_mov_b32 v57, s{S_NONCE}")
        A(f"v_sub_f32 v58, v{SS+2*i+1}, v{XN+2*i+1}")
        A(f"v_mov_b32 v59, s{S_NONCE}")
        A(f"global_store_dwordx4 v12, {p4(56)}, {sp(64)} sc1")
        A.label(Li)
        A(f"s_mov_b64 exec, {sp(T+12)}")
    A.label(Lx)
    A("s_waitcnt lgkmcnt(0)")
    A("s_barrier")
    A(f"s_lshl_b32 s{T+1}, s{S_WAVE}, 3")
    A(f"v_add_u32 v1, s{T+1}, v1")
    A("v_lshrrev_b32 v3, 3, v1")
    A(f"v_mul_u32_u24 v3, {TBLK}, v3")
    A("v_and_b32 v4, 7, v1")
    A("v_lshl_add_u32 v3, v4, 7, v3")
    A("v_lshl_add_u32 v3, v2, 4, v3")
    A(f"v_add_u32 v3, {L_OT}, v3")
    A(f"ds_read_b128 {p4(16)}, v3")
    A(f"ds_read_b128 {p4(20)}, v3 offset:{8*TBLK}")
    A(f"v_add_u32 v4, {L_SELT}, v1")
    A("ds_read_u8 v24, v4")
    A("ds_read_u8 v25, v4 offset:64")
    srd(SRD_O, S_OUT, 2359296)
    A(f"s_mul_i32 s{T+1}, s77, {128*1152}")
    A(f"s_lshl_b32 s{T+2}, s76, 7")
    A(f"s_add_u32 s{T+1}, s{T+1}, s{T+2}")
    A("v_mul_u32_u24 v5, 1152, v1")
    A("v_lshl_add_u32 v5, v2, 4, v5")
    A(f"v_add_u32 v5, s{T+1}, v5")
    A(f"v_add_u32 v6, {64*1152}, v5")
    A("s_waitcnt lgkmcnt(0)")
    for h, (va, vs, vd) in enumerate(((5, 24, 16), (6, 25, 20))):
        A(f"v_lshlrev_b32 v{vs}, 24, v{vs}")
        A(f"v_and_b32 v{vs}, 0x80000000, v{vs}")
        A(f"v_or_b32 v{va}, v{va}, v{vs}")
        A(f"buffer_store_dwordx4 {p4(vd)}, v{va}, s[{SRD_O}:{SRD_O+3}], 0 offen")
    stamp(9)
    tl(9, 7, 0)

def conv_wg():
    conv_tile()
    A(f"s_cmp_ge_u32 s{S_WAVE}, 4")
    A("s_cbranch_scc1 L_helper")
    conv_mfma_wave()
    A("s_branch L_epi")
    A.label("L_helper")
    conv_helper_prep()
    A.label("L_epi")
    conv_epilogue()
    A("s_branch L_fin")

M_WG = 0
M_WU = 73728
M_XS = 147456
XS_RS = 1168
M_H = M_XS + 8*XS_RS
H_RS = 144
M_GU = M_H + 8*H_RS
M_RED = M_GU
M_MISC = M_GU + 4096
M_END = M_MISC + 160
M_LIST = 0
S_DUMP = 16384

def moe_dma():
    T = S_T
    srd(SRD_K, S_WGT, 5308416)
    srd(SRD_V, S_WUP, 5308416)
    A("v_lshrrev_b32 v1, 3, v0")
    A("v_and_b32 v2, 7, v0")
    A("v_bfe_u32 v3, v0, 4, 1")
    A(f"s_and_b32 s{T+1}, s{S_WAVE}, 1")
    A(f"s_lshl_b32 s{T+1}, s{T+1}, 1")
    A(f"v_add_u32 v3, s{T+1}, v3")
    A("v_lshlrev_b32 v3, 1, v3")
    A("v_xor_b32 v2, v2, v3")
    A("v_mul_u32_u24 v1, 9216, v1")
    A("v_lshl_add_u32 v1, v2, 4, v1")
    A(f"s_lshl_b32 s{T+1}, s70, 7")
    A(f"v_add_u32 v1, s{T+1}, v1")
    A(f"s_mul_i32 s{T+3}, s{S_WAVE}, 73728")
    A(f"s_lshl_b32 s{T+4}, s{S_WAVE}, 10")
    A(f"s_mov_b32 s{T+5}, 0")
    L = A.newlabel("L_dma")
    A.label(L)
    A(f"s_add_u32 m0, s{T+4}, {M_WG}")
    A("s_nop 0")
    A(f"buffer_load_dwordx4 v1, s[{SRD_K}:{SRD_K+3}], s{T+3} offen {NT} lds")
    A(f"s_add_u32 m0, s{T+4}, {M_WU}")
    A(f"s_add_u32 s{T+5}, s{T+5}, 1")
    A(f"buffer_load_dwordx4 v1, s[{SRD_V}:{SRD_V+3}], s{T+3} offen {NT} lds")
    A(f"s_add_u32 s{T+3}, s{T+3}, {8*73728}")
    A(f"s_add_u32 s{T+4}, s{T+4}, {8*1024}")
    A(f"s_cmp_lt_u32 s{T+5}, 9")
    A(f"s_cbranch_scc1 {L}")

def moe_sel_wait():
    T = S_T
    A(f"s_lshl_b32 s{T+1}, s{S_WAVE}, 3")
    A(f"s_add_u32 s{T+1}, s{T+1}, {WS_SEL}")
    A(f"v_mov_b32 v3, s{T+1}")
    A("v_mov_b32 v4, 0")
    L = A.newlabel("L_sw"); Ld = A.newlabel("L_swd")
    A(f"s_mov_b32 s{T}, 0")
    A.label(L)
    A(f"global_load_dwordx2 v[16:17], v3, {sp(S_WS)} sc1")
    A(f"global_load_dword v30, v4, {sp(S_DBG)} sc1")
    A("s_waitcnt vmcnt(0)")
    A(f"v_readfirstlane_b32 s{S_NONCE}, v30")
    A(f"v_readfirstlane_b32 s{T+2}, v17")
    A(f"s_add_u32 s{T}, s{T}, 1")
    A(f"s_cmp_ge_u32 s{T}, {SPIN_MAX}")
    A(f"s_cbranch_scc1 {Ld}")
    A(f"s_cmp_eq_u32 s{S_NONCE}, 0")
    A(f"s_cbranch_scc1 {L}_s")
    A(f"s_cmp_eq_u32 s{T+2}, s{S_NONCE}")
    A(f"s_cbranch_scc1 {Ld}")
    A.label(L + "_s")
    A("s_sleep 3")
    A(f"s_branch {L}")
    A.label(Ld)

def moe_row_loads():
    T = S_T
    A("v_and_b32 v18, 0x7ff, v16")
    A("v_mul_u32_u24 v20, 1152, v18")
    A("v_and_b32 v21, 31, v0")
    A("v_mul_u32_u24 v21, 36, v21")
    A("v_add_u32 v20, v20, v21")
    A(f"global_load_dwordx4 {p4(24)}, v20, {sp(S_Q)}")
    A(f"global_load_dwordx4 {p4(28)}, v20, {sp(S_Q)} offset:16")
    A(f"global_load_dword v32, v20, {sp(S_Q)} offset:32")
    A("v_lshlrev_b32 v22, 3, v18")
    A(f"v_add_u32 v22, {WS_SG}, v22")
    A(f"global_load_dwordx2 v[40:41], v22, {sp(S_WS)} sc1")

def moe_xs_compute():
    T = S_T
    L = A.newlabel("L_sg"); Ld = A.newlabel("L_sgd")
    A(f"s_mov_b32 s{T}, 0")
    A.label(L)
    A(f"v_readfirstlane_b32 s{T+2}, v41")
    A(f"s_add_u32 s{T}, s{T}, 1")
    A(f"s_cmp_eq_u32 s{T+2}, s{S_NONCE}")
    A(f"s_cbranch_scc1 {Ld}")
    A(f"s_cmp_ge_u32 s{T}, {SPIN_MAX}")
    A(f"s_cbranch_scc1 {Ld}")
    A(f"global_load_dwordx2 v[40:41], v22, {sp(S_WS)} sc1")
    A("s_waitcnt vmcnt(0)")
    A(f"s_branch {L}")
    A.label(Ld)
    A(f"v_lshlrev_b32 v44, 16, v40")
    A(f"v_and_b32 v45, s{S_MASK}, v40")
    A("v_rcp_f32 v46, v45")
    A(f"v_and_b32 v52, s{S_MASK}, v16")
    A("v_fma_f32 v47, -v45, v46, 1.0")
    A("v_fma_f32 v46, v47, v46, v46")
    A(f"v_mul_f32 v52, 0x{f32bits(-1.4426950408889634):08x}, v52")
    A("v_exp_f32 v52, v52")
    for i in range(9):
        r = 24 + i
        t = 48 + 2*(i & 1)
        A(f"v_lshlrev_b32 v{t}, 16, v{r}")
        A(f"v_and_b32 v{t+1}, s{S_MASK}, v{r}")
        A(f"v_pk_add_f32 {p2(t)}, {p2(t)}, v[44:45] op_sel_hi:[1,0] neg_lo:[0,1] neg_hi:[0,1]")
        rnd(t); rnd(t+1)
        A(f"v_pk_mul_f32 {p2(t)}, {p2(t)}, v[46:47] op_sel_hi:[1,0]")
        A(f"v_cvt_pk_bf16_f32 v{r}, v{t}, v{t+1}")
    A("v_add_f32 v52, 1.0, v52")
    A("v_rcp_f32 v52, v52")
    A(f"s_mul_i32 s{T+4}, s{S_WAVE}, {XS_RS}")
    A(f"s_add_u32 s{T+4}, s{T+4}, {M_XS}")
    A("v_add_u32 v21, s%d, v21" % (T+4))
    rnd(52)
    A("s_mov_b64 exec, 0xffffffff")
    A("ds_write2_b32 v21, v24, v25 offset0:0 offset1:1")
    A("ds_write2_b32 v21, v26, v27 offset0:2 offset1:3")
    A("ds_write2_b32 v21, v28, v29 offset0:4 offset1:5")
    A("ds_write2_b32 v21, v30, v31 offset0:6 offset1:7")
    A("ds_write_b32 v21, v32 offset:32")
    A(f"s_lshl_b32 s{T+4}, s{S_WAVE}, 2")
    A(f"s_add_u32 s{T+4}, s{T+4}, {M_MISC+32}")
    A(f"v_mov_b32 v53, s{T+4}")
    A("s_mov_b64 exec, 1")
    A("ds_write_b32 v53, v16")
    A("ds_write_b32 v53, v52 offset:32")
    A("s_mov_b64 exec, -1")
    A(f"s_lshl_b32 s{T+1}, s{S_WAVE}, 6")
    A(f"v_add_u32 v1, s{T+1}, v0")

DRA, DRB = 64, 96
def moe_down_loads():
    T = S_T
    A("v_lshrrev_b32 v6, 4, v0")
    A("v_mul_u32_u24 v5, 9216, v6")
    A("v_and_b32 v6, 15, v0")
    A("v_lshl_add_u32 v5, v6, 3, v5")
    A(f"s_mul_i32 s{T+1}, s70, 73728")
    A(f"s_lshl_b32 s{T+2}, s{S_WAVE}, 7")
    A(f"s_add_u32 s{T+1}, s{T+1}, s{T+2}")
    A(f"v_add_u32 v5, s{T+1}, v5")
    srd(SRD_Q, S_WD, 5308416)
    def panel(R, extra):
        for ks in range(2):
            for jj in range(8):
                so = 36864*ks + 4608*(jj//4) + extra
                A(f"s_mov_b32 s{T+3}, {so}")
                r = R + 16*ks + 2*jj
                A(f"buffer_load_dwordx2 {p2(r)}, v5, s[{SRD_Q}:{SRD_Q+3}], s{T+3} offen offset:{1152*(jj%4)} {NT}")
    panel(DRA, 0)
    L = A.newlabel("L_np8")
    A(f"s_cmp_lg_u32 s{S_WAVE}, 0")
    A(f"s_cbranch_scc1 {L}")
    panel(DRB, 1024)
    A.label(L)

def down_perm(R, F):
    for ks in range(2):
        for e in range(4):
            sel = S_SELLO if (e & 1) == 0 else S_SELHI
            for q in range(4):
                A(f"v_perm_b32 v{F+16*ks+4*e+q}, v{R+16*ks+2*(2*q+1)+e//2}, v{R+16*ks+2*(2*q)+e//2}, s{sel}")

def moe_gateup():
    T = S_T
    A(f"s_lshr_b32 s{T+1}, s{S_WAVE}, 2")
    A(f"s_and_b32 s{T+2}, s{S_WAVE}, 3")
    A("v_lshrrev_b32 v6, 4, v0")
    A("v_bfe_u32 v7, v0, 2, 2")
    A("v_and_b32 v8, 3, v0")
    A("v_lshrrev_b32 v9, 1, v7")
    A("v_and_b32 v10, 1, v6")
    A("v_lshl_add_u32 v9, v10, 1, v9")
    A("v_lshlrev_b32 v9, 1, v9")
    A("v_lshrrev_b32 v10, 1, v8")
    A(f"s_lshl_b32 s{T+3}, s{T+2}, 1")
    A(f"v_add_u32 v10, s{T+3}, v10")
    A("v_xor_b32 v10, v10, v9")
    A("v_lshlrev_b32 v2, 10, v6")
    A("v_lshl_add_u32 v2, v7, 7, v2")
    A("v_lshl_add_u32 v2, v10, 4, v2")
    A("v_and_b32 v8, 1, v8")
    A("v_lshl_add_u32 v2, v8, 3, v2")
    A(f"s_mul_i32 s{T+3}, s{T+1}, {M_WU}")
    A(f"v_add_u32 v2, s{T+3}, v2")
    A(f"v_add_u32 v5, {4096*9}, v2")
    A("v_and_b32 v3, 7, v0")
    A(f"v_mul_u32_u24 v3, {XS_RS}, v3")
    A("v_lshl_add_u32 v3, v6, 4, v3")
    A(f"v_add_u32 v3, {M_XS}, v3")
    def rd(t):
        b = 8*(t % 8)
        a, o = (2, 4096*t) if t < 9 else (5, 4096*(t-9))
        A(f"ds_read_b64_tr_b16 a[{b}:{b+1}], v{a} offset:{o}")
        A(f"ds_read_b64_tr_b16 a[{b+2}:{b+3}], v{a} offset:{o+512}")
        A(f"ds_read_b128 a[{b+4}:{b+7}], v3 offset:{64*t}")
    for t in range(5): rd(t)
    for t in range(18):
        rem = min(17, t+4) - t
        A(f"s_waitcnt lgkmcnt({3*rem})")
        b = 8*(t % 8)
        cin = "0" if t == 0 else "v[8:11]"
        A(f"v_mfma_f32_16x16x32_bf16 v[8:11], a[{b}:{b+3}], a[{b+4}:{b+7}], {cin}")
        if t + 5 < 18: rd(t+5)
    A("v_and_b32 v3, 15, v0")
    A("v_lshlrev_b32 v4, 8, v3")
    A("v_lshl_add_u32 v4, v6, 4, v4")
    A(f"s_lshl_b32 s{T+3}, s{T+1}, 11")
    A(f"s_lshl_b32 s{T+4}, s{T+2}, 6")
    A(f"s_add_u32 s{T+3}, s{T+3}, s{T+4}")
    A(f"s_add_u32 s{T+3}, s{T+3}, {M_GU}")
    A(f"v_add_u32 v4, s{T+3}, v4")
    A("v_cmp_gt_u32 vcc, 8, v3")
    A(f"s_and_saveexec_b64 {sp(T+12)}, vcc")
    A("s_nop 2")
    A(f"ds_write_b128 v4, {p4(8)}")
    A(f"s_mov_b64 exec, {sp(T+12)}")

def moe_h_and_down_stage():
    T = S_T
    A("v_lshlrev_b32 v2, 2, v1")
    A(f"v_add_u32 v2, {M_GU}, v2")
    A("ds_read_b32 v8, v2")
    A("ds_read_b32 v9, v2 offset:2048")
    A("v_lshrrev_b32 v3, 6, v1")
    A(f"v_mul_u32_u24 v3, {H_RS}, v3")
    A("v_lshl_add_u32 v3, v0, 1, v3")
    A(f"v_add_u32 v3, {M_H}, v3")
    A("s_waitcnt lgkmcnt(0)")
    rnd(8); rnd(9)
    A(f"v_mul_f32 v10, 0x{f32bits(-1.4426950408889634):08x}, v8")
    A("v_exp_f32 v10, v10")
    A("s_nop 0")
    A("v_add_f32 v10, 1.0, v10")
    A("v_rcp_f32 v10, v10")
    A("s_nop 0")
    A("v_mul_f32 v10, v8, v10")
    rnd(10)
    A("v_mul_f32 v10, v10, v9")
    A("v_cvt_pk_bf16_f32 v10, v10, v10")
    A("ds_write_b16 v3, v10")
    A("s_waitcnt vmcnt(0)")
    down_perm(DRA, 32)
    L = A.newlabel("L_np8b")
    A(f"s_cmp_lg_u32 s{S_WAVE}, 0")
    A(f"s_cbranch_scc1 {L}")
    down_perm(DRB, 64)
    A.label(L)

def moe_down():
    T = S_T
    A("v_and_b32 v2, 7, v0")
    A(f"v_mul_u32_u24 v2, {H_RS}, v2")
    A("v_lshrrev_b32 v6, 4, v0")
    A("v_lshl_add_u32 v2, v6, 4, v2")
    A(f"v_add_u32 v2, {M_H}, v2")
    A(f"ds_read_b128 {p4(16)}, v2")
    A(f"ds_read_b128 {p4(20)}, v2 offset:64")
    A("v_and_b32 v4, 15, v0")
    A("v_lshlrev_b32 v5, 4, v4")
    A("v_lshl_add_u32 v5, v6, 9, v5")
    A(f"s_mul_i32 s{T+1}, s70, 18432")
    A(f"s_lshl_b32 s{T+2}, s{S_WAVE}, 11")
    A(f"s_add_u32 s{T+1}, s{T+1}, s{T+2}")
    A(f"v_add_u32 v5, s{T+1}, v5")
    add64(T+2, S_WS, WS_PART)
    A(f"s_mov_b32 s{T+4}, 0x07060503"); A(f"s_mov_b32 s{T+5}, 0x06050302"); A(f"s_mov_b32 s{T+6}, 0x05030201")
    A("v_cmp_gt_u32 vcc, 8, v4")
    A(f"s_mov_b64 {sp(T+12)}, vcc")
    A("s_waitcnt lgkmcnt(0)")
    def panel(F, ACC, G, vaddr):
        for e in range(4):
            A(f"v_mfma_f32_16x16x32_bf16 {p4(ACC+4*e)}, {p4(F+4*e)}, {p4(16)}, 0")
        for e in range(4):
            A(f"v_mfma_f32_16x16x32_bf16 {p4(ACC+4*e)}, {p4(F+16+4*e)}, {p4(20)}, {p4(ACC+4*e)}")
        A("s_nop 7"); A("s_nop 1")
        for r in range(4):
            g = G + 4*r
            a, b, c, d = ACC+r, ACC+4+r, ACC+8+r, ACC+12+r
            A(f"v_perm_b32 v{g}, v{a}, v{b}, s{T+4}")
            A(f"v_perm_b32 v{g+1}, v{b}, v{c}, s{T+5}")
            A(f"v_perm_b32 v{g+2}, v{c}, v{d}, s{T+6}")
            A(f"v_mov_b32 v{g+3}, s{S_NONCE}")
        A(f"s_mov_b64 exec, {sp(T+12)}")
        for r in range(4):
            A(f"global_store_dwordx4 v{vaddr}, {p4(G+4*r)}, {sp(T+2)} offset:{128*r} sc1")
        A("s_mov_b64 exec, -1")
    panel(32, 96, 112, 5)
    L = A.newlabel("L_np8c")
    A(f"s_cmp_lg_u32 s{S_WAVE}, 0")
    A(f"s_cbranch_scc1 {L}")
    A(f"v_add_u32 v7, {8*2048}, v5")
    panel(64, 96, 32, 7)
    A.label(L)

def moe_reduce():
    T = S_T
    A("v_lshrrev_b32 v6, 4, v0")
    A(f"s_mul_i32 s{T+1}, s{S_WAVE}, 9")
    A(f"v_add_u32 v1, s{T+1}, v6")
    A(f"v_mul_u32_u24 v1, 18432, v1")
    A("v_and_b32 v2, 15, v0")
    A("v_lshl_add_u32 v1, v2, 4, v1")
    A(f"s_lshl_b32 s{T+1}, s70, 8")
    A(f"v_add_u32 v1, s{T+1}, v1")
    A(f"v_add_u32 v3, {4*18432}, v1")
    A(f"v_mul_u32_u24 v4, 18432, v6")
    A(f"v_sub_u32 v4, v1, v4")
    A(f"v_add_u32 v4, {8*18432}, v4")
    A("v_lshrrev_b32 v50, 2, v0")
    A("v_and_b32 v51, 3, v0")
    A(f"s_lshl_b32 s{T+1}, s70, 4")
    A(f"v_add_u32 v52, s{T+1}, v50")
    A("v_and_b32 v53, 7, v52")
    A("v_lshrrev_b32 v54, 3, v52")
    A("v_lshl_add_u32 v54, v54, 2, v51")
    A("v_mul_u32_u24 v55, 576, v53")
    A("v_add_u32 v55, v55, v54")
    A("v_lshlrev_b32 v55, 3, v55")
    A(f"v_add_u32 v55, {WS_T1G}, v55")
    add64(T+2, S_WS, WS_PART)
    def ld():
        A(f"global_load_dwordx4 {p4(16)}, v1, {sp(T+2)} sc1")
        A(f"global_load_dwordx4 {p4(20)}, v3, {sp(T+2)} sc1")
        A(f"global_load_dwordx4 {p4(24)}, v4, {sp(T+2)} sc1")
        A(f"global_load_dwordx2 v[28:29], v55, {sp(S_WS)} sc1")
    tagcheck_loop(ld, [19, 23, 27, 29], 10, 12, sleep=1)
    stamp(8)
    tl(14, 151, 0)
    A(f"s_mov_b32 s{T+4}, 0x0403020c"); A(f"s_mov_b32 s{T+5}, 0x0504030c"); A(f"s_mov_b32 s{T+6}, 0xffffff00")
    U = 32
    for i in range(3):
        g = 16 + 4*i; u = U + 4*i
        A(f"v_and_b32 v{u}, s{T+6}, v{g}")
        A(f"v_perm_b32 v{u+1}, v{g}, v{g+1}, s{T+4}")
        A(f"v_perm_b32 v{u+2}, v{g+1}, v{g+2}, s{T+5}")
        A(f"v_lshlrev_b32 v{u+3}, 8, v{g+2}")
    for r in range(4):
        A(f"v_add_f32 v{U+r}, v{U+r}, v{U+4+r}")
    for swap in ("v_permlane32_swap_b32", "v_permlane16_swap_b32"):
        for r in range(4): A(f"v_mov_b32 v{44+r}, v{U+r}")
        A("s_nop 1")
        for r in range(4): A(f"{swap} v{U+r}, v{44+r}")
        for r in range(4): A(f"v_add_f32 v{U+r}, v{U+r}, v{44+r}")
    for r in range(4):
        A(f"v_add_f32 v{U+r}, v{U+r}, v{U+8+r}")
    A(f"s_lshl_b32 s{T+1}, s{S_WAVE}, 8")
    A("v_lshlrev_b32 v5, 4, v2")
    A(f"v_add_u32 v5, s{T+1}, v5")
    A(f"v_add_u32 v5, {M_RED}, v5")
    A("s_mov_b64 exec, 0xffff")
    A(f"ds_write_b128 v5, {p4(U)}")
    A("s_mov_b64 exec, -1")
    A("s_waitcnt lgkmcnt(0)")
    A("s_barrier")
    L = A.newlabel("L_nofin")
    A(f"s_cmp_lg_u32 s{S_WAVE}, 0")
    A(f"s_cbranch_scc1 {L}")
    A("v_lshlrev_b32 v6, 4, v50")
    A("v_lshl_add_u32 v6, v51, 2, v6")
    A(f"v_add_u32 v6, {M_RED}, v6")
    for w in range(8): A(f"ds_read_b32 v{16+w}, v6 offset:{256*w}")
    A(f"v_mul_u32_u24 v7, {XS_RS}, v53")
    A("v_lshl_add_u32 v7, v54, 1, v7")
    A(f"v_add_u32 v7, {M_XS}, v7")
    A("ds_read_u16 v24, v7")
    A("v_lshlrev_b32 v8, 2, v53")
    A(f"v_add_u32 v8, {M_MISC}, v8")
    A("ds_read_b32 v25, v8 offset:32")
    A("ds_read_b32 v26, v8 offset:64")
    A("v_mov_b32 v5, v54")
    A("s_waitcnt lgkmcnt(0)")
    A("v_add_f32 v16, v16, v17"); A("v_add_f32 v18, v18, v19"); A("v_add_f32 v20, v20, v21"); A("v_add_f32 v22, v22, v23")
    A("v_add_f32 v16, v16, v18"); A("v_add_f32 v20, v20, v22"); A("v_add_f32 v16, v16, v20")
    rnd(16)
    A("v_mul_f32 v16, v16, v26")
    rnd(16)
    A("v_lshlrev_b32 v24, 16, v24")
    A("v_add_f32 v16, v24, v16")
    rnd(16)
    A("v_add_f32 v16, v28, v16")
    A("v_cvt_pk_bf16_f32 v16, v16, v16")
    A("v_and_b32 v25, 0x7ff, v25")
    A("v_mul_u32_u24 v25, 1152, v25")
    A("v_lshl_add_u32 v25, v5, 1, v25")
    A(f"global_store_short v25, v16, {sp(S_OUT)}")
    A.label(L)

def lds_init_list():
    T = S_T
    A(f"s_lshl_b32 s{T+1}, s{S_WAVE}, 10")
    A("v_lshlrev_b32 v110, 4, v0")
    A(f"v_add_u32 v111, s{T+1}, v110")
    A(f"v_add_u32 v111, {M_LIST}, v111")
    for i in range(4): A(f"v_mov_b32 v{112+i}, 0xff800000")
    A(f"ds_write_b128 v111, {p4(112)}")
    L0 = A.newlabel("L_ni")
    A(f"s_cmp_lg_u32 s{S_WAVE}, 0")
    A(f"s_cbranch_scc1 {L0}")
    A(f"v_add_u32 v111, {M_LIST+8192}, v110")
    A("s_mov_b64 exec, 0xf")
    A(f"ds_write_b128 v111, {p4(112)}")
    A("s_mov_b64 exec, -1")
    for i in range(4): A(f"v_mov_b32 v{116+i}, 0")
    A(f"v_add_u32 v111, {M_MISC}, v110")
    A("s_mov_b64 exec, 0x3ff")
    A(f"ds_write_b128 v111, {p4(116)}")
    A("s_mov_b64 exec, -1")
    A.label(L0)

def sel_top8():
    T = S_T
    A(f"s_lshl_b32 s{T+1}, s{S_WAVE}, 6")
    A(f"v_add_u32 v1, s{T+1}, v0")
    A("v_lshlrev_b32 v2, 5, v1")
    add64(T+2, S_WS, WS_RG)
    K = 16
    def ld():
        for i in range(2):
            A(f"global_load_dwordx4 {p4(K+4*i)}, v2, {sp(T+2)} offset:{16*i} sc1")
    tagcheck_loop(ld, [K+2*i+1 for i in range(4)], 10, 12, sleep=1)
    stamp(5)
    tl(10, 255, 0)
    keys = [K+2*i for i in range(4)]
    A(f"v_max3_f32 v40, v{keys[0]}, v{keys[1]}, v{keys[2]}")
    A(f"v_max_f32 v40, v40, v{keys[3]}")
    for sh in (8, 4, 2, 1):
        A("s_nop 1")
        A(f"v_max_f32_dpp v40, v40, v40 row_ror:{sh} row_mask:0xf bank_mask:0xf")
    A("s_nop 1")
    A(f"v_readlane_b32 s{T+4}, v40, 16")
    A(f"v_readlane_b32 s{T+5}, v40, 32")
    A(f"v_readlane_b32 s{T+6}, v40, 48")
    A("s_nop 1")
    A(f"v_max_f32 v40, s{T+4}, v40")
    A(f"v_max_f32 v40, s{T+5}, v40")
    A(f"v_max_f32 v40, s{T+6}, v40")
    A(f"s_lshl_b32 s{T+4}, s{S_WAVE}, 2")
    A(f"s_add_u32 s{T+4}, s{T+4}, {M_MISC+96}")
    A(f"v_mov_b32 v43, s{T+4}")
    A("s_mov_b64 exec, 1")
    A(f"ds_write_b32 v43, v40")
    A("s_mov_b64 exec, -1")
    A("s_waitcnt lgkmcnt(0)")
    A("s_barrier")
    A(f"v_mov_b32 v43, {M_MISC+96}")
    A(f"ds_read_b128 {p4(44)}, v43")
    A(f"ds_read_b128 {p4(48)}, v43 offset:16")
    A("s_waitcnt lgkmcnt(0)")
    A("v_min3_f32 v40, v44, v45, v46")
    A("v_min3_f32 v41, v47, v48, v49")
    A("v_min3_f32 v40, v40, v50, v51")
    A("v_min_f32 v40, v40, v41")
    A("v_mov_b32 v41, 0")
    for i in range(4):
        A(f"v_cmp_ge_f32 {sp(T+4+2*i)}, v{keys[i]}, v40")
    for q in range(4):
        A(f"v_addc_co_u32 v41, vcc, 0, v41, {sp(T+4+2*q)}")
    A(f"v_mov_b32 v43, {M_MISC}")
    A("v_cmp_lt_u32 vcc, 0, v41")
    A(f"s_and_saveexec_b64 {sp(T+12)}, vcc")
    A("ds_add_rtn_u32 v42, v43, v41")
    A(f"s_mov_b64 exec, {sp(T+12)}")
    A("s_waitcnt lgkmcnt(0)")
    A("v_lshlrev_b32 v42, 2, v42")
    A(f"v_add_u32 v42, {M_LIST}, v42")
    A(f"v_mov_b32 v43, {S_DUMP}")
    for i in range(4):
        A(f"v_cndmask_b32 v44, v43, v42, {sp(T+4+2*i)}")
        A(f"v_cndmask_b32 v45, 0, 4, {sp(T+4+2*i)}")
        A(f"ds_write_b32 v44, v{keys[i]}")
        A(f"v_add_u32 v42, v42, v45")
    A("s_waitcnt lgkmcnt(0)")
    A("s_barrier")
    A(f"v_mov_b32 v43, {M_MISC}")
    A("ds_read_b32 v44, v43")
    A("s_waitcnt lgkmcnt(0)")
    A(f"v_readfirstlane_b32 s{T+8}, v44")
    A(f"s_mov_b32 s{T+9}, 0")
    Lc = A.newlabel("L_chunk"); Lj = A.newlabel("L_j")
    A.label(Lc)
    A(f"v_add_u32 v44, s{T+9}, v0")
    A("v_lshlrev_b32 v44, 2, v44")
    A(f"v_add_u32 v44, {M_LIST}, v44")
    A("ds_read_b32 v46, v44")
    A("v_mov_b32 v47, 0")
    A(f"v_mov_b32 v45, {M_LIST}")
    A(f"s_mov_b32 s{T+10}, 0")
    A.label(Lj)
    A(f"ds_read_b128 {p4(48)}, v45")
    A(f"ds_read_b128 {p4(52)}, v45 offset:16")
    A("v_add_u32 v45, 32, v45")
    A(f"s_add_u32 s{T+10}, s{T+10}, 8")
    A("s_waitcnt lgkmcnt(1)")
    for q in range(4):
        A(f"v_cmp_gt_f32 {sp(T+2*q)}, v{48+q}, v46")
    for q in range(4):
        A(f"v_addc_co_u32 v47, vcc, 0, v47, {sp(T+2*q)}")
    A("s_waitcnt lgkmcnt(0)")
    for q in range(4):
        A(f"v_cmp_gt_f32 {sp(T+2*q)}, v{52+q}, v46")
    for q in range(4):
        A(f"v_addc_co_u32 v47, vcc, 0, v47, {sp(T+2*q)}")
    A(f"s_cmp_lt_u32 s{T+10}, s{T+8}")
    A(f"s_cbranch_scc1 {Lj}")
    A(f"v_add_u32 v44, s{T+9}, v0")
    A(f"v_cmp_gt_u32 vcc, s{T+8}, v44")
    A(f"v_cmp_gt_u32 {sp(T)}, 8, v47")
    A("s_nop 1")
    A(f"s_and_b64 vcc, vcc, {sp(T)}")
    A(f"s_and_saveexec_b64 {sp(T+12)}, vcc")
    A("v_lshlrev_b32 v47, 2, v47")
    A(f"v_add_u32 v47, {M_MISC+32}, v47")
    A("ds_write_b32 v47, v46")
    A(f"s_mov_b64 exec, {sp(T+12)}")
    A(f"s_add_u32 s{T+9}, s{T+9}, 64")
    A(f"s_cmp_lt_u32 s{T+9}, s{T+8}")
    A(f"s_cbranch_scc1 {Lc}")
    A("s_waitcnt lgkmcnt(0)")
    stamp(6)

def sel_publish():
    T = S_T
    L = A.newlabel("L_sp")
    A(f"s_cmp_lg_u32 s{S_WAVE}, 0")
    A(f"s_cbranch_scc1 {L}")
    A("v_lshlrev_b32 v1, 2, v0")
    A(f"v_add_u32 v1, {M_MISC+32}, v1")
    A("s_mov_b64 exec, 0xff")
    A("ds_read_b32 v2, v1")
    add64(T+2, S_WS, WS_SEL)
    A(f"v_mov_b32 v3, s{S_NONCE}")
    A("v_lshlrev_b32 v4, 3, v0")
    A("s_waitcnt lgkmcnt(0)")
    A(f"global_store_dwordx2 v4, v[2:3], {sp(T+2)} sc1")
    A("s_mov_b64 exec, -1")
    A.label(L)
    stamp(7)
    tl(11, 255, 0)

def spare_wg():
    T = S_T
    A(f"s_sub_u32 s69, s69, {NMOE}")
    A("s_mul_i32 s68, s69, 52")
    A(f"s_lshl_b32 s{T+1}, s{S_WAVE}, 2")
    A(f"s_add_u32 s68, s68, s{T+1}")
    A("s_add_u32 s67, s68, 32")
    Le = A.newlabel("L_lne"); L2 = A.newlabel("L_np2"); L3 = A.newlabel("L_np3")
    A("s_mov_b32 s73, 0")
    A("s_cmp_ge_u32 s68, 2048")
    A(f"s_cbranch_scc1 {Le}")
    ln_loads(68, LN_Q, True)
    A("v_mov_b32 v9, v3")
    A(f"s_cmp_ge_u32 s{S_WAVE}, 5")
    A(f"s_cbranch_scc1 {L2}")
    A("s_cmp_ge_u32 s67, 2048")
    A(f"s_cbranch_scc1 {L2}")
    A("s_mov_b32 s73, 1")
    ln_loads(67, LN_Q2, False)
    A.label(L2)
    A("v_mov_b32 v120, 0")
    A(f"global_load_dword v121, v120, {sp(S_DBG)} sc1")
    A("s_cmp_eq_u32 s73, 1")
    A(f"s_cbranch_scc1 {L2}_a")
    A("s_waitcnt vmcnt(1)")
    A(f"s_branch {L2}_b")
    A.label(L2 + "_a")
    A("s_waitcnt vmcnt(6)")
    A.label(L2 + "_b")
    def hook():
        Lhn = A.newlabel("L_lnn")
        A("s_waitcnt vmcnt(0)")
        A(f"v_readfirstlane_b32 s{S_NONCE}, v121")
        A(f"s_cmp_lg_u32 s{S_NONCE}, 0")
        A(f"s_cbranch_scc1 {Lhn}")
        get_nonce(124)
        A.label(Lhn)
    ln_compute_publish(LN_Q, 9, True, hook=hook)
    stamp(3)
    A("s_cmp_eq_u32 s73, 0")
    A(f"s_cbranch_scc1 {Le}")
    ln_compute_publish(LN_Q2, 3, False)
    A.label(Le)
    stamp(4)
    A(f"s_cmp_lg_u32 s69, {SELIDX}")
    A("s_cbranch_scc1 L_fin")
    lds_init_list()
    get_nonce(124)
    A("s_waitcnt lgkmcnt(0)")
    A("s_barrier")
    sel_top8()
    sel_publish()
    A("s_branch L_fin")

def moe_wg():
    T = S_T
    A(f"s_sub_u32 s69, s{S_WG}, {NCONV}")
    A(f"s_cmp_ge_u32 s69, {NMOE}")
    A("s_cbranch_scc1 L_spare")
    A("s_and_b32 s70, s69, 7")
    A("s_mul_i32 s70, s70, 9")
    A(f"s_lshr_b32 s{T+1}, s69, 3")
    A(f"s_add_u32 s70, s70, s{T+1}")
    if "mdelay" in OPTS:
        for _ in range(int(os.environ.get("MD", "1"))): A("s_sleep 64")
    moe_dma()
    A("s_waitcnt vmcnt(4)")
    stamp(4)
    moe_sel_wait()
    stamp(5)
    tl(12, 151, 7)
    moe_row_loads()
    moe_down_loads()
    Lq = A.newlabel("L_w32")
    A(f"s_cmp_lg_u32 s{S_WAVE}, 0")
    A(f"s_cbranch_scc1 {Lq}")
    A("s_waitcnt vmcnt(32)")
    A.label(Lq)
    A(f"s_cmp_eq_u32 s{S_WAVE}, 0")
    A(f"s_cbranch_scc1 {Lq}_b")
    A("s_waitcnt vmcnt(16)")
    A.label(Lq + "_b")
    moe_xs_compute()
    stamp(6)
    tl(13, 151, 7)
    A("s_waitcnt lgkmcnt(0)")
    A("s_barrier")
    moe_gateup()
    A("s_waitcnt lgkmcnt(0)")
    A("s_barrier")
    moe_h_and_down_stage()
    A("s_waitcnt lgkmcnt(0)")
    A("s_barrier")
    stamp(7)
    moe_down()
    moe_reduce()
    A("s_branch L_fin")
    A.label("L_spare")
    spare_wg()

def main():
    prologue()
    A(f"s_cmp_ge_u32 s{S_WG}, {NCONV}")
    A("s_cbranch_scc1 L_moe")
    conv_wg()
    A.label("L_moe")
    moe_wg()
    A.label("L_fin")
    tl(15, 151, 0)
    prof_end()
    A.label("L_end")
    A("s_endpgm")

main()
K = NAME + "_kernel"
LDS = max(L_CONV_END, M_END)
txt = HDR + f"; @launch grid=(256,1,1) block=(512,1,1) lds={LDS}\n" + '.amdgcn_target "amdgcn-amd-amdhsa--gfx950"\n.text\n' + head(K) + A.text() + kd(K, 256, 102, 128, "  .amdhsa_float_denorm_mode_32 3\n")
open(OUTFN, "w").write(txt)
print("wrote", OUTFN, len(txt), "LDS", LDS)
```

```python
import sys, struct, os
sys.path.insert(0, "dev")
from asmlib import *

OUTFN = sys.argv[1] if len(sys.argv) > 1 else "k.s"
OPTS = set(sys.argv[2:])
PROF = "prof" in OPTS
NT = "nt" if "nt" in OPTS else ""

WS_KVT = 0x000000
WS_XT = 0x240000
WS_RG = 0x480000
WS_SG = 0x484000
WS_FL = 0x488000
WS_FL2 = 0x488800
WS_SEL = 0x489800
WS_T1G = 0x48A000
WS_XSG = 0x494000
WS_PART = 0x4A0000
WS_PROF = 0x800000
WS_YG = 0x1000000
SPIN_MAX = 2000 if "dbgB" in OPTS else 400000
NCONV, NMOE = 144, 72
NLN = 40
SELIDX = 39

S_WG, S_WAVE = 2, 3
S_Q, S_K, S_V, S_SK, S_H, S_D, S_BX, S_WR, S_WGT, S_WUP, S_WD, S_OUT, S_DBG, S_WS = 4, 6, 8, 10, 12, 14, 16, 18, 20, 22, 24, 26, 28, 30
SRD_K, SRD_V, SRD_Q, SRD_O = 32, 36, 40, 44
S_NONCE = 48
S_MASK, S_SELLO, S_SELHI = 50, 51, 52
S_T = 54

A = Asm()
def f32bits(x): return struct.unpack("<I", struct.pack("<f", x))[0]
def p2(r): return f"v[{r}:{r+1}]"
def p4(r): return f"v[{r}:{r+3}]"
def sp(r): return f"s[{r}:{r+1}]"

NSTAMP = 10
def stamp(i):
    if PROF: A(f"s_memtime s[{80+2*i}:{81+2*i}]")
def prof_begin():
    if PROF:
        A("s_memrealtime s[100:101]")
        stamp(0)
        for i in range(1, NSTAMP):
            A(f"s_mov_b64 s[{80+2*i}:{81+2*i}], 0")
def prof_end():
    if not PROF: return
    A(f"s_memrealtime s[{S_T+2}:{S_T+3}]")
    A("s_waitcnt lgkmcnt(0)")
    A(f"s_lshl_b32 s{S_T}, s{S_WG}, 3")
    A(f"s_add_u32 s{S_T}, s{S_T}, s{S_WAVE}")
    A(f"s_lshl_b32 s{S_T}, s{S_T}, 6")
    A(f"s_add_u32 s{S_T}, s{S_T}, {WS_PROF}")
    A(f"v_mov_b32 v1, s{S_T}")
    A("s_mov_b64 exec, 1")
    A("v_mov_b32 v2, s100")
    A(f"global_store_dword v1, v2, {sp(S_WS)}")
    A(f"v_mov_b32 v2, s{S_T+2}")
    A(f"global_store_dword v1, v2, {sp(S_WS)} offset:4")
    for i in range(1, NSTAMP):
        A(f"s_sub_u32 s{S_T+1}, s{80+2*i}, s80")
        A(f"v_mov_b32 v2, s{S_T+1}")
        A(f"global_store_dword v1, v2, {sp(S_WS)} offset:{4+4*i}")
    A("s_mov_b64 exec, -1")

TL = "tl" in OPTS
TLSET = os.environ.get("TLSET", "A")
def tl(slot, wg, wave, setname="A"):
    if not TL or setname != TLSET: return
    L = A.newlabel("L_tl")
    A(f"s_cmp_lg_u32 s{S_WG}, {wg}")
    A(f"s_cbranch_scc1 {L}")
    A(f"s_cmp_lg_u32 s{S_WAVE}, {wave}")
    A(f"s_cbranch_scc1 {L}")
    A("s_memrealtime s[98:99]")
    A("s_mov_b64 s[100:101], exec")
    A("s_mov_b64 exec, 1")
    A("v_readfirstlane_b32 s96, v126")
    A("v_readfirstlane_b32 s97, v127")
    A(f"v_mov_b32 v126, {4*slot}")
    A("s_waitcnt lgkmcnt(0)")
    A("v_mov_b32 v127, s98")
    A(f"global_store_dword v126, v127, {sp(S_DBG)}")
    A("s_nop 4")
    A("v_mov_b32 v126, s96")
    A("v_mov_b32 v127, s97")
    A("s_mov_b64 exec, s[100:101]")
    A.label(L)

def rnd(v, src=None):
    A(f"v_cvt_pk_bf16_f32 v{v}, 0, v{v if src is None else src}")
def srd(dst, base, nbytes):
    A(f"s_mov_b32 s{dst}, s{base}")
    A(f"s_and_b32 s{dst+1}, s{base+1}, 0xffff")
    A(f"s_mov_b32 s{dst+2}, {nbytes}")
    A(f"s_mov_b32 s{dst+3}, 0x00020000")
def add64(dst, src, imm):
    A(f"s_add_u32 s{dst}, s{src}, {imm}")
    A(f"s_addc_u32 s{dst+1}, s{src+1}, 0")

def get_nonce(vtmp):
    L = A.newlabel("L_nonce"); Ld = A.newlabel("L_nonced")
    A(f"v_mov_b32 v{vtmp}, 0")
    A(f"s_mov_b32 s{S_T}, 0")
    A.label(L)
    A(f"global_load_dword v{vtmp+1}, v{vtmp}, {sp(S_DBG)} sc1")
    A(f"s_waitcnt vmcnt(0)")
    A(f"v_readfirstlane_b32 s{S_NONCE}, v{vtmp+1}")
    A(f"s_add_u32 s{S_T}, s{S_T}, 1")
    A(f"s_cmp_lg_u32 s{S_NONCE}, 0")
    A(f"s_cbranch_scc1 {Ld}")
    A(f"s_cmp_lt_u32 s{S_T}, {SPIN_MAX}")
    A(f"s_cbranch_scc1 {L}")
    A.label(Ld)

def tag_acc(tagregs, vacc, vtmp):
    A(f"v_xor_b32 v{vacc}, s{S_NONCE}, v{tagregs[0]}")
    rest = tagregs[1:]
    i = 0
    while i < len(rest):
        if i + 1 < len(rest):
            A(f"v_xor_b32 v{vtmp}, s{S_NONCE}, v{rest[i]}")
            A(f"v_xor_b32 v{vtmp+1}, s{S_NONCE}, v{rest[i+1]}")
            A(f"v_or3_b32 v{vacc}, v{vacc}, v{vtmp}, v{vtmp+1}")
            i += 2
        else:
            A(f"v_xor_b32 v{vtmp}, s{S_NONCE}, v{rest[i]}")
            A(f"v_or_b32 v{vacc}, v{vacc}, v{vtmp}")
            i += 1

def tagcheck_loop(load_fn, tagregs, vacc, vtmp, sleep=1):
    T = S_T
    L = A.newlabel("L_pl"); Ld = A.newlabel("L_pld")
    A(f"s_mov_b32 s{T}, 0")
    A.label(L)
    load_fn()
    A("s_waitcnt vmcnt(0)")
    tag_acc(tagregs, vacc, vtmp)
    A(f"v_cmp_ne_u32 vcc, 0, v{vacc}")
    A(f"s_add_u32 s{T}, s{T}, 1")
    A("s_nop 3")
    A("s_cmp_eq_u64 vcc, 0")
    A(f"s_cbranch_scc1 {Ld}")
    if sleep: A(f"s_sleep {sleep}")
    A(f"s_cmp_lt_u32 s{T}, {SPIN_MAX}")
    A(f"s_cbranch_scc1 {L}")
    A.label(Ld)

def nonce_writer():
    L = A.newlabel("L_nw")
    A(f"s_cmp_ge_u32 s{S_WG}, 8")
    A(f"s_cbranch_scc1 {L}")
    A(f"s_cmp_lg_u32 s{S_WAVE}, 7")
    A(f"s_cbranch_scc1 {L}")
    A(f"s_memrealtime {sp(S_T)}")
    A("s_waitcnt lgkmcnt(0)")
    A(f"s_or_b32 s{S_T}, s{S_T}, 1")
    A(f"v_mov_b32 v10, s{S_T}")
    A("v_mov_b32 v11, 0")
    A("v_mov_b32 v12, 0")
    A("s_mov_b64 exec, 1")
    A(f"global_atomic_cmpswap v12, v[10:11], {sp(S_DBG)} sc1")
    A("s_mov_b64 exec, -1")
    A.label(L)

def code_prefetch():
    T = S_T
    L = A.newlabel("L_cpf")
    A(f"s_cmp_lg_u32 s{S_WAVE}, 6")
    A(f"s_cbranch_scc1 {L}")
    A(f"s_lshr_b32 s{T+2}, s{S_WG}, 3")
    A(f"s_cmp_ge_u32 s{T+2}, (L_end - {NAME}_kernel + 1023) / 1024")
    A(f"s_cbranch_scc1 {L}")
    A(f"s_getpc_b64 {sp(T)}")
    A.label(L + "_pc")
    A(f"s_sub_u32 s{T}, s{T}, {L}_pc - {NAME}_kernel")
    A(f"s_subb_u32 s{T+1}, s{T+1}, 0")
    A(f"s_lshl_b32 s{T+2}, s{T+2}, 10")
    A("v_lshlrev_b32 v1, 4, v0")
    A(f"v_add_u32 v1, s{T+2}, v1")
    A(f"global_load_dwordx4 a[124:127], v1, {sp(T)}")
    A.label(L)

def prologue():
    A(f"s_cmp_ge_u32 s{S_WG}, 256")
    A("s_cbranch_scc1 L_end")
    prof_begin()
    A("s_load_dwordx16 s[4:19], s[0:1], 0")
    A("s_load_dwordx8 s[20:27], s[0:1], 64")
    A("s_load_dwordx4 s[28:31], s[0:1], 96")
    A("v_lshrrev_b32 v1, 6, v0")
    A("v_and_b32 v0, 63, v0")
    A(f"v_readfirstlane_b32 s{S_WAVE}, v1")
    A(f"s_mov_b32 s{S_MASK}, 0xffff0000")
    A(f"s_mov_b32 s{S_SELLO}, 0x05040100")
    A(f"s_mov_b32 s{S_SELHI}, 0x07060302")
    A("s_waitcnt lgkmcnt(0)")
    stamp(1)
    tl(1, 0, 0); tl(2, 7, 0); tl(3, 4, 0)
    nonce_writer()
    code_prefetch()

def dpp_sum16(v):
    for sh in (8, 4, 2, 1):
        A("s_nop 1")
        A(f"v_add_f32_dpp v{v}, v{v}, v{v} row_ror:{sh} row_mask:0xf bank_mask:0xf")

LN_Q, LN_W, LN_Q2 = 10, 28, 46
def ln_loads(stok, Q, with_w):
    T = S_T
    A(f"s_mov_b32 s{T}, s{stok}")
    A("v_lshrrev_b32 v1, 4, v0")
    A("v_and_b32 v2, 15, v0")
    A(f"v_add_u32 v3, s{T}, v1")
    A(f"v_mul_u32_u24 v4, 1152, v3")
    A(f"v_lshl_add_u32 v5, v2, 4, v4")
    A(f"v_lshl_add_u32 v6, v2, 3, v4")
    for i in range(4):
        A(f"global_load_dwordx4 {p4(Q+4*i)}, v5, {sp(S_Q)} offset:{256*i} {NT}")
    A(f"global_load_dwordx2 {p2(Q+16)}, v6, {sp(S_Q)} offset:1024 {NT}")
    if with_w:
        W = LN_W
        A(f"v_lshlrev_b32 v7, 4, v2")
        A(f"v_lshlrev_b32 v8, 3, v2")
        for i in range(4):
            A(f"global_load_dwordx4 {p4(W+4*i)}, v7, {sp(S_WR)} offset:{256*i}")
        A(f"global_load_dwordx2 {p2(W+16)}, v8, {sp(S_WR)} offset:1024")

def dpp_sum16x(vs):
    for sh in (8, 4, 2, 1):
        if len(vs) < 3: A("s_nop 1")
        for v in vs:
            A(f"v_add_f32_dpp v{v}, v{v}, v{v} row_ror:{sh} row_mask:0xf bank_mask:0xf")

def ln_compute_publish(Q, vtok, first, vc=2, hook=None, publish=True):
    T = S_T
    W = LN_W
    A(f"s_mov_b32 s{T+8}, 0x3f803f80"); A(f"s_mov_b32 s{T+9}, 0x00003f80"); A(f"s_mov_b32 s{T+10}, 0x3f800000")
    accs = [64, 65, 66, 67] + ([68, 69] if first else [])
    for a in accs: A(f"v_mov_b32 v{a}, 0")
    for i in range(18):
        A(f"v_dot2_f32_bf16 v{64+(i&1)}, v{Q+i}, s{T+8}, v{64+(i&1)}")
        A(f"v_dot2_f32_bf16 v{66+(i&1)}, v{Q+i}, v{W+i}, v{66+(i&1)}")
        if first: A(f"v_dot2_f32_bf16 v{68+(i&1)}, v{W+i}, s{T+8}, v{68+(i&1)}")
    A("s_nop 2")
    A("v_add_f32 v64, v64, v65")
    A("v_add_f32 v66, v66, v67")
    if first:
        A("v_add_f32 v122, v68, v69")
        A("s_nop 0")
        dpp_sum16x([64, 66, 122])
    else:
        A("s_nop 0")
        dpp_sum16x([64, 66])
    A(f"v_mul_f32 v64, 0x{f32bits(1.0/576):08x}, v64")
    A("v_sub_f32 v65, 0, v64")
    for a in (68, 69, 70, 71): A(f"v_mov_b32 v{a}, 0")
    for i in range(0, 18, 2):
        A(f"v_dot2_f32_bf16 v72, v{Q+i}, s{T+9}, v65")
        A(f"v_dot2_f32_bf16 v73, v{Q+i}, s{T+10}, v65")
        A(f"v_dot2_f32_bf16 v74, v{Q+i+1}, s{T+9}, v65")
        A(f"v_dot2_f32_bf16 v75, v{Q+i+1}, s{T+10}, v65")
        A("s_nop 1")
        A(f"v_fma_f32 v68, v72, v72, v68")
        A(f"v_fma_f32 v69, v73, v73, v69")
        A(f"v_fma_f32 v70, v74, v74, v70")
        A(f"v_fma_f32 v71, v75, v75, v71")
    A("v_add_f32 v68, v68, v69"); A("v_add_f32 v70, v70, v71"); A("v_add_f32 v68, v68, v70")
    dpp_sum16x([68])
    A(f"v_mul_f32 v68, 0x{f32bits(1.0/576):08x}, v68")
    rnd(68)
    A(f"v_add_f32 v68, 0x{f32bits(1e-5):08x}, v68")
    rnd(68)
    A("v_sqrt_f32 v69, v68")
    A("s_nop 0")
    A("v_rcp_f32 v70, v69")
    A("v_fma_f32 v71, -v69, v69, v68")
    A("v_mul_f32 v70, 0.5, v70")
    A("v_fma_f32 v69, v71, v70, v69")
    rnd(69)
    A("v_rcp_f32 v70, v69")
    rnd(64)
    A("v_fma_f32 v66, -v64, v122, v66")
    A("v_mul_f32 v112, v66, v70")
    rnd(112)
    A(f"v_or_b32 v112, v112, v{vtok}")
    A("v_cvt_pk_bf16_f32 v114, v64, v69")
    if not publish:
        A("v_mov_b32 v32, v112"); A("v_mov_b32 v34, v114")
        return
    if hook: hook()
    ln_publish(vtok, vc)

def ln_publish(vtok, vc):
    T = S_T
    A(f"v_mov_b32 v113, s{S_NONCE}")
    A(f"v_mov_b32 v115, s{S_NONCE}")
    A(f"v_lshlrev_b32 v116, 3, v{vtok}")
    add64(T+2, S_WS, WS_RG)
    add64(T+4, S_WS, WS_SG)
    A(f"v_cmp_eq_u32 vcc, 0, v{vc}")
    A(f"s_and_saveexec_b64 {sp(T+6)}, vcc")
    A(f"global_store_dwordx2 v116, v[112:113], {sp(T+2)} sc1")
    A(f"global_store_dwordx2 v116, v[114:115], {sp(T+4)} sc1")
    A(f"s_mov_b64 exec, {sp(T+6)}")

P_CH = 4128
L_P = 0
L_Q = L_P + 4 * P_CH
Q_CPY = 1152
Q_CH = 4 * Q_CPY
L_KVL = L_Q + 4 * Q_CH
L_MC = L_KVL + 16384
L_SELT = L_MC + 64
L_ST = L_SELT + 128
L_TAP = L_ST + 1024
TBLK = 1040
L_TK = (L_TAP + 512 + 15) // 16 * 16
L_TV = L_TK + 17 * TBLK
L_TQ = L_TV + 16 * TBLK
L_OT = L_TK
L_CONV_END = L_TQ + 16 * TBLK

def dma(voff, srdreg, soff, m0, flag=None):
    A(f"s_mov_b32 m0, {m0}")
    A("s_nop 0")
    A(f"buffer_load_dwordx4 v{voff}, s[{srdreg}:{srdreg+3}], {soff} offen {NT if flag is None else flag} lds")

def conv_tile():
    T = S_T
    A(f"s_sub_u32 s72, s{S_WAVE}, 4")
    A(f"s_mul_hi_u32 s77, s{S_WG}, {(2**32 + 8)//9}")
    A(f"s_mul_i32 s76, s77, 9")
    A(f"s_sub_u32 s76, s{S_WG}, s76")
    srd(SRD_K, S_K, 2359296)
    srd(SRD_V, S_V, 2359296)
    A("v_lshrrev_b32 v1, 3, v0")
    A("v_and_b32 v2, 7, v0")
    A(f"s_mul_i32 s{T+2}, s77, {128*1152}")
    A(f"s_lshl_b32 s{T+3}, s76, 7")
    A(f"s_add_u32 s{T+2}, s{T+2}, s{T+3}")
    A(f"v_mul_u32_u24 v3, 1152, v1")
    A(f"v_lshl_add_u32 v3, v2, 4, v3")
    A(f"v_add_u32 v3, s{T+2}, v3")
    A(f"s_mul_i32 s{T+4}, s{S_WAVE}, {2*9216}")
    A(f"s_mul_i32 s{T+6}, s{S_WAVE}, {2*TBLK}")
    for i in range(2):
        A(f"s_add_u32 s{T+7}, s{T+6}, {L_TK + TBLK + i*TBLK}")
        A(f"s_add_u32 s{T+5}, s{T+4}, {9216*i}")
        dma(3, SRD_K, f"s{T+5}", f"s{T+7}")
        A(f"s_add_u32 s{T+7}, s{T+6}, {L_TV + i*TBLK}")
        dma(3, SRD_V, f"s{T+5}", f"s{T+7}")
    L7 = A.newlabel("L_w7")
    A(f"s_cmp_lg_u32 s{S_WAVE}, 7")
    A(f"s_cbranch_scc1 {L7}")
    A(f"v_subrev_u32 v4, 9216, v3")
    A(f"s_cmp_lg_u32 s77, 0")
    A(f"s_cbranch_scc1 {L7}_a")
    A("v_bfrev_b32 v4, 1")
    A.label(L7 + "_a")
    dma(4, SRD_K, "0", L_TK)
    for i in range(4): A(f"v_mov_b32 v{52+i}, 0")
    A("v_lshlrev_b32 v56, 4, v0")
    A(f"v_add_u32 v56, {L_MC}, v56")
    A("s_mov_b64 exec, 0xfff")
    A(f"ds_write_b128 v56, {p4(52)}")
    A("s_mov_b64 exec, -1")
    A.label(L7)
    TR = 48
    A(f"s_lshr_b32 s{T+9}, s{S_WAVE}, 1")
    A(f"s_and_b32 s{T+10}, s{S_WAVE}, 1")
    Lt = A.newlabel("L_tap")
    A(f"s_cmp_lg_u32 s{S_WAVE}, 0")
    A(f"s_cbranch_scc1 {Lt}")
    srd(SRD_Q, S_SK, 4608)
    A(f"s_lshl_b32 s{T+11}, s76, 9")
    A("v_lshlrev_b32 v5, 4, v0")
    A("s_mov_b64 exec, 0xffffffff")
    dma(5, SRD_Q, f"s{T+11}", L_TAP, flag="")
    A("s_mov_b64 exec, -1")
    A.label(Lt)
    A("v_mov_b32 v120, 0")
    A(f"global_load_dword v121, v120, {sp(S_DBG)} sc1")
    A(f"s_and_b32 s{T+13}, s{S_WG}, 7")
    A(f"s_mul_i32 s{T+13}, s{T+13}, 18")
    A(f"s_lshr_b32 s{T+12}, s{S_WG}, 3")
    A(f"s_add_u32 s{T+13}, s{T+13}, s{T+12}")
    A(f"s_lshl_b32 s71, s{T+13}, 2")
    A(f"s_and_b32 s{T+12}, s{S_WAVE}, 3")
    A(f"s_add_u32 s78, s71, s{T+12}")
    A(f"s_lshl_b32 s79, s78, 12")
    A(f"s_lshl_b32 s{T+12}, s{T+10}, 3")
    A(f"v_add_u32 v6, s{T+12}, v2")
    A(f"s_lshl_b32 s{T+12}, s{T+9}, 3")
    A(f"v_add_u32 v7, s{T+12}, v1")
    A(f"v_mul_u32_u24 v9, {TBLK}, v6")
    A(f"v_lshl_add_u32 v9, v7, 2, v9")
    A(f"v_add_u32 v9, {L_TK}, v9")
    A(f"s_lshl_b32 s{T+11}, s76, 19")
    A(f"s_lshl_b32 s{T+12}, s77, 9")
    A(f"s_add_u32 s{T+11}, s{T+11}, s{T+12}")
    A(f"s_lshl_b32 s{T+12}, s{T+10}, 8")
    A(f"s_add_u32 s{T+11}, s{T+11}, s{T+12}")
    A("v_lshlrev_b32 v8, 14, v7")
    A("v_lshl_add_u32 v8, v2, 4, v8")
    A(f"v_add_u32 v8, s{T+11}, v8")
    if "hearly" in OPTS:
        Lh = A.newlabel("L_noh"); Lh2 = A.newlabel("L_noh2")
        A(f"s_cmp_ge_u32 s{S_WAVE}, 4")
        A(f"s_cbranch_scc1 {Lh}")
        srd(SRD_Q, S_H, 2359296)
        A("v_lshlrev_b32 v4, 4, v0")
        A(f"s_mul_i32 s74, s{S_WAVE}, {P_CH}")
        for q in range(4):
            A(f"s_add_u32 s{T+9}, s79, {1024*q}")
            A(f"s_add_u32 s{T+5}, s74, {32 + 1024*q}")
            dma(4, SRD_Q, f"s{T+9}", f"s{T+5}")
        if "dbgB" in OPTS: stamp(5)
        A("s_waitcnt vmcnt(4) lgkmcnt(0)")
        A(f"s_branch {Lh2}")
        A.label(Lh)
        if "dbgB" in OPTS: stamp(5)
        A("s_waitcnt vmcnt(0) lgkmcnt(0)")
        A.label(Lh2)
        if "dbgB" in OPTS: stamp(6)
    else:
        A("s_waitcnt vmcnt(0) lgkmcnt(0)")
    A(f"v_readfirstlane_b32 s{S_NONCE}, v121")
    A("s_barrier")
    stamp(2)
    tl(4, 7, 0)
    KR, VR = 10, 21
    for j in range(11):
        off = (640 + 128*j if j < 3 else TBLK + 128*(j-3))
        A(f"ds_read_b32 v{KR+j}, v9 offset:{off}")
    A("v_lshlrev_b32 v5, 2, v7")
    A("v_lshlrev_b32 v5, 2, v5")
    A(f"v_add_u32 v5, {L_TAP}, v5")
    A(f"ds_read_b128 {p4(TR)}, v5")
    for j in range(8):
        A(f"ds_read_b32 v{VR+j}, v9 offset:{L_TV - L_TK + 128*j}")
    A("s_waitcnt lgkmcnt(8)")
    Ln = A.newlabel("L_hasn")
    A(f"s_cmp_lg_u32 s{S_NONCE}, 0")
    A(f"s_cbranch_scc1 {Ln}")
    get_nonce(30)
    A.label(Ln)
    TP = 52
    A(f"v_lshlrev_b32 v{TP+0}, 16, v{TR}"); A(f"v_lshlrev_b32 v{TP+1}, 16, v{TR+2}")
    A(f"v_and_b32 v{TP+2}, s{S_MASK}, v{TR}"); A(f"v_and_b32 v{TP+3}, s{S_MASK}, v{TR+2}")
    A(f"v_lshlrev_b32 v{TP+4}, 16, v{TR+1}"); A(f"v_lshlrev_b32 v{TP+5}, 16, v{TR+3}")
    A(f"v_and_b32 v{TP+6}, s{S_MASK}, v{TR+1}"); A(f"v_and_b32 v{TP+7}, s{S_MASK}, v{TR+3}")
    KP = 80
    for j in range(11):
        A(f"v_lshlrev_b32 v{KP+2*j}, 16, v{KR+j}")
        A(f"v_and_b32 v{KP+2*j+1}, s{S_MASK}, v{KR+j}")
    R = 102
    tp = lambda tap: p2(TP+2*tap)
    for i in range(8): A(f"v_pk_mul_f32 {p2(R+2*i)}, {p2(KP+2*i)}, {tp(3)}")
    for i in range(8): A(f"v_pk_fma_f32 {p2(R+2*i)}, {p2(KP+2*(i+1))}, {tp(2)}, {p2(R+2*i)}")
    for i in range(8): A(f"v_pk_fma_f32 {p2(R+2*i)}, {p2(KP+2*(i+2))}, {tp(1)}, {p2(R+2*i)}")
    for i in range(8): A(f"v_pk_fma_f32 {p2(R+2*i)}, {p2(KP+2*(i+3))}, {tp(0)}, {p2(R+2*i)}")
    A("s_waitcnt lgkmcnt(0)")
    VP = 60
    for i in range(8):
        A(f"v_lshlrev_b32 v{VP+2*i}, 16, v{VR+i}"); A(f"v_and_b32 v{VP+2*i+1}, s{S_MASK}, v{VR+i}")
    for i in range(8): A(f"v_pk_mul_f32 {p2(R+2*i)}, {p2(R+2*i)}, {p2(VP+2*i)}")
    GQ = 80
    for c in range(2):
        for q in range(4):
            A(f"v_cvt_pk_bf16_f32 v{GQ+8*c+2*q}, v{R+4*q+c}, v{R+4*q+2+c}")
            A(f"v_mov_b32 v{GQ+8*c+2*q+1}, s{S_NONCE}")
    add64(T+2, S_WS, WS_KVT)
    add64(T+8, S_WS, WS_KVT+8192)
    A(f"global_store_dwordx4 v8, {p4(GQ)}, {sp(T+2)} sc1")
    A(f"global_store_dwordx4 v8, {p4(GQ+4)}, {sp(T+2)} offset:128 sc1")
    A(f"global_store_dwordx4 v8, {p4(GQ+8)}, {sp(T+8)} sc1")
    A(f"global_store_dwordx4 v8, {p4(GQ+12)}, {sp(T+8)} offset:128 sc1")
    for c in range(2):
        for q in range(4): A(f"v_mov_b32 v{120+4*c+q}, v{GQ+8*c+2*q}")
    A(f"s_lshl_b32 s{T+1}, s{S_WAVE}, 11")
    A("v_lshlrev_b32 v4, 5, v0")
    A(f"v_add_u32 v4, s{T+1}, v4")
    A(f"v_add_u32 v4, {L_KVL}, v4")
    A(f"ds_write_b128 v4, {p4(120)}")
    A(f"ds_write_b128 v4, {p4(124)} offset:16")
    stamp(3)
    if "hearly" not in OPTS:
        Lh = A.newlabel("L_noh")
        A(f"s_cmp_ge_u32 s{S_WAVE}, 4")
        A(f"s_cbranch_scc1 {Lh}")
        srd(SRD_V, S_H, 2359296)
        A("v_lshlrev_b32 v4, 4, v0")
        A(f"s_mul_i32 s74, s{S_WAVE}, {P_CH}")
        for q in range(4):
            A(f"s_add_u32 s{T+9}, s79, {1024*q}")
            A(f"s_add_u32 s{T+10}, s74, {32 + 1024*q}")
            dma(4, SRD_V, f"s{T+9}", f"s{T+10}")
        A.label(Lh)
    A("s_waitcnt lgkmcnt(0)")
    A("s_barrier")
    stamp(4)
    tl(5, 7, 0)
    if "dbgA" in OPTS or "dbgB" in OPTS: A("s_branch L_fin")

class LdsQ:
    def __init__(self): self.q = []
    def issue(self, instr, tag=None):
        A(instr); self.q.append(tag)
    def wait(self, tag):
        idxs = [i for i, t in enumerate(self.q) if t == tag]
        if not idxs: return
        last = idxs[-1]
        n = len(self.q) - 1 - last
        A(f"s_waitcnt lgkmcnt({min(n, 15)})")
        if n <= 15: self.q = self.q[last+1:]
        else: self.q = self.q[len(self.q)-15:]

def conv_mfma_wave():
    T = S_T
    A(f"s_mul_i32 s75, s{S_WAVE}, {Q_CH}")
    A(f"s_add_u32 s75, s75, {L_Q}")
    for i in range(4): A(f"v_mov_b32 v{16+i}, 0")
    A("v_lshlrev_b32 v2, 4, v0")
    A("v_add_u32 v2, s74, v2")
    A("s_mov_b64 exec, 3")
    A(f"ds_write_b128 v2, {p4(16)}")
    A("s_mov_b64 exec, -1")
    A("v_lshrrev_b32 v2, 3, v0")
    A(f"v_mul_u32_u24 v2, {Q_CPY}, v2")
    A("v_and_b32 v3, 7, v0")
    A("v_lshl_add_u32 v2, v3, 4, v2")
    A("v_add_u32 v2, s75, v2")
    A("s_mov_b64 exec, 0xffffffff")
    A(f"ds_write_b128 v2, {p4(16)}")
    A("s_mov_b64 exec, -1")
    A("v_and_b32 v3, 3, v0")
    A("v_bfe_u32 v4, v0, 2, 2")
    A("v_sub_u32 v3, v3, v4")
    A("v_lshlrev_b32 v3, 3, v3")
    A("v_lshrrev_b32 v4, 4, v0")
    A("v_lshl_add_u32 v3, v4, 6, v3")
    A("v_add_u32 v3, s74, v3")
    A("v_add_u32 v3, 32, v3")
    A("s_waitcnt vmcnt(4) lgkmcnt(0)" if "hearly" in OPTS else "s_waitcnt vmcnt(0) lgkmcnt(0)")
    G = 64
    def greg(e, s1): return G + 4*(8*e + s1)
    for s1 in range(8):
        for e in range(2):
            g = greg(e, s1)
            A(f"ds_read_b64_tr_b16 {p2(g)}, v3 offset:{512*s1+256*e+32}")
            A(f"ds_read_b64_tr_b16 {p2(g+2)}, v3 offset:{512*s1+256*e}")
        if s1 % 3 == 2: A("s_waitcnt lgkmcnt(4)")
    A("v_and_b32 v5, 15, v0")
    A("v_lshlrev_b32 v6, 3, v5")
    A("v_lshlrev_b32 v7, 4, v4")
    A("v_sub_u32 v6, v6, v7")
    A("v_add_u32 v6, s75, v6")
    A("v_add_u32 v6, 56, v6")
    A("v_lshlrev_b32 v7, 6, v5")
    A("v_lshl_add_u32 v7, v4, 4, v7")
    A(f"s_lshl_b32 s{T+1}, s78, 13")
    A(f"v_add_u32 v7, s{T+1}, v7")
    A(f"v_add_u32 v11, 4096, v7")
    add64(62, S_WS, WS_YG)
    A("v_subrev_u32 v8, 16, v0")
    A("v_add_u32 v9, 47, v0")
    A("v_cmp_gt_u32 vcc, 16, v0")
    A("s_nop 1")
    A("v_cndmask_b32 v8, v8, v9, vcc")
    A("v_mov_b32 v9, 63")
    A("v_cmp_eq_u32 vcc, 0, v0")
    A("s_nop 1")
    A("v_cndmask_b32 v8, v8, v9, vcc")
    A("v_lshlrev_b32 v8, 2, v8")
    A(f"v_mov_b32 v9, {L_MC}")
    A("v_mov_b32 v10, 1")
    A(f"s_mov_b64 {sp(66)}, 1")
    add64(64, S_WS, WS_KVT)
    A(f"s_lshl_b32 s{T+1}, s78, 13")
    A("v_lshlrev_b32 v1, 4, v0")
    A(f"v_add_u32 v1, s{T+1}, v1")
    A("v_add_u32 v12, 4096, v1")
    A("v_lshrrev_b32 v2, 4, v0")
    A("v_lshlrev_b32 v2, 4, v2")
    A("v_and_b32 v13, 7, v0")
    A("v_lshl_add_u32 v2, v13, 1, v2")
    A("v_bfe_u32 v13, v0, 3, 1")
    A("v_add_u32 v2, v2, v13")
    A("v_lshlrev_b32 v2, 1, v2")
    A("v_add_u32 v2, s75, v2")
    A("v_and_b32 v13, 15, v0")
    A("v_lshlrev_b32 v13, 9, v13")
    A(f"v_add_u32 v13, s{T+1}, v13")
    A("v_add_u32 v13, 504, v13")
    stamp(5)
    tagcheck_loop(lambda: A(f"global_load_dwordx2 v[14:15], v13, {sp(64)} sc1"), [15], 16, 17, sleep=1)
    stamp(6)
    tl(6, 7, 0)
    KV = 16
    def ldkv():
        for q in range(8):
            A(f"global_load_dwordx4 {p4(KV+4*q)}, v{1 if q < 4 else 12}, {sp(64)} offset:{1024*(q % 4)} sc1")
    tagcheck_loop(ldkv, [KV+4*q+1+2*h for q in range(8) for h in range(2)], 14, 48, sleep=1)
    for q in range(8):
        r = KV + 4*q
        o = 128 + 128*q
        A(f"ds_write_b16 v2, v{r} offset:{0*Q_CPY+o}")
        A(f"ds_write_b16_d16_hi v2, v{r} offset:{1*Q_CPY+o}")
        A(f"ds_write_b16 v2, v{r+2} offset:{2*Q_CPY+o}")
        A(f"ds_write_b16_d16_hi v2, v{r+2} offset:{3*Q_CPY+o}")
    A("s_waitcnt lgkmcnt(0)")
    for i in range(3): A(f"v_mov_b32 v{40+i}, 0")
    stamp(7)
    tl(7, 7, 0)
    lq = LdsQ()
    classes = [(c1, sg, e) for c1 in range(8) for sg in range(4) for e in range(2)]
    free = [48, 52, 56, 60]
    fbuf = {}
    def fread(k):
        c1, sg, e = classes[k]
        b = free.pop(0); fbuf[k] = b
        off = sg*Q_CPY + 128*c1 + 64*(1-e)
        lq.issue(f"ds_read_b64 {p2(b)}, v6 offset:{off}", ("F", k))
        lq.issue(f"ds_read_b64 {p2(b+2)}, v6 offset:{off+8}", ("F", k))
    def acc(sg, t): return (sg*8 + t)*4
    def combine_ops(t):
        a = 16
        ops = []
        for sg in range(4):
            for r in range(4):
                ops.append(lambda sg=sg, r=r: A(f"v_accvgpr_read_b32 v{a+4*sg+r}, a{acc(sg,t)+r}"))
        a0, a1, a2, a3 = a, a+4, a+8, a+12
        C = 32 + 0
        ops.append(lambda: A(f"v_add_f32 v{C}, v{a1+3}, v{a2+2}"))
        ops.append(lambda: A(f"v_add_f32 v{C+1}, v{a2+3}, v{a3+2}"))
        ops.append(lambda: A(f"v_add_f32 v{C}, v{C}, v{a3+1}"))
        P = 36 + 4*(t & 1)
        Pp = 36 + 4*((t+1) & 1)
        ops.append(lambda: lq.issue(f"ds_bpermute_b32 v{P}, v8, v{C}", ("B", t)))
        ops.append(lambda: lq.issue(f"ds_bpermute_b32 v{P+1}, v8, v{C+1}", ("B", t)))
        ops.append(lambda: lq.issue(f"ds_bpermute_b32 v{P+2}, v8, v{a3+3}", ("B", t)))
        ops.append(lambda: A(f"v_add_f32 v{a0+1}, v{a0+1}, v{a1}"))
        ops.append(lambda: A(f"v_add_f32 v{a0+2}, v{a0+2}, v{a1+1}"))
        ops.append(lambda: A(f"v_add_f32 v{a0+3}, v{a0+3}, v{a1+2}"))
        ops.append(lambda: A(f"v_add_f32 v{a0+2}, v{a0+2}, v{a2}"))
        ops.append(lambda: A(f"v_add_f32 v{a0+3}, v{a0+3}, v{a2+1}"))
        ops.append(lambda: A(f"v_add_f32 v{a0+3}, v{a0+3}, v{a3}"))
        ops.append(lambda: lq.wait(("B", t)))
        for i in range(3):
            ops.append(lambda i=i: A(f"v_cndmask_b32 v{44+i}, v{P+i}, v{Pp+i}, {sp(66)}"))
        for i in range(3):
            ops.append(lambda i=i: A(f"v_add_f32 v{a0+i}, v{a0+i}, v{44+i}"))
        YQ = 12 if False else 44
        ops.append(lambda: A(f"v_cvt_pk_bf16_f32 v44, v{a0}, v{a0+1}"))
        ops.append(lambda: A(f"v_mov_b32 v45, s{S_NONCE}"))
        ops.append(lambda: A(f"v_cvt_pk_bf16_f32 v46, v{a0+2}, v{a0+3}"))
        ops.append(lambda: A(f"v_mov_b32 v47, s{S_NONCE}"))
        ops.append(lambda: A(f"global_store_dwordx4 v{7 if t < 4 else 11}, {p4(44)}, {sp(62)} offset:{1024*(t % 4)} sc1"))
        ops.append(lambda: A("s_nop 1"))
        return ops
    nxt = 0
    def topup(maxn=2):
        nonlocal nxt
        n = 0
        while free and nxt < len(classes) and n < maxn and len(lq.q) <= 10:
            fread(nxt); nxt += 1; n += 1
    topup(3)
    pending = []
    k = 0
    for c1 in range(8):
        nm_step = 8*(8-c1)
        if c1 > 0:
            pending = combine_ops(c1-1)
            free.extend([greg(0, 8-c1), greg(1, 8-c1)])
        per = 0
        if pending:
            avail = max(1, nm_step - 3)
            per = -(-len(pending) // avail)
        mi = 0
        for sg in range(4):
            for e in range(2):
                while nxt <= k: topup(1)
                lq.wait(("F", k))
                b = fbuf[k]
                for s1 in range(8-c1):
                    t = s1 + c1
                    d = acc(sg, t)
                    cin = "0" if (c1 == 0 and e == 0) else f"a[{d}:{d+3}]"
                    A(f"v_mfma_f32_16x16x32_bf16 a[{d}:{d+3}], {p4(greg(e, s1))}, {p4(b)}, {cin}")
                    mi += 1
                    if s1 == 0: topup(1)
                    if pending and mi >= 3:
                        for _ in range(per):
                            if pending: pending.pop(0)()
                free.append(b)
                k += 1
        while pending: pending.pop(0)()
    A("s_nop 7"); A("s_nop 1")
    for op in combine_ops(7): op()
    A("s_mov_b64 exec, 1")
    A("ds_add_u32 v9, v10")
    A("s_mov_b64 exec, -1")
    stamp(8)
    tl(8, 7, 0)

def lds_spin(addr_off, target, va, vb, sleep=1):
    T = S_T
    L = A.newlabel("L_ls")
    A(f"v_mov_b32 v{va}, {L_MC}")
    A(f"s_mov_b32 s{T+1}, 0")
    A.label(L)
    A(f"ds_read_b32 v{vb}, v{va} offset:{addr_off}")
    A("s_waitcnt lgkmcnt(0)")
    A(f"v_readfirstlane_b32 s{T}, v{vb}")
    A(f"s_add_u32 s{T+1}, s{T+1}, 1")
    A(f"s_cmp_ge_u32 s{T+1}, {SPIN_MAX*4}")
    A(f"s_cbranch_scc1 {L}_d")
    A(f"s_cmp_ge_u32 s{T}, {target}")
    A(f"s_cbranch_scc1 {L}_d")
    if sleep: A(f"s_sleep {sleep}")
    A(f"s_branch {L}")
    A.label(L + "_d")

def conv_helper_prep():
    T = S_T
    if "gupf" in OPTS:
        R0 = int(os.environ.get("PFROW", "288")); NR = (576 - R0) // 18
        assert NR % 4 == 0
        RW = NR // 4
        A(f"s_and_b32 s{T+1}, s{S_WG}, 7")
        A(f"s_mul_i32 s{T+1}, s{T+1}, 1152")
        A(f"s_lshr_b32 s{T+2}, s{S_WG}, 3")
        A(f"s_mul_i32 s{T+2}, s{T+2}, {NR}")
        A(f"s_mul_i32 s{T+3}, s72, {RW}")
        A(f"s_add_u32 s{T+2}, s{T+2}, s{T+3}")
        A(f"s_add_u32 s{T+2}, s{T+2}, {R0}")
        A(f"s_mul_i32 s{T+2}, s{T+2}, 9216")
        A(f"s_add_u32 s{T+1}, s{T+1}, s{T+2}")
        A("v_lshlrev_b32 v10, 4, v0")
        A(f"v_add_u32 v10, s{T+1}, v10")
        A("v_lshrrev_b32 v11, 3, v0")
        A("v_mul_u32_u24 v11, 9216, v11")
        A("v_and_b32 v12, 7, v0")
        A("v_lshl_add_u32 v11, v12, 4, v11")
        A(f"v_add_u32 v11, s{T+1}, v11")
        A("v_add_u32 v11, 1024, v11")
        ar = 16
        for base in (S_WGT, S_WUP):
            A("v_mov_b32 v13, v10")
            for r in range(RW):
                A(f"global_load_dwordx4 a[{ar}:{ar+3}], v13, {sp(base)}"); ar += 4
                if r < RW - 1: A("v_add_u32 v13, 9216, v13")
            A(f"s_mov_b64 exec, {hex((1 << (8*RW)) - 1) if 8*RW < 32 else '0xffffffff'}") if 8*RW <= 32 else None
            A(f"global_load_dwordx4 a[{ar}:{ar+3}], v11, {sp(base)}"); ar += 4
            A("s_mov_b64 exec, -1")
    srd(SRD_Q, S_Q, 2359296)
    A(f"s_mul_i32 s{T+4}, s72, {4*9216}")
    A(f"s_mul_i32 s{T+6}, s72, {4*TBLK}")
    A(f"s_add_u32 s{T+6}, s{T+6}, {L_TQ}")
    for i in range(4):
        dma(3, SRD_Q, f"s{T+4}", f"s{T+6}")
        A(f"s_add_u32 s{T+4}, s{T+4}, 9216")
        A(f"s_add_u32 s{T+6}, s{T+6}, {TBLK}")
    L4 = A.newlabel("L_h4"); L5 = A.newlabel("L_h5"); Le = A.newlabel("L_he")
    A(f"s_cmp_eq_u32 s{S_WAVE}, 4")
    A(f"s_cbranch_scc1 {L4}")
    A(f"s_cmp_eq_u32 s{S_WAVE}, 5")
    A(f"s_cbranch_scc1 {L5}")
    A(f"s_branch {Le}")
    A.label(L4)
    A(f"s_lshl_b32 s{T+1}, s77, 10")
    A("v_lshlrev_b32 v10, 4, v0")
    A(f"v_add_u32 v11, s{T+1}, v10")
    add64(T+2, S_WS, WS_SG)
    tagcheck_loop(lambda: A(f"global_load_dwordx4 {p4(12)}, v11, {sp(T+2)} sc1"), [13, 15], 16, 17, sleep=4)
    A("v_lshlrev_b32 v20, 16, v12"); A(f"v_and_b32 v21, s{S_MASK}, v12")
    A("v_lshlrev_b32 v22, 16, v14"); A(f"v_and_b32 v23, s{S_MASK}, v14")
    A("v_rcp_f32 v21, v21"); A("v_rcp_f32 v23, v23")
    A(f"v_add_u32 v10, {L_ST}, v10")
    A("s_nop 0")
    A(f"ds_write_b128 v10, {p4(20)}")
    A(f"s_branch {Le}")
    A.label(L5)
    A("v_and_b32 v10, 7, v0")
    A("v_lshlrev_b32 v11, 3, v10")
    add64(T+2, S_WS, WS_SEL)
    tagcheck_loop(lambda: A(f"global_load_dwordx2 v[12:13], v11, {sp(T+2)} sc1"), [13], 16, 17, sleep=4)
    A("v_and_b32 v12, 0x7ff, v12")
    A(f"s_lshl_b32 s{T+1}, s77, 7")
    A(f"v_subrev_u32 v12, s{T+1}, v12")
    A("v_cmp_gt_u32 vcc, 128, v12")
    A("v_or_b32 v13, 0x80, v10")
    A(f"v_add_u32 v12, {L_SELT}, v12")
    A("s_and_b32 vcc_lo, vcc_lo, 0xff")
    A("s_mov_b32 vcc_hi, 0")
    A("s_mov_b64 exec, vcc")
    Lk = A.newlabel("L_nsel")
    A(f"s_cbranch_execz {Lk}")
    A("ds_write_b8 v12, v13")
    A.label(Lk)
    A("s_mov_b64 exec, -1")
    A.label(Le)
    A("s_waitcnt vmcnt(0) lgkmcnt(0)")
    A(f"v_mov_b32 v10, {L_MC}")
    A("v_mov_b32 v11, 1")
    A("s_mov_b64 exec, 1")
    A("ds_add_u32 v10, v11 offset:4")
    A("s_mov_b64 exec, -1")
    stamp(5)
    lds_spin(0, 4, 10, 11, sleep=2)
    stamp(6)

def conv_epilogue():
    T = S_T
    A("; ---- epilogue ----")
    lds_spin(4, 4, 10, 11, sleep=1)
    A("v_and_b32 v2, 7, v0"); A("v_lshrrev_b32 v1, 3, v0")
    A(f"s_and_b32 s{T+1}, s{S_WAVE}, 1"); A(f"s_lshl_b32 s{T+1}, s{T+1}, 3")
    A(f"v_add_u32 v6, s{T+1}, v2")
    A(f"s_lshr_b32 s{T+2}, s{S_WAVE}, 1"); A(f"s_lshl_b32 s{T+2}, s{T+2}, 3")
    A(f"v_add_u32 v7, s{T+2}, v1")
    A(f"s_lshl_b32 s{T+1}, s76, 19")
    A(f"s_lshl_b32 s{T+2}, s77, 9")
    A(f"s_add_u32 s{T+1}, s{T+1}, s{T+2}")
    A("v_lshlrev_b32 v8, 14, v7")
    A("v_lshl_add_u32 v8, v6, 5, v8")
    A(f"v_add_u32 v8, s{T+1}, v8")
    A("v_add_u32 v9, 8192, v8")
    add64(62, S_WS, WS_YG)
    A(f"v_mul_u32_u24 v10, {TBLK}, v6")
    A("v_lshl_add_u32 v10, v7, 2, v10")
    A(f"v_add_u32 v11, {L_TQ}, v10")
    XR = 16
    for i in range(8): A(f"ds_read_b32 v{XR+i}, v11 offset:{128*i}")
    A(f"s_lshl_b32 s{T+1}, s{S_WAVE}, 11")
    A("v_lshlrev_b32 v12, 5, v0")
    A(f"v_add_u32 v12, s{T+1}, v12")
    A(f"v_add_u32 v12, {L_KVL}, v12")
    KV = 24
    A(f"ds_read_b128 {p4(KV)}, v12")
    A(f"ds_read_b128 {p4(KV+4)}, v12 offset:16")
    A("v_lshlrev_b32 v12, 6, v6")
    A(f"v_add_u32 v12, {L_ST}, v12")
    SR = 32
    for i in range(4): A(f"ds_read_b128 {p4(SR+4*i)}, v12 offset:{16*i}")
    A("v_lshlrev_b32 v12, 3, v6")
    A(f"v_add_u32 v12, {L_SELT}, v12")
    A("ds_read_b64 v[48:49], v12")
    A(f"s_lshl_b32 s{T+1}, s76, 7")
    A("v_lshlrev_b32 v13, 2, v7")
    A(f"v_add_u32 v13, s{T+1}, v13")
    A(f"global_load_dword v50, v13, {sp(S_D)}")
    YR = 64
    def ld():
        A(f"global_load_dwordx4 {p4(YR)}, v8, {sp(62)} sc1")
        A(f"global_load_dwordx4 {p4(YR+4)}, v8, {sp(62)} offset:16 sc1")
        A(f"global_load_dwordx4 {p4(YR+8)}, v9, {sp(62)} sc1")
        A(f"global_load_dwordx4 {p4(YR+12)}, v9, {sp(62)} offset:16 sc1")
    A("s_waitcnt lgkmcnt(0)")
    XN, SS = 80, 96
    for i in range(8):
        m, rs = SR+2*i, SR+2*i+1
        A(f"v_lshlrev_b32 v{SS+2*i}, 16, v{XR+i}"); A(f"v_and_b32 v{SS+2*i+1}, s{S_MASK}, v{XR+i}")
        A(f"v_sub_f32 v{XN+2*i}, v{SS+2*i}, v{m}"); A(f"v_sub_f32 v{XN+2*i+1}, v{SS+2*i+1}, v{m}")
        A(f"v_mul_f32 v{XN+2*i}, v{XN+2*i}, v{rs}"); A(f"v_mul_f32 v{XN+2*i+1}, v{XN+2*i+1}, v{rs}")
        A(f"v_pk_add_f32 {p2(SS+2*i)}, {p2(SS+2*i)}, {p2(XN+2*i)}")
    stamp(7)
    tagcheck_loop(ld, [YR+2*j+1 for j in range(8)], 14, 52, sleep=1)
    A(f"v_lshlrev_b32 v52, 16, v50"); A(f"v_and_b32 v53, s{S_MASK}, v50")
    O = 112
    for i in range(8):
        for c in range(2):
            yr = YR + 8*c + 2*(i >> 1); kr = KV + 4*c + (i >> 1)
            t0, t1 = 54 + 2*c, 55 + 2*c
            if i & 1:
                A(f"v_and_b32 v{t0}, s{S_MASK}, v{yr}"); A(f"v_and_b32 v{t1}, s{S_MASK}, v{kr}")
            else:
                A(f"v_lshlrev_b32 v{t0}, 16, v{yr}"); A(f"v_lshlrev_b32 v{t1}, 16, v{kr}")
            A(f"v_fma_f32 v{t0}, v{t1}, v{52+c}, v{t0}")
            A(f"v_fma_f32 v{SS+2*i+c}, v{XN+2*i+c}, v{t0}, v{SS+2*i+c}")
        A(f"v_cvt_pk_bf16_f32 v{O+i}, v{SS+2*i}, v{SS+2*i+1}")
    A(f"v_add_u32 v11, {L_OT}, v10")
    for i in range(8): A(f"ds_write_b32 v11, v{O+i} offset:{128*i}")
    Lx = A.newlabel("L_nt1")
    A("v_or_b32 v12, v48, v49")
    A("v_cmp_ne_u32 vcc, 0, v12")
    A("s_nop 3")
    A("s_cmp_eq_u64 vcc, 0")
    A(f"s_cbranch_scc1 {Lx}")
    add64(64, S_WS, WS_T1G)
    A(f"s_lshl_b32 s{T+1}, s76, 6")
    A("v_lshlrev_b32 v13, 1, v7")
    A(f"v_add_u32 v13, s{T+1}, v13")
    for i in range(8):
        Li = A.newlabel("L_t1i")
        A(f"v_bfe_u32 v12, v{48 + (i >> 2)}, {8*(i & 3)}, 8")
        A("v_cmp_lt_u32 vcc, 0x7f, v12")
        A(f"s_and_saveexec_b64 {sp(T+12)}, vcc")
        A(f"s_cbranch_execz {Li}")
        A("v_and_b32 v12, 7, v12")
        A("v_mul_u32_u24 v12, 576, v12")
        A("v_add_u32 v12, v12, v13")
        A("v_lshlrev_b32 v12, 3, v12")
        A(f"v_sub_f32 v56, v{SS+2*i}, v{XN+2*i}")
        A(f"v_mov_b32 v57, s{S_NONCE}")
        A(f"v_sub_f32 v58, v{SS+2*i+1}, v{XN+2*i+1}")
        A(f"v_mov_b32 v59, s{S_NONCE}")
        A(f"global_store_dwordx4 v12, {p4(56)}, {sp(64)} sc1")
        A.label(Li)
        A(f"s_mov_b64 exec, {sp(T+12)}")
    A.label(Lx)
    A("s_waitcnt lgkmcnt(0)")
    A("s_barrier")
    A(f"s_lshl_b32 s{T+1}, s{S_WAVE}, 3")
    A(f"v_add_u32 v1, s{T+1}, v1")
    A("v_lshrrev_b32 v3, 3, v1")
    A(f"v_mul_u32_u24 v3, {TBLK}, v3")
    A("v_and_b32 v4, 7, v1")
    A("v_lshl_add_u32 v3, v4, 7, v3")
    A("v_lshl_add_u32 v3, v2, 4, v3")
    A(f"v_add_u32 v3, {L_OT}, v3")
    A(f"ds_read_b128 {p4(16)}, v3")
    A(f"ds_read_b128 {p4(20)}, v3 offset:{8*TBLK}")
    A(f"v_add_u32 v4, {L_SELT}, v1")
    A("ds_read_u8 v24, v4")
    A("ds_read_u8 v25, v4 offset:64")
    srd(SRD_O, S_OUT, 2359296)
    A(f"s_mul_i32 s{T+1}, s77, {128*1152}")
    A(f"s_lshl_b32 s{T+2}, s76, 7")
    A(f"s_add_u32 s{T+1}, s{T+1}, s{T+2}")
    A("v_mul_u32_u24 v5, 1152, v1")
    A("v_lshl_add_u32 v5, v2, 4, v5")
    A(f"v_add_u32 v5, s{T+1}, v5")
    A(f"v_add_u32 v6, {64*1152}, v5")
    A("s_waitcnt lgkmcnt(0)")
    for h, (va, vs, vd) in enumerate(((5, 24, 16), (6, 25, 20))):
        A(f"v_lshlrev_b32 v{vs}, 24, v{vs}")
        A(f"v_and_b32 v{vs}, 0x80000000, v{vs}")
        A(f"v_or_b32 v{va}, v{va}, v{vs}")
        A(f"buffer_store_dwordx4 {p4(vd)}, v{va}, s[{SRD_O}:{SRD_O+3}], 0 offen")
    stamp(9)
    tl(9, 7, 0)

def conv_wg():
    conv_tile()
    A(f"s_cmp_ge_u32 s{S_WAVE}, 4")
    A("s_cbranch_scc1 L_helper")
    conv_mfma_wave()
    A("s_branch L_epi")
    A.label("L_helper")
    conv_helper_prep()
    A.label("L_epi")
    conv_epilogue()
    A("s_branch L_fin")

M_WG = 0
M_WU = 73728
M_XS = 147456
XS_RS = 1168
M_H = M_XS + 8*XS_RS
H_RS = 144
M_GU = M_H + 8*H_RS
M_RED = M_GU
M_MISC = M_GU + 4096
M_END = M_MISC + 160
M_LIST = 0
S_DUMP = 16384

def moe_dma():
    T = S_T
    srd(SRD_K, S_WGT, 5308416)
    srd(SRD_V, S_WUP, 5308416)
    A("v_lshrrev_b32 v1, 3, v0")
    A("v_and_b32 v2, 7, v0")
    A("v_bfe_u32 v3, v0, 4, 1")
    A(f"s_and_b32 s{T+1}, s{S_WAVE}, 1")
    A(f"s_lshl_b32 s{T+1}, s{T+1}, 1")
    A(f"v_add_u32 v3, s{T+1}, v3")
    A("v_lshlrev_b32 v3, 1, v3")
    A("v_xor_b32 v2, v2, v3")
    A("v_mul_u32_u24 v1, 9216, v1")
    A("v_lshl_add_u32 v1, v2, 4, v1")
    A(f"s_lshl_b32 s{T+1}, s70, 7")
    A(f"v_add_u32 v1, s{T+1}, v1")
    A(f"s_mul_i32 s{T+3}, s{S_WAVE}, 73728")
    A(f"s_lshl_b32 s{T+4}, s{S_WAVE}, 10")
    A(f"s_mov_b32 s{T+5}, 0")
    L = A.newlabel("L_dma")
    A.label(L)
    A(f"s_add_u32 m0, s{T+4}, {M_WG}")
    A("s_nop 0")
    A(f"buffer_load_dwordx4 v1, s[{SRD_K}:{SRD_K+3}], s{T+3} offen {NT} lds")
    A(f"s_add_u32 m0, s{T+4}, {M_WU}")
    A(f"s_add_u32 s{T+5}, s{T+5}, 1")
    A(f"buffer_load_dwordx4 v1, s[{SRD_V}:{SRD_V+3}], s{T+3} offen {NT} lds")
    A(f"s_add_u32 s{T+3}, s{T+3}, {8*73728}")
    A(f"s_add_u32 s{T+4}, s{T+4}, {8*1024}")
    A(f"s_cmp_lt_u32 s{T+5}, 9")
    A(f"s_cbranch_scc1 {L}")

def moe_sel_wait():
    T = S_T
    A(f"s_lshl_b32 s{T+1}, s{S_WAVE}, 3")
    A(f"s_add_u32 s{T+1}, s{T+1}, {WS_SEL}")
    A(f"v_mov_b32 v3, s{T+1}")
    A("v_mov_b32 v4, 0")
    L = A.newlabel("L_sw"); Ld = A.newlabel("L_swd")
    A(f"s_mov_b32 s{T}, 0")
    A.label(L)
    A(f"global_load_dwordx2 v[16:17], v3, {sp(S_WS)} sc1")
    A(f"global_load_dword v30, v4, {sp(S_DBG)} sc1")
    A("s_waitcnt vmcnt(0)")
    A(f"v_readfirstlane_b32 s{S_NONCE}, v30")
    A(f"v_readfirstlane_b32 s{T+2}, v17")
    A(f"s_add_u32 s{T}, s{T}, 1")
    A(f"s_cmp_ge_u32 s{T}, {SPIN_MAX}")
    A(f"s_cbranch_scc1 {Ld}")
    A(f"s_cmp_eq_u32 s{S_NONCE}, 0")
    A(f"s_cbranch_scc1 {L}_s")
    A(f"s_cmp_eq_u32 s{T+2}, s{S_NONCE}")
    A(f"s_cbranch_scc1 {Ld}")
    A.label(L + "_s")
    A("s_sleep 3")
    A(f"s_branch {L}")
    A.label(Ld)

def moe_row_loads():
    T = S_T
    A("v_and_b32 v18, 0x7ff, v16")
    A("v_mul_u32_u24 v20, 1152, v18")
    A("v_and_b32 v21, 31, v0")
    A("v_mul_u32_u24 v21, 36, v21")
    A("v_add_u32 v20, v20, v21")
    A(f"global_load_dwordx4 {p4(24)}, v20, {sp(S_Q)}")
    A(f"global_load_dwordx4 {p4(28)}, v20, {sp(S_Q)} offset:16")
    A(f"global_load_dword v32, v20, {sp(S_Q)} offset:32")
    A("v_lshlrev_b32 v22, 3, v18")
    A(f"v_add_u32 v22, {WS_SG}, v22")
    A(f"global_load_dwordx2 v[40:41], v22, {sp(S_WS)} sc1")

def moe_xs_compute():
    T = S_T
    L = A.newlabel("L_sg"); Ld = A.newlabel("L_sgd")
    A(f"s_mov_b32 s{T}, 0")
    A.label(L)
    A(f"v_readfirstlane_b32 s{T+2}, v41")
    A(f"s_add_u32 s{T}, s{T}, 1")
    A(f"s_cmp_eq_u32 s{T+2}, s{S_NONCE}")
    A(f"s_cbranch_scc1 {Ld}")
    A(f"s_cmp_ge_u32 s{T}, {SPIN_MAX}")
    A(f"s_cbranch_scc1 {Ld}")
    A(f"global_load_dwordx2 v[40:41], v22, {sp(S_WS)} sc1")
    A("s_waitcnt vmcnt(0)")
    A(f"s_branch {L}")
    A.label(Ld)
    A(f"v_lshlrev_b32 v44, 16, v40")
    A(f"v_and_b32 v45, s{S_MASK}, v40")
    A("v_rcp_f32 v46, v45")
    A(f"v_and_b32 v52, s{S_MASK}, v16")
    A("v_fma_f32 v47, -v45, v46, 1.0")
    A("v_fma_f32 v46, v47, v46, v46")
    A(f"v_mul_f32 v52, 0x{f32bits(-1.4426950408889634):08x}, v52")
    A("v_exp_f32 v52, v52")
    for i in range(9):
        r = 24 + i
        t = 48 + 2*(i & 1)
        A(f"v_lshlrev_b32 v{t}, 16, v{r}")
        A(f"v_and_b32 v{t+1}, s{S_MASK}, v{r}")
        A(f"v_pk_add_f32 {p2(t)}, {p2(t)}, v[44:45] op_sel_hi:[1,0] neg_lo:[0,1] neg_hi:[0,1]")
        rnd(t); rnd(t+1)
        A(f"v_pk_mul_f32 {p2(t)}, {p2(t)}, v[46:47] op_sel_hi:[1,0]")
        A(f"v_cvt_pk_bf16_f32 v{r}, v{t}, v{t+1}")
    A("v_add_f32 v52, 1.0, v52")
    A("v_rcp_f32 v52, v52")
    A(f"s_mul_i32 s{T+4}, s{S_WAVE}, {XS_RS}")
    A(f"s_add_u32 s{T+4}, s{T+4}, {M_XS}")
    A("v_add_u32 v21, s%d, v21" % (T+4))
    rnd(52)
    A("s_mov_b64 exec, 0xffffffff")
    A("ds_write2_b32 v21, v24, v25 offset0:0 offset1:1")
    A("ds_write2_b32 v21, v26, v27 offset0:2 offset1:3")
    A("ds_write2_b32 v21, v28, v29 offset0:4 offset1:5")
    A("ds_write2_b32 v21, v30, v31 offset0:6 offset1:7")
    A("ds_write_b32 v21, v32 offset:32")
    A(f"s_lshl_b32 s{T+4}, s{S_WAVE}, 2")
    A(f"s_add_u32 s{T+4}, s{T+4}, {M_MISC+32}")
    A(f"v_mov_b32 v53, s{T+4}")
    A("s_mov_b64 exec, 1")
    A("ds_write_b32 v53, v16")
    A("ds_write_b32 v53, v52 offset:32")
    A("s_mov_b64 exec, -1")
    A(f"s_lshl_b32 s{T+1}, s{S_WAVE}, 6")
    A(f"v_add_u32 v1, s{T+1}, v0")

DRA, DRB = 64, 96
def moe_down_loads():
    T = S_T
    A("v_lshrrev_b32 v6, 4, v0")
    A("v_mul_u32_u24 v5, 9216, v6")
    A("v_and_b32 v6, 15, v0")
    A("v_lshl_add_u32 v5, v6, 3, v5")
    A(f"s_mul_i32 s{T+1}, s70, 73728")
    A(f"s_lshl_b32 s{T+2}, s{S_WAVE}, 7")
    A(f"s_add_u32 s{T+1}, s{T+1}, s{T+2}")
    A(f"v_add_u32 v5, s{T+1}, v5")
    srd(SRD_Q, S_WD, 5308416)
    def panel(R, extra):
        for ks in range(2):
            for jj in range(8):
                so = 36864*ks + 4608*(jj//4) + extra
                A(f"s_mov_b32 s{T+3}, {so}")
                r = R + 16*ks + 2*jj
                A(f"buffer_load_dwordx2 {p2(r)}, v5, s[{SRD_Q}:{SRD_Q+3}], s{T+3} offen offset:{1152*(jj%4)} {NT}")
    panel(DRA, 0)
    L = A.newlabel("L_np8")
    A(f"s_cmp_lg_u32 s{S_WAVE}, 0")
    A(f"s_cbranch_scc1 {L}")
    panel(DRB, 1024)
    A.label(L)

def down_perm(R, F):
    for ks in range(2):
        for e in range(4):
            sel = S_SELLO if (e & 1) == 0 else S_SELHI
            for q in range(4):
                A(f"v_perm_b32 v{F+16*ks+4*e+q}, v{R+16*ks+2*(2*q+1)+e//2}, v{R+16*ks+2*(2*q)+e//2}, s{sel}")

def moe_gateup():
    T = S_T
    A(f"s_lshr_b32 s{T+1}, s{S_WAVE}, 2")
    A(f"s_and_b32 s{T+2}, s{S_WAVE}, 3")
    A("v_lshrrev_b32 v6, 4, v0")
    A("v_bfe_u32 v7, v0, 2, 2")
    A("v_and_b32 v8, 3, v0")
    A("v_lshrrev_b32 v9, 1, v7")
    A("v_and_b32 v10, 1, v6")
    A("v_lshl_add_u32 v9, v10, 1, v9")
    A("v_lshlrev_b32 v9, 1, v9")
    A("v_lshrrev_b32 v10, 1, v8")
    A(f"s_lshl_b32 s{T+3}, s{T+2}, 1")
    A(f"v_add_u32 v10, s{T+3}, v10")
    A("v_xor_b32 v10, v10, v9")
    A("v_lshlrev_b32 v2, 10, v6")
    A("v_lshl_add_u32 v2, v7, 7, v2")
    A("v_lshl_add_u32 v2, v10, 4, v2")
    A("v_and_b32 v8, 1, v8")
    A("v_lshl_add_u32 v2, v8, 3, v2")
    A(f"s_mul_i32 s{T+3}, s{T+1}, {M_WU}")
    A(f"v_add_u32 v2, s{T+3}, v2")
    A(f"v_add_u32 v5, {4096*9}, v2")
    A("v_and_b32 v3, 7, v0")
    A(f"v_mul_u32_u24 v3, {XS_RS}, v3")
    A("v_lshl_add_u32 v3, v6, 4, v3")
    A(f"v_add_u32 v3, {M_XS}, v3")
    def rd(t):
        b = 8*(t % 8)
        a, o = (2, 4096*t) if t < 9 else (5, 4096*(t-9))
        A(f"ds_read_b64_tr_b16 a[{b}:{b+1}], v{a} offset:{o}")
        A(f"ds_read_b64_tr_b16 a[{b+2}:{b+3}], v{a} offset:{o+512}")
        A(f"ds_read_b128 a[{b+4}:{b+7}], v3 offset:{64*t}")
    for t in range(5): rd(t)
    for t in range(18):
        rem = min(17, t+4) - t
        A(f"s_waitcnt lgkmcnt({3*rem})")
        b = 8*(t % 8)
        cin = "0" if t == 0 else "v[8:11]"
        A(f"v_mfma_f32_16x16x32_bf16 v[8:11], a[{b}:{b+3}], a[{b+4}:{b+7}], {cin}")
        if t + 5 < 18: rd(t+5)
    A("v_and_b32 v3, 15, v0")
    A("v_lshlrev_b32 v4, 8, v3")
    A("v_lshl_add_u32 v4, v6, 4, v4")
    A(f"s_lshl_b32 s{T+3}, s{T+1}, 11")
    A(f"s_lshl_b32 s{T+4}, s{T+2}, 6")
    A(f"s_add_u32 s{T+3}, s{T+3}, s{T+4}")
    A(f"s_add_u32 s{T+3}, s{T+3}, {M_GU}")
    A(f"v_add_u32 v4, s{T+3}, v4")
    A("v_cmp_gt_u32 vcc, 8, v3")
    A(f"s_and_saveexec_b64 {sp(T+12)}, vcc")
    A("s_nop 2")
    A(f"ds_write_b128 v4, {p4(8)}")
    A(f"s_mov_b64 exec, {sp(T+12)}")

def moe_h_and_down_stage():
    T = S_T
    A("v_lshlrev_b32 v2, 2, v1")
    A(f"v_add_u32 v2, {M_GU}, v2")
    A("ds_read_b32 v8, v2")
    A("ds_read_b32 v9, v2 offset:2048")
    A("v_lshrrev_b32 v3, 6, v1")
    A(f"v_mul_u32_u24 v3, {H_RS}, v3")
    A("v_lshl_add_u32 v3, v0, 1, v3")
    A(f"v_add_u32 v3, {M_H}, v3")
    A("s_waitcnt lgkmcnt(0)")
    rnd(8); rnd(9)
    A(f"v_mul_f32 v10, 0x{f32bits(-1.4426950408889634):08x}, v8")
    A("v_exp_f32 v10, v10")
    A("s_nop 0")
    A("v_add_f32 v10, 1.0, v10")
    A("v_rcp_f32 v10, v10")
    A("s_nop 0")
    A("v_mul_f32 v10, v8, v10")
    rnd(10)
    A("v_mul_f32 v10, v10, v9")
    A("v_cvt_pk_bf16_f32 v10, v10, v10")
    A("ds_write_b16 v3, v10")
    A("s_waitcnt vmcnt(0)")
    down_perm(DRA, 32)
    L = A.newlabel("L_np8b")
    A(f"s_cmp_lg_u32 s{S_WAVE}, 0")
    A(f"s_cbranch_scc1 {L}")
    down_perm(DRB, 64)
    A.label(L)

def moe_down():
    T = S_T
    A("v_and_b32 v2, 7, v0")
    A(f"v_mul_u32_u24 v2, {H_RS}, v2")
    A("v_lshrrev_b32 v6, 4, v0")
    A("v_lshl_add_u32 v2, v6, 4, v2")
    A(f"v_add_u32 v2, {M_H}, v2")
    A(f"ds_read_b128 {p4(16)}, v2")
    A(f"ds_read_b128 {p4(20)}, v2 offset:64")
    A("v_and_b32 v4, 15, v0")
    A("v_lshlrev_b32 v5, 4, v4")
    A("v_lshl_add_u32 v5, v6, 9, v5")
    A(f"s_mul_i32 s{T+1}, s70, 18432")
    A(f"s_lshl_b32 s{T+2}, s{S_WAVE}, 11")
    A(f"s_add_u32 s{T+1}, s{T+1}, s{T+2}")
    A(f"v_add_u32 v5, s{T+1}, v5")
    add64(T+2, S_WS, WS_PART)
    A(f"s_mov_b32 s{T+4}, 0x07060503"); A(f"s_mov_b32 s{T+5}, 0x06050302"); A(f"s_mov_b32 s{T+6}, 0x05030201")
    A("v_cmp_gt_u32 vcc, 8, v4")
    A(f"s_mov_b64 {sp(T+12)}, vcc")
    A("s_waitcnt lgkmcnt(0)")
    def panel(F, ACC, G, vaddr):
        for e in range(4):
            A(f"v_mfma_f32_16x16x32_bf16 {p4(ACC+4*e)}, {p4(F+4*e)}, {p4(16)}, 0")
        for e in range(4):
            A(f"v_mfma_f32_16x16x32_bf16 {p4(ACC+4*e)}, {p4(F+16+4*e)}, {p4(20)}, {p4(ACC+4*e)}")
        A("s_nop 7"); A("s_nop 1")
        for r in range(4):
            g = G + 4*r
            a, b, c, d = ACC+r, ACC+4+r, ACC+8+r, ACC+12+r
            A(f"v_perm_b32 v{g}, v{a}, v{b}, s{T+4}")
            A(f"v_perm_b32 v{g+1}, v{b}, v{c}, s{T+5}")
            A(f"v_perm_b32 v{g+2}, v{c}, v{d}, s{T+6}")
            A(f"v_mov_b32 v{g+3}, s{S_NONCE}")
        A(f"s_mov_b64 exec, {sp(T+12)}")
        for r in range(4):
            A(f"global_store_dwordx4 v{vaddr}, {p4(G+4*r)}, {sp(T+2)} offset:{128*r} sc1")
        A("s_mov_b64 exec, -1")
    panel(32, 96, 112, 5)
    L = A.newlabel("L_np8c")
    A(f"s_cmp_lg_u32 s{S_WAVE}, 0")
    A(f"s_cbranch_scc1 {L}")
    A(f"v_add_u32 v7, {8*2048}, v5")
    panel(64, 96, 32, 7)
    A.label(L)

def moe_reduce():
    T = S_T
    A("v_lshrrev_b32 v6, 4, v0")
    A(f"s_mul_i32 s{T+1}, s{S_WAVE}, 9")
    A(f"v_add_u32 v1, s{T+1}, v6")
    A(f"v_mul_u32_u24 v1, 18432, v1")
    A("v_and_b32 v2, 15, v0")
    A("v_lshl_add_u32 v1, v2, 4, v1")
    A(f"s_lshl_b32 s{T+1}, s70, 8")
    A(f"v_add_u32 v1, s{T+1}, v1")
    A(f"v_add_u32 v3, {4*18432}, v1")
    A(f"v_mul_u32_u24 v4, 18432, v6")
    A(f"v_sub_u32 v4, v1, v4")
    A(f"v_add_u32 v4, {8*18432}, v4")
    A("v_lshrrev_b32 v50, 2, v0")
    A("v_and_b32 v51, 3, v0")
    A(f"s_lshl_b32 s{T+1}, s70, 4")
    A(f"v_add_u32 v52, s{T+1}, v50")
    A("v_and_b32 v53, 7, v52")
    A("v_lshrrev_b32 v54, 3, v52")
    A("v_lshl_add_u32 v54, v54, 2, v51")
    A("v_mul_u32_u24 v55, 576, v53")
    A("v_add_u32 v55, v55, v54")
    A("v_lshlrev_b32 v55, 3, v55")
    A(f"v_add_u32 v55, {WS_T1G}, v55")
    add64(T+2, S_WS, WS_PART)
    def ld():
        A(f"global_load_dwordx4 {p4(16)}, v1, {sp(T+2)} sc1")
        A(f"global_load_dwordx4 {p4(20)}, v3, {sp(T+2)} sc1")
        A(f"global_load_dwordx4 {p4(24)}, v4, {sp(T+2)} sc1")
        A(f"global_load_dwordx2 v[28:29], v55, {sp(S_WS)} sc1")
    tagcheck_loop(ld, [19, 23, 27, 29], 10, 12, sleep=1)
    stamp(8)
    tl(14, 151, 0)
    A(f"s_mov_b32 s{T+4}, 0x0403020c"); A(f"s_mov_b32 s{T+5}, 0x0504030c"); A(f"s_mov_b32 s{T+6}, 0xffffff00")
    U = 32
    for i in range(3):
        g = 16 + 4*i; u = U + 4*i
        A(f"v_and_b32 v{u}, s{T+6}, v{g}")
        A(f"v_perm_b32 v{u+1}, v{g}, v{g+1}, s{T+4}")
        A(f"v_perm_b32 v{u+2}, v{g+1}, v{g+2}, s{T+5}")
        A(f"v_lshlrev_b32 v{u+3}, 8, v{g+2}")
    for r in range(4):
        A(f"v_add_f32 v{U+r}, v{U+r}, v{U+4+r}")
    for swap in ("v_permlane32_swap_b32", "v_permlane16_swap_b32"):
        for r in range(4): A(f"v_mov_b32 v{44+r}, v{U+r}")
        A("s_nop 1")
        for r in range(4): A(f"{swap} v{U+r}, v{44+r}")
        for r in range(4): A(f"v_add_f32 v{U+r}, v{U+r}, v{44+r}")
    for r in range(4):
        A(f"v_add_f32 v{U+r}, v{U+r}, v{U+8+r}")
    A(f"s_lshl_b32 s{T+1}, s{S_WAVE}, 8")
    A("v_lshlrev_b32 v5, 4, v2")
    A(f"v_add_u32 v5, s{T+1}, v5")
    A(f"v_add_u32 v5, {M_RED}, v5")
    A("s_mov_b64 exec, 0xffff")
    A(f"ds_write_b128 v5, {p4(U)}")
    A("s_mov_b64 exec, -1")
    A("s_waitcnt lgkmcnt(0)")
    A("s_barrier")
    L = A.newlabel("L_nofin")
    A(f"s_cmp_lg_u32 s{S_WAVE}, 0")
    A(f"s_cbranch_scc1 {L}")
    A("v_lshlrev_b32 v6, 4, v50")
    A("v_lshl_add_u32 v6, v51, 2, v6")
    A(f"v_add_u32 v6, {M_RED}, v6")
    for w in range(8): A(f"ds_read_b32 v{16+w}, v6 offset:{256*w}")
    A(f"v_mul_u32_u24 v7, {XS_RS}, v53")
    A("v_lshl_add_u32 v7, v54, 1, v7")
    A(f"v_add_u32 v7, {M_XS}, v7")
    A("ds_read_u16 v24, v7")
    A("v_lshlrev_b32 v8, 2, v53")
    A(f"v_add_u32 v8, {M_MISC}, v8")
    A("ds_read_b32 v25, v8 offset:32")
    A("ds_read_b32 v26, v8 offset:64")
    A("v_mov_b32 v5, v54")
    A("s_waitcnt lgkmcnt(0)")
    A("v_add_f32 v16, v16, v17"); A("v_add_f32 v18, v18, v19"); A("v_add_f32 v20, v20, v21"); A("v_add_f32 v22, v22, v23")
    A("v_add_f32 v16, v16, v18"); A("v_add_f32 v20, v20, v22"); A("v_add_f32 v16, v16, v20")
    rnd(16)
    A("v_mul_f32 v16, v16, v26")
    rnd(16)
    A("v_lshlrev_b32 v24, 16, v24")
    A("v_add_f32 v16, v24, v16")
    rnd(16)
    A("v_add_f32 v16, v28, v16")
    A("v_cvt_pk_bf16_f32 v16, v16, v16")
    A("v_and_b32 v25, 0x7ff, v25")
    A("v_mul_u32_u24 v25, 1152, v25")
    A("v_lshl_add_u32 v25, v5, 1, v25")
    A(f"global_store_short v25, v16, {sp(S_OUT)}")
    A.label(L)

def lds_init_list():
    T = S_T
    A(f"s_lshl_b32 s{T+1}, s{S_WAVE}, 10")
    A("v_lshlrev_b32 v110, 4, v0")
    A(f"v_add_u32 v111, s{T+1}, v110")
    A(f"v_add_u32 v111, {M_LIST}, v111")
    for i in range(4): A(f"v_mov_b32 v{112+i}, 0xff800000")
    A(f"ds_write_b128 v111, {p4(112)}")
    L0 = A.newlabel("L_ni")
    A(f"s_cmp_lg_u32 s{S_WAVE}, 0")
    A(f"s_cbranch_scc1 {L0}")
    A(f"v_add_u32 v111, {M_LIST+8192}, v110")
    A("s_mov_b64 exec, 0xf")
    A(f"ds_write_b128 v111, {p4(112)}")
    A("s_mov_b64 exec, -1")
    for i in range(4): A(f"v_mov_b32 v{116+i}, 0")
    A(f"v_add_u32 v111, {M_MISC}, v110")
    A("s_mov_b64 exec, 0x3ff")
    A(f"ds_write_b128 v111, {p4(116)}")
    A("s_mov_b64 exec, -1")
    A.label(L0)

def sel_top8():
    T = S_T
    A(f"s_lshl_b32 s{T+1}, s{S_WAVE}, 6")
    A(f"v_add_u32 v1, s{T+1}, v0")
    A("v_lshlrev_b32 v2, 5, v1")
    add64(T+2, S_WS, WS_RG)
    K = 16
    def ld():
        for i in range(2):
            A(f"global_load_dwordx4 {p4(K+4*i)}, v2, {sp(T+2)} offset:{16*i} sc1")
    tagcheck_loop(ld, [K+2*i+1 for i in range(4)], 10, 12, sleep=1)
    stamp(5)
    tl(10, 255, 0)
    keys = [K+2*i for i in range(4)]
    A(f"v_max3_f32 v40, v{keys[0]}, v{keys[1]}, v{keys[2]}")
    A(f"v_max_f32 v40, v40, v{keys[3]}")
    for sh in (8, 4, 2, 1):
        A("s_nop 1")
        A(f"v_max_f32_dpp v40, v40, v40 row_ror:{sh} row_mask:0xf bank_mask:0xf")
    A("s_nop 1")
    A(f"v_readlane_b32 s{T+4}, v40, 16")
    A(f"v_readlane_b32 s{T+5}, v40, 32")
    A(f"v_readlane_b32 s{T+6}, v40, 48")
    A("s_nop 1")
    A(f"v_max_f32 v40, s{T+4}, v40")
    A(f"v_max_f32 v40, s{T+5}, v40")
    A(f"v_max_f32 v40, s{T+6}, v40")
    A(f"s_lshl_b32 s{T+4}, s{S_WAVE}, 2")
    A(f"s_add_u32 s{T+4}, s{T+4}, {M_MISC+96}")
    A(f"v_mov_b32 v43, s{T+4}")
    A("s_mov_b64 exec, 1")
    A(f"ds_write_b32 v43, v40")
    A("s_mov_b64 exec, -1")
    A("s_waitcnt lgkmcnt(0)")
    A("s_barrier")
    A(f"v_mov_b32 v43, {M_MISC+96}")
    A(f"ds_read_b128 {p4(44)}, v43")
    A(f"ds_read_b128 {p4(48)}, v43 offset:16")
    A("s_waitcnt lgkmcnt(0)")
    A("v_min3_f32 v40, v44, v45, v46")
    A("v_min3_f32 v41, v47, v48, v49")
    A("v_min3_f32 v40, v40, v50, v51")
    A("v_min_f32 v40, v40, v41")
    A("v_mov_b32 v41, 0")
    for i in range(4):
        A(f"v_cmp_ge_f32 {sp(T+4+2*i)}, v{keys[i]}, v40")
    for q in range(4):
        A(f"v_addc_co_u32 v41, vcc, 0, v41, {sp(T+4+2*q)}")
    A(f"v_mov_b32 v43, {M_MISC}")
    A("v_cmp_lt_u32 vcc, 0, v41")
    A(f"s_and_saveexec_b64 {sp(T+12)}, vcc")
    A("ds_add_rtn_u32 v42, v43, v41")
    A(f"s_mov_b64 exec, {sp(T+12)}")
    A("s_waitcnt lgkmcnt(0)")
    A("v_lshlrev_b32 v42, 2, v42")
    A(f"v_add_u32 v42, {M_LIST}, v42")
    A(f"v_mov_b32 v43, {S_DUMP}")
    for i in range(4):
        A(f"v_cndmask_b32 v44, v43, v42, {sp(T+4+2*i)}")
        A(f"v_cndmask_b32 v45, 0, 4, {sp(T+4+2*i)}")
        A(f"ds_write_b32 v44, v{keys[i]}")
        A(f"v_add_u32 v42, v42, v45")
    A("s_waitcnt lgkmcnt(0)")
    A("s_barrier")
    A(f"v_mov_b32 v43, {M_MISC}")
    A("ds_read_b32 v44, v43")
    A("s_waitcnt lgkmcnt(0)")
    A(f"v_readfirstlane_b32 s{T+8}, v44")
    A(f"s_mov_b32 s{T+9}, 0")
    Lc = A.newlabel("L_chunk"); Lj = A.newlabel("L_j")
    A.label(Lc)
    A(f"v_add_u32 v44, s{T+9}, v0")
    A("v_lshlrev_b32 v44, 2, v44")
    A(f"v_add_u32 v44, {M_LIST}, v44")
    A("ds_read_b32 v46, v44")
    A("v_mov_b32 v47, 0")
    A(f"v_mov_b32 v45, {M_LIST}")
    A(f"s_mov_b32 s{T+10}, 0")
    A.label(Lj)
    A(f"ds_read_b128 {p4(48)}, v45")
    A(f"ds_read_b128 {p4(52)}, v45 offset:16")
    A("v_add_u32 v45, 32, v45")
    A(f"s_add_u32 s{T+10}, s{T+10}, 8")
    A("s_waitcnt lgkmcnt(1)")
    for q in range(4):
        A(f"v_cmp_gt_f32 {sp(T+2*q)}, v{48+q}, v46")
    for q in range(4):
        A(f"v_addc_co_u32 v47, vcc, 0, v47, {sp(T+2*q)}")
    A("s_waitcnt lgkmcnt(0)")
    for q in range(4):
        A(f"v_cmp_gt_f32 {sp(T+2*q)}, v{52+q}, v46")
    for q in range(4):
        A(f"v_addc_co_u32 v47, vcc, 0, v47, {sp(T+2*q)}")
    A(f"s_cmp_lt_u32 s{T+10}, s{T+8}")
    A(f"s_cbranch_scc1 {Lj}")
    A(f"v_add_u32 v44, s{T+9}, v0")
    A(f"v_cmp_gt_u32 vcc, s{T+8}, v44")
    A(f"v_cmp_gt_u32 {sp(T)}, 8, v47")
    A("s_nop 1")
    A(f"s_and_b64 vcc, vcc, {sp(T)}")
    A(f"s_and_saveexec_b64 {sp(T+12)}, vcc")
    A("v_lshlrev_b32 v47, 2, v47")
    A(f"v_add_u32 v47, {M_MISC+32}, v47")
    A("ds_write_b32 v47, v46")
    A(f"s_mov_b64 exec, {sp(T+12)}")
    A(f"s_add_u32 s{T+9}, s{T+9}, 64")
    A(f"s_cmp_lt_u32 s{T+9}, s{T+8}")
    A(f"s_cbranch_scc1 {Lc}")
    A("s_waitcnt lgkmcnt(0)")
    stamp(6)

def sel_publish():
    T = S_T
    L = A.newlabel("L_sp")
    A(f"s_cmp_lg_u32 s{S_WAVE}, 0")
    A(f"s_cbranch_scc1 {L}")
    A("v_lshlrev_b32 v1, 2, v0")
    A(f"v_add_u32 v1, {M_MISC+32}, v1")
    A("s_mov_b64 exec, 0xff")
    A("ds_read_b32 v2, v1")
    add64(T+2, S_WS, WS_SEL)
    A(f"v_mov_b32 v3, s{S_NONCE}")
    A("v_lshlrev_b32 v4, 3, v0")
    A("s_waitcnt lgkmcnt(0)")
    A(f"global_store_dwordx2 v4, v[2:3], {sp(T+2)} sc1")
    A("s_mov_b64 exec, -1")
    A.label(L)
    stamp(7)
    tl(11, 255, 0)

def spare_wg():
    T = S_T
    A(f"s_sub_u32 s69, s69, {NMOE}")
    A("s_mul_i32 s68, s69, 52")
    A(f"s_lshl_b32 s{T+1}, s{S_WAVE}, 2")
    A(f"s_add_u32 s68, s68, s{T+1}")
    A("s_add_u32 s67, s68, 32")
    Le = A.newlabel("L_lne"); L2 = A.newlabel("L_np2"); L3 = A.newlabel("L_np3")
    A("s_mov_b32 s73, 0")
    A("s_cmp_ge_u32 s68, 2048")
    A(f"s_cbranch_scc1 {Le}")
    ln_loads(68, LN_Q, True)
    A("v_mov_b32 v9, v3")
    A(f"s_cmp_ge_u32 s{S_WAVE}, 5")
    A(f"s_cbranch_scc1 {L2}")
    A("s_cmp_ge_u32 s67, 2048")
    A(f"s_cbranch_scc1 {L2}")
    A("s_mov_b32 s73, 1")
    ln_loads(67, LN_Q2, False)
    A.label(L2)
    A("v_mov_b32 v120, 0")
    A(f"global_load_dword v121, v120, {sp(S_DBG)} sc1")
    A("s_cmp_eq_u32 s73, 1")
    A(f"s_cbranch_scc1 {L2}_a")
    A("s_waitcnt vmcnt(1)")
    A(f"s_branch {L2}_b")
    A.label(L2 + "_a")
    A("s_waitcnt vmcnt(6)")
    A.label(L2 + "_b")
    def hook():
        Lhn = A.newlabel("L_lnn")
        A("s_waitcnt vmcnt(0)")
        A(f"v_readfirstlane_b32 s{S_NONCE}, v121")
        A(f"s_cmp_lg_u32 s{S_NONCE}, 0")
        A(f"s_cbranch_scc1 {Lhn}")
        get_nonce(124)
        A.label(Lhn)
    ln_compute_publish(LN_Q, 9, True, hook=hook)
    stamp(3)
    A("s_cmp_eq_u32 s73, 0")
    A(f"s_cbranch_scc1 {Le}")
    ln_compute_publish(LN_Q2, 3, False)
    A.label(Le)
    stamp(4)
    A(f"s_cmp_lg_u32 s69, {SELIDX}")
    A("s_cbranch_scc1 L_fin")
    lds_init_list()
    get_nonce(124)
    A("s_waitcnt lgkmcnt(0)")
    A("s_barrier")
    sel_top8()
    sel_publish()
    A("s_branch L_fin")

def moe_wg():
    T = S_T
    A(f"s_sub_u32 s69, s{S_WG}, {NCONV}")
    A(f"s_cmp_ge_u32 s69, {NMOE}")
    A("s_cbranch_scc1 L_spare")
    A("s_and_b32 s70, s69, 7")
    A("s_mul_i32 s70, s70, 9")
    A(f"s_lshr_b32 s{T+1}, s69, 3")
    A(f"s_add_u32 s70, s70, s{T+1}")
    if "mdelay" in OPTS:
        for _ in range(int(os.environ.get("MD", "1"))): A("s_sleep 64")
    if "mnonce" in OPTS: get_nonce(10)
    if "nomoe" in OPTS: A("s_branch L_fin")
    moe_dma()
    A("s_waitcnt vmcnt(4)")
    stamp(4)
    moe_sel_wait()
    stamp(5)
    tl(12, 151, 7)
    moe_row_loads()
    moe_down_loads()
    Lq = A.newlabel("L_w32")
    A(f"s_cmp_lg_u32 s{S_WAVE}, 0")
    A(f"s_cbranch_scc1 {Lq}")
    A("s_waitcnt vmcnt(32)")
    A.label(Lq)
    A(f"s_cmp_eq_u32 s{S_WAVE}, 0")
    A(f"s_cbranch_scc1 {Lq}_b")
    A("s_waitcnt vmcnt(16)")
    A.label(Lq + "_b")
    moe_xs_compute()
    stamp(6)
    tl(13, 151, 7)
    A("s_waitcnt lgkmcnt(0)")
    A("s_barrier")
    moe_gateup()
    A("s_waitcnt lgkmcnt(0)")
    A("s_barrier")
    moe_h_and_down_stage()
    A("s_waitcnt lgkmcnt(0)")
    A("s_barrier")
    stamp(7)
    moe_down()
    moe_reduce()
    A("s_branch L_fin")
    A.label("L_spare")
    spare_wg()

def main():
    prologue()
    A(f"s_cmp_ge_u32 s{S_WG}, {NCONV}")
    A("s_cbranch_scc1 L_moe")
    conv_wg()
    A.label("L_moe")
    moe_wg()
    A.label("L_fin")
    tl(15, 151, 0)
    prof_end()
    A.label("L_end")
    A("s_endpgm")

main()
K = NAME + "_kernel"
LDS = max(L_CONV_END, M_END)
txt = HDR + f"; @launch grid=(256,1,1) block=(512,1,1) lds={LDS}\n" + '.amdgcn_target "amdgcn-amd-amdhsa--gfx950"\n.text\n' + head(K) + A.text() + kd(K, 256, 102, 128, "  .amdhsa_float_denorm_mode_32 3\n")
open(OUTFN, "w").write(txt)
print("wrote", OUTFN, len(txt), "LDS", LDS)
```

```python
import sys, struct, os
sys.path.insert(0, "dev")
from asmlib import *

OUTFN = sys.argv[1] if len(sys.argv) > 1 else "k.s"
OPTS = set(sys.argv[2:])
PROF = "prof" in OPTS
NT = "nt" if "nt" in OPTS else ""

WS_KVT = 0x000000
WS_XT = 0x240000
WS_RG = 0x480000
WS_SG = 0x484000
WS_FL = 0x488000
WS_FL2 = 0x488800
WS_SEL = 0x489800
WS_T1G = 0x48A000
WS_XSG = 0x494000
WS_PART = 0x4A0000
WS_PROF = 0x800000
WS_YG = 0x1000000
SPIN_MAX = 2000 if "dbgB" in OPTS else 400000
NCONV, NMOE = 144, 72
NLN = 40
SELIDX = 39

S_WG, S_WAVE = 2, 3
S_Q, S_K, S_V, S_SK, S_H, S_D, S_BX, S_WR, S_WGT, S_WUP, S_WD, S_OUT, S_DBG, S_WS = 4, 6, 8, 10, 12, 14, 16, 18, 20, 22, 24, 26, 28, 30
SRD_K, SRD_V, SRD_Q, SRD_O = 32, 36, 40, 44
S_NONCE = 48
S_MASK, S_SELLO, S_SELHI = 50, 51, 52
S_T = 54

A = Asm()
def f32bits(x): return struct.unpack("<I", struct.pack("<f", x))[0]
def p2(r): return f"v[{r}:{r+1}]"
def p4(r): return f"v[{r}:{r+3}]"
def sp(r): return f"s[{r}:{r+1}]"

NSTAMP = 10
def stamp(i):
    if PROF: A(f"s_memtime s[{80+2*i}:{81+2*i}]")
def prof_begin():
    if PROF:
        A("s_memrealtime s[100:101]")
        stamp(0)
        for i in range(1, NSTAMP):
            A(f"s_mov_b64 s[{80+2*i}:{81+2*i}], 0")
def prof_end():
    if not PROF: return
    A(f"s_memrealtime s[{S_T+2}:{S_T+3}]")
    A("s_waitcnt lgkmcnt(0)")
    A(f"s_lshl_b32 s{S_T}, s{S_WG}, 3")
    A(f"s_add_u32 s{S_T}, s{S_T}, s{S_WAVE}")
    A(f"s_lshl_b32 s{S_T}, s{S_T}, 6")
    A(f"s_add_u32 s{S_T}, s{S_T}, {WS_PROF}")
    A(f"v_mov_b32 v1, s{S_T}")
    A("s_mov_b64 exec, 1")
    A("v_mov_b32 v2, s100")
    A(f"global_store_dword v1, v2, {sp(S_WS)}")
    A(f"v_mov_b32 v2, s{S_T+2}")
    A(f"global_store_dword v1, v2, {sp(S_WS)} offset:4")
    for i in range(1, NSTAMP):
        A(f"s_sub_u32 s{S_T+1}, s{80+2*i}, s80")
        A(f"v_mov_b32 v2, s{S_T+1}")
        A(f"global_store_dword v1, v2, {sp(S_WS)} offset:{4+4*i}")
    A("s_mov_b64 exec, -1")

TL = "tl" in OPTS
TLSET = os.environ.get("TLSET", "A")
def tl(slot, wg, wave, setname="A"):
    if not TL or setname != TLSET: return
    L = A.newlabel("L_tl")
    A(f"s_cmp_lg_u32 s{S_WG}, {wg}")
    A(f"s_cbranch_scc1 {L}")
    A(f"s_cmp_lg_u32 s{S_WAVE}, {wave}")
    A(f"s_cbranch_scc1 {L}")
    A("s_memrealtime s[98:99]")
    A("s_mov_b64 s[100:101], exec")
    A("s_mov_b64 exec, 1")
    A("v_readfirstlane_b32 s96, v126")
    A("v_readfirstlane_b32 s97, v127")
    A(f"v_mov_b32 v126, {4*slot}")
    A("s_waitcnt lgkmcnt(0)")
    A("v_mov_b32 v127, s98")
    A(f"global_store_dword v126, v127, {sp(S_DBG)}")
    A("s_nop 4")
    A("v_mov_b32 v126, s96")
    A("v_mov_b32 v127, s97")
    A("s_mov_b64 exec, s[100:101]")
    A.label(L)

def rnd(v, src=None):
    A(f"v_cvt_pk_bf16_f32 v{v}, 0, v{v if src is None else src}")
def srd(dst, base, nbytes):
    A(f"s_mov_b32 s{dst}, s{base}")
    A(f"s_and_b32 s{dst+1}, s{base+1}, 0xffff")
    A(f"s_mov_b32 s{dst+2}, {nbytes}")
    A(f"s_mov_b32 s{dst+3}, 0x00020000")
def add64(dst, src, imm):
    A(f"s_add_u32 s{dst}, s{src}, {imm}")
    A(f"s_addc_u32 s{dst+1}, s{src+1}, 0")

def get_nonce(vtmp):
    L = A.newlabel("L_nonce"); Ld = A.newlabel("L_nonced")
    A(f"v_mov_b32 v{vtmp}, 0")
    A(f"s_mov_b32 s{S_T}, 0")
    A.label(L)
    A(f"global_load_dword v{vtmp+1}, v{vtmp}, {sp(S_DBG)} sc1")
    A(f"s_waitcnt vmcnt(0)")
    A(f"v_readfirstlane_b32 s{S_NONCE}, v{vtmp+1}")
    A(f"s_add_u32 s{S_T}, s{S_T}, 1")
    A(f"s_cmp_lg_u32 s{S_NONCE}, 0")
    A(f"s_cbranch_scc1 {Ld}")
    A(f"s_cmp_lt_u32 s{S_T}, {SPIN_MAX}")
    A(f"s_cbranch_scc1 {L}")
    A.label(Ld)

def tag_acc(tagregs, vacc, vtmp):
    A(f"v_xor_b32 v{vacc}, s{S_NONCE}, v{tagregs[0]}")
    rest = tagregs[1:]
    i = 0
    while i < len(rest):
        if i + 1 < len(rest):
            A(f"v_xor_b32 v{vtmp}, s{S_NONCE}, v{rest[i]}")
            A(f"v_xor_b32 v{vtmp+1}, s{S_NONCE}, v{rest[i+1]}")
            A(f"v_or3_b32 v{vacc}, v{vacc}, v{vtmp}, v{vtmp+1}")
            i += 2
        else:
            A(f"v_xor_b32 v{vtmp}, s{S_NONCE}, v{rest[i]}")
            A(f"v_or_b32 v{vacc}, v{vacc}, v{vtmp}")
            i += 1

def tagcheck_loop(load_fn, tagregs, vacc, vtmp, sleep=1):
    T = S_T
    L = A.newlabel("L_pl"); Ld = A.newlabel("L_pld")
    A(f"s_mov_b32 s{T}, 0")
    A.label(L)
    load_fn()
    A("s_waitcnt vmcnt(0)")
    tag_acc(tagregs, vacc, vtmp)
    A(f"v_cmp_ne_u32 vcc, 0, v{vacc}")
    A(f"s_add_u32 s{T}, s{T}, 1")
    A("s_nop 3")
    A("s_cmp_eq_u64 vcc, 0")
    A(f"s_cbranch_scc1 {Ld}")
    if sleep: A(f"s_sleep {sleep}")
    A(f"s_cmp_lt_u32 s{T}, {SPIN_MAX}")
    A(f"s_cbranch_scc1 {L}")
    A.label(Ld)

def nonce_writer():
    L = A.newlabel("L_nw")
    A(f"s_cmp_ge_u32 s{S_WG}, 8")
    A(f"s_cbranch_scc1 {L}")
    A(f"s_cmp_lg_u32 s{S_WAVE}, 7")
    A(f"s_cbranch_scc1 {L}")
    A(f"s_memrealtime {sp(S_T)}")
    A("s_waitcnt lgkmcnt(0)")
    A(f"s_or_b32 s{S_T}, s{S_T}, 1")
    A(f"v_mov_b32 v10, s{S_T}")
    A("v_mov_b32 v11, 0")
    A("v_mov_b32 v12, 0")
    A("s_mov_b64 exec, 1")
    A(f"global_atomic_cmpswap v12, v[10:11], {sp(S_DBG)} sc1")
    A("s_mov_b64 exec, -1")
    A.label(L)

def code_prefetch():
    T = S_T
    L = A.newlabel("L_cpf")
    A(f"s_cmp_lg_u32 s{S_WAVE}, 6")
    A(f"s_cbranch_scc1 {L}")
    A(f"s_lshr_b32 s{T+2}, s{S_WG}, 3")
    A(f"s_cmp_ge_u32 s{T+2}, (L_end - {NAME}_kernel + 1023) / 1024")
    A(f"s_cbranch_scc1 {L}")
    A(f"s_getpc_b64 {sp(T)}")
    A.label(L + "_pc")
    A(f"s_sub_u32 s{T}, s{T}, {L}_pc - {NAME}_kernel")
    A(f"s_subb_u32 s{T+1}, s{T+1}, 0")
    A(f"s_lshl_b32 s{T+2}, s{T+2}, 10")
    A("v_lshlrev_b32 v1, 4, v0")
    A(f"v_add_u32 v1, s{T+2}, v1")
    A(f"global_load_dwordx4 a[124:127], v1, {sp(T)}")
    A.label(L)

def prologue():
    A(f"s_cmp_ge_u32 s{S_WG}, 256")
    A("s_cbranch_scc1 L_end")
    prof_begin()
    A("s_load_dwordx16 s[4:19], s[0:1], 0")
    A("s_load_dwordx8 s[20:27], s[0:1], 64")
    A("s_load_dwordx4 s[28:31], s[0:1], 96")
    A("v_lshrrev_b32 v1, 6, v0")
    A("v_and_b32 v0, 63, v0")
    A(f"v_readfirstlane_b32 s{S_WAVE}, v1")
    A(f"s_mov_b32 s{S_MASK}, 0xffff0000")
    A(f"s_mov_b32 s{S_SELLO}, 0x05040100")
    A(f"s_mov_b32 s{S_SELHI}, 0x07060302")
    A("s_waitcnt lgkmcnt(0)")
    stamp(1)
    tl(1, 0, 0); tl(2, 7, 0); tl(3, 4, 0)
    nonce_writer()
    code_prefetch()

def dpp_sum16(v):
    for sh in (8, 4, 2, 1):
        A("s_nop 1")
        A(f"v_add_f32_dpp v{v}, v{v}, v{v} row_ror:{sh} row_mask:0xf bank_mask:0xf")

LN_Q, LN_W, LN_Q2 = 10, 28, 46
def ln_loads(stok, Q, with_w):
    T = S_T
    A(f"s_mov_b32 s{T}, s{stok}")
    A("v_lshrrev_b32 v1, 4, v0")
    A("v_and_b32 v2, 15, v0")
    A(f"v_add_u32 v3, s{T}, v1")
    A(f"v_mul_u32_u24 v4, 1152, v3")
    A(f"v_lshl_add_u32 v5, v2, 4, v4")
    A(f"v_lshl_add_u32 v6, v2, 3, v4")
    for i in range(4):
        A(f"global_load_dwordx4 {p4(Q+4*i)}, v5, {sp(S_Q)} offset:{256*i} {NT}")
    A(f"global_load_dwordx2 {p2(Q+16)}, v6, {sp(S_Q)} offset:1024 {NT}")
    if with_w:
        W = LN_W
        A(f"v_lshlrev_b32 v7, 4, v2")
        A(f"v_lshlrev_b32 v8, 3, v2")
        for i in range(4):
            A(f"global_load_dwordx4 {p4(W+4*i)}, v7, {sp(S_WR)} offset:{256*i}")
        A(f"global_load_dwordx2 {p2(W+16)}, v8, {sp(S_WR)} offset:1024")

def dpp_sum16x(vs):
    for sh in (8, 4, 2, 1):
        if len(vs) < 3: A("s_nop 1")
        for v in vs:
            A(f"v_add_f32_dpp v{v}, v{v}, v{v} row_ror:{sh} row_mask:0xf bank_mask:0xf")

def ln_compute_publish(Q, vtok, first, vc=2, hook=None, publish=True):
    T = S_T
    W = LN_W
    A(f"s_mov_b32 s{T+8}, 0x3f803f80"); A(f"s_mov_b32 s{T+9}, 0x00003f80"); A(f"s_mov_b32 s{T+10}, 0x3f800000")
    accs = [64, 65, 66, 67] + ([68, 69] if first else [])
    for a in accs: A(f"v_mov_b32 v{a}, 0")
    for i in range(18):
        A(f"v_dot2_f32_bf16 v{64+(i&1)}, v{Q+i}, s{T+8}, v{64+(i&1)}")
        A(f"v_dot2_f32_bf16 v{66+(i&1)}, v{Q+i}, v{W+i}, v{66+(i&1)}")
        if first: A(f"v_dot2_f32_bf16 v{68+(i&1)}, v{W+i}, s{T+8}, v{68+(i&1)}")
    A("s_nop 2")
    A("v_add_f32 v64, v64, v65")
    A("v_add_f32 v66, v66, v67")
    if first:
        A("v_add_f32 v122, v68, v69")
        A("s_nop 0")
        dpp_sum16x([64, 66, 122])
    else:
        A("s_nop 0")
        dpp_sum16x([64, 66])
    A(f"v_mul_f32 v64, 0x{f32bits(1.0/576):08x}, v64")
    A("v_sub_f32 v65, 0, v64")
    for a in (68, 69, 70, 71): A(f"v_mov_b32 v{a}, 0")
    for i in range(0, 18, 2):
        A(f"v_dot2_f32_bf16 v72, v{Q+i}, s{T+9}, v65")
        A(f"v_dot2_f32_bf16 v73, v{Q+i}, s{T+10}, v65")
        A(f"v_dot2_f32_bf16 v74, v{Q+i+1}, s{T+9}, v65")
        A(f"v_dot2_f32_bf16 v75, v{Q+i+1}, s{T+10}, v65")
        A("s_nop 1")
        A(f"v_fma_f32 v68, v72, v72, v68")
        A(f"v_fma_f32 v69, v73, v73, v69")
        A(f"v_fma_f32 v70, v74, v74, v70")
        A(f"v_fma_f32 v71, v75, v75, v71")
    A("v_add_f32 v68, v68, v69"); A("v_add_f32 v70, v70, v71"); A("v_add_f32 v68, v68, v70")
    dpp_sum16x([68])
    A(f"v_mul_f32 v68, 0x{f32bits(1.0/576):08x}, v68")
    rnd(68)
    A(f"v_add_f32 v68, 0x{f32bits(1e-5):08x}, v68")
    rnd(68)
    A("v_sqrt_f32 v69, v68")
    A("s_nop 0")
    A("v_rcp_f32 v70, v69")
    A("v_fma_f32 v71, -v69, v69, v68")
    A("v_mul_f32 v70, 0.5, v70")
    A("v_fma_f32 v69, v71, v70, v69")
    rnd(69)
    A("v_rcp_f32 v70, v69")
    rnd(64)
    A("v_fma_f32 v66, -v64, v122, v66")
    A("v_mul_f32 v112, v66, v70")
    rnd(112)
    A(f"v_or_b32 v112, v112, v{vtok}")
    A("v_cvt_pk_bf16_f32 v114, v64, v69")
    if not publish:
        A("v_mov_b32 v32, v112"); A("v_mov_b32 v34, v114")
        return
    if hook: hook()
    ln_publish(vtok, vc)

def ln_publish(vtok, vc):
    T = S_T
    A(f"v_mov_b32 v113, s{S_NONCE}")
    A(f"v_mov_b32 v115, s{S_NONCE}")
    A(f"v_lshlrev_b32 v116, 3, v{vtok}")
    add64(T+2, S_WS, WS_RG)
    add64(T+4, S_WS, WS_SG)
    A(f"v_cmp_eq_u32 vcc, 0, v{vc}")
    A(f"s_and_saveexec_b64 {sp(T+6)}, vcc")
    A(f"global_store_dwordx2 v116, v[112:113], {sp(T+2)} sc1")
    A(f"global_store_dwordx2 v116, v[114:115], {sp(T+4)} sc1")
    A(f"s_mov_b64 exec, {sp(T+6)}")

P_CH = 4128
L_P = 0
L_Q = L_P + 4 * P_CH
Q_CPY = 1152
Q_CH = 4 * Q_CPY
L_KVL = L_Q + 4 * Q_CH
L_MC = L_KVL + 16384
L_SELT = L_MC + 64
L_ST = L_SELT + 128
L_TAP = L_ST + 1024
TBLK = 1040
L_TK = (L_TAP + 512 + 15) // 16 * 16
L_TV = L_TK + 17 * TBLK
L_TQ = L_TV + 16 * TBLK
L_OT = L_TK
L_CONV_END = L_TQ + 16 * TBLK

def dma(voff, srdreg, soff, m0, flag=None):
    A(f"s_mov_b32 m0, {m0}")
    A("s_nop 0")
    A(f"buffer_load_dwordx4 v{voff}, s[{srdreg}:{srdreg+3}], {soff} offen {NT if flag is None else flag} lds")

def conv_tile():
    T = S_T
    A(f"s_sub_u32 s72, s{S_WAVE}, 4")
    A(f"s_mul_hi_u32 s77, s{S_WG}, {(2**32 + 8)//9}")
    A(f"s_mul_i32 s76, s77, 9")
    A(f"s_sub_u32 s76, s{S_WG}, s76")
    srd(SRD_K, S_K, 2359296)
    srd(SRD_V, S_V, 2359296)
    A("v_lshrrev_b32 v1, 3, v0")
    A("v_and_b32 v2, 7, v0")
    A(f"s_mul_i32 s{T+2}, s77, {128*1152}")
    A(f"s_lshl_b32 s{T+3}, s76, 7")
    A(f"s_add_u32 s{T+2}, s{T+2}, s{T+3}")
    A(f"v_mul_u32_u24 v3, 1152, v1")
    A(f"v_lshl_add_u32 v3, v2, 4, v3")
    A(f"v_add_u32 v3, s{T+2}, v3")
    A(f"s_mul_i32 s{T+4}, s{S_WAVE}, {2*9216}")
    A(f"s_mul_i32 s{T+6}, s{S_WAVE}, {2*TBLK}")
    for i in range(2):
        A(f"s_add_u32 s{T+7}, s{T+6}, {L_TK + TBLK + i*TBLK}")
        A(f"s_add_u32 s{T+5}, s{T+4}, {9216*i}")
        dma(3, SRD_K, f"s{T+5}", f"s{T+7}")
        A(f"s_add_u32 s{T+7}, s{T+6}, {L_TV + i*TBLK}")
        dma(3, SRD_V, f"s{T+5}", f"s{T+7}")
    L7 = A.newlabel("L_w7")
    A(f"s_cmp_lg_u32 s{S_WAVE}, 7")
    A(f"s_cbranch_scc1 {L7}")
    A(f"v_subrev_u32 v4, 9216, v3")
    A(f"s_cmp_lg_u32 s77, 0")
    A(f"s_cbranch_scc1 {L7}_a")
    A("v_bfrev_b32 v4, 1")
    A.label(L7 + "_a")
    dma(4, SRD_K, "0", L_TK)
    for i in range(4): A(f"v_mov_b32 v{52+i}, 0")
    A("v_lshlrev_b32 v56, 4, v0")
    A(f"v_add_u32 v56, {L_MC}, v56")
    A("s_mov_b64 exec, 0xfff")
    A(f"ds_write_b128 v56, {p4(52)}")
    A("s_mov_b64 exec, -1")
    A.label(L7)
    TR = 48
    A(f"s_lshr_b32 s{T+9}, s{S_WAVE}, 1")
    A(f"s_and_b32 s{T+10}, s{S_WAVE}, 1")
    Lt = A.newlabel("L_tap")
    A(f"s_cmp_lg_u32 s{S_WAVE}, 0")
    A(f"s_cbranch_scc1 {Lt}")
    srd(SRD_Q, S_SK, 4608)
    A(f"s_lshl_b32 s{T+11}, s76, 9")
    A("v_lshlrev_b32 v5, 4, v0")
    A("s_mov_b64 exec, 0xffffffff")
    dma(5, SRD_Q, f"s{T+11}", L_TAP, flag="")
    A("s_mov_b64 exec, -1")
    A.label(Lt)
    A("v_mov_b32 v120, 0")
    A(f"global_load_dword v121, v120, {sp(S_DBG)} sc1")
    A(f"s_and_b32 s{T+13}, s{S_WG}, 7")
    A(f"s_mul_i32 s{T+13}, s{T+13}, 18")
    A(f"s_lshr_b32 s{T+12}, s{S_WG}, 3")
    A(f"s_add_u32 s{T+13}, s{T+13}, s{T+12}")
    A(f"s_lshl_b32 s71, s{T+13}, 2")
    A(f"s_and_b32 s{T+12}, s{S_WAVE}, 3")
    A(f"s_add_u32 s78, s71, s{T+12}")
    A(f"s_lshl_b32 s79, s78, 12")
    A(f"s_lshl_b32 s{T+12}, s{T+10}, 3")
    A(f"v_add_u32 v6, s{T+12}, v2")
    A(f"s_lshl_b32 s{T+12}, s{T+9}, 3")
    A(f"v_add_u32 v7, s{T+12}, v1")
    A(f"v_mul_u32_u24 v9, {TBLK}, v6")
    A(f"v_lshl_add_u32 v9, v7, 2, v9")
    A(f"v_add_u32 v9, {L_TK}, v9")
    A(f"s_lshl_b32 s{T+11}, s76, 19")
    A(f"s_lshl_b32 s{T+12}, s77, 9")
    A(f"s_add_u32 s{T+11}, s{T+11}, s{T+12}")
    A(f"s_lshl_b32 s{T+12}, s{T+10}, 8")
    A(f"s_add_u32 s{T+11}, s{T+11}, s{T+12}")
    A("v_lshlrev_b32 v8, 14, v7")
    A("v_lshl_add_u32 v8, v2, 4, v8")
    A(f"v_add_u32 v8, s{T+11}, v8")
    if "hearly" in OPTS:
        Lh = A.newlabel("L_noh"); Lh2 = A.newlabel("L_noh2")
        A(f"s_cmp_ge_u32 s{S_WAVE}, 4")
        A(f"s_cbranch_scc1 {Lh}")
        srd(SRD_Q, S_H, 2359296)
        A("v_lshlrev_b32 v4, 4, v0")
        A(f"s_mul_i32 s74, s{S_WAVE}, {P_CH}")
        for q in range(4):
            A(f"s_add_u32 s{T+9}, s79, {1024*q}")
            A(f"s_add_u32 s{T+5}, s74, {32 + 1024*q}")
            dma(4, SRD_Q, f"s{T+9}", f"s{T+5}")
        if "dbgB" in OPTS: stamp(5)
        A("s_waitcnt vmcnt(4) lgkmcnt(0)")
        A(f"s_branch {Lh2}")
        A.label(Lh)
        if "dbgB" in OPTS: stamp(5)
        A("s_waitcnt vmcnt(0) lgkmcnt(0)")
        A.label(Lh2)
        if "dbgB" in OPTS: stamp(6)
    else:
        A("s_waitcnt vmcnt(0) lgkmcnt(0)")
    A(f"v_readfirstlane_b32 s{S_NONCE}, v121")
    A("s_barrier")
    stamp(2)
    tl(4, 7, 0)
    KR, VR = 10, 21
    for j in range(11):
        off = (640 + 128*j if j < 3 else TBLK + 128*(j-3))
        A(f"ds_read_b32 v{KR+j}, v9 offset:{off}")
    A("v_lshlrev_b32 v5, 2, v7")
    A("v_lshlrev_b32 v5, 2, v5")
    A(f"v_add_u32 v5, {L_TAP}, v5")
    A(f"ds_read_b128 {p4(TR)}, v5")
    for j in range(8):
        A(f"ds_read_b32 v{VR+j}, v9 offset:{L_TV - L_TK + 128*j}")
    A("s_waitcnt lgkmcnt(8)")
    Ln = A.newlabel("L_hasn")
    A(f"s_cmp_lg_u32 s{S_NONCE}, 0")
    A(f"s_cbranch_scc1 {Ln}")
    get_nonce(30)
    A.label(Ln)
    TP = 52
    A(f"v_lshlrev_b32 v{TP+0}, 16, v{TR}"); A(f"v_lshlrev_b32 v{TP+1}, 16, v{TR+2}")
    A(f"v_and_b32 v{TP+2}, s{S_MASK}, v{TR}"); A(f"v_and_b32 v{TP+3}, s{S_MASK}, v{TR+2}")
    A(f"v_lshlrev_b32 v{TP+4}, 16, v{TR+1}"); A(f"v_lshlrev_b32 v{TP+5}, 16, v{TR+3}")
    A(f"v_and_b32 v{TP+6}, s{S_MASK}, v{TR+1}"); A(f"v_and_b32 v{TP+7}, s{S_MASK}, v{TR+3}")
    KP = 80
    for j in range(11):
        A(f"v_lshlrev_b32 v{KP+2*j}, 16, v{KR+j}")
        A(f"v_and_b32 v{KP+2*j+1}, s{S_MASK}, v{KR+j}")
    R = 102
    tp = lambda tap: p2(TP+2*tap)
    for i in range(8): A(f"v_pk_mul_f32 {p2(R+2*i)}, {p2(KP+2*i)}, {tp(3)}")
    for i in range(8): A(f"v_pk_fma_f32 {p2(R+2*i)}, {p2(KP+2*(i+1))}, {tp(2)}, {p2(R+2*i)}")
    for i in range(8): A(f"v_pk_fma_f32 {p2(R+2*i)}, {p2(KP+2*(i+2))}, {tp(1)}, {p2(R+2*i)}")
    for i in range(8): A(f"v_pk_fma_f32 {p2(R+2*i)}, {p2(KP+2*(i+3))}, {tp(0)}, {p2(R+2*i)}")
    A("s_waitcnt lgkmcnt(0)")
    VP = 60
    for i in range(8):
        A(f"v_lshlrev_b32 v{VP+2*i}, 16, v{VR+i}"); A(f"v_and_b32 v{VP+2*i+1}, s{S_MASK}, v{VR+i}")
    for i in range(8): A(f"v_pk_mul_f32 {p2(R+2*i)}, {p2(R+2*i)}, {p2(VP+2*i)}")
    GQ = 80
    for c in range(2):
        for q in range(4):
            A(f"v_cvt_pk_bf16_f32 v{GQ+8*c+2*q}, v{R+4*q+c}, v{R+4*q+2+c}")
            A(f"v_mov_b32 v{GQ+8*c+2*q+1}, s{S_NONCE}")
    add64(T+2, S_WS, WS_KVT)
    add64(T+8, S_WS, WS_KVT+8192)
    A(f"global_store_dwordx4 v8, {p4(GQ)}, {sp(T+2)} sc1")
    A(f"global_store_dwordx4 v8, {p4(GQ+4)}, {sp(T+2)} offset:128 sc1")
    A(f"global_store_dwordx4 v8, {p4(GQ+8)}, {sp(T+8)} sc1")
    A(f"global_store_dwordx4 v8, {p4(GQ+12)}, {sp(T+8)} offset:128 sc1")
    for c in range(2):
        for q in range(4): A(f"v_mov_b32 v{120+4*c+q}, v{GQ+8*c+2*q}")
    A(f"s_lshl_b32 s{T+1}, s{S_WAVE}, 11")
    A("v_lshlrev_b32 v4, 5, v0")
    A(f"v_add_u32 v4, s{T+1}, v4")
    A(f"v_add_u32 v4, {L_KVL}, v4")
    A(f"ds_write_b128 v4, {p4(120)}")
    A(f"ds_write_b128 v4, {p4(124)} offset:16")
    stamp(3)
    if "hearly" not in OPTS:
        Lh = A.newlabel("L_noh")
        A(f"s_cmp_ge_u32 s{S_WAVE}, 4")
        A(f"s_cbranch_scc1 {Lh}")
        srd(SRD_V, S_H, 2359296)
        A("v_lshlrev_b32 v4, 4, v0")
        A(f"s_mul_i32 s74, s{S_WAVE}, {P_CH}")
        for q in range(4):
            A(f"s_add_u32 s{T+9}, s79, {1024*q}")
            A(f"s_add_u32 s{T+10}, s74, {32 + 1024*q}")
            dma(4, SRD_V, f"s{T+9}", f"s{T+10}")
        A.label(Lh)
    A("s_waitcnt lgkmcnt(0)")
    A("s_barrier")
    stamp(4)
    tl(5, 7, 0)
    if "dbgA" in OPTS or "dbgB" in OPTS: A("s_branch L_fin")

class LdsQ:
    def __init__(self): self.q = []
    def issue(self, instr, tag=None):
        A(instr); self.q.append(tag)
    def wait(self, tag):
        idxs = [i for i, t in enumerate(self.q) if t == tag]
        if not idxs: return
        last = idxs[-1]
        n = len(self.q) - 1 - last
        A(f"s_waitcnt lgkmcnt({min(n, 15)})")
        if n <= 15: self.q = self.q[last+1:]
        else: self.q = self.q[len(self.q)-15:]

def conv_mfma_wave():
    T = S_T
    A(f"s_mul_i32 s75, s{S_WAVE}, {Q_CH}")
    A(f"s_add_u32 s75, s75, {L_Q}")
    for i in range(4): A(f"v_mov_b32 v{16+i}, 0")
    A("v_lshlrev_b32 v2, 4, v0")
    A("v_add_u32 v2, s74, v2")
    A("s_mov_b64 exec, 3")
    A(f"ds_write_b128 v2, {p4(16)}")
    A("s_mov_b64 exec, -1")
    A("v_lshrrev_b32 v2, 3, v0")
    A(f"v_mul_u32_u24 v2, {Q_CPY}, v2")
    A("v_and_b32 v3, 7, v0")
    A("v_lshl_add_u32 v2, v3, 4, v2")
    A("v_add_u32 v2, s75, v2")
    A("s_mov_b64 exec, 0xffffffff")
    A(f"ds_write_b128 v2, {p4(16)}")
    A("s_mov_b64 exec, -1")
    A("v_and_b32 v3, 3, v0")
    A("v_bfe_u32 v4, v0, 2, 2")
    A("v_sub_u32 v3, v3, v4")
    A("v_lshlrev_b32 v3, 3, v3")
    A("v_lshrrev_b32 v4, 4, v0")
    A("v_lshl_add_u32 v3, v4, 6, v3")
    A("v_add_u32 v3, s74, v3")
    A("v_add_u32 v3, 32, v3")
    A("s_waitcnt vmcnt(4) lgkmcnt(0)" if "hearly" in OPTS else "s_waitcnt vmcnt(0) lgkmcnt(0)")
    G = 64
    def greg(e, s1): return G + 4*(8*e + s1)
    for s1 in range(8):
        for e in range(2):
            g = greg(e, s1)
            A(f"ds_read_b64_tr_b16 {p2(g)}, v3 offset:{512*s1+256*e+32}")
            A(f"ds_read_b64_tr_b16 {p2(g+2)}, v3 offset:{512*s1+256*e}")
        if s1 % 3 == 2: A("s_waitcnt lgkmcnt(4)")
    A("v_and_b32 v5, 15, v0")
    A("v_lshlrev_b32 v6, 3, v5")
    A("v_lshlrev_b32 v7, 4, v4")
    A("v_sub_u32 v6, v6, v7")
    A("v_add_u32 v6, s75, v6")
    A("v_add_u32 v6, 56, v6")
    A("v_lshlrev_b32 v7, 6, v5")
    A("v_lshl_add_u32 v7, v4, 4, v7")
    A(f"s_lshl_b32 s{T+1}, s78, 13")
    A(f"v_add_u32 v7, s{T+1}, v7")
    A(f"v_add_u32 v11, 4096, v7")
    add64(62, S_WS, WS_YG)
    A("v_subrev_u32 v8, 16, v0")
    A("v_add_u32 v9, 47, v0")
    A("v_cmp_gt_u32 vcc, 16, v0")
    A("s_nop 1")
    A("v_cndmask_b32 v8, v8, v9, vcc")
    A("v_mov_b32 v9, 63")
    A("v_cmp_eq_u32 vcc, 0, v0")
    A("s_nop 1")
    A("v_cndmask_b32 v8, v8, v9, vcc")
    A("v_lshlrev_b32 v8, 2, v8")
    A(f"v_mov_b32 v9, {L_MC}")
    A("v_mov_b32 v10, 1")
    A(f"s_mov_b64 {sp(66)}, 1")
    add64(64, S_WS, WS_KVT)
    A(f"s_lshl_b32 s{T+1}, s78, 13")
    A("v_lshlrev_b32 v1, 4, v0")
    A(f"v_add_u32 v1, s{T+1}, v1")
    A("v_add_u32 v12, 4096, v1")
    A("v_lshrrev_b32 v2, 4, v0")
    A("v_lshlrev_b32 v2, 4, v2")
    A("v_and_b32 v13, 7, v0")
    A("v_lshl_add_u32 v2, v13, 1, v2")
    A("v_bfe_u32 v13, v0, 3, 1")
    A("v_add_u32 v2, v2, v13")
    A("v_lshlrev_b32 v2, 1, v2")
    A("v_add_u32 v2, s75, v2")
    A("v_and_b32 v13, 15, v0")
    A("v_lshlrev_b32 v13, 9, v13")
    A(f"v_add_u32 v13, s{T+1}, v13")
    A("v_add_u32 v13, 504, v13")
    stamp(5)
    tagcheck_loop(lambda: A(f"global_load_dwordx2 v[14:15], v13, {sp(64)} sc1"), [15], 16, 17, sleep=1)
    stamp(6)
    tl(6, 7, 0)
    KV = 16
    def ldkv():
        for q in range(8):
            A(f"global_load_dwordx4 {p4(KV+4*q)}, v{1 if q < 4 else 12}, {sp(64)} offset:{1024*(q % 4)} sc1")
    tagcheck_loop(ldkv, [KV+4*q+1+2*h for q in range(8) for h in range(2)], 14, 48, sleep=1)
    for q in range(8):
        r = KV + 4*q
        o = 128 + 128*q
        A(f"ds_write_b16 v2, v{r} offset:{0*Q_CPY+o}")
        A(f"ds_write_b16_d16_hi v2, v{r} offset:{1*Q_CPY+o}")
        A(f"ds_write_b16 v2, v{r+2} offset:{2*Q_CPY+o}")
        A(f"ds_write_b16_d16_hi v2, v{r+2} offset:{3*Q_CPY+o}")
    A("s_waitcnt lgkmcnt(0)")
    for i in range(3): A(f"v_mov_b32 v{40+i}, 0")
    stamp(7)
    tl(7, 7, 0)
    lq = LdsQ()
    classes = [(c1, sg, e) for c1 in range(8) for sg in range(4) for e in range(2)]
    free = [48, 52, 56, 60]
    fbuf = {}
    def fread(k):
        c1, sg, e = classes[k]
        b = free.pop(0); fbuf[k] = b
        off = sg*Q_CPY + 128*c1 + 64*(1-e)
        lq.issue(f"ds_read_b64 {p2(b)}, v6 offset:{off}", ("F", k))
        lq.issue(f"ds_read_b64 {p2(b+2)}, v6 offset:{off+8}", ("F", k))
    def acc(sg, t): return (sg*8 + t)*4
    def combine_ops(t):
        a = 16
        ops = []
        for sg in range(4):
            for r in range(4):
                ops.append(lambda sg=sg, r=r: A(f"v_accvgpr_read_b32 v{a+4*sg+r}, a{acc(sg,t)+r}"))
        a0, a1, a2, a3 = a, a+4, a+8, a+12
        C = 32 + 0
        ops.append(lambda: A(f"v_add_f32 v{C}, v{a1+3}, v{a2+2}"))
        ops.append(lambda: A(f"v_add_f32 v{C+1}, v{a2+3}, v{a3+2}"))
        ops.append(lambda: A(f"v_add_f32 v{C}, v{C}, v{a3+1}"))
        P = 36 + 4*(t & 1)
        Pp = 36 + 4*((t+1) & 1)
        ops.append(lambda: lq.issue(f"ds_bpermute_b32 v{P}, v8, v{C}", ("B", t)))
        ops.append(lambda: lq.issue(f"ds_bpermute_b32 v{P+1}, v8, v{C+1}", ("B", t)))
        ops.append(lambda: lq.issue(f"ds_bpermute_b32 v{P+2}, v8, v{a3+3}", ("B", t)))
        ops.append(lambda: A(f"v_add_f32 v{a0+1}, v{a0+1}, v{a1}"))
        ops.append(lambda: A(f"v_add_f32 v{a0+2}, v{a0+2}, v{a1+1}"))
        ops.append(lambda: A(f"v_add_f32 v{a0+3}, v{a0+3}, v{a1+2}"))
        ops.append(lambda: A(f"v_add_f32 v{a0+2}, v{a0+2}, v{a2}"))
        ops.append(lambda: A(f"v_add_f32 v{a0+3}, v{a0+3}, v{a2+1}"))
        ops.append(lambda: A(f"v_add_f32 v{a0+3}, v{a0+3}, v{a3}"))
        ops.append(lambda: lq.wait(("B", t)))
        for i in range(3):
            ops.append(lambda i=i: A(f"v_cndmask_b32 v{44+i}, v{P+i}, v{Pp+i}, {sp(66)}"))
        for i in range(3):
            ops.append(lambda i=i: A(f"v_add_f32 v{a0+i}, v{a0+i}, v{44+i}"))
        YQ = 12 if False else 44
        ops.append(lambda: A(f"v_cvt_pk_bf16_f32 v44, v{a0}, v{a0+1}"))
        ops.append(lambda: A(f"v_mov_b32 v45, s{S_NONCE}"))
        ops.append(lambda: A(f"v_cvt_pk_bf16_f32 v46, v{a0+2}, v{a0+3}"))
        ops.append(lambda: A(f"v_mov_b32 v47, s{S_NONCE}"))
        ops.append(lambda: A(f"global_store_dwordx4 v{7 if t < 4 else 11}, {p4(44)}, {sp(62)} offset:{1024*(t % 4)} sc1"))
        ops.append(lambda: A("s_nop 1"))
        return ops
    nxt = 0
    def topup(maxn=2):
        nonlocal nxt
        n = 0
        while free and nxt < len(classes) and n < maxn and len(lq.q) <= 10:
            fread(nxt); nxt += 1; n += 1
    topup(3)
    pending = []
    k = 0
    for c1 in range(8):
        nm_step = 8*(8-c1)
        if c1 > 0:
            pending = combine_ops(c1-1)
            free.extend([greg(0, 8-c1), greg(1, 8-c1)])
        per = 0
        if pending:
            avail = max(1, nm_step - 3)
            per = -(-len(pending) // avail)
        mi = 0
        for sg in range(4):
            for e in range(2):
                while nxt <= k: topup(1)
                lq.wait(("F", k))
                b = fbuf[k]
                for s1 in range(8-c1):
                    t = s1 + c1
                    d = acc(sg, t)
                    cin = "0" if (c1 == 0 and e == 0) else f"a[{d}:{d+3}]"
                    A(f"v_mfma_f32_16x16x32_bf16 a[{d}:{d+3}], {p4(greg(e, s1))}, {p4(b)}, {cin}")
                    mi += 1
                    if s1 == 0: topup(1)
                    if pending and mi >= 3:
                        for _ in range(per):
                            if pending: pending.pop(0)()
                free.append(b)
                k += 1
        while pending: pending.pop(0)()
    A("s_nop 7"); A("s_nop 1")
    for op in combine_ops(7): op()
    A("s_mov_b64 exec, 1")
    A("ds_add_u32 v9, v10")
    A("s_mov_b64 exec, -1")
    stamp(8)
    tl(8, 7, 0)

def lds_spin(addr_off, target, va, vb, sleep=1):
    T = S_T
    L = A.newlabel("L_ls")
    A(f"v_mov_b32 v{va}, {L_MC}")
    A(f"s_mov_b32 s{T+1}, 0")
    A.label(L)
    A(f"ds_read_b32 v{vb}, v{va} offset:{addr_off}")
    A("s_waitcnt lgkmcnt(0)")
    A(f"v_readfirstlane_b32 s{T}, v{vb}")
    A(f"s_add_u32 s{T+1}, s{T+1}, 1")
    A(f"s_cmp_ge_u32 s{T+1}, {SPIN_MAX*4}")
    A(f"s_cbranch_scc1 {L}_d")
    A(f"s_cmp_ge_u32 s{T}, {target}")
    A(f"s_cbranch_scc1 {L}_d")
    if sleep: A(f"s_sleep {sleep}")
    A(f"s_branch {L}")
    A.label(L + "_d")

def conv_helper_prep():
    T = S_T
    if "gupf" in OPTS:
        R0 = int(os.environ.get("PFROW", "288")); NR = (576 - R0) // 18
        assert NR % 4 == 0
        RW = NR // 4
        A(f"s_and_b32 s{T+1}, s{S_WG}, 7")
        A(f"s_mul_i32 s{T+1}, s{T+1}, 1152")
        A(f"s_lshr_b32 s{T+2}, s{S_WG}, 3")
        A(f"s_mul_i32 s{T+2}, s{T+2}, {NR}")
        A(f"s_mul_i32 s{T+3}, s72, {RW}")
        A(f"s_add_u32 s{T+2}, s{T+2}, s{T+3}")
        A(f"s_add_u32 s{T+2}, s{T+2}, {R0}")
        A(f"s_mul_i32 s{T+2}, s{T+2}, 9216")
        A(f"s_add_u32 s{T+1}, s{T+1}, s{T+2}")
        A("v_lshlrev_b32 v10, 4, v0")
        A(f"v_add_u32 v10, s{T+1}, v10")
        A("v_lshrrev_b32 v11, 3, v0")
        A("v_mul_u32_u24 v11, 9216, v11")
        A("v_and_b32 v12, 7, v0")
        A("v_lshl_add_u32 v11, v12, 4, v11")
        A(f"v_add_u32 v11, s{T+1}, v11")
        A("v_add_u32 v11, 1024, v11")
        ar = 16
        for base in (S_WGT, S_WUP):
            A("v_mov_b32 v13, v10")
            for r in range(RW):
                A(f"global_load_dwordx4 a[{ar}:{ar+3}], v13, {sp(base)}"); ar += 4
                if r < RW - 1: A("v_add_u32 v13, 9216, v13")
            nl = 8*RW
            if nl < 64:
                A(f"s_mov_b32 exec_lo, {hex(min(nl, 32) and ((1 << min(nl, 32)) - 1))}")
                A(f"s_mov_b32 exec_hi, {hex((1 << (nl - 32)) - 1) if nl > 32 else '0'}")
            A(f"global_load_dwordx4 a[{ar}:{ar+3}], v11, {sp(base)}"); ar += 4
            A("s_mov_b64 exec, -1")
        if "dpf" in OPTS:
            A(f"s_and_b32 s{T+1}, s{S_WG}, 7")
            A(f"s_mul_i32 s{T+1}, s{T+1}, {576*1152}")
            A(f"s_lshr_b32 s{T+2}, s{S_WG}, 3")
            A(f"s_mul_i32 s{T+2}, s{T+2}, 36864")
            A(f"s_add_u32 s{T+1}, s{T+1}, s{T+2}")
            A(f"s_mul_i32 s{T+2}, s72, 9216")
            A(f"s_add_u32 s{T+1}, s{T+1}, s{T+2}")
            A("v_lshlrev_b32 v19, 4, v0")
            A(f"v_add_u32 v19, s{T+1}, v19")
            DPF = []
            for i in range(9):
                DPF.append(f"global_load_dwordx4 a[{ar}:{ar+3}], v18, {sp(S_WD)} offset:{1024*(i%4)}"); ar += 4
            assert ar <= 124, ar
            global DPF_CODE
            DPF_CODE = DPF
    srd(SRD_Q, S_Q, 2359296)
    A(f"s_mul_i32 s{T+4}, s72, {4*9216}")
    A(f"s_mul_i32 s{T+6}, s72, {4*TBLK}")
    A(f"s_add_u32 s{T+6}, s{T+6}, {L_TQ}")
    for i in range(4):
        dma(3, SRD_Q, f"s{T+4}", f"s{T+6}")
        A(f"s_add_u32 s{T+4}, s{T+4}, 9216")
        A(f"s_add_u32 s{T+6}, s{T+6}, {TBLK}")
    L4 = A.newlabel("L_h4"); L5 = A.newlabel("L_h5"); Le = A.newlabel("L_he")
    A(f"s_cmp_eq_u32 s{S_WAVE}, 4")
    A(f"s_cbranch_scc1 {L4}")
    A(f"s_cmp_eq_u32 s{S_WAVE}, 5")
    A(f"s_cbranch_scc1 {L5}")
    A(f"s_branch {Le}")
    A.label(L4)
    A(f"s_lshl_b32 s{T+1}, s77, 10")
    A("v_lshlrev_b32 v10, 4, v0")
    A(f"v_add_u32 v11, s{T+1}, v10")
    add64(T+2, S_WS, WS_SG)
    tagcheck_loop(lambda: A(f"global_load_dwordx4 {p4(12)}, v11, {sp(T+2)} sc1"), [13, 15], 16, 17, sleep=4)
    A("v_lshlrev_b32 v20, 16, v12"); A(f"v_and_b32 v21, s{S_MASK}, v12")
    A("v_lshlrev_b32 v22, 16, v14"); A(f"v_and_b32 v23, s{S_MASK}, v14")
    A("v_rcp_f32 v21, v21"); A("v_rcp_f32 v23, v23")
    A(f"v_add_u32 v10, {L_ST}, v10")
    A("s_nop 0")
    A(f"ds_write_b128 v10, {p4(20)}")
    A(f"s_branch {Le}")
    A.label(L5)
    A("v_and_b32 v10, 7, v0")
    A("v_lshlrev_b32 v11, 3, v10")
    add64(T+2, S_WS, WS_SEL)
    tagcheck_loop(lambda: A(f"global_load_dwordx2 v[12:13], v11, {sp(T+2)} sc1"), [13], 16, 17, sleep=4)
    A("v_and_b32 v12, 0x7ff, v12")
    A(f"s_lshl_b32 s{T+1}, s77, 7")
    A(f"v_subrev_u32 v12, s{T+1}, v12")
    A("v_cmp_gt_u32 vcc, 128, v12")
    A("v_or_b32 v13, 0x80, v10")
    A(f"v_add_u32 v12, {L_SELT}, v12")
    A("s_and_b32 vcc_lo, vcc_lo, 0xff")
    A("s_mov_b32 vcc_hi, 0")
    A("s_mov_b64 exec, vcc")
    Lk = A.newlabel("L_nsel")
    A(f"s_cbranch_execz {Lk}")
    A("ds_write_b8 v12, v13")
    A.label(Lk)
    A("s_mov_b64 exec, -1")
    A.label(Le)
    A("s_waitcnt vmcnt(0) lgkmcnt(0)")
    A(f"v_mov_b32 v10, {L_MC}")
    A("v_mov_b32 v11, 1")
    A("s_mov_b64 exec, 1")
    A("ds_add_u32 v10, v11 offset:4")
    A("s_mov_b64 exec, -1")
    stamp(5)
    if "dpf" in OPTS:
        for i, ins in enumerate(DPF_CODE):
            if i % 4 == 0: A(f"v_add_u32 v18, {4096*(i//4)}, v19")
            A(ins)
    lds_spin(0, 4, 10, 11, sleep=2)
    stamp(6)

def conv_epilogue():
    T = S_T
    A("; ---- epilogue ----")
    lds_spin(4, 4, 10, 11, sleep=1)
    A("v_and_b32 v2, 7, v0"); A("v_lshrrev_b32 v1, 3, v0")
    A(f"s_and_b32 s{T+1}, s{S_WAVE}, 1"); A(f"s_lshl_b32 s{T+1}, s{T+1}, 3")
    A(f"v_add_u32 v6, s{T+1}, v2")
    A(f"s_lshr_b32 s{T+2}, s{S_WAVE}, 1"); A(f"s_lshl_b32 s{T+2}, s{T+2}, 3")
    A(f"v_add_u32 v7, s{T+2}, v1")
    A(f"s_lshl_b32 s{T+1}, s76, 19")
    A(f"s_lshl_b32 s{T+2}, s77, 9")
    A(f"s_add_u32 s{T+1}, s{T+1}, s{T+2}")
    A("v_lshlrev_b32 v8, 14, v7")
    A("v_lshl_add_u32 v8, v6, 5, v8")
    A(f"v_add_u32 v8, s{T+1}, v8")
    A("v_add_u32 v9, 8192, v8")
    add64(62, S_WS, WS_YG)
    A(f"v_mul_u32_u24 v10, {TBLK}, v6")
    A("v_lshl_add_u32 v10, v7, 2, v10")
    A(f"v_add_u32 v11, {L_TQ}, v10")
    XR = 16
    for i in range(8): A(f"ds_read_b32 v{XR+i}, v11 offset:{128*i}")
    A(f"s_lshl_b32 s{T+1}, s{S_WAVE}, 11")
    A("v_lshlrev_b32 v12, 5, v0")
    A(f"v_add_u32 v12, s{T+1}, v12")
    A(f"v_add_u32 v12, {L_KVL}, v12")
    KV = 24
    A(f"ds_read_b128 {p4(KV)}, v12")
    A(f"ds_read_b128 {p4(KV+4)}, v12 offset:16")
    A("v_lshlrev_b32 v12, 6, v6")
    A(f"v_add_u32 v12, {L_ST}, v12")
    SR = 32
    for i in range(4): A(f"ds_read_b128 {p4(SR+4*i)}, v12 offset:{16*i}")
    A("v_lshlrev_b32 v12, 3, v6")
    A(f"v_add_u32 v12, {L_SELT}, v12")
    A("ds_read_b64 v[48:49], v12")
    A(f"s_lshl_b32 s{T+1}, s76, 7")
    A("v_lshlrev_b32 v13, 2, v7")
    A(f"v_add_u32 v13, s{T+1}, v13")
    A(f"global_load_dword v50, v13, {sp(S_D)}")
    YR = 64
    def ld():
        A(f"global_load_dwordx4 {p4(YR)}, v8, {sp(62)} sc1")
        A(f"global_load_dwordx4 {p4(YR+4)}, v8, {sp(62)} offset:16 sc1")
        A(f"global_load_dwordx4 {p4(YR+8)}, v9, {sp(62)} sc1")
        A(f"global_load_dwordx4 {p4(YR+12)}, v9, {sp(62)} offset:16 sc1")
    A("s_waitcnt lgkmcnt(0)")
    XN, SS = 80, 96
    for i in range(8):
        m, rs = SR+2*i, SR+2*i+1
        A(f"v_lshlrev_b32 v{SS+2*i}, 16, v{XR+i}"); A(f"v_and_b32 v{SS+2*i+1}, s{S_MASK}, v{XR+i}")
        A(f"v_sub_f32 v{XN+2*i}, v{SS+2*i}, v{m}"); A(f"v_sub_f32 v{XN+2*i+1}, v{SS+2*i+1}, v{m}")
        A(f"v_mul_f32 v{XN+2*i}, v{XN+2*i}, v{rs}"); A(f"v_mul_f32 v{XN+2*i+1}, v{XN+2*i+1}, v{rs}")
        A(f"v_pk_add_f32 {p2(SS+2*i)}, {p2(SS+2*i)}, {p2(XN+2*i)}")
    stamp(7)
    tagcheck_loop(ld, [YR+2*j+1 for j in range(8)], 14, 52, sleep=1)
    A(f"v_lshlrev_b32 v52, 16, v50"); A(f"v_and_b32 v53, s{S_MASK}, v50")
    O = 112
    for i in range(8):
        for c in range(2):
            yr = YR + 8*c + 2*(i >> 1); kr = KV + 4*c + (i >> 1)
            t0, t1 = 54 + 2*c, 55 + 2*c
            if i & 1:
                A(f"v_and_b32 v{t0}, s{S_MASK}, v{yr}"); A(f"v_and_b32 v{t1}, s{S_MASK}, v{kr}")
            else:
                A(f"v_lshlrev_b32 v{t0}, 16, v{yr}"); A(f"v_lshlrev_b32 v{t1}, 16, v{kr}")
            A(f"v_fma_f32 v{t0}, v{t1}, v{52+c}, v{t0}")
            A(f"v_fma_f32 v{SS+2*i+c}, v{XN+2*i+c}, v{t0}, v{SS+2*i+c}")
        A(f"v_cvt_pk_bf16_f32 v{O+i}, v{SS+2*i}, v{SS+2*i+1}")
    A(f"v_add_u32 v11, {L_OT}, v10")
    for i in range(8): A(f"ds_write_b32 v11, v{O+i} offset:{128*i}")
    Lx = A.newlabel("L_nt1")
    A("v_or_b32 v12, v48, v49")
    A("v_cmp_ne_u32 vcc, 0, v12")
    A("s_nop 3")
    A("s_cmp_eq_u64 vcc, 0")
    A(f"s_cbranch_scc1 {Lx}")
    add64(64, S_WS, WS_T1G)
    A(f"s_lshl_b32 s{T+1}, s76, 6")
    A("v_lshlrev_b32 v13, 1, v7")
    A(f"v_add_u32 v13, s{T+1}, v13")
    for i in range(8):
        Li = A.newlabel("L_t1i")
        A(f"v_bfe_u32 v12, v{48 + (i >> 2)}, {8*(i & 3)}, 8")
        A("v_cmp_lt_u32 vcc, 0x7f, v12")
        A(f"s_and_saveexec_b64 {sp(T+12)}, vcc")
        A(f"s_cbranch_execz {Li}")
        A("v_and_b32 v12, 7, v12")
        A("v_mul_u32_u24 v12, 576, v12")
        A("v_add_u32 v12, v12, v13")
        A("v_lshlrev_b32 v12, 3, v12")
        A(f"v_sub_f32 v56, v{SS+2*i}, v{XN+2*i}")
        A(f"v_mov_b32 v57, s{S_NONCE}")
        A(f"v_sub_f32 v58, v{SS+2*i+1}, v{XN+2*i+1}")
        A(f"v_mov_b32 v59, s{S_NONCE}")
        A(f"global_store_dwordx4 v12, {p4(56)}, {sp(64)} sc1")
        A.label(Li)
        A(f"s_mov_b64 exec, {sp(T+12)}")
    A.label(Lx)
    A("s_waitcnt lgkmcnt(0)")
    A("s_barrier")
    A(f"s_lshl_b32 s{T+1}, s{S_WAVE}, 3")
    A(f"v_add_u32 v1, s{T+1}, v1")
    A("v_lshrrev_b32 v3, 3, v1")
    A(f"v_mul_u32_u24 v3, {TBLK}, v3")
    A("v_and_b32 v4, 7, v1")
    A("v_lshl_add_u32 v3, v4, 7, v3")
    A("v_lshl_add_u32 v3, v2, 4, v3")
    A(f"v_add_u32 v3, {L_OT}, v3")
    A(f"ds_read_b128 {p4(16)}, v3")
    A(f"ds_read_b128 {p4(20)}, v3 offset:{8*TBLK}")
    A(f"v_add_u32 v4, {L_SELT}, v1")
    A("ds_read_u8 v24, v4")
    A("ds_read_u8 v25, v4 offset:64")
    srd(SRD_O, S_OUT, 2359296)
    A(f"s_mul_i32 s{T+1}, s77, {128*1152}")
    A(f"s_lshl_b32 s{T+2}, s76, 7")
    A(f"s_add_u32 s{T+1}, s{T+1}, s{T+2}")
    A("v_mul_u32_u24 v5, 1152, v1")
    A("v_lshl_add_u32 v5, v2, 4, v5")
    A(f"v_add_u32 v5, s{T+1}, v5")
    A(f"v_add_u32 v6, {64*1152}, v5")
    A("s_waitcnt lgkmcnt(0)")
    for h, (va, vs, vd) in enumerate(((5, 24, 16), (6, 25, 20))):
        A(f"v_lshlrev_b32 v{vs}, 24, v{vs}")
        A(f"v_and_b32 v{vs}, 0x80000000, v{vs}")
        A(f"v_or_b32 v{va}, v{va}, v{vs}")
        A(f"buffer_store_dwordx4 {p4(vd)}, v{va}, s[{SRD_O}:{SRD_O+3}], 0 offen")
    stamp(9)
    tl(9, 7, 0)

def conv_wg():
    conv_tile()
    A(f"s_cmp_ge_u32 s{S_WAVE}, 4")
    A("s_cbranch_scc1 L_helper")
    conv_mfma_wave()
    A("s_branch L_epi")
    A.label("L_helper")
    conv_helper_prep()
    A.label("L_epi")
    conv_epilogue()
    A("s_branch L_fin")

M_WG = 0
M_WU = 73728
M_XS = 147456
XS_RS = 1168
M_H = M_XS + 8*XS_RS
H_RS = 144
M_GU = M_H + 8*H_RS
M_RED = M_GU
M_MISC = M_GU + 4096
M_END = M_MISC + 160
M_LIST = 0
S_DUMP = 16384

def moe_dma():
    T = S_T
    srd(SRD_K, S_WGT, 5308416)
    srd(SRD_V, S_WUP, 5308416)
    A("v_lshrrev_b32 v1, 3, v0")
    A("v_and_b32 v2, 7, v0")
    A("v_bfe_u32 v3, v0, 4, 1")
    A(f"s_and_b32 s{T+1}, s{S_WAVE}, 1")
    A(f"s_lshl_b32 s{T+1}, s{T+1}, 1")
    A(f"v_add_u32 v3, s{T+1}, v3")
    A("v_lshlrev_b32 v3, 1, v3")
    A("v_xor_b32 v2, v2, v3")
    A("v_mul_u32_u24 v1, 9216, v1")
    A("v_lshl_add_u32 v1, v2, 4, v1")
    A(f"s_lshl_b32 s{T+1}, s70, 7")
    A(f"v_add_u32 v1, s{T+1}, v1")
    A(f"s_mul_i32 s{T+3}, s{S_WAVE}, 73728")
    A(f"s_lshl_b32 s{T+4}, s{S_WAVE}, 10")
    A(f"s_mov_b32 s{T+5}, 0")
    L = A.newlabel("L_dma")
    A.label(L)
    A(f"s_add_u32 m0, s{T+4}, {M_WG}")
    A("s_nop 0")
    A(f"buffer_load_dwordx4 v1, s[{SRD_K}:{SRD_K+3}], s{T+3} offen {NT} lds")
    A(f"s_add_u32 m0, s{T+4}, {M_WU}")
    A(f"s_add_u32 s{T+5}, s{T+5}, 1")
    A(f"buffer_load_dwordx4 v1, s[{SRD_V}:{SRD_V+3}], s{T+3} offen {NT} lds")
    A(f"s_add_u32 s{T+3}, s{T+3}, {8*73728}")
    A(f"s_add_u32 s{T+4}, s{T+4}, {8*1024}")
    A(f"s_cmp_lt_u32 s{T+5}, 9")
    A(f"s_cbranch_scc1 {L}")

def moe_sel_wait():
    T = S_T
    A(f"s_lshl_b32 s{T+1}, s{S_WAVE}, 3")
    A(f"s_add_u32 s{T+1}, s{T+1}, {WS_SEL}")
    A(f"v_mov_b32 v3, s{T+1}")
    A("v_mov_b32 v4, 0")
    L = A.newlabel("L_sw"); Ld = A.newlabel("L_swd")
    A(f"s_mov_b32 s{T}, 0")
    A.label(L)
    A(f"global_load_dwordx2 v[16:17], v3, {sp(S_WS)} sc1")
    A(f"global_load_dword v30, v4, {sp(S_DBG)} sc1")
    A("s_waitcnt vmcnt(0)")
    A(f"v_readfirstlane_b32 s{S_NONCE}, v30")
    A(f"v_readfirstlane_b32 s{T+2}, v17")
    A(f"s_add_u32 s{T}, s{T}, 1")
    A(f"s_cmp_ge_u32 s{T}, {SPIN_MAX}")
    A(f"s_cbranch_scc1 {Ld}")
    A(f"s_cmp_eq_u32 s{S_NONCE}, 0")
    A(f"s_cbranch_scc1 {L}_s")
    A(f"s_cmp_eq_u32 s{T+2}, s{S_NONCE}")
    A(f"s_cbranch_scc1 {Ld}")
    A.label(L + "_s")
    A("s_sleep 3")
    A(f"s_branch {L}")
    A.label(Ld)

def moe_row_loads():
    T = S_T
    A("v_and_b32 v18, 0x7ff, v16")
    A("v_mul_u32_u24 v20, 1152, v18")
    A("v_and_b32 v21, 31, v0")
    A("v_mul_u32_u24 v21, 36, v21")
    A("v_add_u32 v20, v20, v21")
    A(f"global_load_dwordx4 {p4(24)}, v20, {sp(S_Q)}")
    A(f"global_load_dwordx4 {p4(28)}, v20, {sp(S_Q)} offset:16")
    A(f"global_load_dword v32, v20, {sp(S_Q)} offset:32")
    A("v_lshlrev_b32 v22, 3, v18")
    A(f"v_add_u32 v22, {WS_SG}, v22")
    A(f"global_load_dwordx2 v[40:41], v22, {sp(S_WS)} sc1")

def moe_xs_compute():
    T = S_T
    L = A.newlabel("L_sg"); Ld = A.newlabel("L_sgd")
    A(f"s_mov_b32 s{T}, 0")
    A.label(L)
    A(f"v_readfirstlane_b32 s{T+2}, v41")
    A(f"s_add_u32 s{T}, s{T}, 1")
    A(f"s_cmp_eq_u32 s{T+2}, s{S_NONCE}")
    A(f"s_cbranch_scc1 {Ld}")
    A(f"s_cmp_ge_u32 s{T}, {SPIN_MAX}")
    A(f"s_cbranch_scc1 {Ld}")
    A(f"global_load_dwordx2 v[40:41], v22, {sp(S_WS)} sc1")
    A("s_waitcnt vmcnt(0)")
    A(f"s_branch {L}")
    A.label(Ld)
    A(f"v_lshlrev_b32 v44, 16, v40")
    A(f"v_and_b32 v45, s{S_MASK}, v40")
    A("v_rcp_f32 v46, v45")
    A(f"v_and_b32 v52, s{S_MASK}, v16")
    A("v_fma_f32 v47, -v45, v46, 1.0")
    A("v_fma_f32 v46, v47, v46, v46")
    A(f"v_mul_f32 v52, 0x{f32bits(-1.4426950408889634):08x}, v52")
    A("v_exp_f32 v52, v52")
    for i in range(9):
        r = 24 + i
        t = 48 + 2*(i & 1)
        A(f"v_lshlrev_b32 v{t}, 16, v{r}")
        A(f"v_and_b32 v{t+1}, s{S_MASK}, v{r}")
        A(f"v_pk_add_f32 {p2(t)}, {p2(t)}, v[44:45] op_sel_hi:[1,0] neg_lo:[0,1] neg_hi:[0,1]")
        rnd(t); rnd(t+1)
        A(f"v_pk_mul_f32 {p2(t)}, {p2(t)}, v[46:47] op_sel_hi:[1,0]")
        A(f"v_cvt_pk_bf16_f32 v{r}, v{t}, v{t+1}")
    A("v_add_f32 v52, 1.0, v52")
    A("v_rcp_f32 v52, v52")
    A(f"s_mul_i32 s{T+4}, s{S_WAVE}, {XS_RS}")
    A(f"s_add_u32 s{T+4}, s{T+4}, {M_XS}")
    A("v_add_u32 v21, s%d, v21" % (T+4))
    rnd(52)
    A("s_mov_b64 exec, 0xffffffff")
    A("ds_write2_b32 v21, v24, v25 offset0:0 offset1:1")
    A("ds_write2_b32 v21, v26, v27 offset0:2 offset1:3")
    A("ds_write2_b32 v21, v28, v29 offset0:4 offset1:5")
    A("ds_write2_b32 v21, v30, v31 offset0:6 offset1:7")
    A("ds_write_b32 v21, v32 offset:32")
    A(f"s_lshl_b32 s{T+4}, s{S_WAVE}, 2")
    A(f"s_add_u32 s{T+4}, s{T+4}, {M_MISC+32}")
    A(f"v_mov_b32 v53, s{T+4}")
    A("s_mov_b64 exec, 1")
    A("ds_write_b32 v53, v16")
    A("ds_write_b32 v53, v52 offset:32")
    A("s_mov_b64 exec, -1")
    A(f"s_lshl_b32 s{T+1}, s{S_WAVE}, 6")
    A(f"v_add_u32 v1, s{T+1}, v0")

DRA, DRB = 64, 96
def moe_down_loads():
    T = S_T
    A("v_lshrrev_b32 v6, 4, v0")
    A("v_mul_u32_u24 v5, 9216, v6")
    A("v_and_b32 v6, 15, v0")
    A("v_lshl_add_u32 v5, v6, 3, v5")
    A(f"s_mul_i32 s{T+1}, s70, 73728")
    A(f"s_lshl_b32 s{T+2}, s{S_WAVE}, 7")
    A(f"s_add_u32 s{T+1}, s{T+1}, s{T+2}")
    A(f"v_add_u32 v5, s{T+1}, v5")
    srd(SRD_Q, S_WD, 5308416)
    def panel(R, extra):
        for ks in range(2):
            for jj in range(8):
                so = 36864*ks + 4608*(jj//4) + extra
                A(f"s_mov_b32 s{T+3}, {so}")
                r = R + 16*ks + 2*jj
                A(f"buffer_load_dwordx2 {p2(r)}, v5, s[{SRD_Q}:{SRD_Q+3}], s{T+3} offen offset:{1152*(jj%4)} {NT}")
    panel(DRA, 0)
    L = A.newlabel("L_np8")
    A(f"s_cmp_lg_u32 s{S_WAVE}, 0")
    A(f"s_cbranch_scc1 {L}")
    panel(DRB, 1024)
    A.label(L)

def down_perm(R, F):
    for ks in range(2):
        for e in range(4):
            sel = S_SELLO if (e & 1) == 0 else S_SELHI
            for q in range(4):
                A(f"v_perm_b32 v{F+16*ks+4*e+q}, v{R+16*ks+2*(2*q+1)+e//2}, v{R+16*ks+2*(2*q)+e//2}, s{sel}")

def moe_gateup():
    T = S_T
    A(f"s_lshr_b32 s{T+1}, s{S_WAVE}, 2")
    A(f"s_and_b32 s{T+2}, s{S_WAVE}, 3")
    A("v_lshrrev_b32 v6, 4, v0")
    A("v_bfe_u32 v7, v0, 2, 2")
    A("v_and_b32 v8, 3, v0")
    A("v_lshrrev_b32 v9, 1, v7")
    A("v_and_b32 v10, 1, v6")
    A("v_lshl_add_u32 v9, v10, 1, v9")
    A("v_lshlrev_b32 v9, 1, v9")
    A("v_lshrrev_b32 v10, 1, v8")
    A(f"s_lshl_b32 s{T+3}, s{T+2}, 1")
    A(f"v_add_u32 v10, s{T+3}, v10")
    A("v_xor_b32 v10, v10, v9")
    A("v_lshlrev_b32 v2, 10, v6")
    A("v_lshl_add_u32 v2, v7, 7, v2")
    A("v_lshl_add_u32 v2, v10, 4, v2")
    A("v_and_b32 v8, 1, v8")
    A("v_lshl_add_u32 v2, v8, 3, v2")
    A(f"s_mul_i32 s{T+3}, s{T+1}, {M_WU}")
    A(f"v_add_u32 v2, s{T+3}, v2")
    A(f"v_add_u32 v5, {4096*9}, v2")
    A("v_and_b32 v3, 7, v0")
    A(f"v_mul_u32_u24 v3, {XS_RS}, v3")
    A("v_lshl_add_u32 v3, v6, 4, v3")
    A(f"v_add_u32 v3, {M_XS}, v3")
    def rd(t):
        b = 8*(t % 8)
        a, o = (2, 4096*t) if t < 9 else (5, 4096*(t-9))
        A(f"ds_read_b64_tr_b16 a[{b}:{b+1}], v{a} offset:{o}")
        A(f"ds_read_b64_tr_b16 a[{b+2}:{b+3}], v{a} offset:{o+512}")
        A(f"ds_read_b128 a[{b+4}:{b+7}], v3 offset:{64*t}")
    for t in range(5): rd(t)
    for t in range(18):
        rem = min(17, t+4) - t
        A(f"s_waitcnt lgkmcnt({3*rem})")
        b = 8*(t % 8)
        cin = "0" if t == 0 else "v[8:11]"
        A(f"v_mfma_f32_16x16x32_bf16 v[8:11], a[{b}:{b+3}], a[{b+4}:{b+7}], {cin}")
        if t + 5 < 18: rd(t+5)
    A("v_and_b32 v3, 15, v0")
    A("v_lshlrev_b32 v4, 8, v3")
    A("v_lshl_add_u32 v4, v6, 4, v4")
    A(f"s_lshl_b32 s{T+3}, s{T+1}, 11")
    A(f"s_lshl_b32 s{T+4}, s{T+2}, 6")
    A(f"s_add_u32 s{T+3}, s{T+3}, s{T+4}")
    A(f"s_add_u32 s{T+3}, s{T+3}, {M_GU}")
    A(f"v_add_u32 v4, s{T+3}, v4")
    A("v_cmp_gt_u32 vcc, 8, v3")
    A(f"s_and_saveexec_b64 {sp(T+12)}, vcc")
    A("s_nop 2")
    A(f"ds_write_b128 v4, {p4(8)}")
    A(f"s_mov_b64 exec, {sp(T+12)}")

def moe_h_and_down_stage():
    T = S_T
    A("v_lshlrev_b32 v2, 2, v1")
    A(f"v_add_u32 v2, {M_GU}, v2")
    A("ds_read_b32 v8, v2")
    A("ds_read_b32 v9, v2 offset:2048")
    A("v_lshrrev_b32 v3, 6, v1")
    A(f"v_mul_u32_u24 v3, {H_RS}, v3")
    A("v_lshl_add_u32 v3, v0, 1, v3")
    A(f"v_add_u32 v3, {M_H}, v3")
    A("s_waitcnt lgkmcnt(0)")
    rnd(8); rnd(9)
    A(f"v_mul_f32 v10, 0x{f32bits(-1.4426950408889634):08x}, v8")
    A("v_exp_f32 v10, v10")
    A("s_nop 0")
    A("v_add_f32 v10, 1.0, v10")
    A("v_rcp_f32 v10, v10")
    A("s_nop 0")
    A("v_mul_f32 v10, v8, v10")
    rnd(10)
    A("v_mul_f32 v10, v10, v9")
    A("v_cvt_pk_bf16_f32 v10, v10, v10")
    A("ds_write_b16 v3, v10")
    A("s_waitcnt vmcnt(0)")
    down_perm(DRA, 32)
    L = A.newlabel("L_np8b")
    A(f"s_cmp_lg_u32 s{S_WAVE}, 0")
    A(f"s_cbranch_scc1 {L}")
    down_perm(DRB, 64)
    A.label(L)

def moe_down():
    T = S_T
    A("v_and_b32 v2, 7, v0")
    A(f"v_mul_u32_u24 v2, {H_RS}, v2")
    A("v_lshrrev_b32 v6, 4, v0")
    A("v_lshl_add_u32 v2, v6, 4, v2")
    A(f"v_add_u32 v2, {M_H}, v2")
    A(f"ds_read_b128 {p4(16)}, v2")
    A(f"ds_read_b128 {p4(20)}, v2 offset:64")
    A("v_and_b32 v4, 15, v0")
    A("v_lshlrev_b32 v5, 4, v4")
    A("v_lshl_add_u32 v5, v6, 9, v5")
    A(f"s_mul_i32 s{T+1}, s70, 18432")
    A(f"s_lshl_b32 s{T+2}, s{S_WAVE}, 11")
    A(f"s_add_u32 s{T+1}, s{T+1}, s{T+2}")
    A(f"v_add_u32 v5, s{T+1}, v5")
    add64(T+2, S_WS, WS_PART)
    A(f"s_mov_b32 s{T+4}, 0x07060503"); A(f"s_mov_b32 s{T+5}, 0x06050302"); A(f"s_mov_b32 s{T+6}, 0x05030201")
    A("v_cmp_gt_u32 vcc, 8, v4")
    A(f"s_mov_b64 {sp(T+12)}, vcc")
    A("s_waitcnt lgkmcnt(0)")
    def panel(F, ACC, G, vaddr):
        for e in range(4):
            A(f"v_mfma_f32_16x16x32_bf16 {p4(ACC+4*e)}, {p4(F+4*e)}, {p4(16)}, 0")
        for e in range(4):
            A(f"v_mfma_f32_16x16x32_bf16 {p4(ACC+4*e)}, {p4(F+16+4*e)}, {p4(20)}, {p4(ACC+4*e)}")
        A("s_nop 7"); A("s_nop 1")
        for r in range(4):
            g = G + 4*r
            a, b, c, d = ACC+r, ACC+4+r, ACC+8+r, ACC+12+r
            A(f"v_perm_b32 v{g}, v{a}, v{b}, s{T+4}")
            A(f"v_perm_b32 v{g+1}, v{b}, v{c}, s{T+5}")
            A(f"v_perm_b32 v{g+2}, v{c}, v{d}, s{T+6}")
            A(f"v_mov_b32 v{g+3}, s{S_NONCE}")
        A(f"s_mov_b64 exec, {sp(T+12)}")
        for r in range(4):
            A(f"global_store_dwordx4 v{vaddr}, {p4(G+4*r)}, {sp(T+2)} offset:{128*r} sc1")
        A("s_mov_b64 exec, -1")
    panel(32, 96, 112, 5)
    L = A.newlabel("L_np8c")
    A(f"s_cmp_lg_u32 s{S_WAVE}, 0")
    A(f"s_cbranch_scc1 {L}")
    A(f"v_add_u32 v7, {8*2048}, v5")
    panel(64, 96, 32, 7)
    A.label(L)

def moe_reduce():
    T = S_T
    A("v_lshrrev_b32 v6, 4, v0")
    A(f"s_mul_i32 s{T+1}, s{S_WAVE}, 9")
    A(f"v_add_u32 v1, s{T+1}, v6")
    A(f"v_mul_u32_u24 v1, 18432, v1")
    A("v_and_b32 v2, 15, v0")
    A("v_lshl_add_u32 v1, v2, 4, v1")
    A(f"s_lshl_b32 s{T+1}, s70, 8")
    A(f"v_add_u32 v1, s{T+1}, v1")
    A(f"v_add_u32 v3, {4*18432}, v1")
    A(f"v_mul_u32_u24 v4, 18432, v6")
    A(f"v_sub_u32 v4, v1, v4")
    A(f"v_add_u32 v4, {8*18432}, v4")
    A("v_lshrrev_b32 v50, 2, v0")
    A("v_and_b32 v51, 3, v0")
    A(f"s_lshl_b32 s{T+1}, s70, 4")
    A(f"v_add_u32 v52, s{T+1}, v50")
    A("v_and_b32 v53, 7, v52")
    A("v_lshrrev_b32 v54, 3, v52")
    A("v_lshl_add_u32 v54, v54, 2, v51")
    A("v_mul_u32_u24 v55, 576, v53")
    A("v_add_u32 v55, v55, v54")
    A("v_lshlrev_b32 v55, 3, v55")
    A(f"v_add_u32 v55, {WS_T1G}, v55")
    add64(T+2, S_WS, WS_PART)
    def ld():
        A(f"global_load_dwordx4 {p4(16)}, v1, {sp(T+2)} sc1")
        A(f"global_load_dwordx4 {p4(20)}, v3, {sp(T+2)} sc1")
        A(f"global_load_dwordx4 {p4(24)}, v4, {sp(T+2)} sc1")
        A(f"global_load_dwordx2 v[28:29], v55, {sp(S_WS)} sc1")
    tagcheck_loop(ld, [19, 23, 27, 29], 10, 12, sleep=1)
    stamp(8)
    tl(14, 151, 0)
    A(f"s_mov_b32 s{T+4}, 0x0403020c"); A(f"s_mov_b32 s{T+5}, 0x0504030c"); A(f"s_mov_b32 s{T+6}, 0xffffff00")
    U = 32
    for i in range(3):
        g = 16 + 4*i; u = U + 4*i
        A(f"v_and_b32 v{u}, s{T+6}, v{g}")
        A(f"v_perm_b32 v{u+1}, v{g}, v{g+1}, s{T+4}")
        A(f"v_perm_b32 v{u+2}, v{g+1}, v{g+2}, s{T+5}")
        A(f"v_lshlrev_b32 v{u+3}, 8, v{g+2}")
    for r in range(4):
        A(f"v_add_f32 v{U+r}, v{U+r}, v{U+4+r}")
    for swap in ("v_permlane32_swap_b32", "v_permlane16_swap_b32"):
        for r in range(4): A(f"v_mov_b32 v{44+r}, v{U+r}")
        A("s_nop 1")
        for r in range(4): A(f"{swap} v{U+r}, v{44+r}")
        for r in range(4): A(f"v_add_f32 v{U+r}, v{U+r}, v{44+r}")
    for r in range(4):
        A(f"v_add_f32 v{U+r}, v{U+r}, v{U+8+r}")
    A(f"s_lshl_b32 s{T+1}, s{S_WAVE}, 8")
    A("v_lshlrev_b32 v5, 4, v2")
    A(f"v_add_u32 v5, s{T+1}, v5")
    A(f"v_add_u32 v5, {M_RED}, v5")
    A("s_mov_b64 exec, 0xffff")
    A(f"ds_write_b128 v5, {p4(U)}")
    A("s_mov_b64 exec, -1")
    A("s_waitcnt lgkmcnt(0)")
    A("s_barrier")
    L = A.newlabel("L_nofin")
    A(f"s_cmp_lg_u32 s{S_WAVE}, 0")
    A(f"s_cbranch_scc1 {L}")
    A("v_lshlrev_b32 v6, 4, v50")
    A("v_lshl_add_u32 v6, v51, 2, v6")
    A(f"v_add_u32 v6, {M_RED}, v6")
    for w in range(8): A(f"ds_read_b32 v{16+w}, v6 offset:{256*w}")
    A(f"v_mul_u32_u24 v7, {XS_RS}, v53")
    A("v_lshl_add_u32 v7, v54, 1, v7")
    A(f"v_add_u32 v7, {M_XS}, v7")
    A("ds_read_u16 v24, v7")
    A("v_lshlrev_b32 v8, 2, v53")
    A(f"v_add_u32 v8, {M_MISC}, v8")
    A("ds_read_b32 v25, v8 offset:32")
    A("ds_read_b32 v26, v8 offset:64")
    A("v_mov_b32 v5, v54")
    A("s_waitcnt lgkmcnt(0)")
    A("v_add_f32 v16, v16, v17"); A("v_add_f32 v18, v18, v19"); A("v_add_f32 v20, v20, v21"); A("v_add_f32 v22, v22, v23")
    A("v_add_f32 v16, v16, v18"); A("v_add_f32 v20, v20, v22"); A("v_add_f32 v16, v16, v20")
    rnd(16)
    A("v_mul_f32 v16, v16, v26")
    rnd(16)
    A("v_lshlrev_b32 v24, 16, v24")
    A("v_add_f32 v16, v24, v16")
    rnd(16)
    A("v_add_f32 v16, v28, v16")
    A("v_cvt_pk_bf16_f32 v16, v16, v16")
    A("v_and_b32 v25, 0x7ff, v25")
    A("v_mul_u32_u24 v25, 1152, v25")
    A("v_lshl_add_u32 v25, v5, 1, v25")
    A(f"global_store_short v25, v16, {sp(S_OUT)}")
    A.label(L)

def lds_init_list():
    T = S_T
    A(f"s_lshl_b32 s{T+1}, s{S_WAVE}, 10")
    A("v_lshlrev_b32 v110, 4, v0")
    A(f"v_add_u32 v111, s{T+1}, v110")
    A(f"v_add_u32 v111, {M_LIST}, v111")
    for i in range(4): A(f"v_mov_b32 v{112+i}, 0xff800000")
    A(f"ds_write_b128 v111, {p4(112)}")
    L0 = A.newlabel("L_ni")
    A(f"s_cmp_lg_u32 s{S_WAVE}, 0")
    A(f"s_cbranch_scc1 {L0}")
    A(f"v_add_u32 v111, {M_LIST+8192}, v110")
    A("s_mov_b64 exec, 0xf")
    A(f"ds_write_b128 v111, {p4(112)}")
    A("s_mov_b64 exec, -1")
    for i in range(4): A(f"v_mov_b32 v{116+i}, 0")
    A(f"v_add_u32 v111, {M_MISC}, v110")
    A("s_mov_b64 exec, 0x3ff")
    A(f"ds_write_b128 v111, {p4(116)}")
    A("s_mov_b64 exec, -1")
    A.label(L0)

def sel_top8():
    T = S_T
    A(f"s_lshl_b32 s{T+1}, s{S_WAVE}, 6")
    A(f"v_add_u32 v1, s{T+1}, v0")
    A("v_lshlrev_b32 v2, 5, v1")
    add64(T+2, S_WS, WS_RG)
    K = 16
    def ld():
        for i in range(2):
            A(f"global_load_dwordx4 {p4(K+4*i)}, v2, {sp(T+2)} offset:{16*i} sc1")
    tagcheck_loop(ld, [K+2*i+1 for i in range(4)], 10, 12, sleep=1)
    stamp(5)
    tl(10, 255, 0)
    keys = [K+2*i for i in range(4)]
    A(f"v_max3_f32 v40, v{keys[0]}, v{keys[1]}, v{keys[2]}")
    A(f"v_max_f32 v40, v40, v{keys[3]}")
    for sh in (8, 4, 2, 1):
        A("s_nop 1")
        A(f"v_max_f32_dpp v40, v40, v40 row_ror:{sh} row_mask:0xf bank_mask:0xf")
    A("s_nop 1")
    A(f"v_readlane_b32 s{T+4}, v40, 16")
    A(f"v_readlane_b32 s{T+5}, v40, 32")
    A(f"v_readlane_b32 s{T+6}, v40, 48")
    A("s_nop 1")
    A(f"v_max_f32 v40, s{T+4}, v40")
    A(f"v_max_f32 v40, s{T+5}, v40")
    A(f"v_max_f32 v40, s{T+6}, v40")
    A(f"s_lshl_b32 s{T+4}, s{S_WAVE}, 2")
    A(f"s_add_u32 s{T+4}, s{T+4}, {M_MISC+96}")
    A(f"v_mov_b32 v43, s{T+4}")
    A("s_mov_b64 exec, 1")
    A(f"ds_write_b32 v43, v40")
    A("s_mov_b64 exec, -1")
    A("s_waitcnt lgkmcnt(0)")
    A("s_barrier")
    A(f"v_mov_b32 v43, {M_MISC+96}")
    A(f"ds_read_b128 {p4(44)}, v43")
    A(f"ds_read_b128 {p4(48)}, v43 offset:16")
    A("s_waitcnt lgkmcnt(0)")
    A("v_min3_f32 v40, v44, v45, v46")
    A("v_min3_f32 v41, v47, v48, v49")
    A("v_min3_f32 v40, v40, v50, v51")
    A("v_min_f32 v40, v40, v41")
    A("v_mov_b32 v41, 0")
    for i in range(4):
        A(f"v_cmp_ge_f32 {sp(T+4+2*i)}, v{keys[i]}, v40")
    for q in range(4):
        A(f"v_addc_co_u32 v41, vcc, 0, v41, {sp(T+4+2*q)}")
    A(f"v_mov_b32 v43, {M_MISC}")
    A("v_cmp_lt_u32 vcc, 0, v41")
    A(f"s_and_saveexec_b64 {sp(T+12)}, vcc")
    A("ds_add_rtn_u32 v42, v43, v41")
    A(f"s_mov_b64 exec, {sp(T+12)}")
    A("s_waitcnt lgkmcnt(0)")
    A("v_lshlrev_b32 v42, 2, v42")
    A(f"v_add_u32 v42, {M_LIST}, v42")
    A(f"v_mov_b32 v43, {S_DUMP}")
    for i in range(4):
        A(f"v_cndmask_b32 v44, v43, v42, {sp(T+4+2*i)}")
        A(f"v_cndmask_b32 v45, 0, 4, {sp(T+4+2*i)}")
        A(f"ds_write_b32 v44, v{keys[i]}")
        A(f"v_add_u32 v42, v42, v45")
    A("s_waitcnt lgkmcnt(0)")
    A("s_barrier")
    A(f"v_mov_b32 v43, {M_MISC}")
    A("ds_read_b32 v44, v43")
    A("s_waitcnt lgkmcnt(0)")
    A(f"v_readfirstlane_b32 s{T+8}, v44")
    A(f"s_mov_b32 s{T+9}, 0")
    Lc = A.newlabel("L_chunk"); Lj = A.newlabel("L_j")
    A.label(Lc)
    A(f"v_add_u32 v44, s{T+9}, v0")
    A("v_lshlrev_b32 v44, 2, v44")
    A(f"v_add_u32 v44, {M_LIST}, v44")
    A("ds_read_b32 v46, v44")
    A("v_mov_b32 v47, 0")
    A(f"v_mov_b32 v45, {M_LIST}")
    A(f"s_mov_b32 s{T+10}, 0")
    A.label(Lj)
    A(f"ds_read_b128 {p4(48)}, v45")
    A(f"ds_read_b128 {p4(52)}, v45 offset:16")
    A("v_add_u32 v45, 32, v45")
    A(f"s_add_u32 s{T+10}, s{T+10}, 8")
    A("s_waitcnt lgkmcnt(1)")
    for q in range(4):
        A(f"v_cmp_gt_f32 {sp(T+2*q)}, v{48+q}, v46")
    for q in range(4):
        A(f"v_addc_co_u32 v47, vcc, 0, v47, {sp(T+2*q)}")
    A("s_waitcnt lgkmcnt(0)")
    for q in range(4):
        A(f"v_cmp_gt_f32 {sp(T+2*q)}, v{52+q}, v46")
    for q in range(4):
        A(f"v_addc_co_u32 v47, vcc, 0, v47, {sp(T+2*q)}")
    A(f"s_cmp_lt_u32 s{T+10}, s{T+8}")
    A(f"s_cbranch_scc1 {Lj}")
    A(f"v_add_u32 v44, s{T+9}, v0")
    A(f"v_cmp_gt_u32 vcc, s{T+8}, v44")
    A(f"v_cmp_gt_u32 {sp(T)}, 8, v47")
    A("s_nop 1")
    A(f"s_and_b64 vcc, vcc, {sp(T)}")
    A(f"s_and_saveexec_b64 {sp(T+12)}, vcc")
    A("v_lshlrev_b32 v47, 2, v47")
    A(f"v_add_u32 v47, {M_MISC+32}, v47")
    A("ds_write_b32 v47, v46")
    A(f"s_mov_b64 exec, {sp(T+12)}")
    A(f"s_add_u32 s{T+9}, s{T+9}, 64")
    A(f"s_cmp_lt_u32 s{T+9}, s{T+8}")
    A(f"s_cbranch_scc1 {Lc}")
    A("s_waitcnt lgkmcnt(0)")
    stamp(6)

def sel_publish():
    T = S_T
    L = A.newlabel("L_sp")
    A(f"s_cmp_lg_u32 s{S_WAVE}, 0")
    A(f"s_cbranch_scc1 {L}")
    A("v_lshlrev_b32 v1, 2, v0")
    A(f"v_add_u32 v1, {M_MISC+32}, v1")
    A("s_mov_b64 exec, 0xff")
    A("ds_read_b32 v2, v1")
    add64(T+2, S_WS, WS_SEL)
    A(f"v_mov_b32 v3, s{S_NONCE}")
    A("v_lshlrev_b32 v4, 3, v0")
    A("s_waitcnt lgkmcnt(0)")
    A(f"global_store_dwordx2 v4, v[2:3], {sp(T+2)} sc1")
    A("s_mov_b64 exec, -1")
    A.label(L)
    stamp(7)
    tl(11, 255, 0)

def spare_wg():
    T = S_T
    A(f"s_sub_u32 s69, s69, {NMOE}")
    A("s_mul_i32 s68, s69, 52")
    A(f"s_lshl_b32 s{T+1}, s{S_WAVE}, 2")
    A(f"s_add_u32 s68, s68, s{T+1}")
    A("s_add_u32 s67, s68, 32")
    Le = A.newlabel("L_lne"); L2 = A.newlabel("L_np2"); L3 = A.newlabel("L_np3")
    A("s_mov_b32 s73, 0")
    A("s_cmp_ge_u32 s68, 2048")
    A(f"s_cbranch_scc1 {Le}")
    ln_loads(68, LN_Q, True)
    A("v_mov_b32 v9, v3")
    A(f"s_cmp_ge_u32 s{S_WAVE}, 5")
    A(f"s_cbranch_scc1 {L2}")
    A("s_cmp_ge_u32 s67, 2048")
    A(f"s_cbranch_scc1 {L2}")
    A("s_mov_b32 s73, 1")
    ln_loads(67, LN_Q2, False)
    A.label(L2)
    A("v_mov_b32 v120, 0")
    A(f"global_load_dword v121, v120, {sp(S_DBG)} sc1")
    A("s_cmp_eq_u32 s73, 1")
    A(f"s_cbranch_scc1 {L2}_a")
    A("s_waitcnt vmcnt(1)")
    A(f"s_branch {L2}_b")
    A.label(L2 + "_a")
    A("s_waitcnt vmcnt(6)")
    A.label(L2 + "_b")
    def hook():
        Lhn = A.newlabel("L_lnn")
        A("s_waitcnt vmcnt(0)")
        A(f"v_readfirstlane_b32 s{S_NONCE}, v121")
        A(f"s_cmp_lg_u32 s{S_NONCE}, 0")
        A(f"s_cbranch_scc1 {Lhn}")
        get_nonce(124)
        A.label(Lhn)
    ln_compute_publish(LN_Q, 9, True, hook=hook)
    stamp(3)
    A("s_cmp_eq_u32 s73, 0")
    A(f"s_cbranch_scc1 {Le}")
    ln_compute_publish(LN_Q2, 3, False)
    A.label(Le)
    stamp(4)
    A(f"s_cmp_lg_u32 s69, {SELIDX}")
    A("s_cbranch_scc1 L_fin")
    lds_init_list()
    get_nonce(124)
    A("s_waitcnt lgkmcnt(0)")
    A("s_barrier")
    sel_top8()
    sel_publish()
    A("s_branch L_fin")

def moe_wg():
    T = S_T
    A(f"s_sub_u32 s69, s{S_WG}, {NCONV}")
    A(f"s_cmp_ge_u32 s69, {NMOE}")
    A("s_cbranch_scc1 L_spare")
    A("s_and_b32 s70, s69, 7")
    A("s_mul_i32 s70, s70, 9")
    A(f"s_lshr_b32 s{T+1}, s69, 3")
    A(f"s_add_u32 s70, s70, s{T+1}")
    if "mdelay" in OPTS:
        for _ in range(int(os.environ.get("MD", "1"))): A("s_sleep 64")
    if "mnonce" in OPTS: get_nonce(10)
    if "mrg" in OPTS:
        get_nonce(10)
        A(f"s_mul_i32 s{T+1}, s69, 28")
        A(f"s_lshl_b32 s{T+1}, s{T+1}, 3")
        A(f"s_add_u32 s{T+1}, s{T+1}, {WS_RG}")
        A(f"v_mov_b32 v12, s{T+1}")
        tagcheck_loop(lambda: A(f"global_load_dwordx2 v[14:15], v12, {sp(S_WS)} sc1"), [15], 16, 17, sleep=4)
    if "nomoe" in OPTS: A("s_branch L_fin")
    moe_dma()
    A("s_waitcnt vmcnt(4)")
    stamp(4)
    moe_sel_wait()
    stamp(5)
    tl(12, 151, 7)
    moe_row_loads()
    moe_down_loads()
    Lq = A.newlabel("L_w32")
    A(f"s_cmp_lg_u32 s{S_WAVE}, 0")
    A(f"s_cbranch_scc1 {Lq}")
    A("s_waitcnt vmcnt(32)")
    A.label(Lq)
    A(f"s_cmp_eq_u32 s{S_WAVE}, 0")
    A(f"s_cbranch_scc1 {Lq}_b")
    A("s_waitcnt vmcnt(16)")
    A.label(Lq + "_b")
    moe_xs_compute()
    stamp(6)
    tl(13, 151, 7)
    A("s_waitcnt lgkmcnt(0)")
    A("s_barrier")
    moe_gateup()
    A("s_waitcnt lgkmcnt(0)")
    A("s_barrier")
    moe_h_and_down_stage()
    A("s_waitcnt lgkmcnt(0)")
    A("s_barrier")
    stamp(7)
    moe_down()
    moe_reduce()
    A("s_branch L_fin")
    A.label("L_spare")
    spare_wg()

def main():
    prologue()
    A(f"s_cmp_ge_u32 s{S_WG}, {NCONV}")
    A("s_cbranch_scc1 L_moe")
    conv_wg()
    A.label("L_moe")
    moe_wg()
    A.label("L_fin")
    tl(15, 151, 0)
    prof_end()
    A.label("L_end")
    A("s_endpgm")

main()
K = NAME + "_kernel"
LDS = max(L_CONV_END, M_END)
txt = HDR + f"; @launch grid=(256,1,1) block=(512,1,1) lds={LDS}\n" + '.amdgcn_target "amdgcn-amd-amdhsa--gfx950"\n.text\n' + head(K) + A.text() + kd(K, 256, 102, 128, "  .amdhsa_float_denorm_mode_32 3\n")
open(OUTFN, "w").write(txt)
print("wrote", OUTFN, len(txt), "LDS", LDS)
```

```python
import sys, struct, os
sys.path.insert(0, "dev")
from asmlib import *

OUTFN = sys.argv[1] if len(sys.argv) > 1 else "k.s"
OPTS = set(sys.argv[2:])
PROF = "prof" in OPTS
NT = "nt" if "nt" in OPTS else ""

WS_KVT = 0x000000
WS_XT = 0x240000
WS_RG = 0x480000
WS_SG = 0x484000
WS_FL = 0x488000
WS_FL2 = 0x488800
WS_SEL = 0x489800
WS_T1G = 0x48A000
WS_XSG = 0x494000
WS_PART = 0x4A0000
WS_PROF = 0x800000
WS_YG = 0x1000000
SPIN_MAX = 2000 if "dbgB" in OPTS else 400000
NCONV, NMOE = 144, 72
NLN = 40
SELIDX = 39

S_WG, S_WAVE = 2, 3
S_Q, S_K, S_V, S_SK, S_H, S_D, S_BX, S_WR, S_WGT, S_WUP, S_WD, S_OUT, S_DBG, S_WS = 4, 6, 8, 10, 12, 14, 16, 18, 20, 22, 24, 26, 28, 30
SRD_K, SRD_V, SRD_Q, SRD_O = 32, 36, 40, 44
S_NONCE = 48
S_MASK, S_SELLO, S_SELHI = 50, 51, 52
S_T = 54

A = Asm()
def f32bits(x): return struct.unpack("<I", struct.pack("<f", x))[0]
def p2(r): return f"v[{r}:{r+1}]"
def p4(r): return f"v[{r}:{r+3}]"
def sp(r): return f"s[{r}:{r+1}]"

NSTAMP = 10
def stamp(i):
    if PROF: A(f"s_memtime s[{80+2*i}:{81+2*i}]")
def prof_begin():
    if PROF:
        A("s_memrealtime s[100:101]")
        stamp(0)
        for i in range(1, NSTAMP):
            A(f"s_mov_b64 s[{80+2*i}:{81+2*i}], 0")
def prof_end():
    if not PROF: return
    A(f"s_memrealtime s[{S_T+2}:{S_T+3}]")
    A("s_waitcnt lgkmcnt(0)")
    A(f"s_lshl_b32 s{S_T}, s{S_WG}, 3")
    A(f"s_add_u32 s{S_T}, s{S_T}, s{S_WAVE}")
    A(f"s_lshl_b32 s{S_T}, s{S_T}, 6")
    A(f"s_add_u32 s{S_T}, s{S_T}, {WS_PROF}")
    A(f"v_mov_b32 v1, s{S_T}")
    A("s_mov_b64 exec, 1")
    A("v_mov_b32 v2, s100")
    A(f"global_store_dword v1, v2, {sp(S_WS)}")
    A(f"v_mov_b32 v2, s{S_T+2}")
    A(f"global_store_dword v1, v2, {sp(S_WS)} offset:4")
    for i in range(1, NSTAMP):
        A(f"s_sub_u32 s{S_T+1}, s{80+2*i}, s80")
        A(f"v_mov_b32 v2, s{S_T+1}")
        A(f"global_store_dword v1, v2, {sp(S_WS)} offset:{4+4*i}")
    A("s_mov_b64 exec, -1")

TL = "tl" in OPTS
TLSET = os.environ.get("TLSET", "A")
def tl(slot, wg, wave, setname="A"):
    if not TL or setname != TLSET: return
    L = A.newlabel("L_tl")
    A(f"s_cmp_lg_u32 s{S_WG}, {wg}")
    A(f"s_cbranch_scc1 {L}")
    A(f"s_cmp_lg_u32 s{S_WAVE}, {wave}")
    A(f"s_cbranch_scc1 {L}")
    A("s_memrealtime s[98:99]")
    A("s_mov_b64 s[100:101], exec")
    A("s_mov_b64 exec, 1")
    A("v_readfirstlane_b32 s96, v126")
    A("v_readfirstlane_b32 s97, v127")
    A(f"v_mov_b32 v126, {4*slot}")
    A("s_waitcnt lgkmcnt(0)")
    A("v_mov_b32 v127, s98")
    A(f"global_store_dword v126, v127, {sp(S_DBG)}")
    A("s_nop 4")
    A("v_mov_b32 v126, s96")
    A("v_mov_b32 v127, s97")
    A("s_mov_b64 exec, s[100:101]")
    A.label(L)

def rnd(v, src=None):
    A(f"v_cvt_pk_bf16_f32 v{v}, 0, v{v if src is None else src}")
def srd(dst, base, nbytes):
    A(f"s_mov_b32 s{dst}, s{base}")
    A(f"s_and_b32 s{dst+1}, s{base+1}, 0xffff")
    A(f"s_mov_b32 s{dst+2}, {nbytes}")
    A(f"s_mov_b32 s{dst+3}, 0x00020000")
def add64(dst, src, imm):
    A(f"s_add_u32 s{dst}, s{src}, {imm}")
    A(f"s_addc_u32 s{dst+1}, s{src+1}, 0")

def get_nonce(vtmp):
    L = A.newlabel("L_nonce"); Ld = A.newlabel("L_nonced")
    A(f"v_mov_b32 v{vtmp}, 0")
    A(f"s_mov_b32 s{S_T}, 0")
    A.label(L)
    A(f"global_load_dword v{vtmp+1}, v{vtmp}, {sp(S_DBG)} sc1")
    A(f"s_waitcnt vmcnt(0)")
    A(f"v_readfirstlane_b32 s{S_NONCE}, v{vtmp+1}")
    A(f"s_add_u32 s{S_T}, s{S_T}, 1")
    A(f"s_cmp_lg_u32 s{S_NONCE}, 0")
    A(f"s_cbranch_scc1 {Ld}")
    A(f"s_cmp_lt_u32 s{S_T}, {SPIN_MAX}")
    A(f"s_cbranch_scc1 {L}")
    A.label(Ld)

def tag_acc(tagregs, vacc, vtmp):
    A(f"v_xor_b32 v{vacc}, s{S_NONCE}, v{tagregs[0]}")
    rest = tagregs[1:]
    i = 0
    while i < len(rest):
        if i + 1 < len(rest):
            A(f"v_xor_b32 v{vtmp}, s{S_NONCE}, v{rest[i]}")
            A(f"v_xor_b32 v{vtmp+1}, s{S_NONCE}, v{rest[i+1]}")
            A(f"v_or3_b32 v{vacc}, v{vacc}, v{vtmp}, v{vtmp+1}")
            i += 2
        else:
            A(f"v_xor_b32 v{vtmp}, s{S_NONCE}, v{rest[i]}")
            A(f"v_or_b32 v{vacc}, v{vacc}, v{vtmp}")
            i += 1

def tagcheck_loop(load_fn, tagregs, vacc, vtmp, sleep=1):
    T = S_T
    L = A.newlabel("L_pl"); Ld = A.newlabel("L_pld")
    A(f"s_mov_b32 s{T}, 0")
    A.label(L)
    load_fn()
    A("s_waitcnt vmcnt(0)")
    tag_acc(tagregs, vacc, vtmp)
    A(f"v_cmp_ne_u32 vcc, 0, v{vacc}")
    A(f"s_add_u32 s{T}, s{T}, 1")
    A("s_nop 3")
    A("s_cmp_eq_u64 vcc, 0")
    A(f"s_cbranch_scc1 {Ld}")
    if sleep: A(f"s_sleep {sleep}")
    A(f"s_cmp_lt_u32 s{T}, {SPIN_MAX}")
    A(f"s_cbranch_scc1 {L}")
    A.label(Ld)

def nonce_writer():
    L = A.newlabel("L_nw")
    A(f"s_cmp_ge_u32 s{S_WG}, 8")
    A(f"s_cbranch_scc1 {L}")
    A(f"s_cmp_lg_u32 s{S_WAVE}, 7")
    A(f"s_cbranch_scc1 {L}")
    A(f"s_memrealtime {sp(S_T)}")
    A("s_waitcnt lgkmcnt(0)")
    A(f"s_or_b32 s{S_T}, s{S_T}, 1")
    A(f"v_mov_b32 v10, s{S_T}")
    A("v_mov_b32 v11, 0")
    A("v_mov_b32 v12, 0")
    A("s_mov_b64 exec, 1")
    A(f"global_atomic_cmpswap v12, v[10:11], {sp(S_DBG)} sc1")
    A("s_mov_b64 exec, -1")
    A.label(L)

def code_prefetch():
    T = S_T
    L = A.newlabel("L_cpf")
    A(f"s_cmp_lg_u32 s{S_WAVE}, 6")
    A(f"s_cbranch_scc1 {L}")
    A(f"s_lshr_b32 s{T+2}, s{S_WG}, 3")
    A(f"s_cmp_ge_u32 s{T+2}, (L_end - {NAME}_kernel + 1023) / 1024")
    A(f"s_cbranch_scc1 {L}")
    A(f"s_getpc_b64 {sp(T)}")
    A.label(L + "_pc")
    A(f"s_sub_u32 s{T}, s{T}, {L}_pc - {NAME}_kernel")
    A(f"s_subb_u32 s{T+1}, s{T+1}, 0")
    A(f"s_lshl_b32 s{T+2}, s{T+2}, 10")
    A("v_lshlrev_b32 v1, 4, v0")
    A(f"v_add_u32 v1, s{T+2}, v1")
    A(f"global_load_dwordx4 a[124:127], v1, {sp(T)}")
    A.label(L)

def prologue():
    A(f"s_cmp_ge_u32 s{S_WG}, 256")
    A("s_cbranch_scc1 L_end")
    prof_begin()
    A("s_load_dwordx16 s[4:19], s[0:1], 0")
    A("s_load_dwordx8 s[20:27], s[0:1], 64")
    A("s_load_dwordx4 s[28:31], s[0:1], 96")
    A("v_lshrrev_b32 v1, 6, v0")
    A("v_and_b32 v0, 63, v0")
    A(f"v_readfirstlane_b32 s{S_WAVE}, v1")
    A(f"s_mov_b32 s{S_MASK}, 0xffff0000")
    A(f"s_mov_b32 s{S_SELLO}, 0x05040100")
    A(f"s_mov_b32 s{S_SELHI}, 0x07060302")
    A("s_waitcnt lgkmcnt(0)")
    stamp(1)
    tl(1, 0, 0); tl(2, 7, 0); tl(3, 4, 0)
    nonce_writer()
    code_prefetch()

def dpp_sum16(v):
    for sh in (8, 4, 2, 1):
        A("s_nop 1")
        A(f"v_add_f32_dpp v{v}, v{v}, v{v} row_ror:{sh} row_mask:0xf bank_mask:0xf")

LN_Q, LN_W, LN_Q2 = 10, 28, 46
def ln_loads(stok, Q, with_w):
    T = S_T
    A(f"s_mov_b32 s{T}, s{stok}")
    A("v_lshrrev_b32 v1, 4, v0")
    A("v_and_b32 v2, 15, v0")
    A(f"v_add_u32 v3, s{T}, v1")
    A(f"v_mul_u32_u24 v4, 1152, v3")
    A(f"v_lshl_add_u32 v5, v2, 4, v4")
    A(f"v_lshl_add_u32 v6, v2, 3, v4")
    for i in range(4):
        A(f"global_load_dwordx4 {p4(Q+4*i)}, v5, {sp(S_Q)} offset:{256*i} {NT}")
    A(f"global_load_dwordx2 {p2(Q+16)}, v6, {sp(S_Q)} offset:1024 {NT}")
    if with_w:
        W = LN_W
        A(f"v_lshlrev_b32 v7, 4, v2")
        A(f"v_lshlrev_b32 v8, 3, v2")
        for i in range(4):
            A(f"global_load_dwordx4 {p4(W+4*i)}, v7, {sp(S_WR)} offset:{256*i}")
        A(f"global_load_dwordx2 {p2(W+16)}, v8, {sp(S_WR)} offset:1024")

def dpp_sum16x(vs):
    for sh in (8, 4, 2, 1):
        if len(vs) < 3: A("s_nop 1")
        for v in vs:
            A(f"v_add_f32_dpp v{v}, v{v}, v{v} row_ror:{sh} row_mask:0xf bank_mask:0xf")

def ln_compute_publish(Q, vtok, first, vc=2, hook=None, publish=True):
    T = S_T
    W = LN_W
    A(f"s_mov_b32 s{T+8}, 0x3f803f80"); A(f"s_mov_b32 s{T+9}, 0x00003f80"); A(f"s_mov_b32 s{T+10}, 0x3f800000")
    accs = [64, 65, 66, 67] + ([68, 69] if first else [])
    for a in accs: A(f"v_mov_b32 v{a}, 0")
    for i in range(18):
        A(f"v_dot2_f32_bf16 v{64+(i&1)}, v{Q+i}, s{T+8}, v{64+(i&1)}")
        A(f"v_dot2_f32_bf16 v{66+(i&1)}, v{Q+i}, v{W+i}, v{66+(i&1)}")
        if first: A(f"v_dot2_f32_bf16 v{68+(i&1)}, v{W+i}, s{T+8}, v{68+(i&1)}")
    A("s_nop 2")
    A("v_add_f32 v64, v64, v65")
    A("v_add_f32 v66, v66, v67")
    if first:
        A("v_add_f32 v122, v68, v69")
        A("s_nop 0")
        dpp_sum16x([64, 66, 122])
    else:
        A("s_nop 0")
        dpp_sum16x([64, 66])
    A(f"v_mul_f32 v64, 0x{f32bits(1.0/576):08x}, v64")
    A("v_sub_f32 v65, 0, v64")
    for a in (68, 69, 70, 71): A(f"v_mov_b32 v{a}, 0")
    for i in range(0, 18, 2):
        A(f"v_dot2_f32_bf16 v72, v{Q+i}, s{T+9}, v65")
        A(f"v_dot2_f32_bf16 v73, v{Q+i}, s{T+10}, v65")
        A(f"v_dot2_f32_bf16 v74, v{Q+i+1}, s{T+9}, v65")
        A(f"v_dot2_f32_bf16 v75, v{Q+i+1}, s{T+10}, v65")
        A("s_nop 1")
        A(f"v_fma_f32 v68, v72, v72, v68")
        A(f"v_fma_f32 v69, v73, v73, v69")
        A(f"v_fma_f32 v70, v74, v74, v70")
        A(f"v_fma_f32 v71, v75, v75, v71")
    A("v_add_f32 v68, v68, v69"); A("v_add_f32 v70, v70, v71"); A("v_add_f32 v68, v68, v70")
    dpp_sum16x([68])
    A(f"v_mul_f32 v68, 0x{f32bits(1.0/576):08x}, v68")
    rnd(68)
    A(f"v_add_f32 v68, 0x{f32bits(1e-5):08x}, v68")
    rnd(68)
    A("v_sqrt_f32 v69, v68")
    A("s_nop 0")
    A("v_rcp_f32 v70, v69")
    A("v_fma_f32 v71, -v69, v69, v68")
    A("v_mul_f32 v70, 0.5, v70")
    A("v_fma_f32 v69, v71, v70, v69")
    rnd(69)
    A("v_rcp_f32 v70, v69")
    rnd(64)
    A("v_fma_f32 v66, -v64, v122, v66")
    A("v_mul_f32 v112, v66, v70")
    rnd(112)
    A(f"v_or_b32 v112, v112, v{vtok}")
    A("v_cvt_pk_bf16_f32 v114, v64, v69")
    if not publish:
        A("v_mov_b32 v32, v112"); A("v_mov_b32 v34, v114")
        return
    if hook: hook()
    ln_publish(vtok, vc)

def ln_publish(vtok, vc):
    T = S_T
    A(f"v_mov_b32 v113, s{S_NONCE}")
    A(f"v_mov_b32 v115, s{S_NONCE}")
    A(f"v_lshlrev_b32 v116, 3, v{vtok}")
    add64(T+2, S_WS, WS_RG)
    add64(T+4, S_WS, WS_SG)
    A(f"v_cmp_eq_u32 vcc, 0, v{vc}")
    A(f"s_and_saveexec_b64 {sp(T+6)}, vcc")
    A(f"global_store_dwordx2 v116, v[112:113], {sp(T+2)} sc1")
    A(f"global_store_dwordx2 v116, v[114:115], {sp(T+4)} sc1")
    A(f"s_mov_b64 exec, {sp(T+6)}")

P_CH = 4128
L_P = 0
L_Q = L_P + 4 * P_CH
Q_CPY = 1152
Q_CH = 4 * Q_CPY
L_KVL = L_Q + 4 * Q_CH
L_MC = L_KVL + 16384
L_SELT = L_MC + 64
L_ST = L_SELT + 128
L_TAP = L_ST + 1024
TBLK = 1040
L_TK = (L_TAP + 512 + 15) // 16 * 16
L_TV = L_TK + 17 * TBLK
L_TQ = L_TV + 16 * TBLK
L_OT = L_TK
L_CONV_END = L_TQ + 16 * TBLK

def dma(voff, srdreg, soff, m0, flag=None):
    A(f"s_mov_b32 m0, {m0}")
    A("s_nop 0")
    A(f"buffer_load_dwordx4 v{voff}, s[{srdreg}:{srdreg+3}], {soff} offen {NT if flag is None else flag} lds")

def conv_tile():
    T = S_T
    A(f"s_sub_u32 s72, s{S_WAVE}, 4")
    A(f"s_mul_hi_u32 s77, s{S_WG}, {(2**32 + 8)//9}")
    A(f"s_mul_i32 s76, s77, 9")
    A(f"s_sub_u32 s76, s{S_WG}, s76")
    srd(SRD_K, S_K, 2359296)
    srd(SRD_V, S_V, 2359296)
    A("v_lshrrev_b32 v1, 3, v0")
    A("v_and_b32 v2, 7, v0")
    A(f"s_mul_i32 s{T+2}, s77, {128*1152}")
    A(f"s_lshl_b32 s{T+3}, s76, 7")
    A(f"s_add_u32 s{T+2}, s{T+2}, s{T+3}")
    A(f"v_mul_u32_u24 v3, 1152, v1")
    A(f"v_lshl_add_u32 v3, v2, 4, v3")
    A(f"v_add_u32 v3, s{T+2}, v3")
    A(f"s_mul_i32 s{T+4}, s{S_WAVE}, {2*9216}")
    A(f"s_mul_i32 s{T+6}, s{S_WAVE}, {2*TBLK}")
    for i in range(2):
        A(f"s_add_u32 s{T+7}, s{T+6}, {L_TK + TBLK + i*TBLK}")
        A(f"s_add_u32 s{T+5}, s{T+4}, {9216*i}")
        dma(3, SRD_K, f"s{T+5}", f"s{T+7}")
        A(f"s_add_u32 s{T+7}, s{T+6}, {L_TV + i*TBLK}")
        dma(3, SRD_V, f"s{T+5}", f"s{T+7}")
    L7 = A.newlabel("L_w7")
    A(f"s_cmp_lg_u32 s{S_WAVE}, 7")
    A(f"s_cbranch_scc1 {L7}")
    A(f"v_subrev_u32 v4, 9216, v3")
    A(f"s_cmp_lg_u32 s77, 0")
    A(f"s_cbranch_scc1 {L7}_a")
    A("v_bfrev_b32 v4, 1")
    A.label(L7 + "_a")
    dma(4, SRD_K, "0", L_TK)
    for i in range(4): A(f"v_mov_b32 v{52+i}, 0")
    A("v_lshlrev_b32 v56, 4, v0")
    A(f"v_add_u32 v56, {L_MC}, v56")
    A("s_mov_b64 exec, 0xfff")
    A(f"ds_write_b128 v56, {p4(52)}")
    A("s_mov_b64 exec, -1")
    A.label(L7)
    TR = 48
    A(f"s_lshr_b32 s{T+9}, s{S_WAVE}, 1")
    A(f"s_and_b32 s{T+10}, s{S_WAVE}, 1")
    Lt = A.newlabel("L_tap")
    A(f"s_cmp_lg_u32 s{S_WAVE}, 0")
    A(f"s_cbranch_scc1 {Lt}")
    srd(SRD_Q, S_SK, 4608)
    A(f"s_lshl_b32 s{T+11}, s76, 9")
    A("v_lshlrev_b32 v5, 4, v0")
    A("s_mov_b64 exec, 0xffffffff")
    dma(5, SRD_Q, f"s{T+11}", L_TAP, flag="")
    A("s_mov_b64 exec, -1")
    A.label(Lt)
    A("v_mov_b32 v120, 0")
    A(f"global_load_dword v121, v120, {sp(S_DBG)} sc1")
    A(f"s_and_b32 s{T+13}, s{S_WG}, 7")
    A(f"s_mul_i32 s{T+13}, s{T+13}, 18")
    A(f"s_lshr_b32 s{T+12}, s{S_WG}, 3")
    A(f"s_add_u32 s{T+13}, s{T+13}, s{T+12}")
    A(f"s_lshl_b32 s71, s{T+13}, 2")
    A(f"s_and_b32 s{T+12}, s{S_WAVE}, 3")
    A(f"s_add_u32 s78, s71, s{T+12}")
    A(f"s_lshl_b32 s79, s78, 12")
    A(f"s_lshl_b32 s{T+12}, s{T+10}, 3")
    A(f"v_add_u32 v6, s{T+12}, v2")
    A(f"s_lshl_b32 s{T+12}, s{T+9}, 3")
    A(f"v_add_u32 v7, s{T+12}, v1")
    A(f"v_mul_u32_u24 v9, {TBLK}, v6")
    A(f"v_lshl_add_u32 v9, v7, 2, v9")
    A(f"v_add_u32 v9, {L_TK}, v9")
    A(f"s_lshl_b32 s{T+11}, s76, 19")
    A(f"s_lshl_b32 s{T+12}, s77, 9")
    A(f"s_add_u32 s{T+11}, s{T+11}, s{T+12}")
    A(f"s_lshl_b32 s{T+12}, s{T+10}, 8")
    A(f"s_add_u32 s{T+11}, s{T+11}, s{T+12}")
    A("v_lshlrev_b32 v8, 14, v7")
    A("v_lshl_add_u32 v8, v2, 4, v8")
    A(f"v_add_u32 v8, s{T+11}, v8")
    if "hearly" in OPTS:
        Lh = A.newlabel("L_noh"); Lh2 = A.newlabel("L_noh2")
        A(f"s_cmp_ge_u32 s{S_WAVE}, 4")
        A(f"s_cbranch_scc1 {Lh}")
        srd(SRD_Q, S_H, 2359296)
        A("v_lshlrev_b32 v4, 4, v0")
        A(f"s_mul_i32 s74, s{S_WAVE}, {P_CH}")
        for q in range(4):
            A(f"s_add_u32 s{T+9}, s79, {1024*q}")
            A(f"s_add_u32 s{T+5}, s74, {32 + 1024*q}")
            dma(4, SRD_Q, f"s{T+9}", f"s{T+5}")
        if "dbgB" in OPTS: stamp(5)
        A("s_waitcnt vmcnt(4) lgkmcnt(0)")
        A(f"s_branch {Lh2}")
        A.label(Lh)
        if "dbgB" in OPTS: stamp(5)
        A("s_waitcnt vmcnt(0) lgkmcnt(0)")
        A.label(Lh2)
        if "dbgB" in OPTS: stamp(6)
    else:
        A("s_waitcnt vmcnt(0) lgkmcnt(0)")
    A(f"v_readfirstlane_b32 s{S_NONCE}, v121")
    A("s_barrier")
    stamp(2)
    tl(4, 7, 0)
    KR, VR = 10, 21
    for j in range(11):
        off = (640 + 128*j if j < 3 else TBLK + 128*(j-3))
        A(f"ds_read_b32 v{KR+j}, v9 offset:{off}")
    A("v_lshlrev_b32 v5, 2, v7")
    A("v_lshlrev_b32 v5, 2, v5")
    A(f"v_add_u32 v5, {L_TAP}, v5")
    A(f"ds_read_b128 {p4(TR)}, v5")
    for j in range(8):
        A(f"ds_read_b32 v{VR+j}, v9 offset:{L_TV - L_TK + 128*j}")
    A("s_waitcnt lgkmcnt(8)")
    Ln = A.newlabel("L_hasn")
    A(f"s_cmp_lg_u32 s{S_NONCE}, 0")
    A(f"s_cbranch_scc1 {Ln}")
    get_nonce(30)
    A.label(Ln)
    TP = 52
    A(f"v_lshlrev_b32 v{TP+0}, 16, v{TR}"); A(f"v_lshlrev_b32 v{TP+1}, 16, v{TR+2}")
    A(f"v_and_b32 v{TP+2}, s{S_MASK}, v{TR}"); A(f"v_and_b32 v{TP+3}, s{S_MASK}, v{TR+2}")
    A(f"v_lshlrev_b32 v{TP+4}, 16, v{TR+1}"); A(f"v_lshlrev_b32 v{TP+5}, 16, v{TR+3}")
    A(f"v_and_b32 v{TP+6}, s{S_MASK}, v{TR+1}"); A(f"v_and_b32 v{TP+7}, s{S_MASK}, v{TR+3}")
    KP = 80
    for j in range(11):
        A(f"v_lshlrev_b32 v{KP+2*j}, 16, v{KR+j}")
        A(f"v_and_b32 v{KP+2*j+1}, s{S_MASK}, v{KR+j}")
    R = 102
    tp = lambda tap: p2(TP+2*tap)
    for i in range(8): A(f"v_pk_mul_f32 {p2(R+2*i)}, {p2(KP+2*i)}, {tp(3)}")
    for i in range(8): A(f"v_pk_fma_f32 {p2(R+2*i)}, {p2(KP+2*(i+1))}, {tp(2)}, {p2(R+2*i)}")
    for i in range(8): A(f"v_pk_fma_f32 {p2(R+2*i)}, {p2(KP+2*(i+2))}, {tp(1)}, {p2(R+2*i)}")
    for i in range(8): A(f"v_pk_fma_f32 {p2(R+2*i)}, {p2(KP+2*(i+3))}, {tp(0)}, {p2(R+2*i)}")
    A("s_waitcnt lgkmcnt(0)")
    VP = 60
    for i in range(8):
        A(f"v_lshlrev_b32 v{VP+2*i}, 16, v{VR+i}"); A(f"v_and_b32 v{VP+2*i+1}, s{S_MASK}, v{VR+i}")
    for i in range(8): A(f"v_pk_mul_f32 {p2(R+2*i)}, {p2(R+2*i)}, {p2(VP+2*i)}")
    GQ = 80
    for c in range(2):
        for q in range(4):
            A(f"v_cvt_pk_bf16_f32 v{GQ+8*c+2*q}, v{R+4*q+c}, v{R+4*q+2+c}")
            A(f"v_mov_b32 v{GQ+8*c+2*q+1}, s{S_NONCE}")
    add64(T+2, S_WS, WS_KVT)
    add64(T+8, S_WS, WS_KVT+8192)
    A(f"global_store_dwordx4 v8, {p4(GQ)}, {sp(T+2)} sc1")
    A(f"global_store_dwordx4 v8, {p4(GQ+4)}, {sp(T+2)} offset:128 sc1")
    A(f"global_store_dwordx4 v8, {p4(GQ+8)}, {sp(T+8)} sc1")
    A(f"global_store_dwordx4 v8, {p4(GQ+12)}, {sp(T+8)} offset:128 sc1")
    for c in range(2):
        for q in range(4): A(f"v_mov_b32 v{120+4*c+q}, v{GQ+8*c+2*q}")
    A(f"s_lshl_b32 s{T+1}, s{S_WAVE}, 11")
    A("v_lshlrev_b32 v4, 5, v0")
    A(f"v_add_u32 v4, s{T+1}, v4")
    A(f"v_add_u32 v4, {L_KVL}, v4")
    A(f"ds_write_b128 v4, {p4(120)}")
    A(f"ds_write_b128 v4, {p4(124)} offset:16")
    stamp(3)
    if "hearly" not in OPTS:
        Lh = A.newlabel("L_noh")
        A(f"s_cmp_ge_u32 s{S_WAVE}, 4")
        A(f"s_cbranch_scc1 {Lh}")
        srd(SRD_V, S_H, 2359296)
        A("v_lshlrev_b32 v4, 4, v0")
        A(f"s_mul_i32 s74, s{S_WAVE}, {P_CH}")
        for q in range(4):
            A(f"s_add_u32 s{T+9}, s79, {1024*q}")
            A(f"s_add_u32 s{T+10}, s74, {32 + 1024*q}")
            dma(4, SRD_V, f"s{T+9}", f"s{T+10}")
        A.label(Lh)
    A("s_waitcnt lgkmcnt(0)")
    A("s_barrier")
    stamp(4)
    tl(5, 7, 0)
    if "dbgA" in OPTS or "dbgB" in OPTS: A("s_branch L_fin")

class LdsQ:
    def __init__(self): self.q = []
    def issue(self, instr, tag=None):
        A(instr); self.q.append(tag)
    def wait(self, tag):
        idxs = [i for i, t in enumerate(self.q) if t == tag]
        if not idxs: return
        last = idxs[-1]
        n = len(self.q) - 1 - last
        A(f"s_waitcnt lgkmcnt({min(n, 15)})")
        if n <= 15: self.q = self.q[last+1:]
        else: self.q = self.q[len(self.q)-15:]

def conv_mfma_wave():
    T = S_T
    A(f"s_mul_i32 s75, s{S_WAVE}, {Q_CH}")
    A(f"s_add_u32 s75, s75, {L_Q}")
    for i in range(4): A(f"v_mov_b32 v{16+i}, 0")
    A("v_lshlrev_b32 v2, 4, v0")
    A("v_add_u32 v2, s74, v2")
    A("s_mov_b64 exec, 3")
    A(f"ds_write_b128 v2, {p4(16)}")
    A("s_mov_b64 exec, -1")
    A("v_lshrrev_b32 v2, 3, v0")
    A(f"v_mul_u32_u24 v2, {Q_CPY}, v2")
    A("v_and_b32 v3, 7, v0")
    A("v_lshl_add_u32 v2, v3, 4, v2")
    A("v_add_u32 v2, s75, v2")
    A("s_mov_b64 exec, 0xffffffff")
    A(f"ds_write_b128 v2, {p4(16)}")
    A("s_mov_b64 exec, -1")
    A("v_and_b32 v3, 3, v0")
    A("v_bfe_u32 v4, v0, 2, 2")
    A("v_sub_u32 v3, v3, v4")
    A("v_lshlrev_b32 v3, 3, v3")
    A("v_lshrrev_b32 v4, 4, v0")
    A("v_lshl_add_u32 v3, v4, 6, v3")
    A("v_add_u32 v3, s74, v3")
    A("v_add_u32 v3, 32, v3")
    A("s_waitcnt vmcnt(4) lgkmcnt(0)" if "hearly" in OPTS else "s_waitcnt vmcnt(0) lgkmcnt(0)")
    G = 64
    def greg(e, s1): return G + 4*(8*e + s1)
    for s1 in range(8):
        for e in range(2):
            g = greg(e, s1)
            A(f"ds_read_b64_tr_b16 {p2(g)}, v3 offset:{512*s1+256*e+32}")
            A(f"ds_read_b64_tr_b16 {p2(g+2)}, v3 offset:{512*s1+256*e}")
        if s1 % 3 == 2: A("s_waitcnt lgkmcnt(4)")
    A("v_and_b32 v5, 15, v0")
    A("v_lshlrev_b32 v6, 3, v5")
    A("v_lshlrev_b32 v7, 4, v4")
    A("v_sub_u32 v6, v6, v7")
    A("v_add_u32 v6, s75, v6")
    A("v_add_u32 v6, 56, v6")
    A("v_lshlrev_b32 v7, 6, v5")
    A("v_lshl_add_u32 v7, v4, 4, v7")
    A(f"s_lshl_b32 s{T+1}, s78, 13")
    A(f"v_add_u32 v7, s{T+1}, v7")
    A(f"v_add_u32 v11, 4096, v7")
    add64(62, S_WS, WS_YG)
    A("v_subrev_u32 v8, 16, v0")
    A("v_add_u32 v9, 47, v0")
    A("v_cmp_gt_u32 vcc, 16, v0")
    A("s_nop 1")
    A("v_cndmask_b32 v8, v8, v9, vcc")
    A("v_mov_b32 v9, 63")
    A("v_cmp_eq_u32 vcc, 0, v0")
    A("s_nop 1")
    A("v_cndmask_b32 v8, v8, v9, vcc")
    A("v_lshlrev_b32 v8, 2, v8")
    A(f"v_mov_b32 v9, {L_MC}")
    A("v_mov_b32 v10, 1")
    A(f"s_mov_b64 {sp(66)}, 1")
    add64(64, S_WS, WS_KVT)
    A(f"s_lshl_b32 s{T+1}, s78, 13")
    A("v_lshlrev_b32 v1, 4, v0")
    A(f"v_add_u32 v1, s{T+1}, v1")
    A("v_add_u32 v12, 4096, v1")
    A("v_lshrrev_b32 v2, 4, v0")
    A("v_lshlrev_b32 v2, 4, v2")
    A("v_and_b32 v13, 7, v0")
    A("v_lshl_add_u32 v2, v13, 1, v2")
    A("v_bfe_u32 v13, v0, 3, 1")
    A("v_add_u32 v2, v2, v13")
    A("v_lshlrev_b32 v2, 1, v2")
    A("v_add_u32 v2, s75, v2")
    A("v_and_b32 v13, 15, v0")
    A("v_lshlrev_b32 v13, 9, v13")
    A(f"v_add_u32 v13, s{T+1}, v13")
    A("v_add_u32 v13, 504, v13")
    stamp(5)
    tagcheck_loop(lambda: A(f"global_load_dwordx2 v[14:15], v13, {sp(64)} sc1"), [15], 16, 17, sleep=1)
    stamp(6)
    tl(6, 7, 0)
    KV = 16
    def ldkv():
        for q in range(8):
            A(f"global_load_dwordx4 {p4(KV+4*q)}, v{1 if q < 4 else 12}, {sp(64)} offset:{1024*(q % 4)} sc1")
    tagcheck_loop(ldkv, [KV+4*q+1+2*h for q in range(8) for h in range(2)], 14, 48, sleep=1)
    for q in range(8):
        r = KV + 4*q
        o = 128 + 128*q
        A(f"ds_write_b16 v2, v{r} offset:{0*Q_CPY+o}")
        A(f"ds_write_b16_d16_hi v2, v{r} offset:{1*Q_CPY+o}")
        A(f"ds_write_b16 v2, v{r+2} offset:{2*Q_CPY+o}")
        A(f"ds_write_b16_d16_hi v2, v{r+2} offset:{3*Q_CPY+o}")
    A("s_waitcnt lgkmcnt(0)")
    for i in range(3): A(f"v_mov_b32 v{40+i}, 0")
    stamp(7)
    tl(7, 7, 0)
    lq = LdsQ()
    classes = [(c1, sg, e) for c1 in range(8) for sg in range(4) for e in range(2)]
    free = [48, 52, 56, 60]
    fbuf = {}
    def fread(k):
        c1, sg, e = classes[k]
        b = free.pop(0); fbuf[k] = b
        off = sg*Q_CPY + 128*c1 + 64*(1-e)
        lq.issue(f"ds_read_b64 {p2(b)}, v6 offset:{off}", ("F", k))
        lq.issue(f"ds_read_b64 {p2(b+2)}, v6 offset:{off+8}", ("F", k))
    def acc(sg, t): return (sg*8 + t)*4
    def combine_ops(t):
        a = 16
        ops = []
        for sg in range(4):
            for r in range(4):
                ops.append(lambda sg=sg, r=r: A(f"v_accvgpr_read_b32 v{a+4*sg+r}, a{acc(sg,t)+r}"))
        a0, a1, a2, a3 = a, a+4, a+8, a+12
        C = 32 + 0
        ops.append(lambda: A(f"v_add_f32 v{C}, v{a1+3}, v{a2+2}"))
        ops.append(lambda: A(f"v_add_f32 v{C+1}, v{a2+3}, v{a3+2}"))
        ops.append(lambda: A(f"v_add_f32 v{C}, v{C}, v{a3+1}"))
        P = 36 + 4*(t & 1)
        Pp = 36 + 4*((t+1) & 1)
        ops.append(lambda: lq.issue(f"ds_bpermute_b32 v{P}, v8, v{C}", ("B", t)))
        ops.append(lambda: lq.issue(f"ds_bpermute_b32 v{P+1}, v8, v{C+1}", ("B", t)))
        ops.append(lambda: lq.issue(f"ds_bpermute_b32 v{P+2}, v8, v{a3+3}", ("B", t)))
        ops.append(lambda: A(f"v_add_f32 v{a0+1}, v{a0+1}, v{a1}"))
        ops.append(lambda: A(f"v_add_f32 v{a0+2}, v{a0+2}, v{a1+1}"))
        ops.append(lambda: A(f"v_add_f32 v{a0+3}, v{a0+3}, v{a1+2}"))
        ops.append(lambda: A(f"v_add_f32 v{a0+2}, v{a0+2}, v{a2}"))
        ops.append(lambda: A(f"v_add_f32 v{a0+3}, v{a0+3}, v{a2+1}"))
        ops.append(lambda: A(f"v_add_f32 v{a0+3}, v{a0+3}, v{a3}"))
        ops.append(lambda: lq.wait(("B", t)))
        for i in range(3):
            ops.append(lambda i=i: A(f"v_cndmask_b32 v{44+i}, v{P+i}, v{Pp+i}, {sp(66)}"))
        for i in range(3):
            ops.append(lambda i=i: A(f"v_add_f32 v{a0+i}, v{a0+i}, v{44+i}"))
        YQ = 12 if False else 44
        ops.append(lambda: A(f"v_cvt_pk_bf16_f32 v44, v{a0}, v{a0+1}"))
        ops.append(lambda: A(f"v_mov_b32 v45, s{S_NONCE}"))
        ops.append(lambda: A(f"v_cvt_pk_bf16_f32 v46, v{a0+2}, v{a0+3}"))
        ops.append(lambda: A(f"v_mov_b32 v47, s{S_NONCE}"))
        ops.append(lambda: A(f"global_store_dwordx4 v{7 if t < 4 else 11}, {p4(44)}, {sp(62)} offset:{1024*(t % 4)} sc1"))
        ops.append(lambda: A("s_nop 1"))
        return ops
    nxt = 0
    def topup(maxn=2):
        nonlocal nxt
        n = 0
        while free and nxt < len(classes) and n < maxn and len(lq.q) <= 10:
            fread(nxt); nxt += 1; n += 1
    topup(3)
    pending = []
    k = 0
    for c1 in range(8):
        nm_step = 8*(8-c1)
        if c1 > 0:
            pending = combine_ops(c1-1)
            free.extend([greg(0, 8-c1), greg(1, 8-c1)])
        per = 0
        if pending:
            avail = max(1, nm_step - 3)
            per = -(-len(pending) // avail)
        mi = 0
        for sg in range(4):
            for e in range(2):
                while nxt <= k: topup(1)
                lq.wait(("F", k))
                b = fbuf[k]
                for s1 in range(8-c1):
                    t = s1 + c1
                    d = acc(sg, t)
                    cin = "0" if (c1 == 0 and e == 0) else f"a[{d}:{d+3}]"
                    A(f"v_mfma_f32_16x16x32_bf16 a[{d}:{d+3}], {p4(greg(e, s1))}, {p4(b)}, {cin}")
                    mi += 1
                    if s1 == 0: topup(1)
                    if pending and mi >= 3:
                        for _ in range(per):
                            if pending: pending.pop(0)()
                free.append(b)
                k += 1
        while pending: pending.pop(0)()
    A("s_nop 7"); A("s_nop 1")
    for op in combine_ops(7): op()
    A("s_mov_b64 exec, 1")
    A("ds_add_u32 v9, v10")
    A("s_mov_b64 exec, -1")
    stamp(8)
    tl(8, 7, 0)

def lds_spin(addr_off, target, va, vb, sleep=1):
    T = S_T
    L = A.newlabel("L_ls")
    A(f"v_mov_b32 v{va}, {L_MC}")
    A(f"s_mov_b32 s{T+1}, 0")
    A.label(L)
    A(f"ds_read_b32 v{vb}, v{va} offset:{addr_off}")
    A("s_waitcnt lgkmcnt(0)")
    A(f"v_readfirstlane_b32 s{T}, v{vb}")
    A(f"s_add_u32 s{T+1}, s{T+1}, 1")
    A(f"s_cmp_ge_u32 s{T+1}, {SPIN_MAX*4}")
    A(f"s_cbranch_scc1 {L}_d")
    A(f"s_cmp_ge_u32 s{T}, {target}")
    A(f"s_cbranch_scc1 {L}_d")
    if sleep: A(f"s_sleep {sleep}")
    A(f"s_branch {L}")
    A.label(L + "_d")

def conv_helper_prep():
    T = S_T
    if "gupf" in OPTS:
        R0 = int(os.environ.get("PFROW", "288")); NR = (576 - R0) // 18
        assert NR % 4 == 0
        RW = NR // 4
        A(f"s_and_b32 s{T+1}, s{S_WG}, 7")
        A(f"s_mul_i32 s{T+1}, s{T+1}, 1152")
        A(f"s_lshr_b32 s{T+2}, s{S_WG}, 3")
        A(f"s_mul_i32 s{T+2}, s{T+2}, {NR}")
        A(f"s_mul_i32 s{T+3}, s72, {RW}")
        A(f"s_add_u32 s{T+2}, s{T+2}, s{T+3}")
        A(f"s_add_u32 s{T+2}, s{T+2}, {R0}")
        A(f"s_mul_i32 s{T+2}, s{T+2}, 9216")
        A(f"s_add_u32 s{T+1}, s{T+1}, s{T+2}")
        A("v_lshlrev_b32 v10, 4, v0")
        A(f"v_add_u32 v10, s{T+1}, v10")
        A("v_lshrrev_b32 v11, 3, v0")
        A("v_mul_u32_u24 v11, 9216, v11")
        A("v_and_b32 v12, 7, v0")
        A("v_lshl_add_u32 v11, v12, 4, v11")
        A(f"v_add_u32 v11, s{T+1}, v11")
        A("v_add_u32 v11, 1024, v11")
        ar = 16
        for base in (S_WGT, S_WUP):
            A("v_mov_b32 v13, v10")
            for r in range(RW):
                A(f"global_load_dwordx4 a[{ar}:{ar+3}], v13, {sp(base)}"); ar += 4
                if r < RW - 1: A("v_add_u32 v13, 9216, v13")
            nl = 8*RW
            if nl < 64:
                A(f"s_mov_b32 exec_lo, {hex(min(nl, 32) and ((1 << min(nl, 32)) - 1))}")
                A(f"s_mov_b32 exec_hi, {hex((1 << (nl - 32)) - 1) if nl > 32 else '0'}")
            A(f"global_load_dwordx4 a[{ar}:{ar+3}], v11, {sp(base)}"); ar += 4
            A("s_mov_b64 exec, -1")
        if "dpf" in OPTS:
            A(f"s_and_b32 s{T+1}, s{S_WG}, 7")
            A(f"s_mul_i32 s{T+1}, s{T+1}, {576*1152}")
            A(f"s_lshr_b32 s{T+2}, s{S_WG}, 3")
            A(f"s_mul_i32 s{T+2}, s{T+2}, 36864")
            A(f"s_add_u32 s{T+1}, s{T+1}, s{T+2}")
            A(f"s_mul_i32 s{T+2}, s72, 9216")
            A(f"s_add_u32 s{T+1}, s{T+1}, s{T+2}")
            A("v_lshlrev_b32 v19, 4, v0")
            A(f"v_add_u32 v19, s{T+1}, v19")
            DPF = []
            for i in range(9):
                DPF.append(f"global_load_dwordx4 a[{ar}:{ar+3}], v18, {sp(S_WD)} offset:{1024*(i%4)}"); ar += 4
            assert ar <= 124, ar
            global DPF_CODE
            DPF_CODE = DPF
    srd(SRD_Q, S_Q, 2359296)
    A(f"s_mul_i32 s{T+4}, s72, {4*9216}")
    A(f"s_mul_i32 s{T+6}, s72, {4*TBLK}")
    A(f"s_add_u32 s{T+6}, s{T+6}, {L_TQ}")
    for i in range(4):
        dma(3, SRD_Q, f"s{T+4}", f"s{T+6}")
        A(f"s_add_u32 s{T+4}, s{T+4}, 9216")
        A(f"s_add_u32 s{T+6}, s{T+6}, {TBLK}")
    L4 = A.newlabel("L_h4"); L5 = A.newlabel("L_h5"); Le = A.newlabel("L_he")
    A(f"s_cmp_eq_u32 s{S_WAVE}, 4")
    A(f"s_cbranch_scc1 {L4}")
    A(f"s_cmp_eq_u32 s{S_WAVE}, 5")
    A(f"s_cbranch_scc1 {L5}")
    A(f"s_branch {Le}")
    A.label(L4)
    A(f"s_lshl_b32 s{T+1}, s77, 10")
    A("v_lshlrev_b32 v10, 4, v0")
    A(f"v_add_u32 v11, s{T+1}, v10")
    add64(T+2, S_WS, WS_SG)
    tagcheck_loop(lambda: A(f"global_load_dwordx4 {p4(12)}, v11, {sp(T+2)} sc1"), [13, 15], 16, 17, sleep=4)
    A("v_lshlrev_b32 v20, 16, v12"); A(f"v_and_b32 v21, s{S_MASK}, v12")
    A("v_lshlrev_b32 v22, 16, v14"); A(f"v_and_b32 v23, s{S_MASK}, v14")
    A("v_rcp_f32 v21, v21"); A("v_rcp_f32 v23, v23")
    A(f"v_add_u32 v10, {L_ST}, v10")
    A("s_nop 0")
    A(f"ds_write_b128 v10, {p4(20)}")
    A(f"s_branch {Le}")
    A.label(L5)
    A("v_and_b32 v10, 7, v0")
    A("v_lshlrev_b32 v11, 3, v10")
    add64(T+2, S_WS, WS_SEL)
    tagcheck_loop(lambda: A(f"global_load_dwordx2 v[12:13], v11, {sp(T+2)} sc1"), [13], 16, 17, sleep=4)
    A("v_and_b32 v12, 0x7ff, v12")
    A(f"s_lshl_b32 s{T+1}, s77, 7")
    A(f"v_subrev_u32 v12, s{T+1}, v12")
    A("v_cmp_gt_u32 vcc, 128, v12")
    A("v_or_b32 v13, 0x80, v10")
    A(f"v_add_u32 v12, {L_SELT}, v12")
    A("s_and_b32 vcc_lo, vcc_lo, 0xff")
    A("s_mov_b32 vcc_hi, 0")
    A("s_mov_b64 exec, vcc")
    Lk = A.newlabel("L_nsel")
    A(f"s_cbranch_execz {Lk}")
    A("ds_write_b8 v12, v13")
    A.label(Lk)
    A("s_mov_b64 exec, -1")
    A.label(Le)
    A("s_waitcnt vmcnt(0) lgkmcnt(0)")
    A(f"v_mov_b32 v10, {L_MC}")
    A("v_mov_b32 v11, 1")
    A("s_mov_b64 exec, 1")
    A("ds_add_u32 v10, v11 offset:4")
    A("s_mov_b64 exec, -1")
    stamp(5)
    if "dpf" in OPTS:
        for i, ins in enumerate(DPF_CODE):
            if i % 4 == 0: A(f"v_add_u32 v18, {4096*(i//4)}, v19")
            A(ins)
    lds_spin(0, 4, 10, 11, sleep=2)
    stamp(6)

def conv_epilogue():
    T = S_T
    A("; ---- epilogue ----")
    lds_spin(4, 4, 10, 11, sleep=1)
    A("v_and_b32 v2, 7, v0"); A("v_lshrrev_b32 v1, 3, v0")
    A(f"s_and_b32 s{T+1}, s{S_WAVE}, 1"); A(f"s_lshl_b32 s{T+1}, s{T+1}, 3")
    A(f"v_add_u32 v6, s{T+1}, v2")
    A(f"s_lshr_b32 s{T+2}, s{S_WAVE}, 1"); A(f"s_lshl_b32 s{T+2}, s{T+2}, 3")
    A(f"v_add_u32 v7, s{T+2}, v1")
    A(f"s_lshl_b32 s{T+1}, s76, 19")
    A(f"s_lshl_b32 s{T+2}, s77, 9")
    A(f"s_add_u32 s{T+1}, s{T+1}, s{T+2}")
    A("v_lshlrev_b32 v8, 14, v7")
    A("v_lshl_add_u32 v8, v6, 5, v8")
    A(f"v_add_u32 v8, s{T+1}, v8")
    A("v_add_u32 v9, 8192, v8")
    add64(62, S_WS, WS_YG)
    A(f"v_mul_u32_u24 v10, {TBLK}, v6")
    A("v_lshl_add_u32 v10, v7, 2, v10")
    A(f"v_add_u32 v11, {L_TQ}, v10")
    XR = 16
    for i in range(8): A(f"ds_read_b32 v{XR+i}, v11 offset:{128*i}")
    A(f"s_lshl_b32 s{T+1}, s{S_WAVE}, 11")
    A("v_lshlrev_b32 v12, 5, v0")
    A(f"v_add_u32 v12, s{T+1}, v12")
    A(f"v_add_u32 v12, {L_KVL}, v12")
    KV = 24
    A(f"ds_read_b128 {p4(KV)}, v12")
    A(f"ds_read_b128 {p4(KV+4)}, v12 offset:16")
    A("v_lshlrev_b32 v12, 6, v6")
    A(f"v_add_u32 v12, {L_ST}, v12")
    SR = 32
    for i in range(4): A(f"ds_read_b128 {p4(SR+4*i)}, v12 offset:{16*i}")
    A("v_lshlrev_b32 v12, 3, v6")
    A(f"v_add_u32 v12, {L_SELT}, v12")
    A("ds_read_b64 v[48:49], v12")
    A(f"s_lshl_b32 s{T+1}, s76, 7")
    A("v_lshlrev_b32 v13, 2, v7")
    A(f"v_add_u32 v13, s{T+1}, v13")
    A(f"global_load_dword v50, v13, {sp(S_D)}")
    YR = 64
    def ld():
        A(f"global_load_dwordx4 {p4(YR)}, v8, {sp(62)} sc1")
        A(f"global_load_dwordx4 {p4(YR+4)}, v8, {sp(62)} offset:16 sc1")
        A(f"global_load_dwordx4 {p4(YR+8)}, v9, {sp(62)} sc1")
        A(f"global_load_dwordx4 {p4(YR+12)}, v9, {sp(62)} offset:16 sc1")
    A("s_waitcnt lgkmcnt(0)")
    XN, SS = 80, 96
    for i in range(8):
        m, rs = SR+2*i, SR+2*i+1
        A(f"v_lshlrev_b32 v{SS+2*i}, 16, v{XR+i}"); A(f"v_and_b32 v{SS+2*i+1}, s{S_MASK}, v{XR+i}")
        A(f"v_sub_f32 v{XN+2*i}, v{SS+2*i}, v{m}"); A(f"v_sub_f32 v{XN+2*i+1}, v{SS+2*i+1}, v{m}")
        A(f"v_mul_f32 v{XN+2*i}, v{XN+2*i}, v{rs}"); A(f"v_mul_f32 v{XN+2*i+1}, v{XN+2*i+1}, v{rs}")
        A(f"v_pk_add_f32 {p2(SS+2*i)}, {p2(SS+2*i)}, {p2(XN+2*i)}")
    stamp(7)
    tagcheck_loop(ld, [YR+2*j+1 for j in range(8)], 14, 52, sleep=1)
    A(f"v_lshlrev_b32 v52, 16, v50"); A(f"v_and_b32 v53, s{S_MASK}, v50")
    O = 112
    for i in range(8):
        for c in range(2):
            yr = YR + 8*c + 2*(i >> 1); kr = KV + 4*c + (i >> 1)
            t0, t1 = 54 + 2*c, 55 + 2*c
            if i & 1:
                A(f"v_and_b32 v{t0}, s{S_MASK}, v{yr}"); A(f"v_and_b32 v{t1}, s{S_MASK}, v{kr}")
            else:
                A(f"v_lshlrev_b32 v{t0}, 16, v{yr}"); A(f"v_lshlrev_b32 v{t1}, 16, v{kr}")
            A(f"v_fma_f32 v{t0}, v{t1}, v{52+c}, v{t0}")
            A(f"v_fma_f32 v{SS+2*i+c}, v{XN+2*i+c}, v{t0}, v{SS+2*i+c}")
        A(f"v_cvt_pk_bf16_f32 v{O+i}, v{SS+2*i}, v{SS+2*i+1}")
    A(f"v_add_u32 v11, {L_OT}, v10")
    for i in range(8): A(f"ds_write_b32 v11, v{O+i} offset:{128*i}")
    Lx = A.newlabel("L_nt1")
    A("v_or_b32 v12, v48, v49")
    A("v_cmp_ne_u32 vcc, 0, v12")
    A("s_nop 3")
    A("s_cmp_eq_u64 vcc, 0")
    A(f"s_cbranch_scc1 {Lx}")
    add64(64, S_WS, WS_T1G)
    A(f"s_lshl_b32 s{T+1}, s76, 6")
    A("v_lshlrev_b32 v13, 1, v7")
    A(f"v_add_u32 v13, s{T+1}, v13")
    for i in range(8):
        Li = A.newlabel("L_t1i")
        A(f"v_bfe_u32 v12, v{48 + (i >> 2)}, {8*(i & 3)}, 8")
        A("v_cmp_lt_u32 vcc, 0x7f, v12")
        A(f"s_and_saveexec_b64 {sp(T+12)}, vcc")
        A(f"s_cbranch_execz {Li}")
        A("v_and_b32 v12, 7, v12")
        A("v_mul_u32_u24 v12, 576, v12")
        A("v_add_u32 v12, v12, v13")
        A("v_lshlrev_b32 v12, 3, v12")
        A(f"v_sub_f32 v56, v{SS+2*i}, v{XN+2*i}")
        A(f"v_mov_b32 v57, s{S_NONCE}")
        A(f"v_sub_f32 v58, v{SS+2*i+1}, v{XN+2*i+1}")
        A(f"v_mov_b32 v59, s{S_NONCE}")
        A(f"global_store_dwordx4 v12, {p4(56)}, {sp(64)} sc1")
        A.label(Li)
        A(f"s_mov_b64 exec, {sp(T+12)}")
    A.label(Lx)
    A("s_waitcnt lgkmcnt(0)")
    A("s_barrier")
    A(f"s_lshl_b32 s{T+1}, s{S_WAVE}, 3")
    A(f"v_add_u32 v1, s{T+1}, v1")
    A("v_lshrrev_b32 v3, 3, v1")
    A(f"v_mul_u32_u24 v3, {TBLK}, v3")
    A("v_and_b32 v4, 7, v1")
    A("v_lshl_add_u32 v3, v4, 7, v3")
    A("v_lshl_add_u32 v3, v2, 4, v3")
    A(f"v_add_u32 v3, {L_OT}, v3")
    A(f"ds_read_b128 {p4(16)}, v3")
    A(f"ds_read_b128 {p4(20)}, v3 offset:{8*TBLK}")
    A(f"v_add_u32 v4, {L_SELT}, v1")
    A("ds_read_u8 v24, v4")
    A("ds_read_u8 v25, v4 offset:64")
    srd(SRD_O, S_OUT, 2359296)
    A(f"s_mul_i32 s{T+1}, s77, {128*1152}")
    A(f"s_lshl_b32 s{T+2}, s76, 7")
    A(f"s_add_u32 s{T+1}, s{T+1}, s{T+2}")
    A("v_mul_u32_u24 v5, 1152, v1")
    A("v_lshl_add_u32 v5, v2, 4, v5")
    A(f"v_add_u32 v5, s{T+1}, v5")
    A(f"v_add_u32 v6, {64*1152}, v5")
    A("s_waitcnt lgkmcnt(0)")
    for h, (va, vs, vd) in enumerate(((5, 24, 16), (6, 25, 20))):
        A(f"v_lshlrev_b32 v{vs}, 24, v{vs}")
        A(f"v_and_b32 v{vs}, 0x80000000, v{vs}")
        A(f"v_or_b32 v{va}, v{va}, v{vs}")
        A(f"buffer_store_dwordx4 {p4(vd)}, v{va}, s[{SRD_O}:{SRD_O+3}], 0 offen")
    stamp(9)
    tl(9, 7, 0)

def conv_wg():
    conv_tile()
    A(f"s_cmp_ge_u32 s{S_WAVE}, 4")
    A("s_cbranch_scc1 L_helper")
    conv_mfma_wave()
    A("s_branch L_epi")
    A.label("L_helper")
    conv_helper_prep()
    A.label("L_epi")
    conv_epilogue()
    A("s_branch L_fin")

M_WG = 0
M_WU = 73728
M_XS = 147456
XS_RS = 1168
M_H = M_XS + 8*XS_RS
H_RS = 144
M_GU = M_H + 8*H_RS
M_RED = M_GU
M_MISC = M_GU + 4096
M_END = M_MISC + 160
M_LIST = 0
S_DUMP = 16384

def moe_dma():
    T = S_T
    srd(SRD_K, S_WGT, 5308416)
    srd(SRD_V, S_WUP, 5308416)
    A("v_lshrrev_b32 v1, 3, v0")
    A("v_and_b32 v2, 7, v0")
    A("v_bfe_u32 v3, v0, 4, 1")
    A(f"s_and_b32 s{T+1}, s{S_WAVE}, 1")
    A(f"s_lshl_b32 s{T+1}, s{T+1}, 1")
    A(f"v_add_u32 v3, s{T+1}, v3")
    A("v_lshlrev_b32 v3, 1, v3")
    A("v_xor_b32 v2, v2, v3")
    A("v_mul_u32_u24 v1, 9216, v1")
    A("v_lshl_add_u32 v1, v2, 4, v1")
    A(f"s_lshl_b32 s{T+1}, s70, 7")
    A(f"v_add_u32 v1, s{T+1}, v1")
    A(f"s_mul_i32 s{T+3}, s{S_WAVE}, 73728")
    A(f"s_lshl_b32 s{T+4}, s{S_WAVE}, 10")
    A(f"s_mov_b32 s{T+5}, 0")
    L = A.newlabel("L_dma")
    A.label(L)
    A(f"s_add_u32 m0, s{T+4}, {M_WG}")
    A("s_nop 0")
    A(f"buffer_load_dwordx4 v1, s[{SRD_K}:{SRD_K+3}], s{T+3} offen {NT} lds")
    A(f"s_add_u32 m0, s{T+4}, {M_WU}")
    A(f"s_add_u32 s{T+5}, s{T+5}, 1")
    A(f"buffer_load_dwordx4 v1, s[{SRD_V}:{SRD_V+3}], s{T+3} offen {NT} lds")
    A(f"s_add_u32 s{T+3}, s{T+3}, {8*73728}")
    A(f"s_add_u32 s{T+4}, s{T+4}, {8*1024}")
    A(f"s_cmp_lt_u32 s{T+5}, 9")
    A(f"s_cbranch_scc1 {L}")

def moe_sel_wait():
    T = S_T
    A(f"s_lshl_b32 s{T+1}, s{S_WAVE}, 3")
    A(f"s_add_u32 s{T+1}, s{T+1}, {WS_SEL}")
    A(f"v_mov_b32 v3, s{T+1}")
    A("v_mov_b32 v4, 0")
    L = A.newlabel("L_sw"); Ld = A.newlabel("L_swd")
    A(f"s_mov_b32 s{T}, 0")
    A.label(L)
    A(f"global_load_dwordx2 v[16:17], v3, {sp(S_WS)} sc1")
    A(f"global_load_dword v30, v4, {sp(S_DBG)} sc1")
    A("s_waitcnt vmcnt(0)")
    A(f"v_readfirstlane_b32 s{S_NONCE}, v30")
    A(f"v_readfirstlane_b32 s{T+2}, v17")
    A(f"s_add_u32 s{T}, s{T}, 1")
    A(f"s_cmp_ge_u32 s{T}, {SPIN_MAX}")
    A(f"s_cbranch_scc1 {Ld}")
    A(f"s_cmp_eq_u32 s{S_NONCE}, 0")
    A(f"s_cbranch_scc1 {L}_s")
    A(f"s_cmp_eq_u32 s{T+2}, s{S_NONCE}")
    A(f"s_cbranch_scc1 {Ld}")
    A.label(L + "_s")
    A("s_sleep 3")
    A(f"s_branch {L}")
    A.label(Ld)

def moe_row_loads():
    T = S_T
    A("v_and_b32 v18, 0x7ff, v16")
    A("v_mul_u32_u24 v20, 1152, v18")
    A("v_and_b32 v21, 31, v0")
    A("v_mul_u32_u24 v21, 36, v21")
    A("v_add_u32 v20, v20, v21")
    A(f"global_load_dwordx4 {p4(24)}, v20, {sp(S_Q)}")
    A(f"global_load_dwordx4 {p4(28)}, v20, {sp(S_Q)} offset:16")
    A(f"global_load_dword v32, v20, {sp(S_Q)} offset:32")
    A("v_lshlrev_b32 v22, 3, v18")
    A(f"v_add_u32 v22, {WS_SG}, v22")
    A(f"global_load_dwordx2 v[40:41], v22, {sp(S_WS)} sc1")

def moe_xs_compute():
    T = S_T
    L = A.newlabel("L_sg"); Ld = A.newlabel("L_sgd")
    A(f"s_mov_b32 s{T}, 0")
    A.label(L)
    A(f"v_readfirstlane_b32 s{T+2}, v41")
    A(f"s_add_u32 s{T}, s{T}, 1")
    A(f"s_cmp_eq_u32 s{T+2}, s{S_NONCE}")
    A(f"s_cbranch_scc1 {Ld}")
    A(f"s_cmp_ge_u32 s{T}, {SPIN_MAX}")
    A(f"s_cbranch_scc1 {Ld}")
    A(f"global_load_dwordx2 v[40:41], v22, {sp(S_WS)} sc1")
    A("s_waitcnt vmcnt(0)")
    A(f"s_branch {L}")
    A.label(Ld)
    A(f"v_lshlrev_b32 v44, 16, v40")
    A(f"v_and_b32 v45, s{S_MASK}, v40")
    A("v_rcp_f32 v46, v45")
    A(f"v_and_b32 v52, s{S_MASK}, v16")
    A("v_fma_f32 v47, -v45, v46, 1.0")
    A("v_fma_f32 v46, v47, v46, v46")
    A(f"v_mul_f32 v52, 0x{f32bits(-1.4426950408889634):08x}, v52")
    A("v_exp_f32 v52, v52")
    for i in range(9):
        r = 24 + i
        t = 48 + 2*(i & 1)
        A(f"v_lshlrev_b32 v{t}, 16, v{r}")
        A(f"v_and_b32 v{t+1}, s{S_MASK}, v{r}")
        A(f"v_pk_add_f32 {p2(t)}, {p2(t)}, v[44:45] op_sel_hi:[1,0] neg_lo:[0,1] neg_hi:[0,1]")
        rnd(t); rnd(t+1)
        A(f"v_pk_mul_f32 {p2(t)}, {p2(t)}, v[46:47] op_sel_hi:[1,0]")
        A(f"v_cvt_pk_bf16_f32 v{r}, v{t}, v{t+1}")
    A("v_add_f32 v52, 1.0, v52")
    A("v_rcp_f32 v52, v52")
    A(f"s_mul_i32 s{T+4}, s{S_WAVE}, {XS_RS}")
    A(f"s_add_u32 s{T+4}, s{T+4}, {M_XS}")
    A("v_add_u32 v21, s%d, v21" % (T+4))
    rnd(52)
    A("s_mov_b64 exec, 0xffffffff")
    A("ds_write2_b32 v21, v24, v25 offset0:0 offset1:1")
    A("ds_write2_b32 v21, v26, v27 offset0:2 offset1:3")
    A("ds_write2_b32 v21, v28, v29 offset0:4 offset1:5")
    A("ds_write2_b32 v21, v30, v31 offset0:6 offset1:7")
    A("ds_write_b32 v21, v32 offset:32")
    A(f"s_lshl_b32 s{T+4}, s{S_WAVE}, 2")
    A(f"s_add_u32 s{T+4}, s{T+4}, {M_MISC+32}")
    A(f"v_mov_b32 v53, s{T+4}")
    A("s_mov_b64 exec, 1")
    A("ds_write_b32 v53, v16")
    A("ds_write_b32 v53, v52 offset:32")
    A("s_mov_b64 exec, -1")
    A(f"s_lshl_b32 s{T+1}, s{S_WAVE}, 6")
    A(f"v_add_u32 v1, s{T+1}, v0")

DRA, DRB = 64, 96
def moe_down_loads():
    T = S_T
    A("v_lshrrev_b32 v6, 4, v0")
    A("v_mul_u32_u24 v5, 9216, v6")
    A("v_and_b32 v6, 15, v0")
    A("v_lshl_add_u32 v5, v6, 3, v5")
    A(f"s_mul_i32 s{T+1}, s70, 73728")
    A(f"s_lshl_b32 s{T+2}, s{S_WAVE}, 7")
    A(f"s_add_u32 s{T+1}, s{T+1}, s{T+2}")
    A(f"v_add_u32 v5, s{T+1}, v5")
    srd(SRD_Q, S_WD, 5308416)
    def panel(R, extra):
        for ks in range(2):
            for jj in range(8):
                so = 36864*ks + 4608*(jj//4) + extra
                A(f"s_mov_b32 s{T+3}, {so}")
                r = R + 16*ks + 2*jj
                A(f"buffer_load_dwordx2 {p2(r)}, v5, s[{SRD_Q}:{SRD_Q+3}], s{T+3} offen offset:{1152*(jj%4)} {NT}")
    panel(DRA, 0)
    L = A.newlabel("L_np8")
    A(f"s_cmp_lg_u32 s{S_WAVE}, 0")
    A(f"s_cbranch_scc1 {L}")
    panel(DRB, 1024)
    A.label(L)

def down_perm(R, F):
    for ks in range(2):
        for e in range(4):
            sel = S_SELLO if (e & 1) == 0 else S_SELHI
            for q in range(4):
                A(f"v_perm_b32 v{F+16*ks+4*e+q}, v{R+16*ks+2*(2*q+1)+e//2}, v{R+16*ks+2*(2*q)+e//2}, s{sel}")

def moe_gateup_addr():
    T = S_T
    A(f"s_lshr_b32 s{T+1}, s{S_WAVE}, 2")
    A(f"s_and_b32 s{T+2}, s{S_WAVE}, 3")
    A("v_lshrrev_b32 v6, 4, v0")
    A("v_bfe_u32 v7, v0, 2, 2")
    A("v_and_b32 v8, 3, v0")
    A("v_lshrrev_b32 v9, 1, v7")
    A("v_and_b32 v10, 1, v6")
    A("v_lshl_add_u32 v9, v10, 1, v9")
    A("v_lshlrev_b32 v9, 1, v9")
    A("v_lshrrev_b32 v10, 1, v8")
    A(f"s_lshl_b32 s{T+3}, s{T+2}, 1")
    A(f"v_add_u32 v10, s{T+3}, v10")
    A("v_xor_b32 v10, v10, v9")
    A("v_lshlrev_b32 v34, 10, v6")
    A("v_lshl_add_u32 v34, v7, 7, v34")
    A("v_lshl_add_u32 v34, v10, 4, v34")
    A("v_and_b32 v8, 1, v8")
    A("v_lshl_add_u32 v34, v8, 3, v34")
    A(f"s_mul_i32 s{T+3}, s{T+1}, {M_WU}")
    A(f"v_add_u32 v34, s{T+3}, v34")
    A(f"v_add_u32 v35, {4096*9}, v34")

def moe_gateup_preload():
    for t in range(18):
        a, o = (34, 4096*t) if t < 9 else (35, 4096*(t-9))
        A(f"ds_read_b64_tr_b16 a[{4*t}:{4*t+1}], v{a} offset:{o}")
        A(f"ds_read_b64_tr_b16 a[{4*t+2}:{4*t+3}], v{a} offset:{o+512}")
        if t % 6 == 5: A("s_waitcnt lgkmcnt(2)")

def moe_gateup():
    T = S_T
    A(f"s_lshr_b32 s{T+1}, s{S_WAVE}, 2")
    A(f"s_and_b32 s{T+2}, s{S_WAVE}, 3")
    A("v_lshrrev_b32 v6, 4, v0")
    A("v_and_b32 v3, 7, v0")
    A(f"v_mul_u32_u24 v3, {XS_RS}, v3")
    A("v_lshl_add_u32 v3, v6, 4, v3")
    A(f"v_add_u32 v3, {M_XS}, v3")
    B0 = 80
    def rd(t):
        b = B0 + 4*(t % 12)
        A(f"ds_read_b128 a[{b}:{b+3}], v3 offset:{64*t}")
    for t in range(12): rd(t)
    for t in range(18):
        rem = min(17, t+11) - t
        A(f"s_waitcnt lgkmcnt({min(rem, 15)})")
        b = B0 + 4*(t % 12)
        acc = 8 + 4*(t & 1)
        cin = "0" if t < 2 else f"v[{acc}:{acc+3}]"
        A(f"v_mfma_f32_16x16x32_bf16 v[{acc}:{acc+3}], a[{4*t}:{4*t+3}], a[{b}:{b+3}], {cin}")
        if t + 12 < 18: rd(t+12)
    A("v_and_b32 v3, 15, v0")
    A("v_lshlrev_b32 v4, 8, v3")
    A("v_lshl_add_u32 v4, v6, 4, v4")
    A(f"s_lshl_b32 s{T+3}, s{T+1}, 11")
    A(f"s_lshl_b32 s{T+4}, s{T+2}, 6")
    A(f"s_add_u32 s{T+3}, s{T+3}, s{T+4}")
    A(f"s_add_u32 s{T+3}, s{T+3}, {M_GU}")
    A(f"v_add_u32 v4, s{T+3}, v4")
    A("v_cmp_gt_u32 vcc, 8, v3")
    A(f"s_and_saveexec_b64 {sp(T+12)}, vcc")
    A("s_nop 1")
    A("v_pk_add_f32 v[8:9], v[8:9], v[12:13]")
    A("v_pk_add_f32 v[10:11], v[10:11], v[14:15]")
    A(f"ds_write_b128 v4, {p4(8)}")
    A(f"s_mov_b64 exec, {sp(T+12)}")

def moe_h_and_down_stage():
    T = S_T
    A("v_lshlrev_b32 v2, 2, v1")
    A(f"v_add_u32 v2, {M_GU}, v2")
    A("ds_read_b32 v8, v2")
    A("ds_read_b32 v9, v2 offset:2048")
    A("v_lshrrev_b32 v3, 6, v1")
    A(f"v_mul_u32_u24 v3, {H_RS}, v3")
    A("v_lshl_add_u32 v3, v0, 1, v3")
    A(f"v_add_u32 v3, {M_H}, v3")
    A("s_waitcnt lgkmcnt(0)")
    rnd(8); rnd(9)
    A(f"v_mul_f32 v10, 0x{f32bits(-1.4426950408889634):08x}, v8")
    A("v_exp_f32 v10, v10")
    A("s_nop 0")
    A("v_add_f32 v10, 1.0, v10")
    A("v_rcp_f32 v10, v10")
    A("s_nop 0")
    A("v_mul_f32 v10, v8, v10")
    rnd(10)
    A("v_mul_f32 v10, v10, v9")
    A("v_cvt_pk_bf16_f32 v10, v10, v10")
    A("ds_write_b16 v3, v10")
    A("s_waitcnt vmcnt(0)")
    down_perm(DRA, 32)
    L = A.newlabel("L_np8b")
    A(f"s_cmp_lg_u32 s{S_WAVE}, 0")
    A(f"s_cbranch_scc1 {L}")
    down_perm(DRB, 64)
    A.label(L)

def moe_down():
    T = S_T
    A("v_and_b32 v2, 7, v0")
    A(f"v_mul_u32_u24 v2, {H_RS}, v2")
    A("v_lshrrev_b32 v6, 4, v0")
    A("v_lshl_add_u32 v2, v6, 4, v2")
    A(f"v_add_u32 v2, {M_H}, v2")
    A(f"ds_read_b128 {p4(16)}, v2")
    A(f"ds_read_b128 {p4(20)}, v2 offset:64")
    A("v_and_b32 v4, 15, v0")
    A("v_lshlrev_b32 v5, 4, v4")
    A("v_lshl_add_u32 v5, v6, 9, v5")
    A(f"s_mul_i32 s{T+1}, s70, 18432")
    A(f"s_lshl_b32 s{T+2}, s{S_WAVE}, 11")
    A(f"s_add_u32 s{T+1}, s{T+1}, s{T+2}")
    A(f"v_add_u32 v5, s{T+1}, v5")
    add64(T+2, S_WS, WS_PART)
    A(f"s_mov_b32 s{T+4}, 0x07060503"); A(f"s_mov_b32 s{T+5}, 0x06050302"); A(f"s_mov_b32 s{T+6}, 0x05030201")
    A("v_cmp_gt_u32 vcc, 8, v4")
    A(f"s_mov_b64 {sp(T+12)}, vcc")
    A("s_waitcnt lgkmcnt(0)")
    def panel(F, ACC, G, vaddr):
        for e in range(4):
            A(f"v_mfma_f32_16x16x32_bf16 {p4(ACC+4*e)}, {p4(F+4*e)}, {p4(16)}, 0")
        for e in range(4):
            A(f"v_mfma_f32_16x16x32_bf16 {p4(ACC+4*e)}, {p4(F+16+4*e)}, {p4(20)}, {p4(ACC+4*e)}")
        A("s_nop 7"); A("s_nop 1")
        for r in range(4):
            g = G + 4*r
            a, b, c, d = ACC+r, ACC+4+r, ACC+8+r, ACC+12+r
            A(f"v_perm_b32 v{g}, v{a}, v{b}, s{T+4}")
            A(f"v_perm_b32 v{g+1}, v{b}, v{c}, s{T+5}")
            A(f"v_perm_b32 v{g+2}, v{c}, v{d}, s{T+6}")
            A(f"v_mov_b32 v{g+3}, s{S_NONCE}")
        A(f"s_mov_b64 exec, {sp(T+12)}")
        for r in range(4):
            A(f"global_store_dwordx4 v{vaddr}, {p4(G+4*r)}, {sp(T+2)} offset:{128*r} sc1")
        A("s_mov_b64 exec, -1")
    panel(32, 96, 112, 5)
    L = A.newlabel("L_np8c")
    A(f"s_cmp_lg_u32 s{S_WAVE}, 0")
    A(f"s_cbranch_scc1 {L}")
    A(f"v_add_u32 v7, {8*2048}, v5")
    panel(64, 96, 32, 7)
    A.label(L)

def moe_reduce():
    T = S_T
    A("v_lshrrev_b32 v6, 4, v0")
    A(f"s_mul_i32 s{T+1}, s{S_WAVE}, 9")
    A(f"v_add_u32 v1, s{T+1}, v6")
    A(f"v_mul_u32_u24 v1, 18432, v1")
    A("v_and_b32 v2, 15, v0")
    A("v_lshl_add_u32 v1, v2, 4, v1")
    A(f"s_lshl_b32 s{T+1}, s70, 8")
    A(f"v_add_u32 v1, s{T+1}, v1")
    A(f"v_add_u32 v3, {4*18432}, v1")
    A(f"v_mul_u32_u24 v4, 18432, v6")
    A(f"v_sub_u32 v4, v1, v4")
    A(f"v_add_u32 v4, {8*18432}, v4")
    A("v_lshrrev_b32 v50, 2, v0")
    A("v_and_b32 v51, 3, v0")
    A(f"s_lshl_b32 s{T+1}, s70, 4")
    A(f"v_add_u32 v52, s{T+1}, v50")
    A("v_and_b32 v53, 7, v52")
    A("v_lshrrev_b32 v54, 3, v52")
    A("v_lshl_add_u32 v54, v54, 2, v51")
    A("v_mul_u32_u24 v55, 576, v53")
    A("v_add_u32 v55, v55, v54")
    A("v_lshlrev_b32 v55, 3, v55")
    A(f"v_add_u32 v55, {WS_T1G}, v55")
    add64(T+2, S_WS, WS_PART)
    def ld():
        A(f"global_load_dwordx4 {p4(16)}, v1, {sp(T+2)} sc1")
        A(f"global_load_dwordx4 {p4(20)}, v3, {sp(T+2)} sc1")
        A(f"global_load_dwordx4 {p4(24)}, v4, {sp(T+2)} sc1")
        A(f"global_load_dwordx2 v[28:29], v55, {sp(S_WS)} sc1")
    tagcheck_loop(ld, [19, 23, 27, 29], 10, 12, sleep=1)
    stamp(8)
    tl(14, 151, 0)
    A(f"s_mov_b32 s{T+4}, 0x0403020c"); A(f"s_mov_b32 s{T+5}, 0x0504030c"); A(f"s_mov_b32 s{T+6}, 0xffffff00")
    U = 32
    for i in range(3):
        g = 16 + 4*i; u = U + 4*i
        A(f"v_and_b32 v{u}, s{T+6}, v{g}")
        A(f"v_perm_b32 v{u+1}, v{g}, v{g+1}, s{T+4}")
        A(f"v_perm_b32 v{u+2}, v{g+1}, v{g+2}, s{T+5}")
        A(f"v_lshlrev_b32 v{u+3}, 8, v{g+2}")
    for r in range(4):
        A(f"v_add_f32 v{U+r}, v{U+r}, v{U+4+r}")
    for swap in ("v_permlane32_swap_b32", "v_permlane16_swap_b32"):
        for r in range(4): A(f"v_mov_b32 v{44+r}, v{U+r}")
        A("s_nop 1")
        for r in range(4): A(f"{swap} v{U+r}, v{44+r}")
        for r in range(4): A(f"v_add_f32 v{U+r}, v{U+r}, v{44+r}")
    for r in range(4):
        A(f"v_add_f32 v{U+r}, v{U+r}, v{U+8+r}")
    A(f"s_lshl_b32 s{T+1}, s{S_WAVE}, 8")
    A("v_lshlrev_b32 v5, 4, v2")
    A(f"v_add_u32 v5, s{T+1}, v5")
    A(f"v_add_u32 v5, {M_RED}, v5")
    A("s_mov_b64 exec, 0xffff")
    A(f"ds_write_b128 v5, {p4(U)}")
    A("s_mov_b64 exec, -1")
    A("s_waitcnt lgkmcnt(0)")
    A("s_barrier")
    L = A.newlabel("L_nofin")
    A(f"s_cmp_lg_u32 s{S_WAVE}, 0")
    A(f"s_cbranch_scc1 {L}")
    A("v_lshlrev_b32 v6, 4, v50")
    A("v_lshl_add_u32 v6, v51, 2, v6")
    A(f"v_add_u32 v6, {M_RED}, v6")
    for w in range(8): A(f"ds_read_b32 v{16+w}, v6 offset:{256*w}")
    A(f"v_mul_u32_u24 v7, {XS_RS}, v53")
    A("v_lshl_add_u32 v7, v54, 1, v7")
    A(f"v_add_u32 v7, {M_XS}, v7")
    A("ds_read_u16 v24, v7")
    A("v_lshlrev_b32 v8, 2, v53")
    A(f"v_add_u32 v8, {M_MISC}, v8")
    A("ds_read_b32 v25, v8 offset:32")
    A("ds_read_b32 v26, v8 offset:64")
    A("v_mov_b32 v5, v54")
    A("s_waitcnt lgkmcnt(0)")
    A("v_add_f32 v16, v16, v17"); A("v_add_f32 v18, v18, v19"); A("v_add_f32 v20, v20, v21"); A("v_add_f32 v22, v22, v23")
    A("v_add_f32 v16, v16, v18"); A("v_add_f32 v20, v20, v22"); A("v_add_f32 v16, v16, v20")
    rnd(16)
    A("v_mul_f32 v16, v16, v26")
    rnd(16)
    A("v_lshlrev_b32 v24, 16, v24")
    A("v_add_f32 v16, v24, v16")
    rnd(16)
    A("v_add_f32 v16, v28, v16")
    A("v_cvt_pk_bf16_f32 v16, v16, v16")
    A("v_and_b32 v25, 0x7ff, v25")
    A("v_mul_u32_u24 v25, 1152, v25")
    A("v_lshl_add_u32 v25, v5, 1, v25")
    A(f"global_store_short v25, v16, {sp(S_OUT)}")
    A.label(L)

def lds_init_list():
    T = S_T
    A(f"s_lshl_b32 s{T+1}, s{S_WAVE}, 10")
    A("v_lshlrev_b32 v110, 4, v0")
    A(f"v_add_u32 v111, s{T+1}, v110")
    A(f"v_add_u32 v111, {M_LIST}, v111")
    for i in range(4): A(f"v_mov_b32 v{112+i}, 0xff800000")
    A(f"ds_write_b128 v111, {p4(112)}")
    L0 = A.newlabel("L_ni")
    A(f"s_cmp_lg_u32 s{S_WAVE}, 0")
    A(f"s_cbranch_scc1 {L0}")
    A(f"v_add_u32 v111, {M_LIST+8192}, v110")
    A("s_mov_b64 exec, 0xf")
    A(f"ds_write_b128 v111, {p4(112)}")
    A("s_mov_b64 exec, -1")
    for i in range(4): A(f"v_mov_b32 v{116+i}, 0")
    A(f"v_add_u32 v111, {M_MISC}, v110")
    A("s_mov_b64 exec, 0x3ff")
    A(f"ds_write_b128 v111, {p4(116)}")
    A("s_mov_b64 exec, -1")
    A.label(L0)

def sel_top8():
    T = S_T
    A(f"s_lshl_b32 s{T+1}, s{S_WAVE}, 6")
    A(f"v_add_u32 v1, s{T+1}, v0")
    A("v_lshlrev_b32 v2, 5, v1")
    add64(T+2, S_WS, WS_RG)
    K = 16
    def ld():
        for i in range(2):
            A(f"global_load_dwordx4 {p4(K+4*i)}, v2, {sp(T+2)} offset:{16*i} sc1")
    tagcheck_loop(ld, [K+2*i+1 for i in range(4)], 10, 12, sleep=1)
    stamp(5)
    tl(10, 255, 0)
    keys = [K+2*i for i in range(4)]
    A(f"v_max3_f32 v40, v{keys[0]}, v{keys[1]}, v{keys[2]}")
    A(f"v_max_f32 v40, v40, v{keys[3]}")
    for sh in (8, 4, 2, 1):
        A("s_nop 1")
        A(f"v_max_f32_dpp v40, v40, v40 row_ror:{sh} row_mask:0xf bank_mask:0xf")
    A("s_nop 1")
    A(f"v_readlane_b32 s{T+4}, v40, 16")
    A(f"v_readlane_b32 s{T+5}, v40, 32")
    A(f"v_readlane_b32 s{T+6}, v40, 48")
    A("s_nop 1")
    A(f"v_max_f32 v40, s{T+4}, v40")
    A(f"v_max_f32 v40, s{T+5}, v40")
    A(f"v_max_f32 v40, s{T+6}, v40")
    A(f"s_lshl_b32 s{T+4}, s{S_WAVE}, 2")
    A(f"s_add_u32 s{T+4}, s{T+4}, {M_MISC+96}")
    A(f"v_mov_b32 v43, s{T+4}")
    A("s_mov_b64 exec, 1")
    A(f"ds_write_b32 v43, v40")
    A("s_mov_b64 exec, -1")
    A("s_waitcnt lgkmcnt(0)")
    A("s_barrier")
    A(f"v_mov_b32 v43, {M_MISC+96}")
    A(f"ds_read_b128 {p4(44)}, v43")
    A(f"ds_read_b128 {p4(48)}, v43 offset:16")
    A("s_waitcnt lgkmcnt(0)")
    A("v_min3_f32 v40, v44, v45, v46")
    A("v_min3_f32 v41, v47, v48, v49")
    A("v_min3_f32 v40, v40, v50, v51")
    A("v_min_f32 v40, v40, v41")
    A("v_mov_b32 v41, 0")
    for i in range(4):
        A(f"v_cmp_ge_f32 {sp(T+4+2*i)}, v{keys[i]}, v40")
    for q in range(4):
        A(f"v_addc_co_u32 v41, vcc, 0, v41, {sp(T+4+2*q)}")
    A(f"v_mov_b32 v43, {M_MISC}")
    A("v_cmp_lt_u32 vcc, 0, v41")
    A(f"s_and_saveexec_b64 {sp(T+12)}, vcc")
    A("ds_add_rtn_u32 v42, v43, v41")
    A(f"s_mov_b64 exec, {sp(T+12)}")
    A("s_waitcnt lgkmcnt(0)")
    A("v_lshlrev_b32 v42, 2, v42")
    A(f"v_add_u32 v42, {M_LIST}, v42")
    A(f"v_mov_b32 v43, {S_DUMP}")
    for i in range(4):
        A(f"v_cndmask_b32 v44, v43, v42, {sp(T+4+2*i)}")
        A(f"v_cndmask_b32 v45, 0, 4, {sp(T+4+2*i)}")
        A(f"ds_write_b32 v44, v{keys[i]}")
        A(f"v_add_u32 v42, v42, v45")
    A("s_waitcnt lgkmcnt(0)")
    A("s_barrier")
    A(f"v_mov_b32 v43, {M_MISC}")
    A("ds_read_b32 v44, v43")
    A("s_waitcnt lgkmcnt(0)")
    A(f"v_readfirstlane_b32 s{T+8}, v44")
    A(f"s_mov_b32 s{T+9}, 0")
    Lc = A.newlabel("L_chunk"); Lj = A.newlabel("L_j")
    A.label(Lc)
    A(f"v_add_u32 v44, s{T+9}, v0")
    A("v_lshlrev_b32 v44, 2, v44")
    A(f"v_add_u32 v44, {M_LIST}, v44")
    A("ds_read_b32 v46, v44")
    A("v_mov_b32 v47, 0")
    A(f"v_mov_b32 v45, {M_LIST}")
    A(f"s_mov_b32 s{T+10}, 0")
    A.label(Lj)
    A(f"ds_read_b128 {p4(48)}, v45")
    A(f"ds_read_b128 {p4(52)}, v45 offset:16")
    A("v_add_u32 v45, 32, v45")
    A(f"s_add_u32 s{T+10}, s{T+10}, 8")
    A("s_waitcnt lgkmcnt(1)")
    for q in range(4):
        A(f"v_cmp_gt_f32 {sp(T+2*q)}, v{48+q}, v46")
    for q in range(4):
        A(f"v_addc_co_u32 v47, vcc, 0, v47, {sp(T+2*q)}")
    A("s_waitcnt lgkmcnt(0)")
    for q in range(4):
        A(f"v_cmp_gt_f32 {sp(T+2*q)}, v{52+q}, v46")
    for q in range(4):
        A(f"v_addc_co_u32 v47, vcc, 0, v47, {sp(T+2*q)}")
    A(f"s_cmp_lt_u32 s{T+10}, s{T+8}")
    A(f"s_cbranch_scc1 {Lj}")
    A(f"v_add_u32 v44, s{T+9}, v0")
    A(f"v_cmp_gt_u32 vcc, s{T+8}, v44")
    A(f"v_cmp_gt_u32 {sp(T)}, 8, v47")
    A("s_nop 1")
    A(f"s_and_b64 vcc, vcc, {sp(T)}")
    A(f"s_and_saveexec_b64 {sp(T+12)}, vcc")
    A("v_lshlrev_b32 v47, 2, v47")
    A(f"v_add_u32 v47, {M_MISC+32}, v47")
    A("ds_write_b32 v47, v46")
    A(f"s_mov_b64 exec, {sp(T+12)}")
    A(f"s_add_u32 s{T+9}, s{T+9}, 64")
    A(f"s_cmp_lt_u32 s{T+9}, s{T+8}")
    A(f"s_cbranch_scc1 {Lc}")
    A("s_waitcnt lgkmcnt(0)")
    stamp(6)

def sel_publish():
    T = S_T
    L = A.newlabel("L_sp")
    A(f"s_cmp_lg_u32 s{S_WAVE}, 0")
    A(f"s_cbranch_scc1 {L}")
    A("v_lshlrev_b32 v1, 2, v0")
    A(f"v_add_u32 v1, {M_MISC+32}, v1")
    A("s_mov_b64 exec, 0xff")
    A("ds_read_b32 v2, v1")
    add64(T+2, S_WS, WS_SEL)
    A(f"v_mov_b32 v3, s{S_NONCE}")
    A("v_lshlrev_b32 v4, 3, v0")
    A("s_waitcnt lgkmcnt(0)")
    A(f"global_store_dwordx2 v4, v[2:3], {sp(T+2)} sc1")
    A("s_mov_b64 exec, -1")
    A.label(L)
    stamp(7)
    tl(11, 255, 0)

def ln_pass(stok):
    ln_loads(stok, LN_Q, True)
    A("v_mov_b32 v120, 0")
    A(f"global_load_dword v121, v120, {sp(S_DBG)} sc1")
    A("s_waitcnt vmcnt(1)")
    def hook():
        Lhn = A.newlabel("L_lnn")
        A("s_waitcnt vmcnt(0)")
        A(f"v_readfirstlane_b32 s{S_NONCE}, v121")
        A(f"s_cmp_lg_u32 s{S_NONCE}, 0")
        A(f"s_cbranch_scc1 {Lhn}")
        get_nonce(124)
        A.label(Lhn)
    ln_compute_publish(LN_Q, 3, True, hook=hook)

def spare_wg():
    T = S_T
    A(f"s_sub_u32 s69, s69, {NMOE}")
    A("s_mul_i32 s68, s69, 24")
    A(f"s_lshl_b32 s{T+1}, s{S_WAVE}, 2")
    A(f"s_add_u32 s68, s68, s{T+1}")
    A("s_add_u32 s68, s68, 1152")
    Le = A.newlabel("L_lne")
    A(f"s_cmp_ge_u32 s{S_WAVE}, 6")
    A(f"s_cbranch_scc1 {Le}")
    A("s_cmp_ge_u32 s68, 2048")
    A(f"s_cbranch_scc1 {Le}")
    ln_pass(68)
    A.label(Le)
    stamp(4)
    A(f"s_cmp_lg_u32 s69, {SELIDX}")
    A("s_cbranch_scc1 L_fin")
    lds_init_list()
    get_nonce(124)
    A("s_waitcnt lgkmcnt(0)")
    A("s_barrier")
    sel_top8()
    sel_publish()
    A("s_branch L_fin")

def moe_wg():
    T = S_T
    A(f"s_sub_u32 s69, s{S_WG}, {NCONV}")
    A(f"s_cmp_ge_u32 s69, {NMOE}")
    A("s_cbranch_scc1 L_spare")
    A("s_and_b32 s70, s69, 7")
    A("s_mul_i32 s70, s70, 9")
    A(f"s_lshr_b32 s{T+1}, s69, 3")
    A(f"s_add_u32 s70, s70, s{T+1}")
    Lm = A.newlabel("L_mln")
    A(f"s_cmp_ge_u32 s{S_WAVE}, 4")
    A(f"s_cbranch_scc1 {Lm}")
    A("s_lshl_b32 s68, s69, 4")
    A(f"s_lshl_b32 s{T+1}, s{S_WAVE}, 2")
    A(f"s_add_u32 s68, s68, s{T+1}")
    ln_pass(68)
    A.label(Lm)
    if "mbar" in OPTS: A("s_barrier")
    stamp(3)
    moe_dma()
    A("s_waitcnt vmcnt(4)")
    stamp(4)
    moe_sel_wait()
    stamp(5)
    tl(12, 151, 7)
    moe_row_loads()
    A("s_barrier")
    moe_down_loads()
    moe_gateup_addr()
    moe_gateup_preload()
    Lq = A.newlabel("L_w32")
    A(f"s_cmp_lg_u32 s{S_WAVE}, 0")
    A(f"s_cbranch_scc1 {Lq}")
    A("s_waitcnt vmcnt(32)")
    A.label(Lq)
    A(f"s_cmp_eq_u32 s{S_WAVE}, 0")
    A(f"s_cbranch_scc1 {Lq}_b")
    A("s_waitcnt vmcnt(16)")
    A.label(Lq + "_b")
    moe_xs_compute()
    stamp(6)
    tl(13, 151, 7)
    A("s_waitcnt lgkmcnt(0)")
    A("s_barrier")
    moe_gateup()
    A("s_waitcnt lgkmcnt(0)")
    A("s_barrier")
    moe_h_and_down_stage()
    A("s_waitcnt lgkmcnt(0)")
    A("s_barrier")
    stamp(7)
    moe_down()
    moe_reduce()
    A("s_branch L_fin")
    A.label("L_spare")
    spare_wg()

def main():
    prologue()
    A(f"s_cmp_ge_u32 s{S_WG}, {NCONV}")
    A("s_cbranch_scc1 L_moe")
    conv_wg()
    A.label("L_moe")
    moe_wg()
    A.label("L_fin")
    tl(15, 151, 0)
    prof_end()
    A.label("L_end")
    A("s_endpgm")

main()
K = NAME + "_kernel"
LDS = max(L_CONV_END, M_END)
txt = HDR + f"; @launch grid=(256,1,1) block=(512,1,1) lds={LDS}\n" + '.amdgcn_target "amdgcn-amd-amdhsa--gfx950"\n.text\n' + head(K) + A.text() + kd(K, 256, 102, 128, "  .amdhsa_float_denorm_mode_32 3\n")
open(OUTFN, "w").write(txt)
print("wrote", OUTFN, len(txt), "LDS", LDS)
```

```python
import sys, struct, os
sys.path.insert(0, "dev")
from asmlib import *

OUTFN = sys.argv[1] if len(sys.argv) > 1 else "k.s"
OPTS = set(sys.argv[2:])
PROF = "prof" in OPTS
NT = "nt" if "nt" in OPTS else ""

WS_KVT = 0x000000
WS_XT = 0x240000
WS_RG = 0x480000
WS_SG = 0x484000
WS_FL = 0x488000
WS_FL2 = 0x488800
WS_SEL = 0x489800
WS_T1G = 0x48A000
WS_XSG = 0x494000
WS_PART = 0x4A0000
WS_PROF = 0x800000
WS_YG = 0x1000000
SPIN_MAX = 2000 if "dbgB" in OPTS else 400000
NCONV, NMOE = 144, 72
NLN = 40
SELIDX = 39

S_WG, S_WAVE = 2, 3
S_Q, S_K, S_V, S_SK, S_H, S_D, S_BX, S_WR, S_WGT, S_WUP, S_WD, S_OUT, S_DBG, S_WS = 4, 6, 8, 10, 12, 14, 16, 18, 20, 22, 24, 26, 28, 30
SRD_K, SRD_V, SRD_Q, SRD_O = 32, 36, 40, 44
S_NONCE = 48
S_MASK, S_SELLO, S_SELHI = 50, 51, 52
S_T = 54

A = Asm()
def f32bits(x): return struct.unpack("<I", struct.pack("<f", x))[0]
def p2(r): return f"v[{r}:{r+1}]"
def p4(r): return f"v[{r}:{r+3}]"
def sp(r): return f"s[{r}:{r+1}]"

NSTAMP = 10
def stamp(i):
    if PROF: A(f"s_memtime s[{80+2*i}:{81+2*i}]")
def prof_begin():
    if PROF:
        A("s_memrealtime s[100:101]")
        stamp(0)
        for i in range(1, NSTAMP):
            A(f"s_mov_b64 s[{80+2*i}:{81+2*i}], 0")
def prof_end():
    if not PROF: return
    A(f"s_memrealtime s[{S_T+2}:{S_T+3}]")
    A("s_waitcnt lgkmcnt(0)")
    A(f"s_lshl_b32 s{S_T}, s{S_WG}, 3")
    A(f"s_add_u32 s{S_T}, s{S_T}, s{S_WAVE}")
    A(f"s_lshl_b32 s{S_T}, s{S_T}, 6")
    A(f"s_add_u32 s{S_T}, s{S_T}, {WS_PROF}")
    A(f"v_mov_b32 v1, s{S_T}")
    A("s_mov_b64 exec, 1")
    A("v_mov_b32 v2, s100")
    A(f"global_store_dword v1, v2, {sp(S_WS)}")
    A(f"v_mov_b32 v2, s{S_T+2}")
    A(f"global_store_dword v1, v2, {sp(S_WS)} offset:4")
    for i in range(1, NSTAMP):
        A(f"s_sub_u32 s{S_T+1}, s{80+2*i}, s80")
        A(f"v_mov_b32 v2, s{S_T+1}")
        A(f"global_store_dword v1, v2, {sp(S_WS)} offset:{4+4*i}")
    A("s_mov_b64 exec, -1")

TL = "tl" in OPTS
TLSET = os.environ.get("TLSET", "A")
def tl(slot, wg, wave, setname="A"):
    if not TL or setname != TLSET: return
    L = A.newlabel("L_tl")
    A(f"s_cmp_lg_u32 s{S_WG}, {wg}")
    A(f"s_cbranch_scc1 {L}")
    A(f"s_cmp_lg_u32 s{S_WAVE}, {wave}")
    A(f"s_cbranch_scc1 {L}")
    A("s_memrealtime s[98:99]")
    A("s_mov_b64 s[100:101], exec")
    A("s_mov_b64 exec, 1")
    A("v_readfirstlane_b32 s96, v126")
    A("v_readfirstlane_b32 s97, v127")
    A(f"v_mov_b32 v126, {4*slot}")
    A("s_waitcnt lgkmcnt(0)")
    A("v_mov_b32 v127, s98")
    A(f"global_store_dword v126, v127, {sp(S_DBG)}")
    A("s_nop 4")
    A("v_mov_b32 v126, s96")
    A("v_mov_b32 v127, s97")
    A("s_mov_b64 exec, s[100:101]")
    A.label(L)

def rnd(v, src=None):
    A(f"v_cvt_pk_bf16_f32 v{v}, 0, v{v if src is None else src}")
def srd(dst, base, nbytes):
    A(f"s_mov_b32 s{dst}, s{base}")
    A(f"s_and_b32 s{dst+1}, s{base+1}, 0xffff")
    A(f"s_mov_b32 s{dst+2}, {nbytes}")
    A(f"s_mov_b32 s{dst+3}, 0x00020000")
def add64(dst, src, imm):
    A(f"s_add_u32 s{dst}, s{src}, {imm}")
    A(f"s_addc_u32 s{dst+1}, s{src+1}, 0")

def get_nonce(vtmp):
    L = A.newlabel("L_nonce"); Ld = A.newlabel("L_nonced")
    A(f"v_mov_b32 v{vtmp}, 0")
    A(f"s_mov_b32 s{S_T}, 0")
    A.label(L)
    A(f"global_load_dword v{vtmp+1}, v{vtmp}, {sp(S_DBG)} sc1")
    A(f"s_waitcnt vmcnt(0)")
    A(f"v_readfirstlane_b32 s{S_NONCE}, v{vtmp+1}")
    A(f"s_add_u32 s{S_T}, s{S_T}, 1")
    A(f"s_cmp_lg_u32 s{S_NONCE}, 0")
    A(f"s_cbranch_scc1 {Ld}")
    A(f"s_cmp_lt_u32 s{S_T}, {SPIN_MAX}")
    A(f"s_cbranch_scc1 {L}")
    A.label(Ld)

def tag_acc(tagregs, vacc, vtmp):
    A(f"v_xor_b32 v{vacc}, s{S_NONCE}, v{tagregs[0]}")
    rest = tagregs[1:]
    i = 0
    while i < len(rest):
        if i + 1 < len(rest):
            A(f"v_xor_b32 v{vtmp}, s{S_NONCE}, v{rest[i]}")
            A(f"v_xor_b32 v{vtmp+1}, s{S_NONCE}, v{rest[i+1]}")
            A(f"v_or3_b32 v{vacc}, v{vacc}, v{vtmp}, v{vtmp+1}")
            i += 2
        else:
            A(f"v_xor_b32 v{vtmp}, s{S_NONCE}, v{rest[i]}")
            A(f"v_or_b32 v{vacc}, v{vacc}, v{vtmp}")
            i += 1

def tagcheck_loop(load_fn, tagregs, vacc, vtmp, sleep=1):
    T = S_T
    L = A.newlabel("L_pl"); Ld = A.newlabel("L_pld")
    A(f"s_mov_b32 s{T}, 0")
    A.label(L)
    load_fn()
    A("s_waitcnt vmcnt(0)")
    tag_acc(tagregs, vacc, vtmp)
    A(f"v_cmp_ne_u32 vcc, 0, v{vacc}")
    A(f"s_add_u32 s{T}, s{T}, 1")
    A("s_nop 3")
    A("s_cmp_eq_u64 vcc, 0")
    A(f"s_cbranch_scc1 {Ld}")
    if sleep: A(f"s_sleep {sleep}")
    A(f"s_cmp_lt_u32 s{T}, {SPIN_MAX}")
    A(f"s_cbranch_scc1 {L}")
    A.label(Ld)

def nonce_writer():
    L = A.newlabel("L_nw")
    A(f"s_cmp_ge_u32 s{S_WG}, 8")
    A(f"s_cbranch_scc1 {L}")
    A(f"s_cmp_lg_u32 s{S_WAVE}, 7")
    A(f"s_cbranch_scc1 {L}")
    A(f"s_memrealtime {sp(S_T)}")
    A("s_waitcnt lgkmcnt(0)")
    A(f"s_or_b32 s{S_T}, s{S_T}, 1")
    A(f"v_mov_b32 v10, s{S_T}")
    A("v_mov_b32 v11, 0")
    A("v_mov_b32 v12, 0")
    A("s_mov_b64 exec, 1")
    A(f"global_atomic_cmpswap v12, v[10:11], {sp(S_DBG)} sc1")
    A("s_mov_b64 exec, -1")
    A.label(L)

def code_prefetch():
    T = S_T
    L = A.newlabel("L_cpf")
    A(f"s_cmp_lg_u32 s{S_WAVE}, 6")
    A(f"s_cbranch_scc1 {L}")
    A(f"s_lshr_b32 s{T+2}, s{S_WG}, 3")
    A(f"s_cmp_ge_u32 s{T+2}, (L_end - {NAME}_kernel + 1023) / 1024")
    A(f"s_cbranch_scc1 {L}")
    A(f"s_getpc_b64 {sp(T)}")
    A.label(L + "_pc")
    A(f"s_sub_u32 s{T}, s{T}, {L}_pc - {NAME}_kernel")
    A(f"s_subb_u32 s{T+1}, s{T+1}, 0")
    A(f"s_lshl_b32 s{T+2}, s{T+2}, 10")
    A("v_lshlrev_b32 v1, 4, v0")
    A(f"v_add_u32 v1, s{T+2}, v1")
    A(f"global_load_dwordx4 a[60:63], v1, {sp(T)}")
    A.label(L)

def prologue():
    A(f"s_cmp_ge_u32 s{S_WG}, 256")
    A("s_cbranch_scc1 L_end")
    prof_begin()
    A("s_load_dwordx16 s[4:19], s[0:1], 0")
    A("s_load_dwordx8 s[20:27], s[0:1], 64")
    A("s_load_dwordx4 s[28:31], s[0:1], 96")
    A("v_lshrrev_b32 v1, 6, v0")
    A("v_and_b32 v0, 63, v0")
    A(f"v_readfirstlane_b32 s{S_WAVE}, v1")
    A(f"s_mov_b32 s{S_MASK}, 0xffff0000")
    A(f"s_mov_b32 s{S_SELLO}, 0x05040100")
    A(f"s_mov_b32 s{S_SELHI}, 0x07060302")
    A("s_waitcnt lgkmcnt(0)")
    stamp(1)
    tl(1, 0, 0); tl(2, 7, 0); tl(3, 4, 0)
    nonce_writer()
    code_prefetch()

def dpp_sum16(v):
    for sh in (8, 4, 2, 1):
        A("s_nop 1")
        A(f"v_add_f32_dpp v{v}, v{v}, v{v} row_ror:{sh} row_mask:0xf bank_mask:0xf")

LN_Q, LN_W, LN_Q2 = 10, 28, 46
def ln_loads(stok, Q, with_w):
    T = S_T
    A(f"s_mov_b32 s{T}, s{stok}")
    A("v_lshrrev_b32 v1, 4, v0")
    A("v_and_b32 v2, 15, v0")
    A(f"v_add_u32 v3, s{T}, v1")
    A(f"v_mul_u32_u24 v4, 1152, v3")
    A(f"v_lshl_add_u32 v5, v2, 4, v4")
    A(f"v_lshl_add_u32 v6, v2, 3, v4")
    for i in range(4):
        A(f"global_load_dwordx4 {p4(Q+4*i)}, v5, {sp(S_Q)} offset:{256*i} {NT}")
    A(f"global_load_dwordx2 {p2(Q+16)}, v6, {sp(S_Q)} offset:1024 {NT}")
    if with_w:
        W = LN_W
        A(f"v_lshlrev_b32 v7, 4, v2")
        A(f"v_lshlrev_b32 v8, 3, v2")
        for i in range(4):
            A(f"global_load_dwordx4 {p4(W+4*i)}, v7, {sp(S_WR)} offset:{256*i}")
        A(f"global_load_dwordx2 {p2(W+16)}, v8, {sp(S_WR)} offset:1024")

def dpp_sum16x(vs):
    for sh in (8, 4, 2, 1):
        if len(vs) < 3: A("s_nop 1")
        for v in vs:
            A(f"v_add_f32_dpp v{v}, v{v}, v{v} row_ror:{sh} row_mask:0xf bank_mask:0xf")

def ln_compute_publish(Q, vtok, first, vc=2, hook=None, publish=True):
    T = S_T
    W = LN_W
    A(f"s_mov_b32 s{T+8}, 0x3f803f80"); A(f"s_mov_b32 s{T+9}, 0x00003f80"); A(f"s_mov_b32 s{T+10}, 0x3f800000")
    accs = [64, 65, 66, 67] + ([68, 69] if first else [])
    for a in accs: A(f"v_mov_b32 v{a}, 0")
    for i in range(18):
        A(f"v_dot2_f32_bf16 v{64+(i&1)}, v{Q+i}, s{T+8}, v{64+(i&1)}")
        A(f"v_dot2_f32_bf16 v{66+(i&1)}, v{Q+i}, v{W+i}, v{66+(i&1)}")
        if first: A(f"v_dot2_f32_bf16 v{68+(i&1)}, v{W+i}, s{T+8}, v{68+(i&1)}")
    A("s_nop 2")
    A("v_add_f32 v64, v64, v65")
    A("v_add_f32 v66, v66, v67")
    if first:
        A("v_add_f32 v122, v68, v69")
        A("s_nop 0")
        dpp_sum16x([64, 66, 122])
    else:
        A("s_nop 0")
        dpp_sum16x([64, 66])
    A(f"v_mul_f32 v64, 0x{f32bits(1.0/576):08x}, v64")
    A("v_sub_f32 v65, 0, v64")
    for a in (68, 69, 70, 71): A(f"v_mov_b32 v{a}, 0")
    for i in range(0, 18, 2):
        A(f"v_dot2_f32_bf16 v72, v{Q+i}, s{T+9}, v65")
        A(f"v_dot2_f32_bf16 v73, v{Q+i}, s{T+10}, v65")
        A(f"v_dot2_f32_bf16 v74, v{Q+i+1}, s{T+9}, v65")
        A(f"v_dot2_f32_bf16 v75, v{Q+i+1}, s{T+10}, v65")
        A("s_nop 1")
        A(f"v_fma_f32 v68, v72, v72, v68")
        A(f"v_fma_f32 v69, v73, v73, v69")
        A(f"v_fma_f32 v70, v74, v74, v70")
        A(f"v_fma_f32 v71, v75, v75, v71")
    A("v_add_f32 v68, v68, v69"); A("v_add_f32 v70, v70, v71"); A("v_add_f32 v68, v68, v70")
    dpp_sum16x([68])
    A(f"v_mul_f32 v68, 0x{f32bits(1.0/576):08x}, v68")
    rnd(68)
    A(f"v_add_f32 v68, 0x{f32bits(1e-5):08x}, v68")
    rnd(68)
    A("v_sqrt_f32 v69, v68")
    A("s_nop 0")
    A("v_rcp_f32 v70, v69")
    A("v_fma_f32 v71, -v69, v69, v68")
    A("v_mul_f32 v70, 0.5, v70")
    A("v_fma_f32 v69, v71, v70, v69")
    rnd(69)
    A("v_rcp_f32 v70, v69")
    rnd(64)
    A("v_fma_f32 v66, -v64, v122, v66")
    A("v_mul_f32 v112, v66, v70")
    rnd(112)
    A(f"v_or_b32 v112, v112, v{vtok}")
    A("v_cvt_pk_bf16_f32 v114, v64, v69")
    if not publish:
        A("v_mov_b32 v32, v112"); A("v_mov_b32 v34, v114")
        return
    if hook: hook()
    ln_publish(vtok, vc)

def ln_publish(vtok, vc):
    T = S_T
    A(f"v_mov_b32 v113, s{S_NONCE}")
    A(f"v_mov_b32 v115, s{S_NONCE}")
    A(f"v_lshlrev_b32 v116, 3, v{vtok}")
    add64(T+2, S_WS, WS_RG)
    add64(T+4, S_WS, WS_SG)
    A(f"v_cmp_eq_u32 vcc, 0, v{vc}")
    A(f"s_and_saveexec_b64 {sp(T+6)}, vcc")
    A(f"global_store_dwordx2 v116, v[112:113], {sp(T+2)} sc1")
    A(f"global_store_dwordx2 v116, v[114:115], {sp(T+4)} sc1")
    A(f"s_mov_b64 exec, {sp(T+6)}")

P_CH = 4128
L_P = 0
L_Q = L_P + 4 * P_CH
Q_CPY = 1152
Q_CH = 4 * Q_CPY
L_KVL = L_Q + 4 * Q_CH
L_MC = L_KVL + 16384
L_SELT = L_MC + 64
L_ST = L_SELT + 128
L_TAP = L_ST + 1024
TBLK = 1040
L_TK = (L_TAP + 512 + 15) // 16 * 16
L_TV = L_TK + 17 * TBLK
L_TQ = L_TV + 16 * TBLK
L_OT = L_TK
L_CONV_END = L_TQ + 16 * TBLK

def dma(voff, srdreg, soff, m0, flag=None):
    A(f"s_mov_b32 m0, {m0}")
    A("s_nop 0")
    A(f"buffer_load_dwordx4 v{voff}, s[{srdreg}:{srdreg+3}], {soff} offen {NT if flag is None else flag} lds")

def conv_tile():
    T = S_T
    A(f"s_sub_u32 s72, s{S_WAVE}, 4")
    A(f"s_mul_hi_u32 s77, s{S_WG}, {(2**32 + 8)//9}")
    A(f"s_mul_i32 s76, s77, 9")
    A(f"s_sub_u32 s76, s{S_WG}, s76")
    srd(SRD_K, S_K, 2359296)
    srd(SRD_V, S_V, 2359296)
    A("v_lshrrev_b32 v1, 3, v0")
    A("v_and_b32 v2, 7, v0")
    A(f"s_mul_i32 s{T+2}, s77, {128*1152}")
    A(f"s_lshl_b32 s{T+3}, s76, 7")
    A(f"s_add_u32 s{T+2}, s{T+2}, s{T+3}")
    A(f"v_mul_u32_u24 v3, 1152, v1")
    A(f"v_lshl_add_u32 v3, v2, 4, v3")
    A(f"v_add_u32 v3, s{T+2}, v3")
    A(f"s_mul_i32 s{T+4}, s{S_WAVE}, {2*9216}")
    A(f"s_mul_i32 s{T+6}, s{S_WAVE}, {2*TBLK}")
    for i in range(2):
        A(f"s_add_u32 s{T+7}, s{T+6}, {L_TK + TBLK + i*TBLK}")
        A(f"s_add_u32 s{T+5}, s{T+4}, {9216*i}")
        dma(3, SRD_K, f"s{T+5}", f"s{T+7}")
        A(f"s_add_u32 s{T+7}, s{T+6}, {L_TV + i*TBLK}")
        dma(3, SRD_V, f"s{T+5}", f"s{T+7}")
    L7 = A.newlabel("L_w7")
    A(f"s_cmp_lg_u32 s{S_WAVE}, 7")
    A(f"s_cbranch_scc1 {L7}")
    A(f"v_subrev_u32 v4, 9216, v3")
    A(f"s_cmp_lg_u32 s77, 0")
    A(f"s_cbranch_scc1 {L7}_a")
    A("v_bfrev_b32 v4, 1")
    A.label(L7 + "_a")
    dma(4, SRD_K, "0", L_TK)
    for i in range(4): A(f"v_mov_b32 v{52+i}, 0")
    A("v_lshlrev_b32 v56, 4, v0")
    A(f"v_add_u32 v56, {L_MC}, v56")
    A("s_mov_b64 exec, 0xfff")
    A(f"ds_write_b128 v56, {p4(52)}")
    A("s_mov_b64 exec, -1")
    A.label(L7)
    TR = 48
    A(f"s_lshr_b32 s{T+9}, s{S_WAVE}, 1")
    A(f"s_and_b32 s{T+10}, s{S_WAVE}, 1")
    Lt = A.newlabel("L_tap")
    A(f"s_cmp_lg_u32 s{S_WAVE}, 0")
    A(f"s_cbranch_scc1 {Lt}")
    srd(SRD_Q, S_SK, 4608)
    A(f"s_lshl_b32 s{T+11}, s76, 9")
    A("v_lshlrev_b32 v5, 4, v0")
    A("s_mov_b64 exec, 0xffffffff")
    dma(5, SRD_Q, f"s{T+11}", L_TAP, flag="")
    A("s_mov_b64 exec, -1")
    A.label(Lt)
    A("v_mov_b32 v120, 0")
    A(f"global_load_dword v121, v120, {sp(S_DBG)} sc1")
    A(f"s_and_b32 s{T+13}, s{S_WG}, 7")
    A(f"s_mul_i32 s{T+13}, s{T+13}, 18")
    A(f"s_lshr_b32 s{T+12}, s{S_WG}, 3")
    A(f"s_add_u32 s{T+13}, s{T+13}, s{T+12}")
    A(f"s_lshl_b32 s71, s{T+13}, 2")
    A(f"s_and_b32 s{T+12}, s{S_WAVE}, 3")
    A(f"s_add_u32 s78, s71, s{T+12}")
    A(f"s_lshl_b32 s79, s78, 12")
    A(f"s_lshl_b32 s{T+12}, s{T+10}, 3")
    A(f"v_add_u32 v6, s{T+12}, v2")
    A(f"s_lshl_b32 s{T+12}, s{T+9}, 3")
    A(f"v_add_u32 v7, s{T+12}, v1")
    A(f"v_mul_u32_u24 v9, {TBLK}, v6")
    A(f"v_lshl_add_u32 v9, v7, 2, v9")
    A(f"v_add_u32 v9, {L_TK}, v9")
    A(f"s_lshl_b32 s{T+11}, s76, 19")
    A(f"s_lshl_b32 s{T+12}, s77, 9")
    A(f"s_add_u32 s{T+11}, s{T+11}, s{T+12}")
    A(f"s_lshl_b32 s{T+12}, s{T+10}, 8")
    A(f"s_add_u32 s{T+11}, s{T+11}, s{T+12}")
    A("v_lshlrev_b32 v8, 14, v7")
    A("v_lshl_add_u32 v8, v2, 4, v8")
    A(f"v_add_u32 v8, s{T+11}, v8")
    if "hearly" in OPTS:
        Lh = A.newlabel("L_noh"); Lh2 = A.newlabel("L_noh2")
        A(f"s_cmp_ge_u32 s{S_WAVE}, 4")
        A(f"s_cbranch_scc1 {Lh}")
        srd(SRD_Q, S_H, 2359296)
        A("v_lshlrev_b32 v4, 4, v0")
        A(f"s_mul_i32 s74, s{S_WAVE}, {P_CH}")
        for q in range(4):
            A(f"s_add_u32 s{T+9}, s79, {1024*q}")
            A(f"s_add_u32 s{T+5}, s74, {32 + 1024*q}")
            dma(4, SRD_Q, f"s{T+9}", f"s{T+5}")
        if "dbgB" in OPTS: stamp(5)
        A("s_waitcnt vmcnt(4) lgkmcnt(0)")
        A(f"s_branch {Lh2}")
        A.label(Lh)
        if "dbgB" in OPTS: stamp(5)
        A("s_waitcnt vmcnt(0) lgkmcnt(0)")
        A.label(Lh2)
        if "dbgB" in OPTS: stamp(6)
    else:
        A("s_waitcnt vmcnt(0) lgkmcnt(0)")
    A(f"v_readfirstlane_b32 s{S_NONCE}, v121")
    A("s_barrier")
    stamp(2)
    tl(4, 7, 0)
    KR, VR = 10, 21
    for j in range(11):
        off = (640 + 128*j if j < 3 else TBLK + 128*(j-3))
        A(f"ds_read_b32 v{KR+j}, v9 offset:{off}")
    A("v_lshlrev_b32 v5, 2, v7")
    A("v_lshlrev_b32 v5, 2, v5")
    A(f"v_add_u32 v5, {L_TAP}, v5")
    A(f"ds_read_b128 {p4(TR)}, v5")
    for j in range(8):
        A(f"ds_read_b32 v{VR+j}, v9 offset:{L_TV - L_TK + 128*j}")
    A("s_waitcnt lgkmcnt(8)")
    Ln = A.newlabel("L_hasn")
    A(f"s_cmp_lg_u32 s{S_NONCE}, 0")
    A(f"s_cbranch_scc1 {Ln}")
    get_nonce(30)
    A.label(Ln)
    TP = 52
    A(f"v_lshlrev_b32 v{TP+0}, 16, v{TR}"); A(f"v_lshlrev_b32 v{TP+1}, 16, v{TR+2}")
    A(f"v_and_b32 v{TP+2}, s{S_MASK}, v{TR}"); A(f"v_and_b32 v{TP+3}, s{S_MASK}, v{TR+2}")
    A(f"v_lshlrev_b32 v{TP+4}, 16, v{TR+1}"); A(f"v_lshlrev_b32 v{TP+5}, 16, v{TR+3}")
    A(f"v_and_b32 v{TP+6}, s{S_MASK}, v{TR+1}"); A(f"v_and_b32 v{TP+7}, s{S_MASK}, v{TR+3}")
    KP = 80
    for j in range(11):
        A(f"v_lshlrev_b32 v{KP+2*j}, 16, v{KR+j}")
        A(f"v_and_b32 v{KP+2*j+1}, s{S_MASK}, v{KR+j}")
    R = 102
    tp = lambda tap: p2(TP+2*tap)
    for i in range(8): A(f"v_pk_mul_f32 {p2(R+2*i)}, {p2(KP+2*i)}, {tp(3)}")
    for i in range(8): A(f"v_pk_fma_f32 {p2(R+2*i)}, {p2(KP+2*(i+1))}, {tp(2)}, {p2(R+2*i)}")
    for i in range(8): A(f"v_pk_fma_f32 {p2(R+2*i)}, {p2(KP+2*(i+2))}, {tp(1)}, {p2(R+2*i)}")
    for i in range(8): A(f"v_pk_fma_f32 {p2(R+2*i)}, {p2(KP+2*(i+3))}, {tp(0)}, {p2(R+2*i)}")
    A("s_waitcnt lgkmcnt(0)")
    VP = 60
    for i in range(8):
        A(f"v_lshlrev_b32 v{VP+2*i}, 16, v{VR+i}"); A(f"v_and_b32 v{VP+2*i+1}, s{S_MASK}, v{VR+i}")
    for i in range(8): A(f"v_pk_mul_f32 {p2(R+2*i)}, {p2(R+2*i)}, {p2(VP+2*i)}")
    GQ = 80
    for c in range(2):
        for q in range(4):
            A(f"v_cvt_pk_bf16_f32 v{GQ+8*c+2*q}, v{R+4*q+c}, v{R+4*q+2+c}")
            A(f"v_mov_b32 v{GQ+8*c+2*q+1}, s{S_NONCE}")
    add64(T+2, S_WS, WS_KVT)
    add64(T+8, S_WS, WS_KVT+8192)
    A(f"global_store_dwordx4 v8, {p4(GQ)}, {sp(T+2)} sc1")
    A(f"global_store_dwordx4 v8, {p4(GQ+4)}, {sp(T+2)} offset:128 sc1")
    A(f"global_store_dwordx4 v8, {p4(GQ+8)}, {sp(T+8)} sc1")
    A(f"global_store_dwordx4 v8, {p4(GQ+12)}, {sp(T+8)} offset:128 sc1")
    for c in range(2):
        for q in range(4): A(f"v_mov_b32 v{120+4*c+q}, v{GQ+8*c+2*q}")
    A(f"s_lshl_b32 s{T+1}, s{S_WAVE}, 11")
    A("v_lshlrev_b32 v4, 5, v0")
    A(f"v_add_u32 v4, s{T+1}, v4")
    A(f"v_add_u32 v4, {L_KVL}, v4")
    A(f"ds_write_b128 v4, {p4(120)}")
    A(f"ds_write_b128 v4, {p4(124)} offset:16")
    stamp(3)
    if "hearly" not in OPTS:
        Lh = A.newlabel("L_noh")
        A(f"s_cmp_ge_u32 s{S_WAVE}, 4")
        A(f"s_cbranch_scc1 {Lh}")
        srd(SRD_V, S_H, 2359296)
        A("v_lshlrev_b32 v4, 4, v0")
        A(f"s_mul_i32 s74, s{S_WAVE}, {P_CH}")
        for q in range(4):
            A(f"s_add_u32 s{T+9}, s79, {1024*q}")
            A(f"s_add_u32 s{T+10}, s74, {32 + 1024*q}")
            dma(4, SRD_V, f"s{T+9}", f"s{T+10}")
        A.label(Lh)
    A("s_waitcnt lgkmcnt(0)")
    A("s_barrier")
    stamp(4)
    tl(5, 7, 0)
    if "dbgA" in OPTS or "dbgB" in OPTS: A("s_branch L_fin")

class LdsQ:
    def __init__(self): self.q = []
    def issue(self, instr, tag=None):
        A(instr); self.q.append(tag)
    def wait(self, tag):
        idxs = [i for i, t in enumerate(self.q) if t == tag]
        if not idxs: return
        last = idxs[-1]
        n = len(self.q) - 1 - last
        A(f"s_waitcnt lgkmcnt({min(n, 15)})")
        if n <= 15: self.q = self.q[last+1:]
        else: self.q = self.q[len(self.q)-15:]

def conv_mfma_wave():
    T = S_T
    A(f"s_mul_i32 s75, s{S_WAVE}, {Q_CH}")
    A(f"s_add_u32 s75, s75, {L_Q}")
    for i in range(4): A(f"v_mov_b32 v{16+i}, 0")
    A("v_lshlrev_b32 v2, 4, v0")
    A("v_add_u32 v2, s74, v2")
    A("s_mov_b64 exec, 3")
    A(f"ds_write_b128 v2, {p4(16)}")
    A("s_mov_b64 exec, -1")
    A("v_lshrrev_b32 v2, 3, v0")
    A(f"v_mul_u32_u24 v2, {Q_CPY}, v2")
    A("v_and_b32 v3, 7, v0")
    A("v_lshl_add_u32 v2, v3, 4, v2")
    A("v_add_u32 v2, s75, v2")
    A("s_mov_b64 exec, 0xffffffff")
    A(f"ds_write_b128 v2, {p4(16)}")
    A("s_mov_b64 exec, -1")
    A("v_and_b32 v3, 3, v0")
    A("v_bfe_u32 v4, v0, 2, 2")
    A("v_sub_u32 v3, v3, v4")
    A("v_lshlrev_b32 v3, 3, v3")
    A("v_lshrrev_b32 v4, 4, v0")
    A("v_lshl_add_u32 v3, v4, 6, v3")
    A("v_add_u32 v3, s74, v3")
    A("v_add_u32 v3, 32, v3")
    A("s_waitcnt vmcnt(4) lgkmcnt(0)" if "hearly" in OPTS else "s_waitcnt vmcnt(0) lgkmcnt(0)")
    def greg(e, s1): return 4*(8*e + s1)
    for s1 in range(8):
        for e in range(2):
            g = greg(e, s1)
            A(f"ds_read_b64_tr_b16 a[{g}:{g+1}], v3 offset:{512*s1+256*e+32}")
            A(f"ds_read_b64_tr_b16 a[{g+2}:{g+3}], v3 offset:{512*s1+256*e}")
        if s1 % 3 == 2: A("s_waitcnt lgkmcnt(4)")
    A("v_and_b32 v5, 15, v0")
    A("v_lshlrev_b32 v6, 3, v5")
    A("v_lshlrev_b32 v7, 4, v4")
    A("v_sub_u32 v6, v6, v7")
    A("v_add_u32 v6, s75, v6")
    A("v_add_u32 v6, 56, v6")
    A("v_lshlrev_b32 v7, 6, v5")
    A("v_lshl_add_u32 v7, v4, 4, v7")
    A(f"s_lshl_b32 s{T+1}, s78, 13")
    A(f"v_add_u32 v7, s{T+1}, v7")
    A(f"v_add_u32 v11, 4096, v7")
    add64(62, S_WS, WS_YG)
    A("v_subrev_u32 v8, 16, v0")
    A("v_add_u32 v9, 47, v0")
    A("v_cmp_gt_u32 vcc, 16, v0")
    A("s_nop 1")
    A("v_cndmask_b32 v8, v8, v9, vcc")
    A("v_mov_b32 v9, 63")
    A("v_cmp_eq_u32 vcc, 0, v0")
    A("s_nop 1")
    A("v_cndmask_b32 v8, v8, v9, vcc")
    A("v_lshlrev_b32 v8, 2, v8")
    A(f"v_mov_b32 v9, {L_MC}")
    A("v_mov_b32 v10, 1")
    A(f"s_mov_b64 {sp(66)}, 1")
    add64(64, S_WS, WS_KVT)
    A(f"s_lshl_b32 s{T+1}, s78, 13")
    A("v_lshlrev_b32 v1, 4, v0")
    A(f"v_add_u32 v1, s{T+1}, v1")
    A("v_add_u32 v12, 4096, v1")
    A("v_lshrrev_b32 v2, 4, v0")
    A("v_lshlrev_b32 v2, 4, v2")
    A("v_and_b32 v13, 7, v0")
    A("v_lshl_add_u32 v2, v13, 1, v2")
    A("v_bfe_u32 v13, v0, 3, 1")
    A("v_add_u32 v2, v2, v13")
    A("v_lshlrev_b32 v2, 1, v2")
    A("v_add_u32 v2, s75, v2")
    A("v_and_b32 v13, 15, v0")
    A("v_lshlrev_b32 v13, 9, v13")
    A(f"v_add_u32 v13, s{T+1}, v13")
    A("v_add_u32 v13, 504, v13")
    stamp(5)
    tagcheck_loop(lambda: A(f"global_load_dwordx2 v[14:15], v13, {sp(64)} sc1"), [15], 16, 17, sleep=1)
    stamp(6)
    tl(6, 7, 0)
    KV = 16
    def ldkv():
        for q in range(8):
            A(f"global_load_dwordx4 {p4(KV+4*q)}, v{1 if q < 4 else 12}, {sp(64)} offset:{1024*(q % 4)} sc1")
    tagcheck_loop(ldkv, [KV+4*q+1+2*h for q in range(8) for h in range(2)], 14, 48, sleep=1)
    for q in range(8):
        r = KV + 4*q
        o = 128 + 128*q
        A(f"ds_write_b16 v2, v{r} offset:{0*Q_CPY+o}")
        A(f"ds_write_b16_d16_hi v2, v{r} offset:{1*Q_CPY+o}")
        A(f"ds_write_b16 v2, v{r+2} offset:{2*Q_CPY+o}")
        A(f"ds_write_b16_d16_hi v2, v{r+2} offset:{3*Q_CPY+o}")
    A("s_waitcnt lgkmcnt(0)")
    for i in range(3): A(f"v_mov_b32 v{40+i}, 0")
    A(f"v_add_u32 v3, {Q_CPY}, v6"); A(f"v_add_u32 v4, {2*Q_CPY}, v6"); A(f"v_add_u32 v5, {3*Q_CPY}, v6")
    A(f"v_mov_b32 v45, s{S_NONCE}"); A(f"v_mov_b32 v47, s{S_NONCE}")
    stamp(7)
    tl(7, 7, 0)
    if "dry" in OPTS:
        A("s_mov_b32 s73, 0")
        A.label("L_stream")
    lq = LdsQ()
    classes = [(c1, sg, e) for c1 in range(8) for sg in range(4) for e in range(2)]
    FA = [6, 3, 4, 5]
    free = [("v", 48), ("v", 52), ("v", 56), ("v", 60)]
    fbuf = {}
    def rr(b): return f"{b[0]}[{b[1]}:{b[1]+3}]"
    def fread(k):
        c1, sg, e = classes[k]
        b = free.pop(0); fbuf[k] = b
        o = 16*c1 + 8*(1-e)
        lq.issue(f"ds_read2_b64 {rr(b)}, v{FA[sg]} offset0:{o} offset1:{o+1}", ("F", k))
    def acc(sg, t): return 64 + (sg*8 + t)*4
    def combine_ops(t):
        a0, a1, a2, a3 = acc(0, t), acc(1, t), acc(2, t), acc(3, t)
        ops = []
        C = 32
        P = 36 + 4*(t & 1)
        Pp = 36 + 4*((t+1) & 1)
        ops.append(lambda: A(f"v_add_f32 v{a0+1}, v{a0+1}, v{a1}"))
        ops.append(lambda: A(f"v_add_f32 v{a0+2}, v{a0+2}, v{a1+1}"))
        ops.append(lambda: A(f"v_add_f32 v{a0+3}, v{a0+3}, v{a1+2}"))
        ops.append(lambda: A(f"v_add_f32 v{C}, v{a1+3}, v{a2+2}"))
        ops.append(lambda: A(f"v_add_f32 v{a0+2}, v{a0+2}, v{a2}"))
        ops.append(lambda: A(f"v_add_f32 v{a0+3}, v{a0+3}, v{a2+1}"))
        ops.append(lambda: A(f"v_add_f32 v{C+1}, v{a2+3}, v{a3+2}"))
        ops.append(lambda: A(f"v_add_f32 v{C}, v{C}, v{a3+1}"))
        ops.append(lambda: lq.issue(f"ds_bpermute_b32 v{P+2}, v8, v{a3+3}", ("B", t)))
        ops.append(lambda: lq.issue(f"ds_bpermute_b32 v{P+1}, v8, v{C+1}", ("B", t)))
        ops.append(lambda: lq.issue(f"ds_bpermute_b32 v{P}, v8, v{C}", ("B", t)))
        ops.append(lambda: A(f"v_add_f32 v{a0+3}, v{a0+3}, v{a3}"))
        ops.append(lambda: lq.wait(("B", t)))
        for i in range(3):
            ops.append(lambda i=i: A(f"v_cndmask_b32 v{28+i}, v{P+i}, v{Pp+i}, {sp(66)}"))
        for i in range(3):
            ops.append(lambda i=i: A(f"v_add_f32 v{a0+i}, v{a0+i}, v{28+i}"))
        ops.append(lambda: A(f"v_cvt_pk_bf16_f32 v44, v{a0}, v{a0+1}"))
        ops.append(lambda: A(f"v_cvt_pk_bf16_f32 v46, v{a0+2}, v{a0+3}"))
        ops.append(lambda: A(f"global_store_dwordx4 v{7 if t < 4 else 11}, {p4(44)}, {sp(62)} offset:{1024*(t % 4)} sc1"))
        return ops
    nxt = 0
    LA = int(os.environ.get("LA", "5"))
    SLOTS = int(os.environ.get("SLOTS", "1"))
    def can_fread(k):
        return free and nxt < len(classes) and nxt - k < LA and len(lq.q) <= 13
    for _ in range(3):
        fread(nxt); nxt += 1
    pending = []
    k = 0
    total_m = sum(8*(8-c) for c in range(8))
    done_m = 0
    for c1 in range(8):
        nm_step = 8*(8-c1)
        if c1 > 0:
            assert not pending or True
            pending.extend(combine_ops(c1-1))
            free.extend([("a", greg(0, 8-c1)), ("a", greg(1, 8-c1))])
        mi = 0
        for sg in range(4):
            for e in range(2):
                while nxt <= k:
                    fread(nxt); nxt += 1
                lq.wait(("F", k))
                b = fbuf[k]
                for s1 in range(8-c1):
                    t = s1 + c1
                    d = acc(sg, t)
                    cin = "0" if (c1 == 0 and e == 0) else f"v[{d}:{d+3}]"
                    g = greg(e, s1)
                    A(f"v_mfma_f32_16x16x32_bf16 v[{d}:{d+3}], a[{g}:{g+3}], {rr(b)}, {cin}")
                    mi += 1; done_m += 1
                    rem_m = total_m - done_m
                    left_in_step = nm_step - mi
                    slots = SLOTS
                    if pending and mi >= 3:
                        need = len(pending) + (8 - (k % 8))
                        if left_in_step * SLOTS < need: slots = -(-need // max(1, left_in_step + 1))
                    used = 0
                    if can_fread(k) and (nxt - k <= 2 or not pending or mi < 3):
                        fread(nxt); nxt += 1; used += 1
                    while used < slots and pending and mi >= 3:
                        pending.pop(0)(); used += 1
                    if used < slots - 1 and can_fread(k):
                        fread(nxt); nxt += 1; used += 1
                free.append(b)
                k += 1
        while pending: pending.pop(0)()
    A("s_nop 7"); A("s_nop 1")
    for op in combine_ops(7): op()
    if "dry" in OPTS:
        A("s_cmp_eq_u32 s73, 1")
        A("s_cbranch_scc1 L_dry_ret")
    A("s_mov_b64 exec, 1")
    A("ds_add_u32 v9, v10")
    A("s_mov_b64 exec, -1")
    stamp(8)
    tl(8, 7, 0)

def lds_spin(addr_off, target, va, vb, sleep=1):
    T = S_T
    L = A.newlabel("L_ls")
    A(f"v_mov_b32 v{va}, {L_MC}")
    A(f"s_mov_b32 s{T+1}, 0")
    A.label(L)
    A(f"ds_read_b32 v{vb}, v{va} offset:{addr_off}")
    A("s_waitcnt lgkmcnt(0)")
    A(f"v_readfirstlane_b32 s{T}, v{vb}")
    A(f"s_add_u32 s{T+1}, s{T+1}, 1")
    A(f"s_cmp_ge_u32 s{T+1}, {SPIN_MAX*4}")
    A(f"s_cbranch_scc1 {L}_d")
    A(f"s_cmp_ge_u32 s{T}, {target}")
    A(f"s_cbranch_scc1 {L}_d")
    if sleep: A(f"s_sleep {sleep}")
    A(f"s_branch {L}")
    A.label(L + "_d")

def conv_helper_prep():
    T = S_T
    if "gupf" in OPTS:
        R0 = int(os.environ.get("PFROW", "144")); NR = (576 - R0) // 18
        assert NR % 4 == 0
        RW = NR // 4
        A(f"s_and_b32 s{T+1}, s{S_WG}, 7")
        A(f"s_mul_i32 s{T+1}, s{T+1}, 1152")
        A(f"s_lshr_b32 s{T+2}, s{S_WG}, 3")
        A(f"s_mul_i32 s{T+2}, s{T+2}, {NR}")
        A(f"s_mul_i32 s{T+3}, s72, {RW}")
        A(f"s_add_u32 s{T+2}, s{T+2}, s{T+3}")
        A(f"s_add_u32 s{T+2}, s{T+2}, {R0}")
        A(f"s_mul_i32 s{T+2}, s{T+2}, 9216")
        A(f"s_add_u32 s{T+1}, s{T+1}, s{T+2}")
        A("v_lshlrev_b32 v10, 4, v0")
        A(f"v_add_u32 v10, s{T+1}, v10")
        A("v_lshrrev_b32 v11, 3, v0")
        A("v_mul_u32_u24 v11, 9216, v11")
        A("v_and_b32 v12, 7, v0")
        A("v_lshl_add_u32 v11, v12, 4, v11")
        A(f"v_add_u32 v11, s{T+1}, v11")
        A("v_add_u32 v11, 1024, v11")
        ar = 16
        for base in (S_WGT, S_WUP):
            A("v_mov_b32 v13, v10")
            for r in range(RW):
                A(f"global_load_dwordx4 a[0:3], v13, {sp(base)}")
                if r < RW - 1: A("v_add_u32 v13, 9216, v13")
            nl = 8*RW
            if nl < 64:
                A(f"s_mov_b32 exec_lo, {hex(min(nl, 32) and ((1 << min(nl, 32)) - 1))}")
                A(f"s_mov_b32 exec_hi, {hex((1 << (nl - 32)) - 1) if nl > 32 else '0'}")
            A(f"global_load_dwordx4 a[0:3], v11, {sp(base)}")
            A("s_mov_b64 exec, -1")
        if "dpf" in OPTS:
            A(f"s_and_b32 s{T+1}, s{S_WG}, 7")
            A(f"s_mul_i32 s{T+1}, s{T+1}, {576*1152}")
            A(f"s_lshr_b32 s{T+2}, s{S_WG}, 3")
            A(f"s_mul_i32 s{T+2}, s{T+2}, 36864")
            A(f"s_add_u32 s{T+1}, s{T+1}, s{T+2}")
            A(f"s_mul_i32 s{T+2}, s72, 9216")
            A(f"s_add_u32 s{T+1}, s{T+1}, s{T+2}")
            A("v_lshlrev_b32 v19, 4, v0")
            A(f"v_add_u32 v19, s{T+1}, v19")
            DPF = []
            for i in range(9):
                DPF.append(f"global_load_dwordx4 a[0:3], v18, {sp(S_WD)} offset:{1024*(i%4)}")
            assert ar <= 124, ar
            global DPF_CODE
            DPF_CODE = DPF
    srd(SRD_Q, S_Q, 2359296)
    A(f"s_mul_i32 s{T+4}, s72, {4*9216}")
    A(f"s_mul_i32 s{T+6}, s72, {4*TBLK}")
    A(f"s_add_u32 s{T+6}, s{T+6}, {L_TQ}")
    for i in range(4):
        dma(3, SRD_Q, f"s{T+4}", f"s{T+6}")
        A(f"s_add_u32 s{T+4}, s{T+4}, 9216")
        A(f"s_add_u32 s{T+6}, s{T+6}, {TBLK}")
    if "dry" in OPTS:
        Ld = A.newlabel("L_nodry")
        A(f"s_cmp_lg_u32 s{S_WAVE}, 7")
        A(f"s_cbranch_scc1 {Ld}")
        A("v_mov_b32 v6, 0"); A("v_mov_b32 v7, 0"); A("v_mov_b32 v11, 0"); A("v_mov_b32 v8, 0")
        add64(62, S_WS, WS_YG)
        A(f"s_mov_b64 {sp(66)}, 1")
        A("s_mov_b32 s73, 1")
        A("s_mov_b64 exec, 0")
        A("s_branch L_stream")
        A.label("L_dry_ret")
        A("s_mov_b64 exec, -1")
        A.label(Ld)
    L4 = A.newlabel("L_h4"); L5 = A.newlabel("L_h5"); Le = A.newlabel("L_he")
    A(f"s_cmp_eq_u32 s{S_WAVE}, 4")
    A(f"s_cbranch_scc1 {L4}")
    A(f"s_cmp_eq_u32 s{S_WAVE}, 5")
    A(f"s_cbranch_scc1 {L5}")
    A(f"s_branch {Le}")
    A.label(L4)
    A(f"s_lshl_b32 s{T+1}, s77, 10")
    A("v_lshlrev_b32 v10, 4, v0")
    A(f"v_add_u32 v11, s{T+1}, v10")
    add64(T+2, S_WS, WS_SG)
    tagcheck_loop(lambda: A(f"global_load_dwordx4 {p4(12)}, v11, {sp(T+2)} sc1"), [13, 15], 16, 17, sleep=4)
    A("v_lshlrev_b32 v20, 16, v12"); A(f"v_and_b32 v21, s{S_MASK}, v12")
    A("v_lshlrev_b32 v22, 16, v14"); A(f"v_and_b32 v23, s{S_MASK}, v14")
    A("v_rcp_f32 v21, v21"); A("v_rcp_f32 v23, v23")
    A(f"v_add_u32 v10, {L_ST}, v10")
    A("s_nop 0")
    A(f"ds_write_b128 v10, {p4(20)}")
    A(f"s_branch {Le}")
    A.label(L5)
    A("v_and_b32 v10, 7, v0")
    A("v_lshlrev_b32 v11, 3, v10")
    add64(T+2, S_WS, WS_SEL)
    tagcheck_loop(lambda: A(f"global_load_dwordx2 v[12:13], v11, {sp(T+2)} sc1"), [13], 16, 17, sleep=4)
    A("v_and_b32 v12, 0x7ff, v12")
    A(f"s_lshl_b32 s{T+1}, s77, 7")
    A(f"v_subrev_u32 v12, s{T+1}, v12")
    A("v_cmp_gt_u32 vcc, 128, v12")
    A("v_or_b32 v13, 0x80, v10")
    A(f"v_add_u32 v12, {L_SELT}, v12")
    A("s_and_b32 vcc_lo, vcc_lo, 0xff")
    A("s_mov_b32 vcc_hi, 0")
    A("s_mov_b64 exec, vcc")
    Lk = A.newlabel("L_nsel")
    A(f"s_cbranch_execz {Lk}")
    A("ds_write_b8 v12, v13")
    A.label(Lk)
    A("s_mov_b64 exec, -1")
    A.label(Le)
    A("s_waitcnt vmcnt(0) lgkmcnt(0)")
    A(f"v_mov_b32 v10, {L_MC}")
    A("v_mov_b32 v11, 1")
    A("s_mov_b64 exec, 1")
    A("ds_add_u32 v10, v11 offset:4")
    A("s_mov_b64 exec, -1")
    stamp(5)
    if "dpf" in OPTS:
        for i, ins in enumerate(DPF_CODE):
            if i % 4 == 0: A(f"v_add_u32 v18, {4096*(i//4)}, v19")
            A(ins)
    lds_spin(0, 4, 10, 11, sleep=2)
    stamp(6)

def conv_epilogue():
    T = S_T
    A("; ---- epilogue ----")
    lds_spin(4, 4, 10, 11, sleep=1)
    A("v_and_b32 v2, 7, v0"); A("v_lshrrev_b32 v1, 3, v0")
    A(f"s_and_b32 s{T+1}, s{S_WAVE}, 1"); A(f"s_lshl_b32 s{T+1}, s{T+1}, 3")
    A(f"v_add_u32 v6, s{T+1}, v2")
    A(f"s_lshr_b32 s{T+2}, s{S_WAVE}, 1"); A(f"s_lshl_b32 s{T+2}, s{T+2}, 3")
    A(f"v_add_u32 v7, s{T+2}, v1")
    A(f"s_lshl_b32 s{T+1}, s76, 19")
    A(f"s_lshl_b32 s{T+2}, s77, 9")
    A(f"s_add_u32 s{T+1}, s{T+1}, s{T+2}")
    A("v_lshlrev_b32 v8, 14, v7")
    A("v_lshl_add_u32 v8, v6, 5, v8")
    A(f"v_add_u32 v8, s{T+1}, v8")
    A("v_add_u32 v9, 8192, v8")
    add64(62, S_WS, WS_YG)
    A(f"v_mul_u32_u24 v10, {TBLK}, v6")
    A("v_lshl_add_u32 v10, v7, 2, v10")
    A(f"v_add_u32 v11, {L_TQ}, v10")
    XR = 16
    for i in range(8): A(f"ds_read_b32 v{XR+i}, v11 offset:{128*i}")
    A(f"s_lshl_b32 s{T+1}, s{S_WAVE}, 11")
    A("v_lshlrev_b32 v12, 5, v0")
    A(f"v_add_u32 v12, s{T+1}, v12")
    A(f"v_add_u32 v12, {L_KVL}, v12")
    KV = 24
    A(f"ds_read_b128 {p4(KV)}, v12")
    A(f"ds_read_b128 {p4(KV+4)}, v12 offset:16")
    A("v_lshlrev_b32 v12, 6, v6")
    A(f"v_add_u32 v12, {L_ST}, v12")
    SR = 32
    for i in range(4): A(f"ds_read_b128 {p4(SR+4*i)}, v12 offset:{16*i}")
    A("v_lshlrev_b32 v12, 3, v6")
    A(f"v_add_u32 v12, {L_SELT}, v12")
    A("ds_read_b64 v[48:49], v12")
    A(f"s_lshl_b32 s{T+1}, s76, 7")
    A("v_lshlrev_b32 v13, 2, v7")
    A(f"v_add_u32 v13, s{T+1}, v13")
    A(f"global_load_dword v50, v13, {sp(S_D)}")
    YR = 64
    def ld():
        A(f"global_load_dwordx4 {p4(YR)}, v8, {sp(62)} sc1")
        A(f"global_load_dwordx4 {p4(YR+4)}, v8, {sp(62)} offset:16 sc1")
        A(f"global_load_dwordx4 {p4(YR+8)}, v9, {sp(62)} sc1")
        A(f"global_load_dwordx4 {p4(YR+12)}, v9, {sp(62)} offset:16 sc1")
    A("s_waitcnt lgkmcnt(0)")
    XN, SS = 80, 96
    for i in range(8):
        m, rs = SR+2*i, SR+2*i+1
        A(f"v_lshlrev_b32 v{SS+2*i}, 16, v{XR+i}"); A(f"v_and_b32 v{SS+2*i+1}, s{S_MASK}, v{XR+i}")
        A(f"v_sub_f32 v{XN+2*i}, v{SS+2*i}, v{m}"); A(f"v_sub_f32 v{XN+2*i+1}, v{SS+2*i+1}, v{m}")
        A(f"v_mul_f32 v{XN+2*i}, v{XN+2*i}, v{rs}"); A(f"v_mul_f32 v{XN+2*i+1}, v{XN+2*i+1}, v{rs}")
        A(f"v_pk_add_f32 {p2(SS+2*i)}, {p2(SS+2*i)}, {p2(XN+2*i)}")
    if "dbgE" in OPTS: stamp(5)
    tagcheck_loop(ld, [YR+2*j+1 for j in range(8)], 14, 52, sleep=1)
    if "dbgE" in OPTS: stamp(6)
    A(f"v_lshlrev_b32 v52, 16, v50"); A(f"v_and_b32 v53, s{S_MASK}, v50")
    O = 112
    for i in range(8):
        for c in range(2):
            yr = YR + 8*c + 2*(i >> 1); kr = KV + 4*c + (i >> 1)
            t0, t1 = 54 + 2*c, 55 + 2*c
            if i & 1:
                A(f"v_and_b32 v{t0}, s{S_MASK}, v{yr}"); A(f"v_and_b32 v{t1}, s{S_MASK}, v{kr}")
            else:
                A(f"v_lshlrev_b32 v{t0}, 16, v{yr}"); A(f"v_lshlrev_b32 v{t1}, 16, v{kr}")
            A(f"v_fma_f32 v{t0}, v{t1}, v{52+c}, v{t0}")
            A(f"v_fma_f32 v{SS+2*i+c}, v{XN+2*i+c}, v{t0}, v{SS+2*i+c}")
        A(f"v_cvt_pk_bf16_f32 v{O+i}, v{SS+2*i}, v{SS+2*i+1}")
    A(f"v_add_u32 v11, {L_OT}, v10")
    for i in range(8): A(f"ds_write_b32 v11, v{O+i} offset:{128*i}")
    Lx = A.newlabel("L_nt1")
    A("v_or_b32 v12, v48, v49")
    A("v_cmp_ne_u32 vcc, 0, v12")
    A("s_nop 3")
    A("s_cmp_eq_u64 vcc, 0")
    A(f"s_cbranch_scc1 {Lx}")
    add64(64, S_WS, WS_T1G)
    A(f"s_lshl_b32 s{T+1}, s76, 6")
    A("v_lshlrev_b32 v13, 1, v7")
    A(f"v_add_u32 v13, s{T+1}, v13")
    for i in range(8):
        Li = A.newlabel("L_t1i")
        A(f"v_bfe_u32 v12, v{48 + (i >> 2)}, {8*(i & 3)}, 8")
        A("v_cmp_lt_u32 vcc, 0x7f, v12")
        A(f"s_and_saveexec_b64 {sp(T+12)}, vcc")
        A(f"s_cbranch_execz {Li}")
        A("v_and_b32 v12, 7, v12")
        A("v_mul_u32_u24 v12, 576, v12")
        A("v_add_u32 v12, v12, v13")
        A("v_lshlrev_b32 v12, 3, v12")
        A(f"v_sub_f32 v56, v{SS+2*i}, v{XN+2*i}")
        A(f"v_mov_b32 v57, s{S_NONCE}")
        A(f"v_sub_f32 v58, v{SS+2*i+1}, v{XN+2*i+1}")
        A(f"v_mov_b32 v59, s{S_NONCE}")
        A(f"global_store_dwordx4 v12, {p4(56)}, {sp(64)} sc1")
        A.label(Li)
        A(f"s_mov_b64 exec, {sp(T+12)}")
    A.label(Lx)
    A("s_waitcnt lgkmcnt(0)")
    A("s_barrier")
    A(f"s_lshl_b32 s{T+1}, s{S_WAVE}, 3")
    A(f"v_add_u32 v1, s{T+1}, v1")
    A("v_lshrrev_b32 v3, 3, v1")
    A(f"v_mul_u32_u24 v3, {TBLK}, v3")
    A("v_and_b32 v4, 7, v1")
    A("v_lshl_add_u32 v3, v4, 7, v3")
    A("v_lshl_add_u32 v3, v2, 4, v3")
    A(f"v_add_u32 v3, {L_OT}, v3")
    A(f"ds_read_b128 {p4(16)}, v3")
    A(f"ds_read_b128 {p4(20)}, v3 offset:{8*TBLK}")
    A(f"v_add_u32 v4, {L_SELT}, v1")
    A("ds_read_u8 v24, v4")
    A("ds_read_u8 v25, v4 offset:64")
    srd(SRD_O, S_OUT, 2359296)
    A(f"s_mul_i32 s{T+1}, s77, {128*1152}")
    A(f"s_lshl_b32 s{T+2}, s76, 7")
    A(f"s_add_u32 s{T+1}, s{T+1}, s{T+2}")
    A("v_mul_u32_u24 v5, 1152, v1")
    A("v_lshl_add_u32 v5, v2, 4, v5")
    A(f"v_add_u32 v5, s{T+1}, v5")
    A(f"v_add_u32 v6, {64*1152}, v5")
    A("s_waitcnt lgkmcnt(0)")
    for h, (va, vs, vd) in enumerate(((5, 24, 16), (6, 25, 20))):
        A(f"v_lshlrev_b32 v{vs}, 24, v{vs}")
        A(f"v_and_b32 v{vs}, 0x80000000, v{vs}")
        A(f"v_or_b32 v{va}, v{va}, v{vs}")
        A(f"buffer_store_dwordx4 {p4(vd)}, v{va}, s[{SRD_O}:{SRD_O+3}], 0 offen " + os.environ.get("OUTF", ""))
    stamp(9)
    tl(9, 7, 0)

def conv_wg():
    conv_tile()
    A(f"s_cmp_ge_u32 s{S_WAVE}, 4")
    A("s_cbranch_scc1 L_helper")
    conv_mfma_wave()
    A("s_branch L_epi")
    A.label("L_helper")
    conv_helper_prep()
    A.label("L_epi")
    conv_epilogue()
    A("s_branch L_fin")

M_WG = 0
M_WU = 73728
M_XS = 147456
XS_RS = 1168
M_H = M_XS + 8*XS_RS
H_RS = 144
M_GU = M_H + 8*H_RS
M_RED = M_GU
M_MISC = M_GU + 4096
M_END = M_MISC + 160
M_LIST = 0
S_DUMP = 16384

def moe_dma():
    T = S_T
    srd(SRD_K, S_WGT, 5308416)
    srd(SRD_V, S_WUP, 5308416)
    A("v_lshrrev_b32 v1, 3, v0")
    A("v_and_b32 v2, 7, v0")
    A("v_bfe_u32 v3, v0, 4, 1")
    A(f"s_and_b32 s{T+1}, s{S_WAVE}, 1")
    A(f"s_lshl_b32 s{T+1}, s{T+1}, 1")
    A(f"v_add_u32 v3, s{T+1}, v3")
    A("v_lshlrev_b32 v3, 1, v3")
    A("v_xor_b32 v2, v2, v3")
    A("v_mul_u32_u24 v1, 9216, v1")
    A("v_lshl_add_u32 v1, v2, 4, v1")
    A(f"s_lshl_b32 s{T+1}, s70, 7")
    A(f"v_add_u32 v1, s{T+1}, v1")
    A(f"s_mul_i32 s{T+3}, s{S_WAVE}, 73728")
    A(f"s_lshl_b32 s{T+4}, s{S_WAVE}, 10")
    A(f"s_mov_b32 s{T+5}, 0")
    L = A.newlabel("L_dma")
    A.label(L)
    A(f"s_add_u32 m0, s{T+4}, {M_WG}")
    A("s_nop 0")
    A(f"buffer_load_dwordx4 v1, s[{SRD_K}:{SRD_K+3}], s{T+3} offen {NT} lds")
    A(f"s_add_u32 m0, s{T+4}, {M_WU}")
    A(f"s_add_u32 s{T+5}, s{T+5}, 1")
    A(f"buffer_load_dwordx4 v1, s[{SRD_V}:{SRD_V+3}], s{T+3} offen {NT} lds")
    A(f"s_add_u32 s{T+3}, s{T+3}, {8*73728}")
    A(f"s_add_u32 s{T+4}, s{T+4}, {8*1024}")
    A(f"s_cmp_lt_u32 s{T+5}, 9")
    A(f"s_cbranch_scc1 {L}")

def moe_sel_wait():
    T = S_T
    A(f"s_lshl_b32 s{T+1}, s{S_WAVE}, 3")
    A(f"s_add_u32 s{T+1}, s{T+1}, {WS_SEL}")
    A(f"v_mov_b32 v3, s{T+1}")
    A("v_mov_b32 v4, 0")
    L = A.newlabel("L_sw"); Ld = A.newlabel("L_swd")
    A(f"s_mov_b32 s{T}, 0")
    A.label(L)
    A(f"global_load_dwordx2 v[16:17], v3, {sp(S_WS)} sc1")
    A(f"global_load_dword v30, v4, {sp(S_DBG)} sc1")
    A("s_waitcnt vmcnt(0)")
    A(f"v_readfirstlane_b32 s{S_NONCE}, v30")
    A(f"v_readfirstlane_b32 s{T+2}, v17")
    A(f"s_add_u32 s{T}, s{T}, 1")
    A(f"s_cmp_ge_u32 s{T}, {SPIN_MAX}")
    A(f"s_cbranch_scc1 {Ld}")
    A(f"s_cmp_eq_u32 s{S_NONCE}, 0")
    A(f"s_cbranch_scc1 {L}_s")
    A(f"s_cmp_eq_u32 s{T+2}, s{S_NONCE}")
    A(f"s_cbranch_scc1 {Ld}")
    A.label(L + "_s")
    A("s_sleep 3")
    A(f"s_branch {L}")
    A.label(Ld)

def moe_row_loads():
    T = S_T
    A("v_and_b32 v18, 0x7ff, v16")
    A("v_mul_u32_u24 v20, 1152, v18")
    A("v_and_b32 v21, 31, v0")
    A("v_mul_u32_u24 v21, 36, v21")
    A("v_add_u32 v20, v20, v21")
    A(f"global_load_dwordx4 {p4(24)}, v20, {sp(S_Q)}")
    A(f"global_load_dwordx4 {p4(28)}, v20, {sp(S_Q)} offset:16")
    A(f"global_load_dword v32, v20, {sp(S_Q)} offset:32")
    A("v_lshlrev_b32 v22, 3, v18")
    A(f"v_add_u32 v22, {WS_SG}, v22")
    A(f"global_load_dwordx2 v[40:41], v22, {sp(S_WS)} sc1")

def moe_xs_compute():
    T = S_T
    L = A.newlabel("L_sg"); Ld = A.newlabel("L_sgd")
    A(f"s_mov_b32 s{T}, 0")
    A.label(L)
    A(f"v_readfirstlane_b32 s{T+2}, v41")
    A(f"s_add_u32 s{T}, s{T}, 1")
    A(f"s_cmp_eq_u32 s{T+2}, s{S_NONCE}")
    A(f"s_cbranch_scc1 {Ld}")
    A(f"s_cmp_ge_u32 s{T}, {SPIN_MAX}")
    A(f"s_cbranch_scc1 {Ld}")
    A(f"global_load_dwordx2 v[40:41], v22, {sp(S_WS)} sc1")
    A("s_waitcnt vmcnt(0)")
    A(f"s_branch {L}")
    A.label(Ld)
    A(f"v_lshlrev_b32 v44, 16, v40")
    A(f"v_and_b32 v45, s{S_MASK}, v40")
    A("v_rcp_f32 v46, v45")
    A(f"v_and_b32 v52, s{S_MASK}, v16")
    A("v_fma_f32 v47, -v45, v46, 1.0")
    A("v_fma_f32 v46, v47, v46, v46")
    A(f"v_mul_f32 v52, 0x{f32bits(-1.4426950408889634):08x}, v52")
    A("v_exp_f32 v52, v52")
    for i in range(9):
        r = 24 + i
        t = 48 + 2*(i & 1)
        A(f"v_lshlrev_b32 v{t}, 16, v{r}")
        A(f"v_and_b32 v{t+1}, s{S_MASK}, v{r}")
        A(f"v_pk_add_f32 {p2(t)}, {p2(t)}, v[44:45] op_sel_hi:[1,0] neg_lo:[0,1] neg_hi:[0,1]")
        rnd(t); rnd(t+1)
        A(f"v_pk_mul_f32 {p2(t)}, {p2(t)}, v[46:47] op_sel_hi:[1,0]")
        A(f"v_cvt_pk_bf16_f32 v{r}, v{t}, v{t+1}")
    A("v_add_f32 v52, 1.0, v52")
    A("v_rcp_f32 v52, v52")
    A(f"s_mul_i32 s{T+4}, s{S_WAVE}, {XS_RS}")
    A(f"s_add_u32 s{T+4}, s{T+4}, {M_XS}")
    A("v_add_u32 v21, s%d, v21" % (T+4))
    rnd(52)
    A("s_mov_b64 exec, 0xffffffff")
    A("ds_write2_b32 v21, v24, v25 offset0:0 offset1:1")
    A("ds_write2_b32 v21, v26, v27 offset0:2 offset1:3")
    A("ds_write2_b32 v21, v28, v29 offset0:4 offset1:5")
    A("ds_write2_b32 v21, v30, v31 offset0:6 offset1:7")
    A("ds_write_b32 v21, v32 offset:32")
    A(f"s_lshl_b32 s{T+4}, s{S_WAVE}, 2")
    A(f"s_add_u32 s{T+4}, s{T+4}, {M_MISC+32}")
    A(f"v_mov_b32 v53, s{T+4}")
    A("s_mov_b64 exec, 1")
    A("ds_write_b32 v53, v16")
    A("ds_write_b32 v53, v52 offset:32")
    A("s_mov_b64 exec, -1")
    A(f"s_lshl_b32 s{T+1}, s{S_WAVE}, 6")
    A(f"v_add_u32 v1, s{T+1}, v0")

DRA, DRB = 64, 96
def moe_down_loads():
    T = S_T
    A("v_lshrrev_b32 v6, 4, v0")
    A("v_mul_u32_u24 v5, 9216, v6")
    A("v_and_b32 v6, 15, v0")
    A("v_lshl_add_u32 v5, v6, 3, v5")
    A(f"s_mul_i32 s{T+1}, s70, 73728")
    A(f"s_lshl_b32 s{T+2}, s{S_WAVE}, 7")
    A(f"s_add_u32 s{T+1}, s{T+1}, s{T+2}")
    A(f"v_add_u32 v5, s{T+1}, v5")
    srd(SRD_Q, S_WD, 5308416)
    def panel(R, extra):
        for ks in range(2):
            for jj in range(8):
                so = 36864*ks + 4608*(jj//4) + extra
                A(f"s_mov_b32 s{T+3}, {so}")
                r = R + 16*ks + 2*jj
                A(f"buffer_load_dwordx2 {p2(r)}, v5, s[{SRD_Q}:{SRD_Q+3}], s{T+3} offen offset:{1152*(jj%4)} {NT}")
    panel(DRA, 0)
    L = A.newlabel("L_np8")
    A(f"s_cmp_lg_u32 s{S_WAVE}, 0")
    A(f"s_cbranch_scc1 {L}")
    panel(DRB, 1024)
    A.label(L)

def down_perm(R, F):
    for ks in range(2):
        for e in range(4):
            sel = S_SELLO if (e & 1) == 0 else S_SELHI
            for q in range(4):
                A(f"v_perm_b32 v{F+16*ks+4*e+q}, v{R+16*ks+2*(2*q+1)+e//2}, v{R+16*ks+2*(2*q)+e//2}, s{sel}")

def moe_gateup_addr():
    T = S_T
    A(f"s_lshr_b32 s{T+1}, s{S_WAVE}, 2")
    A(f"s_and_b32 s{T+2}, s{S_WAVE}, 3")
    A("v_lshrrev_b32 v6, 4, v0")
    A("v_bfe_u32 v7, v0, 2, 2")
    A("v_and_b32 v8, 3, v0")
    A("v_lshrrev_b32 v9, 1, v7")
    A("v_and_b32 v10, 1, v6")
    A("v_lshl_add_u32 v9, v10, 1, v9")
    A("v_lshlrev_b32 v9, 1, v9")
    A("v_lshrrev_b32 v10, 1, v8")
    A(f"s_lshl_b32 s{T+3}, s{T+2}, 1")
    A(f"v_add_u32 v10, s{T+3}, v10")
    A("v_xor_b32 v10, v10, v9")
    A("v_lshlrev_b32 v34, 10, v6")
    A("v_lshl_add_u32 v34, v7, 7, v34")
    A("v_lshl_add_u32 v34, v10, 4, v34")
    A("v_and_b32 v8, 1, v8")
    A("v_lshl_add_u32 v34, v8, 3, v34")
    A(f"s_mul_i32 s{T+3}, s{T+1}, {M_WU}")
    A(f"v_add_u32 v34, s{T+3}, v34")
    A(f"v_add_u32 v35, {4096*9}, v34")

def gu_areg(t):
    return f"v[{128+4*t}:{128+4*t+3}]" if t < 16 else f"a[{4*(t-16)}:{4*(t-16)+3}]"
def gu_areg2(t, h):
    if t < 16: return f"v[{128+4*t+2*h}:{128+4*t+2*h+1}]"
    return f"a[{4*(t-16)+2*h}:{4*(t-16)+2*h+1}]"
def moe_gateup_preload():
    for t in range(18):
        a, o = (34, 4096*t) if t < 9 else (35, 4096*(t-9))
        A(f"ds_read_b64_tr_b16 {gu_areg2(t,0)}, v{a} offset:{o}")
        A(f"ds_read_b64_tr_b16 {gu_areg2(t,1)}, v{a} offset:{o+512}")
        if t % 6 == 5: A("s_waitcnt lgkmcnt(2)")

def moe_gateup():
    T = S_T
    A(f"s_lshr_b32 s{T+1}, s{S_WAVE}, 2")
    A(f"s_and_b32 s{T+2}, s{S_WAVE}, 3")
    A("v_lshrrev_b32 v6, 4, v0")
    A("v_and_b32 v3, 7, v0")
    A(f"v_mul_u32_u24 v3, {XS_RS}, v3")
    A("v_lshl_add_u32 v3, v6, 4, v3")
    A(f"v_add_u32 v3, {M_XS}, v3")
    B0 = 8
    def rd(t):
        b = B0 + 4*(t % 12)
        A(f"ds_read_b128 a[{b}:{b+3}], v3 offset:{64*t}")
    for t in range(12): rd(t)
    for t in range(18):
        rem = min(17, t+11) - t
        A(f"s_waitcnt lgkmcnt({min(rem, 15)})")
        b = B0 + 4*(t % 12)
        acc = 8 + 4*(t & 1)
        cin = "0" if t < 2 else f"v[{acc}:{acc+3}]"
        A(f"v_mfma_f32_16x16x32_bf16 v[{acc}:{acc+3}], {gu_areg(t)}, a[{b}:{b+3}], {cin}")
        if t + 12 < 18: rd(t+12)
    A("v_and_b32 v3, 15, v0")
    A("v_lshlrev_b32 v4, 8, v3")
    A("v_lshl_add_u32 v4, v6, 4, v4")
    A(f"s_lshl_b32 s{T+3}, s{T+1}, 11")
    A(f"s_lshl_b32 s{T+4}, s{T+2}, 6")
    A(f"s_add_u32 s{T+3}, s{T+3}, s{T+4}")
    A(f"s_add_u32 s{T+3}, s{T+3}, {M_GU}")
    A(f"v_add_u32 v4, s{T+3}, v4")
    A("v_cmp_gt_u32 vcc, 8, v3")
    A(f"s_and_saveexec_b64 {sp(T+12)}, vcc")
    A("s_nop 1")
    A("v_pk_add_f32 v[8:9], v[8:9], v[12:13]")
    A("v_pk_add_f32 v[10:11], v[10:11], v[14:15]")
    A(f"ds_write_b128 v4, {p4(8)}")
    A(f"s_mov_b64 exec, {sp(T+12)}")

def moe_h_and_down_stage():
    T = S_T
    A("v_lshlrev_b32 v2, 2, v1")
    A(f"v_add_u32 v2, {M_GU}, v2")
    A("ds_read_b32 v8, v2")
    A("ds_read_b32 v9, v2 offset:2048")
    A("v_lshrrev_b32 v3, 6, v1")
    A(f"v_mul_u32_u24 v3, {H_RS}, v3")
    A("v_lshl_add_u32 v3, v0, 1, v3")
    A(f"v_add_u32 v3, {M_H}, v3")
    A("s_waitcnt lgkmcnt(0)")
    rnd(8); rnd(9)
    A(f"v_mul_f32 v10, 0x{f32bits(-1.4426950408889634):08x}, v8")
    A("v_exp_f32 v10, v10")
    A("s_nop 0")
    A("v_add_f32 v10, 1.0, v10")
    A("v_rcp_f32 v10, v10")
    A("s_nop 0")
    A("v_mul_f32 v10, v8, v10")
    rnd(10)
    A("v_mul_f32 v10, v10, v9")
    A("v_cvt_pk_bf16_f32 v10, v10, v10")
    A("ds_write_b16 v3, v10")
    A("s_waitcnt vmcnt(0)")
    down_perm(DRA, 32)
    L = A.newlabel("L_np8b")
    A(f"s_cmp_lg_u32 s{S_WAVE}, 0")
    A(f"s_cbranch_scc1 {L}")
    down_perm(DRB, 64)
    A.label(L)

def moe_down():
    T = S_T
    A("v_and_b32 v2, 7, v0")
    A(f"v_mul_u32_u24 v2, {H_RS}, v2")
    A("v_lshrrev_b32 v6, 4, v0")
    A("v_lshl_add_u32 v2, v6, 4, v2")
    A(f"v_add_u32 v2, {M_H}, v2")
    A(f"ds_read_b128 {p4(16)}, v2")
    A(f"ds_read_b128 {p4(20)}, v2 offset:64")
    A("v_and_b32 v4, 15, v0")
    A("v_lshlrev_b32 v5, 4, v4")
    A("v_lshl_add_u32 v5, v6, 9, v5")
    A(f"s_mul_i32 s{T+1}, s70, 18432")
    A(f"s_lshl_b32 s{T+2}, s{S_WAVE}, 11")
    A(f"s_add_u32 s{T+1}, s{T+1}, s{T+2}")
    A(f"v_add_u32 v5, s{T+1}, v5")
    add64(T+2, S_WS, WS_PART)
    A(f"s_mov_b32 s{T+4}, 0x07060503"); A(f"s_mov_b32 s{T+5}, 0x06050302"); A(f"s_mov_b32 s{T+6}, 0x05030201")
    A("v_cmp_gt_u32 vcc, 8, v4")
    A(f"s_mov_b64 {sp(T+12)}, vcc")
    A("s_waitcnt lgkmcnt(0)")
    def panel(F, ACC, G, vaddr):
        for e in range(4):
            A(f"v_mfma_f32_16x16x32_bf16 {p4(ACC+4*e)}, {p4(F+4*e)}, {p4(16)}, 0")
        for e in range(4):
            A(f"v_mfma_f32_16x16x32_bf16 {p4(ACC+4*e)}, {p4(F+16+4*e)}, {p4(20)}, {p4(ACC+4*e)}")
        A("s_nop 7"); A("s_nop 1")
        for r in range(4):
            g = G + 4*r
            a, b, c, d = ACC+r, ACC+4+r, ACC+8+r, ACC+12+r
            A(f"v_perm_b32 v{g}, v{a}, v{b}, s{T+4}")
            A(f"v_perm_b32 v{g+1}, v{b}, v{c}, s{T+5}")
            A(f"v_perm_b32 v{g+2}, v{c}, v{d}, s{T+6}")
            A(f"v_mov_b32 v{g+3}, s{S_NONCE}")
        A(f"s_mov_b64 exec, {sp(T+12)}")
        for r in range(4):
            A(f"global_store_dwordx4 v{vaddr}, {p4(G+4*r)}, {sp(T+2)} offset:{128*r} sc1")
        A("s_mov_b64 exec, -1")
    panel(32, 96, 112, 5)
    L = A.newlabel("L_np8c")
    A(f"s_cmp_lg_u32 s{S_WAVE}, 0")
    A(f"s_cbranch_scc1 {L}")
    A(f"v_add_u32 v7, {8*2048}, v5")
    panel(64, 96, 32, 7)
    A.label(L)

def moe_reduce():
    T = S_T
    A("v_lshrrev_b32 v6, 4, v0")
    A(f"s_mul_i32 s{T+1}, s{S_WAVE}, 9")
    A(f"v_add_u32 v1, s{T+1}, v6")
    A(f"v_mul_u32_u24 v1, 18432, v1")
    A("v_and_b32 v2, 15, v0")
    A("v_lshl_add_u32 v1, v2, 4, v1")
    A(f"s_lshl_b32 s{T+1}, s70, 8")
    A(f"v_add_u32 v1, s{T+1}, v1")
    A(f"v_add_u32 v3, {4*18432}, v1")
    A(f"v_mul_u32_u24 v4, 18432, v6")
    A(f"v_sub_u32 v4, v1, v4")
    A(f"v_add_u32 v4, {8*18432}, v4")
    A("v_lshrrev_b32 v50, 2, v0")
    A("v_and_b32 v51, 3, v0")
    A(f"s_lshl_b32 s{T+1}, s70, 4")
    A(f"v_add_u32 v52, s{T+1}, v50")
    A("v_and_b32 v53, 7, v52")
    A("v_lshrrev_b32 v54, 3, v52")
    A("v_lshl_add_u32 v54, v54, 2, v51")
    A("v_mul_u32_u24 v55, 576, v53")
    A("v_add_u32 v55, v55, v54")
    A("v_lshlrev_b32 v55, 3, v55")
    A(f"v_add_u32 v55, {WS_T1G}, v55")
    add64(T+2, S_WS, WS_PART)
    def ld():
        A(f"global_load_dwordx4 {p4(16)}, v1, {sp(T+2)} sc1")
        A(f"global_load_dwordx4 {p4(20)}, v3, {sp(T+2)} sc1")
        A(f"global_load_dwordx4 {p4(24)}, v4, {sp(T+2)} sc1")
        A(f"global_load_dwordx2 v[28:29], v55, {sp(S_WS)} sc1")
    tagcheck_loop(ld, [19, 23, 27, 29], 10, 12, sleep=1)
    stamp(8)
    tl(14, 151, 0)
    A(f"s_mov_b32 s{T+4}, 0x0403020c"); A(f"s_mov_b32 s{T+5}, 0x0504030c"); A(f"s_mov_b32 s{T+6}, 0xffffff00")
    U = 32
    for i in range(3):
        g = 16 + 4*i; u = U + 4*i
        A(f"v_and_b32 v{u}, s{T+6}, v{g}")
        A(f"v_perm_b32 v{u+1}, v{g}, v{g+1}, s{T+4}")
        A(f"v_perm_b32 v{u+2}, v{g+1}, v{g+2}, s{T+5}")
        A(f"v_lshlrev_b32 v{u+3}, 8, v{g+2}")
    for r in range(4):
        A(f"v_add_f32 v{U+r}, v{U+r}, v{U+4+r}")
    for swap in ("v_permlane32_swap_b32", "v_permlane16_swap_b32"):
        for r in range(4): A(f"v_mov_b32 v{44+r}, v{U+r}")
        A("s_nop 1")
        for r in range(4): A(f"{swap} v{U+r}, v{44+r}")
        for r in range(4): A(f"v_add_f32 v{U+r}, v{U+r}, v{44+r}")
    for r in range(4):
        A(f"v_add_f32 v{U+r}, v{U+r}, v{U+8+r}")
    A(f"s_lshl_b32 s{T+1}, s{S_WAVE}, 8")
    A("v_lshlrev_b32 v5, 4, v2")
    A(f"v_add_u32 v5, s{T+1}, v5")
    A(f"v_add_u32 v5, {M_RED}, v5")
    A("s_mov_b64 exec, 0xffff")
    A(f"ds_write_b128 v5, {p4(U)}")
    A("s_mov_b64 exec, -1")
    A("s_waitcnt lgkmcnt(0)")
    A("s_barrier")
    L = A.newlabel("L_nofin")
    A(f"s_cmp_lg_u32 s{S_WAVE}, 0")
    A(f"s_cbranch_scc1 {L}")
    A("v_lshlrev_b32 v6, 4, v50")
    A("v_lshl_add_u32 v6, v51, 2, v6")
    A(f"v_add_u32 v6, {M_RED}, v6")
    for w in range(8): A(f"ds_read_b32 v{16+w}, v6 offset:{256*w}")
    A(f"v_mul_u32_u24 v7, {XS_RS}, v53")
    A("v_lshl_add_u32 v7, v54, 1, v7")
    A(f"v_add_u32 v7, {M_XS}, v7")
    A("ds_read_u16 v24, v7")
    A("v_lshlrev_b32 v8, 2, v53")
    A(f"v_add_u32 v8, {M_MISC}, v8")
    A("ds_read_b32 v25, v8 offset:32")
    A("ds_read_b32 v26, v8 offset:64")
    A("v_mov_b32 v5, v54")
    A("s_waitcnt lgkmcnt(0)")
    A("v_add_f32 v16, v16, v17"); A("v_add_f32 v18, v18, v19"); A("v_add_f32 v20, v20, v21"); A("v_add_f32 v22, v22, v23")
    A("v_add_f32 v16, v16, v18"); A("v_add_f32 v20, v20, v22"); A("v_add_f32 v16, v16, v20")
    rnd(16)
    A("v_mul_f32 v16, v16, v26")
    rnd(16)
    A("v_lshlrev_b32 v24, 16, v24")
    A("v_add_f32 v16, v24, v16")
    rnd(16)
    A("v_add_f32 v16, v28, v16")
    A("v_cvt_pk_bf16_f32 v16, v16, v16")
    A("v_and_b32 v25, 0x7ff, v25")
    A("v_mul_u32_u24 v25, 1152, v25")
    A("v_lshl_add_u32 v25, v5, 1, v25")
    A(f"global_store_short v25, v16, {sp(S_OUT)}")
    A.label(L)

def lds_init_list():
    T = S_T
    A(f"s_lshl_b32 s{T+1}, s{S_WAVE}, 10")
    A("v_lshlrev_b32 v110, 4, v0")
    A(f"v_add_u32 v111, s{T+1}, v110")
    A(f"v_add_u32 v111, {M_LIST}, v111")
    for i in range(4): A(f"v_mov_b32 v{112+i}, 0xff800000")
    A(f"ds_write_b128 v111, {p4(112)}")
    L0 = A.newlabel("L_ni")
    A(f"s_cmp_lg_u32 s{S_WAVE}, 0")
    A(f"s_cbranch_scc1 {L0}")
    A(f"v_add_u32 v111, {M_LIST+8192}, v110")
    A("s_mov_b64 exec, 0xf")
    A(f"ds_write_b128 v111, {p4(112)}")
    A("s_mov_b64 exec, -1")
    for i in range(4): A(f"v_mov_b32 v{116+i}, 0")
    A(f"v_add_u32 v111, {M_MISC}, v110")
    A("s_mov_b64 exec, 0x3ff")
    A(f"ds_write_b128 v111, {p4(116)}")
    A("s_mov_b64 exec, -1")
    A.label(L0)

def sel_top8():
    T = S_T
    A(f"s_lshl_b32 s{T+1}, s{S_WAVE}, 6")
    A(f"v_add_u32 v1, s{T+1}, v0")
    A("v_lshlrev_b32 v2, 5, v1")
    add64(T+2, S_WS, WS_RG)
    K = 16
    def ld():
        for i in range(2):
            A(f"global_load_dwordx4 {p4(K+4*i)}, v2, {sp(T+2)} offset:{16*i} sc1")
    tagcheck_loop(ld, [K+2*i+1 for i in range(4)], 10, 12, sleep=1)
    stamp(5)
    tl(10, 255, 0)
    keys = [K+2*i for i in range(4)]
    A(f"v_max3_f32 v40, v{keys[0]}, v{keys[1]}, v{keys[2]}")
    A(f"v_max_f32 v40, v40, v{keys[3]}")
    for sh in (8, 4, 2, 1):
        A("s_nop 1")
        A(f"v_max_f32_dpp v40, v40, v40 row_ror:{sh} row_mask:0xf bank_mask:0xf")
    A("s_nop 1")
    A(f"v_readlane_b32 s{T+4}, v40, 16")
    A(f"v_readlane_b32 s{T+5}, v40, 32")
    A(f"v_readlane_b32 s{T+6}, v40, 48")
    A("s_nop 1")
    A(f"v_max_f32 v40, s{T+4}, v40")
    A(f"v_max_f32 v40, s{T+5}, v40")
    A(f"v_max_f32 v40, s{T+6}, v40")
    A(f"s_lshl_b32 s{T+4}, s{S_WAVE}, 2")
    A(f"s_add_u32 s{T+4}, s{T+4}, {M_MISC+96}")
    A(f"v_mov_b32 v43, s{T+4}")
    A("s_mov_b64 exec, 1")
    A(f"ds_write_b32 v43, v40")
    A("s_mov_b64 exec, -1")
    A("s_waitcnt lgkmcnt(0)")
    A("s_barrier")
    A(f"v_mov_b32 v43, {M_MISC+96}")
    A(f"ds_read_b128 {p4(44)}, v43")
    A(f"ds_read_b128 {p4(48)}, v43 offset:16")
    A("s_waitcnt lgkmcnt(0)")
    A("v_min3_f32 v40, v44, v45, v46")
    A("v_min3_f32 v41, v47, v48, v49")
    A("v_min3_f32 v40, v40, v50, v51")
    A("v_min_f32 v40, v40, v41")
    A("v_mov_b32 v41, 0")
    for i in range(4):
        A(f"v_cmp_ge_f32 {sp(T+4+2*i)}, v{keys[i]}, v40")
    for q in range(4):
        A(f"v_addc_co_u32 v41, vcc, 0, v41, {sp(T+4+2*q)}")
    A(f"v_mov_b32 v43, {M_MISC}")
    A("v_cmp_lt_u32 vcc, 0, v41")
    A(f"s_and_saveexec_b64 {sp(T+12)}, vcc")
    A("ds_add_rtn_u32 v42, v43, v41")
    A(f"s_mov_b64 exec, {sp(T+12)}")
    A("s_waitcnt lgkmcnt(0)")
    A("v_lshlrev_b32 v42, 2, v42")
    A(f"v_add_u32 v42, {M_LIST}, v42")
    A(f"v_mov_b32 v43, {S_DUMP}")
    for i in range(4):
        A(f"v_cndmask_b32 v44, v43, v42, {sp(T+4+2*i)}")
        A(f"v_cndmask_b32 v45, 0, 4, {sp(T+4+2*i)}")
        A(f"ds_write_b32 v44, v{keys[i]}")
        A(f"v_add_u32 v42, v42, v45")
    A("s_waitcnt lgkmcnt(0)")
    A("s_barrier")
    A(f"v_mov_b32 v43, {M_MISC}")
    A("ds_read_b32 v44, v43")
    A("s_waitcnt lgkmcnt(0)")
    A(f"v_readfirstlane_b32 s{T+8}, v44")
    A(f"s_mov_b32 s{T+9}, 0")
    Lc = A.newlabel("L_chunk"); Lj = A.newlabel("L_j")
    A.label(Lc)
    A(f"v_add_u32 v44, s{T+9}, v0")
    A("v_lshlrev_b32 v44, 2, v44")
    A(f"v_add_u32 v44, {M_LIST}, v44")
    A("ds_read_b32 v46, v44")
    A("v_mov_b32 v47, 0")
    A(f"v_mov_b32 v45, {M_LIST}")
    A(f"s_mov_b32 s{T+10}, 0")
    A.label(Lj)
    A(f"ds_read_b128 {p4(48)}, v45")
    A(f"ds_read_b128 {p4(52)}, v45 offset:16")
    A("v_add_u32 v45, 32, v45")
    A(f"s_add_u32 s{T+10}, s{T+10}, 8")
    A("s_waitcnt lgkmcnt(1)")
    for q in range(4):
        A(f"v_cmp_gt_f32 {sp(T+2*q)}, v{48+q}, v46")
    for q in range(4):
        A(f"v_addc_co_u32 v47, vcc, 0, v47, {sp(T+2*q)}")
    A("s_waitcnt lgkmcnt(0)")
    for q in range(4):
        A(f"v_cmp_gt_f32 {sp(T+2*q)}, v{52+q}, v46")
    for q in range(4):
        A(f"v_addc_co_u32 v47, vcc, 0, v47, {sp(T+2*q)}")
    A(f"s_cmp_lt_u32 s{T+10}, s{T+8}")
    A(f"s_cbranch_scc1 {Lj}")
    A(f"v_add_u32 v44, s{T+9}, v0")
    A(f"v_cmp_gt_u32 vcc, s{T+8}, v44")
    A(f"v_cmp_gt_u32 {sp(T)}, 8, v47")
    A("s_nop 1")
    A(f"s_and_b64 vcc, vcc, {sp(T)}")
    A(f"s_and_saveexec_b64 {sp(T+12)}, vcc")
    A("v_lshlrev_b32 v47, 2, v47")
    A(f"v_add_u32 v47, {M_MISC+32}, v47")
    A("ds_write_b32 v47, v46")
    A(f"s_mov_b64 exec, {sp(T+12)}")
    A(f"s_add_u32 s{T+9}, s{T+9}, 64")
    A(f"s_cmp_lt_u32 s{T+9}, s{T+8}")
    A(f"s_cbranch_scc1 {Lc}")
    A("s_waitcnt lgkmcnt(0)")
    stamp(6)

def sel_publish():
    T = S_T
    L = A.newlabel("L_sp")
    A(f"s_cmp_lg_u32 s{S_WAVE}, 0")
    A(f"s_cbranch_scc1 {L}")
    A("v_lshlrev_b32 v1, 2, v0")
    A(f"v_add_u32 v1, {M_MISC+32}, v1")
    A("s_mov_b64 exec, 0xff")
    A("ds_read_b32 v2, v1")
    add64(T+2, S_WS, WS_SEL)
    A(f"v_mov_b32 v3, s{S_NONCE}")
    A("v_lshlrev_b32 v4, 3, v0")
    A("s_waitcnt lgkmcnt(0)")
    A(f"global_store_dwordx2 v4, v[2:3], {sp(T+2)} sc1")
    A("s_mov_b64 exec, -1")
    A.label(L)
    stamp(7)
    tl(11, 255, 0)

def ln_pass(stok):
    ln_loads(stok, LN_Q, True)
    A("v_mov_b32 v120, 0")
    A(f"global_load_dword v121, v120, {sp(S_DBG)} sc1")
    A("s_waitcnt vmcnt(1)")
    def hook():
        Lhn = A.newlabel("L_lnn")
        A("s_waitcnt vmcnt(0)")
        A(f"v_readfirstlane_b32 s{S_NONCE}, v121")
        A(f"s_cmp_lg_u32 s{S_NONCE}, 0")
        A(f"s_cbranch_scc1 {Lhn}")
        get_nonce(124)
        A.label(Lhn)
    ln_compute_publish(LN_Q, 3, True, hook=hook)

def spare_wg():
    T = S_T
    A(f"s_sub_u32 s69, s69, {NMOE}")
    A("s_mul_i32 s68, s69, 24")
    A(f"s_lshl_b32 s{T+1}, s{S_WAVE}, 2")
    A(f"s_add_u32 s68, s68, s{T+1}")
    A("s_add_u32 s68, s68, 1152")
    Le = A.newlabel("L_lne")
    A(f"s_cmp_ge_u32 s{S_WAVE}, 6")
    A(f"s_cbranch_scc1 {Le}")
    A("s_cmp_ge_u32 s68, 2048")
    A(f"s_cbranch_scc1 {Le}")
    ln_pass(68)
    A.label(Le)
    stamp(4)
    A(f"s_cmp_lg_u32 s69, {SELIDX}")
    A("s_cbranch_scc1 L_fin")
    lds_init_list()
    get_nonce(124)
    A("s_waitcnt lgkmcnt(0)")
    A("s_barrier")
    sel_top8()
    sel_publish()
    A("s_branch L_fin")

def moe_wg():
    T = S_T
    A(f"s_sub_u32 s69, s{S_WG}, {NCONV}")
    A(f"s_cmp_ge_u32 s69, {NMOE}")
    A("s_cbranch_scc1 L_spare")
    A("s_and_b32 s70, s69, 7")
    A("s_mul_i32 s70, s70, 9")
    A(f"s_lshr_b32 s{T+1}, s69, 3")
    A(f"s_add_u32 s70, s70, s{T+1}")
    Lm = A.newlabel("L_mln")
    A(f"s_cmp_ge_u32 s{S_WAVE}, 4")
    A(f"s_cbranch_scc1 {Lm}")
    A("s_lshl_b32 s68, s69, 4")
    A(f"s_lshl_b32 s{T+1}, s{S_WAVE}, 2")
    A(f"s_add_u32 s68, s68, s{T+1}")
    ln_pass(68)
    A.label(Lm)
    if "mbar" in OPTS: A("s_barrier")
    if "mnonce" in OPTS: get_nonce(10)
    stamp(3)
    moe_dma()
    A("s_waitcnt vmcnt(4)")
    stamp(4)
    moe_sel_wait()
    stamp(5)
    tl(12, 151, 7)
    moe_row_loads()
    A("s_barrier")
    moe_down_loads()
    moe_gateup_addr()
    moe_gateup_preload()
    Lq = A.newlabel("L_w32")
    A(f"s_cmp_lg_u32 s{S_WAVE}, 0")
    A(f"s_cbranch_scc1 {Lq}")
    A("s_waitcnt vmcnt(32)")
    A.label(Lq)
    A(f"s_cmp_eq_u32 s{S_WAVE}, 0")
    A(f"s_cbranch_scc1 {Lq}_b")
    A("s_waitcnt vmcnt(16)")
    A.label(Lq + "_b")
    moe_xs_compute()
    stamp(6)
    tl(13, 151, 7)
    A("s_waitcnt lgkmcnt(0)")
    A("s_barrier")
    moe_gateup()
    A("s_waitcnt lgkmcnt(0)")
    A("s_barrier")
    moe_h_and_down_stage()
    A("s_waitcnt lgkmcnt(0)")
    A("s_barrier")
    stamp(7)
    moe_down()
    moe_reduce()
    A("s_branch L_fin")
    A.label("L_spare")
    spare_wg()

def main():
    prologue()
    A(f"s_cmp_ge_u32 s{S_WG}, {NCONV}")
    A("s_cbranch_scc1 L_moe")
    conv_wg()
    A.label("L_moe")
    moe_wg()
    A.label("L_fin")
    tl(15, 151, 0)
    prof_end()
    A.label("L_end")
    A("s_endpgm")

main()
K = NAME + "_kernel"
LDS = max(L_CONV_END, M_END)
txt = HDR + f"; @launch grid=(256,1,1) block=(512,1,1) lds={LDS}\n" + '.amdgcn_target "amdgcn-amd-amdhsa--gfx950"\n.text\n' + head(K) + A.text() + kd(K, 256, 102, 192, "  .amdhsa_float_denorm_mode_32 3\n")
open(OUTFN, "w").write(txt)
print("wrote", OUTFN, len(txt), "LDS", LDS)
```

```python
import sys, struct, os
sys.path.insert(0, "dev")
from asmlib import *

OUTFN = sys.argv[1] if len(sys.argv) > 1 else "k.s"
OPTS = set(sys.argv[2:])
PROF = "prof" in OPTS
NT = "nt" if "nt" in OPTS else ""

WS_KVT = 0x000000
WS_XT = 0x240000
WS_RG = 0x480000
WS_SG = 0x484000
WS_FL = 0x488000
WS_FL2 = 0x488800
WS_SEL = 0x489800
WS_T1G = 0x48A000
WS_XSG = 0x494000
WS_PART = 0x4A0000
WS_PROF = 0x800000
WS_YG = 0x1000000
SPIN_MAX = 2000 if "dbgB" in OPTS else 400000
NCONV, NMOE = 144, 72
NLN = 40
SELIDX = 39

S_WG, S_WAVE = 2, 3
S_Q, S_K, S_V, S_SK, S_H, S_D, S_BX, S_WR, S_WGT, S_WUP, S_WD, S_OUT, S_DBG, S_WS = 4, 6, 8, 10, 12, 14, 16, 18, 20, 22, 24, 26, 28, 30
SRD_K, SRD_V, SRD_Q, SRD_O = 32, 36, 40, 44
S_NONCE = 48
S_MASK, S_SELLO, S_SELHI = 50, 51, 52
S_T = 54

A = Asm()
def f32bits(x): return struct.unpack("<I", struct.pack("<f", x))[0]
def p2(r): return f"v[{r}:{r+1}]"
def p4(r): return f"v[{r}:{r+3}]"
def sp(r): return f"s[{r}:{r+1}]"

NSTAMP = 10
def stamp(i):
    if PROF: A(f"s_memtime s[{80+2*i}:{81+2*i}]")
def prof_begin():
    if PROF:
        A("s_memrealtime s[100:101]")
        stamp(0)
        for i in range(1, NSTAMP):
            A(f"s_mov_b64 s[{80+2*i}:{81+2*i}], 0")
def prof_end():
    if not PROF: return
    A(f"s_memrealtime s[{S_T+2}:{S_T+3}]")
    A("s_waitcnt lgkmcnt(0)")
    A(f"s_lshl_b32 s{S_T}, s{S_WG}, 3")
    A(f"s_add_u32 s{S_T}, s{S_T}, s{S_WAVE}")
    A(f"s_lshl_b32 s{S_T}, s{S_T}, 6")
    A(f"s_add_u32 s{S_T}, s{S_T}, {WS_PROF}")
    A(f"v_mov_b32 v1, s{S_T}")
    A("s_mov_b64 exec, 1")
    A("v_mov_b32 v2, s100")
    A(f"global_store_dword v1, v2, {sp(S_WS)}")
    A(f"v_mov_b32 v2, s{S_T+2}")
    A(f"global_store_dword v1, v2, {sp(S_WS)} offset:4")
    for i in range(1, NSTAMP):
        A(f"s_sub_u32 s{S_T+1}, s{80+2*i}, s80")
        A(f"v_mov_b32 v2, s{S_T+1}")
        A(f"global_store_dword v1, v2, {sp(S_WS)} offset:{4+4*i}")
    A("s_mov_b64 exec, -1")

TL = "tl" in OPTS
TLSET = os.environ.get("TLSET", "A")
def tl(slot, wg, wave, setname="A"):
    if not TL or setname != TLSET: return
    L = A.newlabel("L_tl")
    A(f"s_cmp_lg_u32 s{S_WG}, {wg}")
    A(f"s_cbranch_scc1 {L}")
    A(f"s_cmp_lg_u32 s{S_WAVE}, {wave}")
    A(f"s_cbranch_scc1 {L}")
    A("s_memrealtime s[98:99]")
    A("s_mov_b64 s[100:101], exec")
    A("s_mov_b64 exec, 1")
    A("v_readfirstlane_b32 s96, v126")
    A("v_readfirstlane_b32 s97, v127")
    A(f"v_mov_b32 v126, {4*slot}")
    A("s_waitcnt lgkmcnt(0)")
    A("v_mov_b32 v127, s98")
    A(f"global_store_dword v126, v127, {sp(S_DBG)}")
    A("s_nop 4")
    A("v_mov_b32 v126, s96")
    A("v_mov_b32 v127, s97")
    A("s_mov_b64 exec, s[100:101]")
    A.label(L)

def rnd(v, src=None):
    A(f"v_cvt_pk_bf16_f32 v{v}, 0, v{v if src is None else src}")
def srd(dst, base, nbytes):
    A(f"s_mov_b32 s{dst}, s{base}")
    A(f"s_and_b32 s{dst+1}, s{base+1}, 0xffff")
    A(f"s_mov_b32 s{dst+2}, {nbytes}")
    A(f"s_mov_b32 s{dst+3}, 0x00020000")
def add64(dst, src, imm):
    A(f"s_add_u32 s{dst}, s{src}, {imm}")
    A(f"s_addc_u32 s{dst+1}, s{src+1}, 0")

def get_nonce(vtmp):
    L = A.newlabel("L_nonce"); Ld = A.newlabel("L_nonced")
    A(f"v_mov_b32 v{vtmp}, 0")
    A(f"s_mov_b32 s{S_T}, 0")
    A.label(L)
    A(f"global_load_dword v{vtmp+1}, v{vtmp}, {sp(S_DBG)} sc1")
    A(f"s_waitcnt vmcnt(0)")
    A(f"v_readfirstlane_b32 s{S_NONCE}, v{vtmp+1}")
    A(f"s_add_u32 s{S_T}, s{S_T}, 1")
    A(f"s_cmp_lg_u32 s{S_NONCE}, 0")
    A(f"s_cbranch_scc1 {Ld}")
    A(f"s_cmp_lt_u32 s{S_T}, {SPIN_MAX}")
    A(f"s_cbranch_scc1 {L}")
    A.label(Ld)

def tag_acc(tagregs, vacc, vtmp):
    A(f"v_xor_b32 v{vacc}, s{S_NONCE}, v{tagregs[0]}")
    rest = tagregs[1:]
    i = 0
    while i < len(rest):
        if i + 1 < len(rest):
            A(f"v_xor_b32 v{vtmp}, s{S_NONCE}, v{rest[i]}")
            A(f"v_xor_b32 v{vtmp+1}, s{S_NONCE}, v{rest[i+1]}")
            A(f"v_or3_b32 v{vacc}, v{vacc}, v{vtmp}, v{vtmp+1}")
            i += 2
        else:
            A(f"v_xor_b32 v{vtmp}, s{S_NONCE}, v{rest[i]}")
            A(f"v_or_b32 v{vacc}, v{vacc}, v{vtmp}")
            i += 1

def tagcheck_loop(load_fn, tagregs, vacc, vtmp, sleep=1):
    T = S_T
    L = A.newlabel("L_pl"); Ld = A.newlabel("L_pld")
    A(f"s_mov_b32 s{T}, 0")
    A.label(L)
    load_fn()
    A("s_waitcnt vmcnt(0)")
    tag_acc(tagregs, vacc, vtmp)
    A(f"v_cmp_ne_u32 vcc, 0, v{vacc}")
    A(f"s_add_u32 s{T}, s{T}, 1")
    A("s_nop 3")
    A("s_cmp_eq_u64 vcc, 0")
    A(f"s_cbranch_scc1 {Ld}")
    if sleep: A(f"s_sleep {sleep}")
    A(f"s_cmp_lt_u32 s{T}, {SPIN_MAX}")
    A(f"s_cbranch_scc1 {L}")
    A.label(Ld)

def nonce_writer():
    L = A.newlabel("L_nw")
    A(f"s_cmp_ge_u32 s{S_WG}, 8")
    A(f"s_cbranch_scc1 {L}")
    A(f"s_cmp_lg_u32 s{S_WAVE}, 7")
    A(f"s_cbranch_scc1 {L}")
    A(f"s_memrealtime {sp(S_T)}")
    A("s_waitcnt lgkmcnt(0)")
    A(f"s_or_b32 s{S_T}, s{S_T}, 1")
    A(f"v_mov_b32 v10, s{S_T}")
    A("v_mov_b32 v11, 0")
    A("v_mov_b32 v12, 0")
    A("s_mov_b64 exec, 1")
    A(f"global_atomic_cmpswap v12, v[10:11], {sp(S_DBG)} sc1")
    A("s_mov_b64 exec, -1")
    A.label(L)

def code_prefetch():
    T = S_T
    L = A.newlabel("L_cpf")
    A(f"s_cmp_lg_u32 s{S_WAVE}, 6")
    A(f"s_cbranch_scc1 {L}")
    A(f"s_lshr_b32 s{T+2}, s{S_WG}, 3")
    A(f"s_cmp_ge_u32 s{T+2}, (L_end - {NAME}_kernel + 1023) / 1024")
    A(f"s_cbranch_scc1 {L}")
    A(f"s_getpc_b64 {sp(T)}")
    A.label(L + "_pc")
    A(f"s_sub_u32 s{T}, s{T}, {L}_pc - {NAME}_kernel")
    A(f"s_subb_u32 s{T+1}, s{T+1}, 0")
    A(f"s_lshl_b32 s{T+2}, s{T+2}, 10")
    A("v_lshlrev_b32 v1, 4, v0")
    A(f"v_add_u32 v1, s{T+2}, v1")
    A(f"global_load_dwordx4 a[60:63], v1, {sp(T)}")
    A.label(L)

def prologue():
    A(f"s_cmp_ge_u32 s{S_WG}, 256")
    A("s_cbranch_scc1 L_end")
    prof_begin()
    A("s_load_dwordx16 s[4:19], s[0:1], 0")
    A("s_load_dwordx8 s[20:27], s[0:1], 64")
    A("s_load_dwordx4 s[28:31], s[0:1], 96")
    A("v_lshrrev_b32 v1, 6, v0")
    A("v_and_b32 v0, 63, v0")
    A(f"v_readfirstlane_b32 s{S_WAVE}, v1")
    A(f"s_mov_b32 s{S_MASK}, 0xffff0000")
    A(f"s_mov_b32 s{S_SELLO}, 0x05040100")
    A(f"s_mov_b32 s{S_SELHI}, 0x07060302")
    A("s_waitcnt lgkmcnt(0)")
    stamp(1)
    tl(1, 0, 0); tl(2, 7, 0); tl(3, 4, 0)
    nonce_writer()
    code_prefetch()

def dpp_sum16(v):
    for sh in (8, 4, 2, 1):
        A("s_nop 1")
        A(f"v_add_f32_dpp v{v}, v{v}, v{v} row_ror:{sh} row_mask:0xf bank_mask:0xf")

LN_Q, LN_W, LN_Q2 = 10, 28, 46
def ln_loads(stok, Q, with_w):
    T = S_T
    A(f"s_mov_b32 s{T}, s{stok}")
    A("v_lshrrev_b32 v1, 4, v0")
    A("v_and_b32 v2, 15, v0")
    A(f"v_add_u32 v3, s{T}, v1")
    A(f"v_mul_u32_u24 v4, 1152, v3")
    A(f"v_lshl_add_u32 v5, v2, 4, v4")
    A(f"v_lshl_add_u32 v6, v2, 3, v4")
    for i in range(4):
        A(f"global_load_dwordx4 {p4(Q+4*i)}, v5, {sp(S_Q)} offset:{256*i} {NT}")
    A(f"global_load_dwordx2 {p2(Q+16)}, v6, {sp(S_Q)} offset:1024 {NT}")
    if with_w:
        W = LN_W
        A(f"v_lshlrev_b32 v7, 4, v2")
        A(f"v_lshlrev_b32 v8, 3, v2")
        for i in range(4):
            A(f"global_load_dwordx4 {p4(W+4*i)}, v7, {sp(S_WR)} offset:{256*i}")
        A(f"global_load_dwordx2 {p2(W+16)}, v8, {sp(S_WR)} offset:1024")

def dpp_sum16x(vs):
    for sh in (8, 4, 2, 1):
        if len(vs) < 3: A("s_nop 1")
        for v in vs:
            A(f"v_add_f32_dpp v{v}, v{v}, v{v} row_ror:{sh} row_mask:0xf bank_mask:0xf")

def ln_compute_publish(Q, vtok, first, vc=2, hook=None, publish=True):
    T = S_T
    W = LN_W
    A(f"s_mov_b32 s{T+8}, 0x3f803f80"); A(f"s_mov_b32 s{T+9}, 0x00003f80"); A(f"s_mov_b32 s{T+10}, 0x3f800000")
    accs = [64, 65, 66, 67] + ([68, 69] if first else [])
    for a in accs: A(f"v_mov_b32 v{a}, 0")
    for i in range(18):
        A(f"v_dot2_f32_bf16 v{64+(i&1)}, v{Q+i}, s{T+8}, v{64+(i&1)}")
        A(f"v_dot2_f32_bf16 v{66+(i&1)}, v{Q+i}, v{W+i}, v{66+(i&1)}")
        if first: A(f"v_dot2_f32_bf16 v{68+(i&1)}, v{W+i}, s{T+8}, v{68+(i&1)}")
    A("s_nop 2")
    A("v_add_f32 v64, v64, v65")
    A("v_add_f32 v66, v66, v67")
    if first:
        A("v_add_f32 v122, v68, v69")
        A("s_nop 0")
        dpp_sum16x([64, 66, 122])
    else:
        A("s_nop 0")
        dpp_sum16x([64, 66])
    A(f"v_mul_f32 v64, 0x{f32bits(1.0/576):08x}, v64")
    A("v_sub_f32 v65, 0, v64")
    for a in (68, 69, 70, 71): A(f"v_mov_b32 v{a}, 0")
    for i in range(0, 18, 2):
        A(f"v_dot2_f32_bf16 v72, v{Q+i}, s{T+9}, v65")
        A(f"v_dot2_f32_bf16 v73, v{Q+i}, s{T+10}, v65")
        A(f"v_dot2_f32_bf16 v74, v{Q+i+1}, s{T+9}, v65")
        A(f"v_dot2_f32_bf16 v75, v{Q+i+1}, s{T+10}, v65")
        A("s_nop 1")
        A(f"v_fma_f32 v68, v72, v72, v68")
        A(f"v_fma_f32 v69, v73, v73, v69")
        A(f"v_fma_f32 v70, v74, v74, v70")
        A(f"v_fma_f32 v71, v75, v75, v71")
    A("v_add_f32 v68, v68, v69"); A("v_add_f32 v70, v70, v71"); A("v_add_f32 v68, v68, v70")
    dpp_sum16x([68])
    A(f"v_mul_f32 v68, 0x{f32bits(1.0/576):08x}, v68")
    rnd(68)
    A(f"v_add_f32 v68, 0x{f32bits(1e-5):08x}, v68")
    rnd(68)
    A("v_sqrt_f32 v69, v68")
    A("s_nop 0")
    A("v_rcp_f32 v70, v69")
    A("v_fma_f32 v71, -v69, v69, v68")
    A("v_mul_f32 v70, 0.5, v70")
    A("v_fma_f32 v69, v71, v70, v69")
    rnd(69)
    A("v_rcp_f32 v70, v69")
    rnd(64)
    A("v_fma_f32 v66, -v64, v122, v66")
    A("v_mul_f32 v112, v66, v70")
    rnd(112)
    A(f"v_or_b32 v112, v112, v{vtok}")
    A("v_cvt_pk_bf16_f32 v114, v64, v69")
    if not publish:
        A("v_mov_b32 v32, v112"); A("v_mov_b32 v34, v114")
        return
    if hook: hook()
    ln_publish(vtok, vc)

def ln_publish(vtok, vc):
    T = S_T
    A(f"v_mov_b32 v113, s{S_NONCE}")
    A(f"v_mov_b32 v115, s{S_NONCE}")
    A(f"v_lshlrev_b32 v116, 3, v{vtok}")
    add64(T+2, S_WS, WS_RG)
    add64(T+4, S_WS, WS_SG)
    A(f"v_cmp_eq_u32 vcc, 0, v{vc}")
    A(f"s_and_saveexec_b64 {sp(T+6)}, vcc")
    A(f"global_store_dwordx2 v116, v[112:113], {sp(T+2)} sc1")
    A(f"global_store_dwordx2 v116, v[114:115], {sp(T+4)} sc1")
    A(f"s_mov_b64 exec, {sp(T+6)}")

P_CH = 4128
L_P = 0
L_Q = L_P + 4 * P_CH
Q_CPY = 1152
Q_CH = 4 * Q_CPY
L_KVL = L_Q + 4 * Q_CH
L_MC = L_KVL + 16384
L_SELT = L_MC + 64
L_ST = L_SELT + 128
L_TAP = L_ST + 1024
TBLK = 1040
L_TK = (L_TAP + 640 + 15) // 16 * 16
L_TV = L_TK + 17 * TBLK
L_TQ = L_TV + 16 * TBLK
L_OT = L_TK
L_CONV_END = L_TQ + 16 * TBLK

def dma(voff, srdreg, soff, m0, flag=None):
    A(f"s_mov_b32 m0, {m0}")
    A("s_nop 0")
    A(f"buffer_load_dwordx4 v{voff}, s[{srdreg}:{srdreg+3}], {soff} offen {NT if flag is None else flag} lds")

def conv_tile():
    T = S_T
    A(f"s_sub_u32 s72, s{S_WAVE}, 4")
    A(f"s_mul_hi_u32 s77, s{S_WG}, {(2**32 + 8)//9}")
    A(f"s_mul_i32 s76, s77, 9")
    A(f"s_sub_u32 s76, s{S_WG}, s76")
    srd(SRD_K, S_K, 2359296)
    srd(SRD_V, S_V, 2359296)
    A("v_lshrrev_b32 v1, 3, v0")
    A("v_and_b32 v2, 7, v0")
    A(f"s_mul_i32 s{T+2}, s77, {128*1152}")
    A(f"s_lshl_b32 s{T+3}, s76, 7")
    A(f"s_add_u32 s{T+2}, s{T+2}, s{T+3}")
    A(f"v_mul_u32_u24 v3, 1152, v1")
    A(f"v_lshl_add_u32 v3, v2, 4, v3")
    A(f"v_add_u32 v3, s{T+2}, v3")
    A(f"s_mul_i32 s{T+4}, s{S_WAVE}, {2*9216}")
    A(f"s_mul_i32 s{T+6}, s{S_WAVE}, {2*TBLK}")
    for i in range(2):
        A(f"s_add_u32 s{T+7}, s{T+6}, {L_TK + TBLK + i*TBLK}")
        A(f"s_add_u32 s{T+5}, s{T+4}, {9216*i}")
        dma(3, SRD_K, f"s{T+5}", f"s{T+7}")
        A(f"s_add_u32 s{T+7}, s{T+6}, {L_TV + i*TBLK}")
        dma(3, SRD_V, f"s{T+5}", f"s{T+7}")
    L7 = A.newlabel("L_w7")
    A(f"s_cmp_lg_u32 s{S_WAVE}, 7")
    A(f"s_cbranch_scc1 {L7}")
    A(f"v_subrev_u32 v4, 9216, v3")
    A(f"s_cmp_lg_u32 s77, 0")
    A(f"s_cbranch_scc1 {L7}_a")
    A("v_bfrev_b32 v4, 1")
    A.label(L7 + "_a")
    dma(4, SRD_K, "0", L_TK)
    for i in range(4): A(f"v_mov_b32 v{52+i}, 0")
    A("v_lshlrev_b32 v56, 4, v0")
    A(f"v_add_u32 v56, {L_MC}, v56")
    A("s_mov_b64 exec, 0xfff")
    A(f"ds_write_b128 v56, {p4(52)}")
    A("s_mov_b64 exec, -1")
    A.label(L7)
    TR = 48
    A(f"s_lshr_b32 s{T+9}, s{S_WAVE}, 1")
    A(f"s_and_b32 s{T+10}, s{S_WAVE}, 1")
    Lt = A.newlabel("L_tap")
    A(f"s_cmp_lg_u32 s{S_WAVE}, 0")
    A(f"s_cbranch_scc1 {Lt}")
    srd(SRD_Q, S_SK, 4608)
    A(f"s_lshl_b32 s{T+11}, s76, 9")
    A("v_lshlrev_b32 v5, 4, v0")
    A("s_mov_b64 exec, 0xffffffff")
    dma(5, SRD_Q, f"s{T+11}", L_TAP, flag="")
    srd(SRD_Q, S_D, 1152)
    A(f"s_lshl_b32 s{T+11}, s76, 7")
    A("v_lshlrev_b32 v5, 2, v0")
    A(f"s_mov_b32 m0, {L_TAP+512}")
    A("s_nop 0")
    A(f"buffer_load_dword v5, s[{SRD_Q}:{SRD_Q+3}], s{T+11} offen lds")
    A("s_mov_b64 exec, -1")
    A.label(Lt)
    A("v_mov_b32 v120, 0")
    A(f"global_load_dword v121, v120, {sp(S_DBG)} sc1")
    A(f"s_and_b32 s{T+13}, s{S_WG}, 7")
    A(f"s_mul_i32 s{T+13}, s{T+13}, 18")
    A(f"s_lshr_b32 s{T+12}, s{S_WG}, 3")
    A(f"s_add_u32 s{T+13}, s{T+13}, s{T+12}")
    A(f"s_lshl_b32 s71, s{T+13}, 2")
    A(f"s_and_b32 s{T+12}, s{S_WAVE}, 3")
    A(f"s_add_u32 s78, s71, s{T+12}")
    A(f"s_lshl_b32 s79, s78, 12")
    A(f"s_lshl_b32 s{T+12}, s{T+10}, 3")
    A(f"v_add_u32 v6, s{T+12}, v2")
    A(f"s_lshl_b32 s{T+12}, s{T+9}, 3")
    A(f"v_add_u32 v7, s{T+12}, v1")
    A(f"v_mul_u32_u24 v9, {TBLK}, v6")
    A(f"v_lshl_add_u32 v9, v7, 2, v9")
    A(f"v_add_u32 v9, {L_TK}, v9")
    A(f"s_lshl_b32 s{T+11}, s76, 19")
    A(f"s_lshl_b32 s{T+12}, s77, 9")
    A(f"s_add_u32 s{T+11}, s{T+11}, s{T+12}")
    A(f"s_lshl_b32 s{T+12}, s{T+10}, 8")
    A(f"s_add_u32 s{T+11}, s{T+11}, s{T+12}")
    A("v_lshlrev_b32 v8, 14, v7")
    A("v_lshl_add_u32 v8, v2, 4, v8")
    A(f"v_add_u32 v8, s{T+11}, v8")
    if "hearly" in OPTS:
        Lh = A.newlabel("L_noh"); Lh2 = A.newlabel("L_noh2")
        A(f"s_cmp_ge_u32 s{S_WAVE}, 4")
        A(f"s_cbranch_scc1 {Lh}")
        srd(SRD_Q, S_H, 2359296)
        A("v_lshlrev_b32 v4, 4, v0")
        A(f"s_mul_i32 s74, s{S_WAVE}, {P_CH}")
        for q in range(4):
            A(f"s_add_u32 s{T+9}, s79, {1024*q}")
            A(f"s_add_u32 s{T+5}, s74, {32 + 1024*q}")
            dma(4, SRD_Q, f"s{T+9}", f"s{T+5}")
        if "dbgB" in OPTS: stamp(5)
        A("s_waitcnt vmcnt(4) lgkmcnt(0)")
        A(f"s_branch {Lh2}")
        A.label(Lh)
        if "dbgB" in OPTS: stamp(5)
        A("s_waitcnt vmcnt(0) lgkmcnt(0)")
        A.label(Lh2)
        if "dbgB" in OPTS: stamp(6)
    else:
        A("s_waitcnt vmcnt(0) lgkmcnt(0)")
    A(f"v_readfirstlane_b32 s{S_NONCE}, v121")
    A("s_barrier")
    stamp(2)
    tl(4, 7, 0)
    KR, VR = 10, 21
    for j in range(11):
        off = (640 + 128*j if j < 3 else TBLK + 128*(j-3))
        A(f"ds_read_b32 v{KR+j}, v9 offset:{off}")
    A("v_lshlrev_b32 v5, 2, v7")
    A("v_lshlrev_b32 v5, 2, v5")
    A(f"v_add_u32 v5, {L_TAP}, v5")
    A(f"ds_read_b128 {p4(TR)}, v5")
    for j in range(8):
        A(f"ds_read_b32 v{VR+j}, v9 offset:{L_TV - L_TK + 128*j}")
    A("s_waitcnt lgkmcnt(8)")
    Ln = A.newlabel("L_hasn")
    A(f"s_cmp_lg_u32 s{S_NONCE}, 0")
    A(f"s_cbranch_scc1 {Ln}")
    get_nonce(30)
    A.label(Ln)
    TP = 52
    A(f"v_lshlrev_b32 v{TP+0}, 16, v{TR}"); A(f"v_lshlrev_b32 v{TP+1}, 16, v{TR+2}")
    A(f"v_and_b32 v{TP+2}, s{S_MASK}, v{TR}"); A(f"v_and_b32 v{TP+3}, s{S_MASK}, v{TR+2}")
    A(f"v_lshlrev_b32 v{TP+4}, 16, v{TR+1}"); A(f"v_lshlrev_b32 v{TP+5}, 16, v{TR+3}")
    A(f"v_and_b32 v{TP+6}, s{S_MASK}, v{TR+1}"); A(f"v_and_b32 v{TP+7}, s{S_MASK}, v{TR+3}")
    KP = 80
    for j in range(11):
        A(f"v_lshlrev_b32 v{KP+2*j}, 16, v{KR+j}")
        A(f"v_and_b32 v{KP+2*j+1}, s{S_MASK}, v{KR+j}")
    R = 102
    tp = lambda tap: p2(TP+2*tap)
    for i in range(8): A(f"v_pk_mul_f32 {p2(R+2*i)}, {p2(KP+2*i)}, {tp(3)}")
    for i in range(8): A(f"v_pk_fma_f32 {p2(R+2*i)}, {p2(KP+2*(i+1))}, {tp(2)}, {p2(R+2*i)}")
    for i in range(8): A(f"v_pk_fma_f32 {p2(R+2*i)}, {p2(KP+2*(i+2))}, {tp(1)}, {p2(R+2*i)}")
    for i in range(8): A(f"v_pk_fma_f32 {p2(R+2*i)}, {p2(KP+2*(i+3))}, {tp(0)}, {p2(R+2*i)}")
    A("s_waitcnt lgkmcnt(0)")
    VP = 60
    for i in range(8):
        A(f"v_lshlrev_b32 v{VP+2*i}, 16, v{VR+i}"); A(f"v_and_b32 v{VP+2*i+1}, s{S_MASK}, v{VR+i}")
    for i in range(8): A(f"v_pk_mul_f32 {p2(R+2*i)}, {p2(R+2*i)}, {p2(VP+2*i)}")
    GQ = 80
    for c in range(2):
        for q in range(4):
            A(f"v_cvt_pk_bf16_f32 v{GQ+8*c+2*q}, v{R+4*q+c}, v{R+4*q+2+c}")
            A(f"v_mov_b32 v{GQ+8*c+2*q+1}, s{S_NONCE}")
    add64(T+2, S_WS, WS_KVT)
    add64(T+8, S_WS, WS_KVT+8192)
    A(f"global_store_dwordx4 v8, {p4(GQ)}, {sp(T+2)} sc1")
    A(f"global_store_dwordx4 v8, {p4(GQ+4)}, {sp(T+2)} offset:128 sc1")
    A(f"global_store_dwordx4 v8, {p4(GQ+8)}, {sp(T+8)} sc1")
    A(f"global_store_dwordx4 v8, {p4(GQ+12)}, {sp(T+8)} offset:128 sc1")
    for c in range(2):
        for q in range(4): A(f"v_mov_b32 v{120+4*c+q}, v{GQ+8*c+2*q}")
    A(f"s_lshl_b32 s{T+1}, s{S_WAVE}, 11")
    A("v_lshlrev_b32 v4, 5, v0")
    A(f"v_add_u32 v4, s{T+1}, v4")
    A(f"v_add_u32 v4, {L_KVL}, v4")
    A(f"ds_write_b128 v4, {p4(120)}")
    A(f"ds_write_b128 v4, {p4(124)} offset:16")
    stamp(3)
    if "hearly" not in OPTS:
        Lh = A.newlabel("L_noh")
        A(f"s_cmp_ge_u32 s{S_WAVE}, 4")
        A(f"s_cbranch_scc1 {Lh}")
        srd(SRD_V, S_H, 2359296)
        A("v_lshlrev_b32 v4, 4, v0")
        A(f"s_mul_i32 s74, s{S_WAVE}, {P_CH}")
        for q in range(4):
            A(f"s_add_u32 s{T+9}, s79, {1024*q}")
            A(f"s_add_u32 s{T+10}, s74, {32 + 1024*q}")
            dma(4, SRD_V, f"s{T+9}", f"s{T+10}")
        A.label(Lh)
    A("s_waitcnt lgkmcnt(0)")
    A("s_barrier")
    stamp(4)
    tl(5, 7, 0)
    if "dbgA" in OPTS or "dbgB" in OPTS: A("s_branch L_fin")

class LdsQ:
    def __init__(self): self.q = []
    def issue(self, instr, tag=None):
        A(instr); self.q.append(tag)
    def wait(self, tag):
        idxs = [i for i, t in enumerate(self.q) if t == tag]
        if not idxs: return
        last = idxs[-1]
        n = len(self.q) - 1 - last
        A(f"s_waitcnt lgkmcnt({min(n, 15)})")
        if n <= 15: self.q = self.q[last+1:]
        else: self.q = self.q[len(self.q)-15:]

def conv_mfma_wave():
    T = S_T
    A(f"s_mul_i32 s75, s{S_WAVE}, {Q_CH}")
    A(f"s_add_u32 s75, s75, {L_Q}")
    for i in range(4): A(f"v_mov_b32 v{16+i}, 0")
    A("v_lshlrev_b32 v2, 4, v0")
    A("v_add_u32 v2, s74, v2")
    A("s_mov_b64 exec, 3")
    A(f"ds_write_b128 v2, {p4(16)}")
    A("s_mov_b64 exec, -1")
    A("v_lshrrev_b32 v2, 3, v0")
    A(f"v_mul_u32_u24 v2, {Q_CPY}, v2")
    A("v_and_b32 v3, 7, v0")
    A("v_lshl_add_u32 v2, v3, 4, v2")
    A("v_add_u32 v2, s75, v2")
    A("s_mov_b64 exec, 0xffffffff")
    A(f"ds_write_b128 v2, {p4(16)}")
    A("s_mov_b64 exec, -1")
    A("v_and_b32 v3, 3, v0")
    A("v_bfe_u32 v4, v0, 2, 2")
    A("v_sub_u32 v3, v3, v4")
    A("v_lshlrev_b32 v3, 3, v3")
    A("v_lshrrev_b32 v4, 4, v0")
    A("v_lshl_add_u32 v3, v4, 6, v3")
    A("v_add_u32 v3, s74, v3")
    A("v_add_u32 v3, 32, v3")
    A("s_waitcnt vmcnt(4) lgkmcnt(0)" if "hearly" in OPTS else "s_waitcnt vmcnt(0) lgkmcnt(0)")
    def greg(e, s1): return 4*(8*e + s1)
    for s1 in range(8):
        for e in range(2):
            g = greg(e, s1)
            A(f"ds_read_b64_tr_b16 a[{g}:{g+1}], v3 offset:{512*s1+256*e+32}")
            A(f"ds_read_b64_tr_b16 a[{g+2}:{g+3}], v3 offset:{512*s1+256*e}")
        if s1 % 3 == 2: A("s_waitcnt lgkmcnt(4)")
    A("v_and_b32 v5, 15, v0")
    A("v_lshlrev_b32 v6, 3, v5")
    A("v_lshlrev_b32 v7, 4, v4")
    A("v_sub_u32 v6, v6, v7")
    A("v_add_u32 v6, s75, v6")
    A("v_add_u32 v6, 56, v6")
    A("v_lshlrev_b32 v7, 6, v5")
    A("v_lshl_add_u32 v7, v4, 4, v7")
    A(f"s_lshl_b32 s{T+1}, s78, 13")
    A(f"v_add_u32 v7, s{T+1}, v7")
    A(f"v_add_u32 v11, 4096, v7")
    add64(62, S_WS, WS_YG)
    A("v_subrev_u32 v8, 16, v0")
    A("v_add_u32 v9, 47, v0")
    A("v_cmp_gt_u32 vcc, 16, v0")
    A("s_nop 1")
    A("v_cndmask_b32 v8, v8, v9, vcc")
    A("v_mov_b32 v9, 63")
    A("v_cmp_eq_u32 vcc, 0, v0")
    A("s_nop 1")
    A("v_cndmask_b32 v8, v8, v9, vcc")
    A("v_lshlrev_b32 v8, 2, v8")
    A(f"v_mov_b32 v9, {L_MC}")
    A("v_mov_b32 v10, 1")
    A(f"s_mov_b64 {sp(66)}, 1")
    add64(64, S_WS, WS_KVT)
    A(f"s_lshl_b32 s{T+1}, s78, 13")
    A("v_lshlrev_b32 v1, 4, v0")
    A(f"v_add_u32 v1, s{T+1}, v1")
    A("v_add_u32 v12, 4096, v1")
    A("v_lshrrev_b32 v2, 4, v0")
    A("v_lshlrev_b32 v2, 4, v2")
    A("v_and_b32 v13, 7, v0")
    A("v_lshl_add_u32 v2, v13, 1, v2")
    A("v_bfe_u32 v13, v0, 3, 1")
    A("v_add_u32 v2, v2, v13")
    A("v_lshlrev_b32 v2, 1, v2")
    A("v_add_u32 v2, s75, v2")
    A("v_and_b32 v13, 15, v0")
    A("v_lshlrev_b32 v13, 9, v13")
    A(f"v_add_u32 v13, s{T+1}, v13")
    A("v_add_u32 v13, 504, v13")
    stamp(5)
    KV = 16
    def ldkv():
        for q in range(8):
            A(f"global_load_dwordx4 {p4(KV+4*q)}, v{1 if q < 4 else 12}, {sp(64)} offset:{1024*(q % 4)} sc1")
    kvtags = [KV+4*q+1+2*h for q in range(8) for h in range(2)]
    Lok = A.newlabel("L_kvok")
    if "spec" in OPTS:
        ldkv()
        A("s_waitcnt vmcnt(0)")
        tag_acc(kvtags, 14, 48)
        A("v_cmp_ne_u32 vcc, 0, v14")
        A("s_nop 3")
        A("s_cmp_eq_u64 vcc, 0")
        A(f"s_cbranch_scc1 {Lok}")
    tagcheck_loop(lambda: A(f"global_load_dwordx2 v[14:15], v13, {sp(64)} sc1"), [15], 16, 17, sleep=1)
    stamp(6)
    tl(6, 7, 0)
    tagcheck_loop(ldkv, kvtags, 14, 48, sleep=1)
    A.label(Lok)
    for q in range(8):
        r = KV + 4*q
        o = 128 + 128*q
        A(f"ds_write_b16 v2, v{r} offset:{0*Q_CPY+o}")
        A(f"ds_write_b16_d16_hi v2, v{r} offset:{1*Q_CPY+o}")
        A(f"ds_write_b16 v2, v{r+2} offset:{2*Q_CPY+o}")
        A(f"ds_write_b16_d16_hi v2, v{r+2} offset:{3*Q_CPY+o}")
    A("s_waitcnt lgkmcnt(0)")
    for i in range(3): A(f"v_mov_b32 v{40+i}, 0")
    A(f"v_add_u32 v3, {Q_CPY}, v6"); A(f"v_add_u32 v4, {2*Q_CPY}, v6"); A(f"v_add_u32 v5, {3*Q_CPY}, v6")
    A(f"v_mov_b32 v45, s{S_NONCE}"); A(f"v_mov_b32 v47, s{S_NONCE}")
    stamp(7)
    tl(7, 7, 0)
    if "dry" in OPTS:
        A("s_mov_b32 s73, 0")
        A.label("L_stream")
    lq = LdsQ()
    classes = [(c1, sg, e) for c1 in range(8) for sg in range(4) for e in range(2)]
    FA = [6, 3, 4, 5]
    free = [("v", 48), ("v", 52), ("v", 56), ("v", 60)]
    fbuf = {}
    def rr(b): return f"{b[0]}[{b[1]}:{b[1]+3}]"
    def fread(k):
        c1, sg, e = classes[k]
        b = free.pop(0); fbuf[k] = b
        o = 16*c1 + 8*(1-e)
        lq.issue(f"ds_read2_b64 {rr(b)}, v{FA[sg]} offset0:{o} offset1:{o+1}", ("F", k))
    def acc(sg, t): return 64 + (sg*8 + t)*4
    def combine_ops(t):
        a0, a1, a2, a3 = acc(0, t), acc(1, t), acc(2, t), acc(3, t)
        ops = []
        C = 32
        P = 36 + 4*(t & 1)
        Pp = 36 + 4*((t+1) & 1)
        ops.append(lambda: A(f"v_add_f32 v{a0+1}, v{a0+1}, v{a1}"))
        ops.append(lambda: A(f"v_add_f32 v{a0+2}, v{a0+2}, v{a1+1}"))
        ops.append(lambda: A(f"v_add_f32 v{a0+3}, v{a0+3}, v{a1+2}"))
        ops.append(lambda: A(f"v_add_f32 v{C}, v{a1+3}, v{a2+2}"))
        ops.append(lambda: A(f"v_add_f32 v{a0+2}, v{a0+2}, v{a2}"))
        ops.append(lambda: A(f"v_add_f32 v{a0+3}, v{a0+3}, v{a2+1}"))
        ops.append(lambda: A(f"v_add_f32 v{C+1}, v{a2+3}, v{a3+2}"))
        ops.append(lambda: A(f"v_add_f32 v{C}, v{C}, v{a3+1}"))
        ops.append(lambda: lq.issue(f"ds_bpermute_b32 v{P+2}, v8, v{a3+3}", ("B", t)))
        ops.append(lambda: lq.issue(f"ds_bpermute_b32 v{P+1}, v8, v{C+1}", ("B", t)))
        ops.append(lambda: lq.issue(f"ds_bpermute_b32 v{P}, v8, v{C}", ("B", t)))
        ops.append(lambda: A(f"v_add_f32 v{a0+3}, v{a0+3}, v{a3}"))
        ops.append(lambda: lq.wait(("B", t)))
        for i in range(3):
            ops.append(lambda i=i: A(f"v_cndmask_b32 v{28+i}, v{P+i}, v{Pp+i}, {sp(66)}"))
        for i in range(3):
            ops.append(lambda i=i: A(f"v_add_f32 v{a0+i}, v{a0+i}, v{28+i}"))
        ops.append(lambda: A(f"v_cvt_pk_bf16_f32 v44, v{a0}, v{a0+1}"))
        ops.append(lambda: A(f"v_cvt_pk_bf16_f32 v46, v{a0+2}, v{a0+3}"))
        ops.append(lambda: A(f"global_store_dwordx4 v{7 if t < 4 else 11}, {p4(44)}, {sp(62)} offset:{1024*(t % 4)} sc1"))
        return ops
    nxt = 0
    LA = int(os.environ.get("LA", "5"))
    SLOTS = int(os.environ.get("SLOTS", "1"))
    def can_fread(k):
        return free and nxt < len(classes) and nxt - k < LA and len(lq.q) <= 13
    for _ in range(3):
        fread(nxt); nxt += 1
    pending = []
    k = 0
    total_m = sum(8*(8-c) for c in range(8))
    done_m = 0
    for c1 in range(8):
        nm_step = 8*(8-c1)
        if c1 > 0:
            assert not pending or True
            pending.extend(combine_ops(c1-1))
            free.extend([("a", greg(0, 8-c1)), ("a", greg(1, 8-c1))])
        mi = 0
        for sg in range(4):
            for e in range(2):
                while nxt <= k:
                    fread(nxt); nxt += 1
                lq.wait(("F", k))
                b = fbuf[k]
                for s1 in range(8-c1):
                    t = s1 + c1
                    d = acc(sg, t)
                    cin = "0" if (c1 == 0 and e == 0) else f"v[{d}:{d+3}]"
                    g = greg(e, s1)
                    A(f"v_mfma_f32_16x16x32_bf16 v[{d}:{d+3}], a[{g}:{g+3}], {rr(b)}, {cin}")
                    mi += 1; done_m += 1
                    rem_m = total_m - done_m
                    left_in_step = nm_step - mi
                    slots = SLOTS
                    if pending and mi >= 3:
                        need = len(pending) + (8 - (k % 8))
                        if left_in_step * SLOTS < need: slots = -(-need // max(1, left_in_step + 1))
                    used = 0
                    if can_fread(k) and (nxt - k <= 2 or not pending or mi < 3):
                        fread(nxt); nxt += 1; used += 1
                    while used < slots and pending and mi >= 3:
                        pending.pop(0)(); used += 1
                    if used < slots - 1 and can_fread(k):
                        fread(nxt); nxt += 1; used += 1
                free.append(b)
                k += 1
        while pending: pending.pop(0)()
    A("s_nop 7"); A("s_nop 1")
    for op in combine_ops(7): op()
    if "dry" in OPTS:
        A("s_cmp_eq_u32 s73, 1")
        A("s_cbranch_scc1 L_dry_ret")
    A("s_mov_b64 exec, 1")
    A("ds_add_u32 v9, v10")
    A("s_mov_b64 exec, -1")
    stamp(8)
    tl(8, 7, 0)

def lds_spin(addr_off, target, va, vb, sleep=1):
    T = S_T
    L = A.newlabel("L_ls")
    A(f"v_mov_b32 v{va}, {L_MC}")
    A(f"s_mov_b32 s{T+1}, 0")
    A.label(L)
    A(f"ds_read_b32 v{vb}, v{va} offset:{addr_off}")
    A("s_waitcnt lgkmcnt(0)")
    A(f"v_readfirstlane_b32 s{T}, v{vb}")
    A(f"s_add_u32 s{T+1}, s{T+1}, 1")
    A(f"s_cmp_ge_u32 s{T+1}, {SPIN_MAX*4}")
    A(f"s_cbranch_scc1 {L}_d")
    A(f"s_cmp_ge_u32 s{T}, {target}")
    A(f"s_cbranch_scc1 {L}_d")
    if sleep: A(f"s_sleep {sleep}")
    A(f"s_branch {L}")
    A.label(L + "_d")

def conv_helper_prep():
    T = S_T
    if "gupf" in OPTS:
        R0 = int(os.environ.get("PFROW", "144")); NR = (576 - R0) // 18
        assert NR % 4 == 0
        RW = NR // 4
        A(f"s_and_b32 s{T+1}, s{S_WG}, 7")
        A(f"s_mul_i32 s{T+1}, s{T+1}, 1152")
        A(f"s_lshr_b32 s{T+2}, s{S_WG}, 3")
        A(f"s_mul_i32 s{T+2}, s{T+2}, {NR}")
        A(f"s_mul_i32 s{T+3}, s72, {RW}")
        A(f"s_add_u32 s{T+2}, s{T+2}, s{T+3}")
        A(f"s_add_u32 s{T+2}, s{T+2}, {R0}")
        A(f"s_mul_i32 s{T+2}, s{T+2}, 9216")
        A(f"s_add_u32 s{T+1}, s{T+1}, s{T+2}")
        A("v_lshlrev_b32 v10, 4, v0")
        A(f"v_add_u32 v10, s{T+1}, v10")
        A("v_lshrrev_b32 v11, 3, v0")
        A("v_mul_u32_u24 v11, 9216, v11")
        A("v_and_b32 v12, 7, v0")
        A("v_lshl_add_u32 v11, v12, 4, v11")
        A(f"v_add_u32 v11, s{T+1}, v11")
        A("v_add_u32 v11, 1024, v11")
        ar = 16
        for base in (S_WGT, S_WUP):
            A("v_mov_b32 v13, v10")
            for r in range(RW):
                A(f"global_load_dwordx4 a[0:3], v13, {sp(base)}")
                if r < RW - 1: A("v_add_u32 v13, 9216, v13")
            nl = 8*RW
            if nl < 64:
                A(f"s_mov_b32 exec_lo, {hex(min(nl, 32) and ((1 << min(nl, 32)) - 1))}")
                A(f"s_mov_b32 exec_hi, {hex((1 << (nl - 32)) - 1) if nl > 32 else '0'}")
            A(f"global_load_dwordx4 a[0:3], v11, {sp(base)}")
            A("s_mov_b64 exec, -1")
        if "dpf" in OPTS:
            A(f"s_and_b32 s{T+1}, s{S_WG}, 7")
            A(f"s_mul_i32 s{T+1}, s{T+1}, {576*1152}")
            A(f"s_lshr_b32 s{T+2}, s{S_WG}, 3")
            A(f"s_mul_i32 s{T+2}, s{T+2}, 36864")
            A(f"s_add_u32 s{T+1}, s{T+1}, s{T+2}")
            A(f"s_mul_i32 s{T+2}, s72, 9216")
            A(f"s_add_u32 s{T+1}, s{T+1}, s{T+2}")
            A("v_lshlrev_b32 v19, 4, v0")
            A(f"v_add_u32 v19, s{T+1}, v19")
            DPF = []
            for i in range(9):
                DPF.append(f"global_load_dwordx4 a[0:3], v18, {sp(S_WD)} offset:{1024*(i%4)}")
            assert ar <= 124, ar
            global DPF_CODE
            DPF_CODE = DPF
    srd(SRD_Q, S_Q, 2359296)
    A(f"s_mul_i32 s{T+4}, s72, {4*9216}")
    A(f"s_mul_i32 s{T+6}, s72, {4*TBLK}")
    A(f"s_add_u32 s{T+6}, s{T+6}, {L_TQ}")
    for i in range(4):
        dma(3, SRD_Q, f"s{T+4}", f"s{T+6}")
        A(f"s_add_u32 s{T+4}, s{T+4}, 9216")
        A(f"s_add_u32 s{T+6}, s{T+6}, {TBLK}")
    if "dry" in OPTS:
        Ld = A.newlabel("L_nodry")
        A(f"s_cmp_lg_u32 s{S_WAVE}, 7")
        A(f"s_cbranch_scc1 {Ld}")
        A("v_mov_b32 v6, 0"); A("v_mov_b32 v7, 0"); A("v_mov_b32 v11, 0"); A("v_mov_b32 v8, 0")
        add64(62, S_WS, WS_YG)
        A(f"s_mov_b64 {sp(66)}, 1")
        A("s_mov_b32 s73, 1")
        A("s_mov_b64 exec, 0")
        A("s_branch L_stream")
        A.label("L_dry_ret")
        A("s_mov_b64 exec, -1")
        A.label(Ld)
    L4 = A.newlabel("L_h4"); L5 = A.newlabel("L_h5"); Le = A.newlabel("L_he")
    A(f"s_cmp_eq_u32 s{S_WAVE}, 4")
    A(f"s_cbranch_scc1 {L4}")
    A(f"s_cmp_eq_u32 s{S_WAVE}, 5")
    A(f"s_cbranch_scc1 {L5}")
    A(f"s_branch {Le}")
    A.label(L4)
    A(f"s_lshl_b32 s{T+1}, s77, 10")
    A("v_lshlrev_b32 v10, 4, v0")
    A(f"v_add_u32 v11, s{T+1}, v10")
    add64(T+2, S_WS, WS_SG)
    tagcheck_loop(lambda: A(f"global_load_dwordx4 {p4(12)}, v11, {sp(T+2)} sc1"), [13, 15], 16, 17, sleep=4)
    A("v_lshlrev_b32 v20, 16, v12"); A(f"v_and_b32 v21, s{S_MASK}, v12")
    A("v_lshlrev_b32 v22, 16, v14"); A(f"v_and_b32 v23, s{S_MASK}, v14")
    A("v_rcp_f32 v21, v21"); A("v_rcp_f32 v23, v23")
    A(f"v_add_u32 v10, {L_ST}, v10")
    A("s_nop 0")
    A(f"ds_write_b128 v10, {p4(20)}")
    A(f"s_branch {Le}")
    A.label(L5)
    A("v_and_b32 v10, 7, v0")
    A("v_lshlrev_b32 v11, 3, v10")
    add64(T+2, S_WS, WS_SEL)
    tagcheck_loop(lambda: A(f"global_load_dwordx2 v[12:13], v11, {sp(T+2)} sc1"), [13], 16, 17, sleep=4)
    A("v_and_b32 v12, 0x7ff, v12")
    A(f"s_lshl_b32 s{T+1}, s77, 7")
    A(f"v_subrev_u32 v12, s{T+1}, v12")
    A("v_cmp_gt_u32 vcc, 128, v12")
    A("v_or_b32 v13, 0x80, v10")
    A(f"v_add_u32 v12, {L_SELT}, v12")
    A("s_and_b32 vcc_lo, vcc_lo, 0xff")
    A("s_mov_b32 vcc_hi, 0")
    A("s_mov_b64 exec, vcc")
    Lk = A.newlabel("L_nsel")
    A(f"s_cbranch_execz {Lk}")
    A("ds_write_b8 v12, v13")
    A.label(Lk)
    A("s_mov_b64 exec, -1")
    A.label(Le)
    A("s_waitcnt vmcnt(0) lgkmcnt(0)")
    A(f"v_mov_b32 v10, {L_MC}")
    A("v_mov_b32 v11, 1")
    A("s_mov_b64 exec, 1")
    A("ds_add_u32 v10, v11 offset:4")
    A("s_mov_b64 exec, -1")
    stamp(5)
    if "dpf" in OPTS:
        for i, ins in enumerate(DPF_CODE):
            if i % 4 == 0: A(f"v_add_u32 v18, {4096*(i//4)}, v19")
            A(ins)
    lds_spin(0, 4, 10, 11, sleep=2)
    stamp(6)

def conv_epilogue():
    T = S_T
    A("; ---- epilogue ----")
    lds_spin(4, 4, 10, 11, sleep=1)
    A("v_and_b32 v2, 7, v0"); A("v_lshrrev_b32 v1, 3, v0")
    A(f"s_and_b32 s{T+1}, s{S_WAVE}, 1"); A(f"s_lshl_b32 s{T+1}, s{T+1}, 3")
    A(f"v_add_u32 v6, s{T+1}, v2")
    A(f"s_lshr_b32 s{T+2}, s{S_WAVE}, 1"); A(f"s_lshl_b32 s{T+2}, s{T+2}, 3")
    A(f"v_add_u32 v7, s{T+2}, v1")
    A(f"s_lshl_b32 s{T+1}, s76, 19")
    A(f"s_lshl_b32 s{T+2}, s77, 9")
    A(f"s_add_u32 s{T+1}, s{T+1}, s{T+2}")
    A("v_lshlrev_b32 v8, 14, v7")
    A("v_lshl_add_u32 v8, v6, 5, v8")
    A(f"v_add_u32 v8, s{T+1}, v8")
    A("v_add_u32 v9, 8192, v8")
    add64(62, S_WS, WS_YG)
    A(f"v_mul_u32_u24 v10, {TBLK}, v6")
    A("v_lshl_add_u32 v10, v7, 2, v10")
    A(f"v_add_u32 v11, {L_TQ}, v10")
    XR = 16
    for i in range(8): A(f"ds_read_b32 v{XR+i}, v11 offset:{128*i}")
    A(f"s_lshl_b32 s{T+1}, s{S_WAVE}, 11")
    A("v_lshlrev_b32 v12, 5, v0")
    A(f"v_add_u32 v12, s{T+1}, v12")
    A(f"v_add_u32 v12, {L_KVL}, v12")
    KV = 24
    A(f"ds_read_b128 {p4(KV)}, v12")
    A(f"ds_read_b128 {p4(KV+4)}, v12 offset:16")
    A("v_lshlrev_b32 v12, 6, v6")
    A(f"v_add_u32 v12, {L_ST}, v12")
    SR = 32
    for i in range(4): A(f"ds_read_b128 {p4(SR+4*i)}, v12 offset:{16*i}")
    A("v_lshlrev_b32 v12, 3, v6")
    A(f"v_add_u32 v12, {L_SELT}, v12")
    A("ds_read_b64 v[48:49], v12")
    A("v_lshlrev_b32 v13, 2, v7")
    A(f"v_add_u32 v13, {L_TAP+512}, v13")
    A("ds_read_b32 v50, v13")
    YR = 64
    def ld():
        A(f"global_load_dwordx4 {p4(YR)}, v8, {sp(62)} sc1")
        A(f"global_load_dwordx4 {p4(YR+4)}, v8, {sp(62)} offset:16 sc1")
        A(f"global_load_dwordx4 {p4(YR+8)}, v9, {sp(62)} sc1")
        A(f"global_load_dwordx4 {p4(YR+12)}, v9, {sp(62)} offset:16 sc1")
    A("s_waitcnt lgkmcnt(0)")
    A(f"v_lshlrev_b32 v52, 16, v50"); A(f"v_and_b32 v53, s{S_MASK}, v50")
    XN, SS = 80, 96
    for i in range(8):
        m, rs = SR+2*i, SR+2*i+1
        A(f"v_lshlrev_b32 v{SS+2*i}, 16, v{XR+i}"); A(f"v_and_b32 v{SS+2*i+1}, s{S_MASK}, v{XR+i}")
        A(f"v_sub_f32 v{XN+2*i}, v{SS+2*i}, v{m}"); A(f"v_sub_f32 v{XN+2*i+1}, v{SS+2*i+1}, v{m}")
        A(f"v_mul_f32 v{XN+2*i}, v{XN+2*i}, v{rs}"); A(f"v_mul_f32 v{XN+2*i+1}, v{XN+2*i+1}, v{rs}")
        for c in range(2):
            kr = KV + 4*c + (i >> 1)
            t = 54 + c
            if i & 1: A(f"v_and_b32 v{t}, s{S_MASK}, v{kr}")
            else: A(f"v_lshlrev_b32 v{t}, 16, v{kr}")
            A(f"v_fma_f32 v{t}, v{t}, v{52+c}, 1.0")
            A(f"v_fma_f32 v{SS+2*i+c}, v{XN+2*i+c}, v{t}, v{SS+2*i+c}")
    A(f"v_add_u32 v11, {L_OT}, v10")
    A(f"s_lshl_b32 s{T+1}, s{S_WAVE}, 3")
    A(f"v_add_u32 v120, s{T+1}, v1")
    A("v_lshrrev_b32 v121, 3, v120")
    A(f"v_mul_u32_u24 v121, {TBLK}, v121")
    A("v_and_b32 v122, 7, v120")
    A("v_lshl_add_u32 v121, v122, 7, v121")
    A("v_lshl_add_u32 v121, v2, 4, v121")
    A(f"v_add_u32 v121, {L_OT}, v121")
    A(f"v_add_u32 v122, {L_SELT}, v120")
    A("ds_read_u8 v124, v122")
    A("ds_read_u8 v125, v122 offset:64")
    srd(SRD_O, S_OUT, 2359296)
    A(f"s_mul_i32 s{T+1}, s77, {128*1152}")
    A(f"s_lshl_b32 s{T+2}, s76, 7")
    A(f"s_add_u32 s{T+1}, s{T+1}, s{T+2}")
    A("v_mul_u32_u24 v122, 1152, v120")
    A("v_lshl_add_u32 v122, v2, 4, v122")
    A(f"v_add_u32 v122, s{T+1}, v122")
    A(f"v_add_u32 v123, {64*1152}, v122")
    A("s_waitcnt lgkmcnt(0)")
    for va, vs in ((122, 124), (123, 125)):
        A(f"v_lshlrev_b32 v{vs}, 24, v{vs}")
        A(f"v_and_b32 v{vs}, 0x80000000, v{vs}")
        A(f"v_or_b32 v{va}, v{va}, v{vs}")
    if "dbgE" in OPTS: stamp(5)
    tagcheck_loop(ld, [YR+2*j+1 for j in range(8)], 14, 52, sleep=1)
    if "dbgE" in OPTS: stamp(6)
    O = 112
    for i in range(8):
        for c in range(2):
            yr = YR + 8*c + 2*(i >> 1)
            t0 = 54 + c
            if i & 1: A(f"v_and_b32 v{t0}, s{S_MASK}, v{yr}")
            else: A(f"v_lshlrev_b32 v{t0}, 16, v{yr}")
            A(f"v_fma_f32 v{SS+2*i+c}, v{XN+2*i+c}, v{t0}, v{SS+2*i+c}")
        A(f"v_cvt_pk_bf16_f32 v{O+i}, v{SS+2*i}, v{SS+2*i+1}")
        A(f"ds_write_b32 v11, v{O+i} offset:{128*i}")
    Lx = A.newlabel("L_nt1")
    A("v_or_b32 v12, v48, v49")
    A("v_cmp_ne_u32 vcc, 0, v12")
    A("s_nop 3")
    A("s_cmp_eq_u64 vcc, 0")
    A(f"s_cbranch_scc1 {Lx}")
    add64(64, S_WS, WS_T1G)
    A(f"s_lshl_b32 s{T+1}, s76, 6")
    A("v_lshlrev_b32 v13, 1, v7")
    A(f"v_add_u32 v13, s{T+1}, v13")
    for i in range(8):
        Li = A.newlabel("L_t1i")
        A(f"v_bfe_u32 v12, v{48 + (i >> 2)}, {8*(i & 3)}, 8")
        A("v_cmp_lt_u32 vcc, 0x7f, v12")
        A(f"s_and_saveexec_b64 {sp(T+12)}, vcc")
        A(f"s_cbranch_execz {Li}")
        A("v_and_b32 v12, 7, v12")
        A("v_mul_u32_u24 v12, 576, v12")
        A("v_add_u32 v12, v12, v13")
        A("v_lshlrev_b32 v12, 3, v12")
        A(f"v_sub_f32 v56, v{SS+2*i}, v{XN+2*i}")
        A(f"v_mov_b32 v57, s{S_NONCE}")
        A(f"v_sub_f32 v58, v{SS+2*i+1}, v{XN+2*i+1}")
        A(f"v_mov_b32 v59, s{S_NONCE}")
        A(f"global_store_dwordx4 v12, {p4(56)}, {sp(64)} sc1")
        A.label(Li)
        A(f"s_mov_b64 exec, {sp(T+12)}")
    A.label(Lx)
    A("s_waitcnt lgkmcnt(0)")
    A("s_barrier")
    A(f"ds_read_b128 {p4(16)}, v121")
    A(f"ds_read_b128 {p4(20)}, v121 offset:{8*TBLK}")
    A("s_waitcnt lgkmcnt(1)")
    A(f"buffer_store_dwordx4 {p4(16)}, v122, s[{SRD_O}:{SRD_O+3}], 0 offen " + os.environ.get("OUTF", "sc1"))
    A("s_waitcnt lgkmcnt(0)")
    A(f"buffer_store_dwordx4 {p4(20)}, v123, s[{SRD_O}:{SRD_O+3}], 0 offen " + os.environ.get("OUTF", "sc1"))
    stamp(9)
    tl(9, 7, 0)

def conv_wg():
    conv_tile()
    A(f"s_cmp_ge_u32 s{S_WAVE}, 4")
    A("s_cbranch_scc1 L_helper")
    conv_mfma_wave()
    A("s_branch L_epi")
    A.label("L_helper")
    conv_helper_prep()
    A.label("L_epi")
    conv_epilogue()
    A("s_branch L_fin")

M_WG = 0
M_WU = 73728
M_XS = 147456
XS_RS = 1168
M_H = M_XS + 8*XS_RS
H_RS = 144
M_GU = M_H + 8*H_RS
M_RED = M_GU
M_MISC = M_GU + 4096
M_END = M_MISC + 160
M_LIST = 0
S_DUMP = 16384

def moe_dma():
    T = S_T
    srd(SRD_K, S_WGT, 5308416)
    srd(SRD_V, S_WUP, 5308416)
    A("v_lshrrev_b32 v1, 3, v0")
    A("v_and_b32 v2, 7, v0")
    A("v_bfe_u32 v3, v0, 4, 1")
    A(f"s_and_b32 s{T+1}, s{S_WAVE}, 1")
    A(f"s_lshl_b32 s{T+1}, s{T+1}, 1")
    A(f"v_add_u32 v3, s{T+1}, v3")
    A("v_lshlrev_b32 v3, 1, v3")
    A("v_xor_b32 v2, v2, v3")
    A("v_mul_u32_u24 v1, 9216, v1")
    A("v_lshl_add_u32 v1, v2, 4, v1")
    A(f"s_lshl_b32 s{T+1}, s70, 7")
    A(f"v_add_u32 v1, s{T+1}, v1")
    A(f"s_mul_i32 s{T+3}, s{S_WAVE}, 73728")
    A(f"s_lshl_b32 s{T+4}, s{S_WAVE}, 10")
    A(f"s_mov_b32 s{T+5}, 0")
    L = A.newlabel("L_dma")
    A.label(L)
    A(f"s_add_u32 m0, s{T+4}, {M_WG}")
    A("s_nop 0")
    A(f"buffer_load_dwordx4 v1, s[{SRD_K}:{SRD_K+3}], s{T+3} offen {NT} lds")
    A(f"s_add_u32 m0, s{T+4}, {M_WU}")
    A(f"s_add_u32 s{T+5}, s{T+5}, 1")
    A(f"buffer_load_dwordx4 v1, s[{SRD_V}:{SRD_V+3}], s{T+3} offen {NT} lds")
    A(f"s_add_u32 s{T+3}, s{T+3}, {8*73728}")
    A(f"s_add_u32 s{T+4}, s{T+4}, {8*1024}")
    A(f"s_cmp_lt_u32 s{T+5}, 9")
    A(f"s_cbranch_scc1 {L}")

def moe_sel_wait():
    T = S_T
    A(f"s_lshl_b32 s{T+1}, s{S_WAVE}, 3")
    A(f"s_add_u32 s{T+1}, s{T+1}, {WS_SEL}")
    A(f"v_mov_b32 v3, s{T+1}")
    A("v_mov_b32 v4, 0")
    L = A.newlabel("L_sw"); Ld = A.newlabel("L_swd")
    A(f"s_mov_b32 s{T}, 0")
    A.label(L)
    A(f"global_load_dwordx2 v[16:17], v3, {sp(S_WS)} sc1")
    A(f"global_load_dword v30, v4, {sp(S_DBG)} sc1")
    A("s_waitcnt vmcnt(0)")
    A(f"v_readfirstlane_b32 s{S_NONCE}, v30")
    A(f"v_readfirstlane_b32 s{T+2}, v17")
    A(f"s_add_u32 s{T}, s{T}, 1")
    A(f"s_cmp_ge_u32 s{T}, {SPIN_MAX}")
    A(f"s_cbranch_scc1 {Ld}")
    A(f"s_cmp_eq_u32 s{S_NONCE}, 0")
    A(f"s_cbranch_scc1 {L}_s")
    A(f"s_cmp_eq_u32 s{T+2}, s{S_NONCE}")
    A(f"s_cbranch_scc1 {Ld}")
    A.label(L + "_s")
    A("s_sleep 3")
    A(f"s_branch {L}")
    A.label(Ld)

def moe_row_loads():
    T = S_T
    A("v_and_b32 v18, 0x7ff, v16")
    A("v_mul_u32_u24 v20, 1152, v18")
    A("v_and_b32 v21, 31, v0")
    A("v_mul_u32_u24 v21, 36, v21")
    A("v_add_u32 v20, v20, v21")
    A(f"global_load_dwordx4 {p4(24)}, v20, {sp(S_Q)}")
    A(f"global_load_dwordx4 {p4(28)}, v20, {sp(S_Q)} offset:16")
    A(f"global_load_dword v32, v20, {sp(S_Q)} offset:32")
    A("v_lshlrev_b32 v22, 3, v18")
    A(f"v_add_u32 v22, {WS_SG}, v22")
    A(f"global_load_dwordx2 v[40:41], v22, {sp(S_WS)} sc1")

def moe_xs_compute():
    T = S_T
    L = A.newlabel("L_sg"); Ld = A.newlabel("L_sgd")
    A(f"s_mov_b32 s{T}, 0")
    A.label(L)
    A(f"v_readfirstlane_b32 s{T+2}, v41")
    A(f"s_add_u32 s{T}, s{T}, 1")
    A(f"s_cmp_eq_u32 s{T+2}, s{S_NONCE}")
    A(f"s_cbranch_scc1 {Ld}")
    A(f"s_cmp_ge_u32 s{T}, {SPIN_MAX}")
    A(f"s_cbranch_scc1 {Ld}")
    A(f"global_load_dwordx2 v[40:41], v22, {sp(S_WS)} sc1")
    A("s_waitcnt vmcnt(0)")
    A(f"s_branch {L}")
    A.label(Ld)
    A(f"v_lshlrev_b32 v44, 16, v40")
    A(f"v_and_b32 v45, s{S_MASK}, v40")
    A("v_rcp_f32 v46, v45")
    A(f"v_and_b32 v52, s{S_MASK}, v16")
    A("v_fma_f32 v47, -v45, v46, 1.0")
    A("v_fma_f32 v46, v47, v46, v46")
    A(f"v_mul_f32 v52, 0x{f32bits(-1.4426950408889634):08x}, v52")
    A("v_exp_f32 v52, v52")
    for i in range(9):
        r = 24 + i
        t = 48 + 2*(i & 1)
        A(f"v_lshlrev_b32 v{t}, 16, v{r}")
        A(f"v_and_b32 v{t+1}, s{S_MASK}, v{r}")
        A(f"v_pk_add_f32 {p2(t)}, {p2(t)}, v[44:45] op_sel_hi:[1,0] neg_lo:[0,1] neg_hi:[0,1]")
        rnd(t); rnd(t+1)
        A(f"v_pk_mul_f32 {p2(t)}, {p2(t)}, v[46:47] op_sel_hi:[1,0]")
        A(f"v_cvt_pk_bf16_f32 v{r}, v{t}, v{t+1}")
    A("v_add_f32 v52, 1.0, v52")
    A("v_rcp_f32 v52, v52")
    A(f"s_mul_i32 s{T+4}, s{S_WAVE}, {XS_RS}")
    A(f"s_add_u32 s{T+4}, s{T+4}, {M_XS}")
    A("v_add_u32 v21, s%d, v21" % (T+4))
    rnd(52)
    A("s_mov_b64 exec, 0xffffffff")
    A("ds_write2_b32 v21, v24, v25 offset0:0 offset1:1")
    A("ds_write2_b32 v21, v26, v27 offset0:2 offset1:3")
    A("ds_write2_b32 v21, v28, v29 offset0:4 offset1:5")
    A("ds_write2_b32 v21, v30, v31 offset0:6 offset1:7")
    A("ds_write_b32 v21, v32 offset:32")
    A(f"s_lshl_b32 s{T+4}, s{S_WAVE}, 2")
    A(f"s_add_u32 s{T+4}, s{T+4}, {M_MISC+32}")
    A(f"v_mov_b32 v53, s{T+4}")
    A("s_mov_b64 exec, 1")
    A("ds_write_b32 v53, v16")
    A("ds_write_b32 v53, v52 offset:32")
    A("s_mov_b64 exec, -1")
    A(f"s_lshl_b32 s{T+1}, s{S_WAVE}, 6")
    A(f"v_add_u32 v1, s{T+1}, v0")

DRA, DRB = 64, 96
def moe_down_loads():
    T = S_T
    A("v_lshrrev_b32 v6, 4, v0")
    A("v_mul_u32_u24 v5, 9216, v6")
    A("v_and_b32 v6, 15, v0")
    A("v_lshl_add_u32 v5, v6, 3, v5")
    A(f"s_mul_i32 s{T+1}, s70, 73728")
    A(f"s_lshl_b32 s{T+2}, s{S_WAVE}, 7")
    A(f"s_add_u32 s{T+1}, s{T+1}, s{T+2}")
    A(f"v_add_u32 v5, s{T+1}, v5")
    srd(SRD_Q, S_WD, 5308416)
    def panel(R, extra):
        for ks in range(2):
            for jj in range(8):
                so = 36864*ks + 4608*(jj//4) + extra
                A(f"s_mov_b32 s{T+3}, {so}")
                r = R + 16*ks + 2*jj
                A(f"buffer_load_dwordx2 {p2(r)}, v5, s[{SRD_Q}:{SRD_Q+3}], s{T+3} offen offset:{1152*(jj%4)} {NT}")
    panel(DRA, 0)
    L = A.newlabel("L_np8")
    A(f"s_cmp_lg_u32 s{S_WAVE}, 0")
    A(f"s_cbranch_scc1 {L}")
    panel(DRB, 1024)
    A.label(L)

def down_perm(R, F):
    for ks in range(2):
        for e in range(4):
            sel = S_SELLO if (e & 1) == 0 else S_SELHI
            for q in range(4):
                A(f"v_perm_b32 v{F+16*ks+4*e+q}, v{R+16*ks+2*(2*q+1)+e//2}, v{R+16*ks+2*(2*q)+e//2}, s{sel}")

def moe_gateup_addr():
    T = S_T
    A(f"s_lshr_b32 s{T+1}, s{S_WAVE}, 2")
    A(f"s_and_b32 s{T+2}, s{S_WAVE}, 3")
    A("v_lshrrev_b32 v6, 4, v0")
    A("v_bfe_u32 v7, v0, 2, 2")
    A("v_and_b32 v8, 3, v0")
    A("v_lshrrev_b32 v9, 1, v7")
    A("v_and_b32 v10, 1, v6")
    A("v_lshl_add_u32 v9, v10, 1, v9")
    A("v_lshlrev_b32 v9, 1, v9")
    A("v_lshrrev_b32 v10, 1, v8")
    A(f"s_lshl_b32 s{T+3}, s{T+2}, 1")
    A(f"v_add_u32 v10, s{T+3}, v10")
    A("v_xor_b32 v10, v10, v9")
    A("v_lshlrev_b32 v34, 10, v6")
    A("v_lshl_add_u32 v34, v7, 7, v34")
    A("v_lshl_add_u32 v34, v10, 4, v34")
    A("v_and_b32 v8, 1, v8")
    A("v_lshl_add_u32 v34, v8, 3, v34")
    A(f"s_mul_i32 s{T+3}, s{T+1}, {M_WU}")
    A(f"v_add_u32 v34, s{T+3}, v34")
    A(f"v_add_u32 v35, {4096*9}, v34")

def gu_areg(t):
    return f"v[{128+4*t}:{128+4*t+3}]" if t < 16 else f"a[{4*(t-16)}:{4*(t-16)+3}]"
def gu_areg2(t, h):
    if t < 16: return f"v[{128+4*t+2*h}:{128+4*t+2*h+1}]"
    return f"a[{4*(t-16)+2*h}:{4*(t-16)+2*h+1}]"
def moe_gateup_preload():
    for t in range(18):
        a, o = (34, 4096*t) if t < 9 else (35, 4096*(t-9))
        A(f"ds_read_b64_tr_b16 {gu_areg2(t,0)}, v{a} offset:{o}")
        A(f"ds_read_b64_tr_b16 {gu_areg2(t,1)}, v{a} offset:{o+512}")
        if t % 6 == 5: A("s_waitcnt lgkmcnt(2)")

def moe_gateup():
    T = S_T
    A(f"s_lshr_b32 s{T+1}, s{S_WAVE}, 2")
    A(f"s_and_b32 s{T+2}, s{S_WAVE}, 3")
    A("v_lshrrev_b32 v6, 4, v0")
    A("v_and_b32 v3, 7, v0")
    A(f"v_mul_u32_u24 v3, {XS_RS}, v3")
    A("v_lshl_add_u32 v3, v6, 4, v3")
    A(f"v_add_u32 v3, {M_XS}, v3")
    B0 = 8
    def rd(t):
        b = B0 + 4*(t % 12)
        A(f"ds_read_b128 a[{b}:{b+3}], v3 offset:{64*t}")
    for t in range(12): rd(t)
    for t in range(18):
        rem = min(17, t+11) - t
        A(f"s_waitcnt lgkmcnt({min(rem, 15)})")
        b = B0 + 4*(t % 12)
        acc = 8 + 4*(t & 1)
        cin = "0" if t < 2 else f"v[{acc}:{acc+3}]"
        A(f"v_mfma_f32_16x16x32_bf16 v[{acc}:{acc+3}], {gu_areg(t)}, a[{b}:{b+3}], {cin}")
        if t + 12 < 18: rd(t+12)
    A("v_and_b32 v3, 15, v0")
    A("v_lshlrev_b32 v4, 8, v3")
    A("v_lshl_add_u32 v4, v6, 4, v4")
    A(f"s_lshl_b32 s{T+3}, s{T+1}, 11")
    A(f"s_lshl_b32 s{T+4}, s{T+2}, 6")
    A(f"s_add_u32 s{T+3}, s{T+3}, s{T+4}")
    A(f"s_add_u32 s{T+3}, s{T+3}, {M_GU}")
    A(f"v_add_u32 v4, s{T+3}, v4")
    A("v_cmp_gt_u32 vcc, 8, v3")
    A(f"s_and_saveexec_b64 {sp(T+12)}, vcc")
    A("s_nop 1")
    A("v_pk_add_f32 v[8:9], v[8:9], v[12:13]")
    A("v_pk_add_f32 v[10:11], v[10:11], v[14:15]")
    A(f"ds_write_b128 v4, {p4(8)}")
    A(f"s_mov_b64 exec, {sp(T+12)}")

def moe_h_and_down_stage():
    T = S_T
    A("v_lshlrev_b32 v2, 2, v1")
    A(f"v_add_u32 v2, {M_GU}, v2")
    A("ds_read_b32 v8, v2")
    A("ds_read_b32 v9, v2 offset:2048")
    A("v_lshrrev_b32 v3, 6, v1")
    A(f"v_mul_u32_u24 v3, {H_RS}, v3")
    A("v_lshl_add_u32 v3, v0, 1, v3")
    A(f"v_add_u32 v3, {M_H}, v3")
    A("s_waitcnt lgkmcnt(0)")
    rnd(8); rnd(9)
    A(f"v_mul_f32 v10, 0x{f32bits(-1.4426950408889634):08x}, v8")
    A("v_exp_f32 v10, v10")
    A("s_nop 0")
    A("v_add_f32 v10, 1.0, v10")
    A("v_rcp_f32 v10, v10")
    A("s_nop 0")
    A("v_mul_f32 v10, v8, v10")
    rnd(10)
    A("v_mul_f32 v10, v10, v9")
    A("v_cvt_pk_bf16_f32 v10, v10, v10")
    A("ds_write_b16 v3, v10")
    A("s_waitcnt vmcnt(0)")
    down_perm(DRA, 32)
    L = A.newlabel("L_np8b")
    A(f"s_cmp_lg_u32 s{S_WAVE}, 0")
    A(f"s_cbranch_scc1 {L}")
    down_perm(DRB, 64)
    A.label(L)

def moe_down():
    T = S_T
    A("v_and_b32 v2, 7, v0")
    A(f"v_mul_u32_u24 v2, {H_RS}, v2")
    A("v_lshrrev_b32 v6, 4, v0")
    A("v_lshl_add_u32 v2, v6, 4, v2")
    A(f"v_add_u32 v2, {M_H}, v2")
    A(f"ds_read_b128 {p4(16)}, v2")
    A(f"ds_read_b128 {p4(20)}, v2 offset:64")
    A("v_and_b32 v4, 15, v0")
    A("v_lshlrev_b32 v5, 4, v4")
    A("v_lshl_add_u32 v5, v6, 9, v5")
    A(f"s_mul_i32 s{T+1}, s70, 18432")
    A(f"s_lshl_b32 s{T+2}, s{S_WAVE}, 11")
    A(f"s_add_u32 s{T+1}, s{T+1}, s{T+2}")
    A(f"v_add_u32 v5, s{T+1}, v5")
    add64(T+2, S_WS, WS_PART)
    A(f"s_mov_b32 s{T+4}, 0x07060503"); A(f"s_mov_b32 s{T+5}, 0x06050302"); A(f"s_mov_b32 s{T+6}, 0x05030201")
    A("v_cmp_gt_u32 vcc, 8, v4")
    A(f"s_mov_b64 {sp(T+12)}, vcc")
    A("s_waitcnt lgkmcnt(0)")
    def panel(F, ACC, G, vaddr):
        for e in range(4):
            A(f"v_mfma_f32_16x16x32_bf16 {p4(ACC+4*e)}, {p4(F+4*e)}, {p4(16)}, 0")
        for e in range(4):
            A(f"v_mfma_f32_16x16x32_bf16 {p4(ACC+4*e)}, {p4(F+16+4*e)}, {p4(20)}, {p4(ACC+4*e)}")
        A("s_nop 7"); A("s_nop 1")
        for r in range(4):
            g = G + 4*r
            a, b, c, d = ACC+r, ACC+4+r, ACC+8+r, ACC+12+r
            A(f"v_perm_b32 v{g}, v{a}, v{b}, s{T+4}")
            A(f"v_perm_b32 v{g+1}, v{b}, v{c}, s{T+5}")
            A(f"v_perm_b32 v{g+2}, v{c}, v{d}, s{T+6}")
            A(f"v_mov_b32 v{g+3}, s{S_NONCE}")
        A(f"s_mov_b64 exec, {sp(T+12)}")
        for r in range(4):
            A(f"global_store_dwordx4 v{vaddr}, {p4(G+4*r)}, {sp(T+2)} offset:{128*r} sc1")
        A("s_mov_b64 exec, -1")
    panel(32, 96, 112, 5)
    L = A.newlabel("L_np8c")
    A(f"s_cmp_lg_u32 s{S_WAVE}, 0")
    A(f"s_cbranch_scc1 {L}")
    A(f"v_add_u32 v7, {8*2048}, v5")
    panel(64, 96, 32, 7)
    A.label(L)

def moe_reduce():
    T = S_T
    A("v_lshrrev_b32 v6, 4, v0")
    A(f"s_mul_i32 s{T+1}, s{S_WAVE}, 9")
    A(f"v_add_u32 v1, s{T+1}, v6")
    A(f"v_mul_u32_u24 v1, 18432, v1")
    A("v_and_b32 v2, 15, v0")
    A("v_lshl_add_u32 v1, v2, 4, v1")
    A(f"s_lshl_b32 s{T+1}, s70, 8")
    A(f"v_add_u32 v1, s{T+1}, v1")
    A(f"v_add_u32 v3, {4*18432}, v1")
    A(f"v_mul_u32_u24 v4, 18432, v6")
    A(f"v_sub_u32 v4, v1, v4")
    A(f"v_add_u32 v4, {8*18432}, v4")
    A("v_lshrrev_b32 v50, 2, v0")
    A("v_and_b32 v51, 3, v0")
    A(f"s_lshl_b32 s{T+1}, s70, 4")
    A(f"v_add_u32 v52, s{T+1}, v50")
    A("v_and_b32 v53, 7, v52")
    A("v_lshrrev_b32 v54, 3, v52")
    A("v_lshl_add_u32 v54, v54, 2, v51")
    A("v_mul_u32_u24 v55, 576, v53")
    A("v_add_u32 v55, v55, v54")
    A("v_lshlrev_b32 v55, 3, v55")
    A(f"v_add_u32 v55, {WS_T1G}, v55")
    add64(T+2, S_WS, WS_PART)
    def ld():
        A(f"global_load_dwordx4 {p4(16)}, v1, {sp(T+2)} sc1")
        A(f"global_load_dwordx4 {p4(20)}, v3, {sp(T+2)} sc1")
        A(f"global_load_dwordx4 {p4(24)}, v4, {sp(T+2)} sc1")
    tagcheck_loop(ld, [19, 23, 27], 10, 12, sleep=1)
    stamp(8)
    tl(14, 151, 0)
    A(f"s_mov_b32 s{T+4}, 0x0403020c"); A(f"s_mov_b32 s{T+5}, 0x0504030c"); A(f"s_mov_b32 s{T+6}, 0xffffff00")
    U = 32
    for i in range(3):
        g = 16 + 4*i; u = U + 4*i
        A(f"v_and_b32 v{u}, s{T+6}, v{g}")
        A(f"v_perm_b32 v{u+1}, v{g}, v{g+1}, s{T+4}")
        A(f"v_perm_b32 v{u+2}, v{g+1}, v{g+2}, s{T+5}")
        A(f"v_lshlrev_b32 v{u+3}, 8, v{g+2}")
    for r in range(4):
        A(f"v_add_f32 v{U+r}, v{U+r}, v{U+4+r}")
    for swap in ("v_permlane32_swap_b32", "v_permlane16_swap_b32"):
        for r in range(4): A(f"v_mov_b32 v{44+r}, v{U+r}")
        A("s_nop 1")
        for r in range(4): A(f"{swap} v{U+r}, v{44+r}")
        for r in range(4): A(f"v_add_f32 v{U+r}, v{U+r}, v{44+r}")
    for r in range(4):
        A(f"v_add_f32 v{U+r}, v{U+r}, v{U+8+r}")
    A(f"s_lshl_b32 s{T+1}, s{S_WAVE}, 8")
    A("v_lshlrev_b32 v5, 4, v2")
    A(f"v_add_u32 v5, s{T+1}, v5")
    A(f"v_add_u32 v5, {M_RED}, v5")
    A("s_mov_b64 exec, 0xffff")
    A(f"ds_write_b128 v5, {p4(U)}")
    A("s_mov_b64 exec, -1")
    A("s_waitcnt lgkmcnt(0)")
    A("s_barrier")
    L = A.newlabel("L_nofin")
    A(f"s_cmp_lg_u32 s{S_WAVE}, 0")
    A(f"s_cbranch_scc1 {L}")
    A("v_lshlrev_b32 v6, 4, v50")
    A("v_lshl_add_u32 v6, v51, 2, v6")
    A(f"v_add_u32 v6, {M_RED}, v6")
    for w in range(8): A(f"ds_read_b32 v{16+w}, v6 offset:{256*w}")
    A(f"v_mul_u32_u24 v7, {XS_RS}, v53")
    A("v_lshl_add_u32 v7, v54, 1, v7")
    A(f"v_add_u32 v7, {M_XS}, v7")
    A("ds_read_u16 v24, v7")
    A("v_lshlrev_b32 v8, 2, v53")
    A(f"v_add_u32 v8, {M_MISC}, v8")
    A("ds_read_b32 v25, v8 offset:32")
    A("ds_read_b32 v26, v8 offset:64")
    A("v_mov_b32 v5, v54")
    A("s_waitcnt lgkmcnt(0)")
    T1POLL = True
    A("v_add_f32 v16, v16, v17"); A("v_add_f32 v18, v18, v19"); A("v_add_f32 v20, v20, v21"); A("v_add_f32 v22, v22, v23")
    A("v_add_f32 v16, v16, v18"); A("v_add_f32 v20, v20, v22"); A("v_add_f32 v16, v16, v20")
    rnd(16)
    A("v_mul_f32 v16, v16, v26")
    rnd(16)
    A("v_lshlrev_b32 v24, 16, v24")
    A("v_add_f32 v16, v24, v16")
    rnd(16)
    A("v_and_b32 v25, 0x7ff, v25")
    A("v_mul_u32_u24 v25, 1152, v25")
    A("v_lshl_add_u32 v25, v5, 1, v25")
    tagcheck_loop(lambda: A(f"global_load_dwordx2 v[28:29], v55, {sp(S_WS)} sc1"), [29], 10, 12, sleep=0)
    A("v_add_f32 v16, v28, v16")
    A("v_cvt_pk_bf16_f32 v16, v16, v16")
    A(f"global_store_short v25, v16, {sp(S_OUT)}")
    A.label(L)

def lds_init_list():
    T = S_T
    A(f"s_lshl_b32 s{T+1}, s{S_WAVE}, 10")
    A("v_lshlrev_b32 v110, 4, v0")
    A(f"v_add_u32 v111, s{T+1}, v110")
    A(f"v_add_u32 v111, {M_LIST}, v111")
    for i in range(4): A(f"v_mov_b32 v{112+i}, 0xff800000")
    A(f"ds_write_b128 v111, {p4(112)}")
    L0 = A.newlabel("L_ni")
    A(f"s_cmp_lg_u32 s{S_WAVE}, 0")
    A(f"s_cbranch_scc1 {L0}")
    A(f"v_add_u32 v111, {M_LIST+8192}, v110")
    A("s_mov_b64 exec, 0xf")
    A(f"ds_write_b128 v111, {p4(112)}")
    A("s_mov_b64 exec, -1")
    for i in range(4): A(f"v_mov_b32 v{116+i}, 0")
    A(f"v_add_u32 v111, {M_MISC}, v110")
    A("s_mov_b64 exec, 0x3ff")
    A(f"ds_write_b128 v111, {p4(116)}")
    A("s_mov_b64 exec, -1")
    A.label(L0)

def sel_top8():
    T = S_T
    A(f"s_lshl_b32 s{T+1}, s{S_WAVE}, 6")
    A(f"v_add_u32 v1, s{T+1}, v0")
    A("v_lshlrev_b32 v2, 5, v1")
    add64(T+2, S_WS, WS_RG)
    K = 16
    def ld():
        for i in range(2):
            A(f"global_load_dwordx4 {p4(K+4*i)}, v2, {sp(T+2)} offset:{16*i} sc1")
    tagcheck_loop(ld, [K+2*i+1 for i in range(4)], 10, 12, sleep=1)
    stamp(5)
    tl(10, 255, 0)
    keys = [K+2*i for i in range(4)]
    A(f"v_max3_f32 v40, v{keys[0]}, v{keys[1]}, v{keys[2]}")
    A(f"v_max_f32 v40, v40, v{keys[3]}")
    for sh in (8, 4, 2, 1):
        A("s_nop 1")
        A(f"v_max_f32_dpp v40, v40, v40 row_ror:{sh} row_mask:0xf bank_mask:0xf")
    A("s_nop 1")
    A(f"v_readlane_b32 s{T+4}, v40, 16")
    A(f"v_readlane_b32 s{T+5}, v40, 32")
    A(f"v_readlane_b32 s{T+6}, v40, 48")
    A("s_nop 1")
    A(f"v_max_f32 v40, s{T+4}, v40")
    A(f"v_max_f32 v40, s{T+5}, v40")
    A(f"v_max_f32 v40, s{T+6}, v40")
    A(f"s_lshl_b32 s{T+4}, s{S_WAVE}, 2")
    A(f"s_add_u32 s{T+4}, s{T+4}, {M_MISC+96}")
    A(f"v_mov_b32 v43, s{T+4}")
    A("s_mov_b64 exec, 1")
    A(f"ds_write_b32 v43, v40")
    A("s_mov_b64 exec, -1")
    A("s_waitcnt lgkmcnt(0)")
    A("s_barrier")
    A(f"v_mov_b32 v43, {M_MISC+96}")
    A(f"ds_read_b128 {p4(44)}, v43")
    A(f"ds_read_b128 {p4(48)}, v43 offset:16")
    A("s_waitcnt lgkmcnt(0)")
    A("v_min3_f32 v40, v44, v45, v46")
    A("v_min3_f32 v41, v47, v48, v49")
    A("v_min3_f32 v40, v40, v50, v51")
    A("v_min_f32 v40, v40, v41")
    A("v_mov_b32 v41, 0")
    for i in range(4):
        A(f"v_cmp_ge_f32 {sp(T+4+2*i)}, v{keys[i]}, v40")
    for q in range(4):
        A(f"v_addc_co_u32 v41, vcc, 0, v41, {sp(T+4+2*q)}")
    A(f"v_mov_b32 v43, {M_MISC}")
    A("v_cmp_lt_u32 vcc, 0, v41")
    A(f"s_and_saveexec_b64 {sp(T+12)}, vcc")
    A("ds_add_rtn_u32 v42, v43, v41")
    A(f"s_mov_b64 exec, {sp(T+12)}")
    A("s_waitcnt lgkmcnt(0)")
    A("v_lshlrev_b32 v42, 2, v42")
    A(f"v_add_u32 v42, {M_LIST}, v42")
    A(f"v_mov_b32 v43, {S_DUMP}")
    for i in range(4):
        A(f"v_cndmask_b32 v44, v43, v42, {sp(T+4+2*i)}")
        A(f"v_cndmask_b32 v45, 0, 4, {sp(T+4+2*i)}")
        A(f"ds_write_b32 v44, v{keys[i]}")
        A(f"v_add_u32 v42, v42, v45")
    A("s_waitcnt lgkmcnt(0)")
    A("s_barrier")
    A(f"v_mov_b32 v43, {M_MISC}")
    A("ds_read_b32 v44, v43")
    A("s_waitcnt lgkmcnt(0)")
    A(f"v_readfirstlane_b32 s{T+8}, v44")
    A(f"s_mov_b32 s{T+9}, 0")
    Lc = A.newlabel("L_chunk"); Lj = A.newlabel("L_j")
    A.label(Lc)
    A(f"v_add_u32 v44, s{T+9}, v0")
    A("v_lshlrev_b32 v44, 2, v44")
    A(f"v_add_u32 v44, {M_LIST}, v44")
    A("ds_read_b32 v46, v44")
    A("v_mov_b32 v47, 0")
    A(f"v_mov_b32 v45, {M_LIST}")
    A(f"s_mov_b32 s{T+10}, 0")
    A.label(Lj)
    A(f"ds_read_b128 {p4(48)}, v45")
    A(f"ds_read_b128 {p4(52)}, v45 offset:16")
    A("v_add_u32 v45, 32, v45")
    A(f"s_add_u32 s{T+10}, s{T+10}, 8")
    A("s_waitcnt lgkmcnt(1)")
    for q in range(4):
        A(f"v_cmp_gt_f32 {sp(T+2*q)}, v{48+q}, v46")
    for q in range(4):
        A(f"v_addc_co_u32 v47, vcc, 0, v47, {sp(T+2*q)}")
    A("s_waitcnt lgkmcnt(0)")
    for q in range(4):
        A(f"v_cmp_gt_f32 {sp(T+2*q)}, v{52+q}, v46")
    for q in range(4):
        A(f"v_addc_co_u32 v47, vcc, 0, v47, {sp(T+2*q)}")
    A(f"s_cmp_lt_u32 s{T+10}, s{T+8}")
    A(f"s_cbranch_scc1 {Lj}")
    A(f"v_add_u32 v44, s{T+9}, v0")
    A(f"v_cmp_gt_u32 vcc, s{T+8}, v44")
    A(f"v_cmp_gt_u32 {sp(T)}, 8, v47")
    A("s_nop 1")
    A(f"s_and_b64 vcc, vcc, {sp(T)}")
    A(f"s_and_saveexec_b64 {sp(T+12)}, vcc")
    A("v_lshlrev_b32 v47, 2, v47")
    A(f"v_add_u32 v47, {M_MISC+32}, v47")
    A("ds_write_b32 v47, v46")
    A(f"s_mov_b64 exec, {sp(T+12)}")
    A(f"s_add_u32 s{T+9}, s{T+9}, 64")
    A(f"s_cmp_lt_u32 s{T+9}, s{T+8}")
    A(f"s_cbranch_scc1 {Lc}")
    A("s_waitcnt lgkmcnt(0)")
    stamp(6)

def sel_publish():
    T = S_T
    L = A.newlabel("L_sp")
    A(f"s_cmp_lg_u32 s{S_WAVE}, 0")
    A(f"s_cbranch_scc1 {L}")
    A("v_lshlrev_b32 v1, 2, v0")
    A(f"v_add_u32 v1, {M_MISC+32}, v1")
    A("s_mov_b64 exec, 0xff")
    A("ds_read_b32 v2, v1")
    add64(T+2, S_WS, WS_SEL)
    A(f"v_mov_b32 v3, s{S_NONCE}")
    A("v_lshlrev_b32 v4, 3, v0")
    A("s_waitcnt lgkmcnt(0)")
    A(f"global_store_dwordx2 v4, v[2:3], {sp(T+2)} sc1")
    A("s_mov_b64 exec, -1")
    A.label(L)
    stamp(7)
    tl(11, 255, 0)

def ln_pass(stok):
    ln_loads(stok, LN_Q, True)
    A("v_mov_b32 v120, 0")
    A(f"global_load_dword v121, v120, {sp(S_DBG)} sc1")
    A("s_waitcnt vmcnt(1)")
    def hook():
        Lhn = A.newlabel("L_lnn")
        A("s_waitcnt vmcnt(0)")
        A(f"v_readfirstlane_b32 s{S_NONCE}, v121")
        A(f"s_cmp_lg_u32 s{S_NONCE}, 0")
        A(f"s_cbranch_scc1 {Lhn}")
        get_nonce(124)
        A.label(Lhn)
    ln_compute_publish(LN_Q, 3, True, hook=hook)

def spare_wg():
    T = S_T
    A(f"s_sub_u32 s69, s69, {NMOE}")
    A("s_mul_i32 s68, s69, 24")
    A(f"s_lshl_b32 s{T+1}, s{S_WAVE}, 2")
    A(f"s_add_u32 s68, s68, s{T+1}")
    A("s_add_u32 s68, s68, 1152")
    Le = A.newlabel("L_lne")
    A(f"s_cmp_ge_u32 s{S_WAVE}, 6")
    A(f"s_cbranch_scc1 {Le}")
    A("s_cmp_ge_u32 s68, 2048")
    A(f"s_cbranch_scc1 {Le}")
    ln_pass(68)
    A.label(Le)
    stamp(4)
    A(f"s_cmp_lg_u32 s69, {SELIDX}")
    A("s_cbranch_scc1 L_fin")
    lds_init_list()
    get_nonce(124)
    A("s_waitcnt lgkmcnt(0)")
    A("s_barrier")
    sel_top8()
    sel_publish()
    A("s_branch L_fin")

def moe_wg():
    T = S_T
    A(f"s_sub_u32 s69, s{S_WG}, {NCONV}")
    A(f"s_cmp_ge_u32 s69, {NMOE}")
    A("s_cbranch_scc1 L_spare")
    A("s_and_b32 s70, s69, 7")
    A("s_mul_i32 s70, s70, 9")
    A(f"s_lshr_b32 s{T+1}, s69, 3")
    A(f"s_add_u32 s70, s70, s{T+1}")
    Lm = A.newlabel("L_mln")
    A(f"s_cmp_ge_u32 s{S_WAVE}, 4")
    A(f"s_cbranch_scc1 {Lm}")
    A("s_lshl_b32 s68, s69, 4")
    A(f"s_lshl_b32 s{T+1}, s{S_WAVE}, 2")
    A(f"s_add_u32 s68, s68, s{T+1}")
    ln_pass(68)
    A.label(Lm)
    if "mbar" in OPTS: A("s_barrier")
    if "mnonce" in OPTS: get_nonce(10)
    stamp(3)
    moe_dma()
    A("s_waitcnt vmcnt(4)")
    stamp(4)
    moe_sel_wait()
    stamp(5)
    tl(12, 151, 7)
    moe_row_loads()
    A("s_barrier")
    moe_down_loads()
    moe_gateup_addr()
    moe_gateup_preload()
    Lq = A.newlabel("L_w32")
    A(f"s_cmp_lg_u32 s{S_WAVE}, 0")
    A(f"s_cbranch_scc1 {Lq}")
    A("s_waitcnt vmcnt(32)")
    A.label(Lq)
    A(f"s_cmp_eq_u32 s{S_WAVE}, 0")
    A(f"s_cbranch_scc1 {Lq}_b")
    A("s_waitcnt vmcnt(16)")
    A.label(Lq + "_b")
    moe_xs_compute()
    stamp(6)
    tl(13, 151, 7)
    A("s_waitcnt lgkmcnt(0)")
    A("s_barrier")
    moe_gateup()
    A("s_waitcnt lgkmcnt(0)")
    A("s_barrier")
    moe_h_and_down_stage()
    A("s_waitcnt lgkmcnt(0)")
    A("s_barrier")
    stamp(7)
    moe_down()
    moe_reduce()
    A("s_branch L_fin")
    A.label("L_spare")
    spare_wg()

def main():
    prologue()
    A(f"s_cmp_ge_u32 s{S_WG}, {NCONV}")
    A("s_cbranch_scc1 L_moe")
    conv_wg()
    A.label("L_moe")
    moe_wg()
    A.label("L_fin")
    tl(15, 151, 0)
    prof_end()
    A.label("L_end")
    A("s_endpgm")

main()
K = NAME + "_kernel"
LDS = max(L_CONV_END, M_END)
txt = HDR + f"; @launch grid=(256,1,1) block=(512,1,1) lds={LDS}\n" + '.amdgcn_target "amdgcn-amd-amdhsa--gfx950"\n.text\n' + head(K) + A.text() + kd(K, 256, 102, 192, "  .amdhsa_float_denorm_mode_32 3\n")
open(OUTFN, "w").write(txt)
print("wrote", OUTFN, len(txt), "LDS", LDS)
```

```python
import sys, struct, os
sys.path.insert(0, "dev")
from asmlib import *

OUTFN = sys.argv[1] if len(sys.argv) > 1 else "k.s"
OPTS = set(sys.argv[2:])
PROF = "prof" in OPTS
NT = "nt" if "nt" in OPTS else ""
NTKV = "nt" if "ntkv" in OPTS else NT
NTH = "nt" if "nth" in OPTS else NT
NTW = "nt" if "ntw" in OPTS else NT
NTD = "nt" if "ntd" in OPTS else NT

WS_KVT = 0x000000
WS_XT = 0x240000
WS_RG = 0x480000
WS_SG = 0x484000
WS_FL = 0x488000
WS_FL2 = 0x488800
WS_SEL = 0x489800
WS_T1G = 0x48A000
WS_XSG = 0x494000
WS_PART = 0x4A0000
WS_PROF = 0x800000
WS_YG = 0x1000000
SPIN_MAX = 2000 if "dbgB" in OPTS else 400000
NCONV, NMOE = 144, 72
NLN = 40
SELIDX = 39

S_WG, S_WAVE = 2, 3
S_Q, S_K, S_V, S_SK, S_H, S_D, S_BX, S_WR, S_WGT, S_WUP, S_WD, S_OUT, S_DBG, S_WS = 4, 6, 8, 10, 12, 14, 16, 18, 20, 22, 24, 26, 28, 30
SRD_K, SRD_V, SRD_Q, SRD_O = 32, 36, 40, 44
S_NONCE = 48
S_MASK, S_SELLO, S_SELHI = 50, 51, 52
S_T = 54

A = Asm()
def f32bits(x): return struct.unpack("<I", struct.pack("<f", x))[0]
def p2(r): return f"v[{r}:{r+1}]"
def p4(r): return f"v[{r}:{r+3}]"
def sp(r): return f"s[{r}:{r+1}]"

NSTAMP = 10
def stamp(i):
    if PROF: A(f"s_memtime s[{80+2*i}:{81+2*i}]")
def prof_begin():
    if PROF:
        A("s_memrealtime s[100:101]")
        stamp(0)
        for i in range(1, NSTAMP):
            A(f"s_mov_b64 s[{80+2*i}:{81+2*i}], 0")
def prof_end():
    if not PROF: return
    A(f"s_memrealtime s[{S_T+2}:{S_T+3}]")
    A("s_waitcnt lgkmcnt(0)")
    A(f"s_lshl_b32 s{S_T}, s{S_WG}, 3")
    A(f"s_add_u32 s{S_T}, s{S_T}, s{S_WAVE}")
    A(f"s_lshl_b32 s{S_T}, s{S_T}, 6")
    A(f"s_add_u32 s{S_T}, s{S_T}, {WS_PROF}")
    A(f"v_mov_b32 v1, s{S_T}")
    A("s_mov_b64 exec, 1")
    A("v_mov_b32 v2, s100")
    A(f"global_store_dword v1, v2, {sp(S_WS)}")
    A(f"v_mov_b32 v2, s{S_T+2}")
    A(f"global_store_dword v1, v2, {sp(S_WS)} offset:4")
    for i in range(1, NSTAMP):
        A(f"s_sub_u32 s{S_T+1}, s{80+2*i}, s80")
        A(f"v_mov_b32 v2, s{S_T+1}")
        A(f"global_store_dword v1, v2, {sp(S_WS)} offset:{4+4*i}")
    A("s_mov_b64 exec, -1")

TL = "tl" in OPTS
TLSET = os.environ.get("TLSET", "A")
def tl(slot, wg, wave, setname="A"):
    if not TL or setname != TLSET: return
    L = A.newlabel("L_tl")
    A(f"s_cmp_lg_u32 s{S_WG}, {wg}")
    A(f"s_cbranch_scc1 {L}")
    A(f"s_cmp_lg_u32 s{S_WAVE}, {wave}")
    A(f"s_cbranch_scc1 {L}")
    A("s_memrealtime s[98:99]")
    A("s_mov_b64 s[100:101], exec")
    A("s_mov_b64 exec, 1")
    A("v_readfirstlane_b32 s96, v126")
    A("v_readfirstlane_b32 s97, v127")
    A(f"v_mov_b32 v126, {4*slot}")
    A("s_waitcnt lgkmcnt(0)")
    A("v_mov_b32 v127, s98")
    A(f"global_store_dword v126, v127, {sp(S_DBG)}")
    A("s_nop 4")
    A("v_mov_b32 v126, s96")
    A("v_mov_b32 v127, s97")
    A("s_mov_b64 exec, s[100:101]")
    A.label(L)

def rnd(v, src=None):
    A(f"v_cvt_pk_bf16_f32 v{v}, 0, v{v if src is None else src}")
def srd(dst, base, nbytes):
    A(f"s_mov_b32 s{dst}, s{base}")
    A(f"s_and_b32 s{dst+1}, s{base+1}, 0xffff")
    A(f"s_mov_b32 s{dst+2}, {nbytes}")
    A(f"s_mov_b32 s{dst+3}, 0x00020000")
def add64(dst, src, imm):
    A(f"s_add_u32 s{dst}, s{src}, {imm}")
    A(f"s_addc_u32 s{dst+1}, s{src+1}, 0")

def get_nonce(vtmp):
    L = A.newlabel("L_nonce"); Ld = A.newlabel("L_nonced")
    A(f"v_mov_b32 v{vtmp}, 0")
    A(f"s_mov_b32 s{S_T}, 0")
    A.label(L)
    A(f"global_load_dword v{vtmp+1}, v{vtmp}, {sp(S_DBG)} sc1")
    A(f"s_waitcnt vmcnt(0)")
    A(f"v_readfirstlane_b32 s{S_NONCE}, v{vtmp+1}")
    A(f"s_add_u32 s{S_T}, s{S_T}, 1")
    A(f"s_cmp_lg_u32 s{S_NONCE}, 0")
    A(f"s_cbranch_scc1 {Ld}")
    A(f"s_cmp_lt_u32 s{S_T}, {SPIN_MAX}")
    A(f"s_cbranch_scc1 {L}")
    A.label(Ld)

def tag_acc(tagregs, vacc, vtmp):
    A(f"v_xor_b32 v{vacc}, s{S_NONCE}, v{tagregs[0]}")
    rest = tagregs[1:]
    i = 0
    while i < len(rest):
        if i + 1 < len(rest):
            A(f"v_xor_b32 v{vtmp}, s{S_NONCE}, v{rest[i]}")
            A(f"v_xor_b32 v{vtmp+1}, s{S_NONCE}, v{rest[i+1]}")
            A(f"v_or3_b32 v{vacc}, v{vacc}, v{vtmp}, v{vtmp+1}")
            i += 2
        else:
            A(f"v_xor_b32 v{vtmp}, s{S_NONCE}, v{rest[i]}")
            A(f"v_or_b32 v{vacc}, v{vacc}, v{vtmp}")
            i += 1

def tagcheck_loop(load_fn, tagregs, vacc, vtmp, sleep=1):
    T = S_T
    L = A.newlabel("L_pl"); Ld = A.newlabel("L_pld")
    A(f"s_mov_b32 s{T}, 0")
    A.label(L)
    load_fn()
    A("s_waitcnt vmcnt(0)")
    tag_acc(tagregs, vacc, vtmp)
    A(f"v_cmp_ne_u32 vcc, 0, v{vacc}")
    A(f"s_add_u32 s{T}, s{T}, 1")
    A("s_nop 3")
    A("s_cmp_eq_u64 vcc, 0")
    A(f"s_cbranch_scc1 {Ld}")
    if sleep: A(f"s_sleep {sleep}")
    A(f"s_cmp_lt_u32 s{T}, {SPIN_MAX}")
    A(f"s_cbranch_scc1 {L}")
    A.label(Ld)

def nonce_writer():
    L = A.newlabel("L_nw")
    A(f"s_cmp_ge_u32 s{S_WG}, 8")
    A(f"s_cbranch_scc1 {L}")
    A(f"s_cmp_lg_u32 s{S_WAVE}, 7")
    A(f"s_cbranch_scc1 {L}")
    A(f"s_memrealtime {sp(S_T)}")
    A("s_waitcnt lgkmcnt(0)")
    A(f"s_or_b32 s{S_T}, s{S_T}, 1")
    A(f"v_mov_b32 v10, s{S_T}")
    A("v_mov_b32 v11, 0")
    A("v_mov_b32 v12, 0")
    A("s_mov_b64 exec, 1")
    A(f"global_atomic_cmpswap v12, v[10:11], {sp(S_DBG)} sc1")
    A("s_mov_b64 exec, -1")
    A.label(L)

def code_prefetch():
    T = S_T
    L = A.newlabel("L_cpf")
    A(f"s_cmp_lg_u32 s{S_WAVE}, 6")
    A(f"s_cbranch_scc1 {L}")
    A(f"s_lshr_b32 s{T+2}, s{S_WG}, 3")
    A(f"s_cmp_ge_u32 s{T+2}, (L_end - {NAME}_kernel + 1023) / 1024")
    A(f"s_cbranch_scc1 {L}")
    A(f"s_getpc_b64 {sp(T)}")
    A.label(L + "_pc")
    A(f"s_sub_u32 s{T}, s{T}, {L}_pc - {NAME}_kernel")
    A(f"s_subb_u32 s{T+1}, s{T+1}, 0")
    A(f"s_lshl_b32 s{T+2}, s{T+2}, 10")
    A("v_lshlrev_b32 v1, 4, v0")
    A(f"v_add_u32 v1, s{T+2}, v1")
    A(f"global_load_dwordx4 a[60:63], v1, {sp(T)}")
    A.label(L)

def prologue():
    A(f"s_cmp_ge_u32 s{S_WG}, 256")
    A("s_cbranch_scc1 L_end")
    prof_begin()
    A("s_load_dwordx16 s[4:19], s[0:1], 0")
    A("s_load_dwordx8 s[20:27], s[0:1], 64")
    A("s_load_dwordx4 s[28:31], s[0:1], 96")
    A("v_lshrrev_b32 v1, 6, v0")
    A("v_and_b32 v0, 63, v0")
    A(f"v_readfirstlane_b32 s{S_WAVE}, v1")
    A(f"s_mov_b32 s{S_MASK}, 0xffff0000")
    A(f"s_mov_b32 s{S_SELLO}, 0x05040100")
    A(f"s_mov_b32 s{S_SELHI}, 0x07060302")
    A("s_waitcnt lgkmcnt(0)")
    stamp(1)
    tl(1, 0, 0); tl(2, 7, 0); tl(3, 4, 0)
    nonce_writer()
    code_prefetch()

def dpp_sum16(v):
    for sh in (8, 4, 2, 1):
        A("s_nop 1")
        A(f"v_add_f32_dpp v{v}, v{v}, v{v} row_ror:{sh} row_mask:0xf bank_mask:0xf")

LN_Q, LN_W, LN_Q2 = 10, 28, 46
def ln_loads(stok, Q, with_w):
    T = S_T
    A(f"s_mov_b32 s{T}, s{stok}")
    A("v_lshrrev_b32 v1, 4, v0")
    A("v_and_b32 v2, 15, v0")
    A(f"v_add_u32 v3, s{T}, v1")
    A(f"v_mul_u32_u24 v4, 1152, v3")
    A(f"v_lshl_add_u32 v5, v2, 4, v4")
    A(f"v_lshl_add_u32 v6, v2, 3, v4")
    for i in range(4):
        A(f"global_load_dwordx4 {p4(Q+4*i)}, v5, {sp(S_Q)} offset:{256*i} {NT}")
    A(f"global_load_dwordx2 {p2(Q+16)}, v6, {sp(S_Q)} offset:1024 {NT}")
    if with_w:
        W = LN_W
        A(f"v_lshlrev_b32 v7, 4, v2")
        A(f"v_lshlrev_b32 v8, 3, v2")
        for i in range(4):
            A(f"global_load_dwordx4 {p4(W+4*i)}, v7, {sp(S_WR)} offset:{256*i}")
        A(f"global_load_dwordx2 {p2(W+16)}, v8, {sp(S_WR)} offset:1024")

def dpp_sum16x(vs):
    for sh in (8, 4, 2, 1):
        if len(vs) < 3: A("s_nop 1")
        for v in vs:
            A(f"v_add_f32_dpp v{v}, v{v}, v{v} row_ror:{sh} row_mask:0xf bank_mask:0xf")

def ln_compute_publish(Q, vtok, first, vc=2, hook=None, publish=True):
    T = S_T
    W = LN_W
    A(f"s_mov_b32 s{T+8}, 0x3f803f80"); A(f"s_mov_b32 s{T+9}, 0x00003f80"); A(f"s_mov_b32 s{T+10}, 0x3f800000")
    accs = [64, 65, 66, 67] + ([68, 69] if first else [])
    for a in accs: A(f"v_mov_b32 v{a}, 0")
    for i in range(18):
        A(f"v_dot2_f32_bf16 v{64+(i&1)}, v{Q+i}, s{T+8}, v{64+(i&1)}")
        A(f"v_dot2_f32_bf16 v{66+(i&1)}, v{Q+i}, v{W+i}, v{66+(i&1)}")
        if first: A(f"v_dot2_f32_bf16 v{68+(i&1)}, v{W+i}, s{T+8}, v{68+(i&1)}")
    A("s_nop 2")
    A("v_add_f32 v64, v64, v65")
    A("v_add_f32 v66, v66, v67")
    if first:
        A("v_add_f32 v122, v68, v69")
        A("s_nop 0")
        dpp_sum16x([64, 66, 122])
    else:
        A("s_nop 0")
        dpp_sum16x([64, 66])
    A(f"v_mul_f32 v64, 0x{f32bits(1.0/576):08x}, v64")
    A("v_sub_f32 v65, 0, v64")
    for a in (68, 69, 70, 71): A(f"v_mov_b32 v{a}, 0")
    for i in range(0, 18, 2):
        A(f"v_dot2_f32_bf16 v72, v{Q+i}, s{T+9}, v65")
        A(f"v_dot2_f32_bf16 v73, v{Q+i}, s{T+10}, v65")
        A(f"v_dot2_f32_bf16 v74, v{Q+i+1}, s{T+9}, v65")
        A(f"v_dot2_f32_bf16 v75, v{Q+i+1}, s{T+10}, v65")
        A("s_nop 1")
        A(f"v_fma_f32 v68, v72, v72, v68")
        A(f"v_fma_f32 v69, v73, v73, v69")
        A(f"v_fma_f32 v70, v74, v74, v70")
        A(f"v_fma_f32 v71, v75, v75, v71")
    A("v_add_f32 v68, v68, v69"); A("v_add_f32 v70, v70, v71"); A("v_add_f32 v68, v68, v70")
    dpp_sum16x([68])
    A(f"v_mul_f32 v68, 0x{f32bits(1.0/576):08x}, v68")
    rnd(68)
    A(f"v_add_f32 v68, 0x{f32bits(1e-5):08x}, v68")
    rnd(68)
    A("v_sqrt_f32 v69, v68")
    A("s_nop 0")
    A("v_rcp_f32 v70, v69")
    A("v_fma_f32 v71, -v69, v69, v68")
    A("v_mul_f32 v70, 0.5, v70")
    A("v_fma_f32 v69, v71, v70, v69")
    rnd(69)
    A("v_rcp_f32 v70, v69")
    rnd(64)
    A("v_fma_f32 v66, -v64, v122, v66")
    A("v_mul_f32 v112, v66, v70")
    rnd(112)
    A(f"v_or_b32 v112, v112, v{vtok}")
    A("v_cvt_pk_bf16_f32 v114, v64, v69")
    if not publish:
        A("v_mov_b32 v32, v112"); A("v_mov_b32 v34, v114")
        return
    if hook: hook()
    ln_publish(vtok, vc)

def ln_publish(vtok, vc):
    T = S_T
    A(f"v_mov_b32 v113, s{S_NONCE}")
    A(f"v_mov_b32 v115, s{S_NONCE}")
    A(f"v_lshlrev_b32 v116, 3, v{vtok}")
    add64(T+2, S_WS, WS_RG)
    add64(T+4, S_WS, WS_SG)
    A(f"v_cmp_eq_u32 vcc, 0, v{vc}")
    A(f"s_and_saveexec_b64 {sp(T+6)}, vcc")
    A(f"global_store_dwordx2 v116, v[112:113], {sp(T+2)} sc1")
    A(f"global_store_dwordx2 v116, v[114:115], {sp(T+4)} sc1")
    A(f"s_mov_b64 exec, {sp(T+6)}")

P_CH = 4128
L_P = 0
L_Q = L_P + 4 * P_CH
Q_CPY = 1152
Q_CH = 4 * Q_CPY
L_KVL = L_Q + 4 * Q_CH
L_MC = L_KVL + 16384
L_SELT = L_MC + 64
L_ST = L_SELT + 128
L_TAP = L_ST + 1024
TBLK = 1040
L_TK = (L_TAP + 640 + 15) // 16 * 16
L_TV = L_TK + 17 * TBLK
L_TQ = L_TV + 16 * TBLK
L_OT = L_TK
L_CONV_END = L_TQ + 16 * TBLK

def dma(voff, srdreg, soff, m0, flag=None):
    A(f"s_mov_b32 m0, {m0}")
    A("s_nop 0")
    A(f"buffer_load_dwordx4 v{voff}, s[{srdreg}:{srdreg+3}], {soff} offen {NT if flag is None else flag} lds")

def conv_tile():
    T = S_T
    A(f"s_sub_u32 s72, s{S_WAVE}, 4")
    A(f"s_mul_hi_u32 s77, s{S_WG}, {(2**32 + 8)//9}")
    A(f"s_mul_i32 s76, s77, 9")
    A(f"s_sub_u32 s76, s{S_WG}, s76")
    srd(SRD_K, S_K, 2359296)
    srd(SRD_V, S_V, 2359296)
    A("v_lshrrev_b32 v1, 3, v0")
    A("v_and_b32 v2, 7, v0")
    A(f"s_mul_i32 s{T+2}, s77, {128*1152}")
    A(f"s_lshl_b32 s{T+3}, s76, 7")
    A(f"s_add_u32 s{T+2}, s{T+2}, s{T+3}")
    A(f"v_mul_u32_u24 v3, 1152, v1")
    A(f"v_lshl_add_u32 v3, v2, 4, v3")
    A(f"v_add_u32 v3, s{T+2}, v3")
    A(f"s_mul_i32 s{T+4}, s{S_WAVE}, {2*9216}")
    A(f"s_mul_i32 s{T+6}, s{S_WAVE}, {2*TBLK}")
    for i in range(2):
        A(f"s_add_u32 s{T+7}, s{T+6}, {L_TK + TBLK + i*TBLK}")
        A(f"s_add_u32 s{T+5}, s{T+4}, {9216*i}")
        dma(3, SRD_K, f"s{T+5}", f"s{T+7}", flag=NTKV)
        A(f"s_add_u32 s{T+7}, s{T+6}, {L_TV + i*TBLK}")
        dma(3, SRD_V, f"s{T+5}", f"s{T+7}", flag=NTKV)
    L7 = A.newlabel("L_w7")
    A(f"s_cmp_lg_u32 s{S_WAVE}, 7")
    A(f"s_cbranch_scc1 {L7}")
    A(f"v_subrev_u32 v4, 9216, v3")
    A(f"s_cmp_lg_u32 s77, 0")
    A(f"s_cbranch_scc1 {L7}_a")
    A("v_bfrev_b32 v4, 1")
    A.label(L7 + "_a")
    dma(4, SRD_K, "0", L_TK)
    for i in range(4): A(f"v_mov_b32 v{52+i}, 0")
    A("v_lshlrev_b32 v56, 4, v0")
    A(f"v_add_u32 v56, {L_MC}, v56")
    A("s_mov_b64 exec, 0xfff")
    A(f"ds_write_b128 v56, {p4(52)}")
    A("s_mov_b64 exec, -1")
    A.label(L7)
    TR = 48
    A(f"s_lshr_b32 s{T+9}, s{S_WAVE}, 1")
    A(f"s_and_b32 s{T+10}, s{S_WAVE}, 1")
    Lt = A.newlabel("L_tap")
    A(f"s_cmp_lg_u32 s{S_WAVE}, 0")
    A(f"s_cbranch_scc1 {Lt}")
    srd(SRD_Q, S_SK, 4608)
    A(f"s_lshl_b32 s{T+11}, s76, 9")
    A("v_lshlrev_b32 v5, 4, v0")
    A("s_mov_b64 exec, 0xffffffff")
    dma(5, SRD_Q, f"s{T+11}", L_TAP, flag="")
    srd(SRD_Q, S_D, 1152)
    A(f"s_lshl_b32 s{T+11}, s76, 7")
    A("v_lshlrev_b32 v5, 2, v0")
    A(f"s_mov_b32 m0, {L_TAP+512}")
    A("s_nop 0")
    A(f"buffer_load_dword v5, s[{SRD_Q}:{SRD_Q+3}], s{T+11} offen lds")
    A("s_mov_b64 exec, -1")
    A.label(Lt)
    A("v_mov_b32 v120, 0")
    A(f"global_load_dword v121, v120, {sp(S_DBG)} sc1")
    A(f"s_and_b32 s{T+13}, s{S_WG}, 7")
    A(f"s_mul_i32 s{T+13}, s{T+13}, 18")
    A(f"s_lshr_b32 s{T+12}, s{S_WG}, 3")
    A(f"s_add_u32 s{T+13}, s{T+13}, s{T+12}")
    A(f"s_lshl_b32 s71, s{T+13}, 2")
    A(f"s_and_b32 s{T+12}, s{S_WAVE}, 3")
    A(f"s_add_u32 s78, s71, s{T+12}")
    A(f"s_lshl_b32 s79, s78, 12")
    A(f"s_lshl_b32 s{T+12}, s{T+10}, 3")
    A(f"v_add_u32 v6, s{T+12}, v2")
    A(f"s_lshl_b32 s{T+12}, s{T+9}, 3")
    A(f"v_add_u32 v7, s{T+12}, v1")
    A(f"v_mul_u32_u24 v9, {TBLK}, v6")
    A(f"v_lshl_add_u32 v9, v7, 2, v9")
    A(f"v_add_u32 v9, {L_TK}, v9")
    A(f"s_lshl_b32 s{T+11}, s76, 19")
    A(f"s_lshl_b32 s{T+12}, s77, 9")
    A(f"s_add_u32 s{T+11}, s{T+11}, s{T+12}")
    A(f"s_lshl_b32 s{T+12}, s{T+10}, 8")
    A(f"s_add_u32 s{T+11}, s{T+11}, s{T+12}")
    A("v_lshlrev_b32 v8, 14, v7")
    A("v_lshl_add_u32 v8, v2, 4, v8")
    A(f"v_add_u32 v8, s{T+11}, v8")
    if "hearly" in OPTS:
        Lh = A.newlabel("L_noh"); Lh2 = A.newlabel("L_noh2")
        A(f"s_cmp_ge_u32 s{S_WAVE}, 4")
        A(f"s_cbranch_scc1 {Lh}")
        srd(SRD_Q, S_H, 2359296)
        A("v_lshlrev_b32 v4, 4, v0")
        A(f"s_mul_i32 s74, s{S_WAVE}, {P_CH}")
        for q in range(4):
            A(f"s_add_u32 s{T+9}, s79, {1024*q}")
            A(f"s_add_u32 s{T+5}, s74, {32 + 1024*q}")
            dma(4, SRD_Q, f"s{T+9}", f"s{T+5}", flag=NTH)
        if "dbgB" in OPTS: stamp(5)
        A("s_waitcnt vmcnt(4) lgkmcnt(0)")
        A(f"s_branch {Lh2}")
        A.label(Lh)
        if "dbgB" in OPTS: stamp(5)
        A("s_waitcnt vmcnt(0) lgkmcnt(0)")
        A.label(Lh2)
        if "dbgB" in OPTS: stamp(6)
    else:
        A("s_waitcnt vmcnt(0) lgkmcnt(0)")
    A(f"v_readfirstlane_b32 s{S_NONCE}, v121")
    A("s_barrier")
    stamp(2)
    tl(4, 7, 0)
    KR, VR = 10, 21
    for j in range(11):
        off = (640 + 128*j if j < 3 else TBLK + 128*(j-3))
        A(f"ds_read_b32 v{KR+j}, v9 offset:{off}")
    A("v_lshlrev_b32 v5, 2, v7")
    A("v_lshlrev_b32 v5, 2, v5")
    A(f"v_add_u32 v5, {L_TAP}, v5")
    A(f"ds_read_b128 {p4(TR)}, v5")
    for j in range(8):
        A(f"ds_read_b32 v{VR+j}, v9 offset:{L_TV - L_TK + 128*j}")
    A("s_waitcnt lgkmcnt(8)")
    Ln = A.newlabel("L_hasn")
    A(f"s_cmp_lg_u32 s{S_NONCE}, 0")
    A(f"s_cbranch_scc1 {Ln}")
    get_nonce(30)
    A.label(Ln)
    TP = 52
    A(f"v_lshlrev_b32 v{TP+0}, 16, v{TR}"); A(f"v_lshlrev_b32 v{TP+1}, 16, v{TR+2}")
    A(f"v_and_b32 v{TP+2}, s{S_MASK}, v{TR}"); A(f"v_and_b32 v{TP+3}, s{S_MASK}, v{TR+2}")
    A(f"v_lshlrev_b32 v{TP+4}, 16, v{TR+1}"); A(f"v_lshlrev_b32 v{TP+5}, 16, v{TR+3}")
    A(f"v_and_b32 v{TP+6}, s{S_MASK}, v{TR+1}"); A(f"v_and_b32 v{TP+7}, s{S_MASK}, v{TR+3}")
    KP = 80
    for j in range(11):
        A(f"v_lshlrev_b32 v{KP+2*j}, 16, v{KR+j}")
        A(f"v_and_b32 v{KP+2*j+1}, s{S_MASK}, v{KR+j}")
    R = 102
    tp = lambda tap: p2(TP+2*tap)
    for i in range(8): A(f"v_pk_mul_f32 {p2(R+2*i)}, {p2(KP+2*i)}, {tp(3)}")
    for i in range(8): A(f"v_pk_fma_f32 {p2(R+2*i)}, {p2(KP+2*(i+1))}, {tp(2)}, {p2(R+2*i)}")
    for i in range(8): A(f"v_pk_fma_f32 {p2(R+2*i)}, {p2(KP+2*(i+2))}, {tp(1)}, {p2(R+2*i)}")
    for i in range(8): A(f"v_pk_fma_f32 {p2(R+2*i)}, {p2(KP+2*(i+3))}, {tp(0)}, {p2(R+2*i)}")
    A("s_waitcnt lgkmcnt(0)")
    VP = 60
    for i in range(8):
        A(f"v_lshlrev_b32 v{VP+2*i}, 16, v{VR+i}"); A(f"v_and_b32 v{VP+2*i+1}, s{S_MASK}, v{VR+i}")
    for i in range(8): A(f"v_pk_mul_f32 {p2(R+2*i)}, {p2(R+2*i)}, {p2(VP+2*i)}")
    GQ = 80
    for c in range(2):
        for q in range(4):
            A(f"v_cvt_pk_bf16_f32 v{GQ+8*c+2*q}, v{R+4*q+c}, v{R+4*q+2+c}")
            A(f"v_mov_b32 v{GQ+8*c+2*q+1}, s{S_NONCE}")
    add64(T+2, S_WS, WS_KVT)
    add64(T+8, S_WS, WS_KVT+8192)
    A(f"global_store_dwordx4 v8, {p4(GQ)}, {sp(T+2)} sc1")
    A(f"global_store_dwordx4 v8, {p4(GQ+4)}, {sp(T+2)} offset:128 sc1")
    A(f"global_store_dwordx4 v8, {p4(GQ+8)}, {sp(T+8)} sc1")
    A(f"global_store_dwordx4 v8, {p4(GQ+12)}, {sp(T+8)} offset:128 sc1")
    for c in range(2):
        for q in range(4): A(f"v_mov_b32 v{120+4*c+q}, v{GQ+8*c+2*q}")
    A(f"s_lshl_b32 s{T+1}, s{S_WAVE}, 11")
    A("v_lshlrev_b32 v4, 5, v0")
    A(f"v_add_u32 v4, s{T+1}, v4")
    A(f"v_add_u32 v4, {L_KVL}, v4")
    A(f"ds_write_b128 v4, {p4(120)}")
    A(f"ds_write_b128 v4, {p4(124)} offset:16")
    stamp(3)
    if "hearly" not in OPTS:
        Lh = A.newlabel("L_noh")
        A(f"s_cmp_ge_u32 s{S_WAVE}, 4")
        A(f"s_cbranch_scc1 {Lh}")
        srd(SRD_V, S_H, 2359296)
        A("v_lshlrev_b32 v4, 4, v0")
        A(f"s_mul_i32 s74, s{S_WAVE}, {P_CH}")
        for q in range(4):
            A(f"s_add_u32 s{T+9}, s79, {1024*q}")
            A(f"s_add_u32 s{T+10}, s74, {32 + 1024*q}")
            dma(4, SRD_V, f"s{T+9}", f"s{T+10}")
        A.label(Lh)
    A("s_waitcnt lgkmcnt(0)")
    A("s_barrier")
    stamp(4)
    tl(5, 7, 0)
    if "dbgA" in OPTS or "dbgB" in OPTS: A("s_branch L_fin")

class LdsQ:
    def __init__(self): self.q = []
    def issue(self, instr, tag=None):
        A(instr); self.q.append(tag)
    def wait(self, tag):
        idxs = [i for i, t in enumerate(self.q) if t == tag]
        if not idxs: return
        last = idxs[-1]
        n = len(self.q) - 1 - last
        A(f"s_waitcnt lgkmcnt({min(n, 15)})")
        if n <= 15: self.q = self.q[last+1:]
        else: self.q = self.q[len(self.q)-15:]

def conv_mfma_wave():
    T = S_T
    A(f"s_mul_i32 s75, s{S_WAVE}, {Q_CH}")
    A(f"s_add_u32 s75, s75, {L_Q}")
    for i in range(4): A(f"v_mov_b32 v{16+i}, 0")
    A("v_lshlrev_b32 v2, 4, v0")
    A("v_add_u32 v2, s74, v2")
    A("s_mov_b64 exec, 3")
    A(f"ds_write_b128 v2, {p4(16)}")
    A("s_mov_b64 exec, -1")
    A("v_lshrrev_b32 v2, 3, v0")
    A(f"v_mul_u32_u24 v2, {Q_CPY}, v2")
    A("v_and_b32 v3, 7, v0")
    A("v_lshl_add_u32 v2, v3, 4, v2")
    A("v_add_u32 v2, s75, v2")
    A("s_mov_b64 exec, 0xffffffff")
    A(f"ds_write_b128 v2, {p4(16)}")
    A("s_mov_b64 exec, -1")
    A("v_and_b32 v3, 3, v0")
    A("v_bfe_u32 v4, v0, 2, 2")
    A("v_sub_u32 v3, v3, v4")
    A("v_lshlrev_b32 v3, 3, v3")
    A("v_lshrrev_b32 v4, 4, v0")
    A("v_lshl_add_u32 v3, v4, 6, v3")
    A("v_add_u32 v3, s74, v3")
    A("v_add_u32 v3, 32, v3")
    A("s_waitcnt vmcnt(4) lgkmcnt(0)" if "hearly" in OPTS else "s_waitcnt vmcnt(0) lgkmcnt(0)")
    def greg(e, s1): return 4*(8*e + s1)
    for s1 in range(8):
        for e in range(2):
            g = greg(e, s1)
            A(f"ds_read_b64_tr_b16 a[{g}:{g+1}], v3 offset:{512*s1+256*e+32}")
            A(f"ds_read_b64_tr_b16 a[{g+2}:{g+3}], v3 offset:{512*s1+256*e}")
        if s1 % 3 == 2: A("s_waitcnt lgkmcnt(4)")
    A("v_and_b32 v5, 15, v0")
    A("v_lshlrev_b32 v6, 3, v5")
    A("v_lshlrev_b32 v7, 4, v4")
    A("v_sub_u32 v6, v6, v7")
    A("v_add_u32 v6, s75, v6")
    A("v_add_u32 v6, 56, v6")
    A("v_lshlrev_b32 v7, 6, v5")
    A("v_lshl_add_u32 v7, v4, 4, v7")
    A(f"s_lshl_b32 s{T+1}, s78, 13")
    A(f"v_add_u32 v7, s{T+1}, v7")
    A(f"v_add_u32 v11, 4096, v7")
    add64(62, S_WS, WS_YG)
    A("v_subrev_u32 v8, 16, v0")
    A("v_add_u32 v9, 47, v0")
    A("v_cmp_gt_u32 vcc, 16, v0")
    A("s_nop 1")
    A("v_cndmask_b32 v8, v8, v9, vcc")
    A("v_mov_b32 v9, 63")
    A("v_cmp_eq_u32 vcc, 0, v0")
    A("s_nop 1")
    A("v_cndmask_b32 v8, v8, v9, vcc")
    A("v_lshlrev_b32 v8, 2, v8")
    A(f"v_mov_b32 v9, {L_MC}")
    A("v_mov_b32 v10, 1")
    A(f"s_mov_b64 {sp(66)}, 1")
    add64(64, S_WS, WS_KVT)
    A(f"s_lshl_b32 s{T+1}, s78, 13")
    A("v_lshlrev_b32 v1, 4, v0")
    A(f"v_add_u32 v1, s{T+1}, v1")
    A("v_add_u32 v12, 4096, v1")
    A("v_lshrrev_b32 v2, 4, v0")
    A("v_lshlrev_b32 v2, 4, v2")
    A("v_and_b32 v13, 7, v0")
    A("v_lshl_add_u32 v2, v13, 1, v2")
    A("v_bfe_u32 v13, v0, 3, 1")
    A("v_add_u32 v2, v2, v13")
    A("v_lshlrev_b32 v2, 1, v2")
    A("v_add_u32 v2, s75, v2")
    A("v_and_b32 v13, 15, v0")
    A("v_lshlrev_b32 v13, 9, v13")
    A(f"v_add_u32 v13, s{T+1}, v13")
    A("v_add_u32 v13, 504, v13")
    stamp(5)
    KV = 16
    def ldkv():
        for q in range(8):
            A(f"global_load_dwordx4 {p4(KV+4*q)}, v{1 if q < 4 else 12}, {sp(64)} offset:{1024*(q % 4)} sc1")
    kvtags = [KV+4*q+1+2*h for q in range(8) for h in range(2)]
    Lok = A.newlabel("L_kvok")
    if "spec" in OPTS:
        ldkv()
        A("s_waitcnt vmcnt(0)")
        tag_acc(kvtags, 14, 48)
        A("v_cmp_ne_u32 vcc, 0, v14")
        A("s_nop 3")
        A("s_cmp_eq_u64 vcc, 0")
        A(f"s_cbranch_scc1 {Lok}")
    tagcheck_loop(lambda: A(f"global_load_dwordx2 v[14:15], v13, {sp(64)} sc1"), [15], 16, 17, sleep=1)
    stamp(6)
    tl(6, 7, 0)
    tagcheck_loop(ldkv, kvtags, 14, 48, sleep=1)
    A.label(Lok)
    for q in range(8):
        r = KV + 4*q
        o = 128 + 128*q
        A(f"ds_write_b16 v2, v{r} offset:{0*Q_CPY+o}")
        A(f"ds_write_b16_d16_hi v2, v{r} offset:{1*Q_CPY+o}")
        A(f"ds_write_b16 v2, v{r+2} offset:{2*Q_CPY+o}")
        A(f"ds_write_b16_d16_hi v2, v{r+2} offset:{3*Q_CPY+o}")
    A("s_waitcnt lgkmcnt(0)")
    for i in range(3): A(f"v_mov_b32 v{40+i}, 0")
    A(f"v_add_u32 v3, {Q_CPY}, v6"); A(f"v_add_u32 v4, {2*Q_CPY}, v6"); A(f"v_add_u32 v5, {3*Q_CPY}, v6")
    A(f"v_mov_b32 v45, s{S_NONCE}"); A(f"v_mov_b32 v47, s{S_NONCE}")
    stamp(7)
    tl(7, 7, 0)
    if "dry" in OPTS:
        A("s_mov_b32 s73, 0")
        A.label("L_stream")
    lq = LdsQ()
    classes = [(c1, sg, e) for c1 in range(8) for sg in range(4) for e in range(2)]
    FA = [6, 3, 4, 5]
    free = [("v", 48), ("v", 52), ("v", 56), ("v", 60)]
    fbuf = {}
    def rr(b): return f"{b[0]}[{b[1]}:{b[1]+3}]"
    def fread(k):
        c1, sg, e = classes[k]
        b = free.pop(0); fbuf[k] = b
        o = 16*c1 + 8*(1-e)
        lq.issue(f"ds_read2_b64 {rr(b)}, v{FA[sg]} offset0:{o} offset1:{o+1}", ("F", k))
    def acc(sg, t): return 64 + (sg*8 + t)*4
    def combine_ops(t):
        a0, a1, a2, a3 = acc(0, t), acc(1, t), acc(2, t), acc(3, t)
        ops = []
        C = 32
        P = 36 + 4*(t & 1)
        Pp = 36 + 4*((t+1) & 1)
        ops.append(lambda: A(f"v_add_f32 v{a0+1}, v{a0+1}, v{a1}"))
        ops.append(lambda: A(f"v_add_f32 v{a0+2}, v{a0+2}, v{a1+1}"))
        ops.append(lambda: A(f"v_add_f32 v{a0+3}, v{a0+3}, v{a1+2}"))
        ops.append(lambda: A(f"v_add_f32 v{C}, v{a1+3}, v{a2+2}"))
        ops.append(lambda: A(f"v_add_f32 v{a0+2}, v{a0+2}, v{a2}"))
        ops.append(lambda: A(f"v_add_f32 v{a0+3}, v{a0+3}, v{a2+1}"))
        ops.append(lambda: A(f"v_add_f32 v{C+1}, v{a2+3}, v{a3+2}"))
        ops.append(lambda: A(f"v_add_f32 v{C}, v{C}, v{a3+1}"))
        ops.append(lambda: lq.issue(f"ds_bpermute_b32 v{P+2}, v8, v{a3+3}", ("B", t)))
        ops.append(lambda: lq.issue(f"ds_bpermute_b32 v{P+1}, v8, v{C+1}", ("B", t)))
        ops.append(lambda: lq.issue(f"ds_bpermute_b32 v{P}, v8, v{C}", ("B", t)))
        ops.append(lambda: A(f"v_add_f32 v{a0+3}, v{a0+3}, v{a3}"))
        ops.append(lambda: lq.wait(("B", t)))
        for i in range(3):
            ops.append(lambda i=i: A(f"v_cndmask_b32 v{28+i}, v{P+i}, v{Pp+i}, {sp(66)}"))
        for i in range(3):
            ops.append(lambda i=i: A(f"v_add_f32 v{a0+i}, v{a0+i}, v{28+i}"))
        ops.append(lambda: A(f"v_cvt_pk_bf16_f32 v44, v{a0}, v{a0+1}"))
        ops.append(lambda: A(f"v_cvt_pk_bf16_f32 v46, v{a0+2}, v{a0+3}"))
        ops.append(lambda: A(f"global_store_dwordx4 v{7 if t < 4 else 11}, {p4(44)}, {sp(62)} offset:{1024*(t % 4)} sc1"))
        return ops
    nxt = 0
    LA = int(os.environ.get("LA", "5"))
    SLOTS = int(os.environ.get("SLOTS", "1"))
    def can_fread(k):
        return free and nxt < len(classes) and nxt - k < LA and len(lq.q) <= 13
    for _ in range(3):
        fread(nxt); nxt += 1
    pending = []
    k = 0
    total_m = sum(8*(8-c) for c in range(8))
    done_m = 0
    for c1 in range(8):
        nm_step = 8*(8-c1)
        if c1 > 0:
            assert not pending or True
            pending.extend(combine_ops(c1-1))
            free.extend([("a", greg(0, 8-c1)), ("a", greg(1, 8-c1))])
        mi = 0
        for sg in range(4):
            for e in range(2):
                while nxt <= k:
                    fread(nxt); nxt += 1
                lq.wait(("F", k))
                b = fbuf[k]
                for s1 in range(8-c1):
                    t = s1 + c1
                    d = acc(sg, t)
                    cin = "0" if (c1 == 0 and e == 0) else f"v[{d}:{d+3}]"
                    g = greg(e, s1)
                    A(f"v_mfma_f32_16x16x32_bf16 v[{d}:{d+3}], a[{g}:{g+3}], {rr(b)}, {cin}")
                    mi += 1; done_m += 1
                    rem_m = total_m - done_m
                    left_in_step = nm_step - mi
                    slots = SLOTS
                    if pending and mi >= 3:
                        need = len(pending) + (8 - (k % 8))
                        if left_in_step * SLOTS < need: slots = -(-need // max(1, left_in_step + 1))
                    used = 0
                    if can_fread(k) and (nxt - k <= 2 or not pending or mi < 3):
                        fread(nxt); nxt += 1; used += 1
                    while used < slots and pending and mi >= 3:
                        pending.pop(0)(); used += 1
                    if used < slots - 1 and can_fread(k):
                        fread(nxt); nxt += 1; used += 1
                free.append(b)
                k += 1
        while pending: pending.pop(0)()
    A("s_nop 7"); A("s_nop 1")
    for op in combine_ops(7): op()
    if "dry" in OPTS:
        A("s_cmp_eq_u32 s73, 1")
        A("s_cbranch_scc1 L_dry_ret")
    A("s_mov_b64 exec, 1")
    A("ds_add_u32 v9, v10")
    A("s_mov_b64 exec, -1")
    stamp(8)
    tl(8, 7, 0)

def lds_spin(addr_off, target, va, vb, sleep=1):
    T = S_T
    L = A.newlabel("L_ls")
    A(f"v_mov_b32 v{va}, {L_MC}")
    A(f"s_mov_b32 s{T+1}, 0")
    A.label(L)
    A(f"ds_read_b32 v{vb}, v{va} offset:{addr_off}")
    A("s_waitcnt lgkmcnt(0)")
    A(f"v_readfirstlane_b32 s{T}, v{vb}")
    A(f"s_add_u32 s{T+1}, s{T+1}, 1")
    A(f"s_cmp_ge_u32 s{T+1}, {SPIN_MAX*4}")
    A(f"s_cbranch_scc1 {L}_d")
    A(f"s_cmp_ge_u32 s{T}, {target}")
    A(f"s_cbranch_scc1 {L}_d")
    if sleep: A(f"s_sleep {sleep}")
    A(f"s_branch {L}")
    A.label(L + "_d")

def conv_helper_prep():
    T = S_T
    if "gupf" in OPTS:
        R0 = int(os.environ.get("PFROW", "144")); NR = (576 - R0) // 18
        assert NR % 4 == 0
        RW = NR // 4
        A(f"s_and_b32 s{T+1}, s{S_WG}, 7")
        A(f"s_mul_i32 s{T+1}, s{T+1}, 1152")
        A(f"s_lshr_b32 s{T+2}, s{S_WG}, 3")
        A(f"s_mul_i32 s{T+2}, s{T+2}, {NR}")
        A(f"s_mul_i32 s{T+3}, s72, {RW}")
        A(f"s_add_u32 s{T+2}, s{T+2}, s{T+3}")
        A(f"s_add_u32 s{T+2}, s{T+2}, {R0}")
        A(f"s_mul_i32 s{T+2}, s{T+2}, 9216")
        A(f"s_add_u32 s{T+1}, s{T+1}, s{T+2}")
        A("v_lshlrev_b32 v10, 4, v0")
        A(f"v_add_u32 v10, s{T+1}, v10")
        A("v_lshrrev_b32 v11, 3, v0")
        A("v_mul_u32_u24 v11, 9216, v11")
        A("v_and_b32 v12, 7, v0")
        A("v_lshl_add_u32 v11, v12, 4, v11")
        A(f"v_add_u32 v11, s{T+1}, v11")
        A("v_add_u32 v11, 1024, v11")
        ar = 16
        for base in (S_WGT, S_WUP):
            A("v_mov_b32 v13, v10")
            for r in range(RW):
                A(f"global_load_dwordx4 a[0:3], v13, {sp(base)}")
                if r < RW - 1: A("v_add_u32 v13, 9216, v13")
            nl = 8*RW
            if nl < 64:
                A(f"s_mov_b32 exec_lo, {hex(min(nl, 32) and ((1 << min(nl, 32)) - 1))}")
                A(f"s_mov_b32 exec_hi, {hex((1 << (nl - 32)) - 1) if nl > 32 else '0'}")
            A(f"global_load_dwordx4 a[0:3], v11, {sp(base)}")
            A("s_mov_b64 exec, -1")
        if "dpf" in OPTS:
            A(f"s_and_b32 s{T+1}, s{S_WG}, 7")
            A(f"s_mul_i32 s{T+1}, s{T+1}, {576*1152}")
            A(f"s_lshr_b32 s{T+2}, s{S_WG}, 3")
            A(f"s_mul_i32 s{T+2}, s{T+2}, 36864")
            A(f"s_add_u32 s{T+1}, s{T+1}, s{T+2}")
            A(f"s_mul_i32 s{T+2}, s72, 9216")
            A(f"s_add_u32 s{T+1}, s{T+1}, s{T+2}")
            A("v_lshlrev_b32 v19, 4, v0")
            A(f"v_add_u32 v19, s{T+1}, v19")
            DPF = []
            for i in range(9):
                DPF.append(f"global_load_dwordx4 a[0:3], v18, {sp(S_WD)} offset:{1024*(i%4)}")
            assert ar <= 124, ar
            global DPF_CODE
            DPF_CODE = DPF
    srd(SRD_Q, S_Q, 2359296)
    A(f"s_mul_i32 s{T+4}, s72, {4*9216}")
    A(f"s_mul_i32 s{T+6}, s72, {4*TBLK}")
    A(f"s_add_u32 s{T+6}, s{T+6}, {L_TQ}")
    for i in range(4):
        dma(3, SRD_Q, f"s{T+4}", f"s{T+6}")
        A(f"s_add_u32 s{T+4}, s{T+4}, 9216")
        A(f"s_add_u32 s{T+6}, s{T+6}, {TBLK}")
    if "dry" in OPTS:
        Ld = A.newlabel("L_nodry")
        A(f"s_cmp_lg_u32 s{S_WAVE}, 7")
        A(f"s_cbranch_scc1 {Ld}")
        A("v_mov_b32 v6, 0"); A("v_mov_b32 v7, 0"); A("v_mov_b32 v11, 0"); A("v_mov_b32 v8, 0")
        add64(62, S_WS, WS_YG)
        A(f"s_mov_b64 {sp(66)}, 1")
        A("s_mov_b32 s73, 1")
        A("s_mov_b64 exec, 0")
        A("s_branch L_stream")
        A.label("L_dry_ret")
        A("s_mov_b64 exec, -1")
        A.label(Ld)
    L4 = A.newlabel("L_h4"); L5 = A.newlabel("L_h5"); Le = A.newlabel("L_he")
    A(f"s_cmp_eq_u32 s{S_WAVE}, 4")
    A(f"s_cbranch_scc1 {L4}")
    A(f"s_cmp_eq_u32 s{S_WAVE}, 5")
    A(f"s_cbranch_scc1 {L5}")
    A(f"s_branch {Le}")
    A.label(L4)
    A(f"s_lshl_b32 s{T+1}, s77, 10")
    A("v_lshlrev_b32 v10, 4, v0")
    A(f"v_add_u32 v11, s{T+1}, v10")
    add64(T+2, S_WS, WS_SG)
    tagcheck_loop(lambda: A(f"global_load_dwordx4 {p4(12)}, v11, {sp(T+2)} sc1"), [13, 15], 16, 17, sleep=4)
    A("v_lshlrev_b32 v20, 16, v12"); A(f"v_and_b32 v21, s{S_MASK}, v12")
    A("v_lshlrev_b32 v22, 16, v14"); A(f"v_and_b32 v23, s{S_MASK}, v14")
    A("v_rcp_f32 v21, v21"); A("v_rcp_f32 v23, v23")
    A(f"v_add_u32 v10, {L_ST}, v10")
    A("s_nop 0")
    A(f"ds_write_b128 v10, {p4(20)}")
    A(f"s_branch {Le}")
    A.label(L5)
    A("v_and_b32 v10, 7, v0")
    A("v_lshlrev_b32 v11, 3, v10")
    add64(T+2, S_WS, WS_SEL)
    tagcheck_loop(lambda: A(f"global_load_dwordx2 v[12:13], v11, {sp(T+2)} sc1"), [13], 16, 17, sleep=4)
    A("v_and_b32 v12, 0x7ff, v12")
    A(f"s_lshl_b32 s{T+1}, s77, 7")
    A(f"v_subrev_u32 v12, s{T+1}, v12")
    A("v_cmp_gt_u32 vcc, 128, v12")
    A("v_or_b32 v13, 0x80, v10")
    A(f"v_add_u32 v12, {L_SELT}, v12")
    A("s_and_b32 vcc_lo, vcc_lo, 0xff")
    A("s_mov_b32 vcc_hi, 0")
    A("s_mov_b64 exec, vcc")
    Lk = A.newlabel("L_nsel")
    A(f"s_cbranch_execz {Lk}")
    A("ds_write_b8 v12, v13")
    A.label(Lk)
    A("s_mov_b64 exec, -1")
    A.label(Le)
    A("s_waitcnt vmcnt(0) lgkmcnt(0)")
    A(f"v_mov_b32 v10, {L_MC}")
    A("v_mov_b32 v11, 1")
    A("s_mov_b64 exec, 1")
    A("ds_add_u32 v10, v11 offset:4")
    A("s_mov_b64 exec, -1")
    stamp(5)
    if "dpf" in OPTS:
        for i, ins in enumerate(DPF_CODE):
            if i % 4 == 0: A(f"v_add_u32 v18, {4096*(i//4)}, v19")
            A(ins)
    lds_spin(0, 4, 10, 11, sleep=2)
    stamp(6)

def conv_epilogue():
    T = S_T
    A("; ---- epilogue ----")
    lds_spin(4, 4, 10, 11, sleep=1)
    A("v_and_b32 v2, 7, v0"); A("v_lshrrev_b32 v1, 3, v0")
    A(f"s_and_b32 s{T+1}, s{S_WAVE}, 1"); A(f"s_lshl_b32 s{T+1}, s{T+1}, 3")
    A(f"v_add_u32 v6, s{T+1}, v2")
    A(f"s_lshr_b32 s{T+2}, s{S_WAVE}, 1"); A(f"s_lshl_b32 s{T+2}, s{T+2}, 3")
    A(f"v_add_u32 v7, s{T+2}, v1")
    A(f"s_lshl_b32 s{T+1}, s76, 19")
    A(f"s_lshl_b32 s{T+2}, s77, 9")
    A(f"s_add_u32 s{T+1}, s{T+1}, s{T+2}")
    A("v_lshlrev_b32 v8, 14, v7")
    A("v_lshl_add_u32 v8, v6, 5, v8")
    A(f"v_add_u32 v8, s{T+1}, v8")
    A("v_add_u32 v9, 8192, v8")
    add64(62, S_WS, WS_YG)
    A(f"v_mul_u32_u24 v10, {TBLK}, v6")
    A("v_lshl_add_u32 v10, v7, 2, v10")
    A(f"v_add_u32 v11, {L_TQ}, v10")
    XR = 16
    for i in range(8): A(f"ds_read_b32 v{XR+i}, v11 offset:{128*i}")
    A(f"s_lshl_b32 s{T+1}, s{S_WAVE}, 11")
    A("v_lshlrev_b32 v12, 5, v0")
    A(f"v_add_u32 v12, s{T+1}, v12")
    A(f"v_add_u32 v12, {L_KVL}, v12")
    KV = 24
    A(f"ds_read_b128 {p4(KV)}, v12")
    A(f"ds_read_b128 {p4(KV+4)}, v12 offset:16")
    A("v_lshlrev_b32 v12, 6, v6")
    A(f"v_add_u32 v12, {L_ST}, v12")
    SR = 32
    for i in range(4): A(f"ds_read_b128 {p4(SR+4*i)}, v12 offset:{16*i}")
    A("v_lshlrev_b32 v12, 3, v6")
    A(f"v_add_u32 v12, {L_SELT}, v12")
    A("ds_read_b64 v[48:49], v12")
    A("v_lshlrev_b32 v13, 2, v7")
    A(f"v_add_u32 v13, {L_TAP+512}, v13")
    A("ds_read_b32 v50, v13")
    YR = 64
    def ld():
        A(f"global_load_dwordx4 {p4(YR)}, v8, {sp(62)} sc1")
        A(f"global_load_dwordx4 {p4(YR+4)}, v8, {sp(62)} offset:16 sc1")
        A(f"global_load_dwordx4 {p4(YR+8)}, v9, {sp(62)} sc1")
        A(f"global_load_dwordx4 {p4(YR+12)}, v9, {sp(62)} offset:16 sc1")
    A("s_waitcnt lgkmcnt(0)")
    A(f"v_lshlrev_b32 v52, 16, v50"); A(f"v_and_b32 v53, s{S_MASK}, v50")
    XN, SS = 80, 96
    for i in range(8):
        m, rs = SR+2*i, SR+2*i+1
        A(f"v_lshlrev_b32 v{SS+2*i}, 16, v{XR+i}"); A(f"v_and_b32 v{SS+2*i+1}, s{S_MASK}, v{XR+i}")
        A(f"v_sub_f32 v{XN+2*i}, v{SS+2*i}, v{m}"); A(f"v_sub_f32 v{XN+2*i+1}, v{SS+2*i+1}, v{m}")
        A(f"v_mul_f32 v{XN+2*i}, v{XN+2*i}, v{rs}"); A(f"v_mul_f32 v{XN+2*i+1}, v{XN+2*i+1}, v{rs}")
        for c in range(2):
            kr = KV + 4*c + (i >> 1)
            t = 54 + c
            if i & 1: A(f"v_and_b32 v{t}, s{S_MASK}, v{kr}")
            else: A(f"v_lshlrev_b32 v{t}, 16, v{kr}")
            A(f"v_fma_f32 v{t}, v{t}, v{52+c}, 1.0")
            A(f"v_fma_f32 v{SS+2*i+c}, v{XN+2*i+c}, v{t}, v{SS+2*i+c}")
    A(f"v_add_u32 v11, {L_OT}, v10")
    A(f"s_lshl_b32 s{T+1}, s{S_WAVE}, 3")
    A(f"v_add_u32 v120, s{T+1}, v1")
    A("v_lshrrev_b32 v121, 3, v120")
    A(f"v_mul_u32_u24 v121, {TBLK}, v121")
    A("v_and_b32 v122, 7, v120")
    A("v_lshl_add_u32 v121, v122, 7, v121")
    A("v_lshl_add_u32 v121, v2, 4, v121")
    A(f"v_add_u32 v121, {L_OT}, v121")
    A(f"v_add_u32 v122, {L_SELT}, v120")
    A("ds_read_u8 v124, v122")
    A("ds_read_u8 v125, v122 offset:64")
    srd(SRD_O, S_OUT, 2359296)
    A(f"s_mul_i32 s{T+1}, s77, {128*1152}")
    A(f"s_lshl_b32 s{T+2}, s76, 7")
    A(f"s_add_u32 s{T+1}, s{T+1}, s{T+2}")
    A("v_mul_u32_u24 v122, 1152, v120")
    A("v_lshl_add_u32 v122, v2, 4, v122")
    A(f"v_add_u32 v122, s{T+1}, v122")
    A(f"v_add_u32 v123, {64*1152}, v122")
    A("s_waitcnt lgkmcnt(0)")
    for va, vs in ((122, 124), (123, 125)):
        A(f"v_lshlrev_b32 v{vs}, 24, v{vs}")
        A(f"v_and_b32 v{vs}, 0x80000000, v{vs}")
        A(f"v_or_b32 v{va}, v{va}, v{vs}")
    if "dbgE" in OPTS: stamp(5)
    tagcheck_loop(ld, [YR+2*j+1 for j in range(8)], 14, 52, sleep=1)
    if "dbgE" in OPTS: stamp(6)
    O = 112
    for i in range(8):
        for c in range(2):
            yr = YR + 8*c + 2*(i >> 1)
            t0 = 54 + c
            if i & 1: A(f"v_and_b32 v{t0}, s{S_MASK}, v{yr}")
            else: A(f"v_lshlrev_b32 v{t0}, 16, v{yr}")
            A(f"v_fma_f32 v{SS+2*i+c}, v{XN+2*i+c}, v{t0}, v{SS+2*i+c}")
        A(f"v_cvt_pk_bf16_f32 v{O+i}, v{SS+2*i}, v{SS+2*i+1}")
        A(f"ds_write_b32 v11, v{O+i} offset:{128*i}")
    Lx = A.newlabel("L_nt1")
    A("v_or_b32 v12, v48, v49")
    A("v_cmp_ne_u32 vcc, 0, v12")
    A("s_nop 3")
    A("s_cmp_eq_u64 vcc, 0")
    A(f"s_cbranch_scc1 {Lx}")
    add64(64, S_WS, WS_T1G)
    A(f"s_lshl_b32 s{T+1}, s76, 6")
    A("v_lshlrev_b32 v13, 1, v7")
    A(f"v_add_u32 v13, s{T+1}, v13")
    for i in range(8):
        Li = A.newlabel("L_t1i")
        A(f"v_bfe_u32 v12, v{48 + (i >> 2)}, {8*(i & 3)}, 8")
        A("v_cmp_lt_u32 vcc, 0x7f, v12")
        A(f"s_and_saveexec_b64 {sp(T+12)}, vcc")
        A(f"s_cbranch_execz {Li}")
        A("v_and_b32 v12, 7, v12")
        A("v_mul_u32_u24 v12, 576, v12")
        A("v_add_u32 v12, v12, v13")
        A("v_lshlrev_b32 v12, 3, v12")
        A(f"v_sub_f32 v56, v{SS+2*i}, v{XN+2*i}")
        A(f"v_mov_b32 v57, s{S_NONCE}")
        A(f"v_sub_f32 v58, v{SS+2*i+1}, v{XN+2*i+1}")
        A(f"v_mov_b32 v59, s{S_NONCE}")
        A(f"global_store_dwordx4 v12, {p4(56)}, {sp(64)} sc1")
        A.label(Li)
        A(f"s_mov_b64 exec, {sp(T+12)}")
    A.label(Lx)
    A("s_waitcnt lgkmcnt(0)")
    A("s_barrier")
    A(f"ds_read_b128 {p4(16)}, v121")
    A(f"ds_read_b128 {p4(20)}, v121 offset:{8*TBLK}")
    A("s_waitcnt lgkmcnt(1)")
    A(f"buffer_store_dwordx4 {p4(16)}, v122, s[{SRD_O}:{SRD_O+3}], 0 offen " + os.environ.get("OUTF", "sc1"))
    A("s_waitcnt lgkmcnt(0)")
    A(f"buffer_store_dwordx4 {p4(20)}, v123, s[{SRD_O}:{SRD_O+3}], 0 offen " + os.environ.get("OUTF", "sc1"))
    stamp(9)
    tl(9, 7, 0)

def conv_wg():
    conv_tile()
    A(f"s_cmp_ge_u32 s{S_WAVE}, 4")
    A("s_cbranch_scc1 L_helper")
    conv_mfma_wave()
    A("s_branch L_epi")
    A.label("L_helper")
    conv_helper_prep()
    A.label("L_epi")
    conv_epilogue()
    A("s_branch L_fin")

M_WG = 0
M_WU = 73728
M_XS = 147456
XS_RS = 1168
M_H = M_XS + 8*XS_RS
H_RS = 144
M_GU = M_H + 8*H_RS
M_RED = M_GU
M_MISC = M_GU + 4096
M_END = M_MISC + 160
M_LIST = 0
S_DUMP = 16384

def moe_dma():
    T = S_T
    srd(SRD_K, S_WGT, 5308416)
    srd(SRD_V, S_WUP, 5308416)
    A("v_lshrrev_b32 v1, 3, v0")
    A("v_and_b32 v2, 7, v0")
    A("v_bfe_u32 v3, v0, 4, 1")
    A(f"s_and_b32 s{T+1}, s{S_WAVE}, 1")
    A(f"s_lshl_b32 s{T+1}, s{T+1}, 1")
    A(f"v_add_u32 v3, s{T+1}, v3")
    A("v_lshlrev_b32 v3, 1, v3")
    A("v_xor_b32 v2, v2, v3")
    A("v_mul_u32_u24 v1, 9216, v1")
    A("v_lshl_add_u32 v1, v2, 4, v1")
    A(f"s_lshl_b32 s{T+1}, s70, 7")
    A(f"v_add_u32 v1, s{T+1}, v1")
    A(f"s_mul_i32 s{T+3}, s{S_WAVE}, 73728")
    A(f"s_lshl_b32 s{T+4}, s{S_WAVE}, 10")
    A(f"s_mov_b32 s{T+5}, 0")
    L = A.newlabel("L_dma")
    A.label(L)
    A(f"s_add_u32 m0, s{T+4}, {M_WG}")
    A("s_nop 0")
    A(f"buffer_load_dwordx4 v1, s[{SRD_K}:{SRD_K+3}], s{T+3} offen {NTW} lds")
    A(f"s_add_u32 m0, s{T+4}, {M_WU}")
    A(f"s_add_u32 s{T+5}, s{T+5}, 1")
    A(f"buffer_load_dwordx4 v1, s[{SRD_V}:{SRD_V+3}], s{T+3} offen {NTW} lds")
    A(f"s_add_u32 s{T+3}, s{T+3}, {8*73728}")
    A(f"s_add_u32 s{T+4}, s{T+4}, {8*1024}")
    A(f"s_cmp_lt_u32 s{T+5}, 9")
    A(f"s_cbranch_scc1 {L}")

def moe_sel_wait():
    T = S_T
    A(f"s_lshl_b32 s{T+1}, s{S_WAVE}, 3")
    A(f"s_add_u32 s{T+1}, s{T+1}, {WS_SEL}")
    A(f"v_mov_b32 v3, s{T+1}")
    A("v_mov_b32 v4, 0")
    L = A.newlabel("L_sw"); Ld = A.newlabel("L_swd")
    A(f"s_mov_b32 s{T}, 0")
    A.label(L)
    A(f"global_load_dwordx2 v[16:17], v3, {sp(S_WS)} sc1")
    A(f"global_load_dword v30, v4, {sp(S_DBG)} sc1")
    A("s_waitcnt vmcnt(0)")
    A(f"v_readfirstlane_b32 s{S_NONCE}, v30")
    A(f"v_readfirstlane_b32 s{T+2}, v17")
    A(f"s_add_u32 s{T}, s{T}, 1")
    A(f"s_cmp_ge_u32 s{T}, {SPIN_MAX}")
    A(f"s_cbranch_scc1 {Ld}")
    A(f"s_cmp_eq_u32 s{S_NONCE}, 0")
    A(f"s_cbranch_scc1 {L}_s")
    A(f"s_cmp_eq_u32 s{T+2}, s{S_NONCE}")
    A(f"s_cbranch_scc1 {Ld}")
    A.label(L + "_s")
    A("s_sleep 3")
    A(f"s_branch {L}")
    A.label(Ld)

def moe_row_loads():
    T = S_T
    A("v_and_b32 v18, 0x7ff, v16")
    A("v_mul_u32_u24 v20, 1152, v18")
    A("v_and_b32 v21, 31, v0")
    A("v_mul_u32_u24 v21, 36, v21")
    A("v_add_u32 v20, v20, v21")
    A(f"global_load_dwordx4 {p4(24)}, v20, {sp(S_Q)}")
    A(f"global_load_dwordx4 {p4(28)}, v20, {sp(S_Q)} offset:16")
    A(f"global_load_dword v32, v20, {sp(S_Q)} offset:32")
    A("v_lshlrev_b32 v22, 3, v18")
    A(f"v_add_u32 v22, {WS_SG}, v22")
    A(f"global_load_dwordx2 v[40:41], v22, {sp(S_WS)} sc1")

def moe_xs_compute():
    T = S_T
    L = A.newlabel("L_sg"); Ld = A.newlabel("L_sgd")
    A(f"s_mov_b32 s{T}, 0")
    A.label(L)
    A(f"v_readfirstlane_b32 s{T+2}, v41")
    A(f"s_add_u32 s{T}, s{T}, 1")
    A(f"s_cmp_eq_u32 s{T+2}, s{S_NONCE}")
    A(f"s_cbranch_scc1 {Ld}")
    A(f"s_cmp_ge_u32 s{T}, {SPIN_MAX}")
    A(f"s_cbranch_scc1 {Ld}")
    A(f"global_load_dwordx2 v[40:41], v22, {sp(S_WS)} sc1")
    A("s_waitcnt vmcnt(0)")
    A(f"s_branch {L}")
    A.label(Ld)
    A(f"v_lshlrev_b32 v44, 16, v40")
    A(f"v_and_b32 v45, s{S_MASK}, v40")
    A("v_rcp_f32 v46, v45")
    A(f"v_and_b32 v52, s{S_MASK}, v16")
    A("v_fma_f32 v47, -v45, v46, 1.0")
    A("v_fma_f32 v46, v47, v46, v46")
    A(f"v_mul_f32 v52, 0x{f32bits(-1.4426950408889634):08x}, v52")
    A("v_exp_f32 v52, v52")
    for i in range(9):
        r = 24 + i
        t = 48 + 2*(i & 1)
        A(f"v_lshlrev_b32 v{t}, 16, v{r}")
        A(f"v_and_b32 v{t+1}, s{S_MASK}, v{r}")
        A(f"v_pk_add_f32 {p2(t)}, {p2(t)}, v[44:45] op_sel_hi:[1,0] neg_lo:[0,1] neg_hi:[0,1]")
        rnd(t); rnd(t+1)
        A(f"v_pk_mul_f32 {p2(t)}, {p2(t)}, v[46:47] op_sel_hi:[1,0]")
        A(f"v_cvt_pk_bf16_f32 v{r}, v{t}, v{t+1}")
    A("v_add_f32 v52, 1.0, v52")
    A("v_rcp_f32 v52, v52")
    A(f"s_mul_i32 s{T+4}, s{S_WAVE}, {XS_RS}")
    A(f"s_add_u32 s{T+4}, s{T+4}, {M_XS}")
    A("v_add_u32 v21, s%d, v21" % (T+4))
    rnd(52)
    A("s_mov_b64 exec, 0xffffffff")
    A("ds_write2_b32 v21, v24, v25 offset0:0 offset1:1")
    A("ds_write2_b32 v21, v26, v27 offset0:2 offset1:3")
    A("ds_write2_b32 v21, v28, v29 offset0:4 offset1:5")
    A("ds_write2_b32 v21, v30, v31 offset0:6 offset1:7")
    A("ds_write_b32 v21, v32 offset:32")
    A(f"s_lshl_b32 s{T+4}, s{S_WAVE}, 2")
    A(f"s_add_u32 s{T+4}, s{T+4}, {M_MISC+32}")
    A(f"v_mov_b32 v53, s{T+4}")
    A("s_mov_b64 exec, 1")
    A("ds_write_b32 v53, v16")
    A("ds_write_b32 v53, v52 offset:32")
    A("s_mov_b64 exec, -1")
    A(f"s_lshl_b32 s{T+1}, s{S_WAVE}, 6")
    A(f"v_add_u32 v1, s{T+1}, v0")

DRA, DRB = 64, 96
def moe_down_loads():
    T = S_T
    A("v_lshrrev_b32 v6, 4, v0")
    A("v_mul_u32_u24 v5, 9216, v6")
    A("v_and_b32 v6, 15, v0")
    A("v_lshl_add_u32 v5, v6, 3, v5")
    A(f"s_mul_i32 s{T+1}, s70, 73728")
    A(f"s_lshl_b32 s{T+2}, s{S_WAVE}, 7")
    A(f"s_add_u32 s{T+1}, s{T+1}, s{T+2}")
    A(f"v_add_u32 v5, s{T+1}, v5")
    srd(SRD_Q, S_WD, 5308416)
    def panel(R, extra):
        for ks in range(2):
            for jj in range(8):
                so = 36864*ks + 4608*(jj//4) + extra
                A(f"s_mov_b32 s{T+3}, {so}")
                r = R + 16*ks + 2*jj
                A(f"buffer_load_dwordx2 {p2(r)}, v5, s[{SRD_Q}:{SRD_Q+3}], s{T+3} offen offset:{1152*(jj%4)} {NTD}")
    panel(DRA, 0)
    L = A.newlabel("L_np8")
    A(f"s_cmp_lg_u32 s{S_WAVE}, 0")
    A(f"s_cbranch_scc1 {L}")
    panel(DRB, 1024)
    A.label(L)

def down_perm(R, F):
    for ks in range(2):
        for e in range(4):
            sel = S_SELLO if (e & 1) == 0 else S_SELHI
            for q in range(4):
                A(f"v_perm_b32 v{F+16*ks+4*e+q}, v{R+16*ks+2*(2*q+1)+e//2}, v{R+16*ks+2*(2*q)+e//2}, s{sel}")

def moe_gateup_addr():
    T = S_T
    A(f"s_lshr_b32 s{T+1}, s{S_WAVE}, 2")
    A(f"s_and_b32 s{T+2}, s{S_WAVE}, 3")
    A("v_lshrrev_b32 v6, 4, v0")
    A("v_bfe_u32 v7, v0, 2, 2")
    A("v_and_b32 v8, 3, v0")
    A("v_lshrrev_b32 v9, 1, v7")
    A("v_and_b32 v10, 1, v6")
    A("v_lshl_add_u32 v9, v10, 1, v9")
    A("v_lshlrev_b32 v9, 1, v9")
    A("v_lshrrev_b32 v10, 1, v8")
    A(f"s_lshl_b32 s{T+3}, s{T+2}, 1")
    A(f"v_add_u32 v10, s{T+3}, v10")
    A("v_xor_b32 v10, v10, v9")
    A("v_lshlrev_b32 v34, 10, v6")
    A("v_lshl_add_u32 v34, v7, 7, v34")
    A("v_lshl_add_u32 v34, v10, 4, v34")
    A("v_and_b32 v8, 1, v8")
    A("v_lshl_add_u32 v34, v8, 3, v34")
    A(f"s_mul_i32 s{T+3}, s{T+1}, {M_WU}")
    A(f"v_add_u32 v34, s{T+3}, v34")
    A(f"v_add_u32 v35, {4096*9}, v34")

def gu_areg(t):
    return f"v[{128+4*t}:{128+4*t+3}]" if t < 16 else f"a[{4*(t-16)}:{4*(t-16)+3}]"
def gu_areg2(t, h):
    if t < 16: return f"v[{128+4*t+2*h}:{128+4*t+2*h+1}]"
    return f"a[{4*(t-16)+2*h}:{4*(t-16)+2*h+1}]"
def moe_gateup_preload():
    for t in range(18):
        a, o = (34, 4096*t) if t < 9 else (35, 4096*(t-9))
        A(f"ds_read_b64_tr_b16 {gu_areg2(t,0)}, v{a} offset:{o}")
        A(f"ds_read_b64_tr_b16 {gu_areg2(t,1)}, v{a} offset:{o+512}")
        if t % 6 == 5: A("s_waitcnt lgkmcnt(2)")

def moe_gateup():
    T = S_T
    A(f"s_lshr_b32 s{T+1}, s{S_WAVE}, 2")
    A(f"s_and_b32 s{T+2}, s{S_WAVE}, 3")
    A("v_lshrrev_b32 v6, 4, v0")
    A("v_and_b32 v3, 7, v0")
    A(f"v_mul_u32_u24 v3, {XS_RS}, v3")
    A("v_lshl_add_u32 v3, v6, 4, v3")
    A(f"v_add_u32 v3, {M_XS}, v3")
    B0 = 8
    def rd(t):
        b = B0 + 4*(t % 12)
        A(f"ds_read_b128 a[{b}:{b+3}], v3 offset:{64*t}")
    for t in range(12): rd(t)
    for t in range(18):
        rem = min(17, t+11) - t
        A(f"s_waitcnt lgkmcnt({min(rem, 15)})")
        b = B0 + 4*(t % 12)
        acc = 8 + 4*(t & 1)
        cin = "0" if t < 2 else f"v[{acc}:{acc+3}]"
        A(f"v_mfma_f32_16x16x32_bf16 v[{acc}:{acc+3}], {gu_areg(t)}, a[{b}:{b+3}], {cin}")
        if t + 12 < 18: rd(t+12)
    A("v_and_b32 v3, 15, v0")
    A("v_lshlrev_b32 v4, 8, v3")
    A("v_lshl_add_u32 v4, v6, 4, v4")
    A(f"s_lshl_b32 s{T+3}, s{T+1}, 11")
    A(f"s_lshl_b32 s{T+4}, s{T+2}, 6")
    A(f"s_add_u32 s{T+3}, s{T+3}, s{T+4}")
    A(f"s_add_u32 s{T+3}, s{T+3}, {M_GU}")
    A(f"v_add_u32 v4, s{T+3}, v4")
    A("v_cmp_gt_u32 vcc, 8, v3")
    A(f"s_and_saveexec_b64 {sp(T+12)}, vcc")
    A("s_nop 1")
    A("v_pk_add_f32 v[8:9], v[8:9], v[12:13]")
    A("v_pk_add_f32 v[10:11], v[10:11], v[14:15]")
    A(f"ds_write_b128 v4, {p4(8)}")
    A(f"s_mov_b64 exec, {sp(T+12)}")

def moe_h_and_down_stage():
    T = S_T
    A("v_lshlrev_b32 v2, 2, v1")
    A(f"v_add_u32 v2, {M_GU}, v2")
    A("ds_read_b32 v8, v2")
    A("ds_read_b32 v9, v2 offset:2048")
    A("v_lshrrev_b32 v3, 6, v1")
    A(f"v_mul_u32_u24 v3, {H_RS}, v3")
    A("v_lshl_add_u32 v3, v0, 1, v3")
    A(f"v_add_u32 v3, {M_H}, v3")
    A("s_waitcnt lgkmcnt(0)")
    rnd(8); rnd(9)
    A(f"v_mul_f32 v10, 0x{f32bits(-1.4426950408889634):08x}, v8")
    A("v_exp_f32 v10, v10")
    A("s_nop 0")
    A("v_add_f32 v10, 1.0, v10")
    A("v_rcp_f32 v10, v10")
    A("s_nop 0")
    A("v_mul_f32 v10, v8, v10")
    rnd(10)
    A("v_mul_f32 v10, v10, v9")
    A("v_cvt_pk_bf16_f32 v10, v10, v10")
    A("ds_write_b16 v3, v10")
    A("s_waitcnt vmcnt(0)")
    down_perm(DRA, 32)
    L = A.newlabel("L_np8b")
    A(f"s_cmp_lg_u32 s{S_WAVE}, 0")
    A(f"s_cbranch_scc1 {L}")
    down_perm(DRB, 64)
    A.label(L)

def moe_down():
    T = S_T
    A("v_and_b32 v2, 7, v0")
    A(f"v_mul_u32_u24 v2, {H_RS}, v2")
    A("v_lshrrev_b32 v6, 4, v0")
    A("v_lshl_add_u32 v2, v6, 4, v2")
    A(f"v_add_u32 v2, {M_H}, v2")
    A(f"ds_read_b128 {p4(16)}, v2")
    A(f"ds_read_b128 {p4(20)}, v2 offset:64")
    A("v_and_b32 v4, 15, v0")
    A("v_lshlrev_b32 v5, 4, v4")
    A("v_lshl_add_u32 v5, v6, 9, v5")
    A(f"s_mul_i32 s{T+1}, s70, 18432")
    A(f"s_lshl_b32 s{T+2}, s{S_WAVE}, 11")
    A(f"s_add_u32 s{T+1}, s{T+1}, s{T+2}")
    A(f"v_add_u32 v5, s{T+1}, v5")
    add64(T+2, S_WS, WS_PART)
    A(f"s_mov_b32 s{T+4}, 0x07060503"); A(f"s_mov_b32 s{T+5}, 0x06050302"); A(f"s_mov_b32 s{T+6}, 0x05030201")
    A("v_cmp_gt_u32 vcc, 8, v4")
    A(f"s_mov_b64 {sp(T+12)}, vcc")
    A("s_waitcnt lgkmcnt(0)")
    def panel(F, ACC, G, vaddr):
        for e in range(4):
            A(f"v_mfma_f32_16x16x32_bf16 {p4(ACC+4*e)}, {p4(F+4*e)}, {p4(16)}, 0")
        for e in range(4):
            A(f"v_mfma_f32_16x16x32_bf16 {p4(ACC+4*e)}, {p4(F+16+4*e)}, {p4(20)}, {p4(ACC+4*e)}")
        A("s_nop 7"); A("s_nop 1")
        for r in range(4):
            g = G + 4*r
            a, b, c, d = ACC+r, ACC+4+r, ACC+8+r, ACC+12+r
            A(f"v_perm_b32 v{g}, v{a}, v{b}, s{T+4}")
            A(f"v_perm_b32 v{g+1}, v{b}, v{c}, s{T+5}")
            A(f"v_perm_b32 v{g+2}, v{c}, v{d}, s{T+6}")
            A(f"v_mov_b32 v{g+3}, s{S_NONCE}")
        A(f"s_mov_b64 exec, {sp(T+12)}")
        for r in range(4):
            A(f"global_store_dwordx4 v{vaddr}, {p4(G+4*r)}, {sp(T+2)} offset:{128*r} sc1")
        A("s_mov_b64 exec, -1")
    panel(32, 96, 112, 5)
    L = A.newlabel("L_np8c")
    A(f"s_cmp_lg_u32 s{S_WAVE}, 0")
    A(f"s_cbranch_scc1 {L}")
    A(f"v_add_u32 v7, {8*2048}, v5")
    panel(64, 96, 32, 7)
    A.label(L)

def moe_reduce():
    T = S_T
    A("v_lshrrev_b32 v6, 4, v0")
    A(f"s_mul_i32 s{T+1}, s{S_WAVE}, 9")
    A(f"v_add_u32 v1, s{T+1}, v6")
    A(f"v_mul_u32_u24 v1, 18432, v1")
    A("v_and_b32 v2, 15, v0")
    A("v_lshl_add_u32 v1, v2, 4, v1")
    A(f"s_lshl_b32 s{T+1}, s70, 8")
    A(f"v_add_u32 v1, s{T+1}, v1")
    A(f"v_add_u32 v3, {4*18432}, v1")
    A(f"v_mul_u32_u24 v4, 18432, v6")
    A(f"v_sub_u32 v4, v1, v4")
    A(f"v_add_u32 v4, {8*18432}, v4")
    A("v_lshrrev_b32 v50, 2, v0")
    A("v_and_b32 v51, 3, v0")
    A(f"s_lshl_b32 s{T+1}, s70, 4")
    A(f"v_add_u32 v52, s{T+1}, v50")
    A("v_and_b32 v53, 7, v52")
    A("v_lshrrev_b32 v54, 3, v52")
    A("v_lshl_add_u32 v54, v54, 2, v51")
    A("v_mul_u32_u24 v55, 576, v53")
    A("v_add_u32 v55, v55, v54")
    A("v_lshlrev_b32 v55, 3, v55")
    A(f"v_add_u32 v55, {WS_T1G}, v55")
    add64(T+2, S_WS, WS_PART)
    def ld():
        A(f"global_load_dwordx4 {p4(16)}, v1, {sp(T+2)} sc1")
        A(f"global_load_dwordx4 {p4(20)}, v3, {sp(T+2)} sc1")
        A(f"global_load_dwordx4 {p4(24)}, v4, {sp(T+2)} sc1")
    tagcheck_loop(ld, [19, 23, 27], 10, 12, sleep=1)
    stamp(8)
    tl(14, 151, 0)
    A(f"s_mov_b32 s{T+4}, 0x0403020c"); A(f"s_mov_b32 s{T+5}, 0x0504030c"); A(f"s_mov_b32 s{T+6}, 0xffffff00")
    U = 32
    for i in range(3):
        g = 16 + 4*i; u = U + 4*i
        A(f"v_and_b32 v{u}, s{T+6}, v{g}")
        A(f"v_perm_b32 v{u+1}, v{g}, v{g+1}, s{T+4}")
        A(f"v_perm_b32 v{u+2}, v{g+1}, v{g+2}, s{T+5}")
        A(f"v_lshlrev_b32 v{u+3}, 8, v{g+2}")
    for r in range(4):
        A(f"v_add_f32 v{U+r}, v{U+r}, v{U+4+r}")
    for swap in ("v_permlane32_swap_b32", "v_permlane16_swap_b32"):
        for r in range(4): A(f"v_mov_b32 v{44+r}, v{U+r}")
        A("s_nop 1")
        for r in range(4): A(f"{swap} v{U+r}, v{44+r}")
        for r in range(4): A(f"v_add_f32 v{U+r}, v{U+r}, v{44+r}")
    for r in range(4):
        A(f"v_add_f32 v{U+r}, v{U+r}, v{U+8+r}")
    A(f"s_lshl_b32 s{T+1}, s{S_WAVE}, 8")
    A("v_lshlrev_b32 v5, 4, v2")
    A(f"v_add_u32 v5, s{T+1}, v5")
    A(f"v_add_u32 v5, {M_RED}, v5")
    A("s_mov_b64 exec, 0xffff")
    A(f"ds_write_b128 v5, {p4(U)}")
    A("s_mov_b64 exec, -1")
    A("s_waitcnt lgkmcnt(0)")
    A("s_barrier")
    L = A.newlabel("L_nofin")
    A(f"s_cmp_lg_u32 s{S_WAVE}, 0")
    A(f"s_cbranch_scc1 {L}")
    A("v_lshlrev_b32 v6, 4, v50")
    A("v_lshl_add_u32 v6, v51, 2, v6")
    A(f"v_add_u32 v6, {M_RED}, v6")
    for w in range(8): A(f"ds_read_b32 v{16+w}, v6 offset:{256*w}")
    A(f"v_mul_u32_u24 v7, {XS_RS}, v53")
    A("v_lshl_add_u32 v7, v54, 1, v7")
    A(f"v_add_u32 v7, {M_XS}, v7")
    A("ds_read_u16 v24, v7")
    A("v_lshlrev_b32 v8, 2, v53")
    A(f"v_add_u32 v8, {M_MISC}, v8")
    A("ds_read_b32 v25, v8 offset:32")
    A("ds_read_b32 v26, v8 offset:64")
    A("v_mov_b32 v5, v54")
    A("s_waitcnt lgkmcnt(0)")
    T1POLL = True
    A("v_add_f32 v16, v16, v17"); A("v_add_f32 v18, v18, v19"); A("v_add_f32 v20, v20, v21"); A("v_add_f32 v22, v22, v23")
    A("v_add_f32 v16, v16, v18"); A("v_add_f32 v20, v20, v22"); A("v_add_f32 v16, v16, v20")
    rnd(16)
    A("v_mul_f32 v16, v16, v26")
    rnd(16)
    A("v_lshlrev_b32 v24, 16, v24")
    A("v_add_f32 v16, v24, v16")
    rnd(16)
    A("v_and_b32 v25, 0x7ff, v25")
    A("v_mul_u32_u24 v25, 1152, v25")
    A("v_lshl_add_u32 v25, v5, 1, v25")
    tagcheck_loop(lambda: A(f"global_load_dwordx2 v[28:29], v55, {sp(S_WS)} sc1"), [29], 10, 12, sleep=0)
    A("v_add_f32 v16, v28, v16")
    A("v_cvt_pk_bf16_f32 v16, v16, v16")
    A(f"global_store_short v25, v16, {sp(S_OUT)}")
    A.label(L)

def lds_init_list():
    T = S_T
    A(f"s_lshl_b32 s{T+1}, s{S_WAVE}, 10")
    A("v_lshlrev_b32 v110, 4, v0")
    A(f"v_add_u32 v111, s{T+1}, v110")
    A(f"v_add_u32 v111, {M_LIST}, v111")
    for i in range(4): A(f"v_mov_b32 v{112+i}, 0xff800000")
    A(f"ds_write_b128 v111, {p4(112)}")
    L0 = A.newlabel("L_ni")
    A(f"s_cmp_lg_u32 s{S_WAVE}, 0")
    A(f"s_cbranch_scc1 {L0}")
    A(f"v_add_u32 v111, {M_LIST+8192}, v110")
    A("s_mov_b64 exec, 0xf")
    A(f"ds_write_b128 v111, {p4(112)}")
    A("s_mov_b64 exec, -1")
    for i in range(4): A(f"v_mov_b32 v{116+i}, 0")
    A(f"v_add_u32 v111, {M_MISC}, v110")
    A("s_mov_b64 exec, 0x3ff")
    A(f"ds_write_b128 v111, {p4(116)}")
    A("s_mov_b64 exec, -1")
    A.label(L0)

def sel_top8():
    T = S_T
    A(f"s_lshl_b32 s{T+1}, s{S_WAVE}, 6")
    A(f"v_add_u32 v1, s{T+1}, v0")
    A("v_lshlrev_b32 v2, 5, v1")
    add64(T+2, S_WS, WS_RG)
    K = 16
    def ld():
        for i in range(2):
            A(f"global_load_dwordx4 {p4(K+4*i)}, v2, {sp(T+2)} offset:{16*i} sc1")
    tagcheck_loop(ld, [K+2*i+1 for i in range(4)], 10, 12, sleep=1)
    stamp(5)
    tl(10, 255, 0)
    keys = [K+2*i for i in range(4)]
    A(f"v_max3_f32 v40, v{keys[0]}, v{keys[1]}, v{keys[2]}")
    A(f"v_max_f32 v40, v40, v{keys[3]}")
    for sh in (8, 4, 2, 1):
        A("s_nop 1")
        A(f"v_max_f32_dpp v40, v40, v40 row_ror:{sh} row_mask:0xf bank_mask:0xf")
    A("s_nop 1")
    A(f"v_readlane_b32 s{T+4}, v40, 16")
    A(f"v_readlane_b32 s{T+5}, v40, 32")
    A(f"v_readlane_b32 s{T+6}, v40, 48")
    A("s_nop 1")
    A(f"v_max_f32 v40, s{T+4}, v40")
    A(f"v_max_f32 v40, s{T+5}, v40")
    A(f"v_max_f32 v40, s{T+6}, v40")
    A(f"s_lshl_b32 s{T+4}, s{S_WAVE}, 2")
    A(f"s_add_u32 s{T+4}, s{T+4}, {M_MISC+96}")
    A(f"v_mov_b32 v43, s{T+4}")
    A("s_mov_b64 exec, 1")
    A(f"ds_write_b32 v43, v40")
    A("s_mov_b64 exec, -1")
    A("s_waitcnt lgkmcnt(0)")
    A("s_barrier")
    A(f"v_mov_b32 v43, {M_MISC+96}")
    A(f"ds_read_b128 {p4(44)}, v43")
    A(f"ds_read_b128 {p4(48)}, v43 offset:16")
    A("s_waitcnt lgkmcnt(0)")
    A("v_min3_f32 v40, v44, v45, v46")
    A("v_min3_f32 v41, v47, v48, v49")
    A("v_min3_f32 v40, v40, v50, v51")
    A("v_min_f32 v40, v40, v41")
    A("v_mov_b32 v41, 0")
    for i in range(4):
        A(f"v_cmp_ge_f32 {sp(T+4+2*i)}, v{keys[i]}, v40")
    for q in range(4):
        A(f"v_addc_co_u32 v41, vcc, 0, v41, {sp(T+4+2*q)}")
    A(f"v_mov_b32 v43, {M_MISC}")
    A("v_cmp_lt_u32 vcc, 0, v41")
    A(f"s_and_saveexec_b64 {sp(T+12)}, vcc")
    A("ds_add_rtn_u32 v42, v43, v41")
    A(f"s_mov_b64 exec, {sp(T+12)}")
    A("s_waitcnt lgkmcnt(0)")
    A("v_lshlrev_b32 v42, 2, v42")
    A(f"v_add_u32 v42, {M_LIST}, v42")
    A(f"v_mov_b32 v43, {S_DUMP}")
    for i in range(4):
        A(f"v_cndmask_b32 v44, v43, v42, {sp(T+4+2*i)}")
        A(f"v_cndmask_b32 v45, 0, 4, {sp(T+4+2*i)}")
        A(f"ds_write_b32 v44, v{keys[i]}")
        A(f"v_add_u32 v42, v42, v45")
    A("s_waitcnt lgkmcnt(0)")
    A("s_barrier")
    A(f"v_mov_b32 v43, {M_MISC}")
    A("ds_read_b32 v44, v43")
    A("s_waitcnt lgkmcnt(0)")
    A(f"v_readfirstlane_b32 s{T+8}, v44")
    A(f"s_mov_b32 s{T+9}, 0")
    Lc = A.newlabel("L_chunk"); Lj = A.newlabel("L_j")
    A.label(Lc)
    A(f"v_add_u32 v44, s{T+9}, v0")
    A("v_lshlrev_b32 v44, 2, v44")
    A(f"v_add_u32 v44, {M_LIST}, v44")
    A("ds_read_b32 v46, v44")
    A("v_mov_b32 v47, 0")
    A(f"v_mov_b32 v45, {M_LIST}")
    A(f"s_mov_b32 s{T+10}, 0")
    A.label(Lj)
    A(f"ds_read_b128 {p4(48)}, v45")
    A(f"ds_read_b128 {p4(52)}, v45 offset:16")
    A("v_add_u32 v45, 32, v45")
    A(f"s_add_u32 s{T+10}, s{T+10}, 8")
    A("s_waitcnt lgkmcnt(1)")
    for q in range(4):
        A(f"v_cmp_gt_f32 {sp(T+2*q)}, v{48+q}, v46")
    for q in range(4):
        A(f"v_addc_co_u32 v47, vcc, 0, v47, {sp(T+2*q)}")
    A("s_waitcnt lgkmcnt(0)")
    for q in range(4):
        A(f"v_cmp_gt_f32 {sp(T+2*q)}, v{52+q}, v46")
    for q in range(4):
        A(f"v_addc_co_u32 v47, vcc, 0, v47, {sp(T+2*q)}")
    A(f"s_cmp_lt_u32 s{T+10}, s{T+8}")
    A(f"s_cbranch_scc1 {Lj}")
    A(f"v_add_u32 v44, s{T+9}, v0")
    A(f"v_cmp_gt_u32 vcc, s{T+8}, v44")
    A(f"v_cmp_gt_u32 {sp(T)}, 8, v47")
    A("s_nop 1")
    A(f"s_and_b64 vcc, vcc, {sp(T)}")
    A(f"s_and_saveexec_b64 {sp(T+12)}, vcc")
    A("v_lshlrev_b32 v47, 2, v47")
    A(f"v_add_u32 v47, {M_MISC+32}, v47")
    A("ds_write_b32 v47, v46")
    A(f"s_mov_b64 exec, {sp(T+12)}")
    A(f"s_add_u32 s{T+9}, s{T+9}, 64")
    A(f"s_cmp_lt_u32 s{T+9}, s{T+8}")
    A(f"s_cbranch_scc1 {Lc}")
    A("s_waitcnt lgkmcnt(0)")
    stamp(6)

def sel_publish():
    T = S_T
    L = A.newlabel("L_sp")
    A(f"s_cmp_lg_u32 s{S_WAVE}, 0")
    A(f"s_cbranch_scc1 {L}")
    A("v_lshlrev_b32 v1, 2, v0")
    A(f"v_add_u32 v1, {M_MISC+32}, v1")
    A("s_mov_b64 exec, 0xff")
    A("ds_read_b32 v2, v1")
    add64(T+2, S_WS, WS_SEL)
    A(f"v_mov_b32 v3, s{S_NONCE}")
    A("v_lshlrev_b32 v4, 3, v0")
    A("s_waitcnt lgkmcnt(0)")
    A(f"global_store_dwordx2 v4, v[2:3], {sp(T+2)} sc1")
    A("s_mov_b64 exec, -1")
    A.label(L)
    stamp(7)
    tl(11, 255, 0)

def ln_pass(stok):
    ln_loads(stok, LN_Q, True)
    A("v_mov_b32 v120, 0")
    A(f"global_load_dword v121, v120, {sp(S_DBG)} sc1")
    A("s_waitcnt vmcnt(1)")
    def hook():
        Lhn = A.newlabel("L_lnn")
        A("s_waitcnt vmcnt(0)")
        A(f"v_readfirstlane_b32 s{S_NONCE}, v121")
        A(f"s_cmp_lg_u32 s{S_NONCE}, 0")
        A(f"s_cbranch_scc1 {Lhn}")
        get_nonce(124)
        A.label(Lhn)
    ln_compute_publish(LN_Q, 3, True, hook=hook)

def spare_wg():
    T = S_T
    A(f"s_sub_u32 s69, s69, {NMOE}")
    A("s_mul_i32 s68, s69, 24")
    A(f"s_lshl_b32 s{T+1}, s{S_WAVE}, 2")
    A(f"s_add_u32 s68, s68, s{T+1}")
    A("s_add_u32 s68, s68, 1152")
    Le = A.newlabel("L_lne")
    A(f"s_cmp_ge_u32 s{S_WAVE}, 6")
    A(f"s_cbranch_scc1 {Le}")
    A("s_cmp_ge_u32 s68, 2048")
    A(f"s_cbranch_scc1 {Le}")
    ln_pass(68)
    A.label(Le)
    stamp(4)
    A(f"s_cmp_lg_u32 s69, {SELIDX}")
    A("s_cbranch_scc1 L_fin")
    lds_init_list()
    get_nonce(124)
    A("s_waitcnt lgkmcnt(0)")
    A("s_barrier")
    sel_top8()
    sel_publish()
    A("s_branch L_fin")

def moe_wg():
    T = S_T
    A(f"s_sub_u32 s69, s{S_WG}, {NCONV}")
    A(f"s_cmp_ge_u32 s69, {NMOE}")
    A("s_cbranch_scc1 L_spare")
    A("s_and_b32 s70, s69, 7")
    A("s_mul_i32 s70, s70, 9")
    A(f"s_lshr_b32 s{T+1}, s69, 3")
    A(f"s_add_u32 s70, s70, s{T+1}")
    Lm = A.newlabel("L_mln")
    A(f"s_cmp_ge_u32 s{S_WAVE}, 4")
    A(f"s_cbranch_scc1 {Lm}")
    A("s_lshl_b32 s68, s69, 4")
    A(f"s_lshl_b32 s{T+1}, s{S_WAVE}, 2")
    A(f"s_add_u32 s68, s68, s{T+1}")
    ln_pass(68)
    A.label(Lm)
    if "mbar" in OPTS: A("s_barrier")
    if "mnonce" in OPTS: get_nonce(10)
    stamp(3)
    moe_dma()
    A("s_waitcnt vmcnt(4)")
    stamp(4)
    moe_sel_wait()
    stamp(5)
    tl(12, 151, 7)
    moe_row_loads()
    A("s_barrier")
    if "xsfirst" in OPTS:
        moe_gateup_addr()
        moe_gateup_preload()
        A("s_waitcnt vmcnt(0)")
    else:
        moe_down_loads()
        moe_gateup_addr()
        moe_gateup_preload()
        Lq = A.newlabel("L_w32")
        A(f"s_cmp_lg_u32 s{S_WAVE}, 0")
        A(f"s_cbranch_scc1 {Lq}")
        A("s_waitcnt vmcnt(32)")
        A.label(Lq)
        A(f"s_cmp_eq_u32 s{S_WAVE}, 0")
        A(f"s_cbranch_scc1 {Lq}_b")
        A("s_waitcnt vmcnt(16)")
        A.label(Lq + "_b")
    moe_xs_compute()
    if "xsfirst" in OPTS:
        A("s_waitcnt lgkmcnt(0)")
        A("s_barrier")
        moe_gateup()
        moe_down_loads()
        A("s_waitcnt lgkmcnt(0)")
        A("s_barrier")
        moe_h_and_down_stage()
        A("s_waitcnt lgkmcnt(0)")
        A("s_barrier")
        stamp(7)
        moe_down()
        moe_reduce()
        A("s_branch L_fin")
    stamp(6)
    tl(13, 151, 7)
    A("s_waitcnt lgkmcnt(0)")
    A("s_barrier")
    moe_gateup()
    A("s_waitcnt lgkmcnt(0)")
    A("s_barrier")
    moe_h_and_down_stage()
    A("s_waitcnt lgkmcnt(0)")
    A("s_barrier")
    stamp(7)
    moe_down()
    moe_reduce()
    A("s_branch L_fin")
    A.label("L_spare")
    spare_wg()

def main():
    prologue()
    A(f"s_cmp_ge_u32 s{S_WG}, {NCONV}")
    A("s_cbranch_scc1 L_moe")
    conv_wg()
    A.label("L_moe")
    moe_wg()
    A.label("L_fin")
    tl(15, 151, 0)
    prof_end()
    A.label("L_end")
    A("s_endpgm")

main()
K = NAME + "_kernel"
LDS = max(L_CONV_END, M_END)
txt = HDR + f"; @launch grid=(256,1,1) block=(512,1,1) lds={LDS}\n" + '.amdgcn_target "amdgcn-amd-amdhsa--gfx950"\n.text\n' + head(K) + A.text() + kd(K, 256, 102, 192, "  .amdhsa_float_denorm_mode_32 3\n")
open(OUTFN, "w").write(txt)
print("wrote", OUTFN, len(txt), "LDS", LDS)
```

```python
import sys, struct, os
sys.path.insert(0, "dev")
from asmlib import *

OUTFN = sys.argv[1] if len(sys.argv) > 1 else "k.s"
OPTS = set(sys.argv[2:])
PROF = "prof" in OPTS
NT = "nt" if "nt" in OPTS else ""
NTKV = "nt" if "ntkv" in OPTS else NT
NTH = "nt" if "nth" in OPTS else NT
NTW = "nt" if "ntw" in OPTS else NT
NTD = "nt" if "ntd" in OPTS else NT
NTP = "nt" if "ntp" in OPTS else NT
NTLN = "nt" if "ntln" in OPTS else NT
NTQ = "nt" if "ntq" in OPTS else NT

WS_KVT = 0x000000
WS_XT = 0x240000
WS_RG = 0x480000
WS_SG = 0x484000
WS_FL = 0x488000
WS_FL2 = 0x488800
WS_SEL = 0x489800
WS_T1G = 0x48A000
WS_XSG = 0x494000
WS_PART = 0x4A0000
WS_PROF = 0x800000
WS_YG = 0x1000000
SPIN_MAX = 2000 if "dbgB" in OPTS else 400000
NCONV, NMOE = 144, 72
NLN = 40
SELIDX = 39

S_WG, S_WAVE = 2, 3
S_Q, S_K, S_V, S_SK, S_H, S_D, S_BX, S_WR, S_WGT, S_WUP, S_WD, S_OUT, S_DBG, S_WS = 4, 6, 8, 10, 12, 14, 16, 18, 20, 22, 24, 26, 28, 30
SRD_K, SRD_V, SRD_Q, SRD_O = 32, 36, 40, 44
S_NONCE = 48
S_MASK, S_SELLO, S_SELHI = 50, 51, 52
S_T = 54

A = Asm()
def f32bits(x): return struct.unpack("<I", struct.pack("<f", x))[0]
def p2(r): return f"v[{r}:{r+1}]"
def p4(r): return f"v[{r}:{r+3}]"
def sp(r): return f"s[{r}:{r+1}]"

NSTAMP = 10
def stamp(i):
    if PROF: A(f"s_memtime s[{80+2*i}:{81+2*i}]")
def prof_begin():
    if PROF:
        A("s_memrealtime s[100:101]")
        stamp(0)
        for i in range(1, NSTAMP):
            A(f"s_mov_b64 s[{80+2*i}:{81+2*i}], 0")
def prof_end():
    if not PROF: return
    A(f"s_memrealtime s[{S_T+2}:{S_T+3}]")
    A("s_waitcnt lgkmcnt(0)")
    A(f"s_lshl_b32 s{S_T}, s{S_WG}, 3")
    A(f"s_add_u32 s{S_T}, s{S_T}, s{S_WAVE}")
    A(f"s_lshl_b32 s{S_T}, s{S_T}, 6")
    A(f"s_add_u32 s{S_T}, s{S_T}, {WS_PROF}")
    A(f"v_mov_b32 v1, s{S_T}")
    A("s_mov_b64 exec, 1")
    A("v_mov_b32 v2, s100")
    A(f"global_store_dword v1, v2, {sp(S_WS)}")
    A(f"v_mov_b32 v2, s{S_T+2}")
    A(f"global_store_dword v1, v2, {sp(S_WS)} offset:4")
    for i in range(1, NSTAMP):
        A(f"s_sub_u32 s{S_T+1}, s{80+2*i}, s80")
        A(f"v_mov_b32 v2, s{S_T+1}")
        A(f"global_store_dword v1, v2, {sp(S_WS)} offset:{4+4*i}")
    A("s_mov_b64 exec, -1")

TL = "tl" in OPTS
TLSET = os.environ.get("TLSET", "A")
def tl(slot, wg, wave, setname="A"):
    if not TL or setname != TLSET: return
    L = A.newlabel("L_tl")
    A(f"s_cmp_lg_u32 s{S_WG}, {wg}")
    A(f"s_cbranch_scc1 {L}")
    A(f"s_cmp_lg_u32 s{S_WAVE}, {wave}")
    A(f"s_cbranch_scc1 {L}")
    A("s_memrealtime s[98:99]")
    A("s_mov_b64 s[100:101], exec")
    A("s_mov_b64 exec, 1")
    A("v_readfirstlane_b32 s96, v126")
    A("v_readfirstlane_b32 s97, v127")
    A(f"v_mov_b32 v126, {4*slot}")
    A("s_waitcnt lgkmcnt(0)")
    A("v_mov_b32 v127, s98")
    A(f"global_store_dword v126, v127, {sp(S_DBG)}")
    A("s_nop 4")
    A("v_mov_b32 v126, s96")
    A("v_mov_b32 v127, s97")
    A("s_mov_b64 exec, s[100:101]")
    A.label(L)

def rnd(v, src=None):
    A(f"v_cvt_pk_bf16_f32 v{v}, 0, v{v if src is None else src}")
def srd(dst, base, nbytes):
    A(f"s_mov_b32 s{dst}, s{base}")
    A(f"s_and_b32 s{dst+1}, s{base+1}, 0xffff")
    A(f"s_mov_b32 s{dst+2}, {nbytes}")
    A(f"s_mov_b32 s{dst+3}, 0x00020000")
def add64(dst, src, imm):
    A(f"s_add_u32 s{dst}, s{src}, {imm}")
    A(f"s_addc_u32 s{dst+1}, s{src+1}, 0")

def get_nonce(vtmp):
    L = A.newlabel("L_nonce"); Ld = A.newlabel("L_nonced")
    A(f"v_mov_b32 v{vtmp}, 0")
    A(f"s_mov_b32 s{S_T}, 0")
    A.label(L)
    A(f"global_load_dword v{vtmp+1}, v{vtmp}, {sp(S_DBG)} sc1")
    A(f"s_waitcnt vmcnt(0)")
    A(f"v_readfirstlane_b32 s{S_NONCE}, v{vtmp+1}")
    A(f"s_add_u32 s{S_T}, s{S_T}, 1")
    A(f"s_cmp_lg_u32 s{S_NONCE}, 0")
    A(f"s_cbranch_scc1 {Ld}")
    A(f"s_cmp_lt_u32 s{S_T}, {SPIN_MAX}")
    A(f"s_cbranch_scc1 {L}")
    A.label(Ld)

def tag_acc(tagregs, vacc, vtmp):
    A(f"v_xor_b32 v{vacc}, s{S_NONCE}, v{tagregs[0]}")
    rest = tagregs[1:]
    i = 0
    while i < len(rest):
        if i + 1 < len(rest):
            A(f"v_xor_b32 v{vtmp}, s{S_NONCE}, v{rest[i]}")
            A(f"v_xor_b32 v{vtmp+1}, s{S_NONCE}, v{rest[i+1]}")
            A(f"v_or3_b32 v{vacc}, v{vacc}, v{vtmp}, v{vtmp+1}")
            i += 2
        else:
            A(f"v_xor_b32 v{vtmp}, s{S_NONCE}, v{rest[i]}")
            A(f"v_or_b32 v{vacc}, v{vacc}, v{vtmp}")
            i += 1

def tagcheck_loop(load_fn, tagregs, vacc, vtmp, sleep=1):
    T = S_T
    L = A.newlabel("L_pl"); Ld = A.newlabel("L_pld")
    A(f"s_mov_b32 s{T}, 0")
    A.label(L)
    load_fn()
    A("s_waitcnt vmcnt(0)")
    tag_acc(tagregs, vacc, vtmp)
    A(f"v_cmp_ne_u32 vcc, 0, v{vacc}")
    A(f"s_add_u32 s{T}, s{T}, 1")
    A("s_nop 3")
    A("s_cmp_eq_u64 vcc, 0")
    A(f"s_cbranch_scc1 {Ld}")
    if sleep: A(f"s_sleep {sleep}")
    A(f"s_cmp_lt_u32 s{T}, {SPIN_MAX}")
    A(f"s_cbranch_scc1 {L}")
    A.label(Ld)

def nonce_writer():
    L = A.newlabel("L_nw")
    A(f"s_cmp_ge_u32 s{S_WG}, 8")
    A(f"s_cbranch_scc1 {L}")
    A(f"s_cmp_lg_u32 s{S_WAVE}, 7")
    A(f"s_cbranch_scc1 {L}")
    A(f"s_memrealtime {sp(S_T)}")
    A("s_waitcnt lgkmcnt(0)")
    A(f"s_or_b32 s{S_T}, s{S_T}, 1")
    A(f"v_mov_b32 v10, s{S_T}")
    A("v_mov_b32 v11, 0")
    A("v_mov_b32 v12, 0")
    A("s_mov_b64 exec, 1")
    A(f"global_atomic_cmpswap v12, v[10:11], {sp(S_DBG)} sc1")
    A("s_mov_b64 exec, -1")
    A.label(L)

def code_prefetch():
    T = S_T
    L = A.newlabel("L_cpf")
    A(f"s_cmp_lg_u32 s{S_WAVE}, 6")
    A(f"s_cbranch_scc1 {L}")
    A(f"s_lshr_b32 s{T+2}, s{S_WG}, 3")
    A(f"s_cmp_ge_u32 s{T+2}, (L_end - {NAME}_kernel + 1023) / 1024")
    A(f"s_cbranch_scc1 {L}")
    A(f"s_getpc_b64 {sp(T)}")
    A.label(L + "_pc")
    A(f"s_sub_u32 s{T}, s{T}, {L}_pc - {NAME}_kernel")
    A(f"s_subb_u32 s{T+1}, s{T+1}, 0")
    A(f"s_lshl_b32 s{T+2}, s{T+2}, 10")
    A("v_lshlrev_b32 v1, 4, v0")
    A(f"v_add_u32 v1, s{T+2}, v1")
    A(f"global_load_dwordx4 a[60:63], v1, {sp(T)}")
    A.label(L)

def prologue():
    A(f"s_cmp_ge_u32 s{S_WG}, 256")
    A("s_cbranch_scc1 L_end")
    prof_begin()
    A("s_load_dwordx16 s[4:19], s[0:1], 0")
    A("s_load_dwordx8 s[20:27], s[0:1], 64")
    A("s_load_dwordx4 s[28:31], s[0:1], 96")
    A("v_lshrrev_b32 v1, 6, v0")
    A("v_and_b32 v0, 63, v0")
    A(f"v_readfirstlane_b32 s{S_WAVE}, v1")
    A(f"s_mov_b32 s{S_MASK}, 0xffff0000")
    A(f"s_mov_b32 s{S_SELLO}, 0x05040100")
    A(f"s_mov_b32 s{S_SELHI}, 0x07060302")
    A("s_waitcnt lgkmcnt(0)")
    stamp(1)
    tl(1, 0, 0); tl(2, 7, 0); tl(3, 4, 0)
    nonce_writer()
    code_prefetch()

def dpp_sum16(v):
    for sh in (8, 4, 2, 1):
        A("s_nop 1")
        A(f"v_add_f32_dpp v{v}, v{v}, v{v} row_ror:{sh} row_mask:0xf bank_mask:0xf")

LN_Q, LN_W, LN_Q2 = 10, 28, 46
def ln_loads(stok, Q, with_w):
    T = S_T
    A(f"s_mov_b32 s{T}, s{stok}")
    A("v_lshrrev_b32 v1, 4, v0")
    A("v_and_b32 v2, 15, v0")
    A(f"v_add_u32 v3, s{T}, v1")
    A(f"v_mul_u32_u24 v4, 1152, v3")
    A(f"v_lshl_add_u32 v5, v2, 4, v4")
    A(f"v_lshl_add_u32 v6, v2, 3, v4")
    for i in range(4):
        A(f"global_load_dwordx4 {p4(Q+4*i)}, v5, {sp(S_Q)} offset:{256*i} {NTLN}")
    A(f"global_load_dwordx2 {p2(Q+16)}, v6, {sp(S_Q)} offset:1024 {NTLN}")
    if with_w:
        W = LN_W
        A(f"v_lshlrev_b32 v7, 4, v2")
        A(f"v_lshlrev_b32 v8, 3, v2")
        for i in range(4):
            A(f"global_load_dwordx4 {p4(W+4*i)}, v7, {sp(S_WR)} offset:{256*i}")
        A(f"global_load_dwordx2 {p2(W+16)}, v8, {sp(S_WR)} offset:1024")

def dpp_sum16x(vs):
    for sh in (8, 4, 2, 1):
        if len(vs) < 3: A("s_nop 1")
        for v in vs:
            A(f"v_add_f32_dpp v{v}, v{v}, v{v} row_ror:{sh} row_mask:0xf bank_mask:0xf")

def ln_compute_publish(Q, vtok, first, vc=2, hook=None, publish=True):
    T = S_T
    W = LN_W
    A(f"s_mov_b32 s{T+8}, 0x3f803f80"); A(f"s_mov_b32 s{T+9}, 0x00003f80"); A(f"s_mov_b32 s{T+10}, 0x3f800000")
    accs = [64, 65, 66, 67] + ([68, 69] if first else [])
    for a in accs: A(f"v_mov_b32 v{a}, 0")
    for i in range(18):
        A(f"v_dot2_f32_bf16 v{64+(i&1)}, v{Q+i}, s{T+8}, v{64+(i&1)}")
        A(f"v_dot2_f32_bf16 v{66+(i&1)}, v{Q+i}, v{W+i}, v{66+(i&1)}")
        if first: A(f"v_dot2_f32_bf16 v{68+(i&1)}, v{W+i}, s{T+8}, v{68+(i&1)}")
    A("s_nop 2")
    A("v_add_f32 v64, v64, v65")
    A("v_add_f32 v66, v66, v67")
    if first:
        A("v_add_f32 v122, v68, v69")
        A("s_nop 0")
        dpp_sum16x([64, 66, 122])
    else:
        A("s_nop 0")
        dpp_sum16x([64, 66])
    A(f"v_mul_f32 v64, 0x{f32bits(1.0/576):08x}, v64")
    A("v_sub_f32 v65, 0, v64")
    for a in (68, 69, 70, 71): A(f"v_mov_b32 v{a}, 0")
    for i in range(0, 18, 2):
        A(f"v_dot2_f32_bf16 v72, v{Q+i}, s{T+9}, v65")
        A(f"v_dot2_f32_bf16 v73, v{Q+i}, s{T+10}, v65")
        A(f"v_dot2_f32_bf16 v74, v{Q+i+1}, s{T+9}, v65")
        A(f"v_dot2_f32_bf16 v75, v{Q+i+1}, s{T+10}, v65")
        A("s_nop 1")
        A(f"v_fma_f32 v68, v72, v72, v68")
        A(f"v_fma_f32 v69, v73, v73, v69")
        A(f"v_fma_f32 v70, v74, v74, v70")
        A(f"v_fma_f32 v71, v75, v75, v71")
    A("v_add_f32 v68, v68, v69"); A("v_add_f32 v70, v70, v71"); A("v_add_f32 v68, v68, v70")
    dpp_sum16x([68])
    A(f"v_mul_f32 v68, 0x{f32bits(1.0/576):08x}, v68")
    rnd(68)
    A(f"v_add_f32 v68, 0x{f32bits(1e-5):08x}, v68")
    rnd(68)
    A("v_sqrt_f32 v69, v68")
    A("s_nop 0")
    A("v_rcp_f32 v70, v69")
    A("v_fma_f32 v71, -v69, v69, v68")
    A("v_mul_f32 v70, 0.5, v70")
    A("v_fma_f32 v69, v71, v70, v69")
    rnd(69)
    A("v_rcp_f32 v70, v69")
    rnd(64)
    A("v_fma_f32 v66, -v64, v122, v66")
    A("v_mul_f32 v112, v66, v70")
    rnd(112)
    A(f"v_or_b32 v112, v112, v{vtok}")
    A("v_cvt_pk_bf16_f32 v114, v64, v69")
    if not publish:
        A("v_mov_b32 v32, v112"); A("v_mov_b32 v34, v114")
        return
    if hook: hook()
    ln_publish(vtok, vc)

def ln_publish(vtok, vc):
    T = S_T
    A(f"v_mov_b32 v113, s{S_NONCE}")
    A(f"v_mov_b32 v115, s{S_NONCE}")
    A(f"v_lshlrev_b32 v116, 3, v{vtok}")
    add64(T+2, S_WS, WS_RG)
    add64(T+4, S_WS, WS_SG)
    A(f"v_cmp_eq_u32 vcc, 0, v{vc}")
    A(f"s_and_saveexec_b64 {sp(T+6)}, vcc")
    A(f"global_store_dwordx2 v116, v[112:113], {sp(T+2)} sc1")
    A(f"global_store_dwordx2 v116, v[114:115], {sp(T+4)} sc1")
    A(f"s_mov_b64 exec, {sp(T+6)}")

P_CH = 4128
L_P = 0
L_Q = L_P + 4 * P_CH
Q_CPY = 1152
Q_CH = 4 * Q_CPY
L_KVL = L_Q + 4 * Q_CH
L_MC = L_KVL + 16384
L_SELT = L_MC + 64
L_ST = L_SELT + 128
L_TAP = L_ST + 1024
TBLK = 1040
L_TK = (L_TAP + 640 + 15) // 16 * 16
L_TV = L_TK + 17 * TBLK
L_TQ = L_TV + 16 * TBLK
L_OT = L_TK
L_CONV_END = L_TQ + 16 * TBLK

def dma(voff, srdreg, soff, m0, flag=None):
    A(f"s_mov_b32 m0, {m0}")
    A("s_nop 0")
    A(f"buffer_load_dwordx4 v{voff}, s[{srdreg}:{srdreg+3}], {soff} offen {NT if flag is None else flag} lds")

def conv_tile():
    T = S_T
    A(f"s_sub_u32 s72, s{S_WAVE}, 4")
    A(f"s_mul_hi_u32 s77, s{S_WG}, {(2**32 + 8)//9}")
    A(f"s_mul_i32 s76, s77, 9")
    A(f"s_sub_u32 s76, s{S_WG}, s76")
    srd(SRD_K, S_K, 2359296)
    srd(SRD_V, S_V, 2359296)
    A("v_lshrrev_b32 v1, 3, v0")
    A("v_and_b32 v2, 7, v0")
    A(f"s_mul_i32 s{T+2}, s77, {128*1152}")
    A(f"s_lshl_b32 s{T+3}, s76, 7")
    A(f"s_add_u32 s{T+2}, s{T+2}, s{T+3}")
    A(f"v_mul_u32_u24 v3, 1152, v1")
    A(f"v_lshl_add_u32 v3, v2, 4, v3")
    A(f"v_add_u32 v3, s{T+2}, v3")
    A(f"s_mul_i32 s{T+4}, s{S_WAVE}, {2*9216}")
    A(f"s_mul_i32 s{T+6}, s{S_WAVE}, {2*TBLK}")
    for i in range(2):
        A(f"s_add_u32 s{T+7}, s{T+6}, {L_TK + TBLK + i*TBLK}")
        A(f"s_add_u32 s{T+5}, s{T+4}, {9216*i}")
        dma(3, SRD_K, f"s{T+5}", f"s{T+7}", flag=NTKV)
        A(f"s_add_u32 s{T+7}, s{T+6}, {L_TV + i*TBLK}")
        dma(3, SRD_V, f"s{T+5}", f"s{T+7}", flag=NTKV)
    L7 = A.newlabel("L_w7")
    A(f"s_cmp_lg_u32 s{S_WAVE}, 7")
    A(f"s_cbranch_scc1 {L7}")
    A(f"v_subrev_u32 v4, 9216, v3")
    A(f"s_cmp_lg_u32 s77, 0")
    A(f"s_cbranch_scc1 {L7}_a")
    A("v_bfrev_b32 v4, 1")
    A.label(L7 + "_a")
    dma(4, SRD_K, "0", L_TK, flag=NTKV)
    for i in range(4): A(f"v_mov_b32 v{52+i}, 0")
    A("v_lshlrev_b32 v56, 4, v0")
    A(f"v_add_u32 v56, {L_MC}, v56")
    A("s_mov_b64 exec, 0xfff")
    A(f"ds_write_b128 v56, {p4(52)}")
    A("s_mov_b64 exec, -1")
    A.label(L7)
    TR = 48
    A(f"s_lshr_b32 s{T+9}, s{S_WAVE}, 1")
    A(f"s_and_b32 s{T+10}, s{S_WAVE}, 1")
    Lt = A.newlabel("L_tap")
    A(f"s_cmp_lg_u32 s{S_WAVE}, 0")
    A(f"s_cbranch_scc1 {Lt}")
    srd(SRD_Q, S_SK, 4608)
    A(f"s_lshl_b32 s{T+11}, s76, 9")
    A("v_lshlrev_b32 v5, 4, v0")
    A("s_mov_b64 exec, 0xffffffff")
    dma(5, SRD_Q, f"s{T+11}", L_TAP, flag="")
    srd(SRD_Q, S_D, 1152)
    A(f"s_lshl_b32 s{T+11}, s76, 7")
    A("v_lshlrev_b32 v5, 2, v0")
    A(f"s_mov_b32 m0, {L_TAP+512}")
    A("s_nop 0")
    A(f"buffer_load_dword v5, s[{SRD_Q}:{SRD_Q+3}], s{T+11} offen lds")
    A("s_mov_b64 exec, -1")
    A.label(Lt)
    A("v_mov_b32 v120, 0")
    A(f"global_load_dword v121, v120, {sp(S_DBG)} sc1")
    A(f"s_and_b32 s{T+13}, s{S_WG}, 7")
    A(f"s_mul_i32 s{T+13}, s{T+13}, 18")
    A(f"s_lshr_b32 s{T+12}, s{S_WG}, 3")
    A(f"s_add_u32 s{T+13}, s{T+13}, s{T+12}")
    A(f"s_lshl_b32 s71, s{T+13}, 2")
    A(f"s_and_b32 s{T+12}, s{S_WAVE}, 3")
    A(f"s_add_u32 s78, s71, s{T+12}")
    A(f"s_lshl_b32 s79, s78, 12")
    A(f"s_lshl_b32 s{T+12}, s{T+10}, 3")
    A(f"v_add_u32 v6, s{T+12}, v2")
    A(f"s_lshl_b32 s{T+12}, s{T+9}, 3")
    A(f"v_add_u32 v7, s{T+12}, v1")
    A(f"v_mul_u32_u24 v9, {TBLK}, v6")
    A(f"v_lshl_add_u32 v9, v7, 2, v9")
    A(f"v_add_u32 v9, {L_TK}, v9")
    A(f"s_lshl_b32 s{T+11}, s76, 19")
    A(f"s_lshl_b32 s{T+12}, s77, 9")
    A(f"s_add_u32 s{T+11}, s{T+11}, s{T+12}")
    A(f"s_lshl_b32 s{T+12}, s{T+10}, 8")
    A(f"s_add_u32 s{T+11}, s{T+11}, s{T+12}")
    A("v_lshlrev_b32 v8, 14, v7")
    A("v_lshl_add_u32 v8, v2, 4, v8")
    A(f"v_add_u32 v8, s{T+11}, v8")
    if "hearly" in OPTS:
        Lh = A.newlabel("L_noh"); Lh2 = A.newlabel("L_noh2")
        A(f"s_cmp_ge_u32 s{S_WAVE}, 4")
        A(f"s_cbranch_scc1 {Lh}")
        srd(SRD_Q, S_H, 2359296)
        A("v_lshlrev_b32 v4, 4, v0")
        A(f"s_mul_i32 s74, s{S_WAVE}, {P_CH}")
        for q in range(4):
            A(f"s_add_u32 s{T+9}, s79, {1024*q}")
            A(f"s_add_u32 s{T+5}, s74, {32 + 1024*q}")
            dma(4, SRD_Q, f"s{T+9}", f"s{T+5}", flag=NTH)
        if "dbgB" in OPTS: stamp(5)
        A("s_waitcnt vmcnt(4) lgkmcnt(0)")
        A(f"s_branch {Lh2}")
        A.label(Lh)
        if "dbgB" in OPTS: stamp(5)
        A("s_waitcnt vmcnt(0) lgkmcnt(0)")
        A.label(Lh2)
        if "dbgB" in OPTS: stamp(6)
    else:
        A("s_waitcnt vmcnt(0) lgkmcnt(0)")
    A(f"v_readfirstlane_b32 s{S_NONCE}, v121")
    A("s_barrier")
    stamp(2)
    tl(4, 7, 0)
    KR, VR = 10, 21
    for j in range(11):
        off = (640 + 128*j if j < 3 else TBLK + 128*(j-3))
        A(f"ds_read_b32 v{KR+j}, v9 offset:{off}")
    A("v_lshlrev_b32 v5, 2, v7")
    A("v_lshlrev_b32 v5, 2, v5")
    A(f"v_add_u32 v5, {L_TAP}, v5")
    A(f"ds_read_b128 {p4(TR)}, v5")
    for j in range(8):
        A(f"ds_read_b32 v{VR+j}, v9 offset:{L_TV - L_TK + 128*j}")
    A("s_waitcnt lgkmcnt(8)")
    Ln = A.newlabel("L_hasn")
    A(f"s_cmp_lg_u32 s{S_NONCE}, 0")
    A(f"s_cbranch_scc1 {Ln}")
    get_nonce(30)
    A.label(Ln)
    TP = 52
    A(f"v_lshlrev_b32 v{TP+0}, 16, v{TR}"); A(f"v_lshlrev_b32 v{TP+1}, 16, v{TR+2}")
    A(f"v_and_b32 v{TP+2}, s{S_MASK}, v{TR}"); A(f"v_and_b32 v{TP+3}, s{S_MASK}, v{TR+2}")
    A(f"v_lshlrev_b32 v{TP+4}, 16, v{TR+1}"); A(f"v_lshlrev_b32 v{TP+5}, 16, v{TR+3}")
    A(f"v_and_b32 v{TP+6}, s{S_MASK}, v{TR+1}"); A(f"v_and_b32 v{TP+7}, s{S_MASK}, v{TR+3}")
    KP = 80
    for j in range(11):
        A(f"v_lshlrev_b32 v{KP+2*j}, 16, v{KR+j}")
        A(f"v_and_b32 v{KP+2*j+1}, s{S_MASK}, v{KR+j}")
    R = 102
    tp = lambda tap: p2(TP+2*tap)
    for i in range(8): A(f"v_pk_mul_f32 {p2(R+2*i)}, {p2(KP+2*i)}, {tp(3)}")
    for i in range(8): A(f"v_pk_fma_f32 {p2(R+2*i)}, {p2(KP+2*(i+1))}, {tp(2)}, {p2(R+2*i)}")
    for i in range(8): A(f"v_pk_fma_f32 {p2(R+2*i)}, {p2(KP+2*(i+2))}, {tp(1)}, {p2(R+2*i)}")
    for i in range(8): A(f"v_pk_fma_f32 {p2(R+2*i)}, {p2(KP+2*(i+3))}, {tp(0)}, {p2(R+2*i)}")
    A("s_waitcnt lgkmcnt(0)")
    VP = 60
    for i in range(8):
        A(f"v_lshlrev_b32 v{VP+2*i}, 16, v{VR+i}"); A(f"v_and_b32 v{VP+2*i+1}, s{S_MASK}, v{VR+i}")
    for i in range(8): A(f"v_pk_mul_f32 {p2(R+2*i)}, {p2(R+2*i)}, {p2(VP+2*i)}")
    GQ = 80
    for c in range(2):
        for q in range(4):
            A(f"v_cvt_pk_bf16_f32 v{GQ+8*c+2*q}, v{R+4*q+c}, v{R+4*q+2+c}")
            A(f"v_mov_b32 v{GQ+8*c+2*q+1}, s{S_NONCE}")
    add64(T+2, S_WS, WS_KVT)
    add64(T+8, S_WS, WS_KVT+8192)
    A(f"global_store_dwordx4 v8, {p4(GQ)}, {sp(T+2)} sc1")
    A(f"global_store_dwordx4 v8, {p4(GQ+4)}, {sp(T+2)} offset:128 sc1")
    A(f"global_store_dwordx4 v8, {p4(GQ+8)}, {sp(T+8)} sc1")
    A(f"global_store_dwordx4 v8, {p4(GQ+12)}, {sp(T+8)} offset:128 sc1")
    for c in range(2):
        for q in range(4): A(f"v_mov_b32 v{120+4*c+q}, v{GQ+8*c+2*q}")
    A(f"s_lshl_b32 s{T+1}, s{S_WAVE}, 11")
    A("v_lshlrev_b32 v4, 5, v0")
    A(f"v_add_u32 v4, s{T+1}, v4")
    A(f"v_add_u32 v4, {L_KVL}, v4")
    A(f"ds_write_b128 v4, {p4(120)}")
    A(f"ds_write_b128 v4, {p4(124)} offset:16")
    stamp(3)
    if "hearly" not in OPTS:
        Lh = A.newlabel("L_noh")
        A(f"s_cmp_ge_u32 s{S_WAVE}, 4")
        A(f"s_cbranch_scc1 {Lh}")
        srd(SRD_V, S_H, 2359296)
        A("v_lshlrev_b32 v4, 4, v0")
        A(f"s_mul_i32 s74, s{S_WAVE}, {P_CH}")
        for q in range(4):
            A(f"s_add_u32 s{T+9}, s79, {1024*q}")
            A(f"s_add_u32 s{T+10}, s74, {32 + 1024*q}")
            dma(4, SRD_V, f"s{T+9}", f"s{T+10}")
        A.label(Lh)
    A("s_waitcnt lgkmcnt(0)")
    A("s_barrier")
    stamp(4)
    tl(5, 7, 0)
    if "dbgA" in OPTS or "dbgB" in OPTS: A("s_branch L_fin")

class LdsQ:
    def __init__(self): self.q = []
    def issue(self, instr, tag=None):
        A(instr); self.q.append(tag)
    def wait(self, tag):
        idxs = [i for i, t in enumerate(self.q) if t == tag]
        if not idxs: return
        last = idxs[-1]
        n = len(self.q) - 1 - last
        A(f"s_waitcnt lgkmcnt({min(n, 15)})")
        if n <= 15: self.q = self.q[last+1:]
        else: self.q = self.q[len(self.q)-15:]

def conv_mfma_wave():
    T = S_T
    A(f"s_mul_i32 s75, s{S_WAVE}, {Q_CH}")
    A(f"s_add_u32 s75, s75, {L_Q}")
    for i in range(4): A(f"v_mov_b32 v{16+i}, 0")
    A("v_lshlrev_b32 v2, 4, v0")
    A("v_add_u32 v2, s74, v2")
    A("s_mov_b64 exec, 3")
    A(f"ds_write_b128 v2, {p4(16)}")
    A("s_mov_b64 exec, -1")
    A("v_lshrrev_b32 v2, 3, v0")
    A(f"v_mul_u32_u24 v2, {Q_CPY}, v2")
    A("v_and_b32 v3, 7, v0")
    A("v_lshl_add_u32 v2, v3, 4, v2")
    A("v_add_u32 v2, s75, v2")
    A("s_mov_b64 exec, 0xffffffff")
    A(f"ds_write_b128 v2, {p4(16)}")
    A("s_mov_b64 exec, -1")
    A("v_and_b32 v3, 3, v0")
    A("v_bfe_u32 v4, v0, 2, 2")
    A("v_sub_u32 v3, v3, v4")
    A("v_lshlrev_b32 v3, 3, v3")
    A("v_lshrrev_b32 v4, 4, v0")
    A("v_lshl_add_u32 v3, v4, 6, v3")
    A("v_add_u32 v3, s74, v3")
    A("v_add_u32 v3, 32, v3")
    A("s_waitcnt vmcnt(4) lgkmcnt(0)" if "hearly" in OPTS else "s_waitcnt vmcnt(0) lgkmcnt(0)")
    def greg(e, s1): return 4*(8*e + s1)
    for s1 in range(8):
        for e in range(2):
            g = greg(e, s1)
            A(f"ds_read_b64_tr_b16 a[{g}:{g+1}], v3 offset:{512*s1+256*e+32}")
            A(f"ds_read_b64_tr_b16 a[{g+2}:{g+3}], v3 offset:{512*s1+256*e}")
        if s1 % 3 == 2: A("s_waitcnt lgkmcnt(4)")
    A("v_and_b32 v5, 15, v0")
    A("v_lshlrev_b32 v6, 3, v5")
    A("v_lshlrev_b32 v7, 4, v4")
    A("v_sub_u32 v6, v6, v7")
    A("v_add_u32 v6, s75, v6")
    A("v_add_u32 v6, 56, v6")
    A("v_lshlrev_b32 v7, 6, v5")
    A("v_lshl_add_u32 v7, v4, 4, v7")
    A(f"s_lshl_b32 s{T+1}, s78, 13")
    A(f"v_add_u32 v7, s{T+1}, v7")
    A(f"v_add_u32 v11, 4096, v7")
    add64(62, S_WS, WS_YG)
    A("v_subrev_u32 v8, 16, v0")
    A("v_add_u32 v9, 47, v0")
    A("v_cmp_gt_u32 vcc, 16, v0")
    A("s_nop 1")
    A("v_cndmask_b32 v8, v8, v9, vcc")
    A("v_mov_b32 v9, 63")
    A("v_cmp_eq_u32 vcc, 0, v0")
    A("s_nop 1")
    A("v_cndmask_b32 v8, v8, v9, vcc")
    A("v_lshlrev_b32 v8, 2, v8")
    A(f"v_mov_b32 v9, {L_MC}")
    A("v_mov_b32 v10, 1")
    A(f"s_mov_b64 {sp(66)}, 1")
    add64(64, S_WS, WS_KVT)
    A(f"s_lshl_b32 s{T+1}, s78, 13")
    A("v_lshlrev_b32 v1, 4, v0")
    A(f"v_add_u32 v1, s{T+1}, v1")
    A("v_add_u32 v12, 4096, v1")
    A("v_lshrrev_b32 v2, 4, v0")
    A("v_lshlrev_b32 v2, 4, v2")
    A("v_and_b32 v13, 7, v0")
    A("v_lshl_add_u32 v2, v13, 1, v2")
    A("v_bfe_u32 v13, v0, 3, 1")
    A("v_add_u32 v2, v2, v13")
    A("v_lshlrev_b32 v2, 1, v2")
    A("v_add_u32 v2, s75, v2")
    A("v_and_b32 v13, 15, v0")
    A("v_lshlrev_b32 v13, 9, v13")
    A(f"v_add_u32 v13, s{T+1}, v13")
    A("v_add_u32 v13, 504, v13")
    stamp(5)
    KV = 16
    def ldkv():
        for q in range(8):
            A(f"global_load_dwordx4 {p4(KV+4*q)}, v{1 if q < 4 else 12}, {sp(64)} offset:{1024*(q % 4)} sc1")
    kvtags = [KV+4*q+1+2*h for q in range(8) for h in range(2)]
    Lok = A.newlabel("L_kvok")
    if "spec" in OPTS:
        ldkv()
        A("s_waitcnt vmcnt(0)")
        tag_acc(kvtags, 14, 48)
        A("v_cmp_ne_u32 vcc, 0, v14")
        A("s_nop 3")
        A("s_cmp_eq_u64 vcc, 0")
        A(f"s_cbranch_scc1 {Lok}")
    tagcheck_loop(lambda: A(f"global_load_dwordx2 v[14:15], v13, {sp(64)} sc1"), [15], 16, 17, sleep=1)
    stamp(6)
    tl(6, 7, 0)
    tagcheck_loop(ldkv, kvtags, 14, 48, sleep=1)
    A.label(Lok)
    for q in range(8):
        r = KV + 4*q
        o = 128 + 128*q
        A(f"ds_write_b16 v2, v{r} offset:{0*Q_CPY+o}")
        A(f"ds_write_b16_d16_hi v2, v{r} offset:{1*Q_CPY+o}")
        A(f"ds_write_b16 v2, v{r+2} offset:{2*Q_CPY+o}")
        A(f"ds_write_b16_d16_hi v2, v{r+2} offset:{3*Q_CPY+o}")
    A("s_waitcnt lgkmcnt(0)")
    for i in range(3): A(f"v_mov_b32 v{40+i}, 0")
    A(f"v_add_u32 v3, {Q_CPY}, v6"); A(f"v_add_u32 v4, {2*Q_CPY}, v6"); A(f"v_add_u32 v5, {3*Q_CPY}, v6")
    A(f"v_mov_b32 v45, s{S_NONCE}"); A(f"v_mov_b32 v47, s{S_NONCE}")
    stamp(7)
    tl(7, 7, 0)
    if "dry" in OPTS:
        A("s_mov_b32 s73, 0")
        A.label("L_stream")
    lq = LdsQ()
    classes = [(c1, sg, e) for c1 in range(8) for sg in range(4) for e in range(2)]
    FA = [6, 3, 4, 5]
    free = [("v", 48), ("v", 52), ("v", 56), ("v", 60)]
    fbuf = {}
    def rr(b): return f"{b[0]}[{b[1]}:{b[1]+3}]"
    def fread(k):
        c1, sg, e = classes[k]
        b = free.pop(0); fbuf[k] = b
        o = 16*c1 + 8*(1-e)
        lq.issue(f"ds_read2_b64 {rr(b)}, v{FA[sg]} offset0:{o} offset1:{o+1}", ("F", k))
    def acc(sg, t): return 64 + (sg*8 + t)*4
    def combine_ops(t):
        a0, a1, a2, a3 = acc(0, t), acc(1, t), acc(2, t), acc(3, t)
        ops = []
        C = 32
        P = 36 + 4*(t & 1)
        Pp = 36 + 4*((t+1) & 1)
        ops.append(lambda: A(f"v_add_f32 v{a0+1}, v{a0+1}, v{a1}"))
        ops.append(lambda: A(f"v_add_f32 v{a0+2}, v{a0+2}, v{a1+1}"))
        ops.append(lambda: A(f"v_add_f32 v{a0+3}, v{a0+3}, v{a1+2}"))
        ops.append(lambda: A(f"v_add_f32 v{C}, v{a1+3}, v{a2+2}"))
        ops.append(lambda: A(f"v_add_f32 v{a0+2}, v{a0+2}, v{a2}"))
        ops.append(lambda: A(f"v_add_f32 v{a0+3}, v{a0+3}, v{a2+1}"))
        ops.append(lambda: A(f"v_add_f32 v{C+1}, v{a2+3}, v{a3+2}"))
        ops.append(lambda: A(f"v_add_f32 v{C}, v{C}, v{a3+1}"))
        ops.append(lambda: lq.issue(f"ds_bpermute_b32 v{P+2}, v8, v{a3+3}", ("B", t)))
        ops.append(lambda: lq.issue(f"ds_bpermute_b32 v{P+1}, v8, v{C+1}", ("B", t)))
        ops.append(lambda: lq.issue(f"ds_bpermute_b32 v{P}, v8, v{C}", ("B", t)))
        ops.append(lambda: A(f"v_add_f32 v{a0+3}, v{a0+3}, v{a3}"))
        ops.append(lambda: lq.wait(("B", t)))
        for i in range(3):
            ops.append(lambda i=i: A(f"v_cndmask_b32 v{28+i}, v{P+i}, v{Pp+i}, {sp(66)}"))
        for i in range(3):
            ops.append(lambda i=i: A(f"v_add_f32 v{a0+i}, v{a0+i}, v{28+i}"))
        ops.append(lambda: A(f"v_cvt_pk_bf16_f32 v44, v{a0}, v{a0+1}"))
        ops.append(lambda: A(f"v_cvt_pk_bf16_f32 v46, v{a0+2}, v{a0+3}"))
        ops.append(lambda: A(f"global_store_dwordx4 v{7 if t < 4 else 11}, {p4(44)}, {sp(62)} offset:{1024*(t % 4)} sc1"))
        return ops
    nxt = 0
    LA = int(os.environ.get("LA", "5"))
    SLOTS = int(os.environ.get("SLOTS", "1"))
    def can_fread(k):
        return free and nxt < len(classes) and nxt - k < LA and len(lq.q) <= 13
    for _ in range(3):
        fread(nxt); nxt += 1
    pending = []
    k = 0
    total_m = sum(8*(8-c) for c in range(8))
    done_m = 0
    for c1 in range(8):
        nm_step = 8*(8-c1)
        if c1 > 0:
            assert not pending or True
            pending.extend(combine_ops(c1-1))
            free.extend([("a", greg(0, 8-c1)), ("a", greg(1, 8-c1))])
        mi = 0
        for sg in range(4):
            for e in range(2):
                while nxt <= k:
                    fread(nxt); nxt += 1
                lq.wait(("F", k))
                b = fbuf[k]
                for s1 in range(8-c1):
                    t = s1 + c1
                    d = acc(sg, t)
                    cin = "0" if (c1 == 0 and e == 0) else f"v[{d}:{d+3}]"
                    g = greg(e, s1)
                    A(f"v_mfma_f32_16x16x32_bf16 v[{d}:{d+3}], a[{g}:{g+3}], {rr(b)}, {cin}")
                    mi += 1; done_m += 1
                    rem_m = total_m - done_m
                    left_in_step = nm_step - mi
                    slots = SLOTS
                    if pending and mi >= 3:
                        need = len(pending) + (8 - (k % 8))
                        if left_in_step * SLOTS < need: slots = -(-need // max(1, left_in_step + 1))
                    used = 0
                    if can_fread(k) and (nxt - k <= 2 or not pending or mi < 3):
                        fread(nxt); nxt += 1; used += 1
                    while used < slots and pending and mi >= 3:
                        pending.pop(0)(); used += 1
                    if used < slots - 1 and can_fread(k):
                        fread(nxt); nxt += 1; used += 1
                free.append(b)
                k += 1
        while pending: pending.pop(0)()
    A("s_nop 7"); A("s_nop 1")
    for op in combine_ops(7): op()
    if "dry" in OPTS:
        A("s_cmp_eq_u32 s73, 1")
        A("s_cbranch_scc1 L_dry_ret")
    A("s_mov_b64 exec, 1")
    A("ds_add_u32 v9, v10")
    A("s_mov_b64 exec, -1")
    stamp(8)
    tl(8, 7, 0)

def lds_spin(addr_off, target, va, vb, sleep=1):
    T = S_T
    L = A.newlabel("L_ls")
    A(f"v_mov_b32 v{va}, {L_MC}")
    A(f"s_mov_b32 s{T+1}, 0")
    A.label(L)
    A(f"ds_read_b32 v{vb}, v{va} offset:{addr_off}")
    A("s_waitcnt lgkmcnt(0)")
    A(f"v_readfirstlane_b32 s{T}, v{vb}")
    A(f"s_add_u32 s{T+1}, s{T+1}, 1")
    A(f"s_cmp_ge_u32 s{T+1}, {SPIN_MAX*4}")
    A(f"s_cbranch_scc1 {L}_d")
    A(f"s_cmp_ge_u32 s{T}, {target}")
    A(f"s_cbranch_scc1 {L}_d")
    if sleep: A(f"s_sleep {sleep}")
    A(f"s_branch {L}")
    A.label(L + "_d")

def conv_helper_prep():
    T = S_T
    if "gupf" in OPTS:
        R0 = int(os.environ.get("PFROW", "144")); NR = (576 - R0) // 18
        assert NR % 4 == 0
        RW = NR // 4
        A(f"s_and_b32 s{T+1}, s{S_WG}, 7")
        A(f"s_mul_i32 s{T+1}, s{T+1}, 1152")
        A(f"s_lshr_b32 s{T+2}, s{S_WG}, 3")
        A(f"s_mul_i32 s{T+2}, s{T+2}, {NR}")
        A(f"s_mul_i32 s{T+3}, s72, {RW}")
        A(f"s_add_u32 s{T+2}, s{T+2}, s{T+3}")
        A(f"s_add_u32 s{T+2}, s{T+2}, {R0}")
        A(f"s_mul_i32 s{T+2}, s{T+2}, 9216")
        A(f"s_add_u32 s{T+1}, s{T+1}, s{T+2}")
        A("v_lshlrev_b32 v10, 4, v0")
        A(f"v_add_u32 v10, s{T+1}, v10")
        A("v_lshrrev_b32 v11, 3, v0")
        A("v_mul_u32_u24 v11, 9216, v11")
        A("v_and_b32 v12, 7, v0")
        A("v_lshl_add_u32 v11, v12, 4, v11")
        A(f"v_add_u32 v11, s{T+1}, v11")
        A("v_add_u32 v11, 1024, v11")
        ar = 16
        for base in (S_WGT, S_WUP):
            A("v_mov_b32 v13, v10")
            for r in range(RW):
                A(f"global_load_dwordx4 a[0:3], v13, {sp(base)} {NTP}")
                if r < RW - 1: A("v_add_u32 v13, 9216, v13")
            nl = 8*RW
            if nl < 64:
                A(f"s_mov_b32 exec_lo, {hex(min(nl, 32) and ((1 << min(nl, 32)) - 1))}")
                A(f"s_mov_b32 exec_hi, {hex((1 << (nl - 32)) - 1) if nl > 32 else '0'}")
            A(f"global_load_dwordx4 a[0:3], v11, {sp(base)} {NTP}")
            A("s_mov_b64 exec, -1")
        if "dpf" in OPTS:
            A(f"s_and_b32 s{T+1}, s{S_WG}, 7")
            A(f"s_mul_i32 s{T+1}, s{T+1}, {576*1152}")
            A(f"s_lshr_b32 s{T+2}, s{S_WG}, 3")
            A(f"s_mul_i32 s{T+2}, s{T+2}, 36864")
            A(f"s_add_u32 s{T+1}, s{T+1}, s{T+2}")
            A(f"s_mul_i32 s{T+2}, s72, 9216")
            A(f"s_add_u32 s{T+1}, s{T+1}, s{T+2}")
            A("v_lshlrev_b32 v19, 4, v0")
            A(f"v_add_u32 v19, s{T+1}, v19")
            DPF = []
            for i in range(9):
                DPF.append(f"global_load_dwordx4 a[0:3], v18, {sp(S_WD)} offset:{1024*(i%4)}")
            assert ar <= 124, ar
            global DPF_CODE
            DPF_CODE = DPF
    srd(SRD_Q, S_Q, 2359296)
    A(f"s_mul_i32 s{T+4}, s72, {4*9216}")
    A(f"s_mul_i32 s{T+6}, s72, {4*TBLK}")
    A(f"s_add_u32 s{T+6}, s{T+6}, {L_TQ}")
    for i in range(4):
        dma(3, SRD_Q, f"s{T+4}", f"s{T+6}", flag=NTQ)
        A(f"s_add_u32 s{T+4}, s{T+4}, 9216")
        A(f"s_add_u32 s{T+6}, s{T+6}, {TBLK}")
    if "dry" in OPTS:
        Ld = A.newlabel("L_nodry")
        A(f"s_cmp_lg_u32 s{S_WAVE}, 7")
        A(f"s_cbranch_scc1 {Ld}")
        A("v_mov_b32 v6, 0"); A("v_mov_b32 v7, 0"); A("v_mov_b32 v11, 0"); A("v_mov_b32 v8, 0")
        add64(62, S_WS, WS_YG)
        A(f"s_mov_b64 {sp(66)}, 1")
        A("s_mov_b32 s73, 1")
        A("s_mov_b64 exec, 0")
        A("s_branch L_stream")
        A.label("L_dry_ret")
        A("s_mov_b64 exec, -1")
        A.label(Ld)
    L4 = A.newlabel("L_h4"); L5 = A.newlabel("L_h5"); Le = A.newlabel("L_he")
    A(f"s_cmp_eq_u32 s{S_WAVE}, 4")
    A(f"s_cbranch_scc1 {L4}")
    A(f"s_cmp_eq_u32 s{S_WAVE}, 5")
    A(f"s_cbranch_scc1 {L5}")
    A(f"s_branch {Le}")
    A.label(L4)
    A(f"s_lshl_b32 s{T+1}, s77, 10")
    A("v_lshlrev_b32 v10, 4, v0")
    A(f"v_add_u32 v11, s{T+1}, v10")
    add64(T+2, S_WS, WS_SG)
    tagcheck_loop(lambda: A(f"global_load_dwordx4 {p4(12)}, v11, {sp(T+2)} sc1"), [13, 15], 16, 17, sleep=4)
    A("v_lshlrev_b32 v20, 16, v12"); A(f"v_and_b32 v21, s{S_MASK}, v12")
    A("v_lshlrev_b32 v22, 16, v14"); A(f"v_and_b32 v23, s{S_MASK}, v14")
    A("v_rcp_f32 v21, v21"); A("v_rcp_f32 v23, v23")
    A(f"v_add_u32 v10, {L_ST}, v10")
    A("s_nop 0")
    A(f"ds_write_b128 v10, {p4(20)}")
    A(f"s_branch {Le}")
    A.label(L5)
    A("v_and_b32 v10, 7, v0")
    A("v_lshlrev_b32 v11, 3, v10")
    add64(T+2, S_WS, WS_SEL)
    tagcheck_loop(lambda: A(f"global_load_dwordx2 v[12:13], v11, {sp(T+2)} sc1"), [13], 16, 17, sleep=4)
    A("v_and_b32 v12, 0x7ff, v12")
    A(f"s_lshl_b32 s{T+1}, s77, 7")
    A(f"v_subrev_u32 v12, s{T+1}, v12")
    A("v_cmp_gt_u32 vcc, 128, v12")
    A("v_or_b32 v13, 0x80, v10")
    A(f"v_add_u32 v12, {L_SELT}, v12")
    A("s_and_b32 vcc_lo, vcc_lo, 0xff")
    A("s_mov_b32 vcc_hi, 0")
    A("s_mov_b64 exec, vcc")
    Lk = A.newlabel("L_nsel")
    A(f"s_cbranch_execz {Lk}")
    A("ds_write_b8 v12, v13")
    A.label(Lk)
    A("s_mov_b64 exec, -1")
    A.label(Le)
    A("s_waitcnt vmcnt(0) lgkmcnt(0)")
    A(f"v_mov_b32 v10, {L_MC}")
    A("v_mov_b32 v11, 1")
    A("s_mov_b64 exec, 1")
    A("ds_add_u32 v10, v11 offset:4")
    A("s_mov_b64 exec, -1")
    stamp(5)
    if "dpf" in OPTS:
        for i, ins in enumerate(DPF_CODE):
            if i % 4 == 0: A(f"v_add_u32 v18, {4096*(i//4)}, v19")
            A(ins)
    lds_spin(0, 4, 10, 11, sleep=2)
    stamp(6)

def conv_epilogue():
    T = S_T
    A("; ---- epilogue ----")
    lds_spin(4, 4, 10, 11, sleep=1)
    A("v_and_b32 v2, 7, v0"); A("v_lshrrev_b32 v1, 3, v0")
    A(f"s_and_b32 s{T+1}, s{S_WAVE}, 1"); A(f"s_lshl_b32 s{T+1}, s{T+1}, 3")
    A(f"v_add_u32 v6, s{T+1}, v2")
    A(f"s_lshr_b32 s{T+2}, s{S_WAVE}, 1"); A(f"s_lshl_b32 s{T+2}, s{T+2}, 3")
    A(f"v_add_u32 v7, s{T+2}, v1")
    A(f"s_lshl_b32 s{T+1}, s76, 19")
    A(f"s_lshl_b32 s{T+2}, s77, 9")
    A(f"s_add_u32 s{T+1}, s{T+1}, s{T+2}")
    A("v_lshlrev_b32 v8, 14, v7")
    A("v_lshl_add_u32 v8, v6, 5, v8")
    A(f"v_add_u32 v8, s{T+1}, v8")
    A("v_add_u32 v9, 8192, v8")
    add64(62, S_WS, WS_YG)
    A(f"v_mul_u32_u24 v10, {TBLK}, v6")
    A("v_lshl_add_u32 v10, v7, 2, v10")
    A(f"v_add_u32 v11, {L_TQ}, v10")
    XR = 16
    for i in range(8): A(f"ds_read_b32 v{XR+i}, v11 offset:{128*i}")
    A(f"s_lshl_b32 s{T+1}, s{S_WAVE}, 11")
    A("v_lshlrev_b32 v12, 5, v0")
    A(f"v_add_u32 v12, s{T+1}, v12")
    A(f"v_add_u32 v12, {L_KVL}, v12")
    KV = 24
    A(f"ds_read_b128 {p4(KV)}, v12")
    A(f"ds_read_b128 {p4(KV+4)}, v12 offset:16")
    A("v_lshlrev_b32 v12, 6, v6")
    A(f"v_add_u32 v12, {L_ST}, v12")
    SR = 32
    for i in range(4): A(f"ds_read_b128 {p4(SR+4*i)}, v12 offset:{16*i}")
    A("v_lshlrev_b32 v12, 3, v6")
    A(f"v_add_u32 v12, {L_SELT}, v12")
    A("ds_read_b64 v[48:49], v12")
    A("v_lshlrev_b32 v13, 2, v7")
    A(f"v_add_u32 v13, {L_TAP+512}, v13")
    A("ds_read_b32 v50, v13")
    YR = 64
    def ld():
        A(f"global_load_dwordx4 {p4(YR)}, v8, {sp(62)} sc1")
        A(f"global_load_dwordx4 {p4(YR+4)}, v8, {sp(62)} offset:16 sc1")
        A(f"global_load_dwordx4 {p4(YR+8)}, v9, {sp(62)} sc1")
        A(f"global_load_dwordx4 {p4(YR+12)}, v9, {sp(62)} offset:16 sc1")
    A("s_waitcnt lgkmcnt(0)")
    A(f"v_lshlrev_b32 v52, 16, v50"); A(f"v_and_b32 v53, s{S_MASK}, v50")
    XN, SS = 80, 96
    for i in range(8):
        m, rs = SR+2*i, SR+2*i+1
        A(f"v_lshlrev_b32 v{SS+2*i}, 16, v{XR+i}"); A(f"v_and_b32 v{SS+2*i+1}, s{S_MASK}, v{XR+i}")
        A(f"v_sub_f32 v{XN+2*i}, v{SS+2*i}, v{m}"); A(f"v_sub_f32 v{XN+2*i+1}, v{SS+2*i+1}, v{m}")
        A(f"v_mul_f32 v{XN+2*i}, v{XN+2*i}, v{rs}"); A(f"v_mul_f32 v{XN+2*i+1}, v{XN+2*i+1}, v{rs}")
        for c in range(2):
            kr = KV + 4*c + (i >> 1)
            t = 54 + c
            if i & 1: A(f"v_and_b32 v{t}, s{S_MASK}, v{kr}")
            else: A(f"v_lshlrev_b32 v{t}, 16, v{kr}")
            A(f"v_fma_f32 v{t}, v{t}, v{52+c}, 1.0")
            A(f"v_fma_f32 v{SS+2*i+c}, v{XN+2*i+c}, v{t}, v{SS+2*i+c}")
    A(f"v_add_u32 v11, {L_OT}, v10")
    A(f"s_lshl_b32 s{T+1}, s{S_WAVE}, 3")
    A(f"v_add_u32 v120, s{T+1}, v1")
    A("v_lshrrev_b32 v121, 3, v120")
    A(f"v_mul_u32_u24 v121, {TBLK}, v121")
    A("v_and_b32 v122, 7, v120")
    A("v_lshl_add_u32 v121, v122, 7, v121")
    A("v_lshl_add_u32 v121, v2, 4, v121")
    A(f"v_add_u32 v121, {L_OT}, v121")
    A(f"v_add_u32 v122, {L_SELT}, v120")
    A("ds_read_u8 v124, v122")
    A("ds_read_u8 v125, v122 offset:64")
    srd(SRD_O, S_OUT, 2359296)
    A(f"s_mul_i32 s{T+1}, s77, {128*1152}")
    A(f"s_lshl_b32 s{T+2}, s76, 7")
    A(f"s_add_u32 s{T+1}, s{T+1}, s{T+2}")
    A("v_mul_u32_u24 v122, 1152, v120")
    A("v_lshl_add_u32 v122, v2, 4, v122")
    A(f"v_add_u32 v122, s{T+1}, v122")
    A(f"v_add_u32 v123, {64*1152}, v122")
    A("s_waitcnt lgkmcnt(0)")
    for va, vs in ((122, 124), (123, 125)):
        A(f"v_lshlrev_b32 v{vs}, 24, v{vs}")
        A(f"v_and_b32 v{vs}, 0x80000000, v{vs}")
        A(f"v_or_b32 v{va}, v{va}, v{vs}")
    if "dbgE" in OPTS: stamp(5)
    tagcheck_loop(ld, [YR+2*j+1 for j in range(8)], 14, 52, sleep=1)
    if "dbgE" in OPTS: stamp(6)
    O = 112
    for i in range(8):
        for c in range(2):
            yr = YR + 8*c + 2*(i >> 1)
            t0 = 54 + c
            if i & 1: A(f"v_and_b32 v{t0}, s{S_MASK}, v{yr}")
            else: A(f"v_lshlrev_b32 v{t0}, 16, v{yr}")
            A(f"v_fma_f32 v{SS+2*i+c}, v{XN+2*i+c}, v{t0}, v{SS+2*i+c}")
        A(f"v_cvt_pk_bf16_f32 v{O+i}, v{SS+2*i}, v{SS+2*i+1}")
        A(f"ds_write_b32 v11, v{O+i} offset:{128*i}")
    Lx = A.newlabel("L_nt1")
    A("v_or_b32 v12, v48, v49")
    A("v_cmp_ne_u32 vcc, 0, v12")
    A("s_nop 3")
    A("s_cmp_eq_u64 vcc, 0")
    A(f"s_cbranch_scc1 {Lx}")
    add64(64, S_WS, WS_T1G)
    A(f"s_lshl_b32 s{T+1}, s76, 6")
    A("v_lshlrev_b32 v13, 1, v7")
    A(f"v_add_u32 v13, s{T+1}, v13")
    for i in range(8):
        Li = A.newlabel("L_t1i")
        A(f"v_bfe_u32 v12, v{48 + (i >> 2)}, {8*(i & 3)}, 8")
        A("v_cmp_lt_u32 vcc, 0x7f, v12")
        A(f"s_and_saveexec_b64 {sp(T+12)}, vcc")
        A(f"s_cbranch_execz {Li}")
        A("v_and_b32 v12, 7, v12")
        A("v_mul_u32_u24 v12, 576, v12")
        A("v_add_u32 v12, v12, v13")
        A("v_lshlrev_b32 v12, 3, v12")
        A(f"v_sub_f32 v56, v{SS+2*i}, v{XN+2*i}")
        A(f"v_mov_b32 v57, s{S_NONCE}")
        A(f"v_sub_f32 v58, v{SS+2*i+1}, v{XN+2*i+1}")
        A(f"v_mov_b32 v59, s{S_NONCE}")
        A(f"global_store_dwordx4 v12, {p4(56)}, {sp(64)} sc1")
        A.label(Li)
        A(f"s_mov_b64 exec, {sp(T+12)}")
    A.label(Lx)
    A("s_waitcnt lgkmcnt(0)")
    A("s_barrier")
    A(f"ds_read_b128 {p4(16)}, v121")
    A(f"ds_read_b128 {p4(20)}, v121 offset:{8*TBLK}")
    A("s_waitcnt lgkmcnt(1)")
    A(f"buffer_store_dwordx4 {p4(16)}, v122, s[{SRD_O}:{SRD_O+3}], 0 offen " + os.environ.get("OUTF", "sc1"))
    A("s_waitcnt lgkmcnt(0)")
    A(f"buffer_store_dwordx4 {p4(20)}, v123, s[{SRD_O}:{SRD_O+3}], 0 offen " + os.environ.get("OUTF", "sc1"))
    stamp(9)
    tl(9, 7, 0)

def conv_wg():
    conv_tile()
    A(f"s_cmp_ge_u32 s{S_WAVE}, 4")
    A("s_cbranch_scc1 L_helper")
    conv_mfma_wave()
    A("s_branch L_epi")
    A.label("L_helper")
    conv_helper_prep()
    A.label("L_epi")
    conv_epilogue()
    A("s_branch L_fin")

M_WG = 0
M_WU = 73728
M_XS = 147456
XS_RS = 1168
M_H = M_XS + 8*XS_RS
H_RS = 144
M_GU = M_H + 8*H_RS
M_RED = M_GU
M_MISC = M_GU + 4096
M_END = M_MISC + 160
M_LIST = 0
S_DUMP = 16384

def moe_dma():
    T = S_T
    srd(SRD_K, S_WGT, 5308416)
    srd(SRD_V, S_WUP, 5308416)
    A("v_lshrrev_b32 v1, 3, v0")
    A("v_and_b32 v2, 7, v0")
    A("v_bfe_u32 v3, v0, 4, 1")
    A(f"s_and_b32 s{T+1}, s{S_WAVE}, 1")
    A(f"s_lshl_b32 s{T+1}, s{T+1}, 1")
    A(f"v_add_u32 v3, s{T+1}, v3")
    A("v_lshlrev_b32 v3, 1, v3")
    A("v_xor_b32 v2, v2, v3")
    A("v_mul_u32_u24 v1, 9216, v1")
    A("v_lshl_add_u32 v1, v2, 4, v1")
    A(f"s_lshl_b32 s{T+1}, s70, 7")
    A(f"v_add_u32 v1, s{T+1}, v1")
    A(f"s_mul_i32 s{T+3}, s{S_WAVE}, 73728")
    A(f"s_lshl_b32 s{T+4}, s{S_WAVE}, 10")
    A(f"s_mov_b32 s{T+5}, 0")
    L = A.newlabel("L_dma")
    A.label(L)
    A(f"s_add_u32 m0, s{T+4}, {M_WG}")
    A("s_nop 0")
    A(f"buffer_load_dwordx4 v1, s[{SRD_K}:{SRD_K+3}], s{T+3} offen {NTW} lds")
    A(f"s_add_u32 m0, s{T+4}, {M_WU}")
    A(f"s_add_u32 s{T+5}, s{T+5}, 1")
    A(f"buffer_load_dwordx4 v1, s[{SRD_V}:{SRD_V+3}], s{T+3} offen {NTW} lds")
    A(f"s_add_u32 s{T+3}, s{T+3}, {8*73728}")
    A(f"s_add_u32 s{T+4}, s{T+4}, {8*1024}")
    A(f"s_cmp_lt_u32 s{T+5}, 9")
    A(f"s_cbranch_scc1 {L}")

def moe_sel_wait():
    T = S_T
    A(f"s_lshl_b32 s{T+1}, s{S_WAVE}, 3")
    A(f"s_add_u32 s{T+1}, s{T+1}, {WS_SEL}")
    A(f"v_mov_b32 v3, s{T+1}")
    A("v_mov_b32 v4, 0")
    L = A.newlabel("L_sw"); Ld = A.newlabel("L_swd")
    A(f"s_mov_b32 s{T}, 0")
    A.label(L)
    A(f"global_load_dwordx2 v[16:17], v3, {sp(S_WS)} sc1")
    A(f"global_load_dword v30, v4, {sp(S_DBG)} sc1")
    A("s_waitcnt vmcnt(0)")
    A(f"v_readfirstlane_b32 s{S_NONCE}, v30")
    A(f"v_readfirstlane_b32 s{T+2}, v17")
    A(f"s_add_u32 s{T}, s{T}, 1")
    A(f"s_cmp_ge_u32 s{T}, {SPIN_MAX}")
    A(f"s_cbranch_scc1 {Ld}")
    A(f"s_cmp_eq_u32 s{S_NONCE}, 0")
    A(f"s_cbranch_scc1 {L}_s")
    A(f"s_cmp_eq_u32 s{T+2}, s{S_NONCE}")
    A(f"s_cbranch_scc1 {Ld}")
    A.label(L + "_s")
    A("s_sleep 3")
    A(f"s_branch {L}")
    A.label(Ld)

def moe_row_loads():
    T = S_T
    A("v_and_b32 v18, 0x7ff, v16")
    A("v_mul_u32_u24 v20, 1152, v18")
    A("v_and_b32 v21, 31, v0")
    A("v_mul_u32_u24 v21, 36, v21")
    A("v_add_u32 v20, v20, v21")
    A(f"global_load_dwordx4 {p4(24)}, v20, {sp(S_Q)}")
    A(f"global_load_dwordx4 {p4(28)}, v20, {sp(S_Q)} offset:16")
    A(f"global_load_dword v32, v20, {sp(S_Q)} offset:32")
    A("v_lshlrev_b32 v22, 3, v18")
    A(f"v_add_u32 v22, {WS_SG}, v22")
    A(f"global_load_dwordx2 v[40:41], v22, {sp(S_WS)} sc1")

def moe_xs_compute():
    T = S_T
    L = A.newlabel("L_sg"); Ld = A.newlabel("L_sgd")
    A(f"s_mov_b32 s{T}, 0")
    A.label(L)
    A(f"v_readfirstlane_b32 s{T+2}, v41")
    A(f"s_add_u32 s{T}, s{T}, 1")
    A(f"s_cmp_eq_u32 s{T+2}, s{S_NONCE}")
    A(f"s_cbranch_scc1 {Ld}")
    A(f"s_cmp_ge_u32 s{T}, {SPIN_MAX}")
    A(f"s_cbranch_scc1 {Ld}")
    A(f"global_load_dwordx2 v[40:41], v22, {sp(S_WS)} sc1")
    A("s_waitcnt vmcnt(0)")
    A(f"s_branch {L}")
    A.label(Ld)
    A(f"v_lshlrev_b32 v44, 16, v40")
    A(f"v_and_b32 v45, s{S_MASK}, v40")
    A("v_rcp_f32 v46, v45")
    A(f"v_and_b32 v52, s{S_MASK}, v16")
    A("v_fma_f32 v47, -v45, v46, 1.0")
    A("v_fma_f32 v46, v47, v46, v46")
    A(f"v_mul_f32 v52, 0x{f32bits(-1.4426950408889634):08x}, v52")
    A("v_exp_f32 v52, v52")
    for i in range(9):
        r = 24 + i
        t = 48 + 2*(i & 1)
        A(f"v_lshlrev_b32 v{t}, 16, v{r}")
        A(f"v_and_b32 v{t+1}, s{S_MASK}, v{r}")
        A(f"v_pk_add_f32 {p2(t)}, {p2(t)}, v[44:45] op_sel_hi:[1,0] neg_lo:[0,1] neg_hi:[0,1]")
        rnd(t); rnd(t+1)
        A(f"v_pk_mul_f32 {p2(t)}, {p2(t)}, v[46:47] op_sel_hi:[1,0]")
        A(f"v_cvt_pk_bf16_f32 v{r}, v{t}, v{t+1}")
    A("v_add_f32 v52, 1.0, v52")
    A("v_rcp_f32 v52, v52")
    A(f"s_mul_i32 s{T+4}, s{S_WAVE}, {XS_RS}")
    A(f"s_add_u32 s{T+4}, s{T+4}, {M_XS}")
    A("v_add_u32 v21, s%d, v21" % (T+4))
    rnd(52)
    A("s_mov_b64 exec, 0xffffffff")
    A("ds_write2_b32 v21, v24, v25 offset0:0 offset1:1")
    A("ds_write2_b32 v21, v26, v27 offset0:2 offset1:3")
    A("ds_write2_b32 v21, v28, v29 offset0:4 offset1:5")
    A("ds_write2_b32 v21, v30, v31 offset0:6 offset1:7")
    A("ds_write_b32 v21, v32 offset:32")
    A(f"s_lshl_b32 s{T+4}, s{S_WAVE}, 2")
    A(f"s_add_u32 s{T+4}, s{T+4}, {M_MISC+32}")
    A(f"v_mov_b32 v53, s{T+4}")
    A("s_mov_b64 exec, 1")
    A("ds_write_b32 v53, v16")
    A("ds_write_b32 v53, v52 offset:32")
    A("s_mov_b64 exec, -1")
    A(f"s_lshl_b32 s{T+1}, s{S_WAVE}, 6")
    A(f"v_add_u32 v1, s{T+1}, v0")

DRA, DRB = 64, 96
def moe_down_loads():
    T = S_T
    A("v_lshrrev_b32 v6, 4, v0")
    A("v_mul_u32_u24 v5, 9216, v6")
    A("v_and_b32 v6, 15, v0")
    A("v_lshl_add_u32 v5, v6, 3, v5")
    A(f"s_mul_i32 s{T+1}, s70, 73728")
    A(f"s_lshl_b32 s{T+2}, s{S_WAVE}, 7")
    A(f"s_add_u32 s{T+1}, s{T+1}, s{T+2}")
    A(f"v_add_u32 v5, s{T+1}, v5")
    srd(SRD_Q, S_WD, 5308416)
    def panel(R, extra):
        for ks in range(2):
            for jj in range(8):
                so = 36864*ks + 4608*(jj//4) + extra
                A(f"s_mov_b32 s{T+3}, {so}")
                r = R + 16*ks + 2*jj
                A(f"buffer_load_dwordx2 {p2(r)}, v5, s[{SRD_Q}:{SRD_Q+3}], s{T+3} offen offset:{1152*(jj%4)} {NTD}")
    panel(DRA, 0)
    L = A.newlabel("L_np8")
    A(f"s_cmp_lg_u32 s{S_WAVE}, 0")
    A(f"s_cbranch_scc1 {L}")
    panel(DRB, 1024)
    A.label(L)

def down_perm(R, F):
    for ks in range(2):
        for e in range(4):
            sel = S_SELLO if (e & 1) == 0 else S_SELHI
            for q in range(4):
                A(f"v_perm_b32 v{F+16*ks+4*e+q}, v{R+16*ks+2*(2*q+1)+e//2}, v{R+16*ks+2*(2*q)+e//2}, s{sel}")

def moe_gateup_addr():
    T = S_T
    A(f"s_lshr_b32 s{T+1}, s{S_WAVE}, 2")
    A(f"s_and_b32 s{T+2}, s{S_WAVE}, 3")
    A("v_lshrrev_b32 v6, 4, v0")
    A("v_bfe_u32 v7, v0, 2, 2")
    A("v_and_b32 v8, 3, v0")
    A("v_lshrrev_b32 v9, 1, v7")
    A("v_and_b32 v10, 1, v6")
    A("v_lshl_add_u32 v9, v10, 1, v9")
    A("v_lshlrev_b32 v9, 1, v9")
    A("v_lshrrev_b32 v10, 1, v8")
    A(f"s_lshl_b32 s{T+3}, s{T+2}, 1")
    A(f"v_add_u32 v10, s{T+3}, v10")
    A("v_xor_b32 v10, v10, v9")
    A("v_lshlrev_b32 v34, 10, v6")
    A("v_lshl_add_u32 v34, v7, 7, v34")
    A("v_lshl_add_u32 v34, v10, 4, v34")
    A("v_and_b32 v8, 1, v8")
    A("v_lshl_add_u32 v34, v8, 3, v34")
    A(f"s_mul_i32 s{T+3}, s{T+1}, {M_WU}")
    A(f"v_add_u32 v34, s{T+3}, v34")
    A(f"v_add_u32 v35, {4096*9}, v34")

def gu_areg(t):
    return f"v[{128+4*t}:{128+4*t+3}]" if t < 16 else f"a[{4*(t-16)}:{4*(t-16)+3}]"
def gu_areg2(t, h):
    if t < 16: return f"v[{128+4*t+2*h}:{128+4*t+2*h+1}]"
    return f"a[{4*(t-16)+2*h}:{4*(t-16)+2*h+1}]"
def moe_gateup_preload():
    for t in range(18):
        a, o = (34, 4096*t) if t < 9 else (35, 4096*(t-9))
        A(f"ds_read_b64_tr_b16 {gu_areg2(t,0)}, v{a} offset:{o}")
        A(f"ds_read_b64_tr_b16 {gu_areg2(t,1)}, v{a} offset:{o+512}")
        if t % 6 == 5: A("s_waitcnt lgkmcnt(2)")

def moe_gateup():
    T = S_T
    A(f"s_lshr_b32 s{T+1}, s{S_WAVE}, 2")
    A(f"s_and_b32 s{T+2}, s{S_WAVE}, 3")
    A("v_lshrrev_b32 v6, 4, v0")
    A("v_and_b32 v3, 7, v0")
    A(f"v_mul_u32_u24 v3, {XS_RS}, v3")
    A("v_lshl_add_u32 v3, v6, 4, v3")
    A(f"v_add_u32 v3, {M_XS}, v3")
    B0 = 8
    def rd(t):
        b = B0 + 4*(t % 12)
        A(f"ds_read_b128 a[{b}:{b+3}], v3 offset:{64*t}")
    for t in range(12): rd(t)
    for t in range(18):
        rem = min(17, t+11) - t
        A(f"s_waitcnt lgkmcnt({min(rem, 15)})")
        b = B0 + 4*(t % 12)
        acc = 8 + 4*(t & 1)
        cin = "0" if t < 2 else f"v[{acc}:{acc+3}]"
        A(f"v_mfma_f32_16x16x32_bf16 v[{acc}:{acc+3}], {gu_areg(t)}, a[{b}:{b+3}], {cin}")
        if t + 12 < 18: rd(t+12)
    A("v_and_b32 v3, 15, v0")
    A("v_lshlrev_b32 v4, 8, v3")
    A("v_lshl_add_u32 v4, v6, 4, v4")
    A(f"s_lshl_b32 s{T+3}, s{T+1}, 11")
    A(f"s_lshl_b32 s{T+4}, s{T+2}, 6")
    A(f"s_add_u32 s{T+3}, s{T+3}, s{T+4}")
    A(f"s_add_u32 s{T+3}, s{T+3}, {M_GU}")
    A(f"v_add_u32 v4, s{T+3}, v4")
    A("v_cmp_gt_u32 vcc, 8, v3")
    A(f"s_and_saveexec_b64 {sp(T+12)}, vcc")
    A("s_nop 1")
    A("v_pk_add_f32 v[8:9], v[8:9], v[12:13]")
    A("v_pk_add_f32 v[10:11], v[10:11], v[14:15]")
    A(f"ds_write_b128 v4, {p4(8)}")
    A(f"s_mov_b64 exec, {sp(T+12)}")

def moe_h_and_down_stage():
    T = S_T
    A("v_lshlrev_b32 v2, 2, v1")
    A(f"v_add_u32 v2, {M_GU}, v2")
    A("ds_read_b32 v8, v2")
    A("ds_read_b32 v9, v2 offset:2048")
    A("v_lshrrev_b32 v3, 6, v1")
    A(f"v_mul_u32_u24 v3, {H_RS}, v3")
    A("v_lshl_add_u32 v3, v0, 1, v3")
    A(f"v_add_u32 v3, {M_H}, v3")
    A("s_waitcnt lgkmcnt(0)")
    rnd(8); rnd(9)
    A(f"v_mul_f32 v10, 0x{f32bits(-1.4426950408889634):08x}, v8")
    A("v_exp_f32 v10, v10")
    A("s_nop 0")
    A("v_add_f32 v10, 1.0, v10")
    A("v_rcp_f32 v10, v10")
    A("s_nop 0")
    A("v_mul_f32 v10, v8, v10")
    rnd(10)
    A("v_mul_f32 v10, v10, v9")
    A("v_cvt_pk_bf16_f32 v10, v10, v10")
    A("ds_write_b16 v3, v10")
    A("s_waitcnt vmcnt(0)")
    down_perm(DRA, 32)
    L = A.newlabel("L_np8b")
    A(f"s_cmp_lg_u32 s{S_WAVE}, 0")
    A(f"s_cbranch_scc1 {L}")
    down_perm(DRB, 64)
    A.label(L)

def moe_down():
    T = S_T
    A("v_and_b32 v2, 7, v0")
    A(f"v_mul_u32_u24 v2, {H_RS}, v2")
    A("v_lshrrev_b32 v6, 4, v0")
    A("v_lshl_add_u32 v2, v6, 4, v2")
    A(f"v_add_u32 v2, {M_H}, v2")
    A(f"ds_read_b128 {p4(16)}, v2")
    A(f"ds_read_b128 {p4(20)}, v2 offset:64")
    A("v_and_b32 v4, 15, v0")
    A("v_lshlrev_b32 v5, 4, v4")
    A("v_lshl_add_u32 v5, v6, 9, v5")
    A(f"s_mul_i32 s{T+1}, s70, 18432")
    A(f"s_lshl_b32 s{T+2}, s{S_WAVE}, 11")
    A(f"s_add_u32 s{T+1}, s{T+1}, s{T+2}")
    A(f"v_add_u32 v5, s{T+1}, v5")
    add64(T+2, S_WS, WS_PART)
    A(f"s_mov_b32 s{T+4}, 0x07060503"); A(f"s_mov_b32 s{T+5}, 0x06050302"); A(f"s_mov_b32 s{T+6}, 0x05030201")
    A("v_cmp_gt_u32 vcc, 8, v4")
    A(f"s_mov_b64 {sp(T+12)}, vcc")
    A("s_waitcnt lgkmcnt(0)")
    def panel(F, ACC, G, vaddr):
        for e in range(4):
            A(f"v_mfma_f32_16x16x32_bf16 {p4(ACC+4*e)}, {p4(F+4*e)}, {p4(16)}, 0")
        for e in range(4):
            A(f"v_mfma_f32_16x16x32_bf16 {p4(ACC+4*e)}, {p4(F+16+4*e)}, {p4(20)}, {p4(ACC+4*e)}")
        A("s_nop 7"); A("s_nop 1")
        for r in range(4):
            g = G + 4*r
            a, b, c, d = ACC+r, ACC+4+r, ACC+8+r, ACC+12+r
            A(f"v_perm_b32 v{g}, v{a}, v{b}, s{T+4}")
            A(f"v_perm_b32 v{g+1}, v{b}, v{c}, s{T+5}")
            A(f"v_perm_b32 v{g+2}, v{c}, v{d}, s{T+6}")
            A(f"v_mov_b32 v{g+3}, s{S_NONCE}")
        A(f"s_mov_b64 exec, {sp(T+12)}")
        for r in range(4):
            A(f"global_store_dwordx4 v{vaddr}, {p4(G+4*r)}, {sp(T+2)} offset:{128*r} sc1")
        A("s_mov_b64 exec, -1")
    panel(32, 96, 112, 5)
    L = A.newlabel("L_np8c")
    A(f"s_cmp_lg_u32 s{S_WAVE}, 0")
    A(f"s_cbranch_scc1 {L}")
    A(f"v_add_u32 v7, {8*2048}, v5")
    panel(64, 96, 32, 7)
    A.label(L)

def moe_reduce():
    T = S_T
    A("v_lshrrev_b32 v6, 4, v0")
    A(f"s_mul_i32 s{T+1}, s{S_WAVE}, 9")
    A(f"v_add_u32 v1, s{T+1}, v6")
    A(f"v_mul_u32_u24 v1, 18432, v1")
    A("v_and_b32 v2, 15, v0")
    A("v_lshl_add_u32 v1, v2, 4, v1")
    A(f"s_lshl_b32 s{T+1}, s70, 8")
    A(f"v_add_u32 v1, s{T+1}, v1")
    A(f"v_add_u32 v3, {4*18432}, v1")
    A(f"v_mul_u32_u24 v4, 18432, v6")
    A(f"v_sub_u32 v4, v1, v4")
    A(f"v_add_u32 v4, {8*18432}, v4")
    A("v_lshrrev_b32 v50, 2, v0")
    A("v_and_b32 v51, 3, v0")
    A(f"s_lshl_b32 s{T+1}, s70, 4")
    A(f"v_add_u32 v52, s{T+1}, v50")
    A("v_and_b32 v53, 7, v52")
    A("v_lshrrev_b32 v54, 3, v52")
    A("v_lshl_add_u32 v54, v54, 2, v51")
    A("v_mul_u32_u24 v55, 576, v53")
    A("v_add_u32 v55, v55, v54")
    A("v_lshlrev_b32 v55, 3, v55")
    A(f"v_add_u32 v55, {WS_T1G}, v55")
    add64(T+2, S_WS, WS_PART)
    def ld():
        A(f"global_load_dwordx4 {p4(16)}, v1, {sp(T+2)} sc1")
        A(f"global_load_dwordx4 {p4(20)}, v3, {sp(T+2)} sc1")
        A(f"global_load_dwordx4 {p4(24)}, v4, {sp(T+2)} sc1")
    tagcheck_loop(ld, [19, 23, 27], 10, 12, sleep=1)
    stamp(8)
    tl(14, 151, 0)
    A(f"s_mov_b32 s{T+4}, 0x0403020c"); A(f"s_mov_b32 s{T+5}, 0x0504030c"); A(f"s_mov_b32 s{T+6}, 0xffffff00")
    U = 32
    for i in range(3):
        g = 16 + 4*i; u = U + 4*i
        A(f"v_and_b32 v{u}, s{T+6}, v{g}")
        A(f"v_perm_b32 v{u+1}, v{g}, v{g+1}, s{T+4}")
        A(f"v_perm_b32 v{u+2}, v{g+1}, v{g+2}, s{T+5}")
        A(f"v_lshlrev_b32 v{u+3}, 8, v{g+2}")
    for r in range(4):
        A(f"v_add_f32 v{U+r}, v{U+r}, v{U+4+r}")
    for swap in ("v_permlane32_swap_b32", "v_permlane16_swap_b32"):
        for r in range(4): A(f"v_mov_b32 v{44+r}, v{U+r}")
        A("s_nop 1")
        for r in range(4): A(f"{swap} v{U+r}, v{44+r}")
        for r in range(4): A(f"v_add_f32 v{U+r}, v{U+r}, v{44+r}")
    for r in range(4):
        A(f"v_add_f32 v{U+r}, v{U+r}, v{U+8+r}")
    A(f"s_lshl_b32 s{T+1}, s{S_WAVE}, 8")
    A("v_lshlrev_b32 v5, 4, v2")
    A(f"v_add_u32 v5, s{T+1}, v5")
    A(f"v_add_u32 v5, {M_RED}, v5")
    A("s_mov_b64 exec, 0xffff")
    A(f"ds_write_b128 v5, {p4(U)}")
    A("s_mov_b64 exec, -1")
    A("s_waitcnt lgkmcnt(0)")
    A("s_barrier")
    L = A.newlabel("L_nofin")
    A(f"s_cmp_lg_u32 s{S_WAVE}, 0")
    A(f"s_cbranch_scc1 {L}")
    A("v_lshlrev_b32 v6, 4, v50")
    A("v_lshl_add_u32 v6, v51, 2, v6")
    A(f"v_add_u32 v6, {M_RED}, v6")
    for w in range(8): A(f"ds_read_b32 v{16+w}, v6 offset:{256*w}")
    A(f"v_mul_u32_u24 v7, {XS_RS}, v53")
    A("v_lshl_add_u32 v7, v54, 1, v7")
    A(f"v_add_u32 v7, {M_XS}, v7")
    A("ds_read_u16 v24, v7")
    A("v_lshlrev_b32 v8, 2, v53")
    A(f"v_add_u32 v8, {M_MISC}, v8")
    A("ds_read_b32 v25, v8 offset:32")
    A("ds_read_b32 v26, v8 offset:64")
    A("v_mov_b32 v5, v54")
    A("s_waitcnt lgkmcnt(0)")
    T1POLL = True
    A("v_add_f32 v16, v16, v17"); A("v_add_f32 v18, v18, v19"); A("v_add_f32 v20, v20, v21"); A("v_add_f32 v22, v22, v23")
    A("v_add_f32 v16, v16, v18"); A("v_add_f32 v20, v20, v22"); A("v_add_f32 v16, v16, v20")
    rnd(16)
    A("v_mul_f32 v16, v16, v26")
    rnd(16)
    A("v_lshlrev_b32 v24, 16, v24")
    A("v_add_f32 v16, v24, v16")
    rnd(16)
    A("v_and_b32 v25, 0x7ff, v25")
    A("v_mul_u32_u24 v25, 1152, v25")
    A("v_lshl_add_u32 v25, v5, 1, v25")
    tagcheck_loop(lambda: A(f"global_load_dwordx2 v[28:29], v55, {sp(S_WS)} sc1"), [29], 10, 12, sleep=0)
    A("v_add_f32 v16, v28, v16")
    A("v_cvt_pk_bf16_f32 v16, v16, v16")
    A(f"global_store_short v25, v16, {sp(S_OUT)}")
    A.label(L)

def lds_init_list():
    T = S_T
    A(f"s_lshl_b32 s{T+1}, s{S_WAVE}, 10")
    A("v_lshlrev_b32 v110, 4, v0")
    A(f"v_add_u32 v111, s{T+1}, v110")
    A(f"v_add_u32 v111, {M_LIST}, v111")
    for i in range(4): A(f"v_mov_b32 v{112+i}, 0xff800000")
    A(f"ds_write_b128 v111, {p4(112)}")
    L0 = A.newlabel("L_ni")
    A(f"s_cmp_lg_u32 s{S_WAVE}, 0")
    A(f"s_cbranch_scc1 {L0}")
    A(f"v_add_u32 v111, {M_LIST+8192}, v110")
    A("s_mov_b64 exec, 0xf")
    A(f"ds_write_b128 v111, {p4(112)}")
    A("s_mov_b64 exec, -1")
    for i in range(4): A(f"v_mov_b32 v{116+i}, 0")
    A(f"v_add_u32 v111, {M_MISC}, v110")
    A("s_mov_b64 exec, 0x3ff")
    A(f"ds_write_b128 v111, {p4(116)}")
    A("s_mov_b64 exec, -1")
    A.label(L0)

def sel_top8():
    T = S_T
    A(f"s_lshl_b32 s{T+1}, s{S_WAVE}, 6")
    A(f"v_add_u32 v1, s{T+1}, v0")
    A("v_lshlrev_b32 v2, 5, v1")
    add64(T+2, S_WS, WS_RG)
    K = 16
    def ld():
        for i in range(2):
            A(f"global_load_dwordx4 {p4(K+4*i)}, v2, {sp(T+2)} offset:{16*i} sc1")
    tagcheck_loop(ld, [K+2*i+1 for i in range(4)], 10, 12, sleep=1)
    stamp(5)
    tl(10, 255, 0)
    keys = [K+2*i for i in range(4)]
    A(f"v_max3_f32 v40, v{keys[0]}, v{keys[1]}, v{keys[2]}")
    A(f"v_max_f32 v40, v40, v{keys[3]}")
    for sh in (8, 4, 2, 1):
        A("s_nop 1")
        A(f"v_max_f32_dpp v40, v40, v40 row_ror:{sh} row_mask:0xf bank_mask:0xf")
    A("s_nop 1")
    A(f"v_readlane_b32 s{T+4}, v40, 16")
    A(f"v_readlane_b32 s{T+5}, v40, 32")
    A(f"v_readlane_b32 s{T+6}, v40, 48")
    A("s_nop 1")
    A(f"v_max_f32 v40, s{T+4}, v40")
    A(f"v_max_f32 v40, s{T+5}, v40")
    A(f"v_max_f32 v40, s{T+6}, v40")
    A(f"s_lshl_b32 s{T+4}, s{S_WAVE}, 2")
    A(f"s_add_u32 s{T+4}, s{T+4}, {M_MISC+96}")
    A(f"v_mov_b32 v43, s{T+4}")
    A("s_mov_b64 exec, 1")
    A(f"ds_write_b32 v43, v40")
    A("s_mov_b64 exec, -1")
    A("s_waitcnt lgkmcnt(0)")
    A("s_barrier")
    A(f"v_mov_b32 v43, {M_MISC+96}")
    A(f"ds_read_b128 {p4(44)}, v43")
    A(f"ds_read_b128 {p4(48)}, v43 offset:16")
    A("s_waitcnt lgkmcnt(0)")
    A("v_min3_f32 v40, v44, v45, v46")
    A("v_min3_f32 v41, v47, v48, v49")
    A("v_min3_f32 v40, v40, v50, v51")
    A("v_min_f32 v40, v40, v41")
    A("v_mov_b32 v41, 0")
    for i in range(4):
        A(f"v_cmp_ge_f32 {sp(T+4+2*i)}, v{keys[i]}, v40")
    for q in range(4):
        A(f"v_addc_co_u32 v41, vcc, 0, v41, {sp(T+4+2*q)}")
    A(f"v_mov_b32 v43, {M_MISC}")
    A("v_cmp_lt_u32 vcc, 0, v41")
    A(f"s_and_saveexec_b64 {sp(T+12)}, vcc")
    A("ds_add_rtn_u32 v42, v43, v41")
    A(f"s_mov_b64 exec, {sp(T+12)}")
    A("s_waitcnt lgkmcnt(0)")
    A("v_lshlrev_b32 v42, 2, v42")
    A(f"v_add_u32 v42, {M_LIST}, v42")
    A(f"v_mov_b32 v43, {S_DUMP}")
    for i in range(4):
        A(f"v_cndmask_b32 v44, v43, v42, {sp(T+4+2*i)}")
        A(f"v_cndmask_b32 v45, 0, 4, {sp(T+4+2*i)}")
        A(f"ds_write_b32 v44, v{keys[i]}")
        A(f"v_add_u32 v42, v42, v45")
    A("s_waitcnt lgkmcnt(0)")
    A("s_barrier")
    A(f"v_mov_b32 v43, {M_MISC}")
    A("ds_read_b32 v44, v43")
    A("s_waitcnt lgkmcnt(0)")
    A(f"v_readfirstlane_b32 s{T+8}, v44")
    A(f"s_mov_b32 s{T+9}, 0")
    Lc = A.newlabel("L_chunk"); Lj = A.newlabel("L_j")
    A.label(Lc)
    A(f"v_add_u32 v44, s{T+9}, v0")
    A("v_lshlrev_b32 v44, 2, v44")
    A(f"v_add_u32 v44, {M_LIST}, v44")
    A("ds_read_b32 v46, v44")
    A("v_mov_b32 v47, 0")
    A(f"v_mov_b32 v45, {M_LIST}")
    A(f"s_mov_b32 s{T+10}, 0")
    A.label(Lj)
    A(f"ds_read_b128 {p4(48)}, v45")
    A(f"ds_read_b128 {p4(52)}, v45 offset:16")
    A("v_add_u32 v45, 32, v45")
    A(f"s_add_u32 s{T+10}, s{T+10}, 8")
    A("s_waitcnt lgkmcnt(1)")
    for q in range(4):
        A(f"v_cmp_gt_f32 {sp(T+2*q)}, v{48+q}, v46")
    for q in range(4):
        A(f"v_addc_co_u32 v47, vcc, 0, v47, {sp(T+2*q)}")
    A("s_waitcnt lgkmcnt(0)")
    for q in range(4):
        A(f"v_cmp_gt_f32 {sp(T+2*q)}, v{52+q}, v46")
    for q in range(4):
        A(f"v_addc_co_u32 v47, vcc, 0, v47, {sp(T+2*q)}")
    A(f"s_cmp_lt_u32 s{T+10}, s{T+8}")
    A(f"s_cbranch_scc1 {Lj}")
    A(f"v_add_u32 v44, s{T+9}, v0")
    A(f"v_cmp_gt_u32 vcc, s{T+8}, v44")
    A(f"v_cmp_gt_u32 {sp(T)}, 8, v47")
    A("s_nop 1")
    A(f"s_and_b64 vcc, vcc, {sp(T)}")
    A(f"s_and_saveexec_b64 {sp(T+12)}, vcc")
    A("v_lshlrev_b32 v47, 2, v47")
    A(f"v_add_u32 v47, {M_MISC+32}, v47")
    A("ds_write_b32 v47, v46")
    A(f"s_mov_b64 exec, {sp(T+12)}")
    A(f"s_add_u32 s{T+9}, s{T+9}, 64")
    A(f"s_cmp_lt_u32 s{T+9}, s{T+8}")
    A(f"s_cbranch_scc1 {Lc}")
    A("s_waitcnt lgkmcnt(0)")
    stamp(6)

def sel_publish():
    T = S_T
    L = A.newlabel("L_sp")
    A(f"s_cmp_lg_u32 s{S_WAVE}, 0")
    A(f"s_cbranch_scc1 {L}")
    A("v_lshlrev_b32 v1, 2, v0")
    A(f"v_add_u32 v1, {M_MISC+32}, v1")
    A("s_mov_b64 exec, 0xff")
    A("ds_read_b32 v2, v1")
    add64(T+2, S_WS, WS_SEL)
    A(f"v_mov_b32 v3, s{S_NONCE}")
    A("v_lshlrev_b32 v4, 3, v0")
    A("s_waitcnt lgkmcnt(0)")
    A(f"global_store_dwordx2 v4, v[2:3], {sp(T+2)} sc1")
    A("s_mov_b64 exec, -1")
    A.label(L)
    stamp(7)
    tl(11, 255, 0)

def ln_pass(stok):
    ln_loads(stok, LN_Q, True)
    A("v_mov_b32 v120, 0")
    A(f"global_load_dword v121, v120, {sp(S_DBG)} sc1")
    A("s_waitcnt vmcnt(1)")
    def hook():
        Lhn = A.newlabel("L_lnn")
        A("s_waitcnt vmcnt(0)")
        A(f"v_readfirstlane_b32 s{S_NONCE}, v121")
        A(f"s_cmp_lg_u32 s{S_NONCE}, 0")
        A(f"s_cbranch_scc1 {Lhn}")
        get_nonce(124)
        A.label(Lhn)
    ln_compute_publish(LN_Q, 3, True, hook=hook)

def spare_wg():
    T = S_T
    A(f"s_sub_u32 s69, s69, {NMOE}")
    A("s_mul_i32 s68, s69, 24")
    A(f"s_lshl_b32 s{T+1}, s{S_WAVE}, 2")
    A(f"s_add_u32 s68, s68, s{T+1}")
    A("s_add_u32 s68, s68, 1152")
    Le = A.newlabel("L_lne")
    A(f"s_cmp_ge_u32 s{S_WAVE}, 6")
    A(f"s_cbranch_scc1 {Le}")
    A("s_cmp_ge_u32 s68, 2048")
    A(f"s_cbranch_scc1 {Le}")
    ln_pass(68)
    A.label(Le)
    stamp(4)
    A(f"s_cmp_lg_u32 s69, {SELIDX}")
    A("s_cbranch_scc1 L_fin")
    lds_init_list()
    get_nonce(124)
    A("s_waitcnt lgkmcnt(0)")
    A("s_barrier")
    sel_top8()
    sel_publish()
    A("s_branch L_fin")

def moe_wg():
    T = S_T
    A(f"s_sub_u32 s69, s{S_WG}, {NCONV}")
    A(f"s_cmp_ge_u32 s69, {NMOE}")
    A("s_cbranch_scc1 L_spare")
    A("s_and_b32 s70, s69, 7")
    A("s_mul_i32 s70, s70, 9")
    A(f"s_lshr_b32 s{T+1}, s69, 3")
    A(f"s_add_u32 s70, s70, s{T+1}")
    Lm = A.newlabel("L_mln")
    A(f"s_cmp_ge_u32 s{S_WAVE}, 4")
    A(f"s_cbranch_scc1 {Lm}")
    A("s_lshl_b32 s68, s69, 4")
    A(f"s_lshl_b32 s{T+1}, s{S_WAVE}, 2")
    A(f"s_add_u32 s68, s68, s{T+1}")
    ln_pass(68)
    A.label(Lm)
    if "mbar" in OPTS: A("s_barrier")
    if "mnonce" in OPTS: get_nonce(10)
    stamp(3)
    moe_dma()
    A("s_waitcnt vmcnt(4)")
    stamp(4)
    moe_sel_wait()
    stamp(5)
    tl(12, 151, 7)
    moe_row_loads()
    A("s_barrier")
    if "xsfirst" in OPTS:
        moe_gateup_addr()
        moe_gateup_preload()
        A("s_waitcnt vmcnt(0)")
    else:
        moe_down_loads()
        moe_gateup_addr()
        moe_gateup_preload()
        Lq = A.newlabel("L_w32")
        A(f"s_cmp_lg_u32 s{S_WAVE}, 0")
        A(f"s_cbranch_scc1 {Lq}")
        A("s_waitcnt vmcnt(32)")
        A.label(Lq)
        A(f"s_cmp_eq_u32 s{S_WAVE}, 0")
        A(f"s_cbranch_scc1 {Lq}_b")
        A("s_waitcnt vmcnt(16)")
        A.label(Lq + "_b")
    moe_xs_compute()
    if "xsfirst" in OPTS:
        A("s_waitcnt lgkmcnt(0)")
        A("s_barrier")
        moe_gateup()
        moe_down_loads()
        A("s_waitcnt lgkmcnt(0)")
        A("s_barrier")
        moe_h_and_down_stage()
        A("s_waitcnt lgkmcnt(0)")
        A("s_barrier")
        stamp(7)
        moe_down()
        moe_reduce()
        A("s_branch L_fin")
    stamp(6)
    tl(13, 151, 7)
    A("s_waitcnt lgkmcnt(0)")
    A("s_barrier")
    moe_gateup()
    A("s_waitcnt lgkmcnt(0)")
    A("s_barrier")
    moe_h_and_down_stage()
    A("s_waitcnt lgkmcnt(0)")
    A("s_barrier")
    stamp(7)
    moe_down()
    moe_reduce()
    A("s_branch L_fin")
    A.label("L_spare")
    spare_wg()

def main():
    prologue()
    A(f"s_cmp_ge_u32 s{S_WG}, {NCONV}")
    A("s_cbranch_scc1 L_moe")
    conv_wg()
    A.label("L_moe")
    moe_wg()
    A.label("L_fin")
    tl(15, 151, 0)
    prof_end()
    A.label("L_end")
    A("s_endpgm")

main()
K = NAME + "_kernel"
LDS = max(L_CONV_END, M_END)
txt = HDR + f"; @launch grid=(256,1,1) block=(512,1,1) lds={LDS}\n" + '.amdgcn_target "amdgcn-amd-amdhsa--gfx950"\n.text\n' + head(K) + A.text() + kd(K, 256, 102, 192, "  .amdhsa_float_denorm_mode_32 3\n")
open(OUTFN, "w").write(txt)
print("wrote", OUTFN, len(txt), "LDS", LDS)
```

```python
import sys, struct, os
sys.path.insert(0, "dev")
from asmlib import *

OUTFN = sys.argv[1] if len(sys.argv) > 1 else "k.s"
OPTS = set(sys.argv[2:])
PROF = "prof" in OPTS
NT = "nt" if "nt" in OPTS else ""
NTKV = "nt" if "ntkv" in OPTS else NT
NTH = "nt" if "nth" in OPTS else NT
NTW = "nt" if "ntw" in OPTS else NT
NTD = "nt" if "ntd" in OPTS else NT
NTP = "nt" if "ntp" in OPTS else NT
NTLN = "nt" if "ntln" in OPTS else NT
NTQ = "nt" if "ntq" in OPTS else NT

WS_KVT = 0x000000
WS_XT = 0x240000
WS_RG = 0x480000
WS_SG = 0x484000
WS_FL = 0x488000
WS_FL2 = 0x488800
WS_SEL = 0x489800
WS_T1G = 0x48A000
WS_XSG = 0x494000
WS_PART = 0x4A0000
WS_PROF = 0x800000
WS_YG = 0x1000000
SPIN_MAX = 2000 if "dbgB" in OPTS else 400000
NCONV, NMOE = 144, 72
NLN = 40
SELIDX = 39

S_WG, S_WAVE = 2, 3
S_Q, S_K, S_V, S_SK, S_H, S_D, S_BX, S_WR, S_WGT, S_WUP, S_WD, S_OUT, S_DBG, S_WS = 4, 6, 8, 10, 12, 14, 16, 18, 20, 22, 24, 26, 28, 30
SRD_K, SRD_V, SRD_Q, SRD_O = 32, 36, 40, 44
S_NONCE = 48
S_MASK, S_SELLO, S_SELHI = 50, 51, 52
S_T = 54

A = Asm()
def f32bits(x): return struct.unpack("<I", struct.pack("<f", x))[0]
def p2(r): return f"v[{r}:{r+1}]"
def p4(r): return f"v[{r}:{r+3}]"
def sp(r): return f"s[{r}:{r+1}]"

NSTAMP = 10
def stamp(i):
    if PROF: A(f"s_memtime s[{80+2*i}:{81+2*i}]")
def prof_begin():
    if PROF:
        A("s_memrealtime s[100:101]")
        stamp(0)
        for i in range(1, NSTAMP):
            A(f"s_mov_b64 s[{80+2*i}:{81+2*i}], 0")
def prof_end():
    if not PROF: return
    A(f"s_memrealtime s[{S_T+2}:{S_T+3}]")
    A("s_waitcnt lgkmcnt(0)")
    A(f"s_lshl_b32 s{S_T}, s{S_WG}, 3")
    A(f"s_add_u32 s{S_T}, s{S_T}, s{S_WAVE}")
    A(f"s_lshl_b32 s{S_T}, s{S_T}, 6")
    A(f"s_add_u32 s{S_T}, s{S_T}, {WS_PROF}")
    A(f"v_mov_b32 v1, s{S_T}")
    A("s_mov_b64 exec, 1")
    A("v_mov_b32 v2, s100")
    A(f"global_store_dword v1, v2, {sp(S_WS)}")
    A(f"v_mov_b32 v2, s{S_T+2}")
    A(f"global_store_dword v1, v2, {sp(S_WS)} offset:4")
    for i in range(1, NSTAMP):
        A(f"s_sub_u32 s{S_T+1}, s{80+2*i}, s80")
        A(f"v_mov_b32 v2, s{S_T+1}")
        A(f"global_store_dword v1, v2, {sp(S_WS)} offset:{4+4*i}")
    A("s_mov_b64 exec, -1")

TL = "tl" in OPTS
TLSET = os.environ.get("TLSET", "A")
def tl(slot, wg, wave, setname="A"):
    if not TL or setname != TLSET: return
    L = A.newlabel("L_tl")
    A(f"s_cmp_lg_u32 s{S_WG}, {wg}")
    A(f"s_cbranch_scc1 {L}")
    A(f"s_cmp_lg_u32 s{S_WAVE}, {wave}")
    A(f"s_cbranch_scc1 {L}")
    A("s_memrealtime s[98:99]")
    A("s_mov_b64 s[100:101], exec")
    A("s_mov_b64 exec, 1")
    A("v_readfirstlane_b32 s96, v126")
    A("v_readfirstlane_b32 s97, v127")
    A(f"v_mov_b32 v126, {4*slot}")
    A("s_waitcnt lgkmcnt(0)")
    A("v_mov_b32 v127, s98")
    A(f"global_store_dword v126, v127, {sp(S_DBG)}")
    A("s_nop 4")
    A("v_mov_b32 v126, s96")
    A("v_mov_b32 v127, s97")
    A("s_mov_b64 exec, s[100:101]")
    A.label(L)

def rnd(v, src=None):
    A(f"v_cvt_pk_bf16_f32 v{v}, 0, v{v if src is None else src}")
def srd(dst, base, nbytes):
    A(f"s_mov_b32 s{dst}, s{base}")
    A(f"s_and_b32 s{dst+1}, s{base+1}, 0xffff")
    A(f"s_mov_b32 s{dst+2}, {nbytes}")
    A(f"s_mov_b32 s{dst+3}, 0x00020000")
def add64(dst, src, imm):
    A(f"s_add_u32 s{dst}, s{src}, {imm}")
    A(f"s_addc_u32 s{dst+1}, s{src+1}, 0")

def get_nonce(vtmp):
    L = A.newlabel("L_nonce"); Ld = A.newlabel("L_nonced")
    A(f"v_mov_b32 v{vtmp}, 0")
    A(f"s_mov_b32 s{S_T}, 0")
    A.label(L)
    A(f"global_load_dword v{vtmp+1}, v{vtmp}, {sp(S_DBG)} sc1")
    A(f"s_waitcnt vmcnt(0)")
    A(f"v_readfirstlane_b32 s{S_NONCE}, v{vtmp+1}")
    A(f"s_add_u32 s{S_T}, s{S_T}, 1")
    A(f"s_cmp_lg_u32 s{S_NONCE}, 0")
    A(f"s_cbranch_scc1 {Ld}")
    A(f"s_cmp_lt_u32 s{S_T}, {SPIN_MAX}")
    A(f"s_cbranch_scc1 {L}")
    A.label(Ld)

def tag_acc(tagregs, vacc, vtmp):
    A(f"v_xor_b32 v{vacc}, s{S_NONCE}, v{tagregs[0]}")
    rest = tagregs[1:]
    i = 0
    while i < len(rest):
        if i + 1 < len(rest):
            A(f"v_xor_b32 v{vtmp}, s{S_NONCE}, v{rest[i]}")
            A(f"v_xor_b32 v{vtmp+1}, s{S_NONCE}, v{rest[i+1]}")
            A(f"v_or3_b32 v{vacc}, v{vacc}, v{vtmp}, v{vtmp+1}")
            i += 2
        else:
            A(f"v_xor_b32 v{vtmp}, s{S_NONCE}, v{rest[i]}")
            A(f"v_or_b32 v{vacc}, v{vacc}, v{vtmp}")
            i += 1

def tagcheck_loop(load_fn, tagregs, vacc, vtmp, sleep=1):
    T = S_T
    L = A.newlabel("L_pl"); Ld = A.newlabel("L_pld")
    A(f"s_mov_b32 s{T}, 0")
    A.label(L)
    load_fn()
    A("s_waitcnt vmcnt(0)")
    tag_acc(tagregs, vacc, vtmp)
    A(f"v_cmp_ne_u32 vcc, 0, v{vacc}")
    A(f"s_add_u32 s{T}, s{T}, 1")
    A("s_nop 3")
    A("s_cmp_eq_u64 vcc, 0")
    A(f"s_cbranch_scc1 {Ld}")
    if sleep: A(f"s_sleep {sleep}")
    A(f"s_cmp_lt_u32 s{T}, {SPIN_MAX}")
    A(f"s_cbranch_scc1 {L}")
    A.label(Ld)

def nonce_writer():
    L = A.newlabel("L_nw")
    A(f"s_cmp_ge_u32 s{S_WG}, 8")
    A(f"s_cbranch_scc1 {L}")
    A(f"s_cmp_lg_u32 s{S_WAVE}, 7")
    A(f"s_cbranch_scc1 {L}")
    A(f"s_memrealtime {sp(S_T)}")
    A("s_waitcnt lgkmcnt(0)")
    A(f"s_or_b32 s{S_T}, s{S_T}, 1")
    A(f"v_mov_b32 v10, s{S_T}")
    A("v_mov_b32 v11, 0")
    A("v_mov_b32 v12, 0")
    A("s_mov_b64 exec, 1")
    A(f"global_atomic_cmpswap v12, v[10:11], {sp(S_DBG)} sc1")
    A("s_mov_b64 exec, -1")
    A.label(L)

def code_prefetch():
    T = S_T
    L = A.newlabel("L_cpf")
    A(f"s_cmp_lg_u32 s{S_WAVE}, 6")
    A(f"s_cbranch_scc1 {L}")
    A(f"s_lshr_b32 s{T+2}, s{S_WG}, 3")
    A(f"s_cmp_ge_u32 s{T+2}, (L_end - {NAME}_kernel + 1023) / 1024")
    A(f"s_cbranch_scc1 {L}")
    A(f"s_getpc_b64 {sp(T)}")
    A.label(L + "_pc")
    A(f"s_sub_u32 s{T}, s{T}, {L}_pc - {NAME}_kernel")
    A(f"s_subb_u32 s{T+1}, s{T+1}, 0")
    A(f"s_lshl_b32 s{T+2}, s{T+2}, 10")
    A("v_lshlrev_b32 v1, 4, v0")
    A(f"v_add_u32 v1, s{T+2}, v1")
    A(f"global_load_dwordx4 a[60:63], v1, {sp(T)}")
    A.label(L)

def prologue():
    A(f"s_cmp_ge_u32 s{S_WG}, 256")
    A("s_cbranch_scc1 L_end")
    prof_begin()
    A("s_load_dwordx16 s[4:19], s[0:1], 0")
    A("s_load_dwordx8 s[20:27], s[0:1], 64")
    A("s_load_dwordx4 s[28:31], s[0:1], 96")
    A("v_lshrrev_b32 v1, 6, v0")
    A("v_and_b32 v0, 63, v0")
    A(f"v_readfirstlane_b32 s{S_WAVE}, v1")
    A(f"s_mov_b32 s{S_MASK}, 0xffff0000")
    A(f"s_mov_b32 s{S_SELLO}, 0x05040100")
    A(f"s_mov_b32 s{S_SELHI}, 0x07060302")
    A("s_waitcnt lgkmcnt(0)")
    stamp(1)
    tl(1, 0, 0); tl(2, 7, 0); tl(3, 4, 0)
    nonce_writer()
    code_prefetch()

def dpp_sum16(v):
    for sh in (8, 4, 2, 1):
        A("s_nop 1")
        A(f"v_add_f32_dpp v{v}, v{v}, v{v} row_ror:{sh} row_mask:0xf bank_mask:0xf")

LN_Q, LN_W, LN_Q2 = 10, 28, 46
def ln_loads(stok, Q, with_w):
    T = S_T
    A(f"s_mov_b32 s{T}, s{stok}")
    A("v_lshrrev_b32 v1, 4, v0")
    A("v_and_b32 v2, 15, v0")
    A(f"v_add_u32 v3, s{T}, v1")
    A(f"v_mul_u32_u24 v4, 1152, v3")
    A(f"v_lshl_add_u32 v5, v2, 4, v4")
    A(f"v_lshl_add_u32 v6, v2, 3, v4")
    for i in range(4):
        A(f"global_load_dwordx4 {p4(Q+4*i)}, v5, {sp(S_Q)} offset:{256*i} {NTLN}")
    A(f"global_load_dwordx2 {p2(Q+16)}, v6, {sp(S_Q)} offset:1024 {NTLN}")
    if with_w:
        W = LN_W
        A(f"v_lshlrev_b32 v7, 4, v2")
        A(f"v_lshlrev_b32 v8, 3, v2")
        for i in range(4):
            A(f"global_load_dwordx4 {p4(W+4*i)}, v7, {sp(S_WR)} offset:{256*i}")
        A(f"global_load_dwordx2 {p2(W+16)}, v8, {sp(S_WR)} offset:1024")

def dpp_sum16x(vs):
    for sh in (8, 4, 2, 1):
        if len(vs) < 3: A("s_nop 1")
        for v in vs:
            A(f"v_add_f32_dpp v{v}, v{v}, v{v} row_ror:{sh} row_mask:0xf bank_mask:0xf")

def ln_compute_publish(Q, vtok, first, vc=2, hook=None, publish=True):
    T = S_T
    W = LN_W
    A(f"s_mov_b32 s{T+8}, 0x3f803f80"); A(f"s_mov_b32 s{T+9}, 0x00003f80"); A(f"s_mov_b32 s{T+10}, 0x3f800000")
    accs = [64, 65, 66, 67] + ([68, 69] if first else [])
    for a in accs: A(f"v_mov_b32 v{a}, 0")
    for i in range(18):
        A(f"v_dot2_f32_bf16 v{64+(i&1)}, v{Q+i}, s{T+8}, v{64+(i&1)}")
        A(f"v_dot2_f32_bf16 v{66+(i&1)}, v{Q+i}, v{W+i}, v{66+(i&1)}")
        if first: A(f"v_dot2_f32_bf16 v{68+(i&1)}, v{W+i}, s{T+8}, v{68+(i&1)}")
    A("s_nop 2")
    A("v_add_f32 v64, v64, v65")
    A("v_add_f32 v66, v66, v67")
    if first:
        A("v_add_f32 v122, v68, v69")
        A("s_nop 0")
        dpp_sum16x([64, 66, 122])
    else:
        A("s_nop 0")
        dpp_sum16x([64, 66])
    A(f"v_mul_f32 v64, 0x{f32bits(1.0/576):08x}, v64")
    A("v_sub_f32 v65, 0, v64")
    for a in (68, 69, 70, 71): A(f"v_mov_b32 v{a}, 0")
    for i in range(0, 18, 2):
        A(f"v_dot2_f32_bf16 v72, v{Q+i}, s{T+9}, v65")
        A(f"v_dot2_f32_bf16 v73, v{Q+i}, s{T+10}, v65")
        A(f"v_dot2_f32_bf16 v74, v{Q+i+1}, s{T+9}, v65")
        A(f"v_dot2_f32_bf16 v75, v{Q+i+1}, s{T+10}, v65")
        A("s_nop 1")
        A(f"v_fma_f32 v68, v72, v72, v68")
        A(f"v_fma_f32 v69, v73, v73, v69")
        A(f"v_fma_f32 v70, v74, v74, v70")
        A(f"v_fma_f32 v71, v75, v75, v71")
    A("v_add_f32 v68, v68, v69"); A("v_add_f32 v70, v70, v71"); A("v_add_f32 v68, v68, v70")
    dpp_sum16x([68])
    A(f"v_mul_f32 v68, 0x{f32bits(1.0/576):08x}, v68")
    rnd(68)
    A(f"v_add_f32 v68, 0x{f32bits(1e-5):08x}, v68")
    rnd(68)
    A("v_sqrt_f32 v69, v68")
    A("s_nop 0")
    A("v_rcp_f32 v70, v69")
    A("v_fma_f32 v71, -v69, v69, v68")
    A("v_mul_f32 v70, 0.5, v70")
    A("v_fma_f32 v69, v71, v70, v69")
    rnd(69)
    A("v_rcp_f32 v70, v69")
    rnd(64)
    A("v_fma_f32 v66, -v64, v122, v66")
    A("v_mul_f32 v112, v66, v70")
    rnd(112)
    A(f"v_or_b32 v112, v112, v{vtok}")
    A("v_cvt_pk_bf16_f32 v114, v64, v69")
    if not publish:
        A("v_mov_b32 v32, v112"); A("v_mov_b32 v34, v114")
        return
    if hook: hook()
    ln_publish(vtok, vc)

def ln_publish(vtok, vc):
    T = S_T
    A(f"v_mov_b32 v113, s{S_NONCE}")
    A(f"v_mov_b32 v115, s{S_NONCE}")
    A(f"v_lshlrev_b32 v116, 3, v{vtok}")
    add64(T+2, S_WS, WS_RG)
    add64(T+4, S_WS, WS_SG)
    A(f"v_cmp_eq_u32 vcc, 0, v{vc}")
    A(f"s_and_saveexec_b64 {sp(T+6)}, vcc")
    A(f"global_store_dwordx2 v116, v[112:113], {sp(T+2)} sc1")
    A(f"global_store_dwordx2 v116, v[114:115], {sp(T+4)} sc1")
    A(f"s_mov_b64 exec, {sp(T+6)}")

P_CH = 4128
L_P = 0
L_Q = L_P + 4 * P_CH
Q_CPY = 1152
Q_CH = 4 * Q_CPY
L_KVL = L_Q + 4 * Q_CH
L_MC = L_KVL + 16384
L_SELT = L_MC + 64
L_ST = L_SELT + 128
L_TAP = L_ST + 1024
TBLK = 1040
L_TK = (L_TAP + 640 + 15) // 16 * 16
L_TV = L_TK + 17 * TBLK
L_TQ = L_TV + 16 * TBLK
L_OT = L_TK
L_CONV_END = L_TQ + 16 * TBLK

def dma(voff, srdreg, soff, m0, flag=None):
    A(f"s_mov_b32 m0, {m0}")
    A("s_nop 0")
    A(f"buffer_load_dwordx4 v{voff}, s[{srdreg}:{srdreg+3}], {soff} offen {NT if flag is None else flag} lds")

def conv_tile():
    T = S_T
    A(f"s_sub_u32 s72, s{S_WAVE}, 4")
    A(f"s_mul_hi_u32 s77, s{S_WG}, {(2**32 + 8)//9}")
    A(f"s_mul_i32 s76, s77, 9")
    A(f"s_sub_u32 s76, s{S_WG}, s76")
    srd(SRD_K, S_K, 2359296)
    srd(SRD_V, S_V, 2359296)
    A("v_lshrrev_b32 v1, 3, v0")
    A("v_and_b32 v2, 7, v0")
    A(f"s_mul_i32 s{T+2}, s77, {128*1152}")
    A(f"s_lshl_b32 s{T+3}, s76, 7")
    A(f"s_add_u32 s{T+2}, s{T+2}, s{T+3}")
    A(f"v_mul_u32_u24 v3, 1152, v1")
    A(f"v_lshl_add_u32 v3, v2, 4, v3")
    A(f"v_add_u32 v3, s{T+2}, v3")
    A(f"s_mul_i32 s{T+4}, s{S_WAVE}, {2*9216}")
    A(f"s_mul_i32 s{T+6}, s{S_WAVE}, {2*TBLK}")
    for i in range(2):
        A(f"s_add_u32 s{T+7}, s{T+6}, {L_TK + TBLK + i*TBLK}")
        A(f"s_add_u32 s{T+5}, s{T+4}, {9216*i}")
        dma(3, SRD_K, f"s{T+5}", f"s{T+7}", flag=NTKV)
        A(f"s_add_u32 s{T+7}, s{T+6}, {L_TV + i*TBLK}")
        dma(3, SRD_V, f"s{T+5}", f"s{T+7}", flag=NTKV)
    L7 = A.newlabel("L_w7")
    A(f"s_cmp_lg_u32 s{S_WAVE}, 7")
    A(f"s_cbranch_scc1 {L7}")
    A(f"v_subrev_u32 v4, 9216, v3")
    A(f"s_cmp_lg_u32 s77, 0")
    A(f"s_cbranch_scc1 {L7}_a")
    A("v_bfrev_b32 v4, 1")
    A.label(L7 + "_a")
    dma(4, SRD_K, "0", L_TK, flag=NTKV)
    for i in range(4): A(f"v_mov_b32 v{52+i}, 0")
    A("v_lshlrev_b32 v56, 4, v0")
    A(f"v_add_u32 v56, {L_MC}, v56")
    A("s_mov_b64 exec, 0xfff")
    A(f"ds_write_b128 v56, {p4(52)}")
    A("s_mov_b64 exec, -1")
    A.label(L7)
    TR = 48
    A(f"s_lshr_b32 s{T+9}, s{S_WAVE}, 1")
    A(f"s_and_b32 s{T+10}, s{S_WAVE}, 1")
    Lt = A.newlabel("L_tap")
    A(f"s_cmp_lg_u32 s{S_WAVE}, 0")
    A(f"s_cbranch_scc1 {Lt}")
    srd(SRD_Q, S_SK, 4608)
    A(f"s_lshl_b32 s{T+11}, s76, 9")
    A("v_lshlrev_b32 v5, 4, v0")
    A("s_mov_b64 exec, 0xffffffff")
    dma(5, SRD_Q, f"s{T+11}", L_TAP, flag="")
    srd(SRD_Q, S_D, 1152)
    A(f"s_lshl_b32 s{T+11}, s76, 7")
    A("v_lshlrev_b32 v5, 2, v0")
    A(f"s_mov_b32 m0, {L_TAP+512}")
    A("s_nop 0")
    A(f"buffer_load_dword v5, s[{SRD_Q}:{SRD_Q+3}], s{T+11} offen lds")
    A("s_mov_b64 exec, -1")
    A.label(Lt)
    A("v_mov_b32 v120, 0")
    A(f"global_load_dword v121, v120, {sp(S_DBG)} sc1")
    A(f"s_and_b32 s{T+13}, s{S_WG}, 7")
    A(f"s_mul_i32 s{T+13}, s{T+13}, 18")
    A(f"s_lshr_b32 s{T+12}, s{S_WG}, 3")
    A(f"s_add_u32 s{T+13}, s{T+13}, s{T+12}")
    A(f"s_lshl_b32 s71, s{T+13}, 2")
    A(f"s_and_b32 s{T+12}, s{S_WAVE}, 3")
    A(f"s_add_u32 s78, s71, s{T+12}")
    A(f"s_lshl_b32 s79, s78, 12")
    A(f"s_lshl_b32 s{T+12}, s{T+10}, 3")
    A(f"v_add_u32 v6, s{T+12}, v2")
    A(f"s_lshl_b32 s{T+12}, s{T+9}, 3")
    A(f"v_add_u32 v7, s{T+12}, v1")
    A(f"v_mul_u32_u24 v9, {TBLK}, v6")
    A(f"v_lshl_add_u32 v9, v7, 2, v9")
    A(f"v_add_u32 v9, {L_TK}, v9")
    A(f"s_lshl_b32 s{T+11}, s76, 19")
    A(f"s_lshl_b32 s{T+12}, s77, 9")
    A(f"s_add_u32 s{T+11}, s{T+11}, s{T+12}")
    A(f"s_lshl_b32 s{T+12}, s{T+10}, 8")
    A(f"s_add_u32 s{T+11}, s{T+11}, s{T+12}")
    A("v_lshlrev_b32 v8, 14, v7")
    A("v_lshl_add_u32 v8, v2, 4, v8")
    A(f"v_add_u32 v8, s{T+11}, v8")
    if "ibar" in OPTS: A("s_barrier")
    if "hearly" in OPTS:
        Lh = A.newlabel("L_noh"); Lh2 = A.newlabel("L_noh2")
        A(f"s_cmp_ge_u32 s{S_WAVE}, 4")
        A(f"s_cbranch_scc1 {Lh}")
        srd(SRD_Q, S_H, 2359296)
        A("v_lshlrev_b32 v4, 4, v0")
        A(f"s_mul_i32 s74, s{S_WAVE}, {P_CH}")
        for q in range(4):
            A(f"s_add_u32 s{T+9}, s79, {1024*q}")
            A(f"s_add_u32 s{T+5}, s74, {32 + 1024*q}")
            dma(4, SRD_Q, f"s{T+9}", f"s{T+5}", flag=NTH)
        if "dbgB" in OPTS: stamp(5)
        A("s_waitcnt vmcnt(4) lgkmcnt(0)")
        A(f"s_branch {Lh2}")
        A.label(Lh)
        if "dbgB" in OPTS: stamp(5)
        if "pfe" in OPTS:
            n = gu_prefetch(int(os.environ.get("PFE0", "72")), int(os.environ.get("PFEN", "8")), vb=110)
            A(f"s_waitcnt vmcnt({n}) lgkmcnt(0)")
        else:
            A("s_waitcnt vmcnt(0) lgkmcnt(0)")
        A.label(Lh2)
        if "dbgB" in OPTS: stamp(6)
    else:
        A("s_waitcnt vmcnt(0) lgkmcnt(0)")
    A(f"v_readfirstlane_b32 s{S_NONCE}, v121")
    A("s_barrier")
    stamp(2)
    tl(4, 7, 0)
    KR, VR = 10, 21
    for j in range(11):
        off = (640 + 128*j if j < 3 else TBLK + 128*(j-3))
        A(f"ds_read_b32 v{KR+j}, v9 offset:{off}")
    A("v_lshlrev_b32 v5, 2, v7")
    A("v_lshlrev_b32 v5, 2, v5")
    A(f"v_add_u32 v5, {L_TAP}, v5")
    A(f"ds_read_b128 {p4(TR)}, v5")
    for j in range(8):
        A(f"ds_read_b32 v{VR+j}, v9 offset:{L_TV - L_TK + 128*j}")
    A("s_waitcnt lgkmcnt(8)")
    Ln = A.newlabel("L_hasn")
    A(f"s_cmp_lg_u32 s{S_NONCE}, 0")
    A(f"s_cbranch_scc1 {Ln}")
    get_nonce(30)
    A.label(Ln)
    TP = 52
    A(f"v_lshlrev_b32 v{TP+0}, 16, v{TR}"); A(f"v_lshlrev_b32 v{TP+1}, 16, v{TR+2}")
    A(f"v_and_b32 v{TP+2}, s{S_MASK}, v{TR}"); A(f"v_and_b32 v{TP+3}, s{S_MASK}, v{TR+2}")
    A(f"v_lshlrev_b32 v{TP+4}, 16, v{TR+1}"); A(f"v_lshlrev_b32 v{TP+5}, 16, v{TR+3}")
    A(f"v_and_b32 v{TP+6}, s{S_MASK}, v{TR+1}"); A(f"v_and_b32 v{TP+7}, s{S_MASK}, v{TR+3}")
    KP = 80
    for j in range(11):
        A(f"v_lshlrev_b32 v{KP+2*j}, 16, v{KR+j}")
        A(f"v_and_b32 v{KP+2*j+1}, s{S_MASK}, v{KR+j}")
    R = 102
    tp = lambda tap: p2(TP+2*tap)
    for i in range(8): A(f"v_pk_mul_f32 {p2(R+2*i)}, {p2(KP+2*i)}, {tp(3)}")
    for i in range(8): A(f"v_pk_fma_f32 {p2(R+2*i)}, {p2(KP+2*(i+1))}, {tp(2)}, {p2(R+2*i)}")
    for i in range(8): A(f"v_pk_fma_f32 {p2(R+2*i)}, {p2(KP+2*(i+2))}, {tp(1)}, {p2(R+2*i)}")
    for i in range(8): A(f"v_pk_fma_f32 {p2(R+2*i)}, {p2(KP+2*(i+3))}, {tp(0)}, {p2(R+2*i)}")
    A("s_waitcnt lgkmcnt(0)")
    VP = 60
    for i in range(8):
        A(f"v_lshlrev_b32 v{VP+2*i}, 16, v{VR+i}"); A(f"v_and_b32 v{VP+2*i+1}, s{S_MASK}, v{VR+i}")
    for i in range(8): A(f"v_pk_mul_f32 {p2(R+2*i)}, {p2(R+2*i)}, {p2(VP+2*i)}")
    GQ = 80
    for c in range(2):
        for q in range(4):
            A(f"v_cvt_pk_bf16_f32 v{GQ+8*c+2*q}, v{R+4*q+c}, v{R+4*q+2+c}")
            A(f"v_mov_b32 v{GQ+8*c+2*q+1}, s{S_NONCE}")
    add64(T+2, S_WS, WS_KVT)
    add64(T+8, S_WS, WS_KVT+8192)
    A(f"global_store_dwordx4 v8, {p4(GQ)}, {sp(T+2)} sc1")
    A(f"global_store_dwordx4 v8, {p4(GQ+4)}, {sp(T+2)} offset:128 sc1")
    A(f"global_store_dwordx4 v8, {p4(GQ+8)}, {sp(T+8)} sc1")
    A(f"global_store_dwordx4 v8, {p4(GQ+12)}, {sp(T+8)} offset:128 sc1")
    for c in range(2):
        for q in range(4): A(f"v_mov_b32 v{120+4*c+q}, v{GQ+8*c+2*q}")
    A(f"s_lshl_b32 s{T+1}, s{S_WAVE}, 11")
    A("v_lshlrev_b32 v4, 5, v0")
    A(f"v_add_u32 v4, s{T+1}, v4")
    A(f"v_add_u32 v4, {L_KVL}, v4")
    A(f"ds_write_b128 v4, {p4(120)}")
    A(f"ds_write_b128 v4, {p4(124)} offset:16")
    stamp(3)
    if "hearly" not in OPTS:
        Lh = A.newlabel("L_noh")
        A(f"s_cmp_ge_u32 s{S_WAVE}, 4")
        A(f"s_cbranch_scc1 {Lh}")
        srd(SRD_V, S_H, 2359296)
        A("v_lshlrev_b32 v4, 4, v0")
        A(f"s_mul_i32 s74, s{S_WAVE}, {P_CH}")
        for q in range(4):
            A(f"s_add_u32 s{T+9}, s79, {1024*q}")
            A(f"s_add_u32 s{T+10}, s74, {32 + 1024*q}")
            dma(4, SRD_V, f"s{T+9}", f"s{T+10}")
        A.label(Lh)
    A("s_waitcnt lgkmcnt(0)")
    A("s_barrier")
    stamp(4)
    tl(5, 7, 0)
    if "dbgA" in OPTS or "dbgB" in OPTS: A("s_branch L_fin")

class LdsQ:
    def __init__(self): self.q = []
    def issue(self, instr, tag=None):
        A(instr); self.q.append(tag)
    def wait(self, tag):
        idxs = [i for i, t in enumerate(self.q) if t == tag]
        if not idxs: return
        last = idxs[-1]
        n = len(self.q) - 1 - last
        A(f"s_waitcnt lgkmcnt({min(n, 15)})")
        if n <= 15: self.q = self.q[last+1:]
        else: self.q = self.q[len(self.q)-15:]

def conv_mfma_wave():
    T = S_T
    A(f"s_mul_i32 s75, s{S_WAVE}, {Q_CH}")
    A(f"s_add_u32 s75, s75, {L_Q}")
    for i in range(4): A(f"v_mov_b32 v{16+i}, 0")
    A("v_lshlrev_b32 v2, 4, v0")
    A("v_add_u32 v2, s74, v2")
    A("s_mov_b64 exec, 3")
    A(f"ds_write_b128 v2, {p4(16)}")
    A("s_mov_b64 exec, -1")
    A("v_lshrrev_b32 v2, 3, v0")
    A(f"v_mul_u32_u24 v2, {Q_CPY}, v2")
    A("v_and_b32 v3, 7, v0")
    A("v_lshl_add_u32 v2, v3, 4, v2")
    A("v_add_u32 v2, s75, v2")
    A("s_mov_b64 exec, 0xffffffff")
    A(f"ds_write_b128 v2, {p4(16)}")
    A("s_mov_b64 exec, -1")
    A("v_and_b32 v3, 3, v0")
    A("v_bfe_u32 v4, v0, 2, 2")
    A("v_sub_u32 v3, v3, v4")
    A("v_lshlrev_b32 v3, 3, v3")
    A("v_lshrrev_b32 v4, 4, v0")
    A("v_lshl_add_u32 v3, v4, 6, v3")
    A("v_add_u32 v3, s74, v3")
    A("v_add_u32 v3, 32, v3")
    A("s_waitcnt vmcnt(4) lgkmcnt(0)" if "hearly" in OPTS else "s_waitcnt vmcnt(0) lgkmcnt(0)")
    def greg(e, s1): return 4*(8*e + s1)
    for s1 in range(8):
        for e in range(2):
            g = greg(e, s1)
            A(f"ds_read_b64_tr_b16 a[{g}:{g+1}], v3 offset:{512*s1+256*e+32}")
            A(f"ds_read_b64_tr_b16 a[{g+2}:{g+3}], v3 offset:{512*s1+256*e}")
        if s1 % 3 == 2: A("s_waitcnt lgkmcnt(4)")
    A("v_and_b32 v5, 15, v0")
    A("v_lshlrev_b32 v6, 3, v5")
    A("v_lshlrev_b32 v7, 4, v4")
    A("v_sub_u32 v6, v6, v7")
    A("v_add_u32 v6, s75, v6")
    A("v_add_u32 v6, 56, v6")
    A("v_lshlrev_b32 v7, 6, v5")
    A("v_lshl_add_u32 v7, v4, 4, v7")
    A(f"s_lshl_b32 s{T+1}, s78, 13")
    A(f"v_add_u32 v7, s{T+1}, v7")
    A(f"v_add_u32 v11, 4096, v7")
    add64(62, S_WS, WS_YG)
    A("v_subrev_u32 v8, 16, v0")
    A("v_add_u32 v9, 47, v0")
    A("v_cmp_gt_u32 vcc, 16, v0")
    A("s_nop 1")
    A("v_cndmask_b32 v8, v8, v9, vcc")
    A("v_mov_b32 v9, 63")
    A("v_cmp_eq_u32 vcc, 0, v0")
    A("s_nop 1")
    A("v_cndmask_b32 v8, v8, v9, vcc")
    A("v_lshlrev_b32 v8, 2, v8")
    A(f"v_mov_b32 v9, {L_MC}")
    A("v_mov_b32 v10, 1")
    A(f"s_mov_b64 {sp(66)}, 1")
    add64(64, S_WS, WS_KVT)
    A(f"s_lshl_b32 s{T+1}, s78, 13")
    A("v_lshlrev_b32 v1, 4, v0")
    A(f"v_add_u32 v1, s{T+1}, v1")
    A("v_add_u32 v12, 4096, v1")
    A("v_lshrrev_b32 v2, 4, v0")
    A("v_lshlrev_b32 v2, 4, v2")
    A("v_and_b32 v13, 7, v0")
    A("v_lshl_add_u32 v2, v13, 1, v2")
    A("v_bfe_u32 v13, v0, 3, 1")
    A("v_add_u32 v2, v2, v13")
    A("v_lshlrev_b32 v2, 1, v2")
    A("v_add_u32 v2, s75, v2")
    A("v_and_b32 v13, 15, v0")
    A("v_lshlrev_b32 v13, 9, v13")
    A(f"v_add_u32 v13, s{T+1}, v13")
    A("v_add_u32 v13, 504, v13")
    stamp(5)
    KV = 16
    def ldkv():
        for q in range(8):
            A(f"global_load_dwordx4 {p4(KV+4*q)}, v{1 if q < 4 else 12}, {sp(64)} offset:{1024*(q % 4)} sc1")
    kvtags = [KV+4*q+1+2*h for q in range(8) for h in range(2)]
    Lok = A.newlabel("L_kvok")
    if "spec" in OPTS:
        ldkv()
        A("s_waitcnt vmcnt(0)")
        tag_acc(kvtags, 14, 48)
        A("v_cmp_ne_u32 vcc, 0, v14")
        A("s_nop 3")
        A("s_cmp_eq_u64 vcc, 0")
        A(f"s_cbranch_scc1 {Lok}")
    tagcheck_loop(lambda: A(f"global_load_dwordx2 v[14:15], v13, {sp(64)} sc1"), [15], 16, 17, sleep=1)
    stamp(6)
    tl(6, 7, 0)
    tagcheck_loop(ldkv, kvtags, 14, 48, sleep=1)
    A.label(Lok)
    for q in range(8):
        r = KV + 4*q
        o = 128 + 128*q
        A(f"ds_write_b16 v2, v{r} offset:{0*Q_CPY+o}")
        A(f"ds_write_b16_d16_hi v2, v{r} offset:{1*Q_CPY+o}")
        A(f"ds_write_b16 v2, v{r+2} offset:{2*Q_CPY+o}")
        A(f"ds_write_b16_d16_hi v2, v{r+2} offset:{3*Q_CPY+o}")
    A("s_waitcnt lgkmcnt(0)")
    for i in range(3): A(f"v_mov_b32 v{40+i}, 0")
    A(f"v_add_u32 v3, {Q_CPY}, v6"); A(f"v_add_u32 v4, {2*Q_CPY}, v6"); A(f"v_add_u32 v5, {3*Q_CPY}, v6")
    A(f"v_mov_b32 v45, s{S_NONCE}"); A(f"v_mov_b32 v47, s{S_NONCE}")
    stamp(7)
    tl(7, 7, 0)
    if "dry" in OPTS:
        A("s_mov_b32 s73, 0")
        A.label("L_stream")
    lq = LdsQ()
    classes = [(c1, sg, e) for c1 in range(8) for sg in range(4) for e in range(2)]
    FA = [6, 3, 4, 5]
    free = [("v", 48), ("v", 52), ("v", 56), ("v", 60)]
    fbuf = {}
    def rr(b): return f"{b[0]}[{b[1]}:{b[1]+3}]"
    def fread(k):
        c1, sg, e = classes[k]
        b = free.pop(0); fbuf[k] = b
        o = 16*c1 + 8*(1-e)
        lq.issue(f"ds_read2_b64 {rr(b)}, v{FA[sg]} offset0:{o} offset1:{o+1}", ("F", k))
    def acc(sg, t): return 64 + (sg*8 + t)*4
    def combine_ops(t):
        a0, a1, a2, a3 = acc(0, t), acc(1, t), acc(2, t), acc(3, t)
        ops = []
        C = 32
        P = 36 + 4*(t & 1)
        Pp = 36 + 4*((t+1) & 1)
        ops.append(lambda: A(f"v_add_f32 v{a0+1}, v{a0+1}, v{a1}"))
        ops.append(lambda: A(f"v_add_f32 v{a0+2}, v{a0+2}, v{a1+1}"))
        ops.append(lambda: A(f"v_add_f32 v{a0+3}, v{a0+3}, v{a1+2}"))
        ops.append(lambda: A(f"v_add_f32 v{C}, v{a1+3}, v{a2+2}"))
        ops.append(lambda: A(f"v_add_f32 v{a0+2}, v{a0+2}, v{a2}"))
        ops.append(lambda: A(f"v_add_f32 v{a0+3}, v{a0+3}, v{a2+1}"))
        ops.append(lambda: A(f"v_add_f32 v{C+1}, v{a2+3}, v{a3+2}"))
        ops.append(lambda: A(f"v_add_f32 v{C}, v{C}, v{a3+1}"))
        ops.append(lambda: lq.issue(f"ds_bpermute_b32 v{P+2}, v8, v{a3+3}", ("B", t)))
        ops.append(lambda: lq.issue(f"ds_bpermute_b32 v{P+1}, v8, v{C+1}", ("B", t)))
        ops.append(lambda: lq.issue(f"ds_bpermute_b32 v{P}, v8, v{C}", ("B", t)))
        ops.append(lambda: A(f"v_add_f32 v{a0+3}, v{a0+3}, v{a3}"))
        ops.append(lambda: lq.wait(("B", t)))
        for i in range(3):
            ops.append(lambda i=i: A(f"v_cndmask_b32 v{28+i}, v{P+i}, v{Pp+i}, {sp(66)}"))
        for i in range(3):
            ops.append(lambda i=i: A(f"v_add_f32 v{a0+i}, v{a0+i}, v{28+i}"))
        ops.append(lambda: A(f"v_cvt_pk_bf16_f32 v44, v{a0}, v{a0+1}"))
        ops.append(lambda: A(f"v_cvt_pk_bf16_f32 v46, v{a0+2}, v{a0+3}"))
        ops.append(lambda: A(f"global_store_dwordx4 v{7 if t < 4 else 11}, {p4(44)}, {sp(62)} offset:{1024*(t % 4)} sc1"))
        return ops
    nxt = 0
    LA = int(os.environ.get("LA", "5"))
    SLOTS = int(os.environ.get("SLOTS", "1"))
    def can_fread(k):
        return free and nxt < len(classes) and nxt - k < LA and len(lq.q) <= 13
    for _ in range(3):
        fread(nxt); nxt += 1
    pending = []
    k = 0
    total_m = sum(8*(8-c) for c in range(8))
    done_m = 0
    for c1 in range(8):
        nm_step = 8*(8-c1)
        if c1 > 0:
            assert not pending or True
            pending.extend(combine_ops(c1-1))
            free.extend([("a", greg(0, 8-c1)), ("a", greg(1, 8-c1))])
        mi = 0
        for sg in range(4):
            for e in range(2):
                while nxt <= k:
                    fread(nxt); nxt += 1
                lq.wait(("F", k))
                b = fbuf[k]
                for s1 in range(8-c1):
                    t = s1 + c1
                    d = acc(sg, t)
                    cin = "0" if (c1 == 0 and e == 0) else f"v[{d}:{d+3}]"
                    g = greg(e, s1)
                    A(f"v_mfma_f32_16x16x32_bf16 v[{d}:{d+3}], a[{g}:{g+3}], {rr(b)}, {cin}")
                    mi += 1; done_m += 1
                    rem_m = total_m - done_m
                    left_in_step = nm_step - mi
                    slots = SLOTS
                    if pending and mi >= 3:
                        need = len(pending) + (8 - (k % 8))
                        if left_in_step * SLOTS < need: slots = -(-need // max(1, left_in_step + 1))
                    used = 0
                    if can_fread(k) and (nxt - k <= 2 or not pending or mi < 3):
                        fread(nxt); nxt += 1; used += 1
                    while used < slots and pending and mi >= 3:
                        pending.pop(0)(); used += 1
                    if used < slots - 1 and can_fread(k):
                        fread(nxt); nxt += 1; used += 1
                free.append(b)
                k += 1
        while pending: pending.pop(0)()
    A("s_nop 7"); A("s_nop 1")
    for op in combine_ops(7): op()
    if "dry" in OPTS:
        A("s_cmp_eq_u32 s73, 1")
        A("s_cbranch_scc1 L_dry_ret")
    A("s_mov_b64 exec, 1")
    A("ds_add_u32 v9, v10")
    A("s_mov_b64 exec, -1")
    stamp(8)
    tl(8, 7, 0)

def lds_spin(addr_off, target, va, vb, sleep=1):
    T = S_T
    L = A.newlabel("L_ls")
    A(f"v_mov_b32 v{va}, {L_MC}")
    A(f"s_mov_b32 s{T+1}, 0")
    A.label(L)
    A(f"ds_read_b32 v{vb}, v{va} offset:{addr_off}")
    A("s_waitcnt lgkmcnt(0)")
    A(f"v_readfirstlane_b32 s{T}, v{vb}")
    A(f"s_add_u32 s{T+1}, s{T+1}, 1")
    A(f"s_cmp_ge_u32 s{T+1}, {SPIN_MAX*4}")
    A(f"s_cbranch_scc1 {L}_d")
    A(f"s_cmp_ge_u32 s{T}, {target}")
    A(f"s_cbranch_scc1 {L}_d")
    if sleep: A(f"s_sleep {sleep}")
    A(f"s_branch {L}")
    A.label(L + "_d")

def gu_prefetch(R0, NR, vb=10):
    T = S_T
    assert NR % 4 == 0
    RW = NR // 4
    v0_, v1_, v2_, v3_ = vb, vb+1, vb+2, vb+3
    A(f"s_and_b32 s{T+1}, s{S_WG}, 7")
    A(f"s_mul_i32 s{T+1}, s{T+1}, 1152")
    A(f"s_lshr_b32 s{T+2}, s{S_WG}, 3")
    A(f"s_mul_i32 s{T+2}, s{T+2}, {NR}")
    A(f"s_mul_i32 s{T+3}, s72, {RW}")
    A(f"s_add_u32 s{T+2}, s{T+2}, s{T+3}")
    A(f"s_add_u32 s{T+2}, s{T+2}, {R0}")
    A(f"s_mul_i32 s{T+2}, s{T+2}, 9216")
    A(f"s_add_u32 s{T+1}, s{T+1}, s{T+2}")
    A(f"v_lshlrev_b32 v{v0_}, 4, v0")
    A(f"v_add_u32 v{v0_}, s{T+1}, v{v0_}")
    A(f"v_lshrrev_b32 v{v1_}, 3, v0")
    A(f"v_mul_u32_u24 v{v1_}, 9216, v{v1_}")
    A(f"v_and_b32 v{v2_}, 7, v0")
    A(f"v_lshl_add_u32 v{v1_}, v{v2_}, 4, v{v1_}")
    A(f"v_add_u32 v{v1_}, s{T+1}, v{v1_}")
    A(f"v_add_u32 v{v1_}, 1024, v{v1_}")
    n = 0
    for base in (S_WGT, S_WUP):
        A(f"v_mov_b32 v{v3_}, v{v0_}")
        for r in range(RW):
            A(f"global_load_dwordx4 a[0:3], v{v3_}, {sp(base)} {NTP}"); n += 1
            if r < RW - 1: A(f"v_add_u32 v{v3_}, 9216, v{v3_}")
        nl = 8*RW
        if nl < 64:
            A(f"s_mov_b32 exec_lo, {hex((1 << min(nl, 32)) - 1)}")
            A(f"s_mov_b32 exec_hi, {hex((1 << (nl - 32)) - 1) if nl > 32 else '0'}")
        A(f"global_load_dwordx4 a[0:3], v{v1_}, {sp(base)} {NTP}"); n += 1
        A("s_mov_b64 exec, -1")
    return n

def conv_helper_prep():
    T = S_T
    if "gupf" in OPTS:
        R0 = int(os.environ.get("PFROW", "144")); NR = (576 - R0) // 18
        gu_prefetch(R0, NR)
        ar = 0
        if "dpf" in OPTS:
            A(f"s_and_b32 s{T+1}, s{S_WG}, 7")
            A(f"s_mul_i32 s{T+1}, s{T+1}, {576*1152}")
            A(f"s_lshr_b32 s{T+2}, s{S_WG}, 3")
            A(f"s_mul_i32 s{T+2}, s{T+2}, 36864")
            A(f"s_add_u32 s{T+1}, s{T+1}, s{T+2}")
            A(f"s_mul_i32 s{T+2}, s72, 9216")
            A(f"s_add_u32 s{T+1}, s{T+1}, s{T+2}")
            A("v_lshlrev_b32 v19, 4, v0")
            A(f"v_add_u32 v19, s{T+1}, v19")
            DPF = []
            for i in range(9):
                DPF.append(f"global_load_dwordx4 a[0:3], v18, {sp(S_WD)} offset:{1024*(i%4)}")
            assert ar <= 124, ar
            global DPF_CODE
            DPF_CODE = DPF
    srd(SRD_Q, S_Q, 2359296)
    A(f"s_mul_i32 s{T+4}, s72, {4*9216}")
    A(f"s_mul_i32 s{T+6}, s72, {4*TBLK}")
    A(f"s_add_u32 s{T+6}, s{T+6}, {L_TQ}")
    for i in range(4):
        dma(3, SRD_Q, f"s{T+4}", f"s{T+6}", flag=NTQ)
        A(f"s_add_u32 s{T+4}, s{T+4}, 9216")
        A(f"s_add_u32 s{T+6}, s{T+6}, {TBLK}")
    if "dry" in OPTS:
        Ld = A.newlabel("L_nodry")
        A(f"s_cmp_lg_u32 s{S_WAVE}, 7")
        A(f"s_cbranch_scc1 {Ld}")
        A("v_mov_b32 v6, 0"); A("v_mov_b32 v7, 0"); A("v_mov_b32 v11, 0"); A("v_mov_b32 v8, 0")
        add64(62, S_WS, WS_YG)
        A(f"s_mov_b64 {sp(66)}, 1")
        A("s_mov_b32 s73, 1")
        A("s_mov_b64 exec, 0")
        A("s_branch L_stream")
        A.label("L_dry_ret")
        A("s_mov_b64 exec, -1")
        A.label(Ld)
    L4 = A.newlabel("L_h4"); L5 = A.newlabel("L_h5"); Le = A.newlabel("L_he")
    A(f"s_cmp_eq_u32 s{S_WAVE}, 4")
    A(f"s_cbranch_scc1 {L4}")
    A(f"s_cmp_eq_u32 s{S_WAVE}, 5")
    A(f"s_cbranch_scc1 {L5}")
    A(f"s_branch {Le}")
    A.label(L4)
    A(f"s_lshl_b32 s{T+1}, s77, 10")
    A("v_lshlrev_b32 v10, 4, v0")
    A(f"v_add_u32 v11, s{T+1}, v10")
    add64(T+2, S_WS, WS_SG)
    tagcheck_loop(lambda: A(f"global_load_dwordx4 {p4(12)}, v11, {sp(T+2)} sc1"), [13, 15], 16, 17, sleep=4)
    A("v_lshlrev_b32 v20, 16, v12"); A(f"v_and_b32 v21, s{S_MASK}, v12")
    A("v_lshlrev_b32 v22, 16, v14"); A(f"v_and_b32 v23, s{S_MASK}, v14")
    A("v_rcp_f32 v21, v21"); A("v_rcp_f32 v23, v23")
    A(f"v_add_u32 v10, {L_ST}, v10")
    A("s_nop 0")
    A(f"ds_write_b128 v10, {p4(20)}")
    A(f"s_branch {Le}")
    A.label(L5)
    A("v_and_b32 v10, 7, v0")
    A("v_lshlrev_b32 v11, 3, v10")
    add64(T+2, S_WS, WS_SEL)
    tagcheck_loop(lambda: A(f"global_load_dwordx2 v[12:13], v11, {sp(T+2)} sc1"), [13], 16, 17, sleep=4)
    A("v_and_b32 v12, 0x7ff, v12")
    A(f"s_lshl_b32 s{T+1}, s77, 7")
    A(f"v_subrev_u32 v12, s{T+1}, v12")
    A("v_cmp_gt_u32 vcc, 128, v12")
    A("v_or_b32 v13, 0x80, v10")
    A(f"v_add_u32 v12, {L_SELT}, v12")
    A("s_and_b32 vcc_lo, vcc_lo, 0xff")
    A("s_mov_b32 vcc_hi, 0")
    A("s_mov_b64 exec, vcc")
    Lk = A.newlabel("L_nsel")
    A(f"s_cbranch_execz {Lk}")
    A("ds_write_b8 v12, v13")
    A.label(Lk)
    A("s_mov_b64 exec, -1")
    A.label(Le)
    A("s_waitcnt vmcnt(0) lgkmcnt(0)")
    A(f"v_mov_b32 v10, {L_MC}")
    A("v_mov_b32 v11, 1")
    A("s_mov_b64 exec, 1")
    A("ds_add_u32 v10, v11 offset:4")
    A("s_mov_b64 exec, -1")
    stamp(5)
    if "dpf" in OPTS:
        for i, ins in enumerate(DPF_CODE):
            if i % 4 == 0: A(f"v_add_u32 v18, {4096*(i//4)}, v19")
            A(ins)
    lds_spin(0, 4, 10, 11, sleep=2)
    stamp(6)

def conv_epilogue():
    T = S_T
    A("; ---- epilogue ----")
    lds_spin(4, 4, 10, 11, sleep=1)
    A("v_and_b32 v2, 7, v0"); A("v_lshrrev_b32 v1, 3, v0")
    A(f"s_and_b32 s{T+1}, s{S_WAVE}, 1"); A(f"s_lshl_b32 s{T+1}, s{T+1}, 3")
    A(f"v_add_u32 v6, s{T+1}, v2")
    A(f"s_lshr_b32 s{T+2}, s{S_WAVE}, 1"); A(f"s_lshl_b32 s{T+2}, s{T+2}, 3")
    A(f"v_add_u32 v7, s{T+2}, v1")
    A(f"s_lshl_b32 s{T+1}, s76, 19")
    A(f"s_lshl_b32 s{T+2}, s77, 9")
    A(f"s_add_u32 s{T+1}, s{T+1}, s{T+2}")
    A("v_lshlrev_b32 v8, 14, v7")
    A("v_lshl_add_u32 v8, v6, 5, v8")
    A(f"v_add_u32 v8, s{T+1}, v8")
    A("v_add_u32 v9, 8192, v8")
    add64(62, S_WS, WS_YG)
    A(f"v_mul_u32_u24 v10, {TBLK}, v6")
    A("v_lshl_add_u32 v10, v7, 2, v10")
    A(f"v_add_u32 v11, {L_TQ}, v10")
    XR = 16
    for i in range(8): A(f"ds_read_b32 v{XR+i}, v11 offset:{128*i}")
    A(f"s_lshl_b32 s{T+1}, s{S_WAVE}, 11")
    A("v_lshlrev_b32 v12, 5, v0")
    A(f"v_add_u32 v12, s{T+1}, v12")
    A(f"v_add_u32 v12, {L_KVL}, v12")
    KV = 24
    A(f"ds_read_b128 {p4(KV)}, v12")
    A(f"ds_read_b128 {p4(KV+4)}, v12 offset:16")
    A("v_lshlrev_b32 v12, 6, v6")
    A(f"v_add_u32 v12, {L_ST}, v12")
    SR = 32
    for i in range(4): A(f"ds_read_b128 {p4(SR+4*i)}, v12 offset:{16*i}")
    A("v_lshlrev_b32 v12, 3, v6")
    A(f"v_add_u32 v12, {L_SELT}, v12")
    A("ds_read_b64 v[48:49], v12")
    A("v_lshlrev_b32 v13, 2, v7")
    A(f"v_add_u32 v13, {L_TAP+512}, v13")
    A("ds_read_b32 v50, v13")
    YR = 64
    def ld():
        A(f"global_load_dwordx4 {p4(YR)}, v8, {sp(62)} sc1")
        A(f"global_load_dwordx4 {p4(YR+4)}, v8, {sp(62)} offset:16 sc1")
        A(f"global_load_dwordx4 {p4(YR+8)}, v9, {sp(62)} sc1")
        A(f"global_load_dwordx4 {p4(YR+12)}, v9, {sp(62)} offset:16 sc1")
    A("s_waitcnt lgkmcnt(0)")
    A(f"v_lshlrev_b32 v52, 16, v50"); A(f"v_and_b32 v53, s{S_MASK}, v50")
    XN, SS = 80, 96
    for i in range(8):
        m, rs = SR+2*i, SR+2*i+1
        A(f"v_lshlrev_b32 v{SS+2*i}, 16, v{XR+i}"); A(f"v_and_b32 v{SS+2*i+1}, s{S_MASK}, v{XR+i}")
        A(f"v_sub_f32 v{XN+2*i}, v{SS+2*i}, v{m}"); A(f"v_sub_f32 v{XN+2*i+1}, v{SS+2*i+1}, v{m}")
        A(f"v_mul_f32 v{XN+2*i}, v{XN+2*i}, v{rs}"); A(f"v_mul_f32 v{XN+2*i+1}, v{XN+2*i+1}, v{rs}")
        for c in range(2):
            kr = KV + 4*c + (i >> 1)
            t = 54 + c
            if i & 1: A(f"v_and_b32 v{t}, s{S_MASK}, v{kr}")
            else: A(f"v_lshlrev_b32 v{t}, 16, v{kr}")
            A(f"v_fma_f32 v{t}, v{t}, v{52+c}, 1.0")
            A(f"v_fma_f32 v{SS+2*i+c}, v{XN+2*i+c}, v{t}, v{SS+2*i+c}")
    A(f"v_add_u32 v11, {L_OT}, v10")
    A(f"s_lshl_b32 s{T+1}, s{S_WAVE}, 3")
    A(f"v_add_u32 v120, s{T+1}, v1")
    A("v_lshrrev_b32 v121, 3, v120")
    A(f"v_mul_u32_u24 v121, {TBLK}, v121")
    A("v_and_b32 v122, 7, v120")
    A("v_lshl_add_u32 v121, v122, 7, v121")
    A("v_lshl_add_u32 v121, v2, 4, v121")
    A(f"v_add_u32 v121, {L_OT}, v121")
    A(f"v_add_u32 v122, {L_SELT}, v120")
    A("ds_read_u8 v124, v122")
    A("ds_read_u8 v125, v122 offset:64")
    srd(SRD_O, S_OUT, 2359296)
    A(f"s_mul_i32 s{T+1}, s77, {128*1152}")
    A(f"s_lshl_b32 s{T+2}, s76, 7")
    A(f"s_add_u32 s{T+1}, s{T+1}, s{T+2}")
    A("v_mul_u32_u24 v122, 1152, v120")
    A("v_lshl_add_u32 v122, v2, 4, v122")
    A(f"v_add_u32 v122, s{T+1}, v122")
    A(f"v_add_u32 v123, {64*1152}, v122")
    A("s_waitcnt lgkmcnt(0)")
    for va, vs in ((122, 124), (123, 125)):
        A(f"v_lshlrev_b32 v{vs}, 24, v{vs}")
        A(f"v_and_b32 v{vs}, 0x80000000, v{vs}")
        A(f"v_or_b32 v{va}, v{va}, v{vs}")
    if "dbgE" in OPTS: stamp(5)
    tagcheck_loop(ld, [YR+2*j+1 for j in range(8)], 14, 52, sleep=1)
    if "dbgE" in OPTS: stamp(6)
    O = 112
    for i in range(8):
        for c in range(2):
            yr = YR + 8*c + 2*(i >> 1)
            t0 = 54 + c
            if i & 1: A(f"v_and_b32 v{t0}, s{S_MASK}, v{yr}")
            else: A(f"v_lshlrev_b32 v{t0}, 16, v{yr}")
            A(f"v_fma_f32 v{SS+2*i+c}, v{XN+2*i+c}, v{t0}, v{SS+2*i+c}")
        A(f"v_cvt_pk_bf16_f32 v{O+i}, v{SS+2*i}, v{SS+2*i+1}")
        A(f"ds_write_b32 v11, v{O+i} offset:{128*i}")
    Lx = A.newlabel("L_nt1")
    A("v_or_b32 v12, v48, v49")
    A("v_cmp_ne_u32 vcc, 0, v12")
    A("s_nop 3")
    A("s_cmp_eq_u64 vcc, 0")
    A(f"s_cbranch_scc1 {Lx}")
    add64(64, S_WS, WS_T1G)
    A(f"s_lshl_b32 s{T+1}, s76, 6")
    A("v_lshlrev_b32 v13, 1, v7")
    A(f"v_add_u32 v13, s{T+1}, v13")
    for i in range(8):
        Li = A.newlabel("L_t1i")
        A(f"v_bfe_u32 v12, v{48 + (i >> 2)}, {8*(i & 3)}, 8")
        A("v_cmp_lt_u32 vcc, 0x7f, v12")
        A(f"s_and_saveexec_b64 {sp(T+12)}, vcc")
        A(f"s_cbranch_execz {Li}")
        A("v_and_b32 v12, 7, v12")
        A("v_mul_u32_u24 v12, 576, v12")
        A("v_add_u32 v12, v12, v13")
        A("v_lshlrev_b32 v12, 3, v12")
        A(f"v_sub_f32 v56, v{SS+2*i}, v{XN+2*i}")
        A(f"v_mov_b32 v57, s{S_NONCE}")
        A(f"v_sub_f32 v58, v{SS+2*i+1}, v{XN+2*i+1}")
        A(f"v_mov_b32 v59, s{S_NONCE}")
        A(f"global_store_dwordx4 v12, {p4(56)}, {sp(64)} sc1")
        A.label(Li)
        A(f"s_mov_b64 exec, {sp(T+12)}")
    A.label(Lx)
    A("s_waitcnt lgkmcnt(0)")
    A("s_barrier")
    A(f"ds_read_b128 {p4(16)}, v121")
    A(f"ds_read_b128 {p4(20)}, v121 offset:{8*TBLK}")
    A("s_waitcnt lgkmcnt(1)")
    A(f"buffer_store_dwordx4 {p4(16)}, v122, s[{SRD_O}:{SRD_O+3}], 0 offen " + os.environ.get("OUTF", "sc1"))
    A("s_waitcnt lgkmcnt(0)")
    A(f"buffer_store_dwordx4 {p4(20)}, v123, s[{SRD_O}:{SRD_O+3}], 0 offen " + os.environ.get("OUTF", "sc1"))
    stamp(9)
    tl(9, 7, 0)

def conv_wg():
    conv_tile()
    A(f"s_cmp_ge_u32 s{S_WAVE}, 4")
    A("s_cbranch_scc1 L_helper")
    conv_mfma_wave()
    A("s_branch L_epi")
    A.label("L_helper")
    conv_helper_prep()
    A.label("L_epi")
    conv_epilogue()
    A("s_branch L_fin")

M_WG = 0
M_WU = 73728
M_XS = 147456
XS_RS = 1168
M_H = M_XS + 8*XS_RS
H_RS = 144
M_GU = M_H + 8*H_RS
M_RED = M_GU
M_MISC = M_GU + 4096
M_END = M_MISC + 160
M_LIST = 0
S_DUMP = 16384

def moe_dma():
    T = S_T
    srd(SRD_K, S_WGT, 5308416)
    srd(SRD_V, S_WUP, 5308416)
    A("v_lshrrev_b32 v1, 3, v0")
    A("v_and_b32 v2, 7, v0")
    A("v_bfe_u32 v3, v0, 4, 1")
    A(f"s_and_b32 s{T+1}, s{S_WAVE}, 1")
    A(f"s_lshl_b32 s{T+1}, s{T+1}, 1")
    A(f"v_add_u32 v3, s{T+1}, v3")
    A("v_lshlrev_b32 v3, 1, v3")
    A("v_xor_b32 v2, v2, v3")
    A("v_mul_u32_u24 v1, 9216, v1")
    A("v_lshl_add_u32 v1, v2, 4, v1")
    A(f"s_lshl_b32 s{T+1}, s70, 7")
    A(f"v_add_u32 v1, s{T+1}, v1")
    A(f"s_mul_i32 s{T+3}, s{S_WAVE}, 73728")
    A(f"s_lshl_b32 s{T+4}, s{S_WAVE}, 10")
    A(f"s_mov_b32 s{T+5}, 0")
    L = A.newlabel("L_dma")
    A.label(L)
    A(f"s_add_u32 m0, s{T+4}, {M_WG}")
    A("s_nop 0")
    A(f"buffer_load_dwordx4 v1, s[{SRD_K}:{SRD_K+3}], s{T+3} offen {NTW} lds")
    A(f"s_add_u32 m0, s{T+4}, {M_WU}")
    A(f"s_add_u32 s{T+5}, s{T+5}, 1")
    A(f"buffer_load_dwordx4 v1, s[{SRD_V}:{SRD_V+3}], s{T+3} offen {NTW} lds")
    A(f"s_add_u32 s{T+3}, s{T+3}, {8*73728}")
    A(f"s_add_u32 s{T+4}, s{T+4}, {8*1024}")
    A(f"s_cmp_lt_u32 s{T+5}, 9")
    A(f"s_cbranch_scc1 {L}")

def moe_sel_wait():
    T = S_T
    A(f"s_lshl_b32 s{T+1}, s{S_WAVE}, 3")
    A(f"s_add_u32 s{T+1}, s{T+1}, {WS_SEL}")
    A(f"v_mov_b32 v3, s{T+1}")
    A("v_mov_b32 v4, 0")
    L = A.newlabel("L_sw"); Ld = A.newlabel("L_swd")
    A(f"s_mov_b32 s{T}, 0")
    A.label(L)
    A(f"global_load_dwordx2 v[16:17], v3, {sp(S_WS)} sc1")
    A(f"global_load_dword v30, v4, {sp(S_DBG)} sc1")
    A("s_waitcnt vmcnt(0)")
    A(f"v_readfirstlane_b32 s{S_NONCE}, v30")
    A(f"v_readfirstlane_b32 s{T+2}, v17")
    A(f"s_add_u32 s{T}, s{T}, 1")
    A(f"s_cmp_ge_u32 s{T}, {SPIN_MAX}")
    A(f"s_cbranch_scc1 {Ld}")
    A(f"s_cmp_eq_u32 s{S_NONCE}, 0")
    A(f"s_cbranch_scc1 {L}_s")
    A(f"s_cmp_eq_u32 s{T+2}, s{S_NONCE}")
    A(f"s_cbranch_scc1 {Ld}")
    A.label(L + "_s")
    A("s_sleep 3")
    A(f"s_branch {L}")
    A.label(Ld)

def moe_row_loads():
    T = S_T
    A("v_and_b32 v18, 0x7ff, v16")
    A("v_mul_u32_u24 v20, 1152, v18")
    A("v_and_b32 v21, 31, v0")
    A("v_mul_u32_u24 v21, 36, v21")
    A("v_add_u32 v20, v20, v21")
    A(f"global_load_dwordx4 {p4(24)}, v20, {sp(S_Q)}")
    A(f"global_load_dwordx4 {p4(28)}, v20, {sp(S_Q)} offset:16")
    A(f"global_load_dword v32, v20, {sp(S_Q)} offset:32")
    A("v_lshlrev_b32 v22, 3, v18")
    A(f"v_add_u32 v22, {WS_SG}, v22")
    A(f"global_load_dwordx2 v[40:41], v22, {sp(S_WS)} sc1")

def moe_xs_compute():
    T = S_T
    L = A.newlabel("L_sg"); Ld = A.newlabel("L_sgd")
    A(f"s_mov_b32 s{T}, 0")
    A.label(L)
    A(f"v_readfirstlane_b32 s{T+2}, v41")
    A(f"s_add_u32 s{T}, s{T}, 1")
    A(f"s_cmp_eq_u32 s{T+2}, s{S_NONCE}")
    A(f"s_cbranch_scc1 {Ld}")
    A(f"s_cmp_ge_u32 s{T}, {SPIN_MAX}")
    A(f"s_cbranch_scc1 {Ld}")
    A(f"global_load_dwordx2 v[40:41], v22, {sp(S_WS)} sc1")
    A("s_waitcnt vmcnt(0)")
    A(f"s_branch {L}")
    A.label(Ld)
    A(f"v_lshlrev_b32 v44, 16, v40")
    A(f"v_and_b32 v45, s{S_MASK}, v40")
    A("v_rcp_f32 v46, v45")
    A(f"v_and_b32 v52, s{S_MASK}, v16")
    A("v_fma_f32 v47, -v45, v46, 1.0")
    A("v_fma_f32 v46, v47, v46, v46")
    A(f"v_mul_f32 v52, 0x{f32bits(-1.4426950408889634):08x}, v52")
    A("v_exp_f32 v52, v52")
    for i in range(9):
        r = 24 + i
        t = 48 + 2*(i & 1)
        A(f"v_lshlrev_b32 v{t}, 16, v{r}")
        A(f"v_and_b32 v{t+1}, s{S_MASK}, v{r}")
        A(f"v_pk_add_f32 {p2(t)}, {p2(t)}, v[44:45] op_sel_hi:[1,0] neg_lo:[0,1] neg_hi:[0,1]")
        rnd(t); rnd(t+1)
        A(f"v_pk_mul_f32 {p2(t)}, {p2(t)}, v[46:47] op_sel_hi:[1,0]")
        A(f"v_cvt_pk_bf16_f32 v{r}, v{t}, v{t+1}")
    A("v_add_f32 v52, 1.0, v52")
    A("v_rcp_f32 v52, v52")
    A(f"s_mul_i32 s{T+4}, s{S_WAVE}, {XS_RS}")
    A(f"s_add_u32 s{T+4}, s{T+4}, {M_XS}")
    A("v_add_u32 v21, s%d, v21" % (T+4))
    rnd(52)
    A("s_mov_b64 exec, 0xffffffff")
    A("ds_write2_b32 v21, v24, v25 offset0:0 offset1:1")
    A("ds_write2_b32 v21, v26, v27 offset0:2 offset1:3")
    A("ds_write2_b32 v21, v28, v29 offset0:4 offset1:5")
    A("ds_write2_b32 v21, v30, v31 offset0:6 offset1:7")
    A("ds_write_b32 v21, v32 offset:32")
    A(f"s_lshl_b32 s{T+4}, s{S_WAVE}, 2")
    A(f"s_add_u32 s{T+4}, s{T+4}, {M_MISC+32}")
    A(f"v_mov_b32 v53, s{T+4}")
    A("s_mov_b64 exec, 1")
    A("ds_write_b32 v53, v16")
    A("ds_write_b32 v53, v52 offset:32")
    A("s_mov_b64 exec, -1")
    A(f"s_lshl_b32 s{T+1}, s{S_WAVE}, 6")
    A(f"v_add_u32 v1, s{T+1}, v0")

DRA, DRB = 64, 96
def moe_down_loads():
    T = S_T
    A("v_lshrrev_b32 v6, 4, v0")
    A("v_mul_u32_u24 v5, 9216, v6")
    A("v_and_b32 v6, 15, v0")
    A("v_lshl_add_u32 v5, v6, 3, v5")
    A(f"s_mul_i32 s{T+1}, s70, 73728")
    A(f"s_lshl_b32 s{T+2}, s{S_WAVE}, 7")
    A(f"s_add_u32 s{T+1}, s{T+1}, s{T+2}")
    A(f"v_add_u32 v5, s{T+1}, v5")
    srd(SRD_Q, S_WD, 5308416)
    def panel(R, extra):
        for ks in range(2):
            for jj in range(8):
                so = 36864*ks + 4608*(jj//4) + extra
                A(f"s_mov_b32 s{T+3}, {so}")
                r = R + 16*ks + 2*jj
                A(f"buffer_load_dwordx2 {p2(r)}, v5, s[{SRD_Q}:{SRD_Q+3}], s{T+3} offen offset:{1152*(jj%4)} {NTD}")
    panel(DRA, 0)
    L = A.newlabel("L_np8")
    A(f"s_cmp_lg_u32 s{S_WAVE}, 0")
    A(f"s_cbranch_scc1 {L}")
    panel(DRB, 1024)
    A.label(L)

def down_perm(R, F):
    for ks in range(2):
        for e in range(4):
            sel = S_SELLO if (e & 1) == 0 else S_SELHI
            for q in range(4):
                A(f"v_perm_b32 v{F+16*ks+4*e+q}, v{R+16*ks+2*(2*q+1)+e//2}, v{R+16*ks+2*(2*q)+e//2}, s{sel}")

def moe_gateup_addr():
    T = S_T
    A(f"s_lshr_b32 s{T+1}, s{S_WAVE}, 2")
    A(f"s_and_b32 s{T+2}, s{S_WAVE}, 3")
    A("v_lshrrev_b32 v6, 4, v0")
    A("v_bfe_u32 v7, v0, 2, 2")
    A("v_and_b32 v8, 3, v0")
    A("v_lshrrev_b32 v9, 1, v7")
    A("v_and_b32 v10, 1, v6")
    A("v_lshl_add_u32 v9, v10, 1, v9")
    A("v_lshlrev_b32 v9, 1, v9")
    A("v_lshrrev_b32 v10, 1, v8")
    A(f"s_lshl_b32 s{T+3}, s{T+2}, 1")
    A(f"v_add_u32 v10, s{T+3}, v10")
    A("v_xor_b32 v10, v10, v9")
    A("v_lshlrev_b32 v34, 10, v6")
    A("v_lshl_add_u32 v34, v7, 7, v34")
    A("v_lshl_add_u32 v34, v10, 4, v34")
    A("v_and_b32 v8, 1, v8")
    A("v_lshl_add_u32 v34, v8, 3, v34")
    A(f"s_mul_i32 s{T+3}, s{T+1}, {M_WU}")
    A(f"v_add_u32 v34, s{T+3}, v34")
    A(f"v_add_u32 v35, {4096*9}, v34")

def gu_areg(t):
    return f"v[{128+4*t}:{128+4*t+3}]" if t < 16 else f"a[{4*(t-16)}:{4*(t-16)+3}]"
def gu_areg2(t, h):
    if t < 16: return f"v[{128+4*t+2*h}:{128+4*t+2*h+1}]"
    return f"a[{4*(t-16)+2*h}:{4*(t-16)+2*h+1}]"
def moe_gateup_preload():
    for t in range(18):
        a, o = (34, 4096*t) if t < 9 else (35, 4096*(t-9))
        A(f"ds_read_b64_tr_b16 {gu_areg2(t,0)}, v{a} offset:{o}")
        A(f"ds_read_b64_tr_b16 {gu_areg2(t,1)}, v{a} offset:{o+512}")
        if t % 6 == 5: A("s_waitcnt lgkmcnt(2)")

def moe_gateup():
    T = S_T
    A(f"s_lshr_b32 s{T+1}, s{S_WAVE}, 2")
    A(f"s_and_b32 s{T+2}, s{S_WAVE}, 3")
    A("v_lshrrev_b32 v6, 4, v0")
    A("v_and_b32 v3, 7, v0")
    A(f"v_mul_u32_u24 v3, {XS_RS}, v3")
    A("v_lshl_add_u32 v3, v6, 4, v3")
    A(f"v_add_u32 v3, {M_XS}, v3")
    B0 = 8
    def rd(t):
        b = B0 + 4*(t % 12)
        A(f"ds_read_b128 a[{b}:{b+3}], v3 offset:{64*t}")
    for t in range(12): rd(t)
    for t in range(18):
        rem = min(17, t+11) - t
        A(f"s_waitcnt lgkmcnt({min(rem, 15)})")
        b = B0 + 4*(t % 12)
        acc = 8 + 4*(t & 1)
        cin = "0" if t < 2 else f"v[{acc}:{acc+3}]"
        A(f"v_mfma_f32_16x16x32_bf16 v[{acc}:{acc+3}], {gu_areg(t)}, a[{b}:{b+3}], {cin}")
        if t + 12 < 18: rd(t+12)
    A("v_and_b32 v3, 15, v0")
    A("v_lshlrev_b32 v4, 8, v3")
    A("v_lshl_add_u32 v4, v6, 4, v4")
    A(f"s_lshl_b32 s{T+3}, s{T+1}, 11")
    A(f"s_lshl_b32 s{T+4}, s{T+2}, 6")
    A(f"s_add_u32 s{T+3}, s{T+3}, s{T+4}")
    A(f"s_add_u32 s{T+3}, s{T+3}, {M_GU}")
    A(f"v_add_u32 v4, s{T+3}, v4")
    A("v_cmp_gt_u32 vcc, 8, v3")
    A(f"s_and_saveexec_b64 {sp(T+12)}, vcc")
    A("s_nop 1")
    A("v_pk_add_f32 v[8:9], v[8:9], v[12:13]")
    A("v_pk_add_f32 v[10:11], v[10:11], v[14:15]")
    A(f"ds_write_b128 v4, {p4(8)}")
    A(f"s_mov_b64 exec, {sp(T+12)}")

def moe_h_and_down_stage():
    T = S_T
    A("v_lshlrev_b32 v2, 2, v1")
    A(f"v_add_u32 v2, {M_GU}, v2")
    A("ds_read_b32 v8, v2")
    A("ds_read_b32 v9, v2 offset:2048")
    A("v_lshrrev_b32 v3, 6, v1")
    A(f"v_mul_u32_u24 v3, {H_RS}, v3")
    A("v_lshl_add_u32 v3, v0, 1, v3")
    A(f"v_add_u32 v3, {M_H}, v3")
    A("s_waitcnt lgkmcnt(0)")
    rnd(8); rnd(9)
    A(f"v_mul_f32 v10, 0x{f32bits(-1.4426950408889634):08x}, v8")
    A("v_exp_f32 v10, v10")
    A("s_nop 0")
    A("v_add_f32 v10, 1.0, v10")
    A("v_rcp_f32 v10, v10")
    A("s_nop 0")
    A("v_mul_f32 v10, v8, v10")
    rnd(10)
    A("v_mul_f32 v10, v10, v9")
    A("v_cvt_pk_bf16_f32 v10, v10, v10")
    A("ds_write_b16 v3, v10")
    A("s_waitcnt vmcnt(0)")
    down_perm(DRA, 32)
    L = A.newlabel("L_np8b")
    A(f"s_cmp_lg_u32 s{S_WAVE}, 0")
    A(f"s_cbranch_scc1 {L}")
    down_perm(DRB, 64)
    A.label(L)

def moe_down():
    T = S_T
    A("v_and_b32 v2, 7, v0")
    A(f"v_mul_u32_u24 v2, {H_RS}, v2")
    A("v_lshrrev_b32 v6, 4, v0")
    A("v_lshl_add_u32 v2, v6, 4, v2")
    A(f"v_add_u32 v2, {M_H}, v2")
    A(f"ds_read_b128 {p4(16)}, v2")
    A(f"ds_read_b128 {p4(20)}, v2 offset:64")
    A("v_and_b32 v4, 15, v0")
    A("v_lshlrev_b32 v5, 4, v4")
    A("v_lshl_add_u32 v5, v6, 9, v5")
    A(f"s_mul_i32 s{T+1}, s70, 18432")
    A(f"s_lshl_b32 s{T+2}, s{S_WAVE}, 11")
    A(f"s_add_u32 s{T+1}, s{T+1}, s{T+2}")
    A(f"v_add_u32 v5, s{T+1}, v5")
    add64(T+2, S_WS, WS_PART)
    A(f"s_mov_b32 s{T+4}, 0x07060503"); A(f"s_mov_b32 s{T+5}, 0x06050302"); A(f"s_mov_b32 s{T+6}, 0x05030201")
    A("v_cmp_gt_u32 vcc, 8, v4")
    A(f"s_mov_b64 {sp(T+12)}, vcc")
    A("s_waitcnt lgkmcnt(0)")
    def panel(F, ACC, G, vaddr):
        for e in range(4):
            A(f"v_mfma_f32_16x16x32_bf16 {p4(ACC+4*e)}, {p4(F+4*e)}, {p4(16)}, 0")
        for e in range(4):
            A(f"v_mfma_f32_16x16x32_bf16 {p4(ACC+4*e)}, {p4(F+16+4*e)}, {p4(20)}, {p4(ACC+4*e)}")
        A("s_nop 7"); A("s_nop 1")
        for r in range(4):
            g = G + 4*r
            a, b, c, d = ACC+r, ACC+4+r, ACC+8+r, ACC+12+r
            A(f"v_perm_b32 v{g}, v{a}, v{b}, s{T+4}")
            A(f"v_perm_b32 v{g+1}, v{b}, v{c}, s{T+5}")
            A(f"v_perm_b32 v{g+2}, v{c}, v{d}, s{T+6}")
            A(f"v_mov_b32 v{g+3}, s{S_NONCE}")
        A(f"s_mov_b64 exec, {sp(T+12)}")
        for r in range(4):
            A(f"global_store_dwordx4 v{vaddr}, {p4(G+4*r)}, {sp(T+2)} offset:{128*r} sc1")
        A("s_mov_b64 exec, -1")
    panel(32, 96, 112, 5)
    L = A.newlabel("L_np8c")
    A(f"s_cmp_lg_u32 s{S_WAVE}, 0")
    A(f"s_cbranch_scc1 {L}")
    A(f"v_add_u32 v7, {8*2048}, v5")
    panel(64, 96, 32, 7)
    A.label(L)

def moe_reduce():
    T = S_T
    A("v_lshrrev_b32 v6, 4, v0")
    A(f"s_mul_i32 s{T+1}, s{S_WAVE}, 9")
    A(f"v_add_u32 v1, s{T+1}, v6")
    A(f"v_mul_u32_u24 v1, 18432, v1")
    A("v_and_b32 v2, 15, v0")
    A("v_lshl_add_u32 v1, v2, 4, v1")
    A(f"s_lshl_b32 s{T+1}, s70, 8")
    A(f"v_add_u32 v1, s{T+1}, v1")
    A(f"v_add_u32 v3, {4*18432}, v1")
    A(f"v_mul_u32_u24 v4, 18432, v6")
    A(f"v_sub_u32 v4, v1, v4")
    A(f"v_add_u32 v4, {8*18432}, v4")
    A("v_lshrrev_b32 v50, 2, v0")
    A("v_and_b32 v51, 3, v0")
    A(f"s_lshl_b32 s{T+1}, s70, 4")
    A(f"v_add_u32 v52, s{T+1}, v50")
    A("v_and_b32 v53, 7, v52")
    A("v_lshrrev_b32 v54, 3, v52")
    A("v_lshl_add_u32 v54, v54, 2, v51")
    A("v_mul_u32_u24 v55, 576, v53")
    A("v_add_u32 v55, v55, v54")
    A("v_lshlrev_b32 v55, 3, v55")
    A(f"v_add_u32 v55, {WS_T1G}, v55")
    add64(T+2, S_WS, WS_PART)
    def ld():
        A(f"global_load_dwordx4 {p4(16)}, v1, {sp(T+2)} sc1")
        A(f"global_load_dwordx4 {p4(20)}, v3, {sp(T+2)} sc1")
        A(f"global_load_dwordx4 {p4(24)}, v4, {sp(T+2)} sc1")
    tagcheck_loop(ld, [19, 23, 27], 10, 12, sleep=1)
    stamp(8)
    tl(14, 151, 0)
    A(f"s_mov_b32 s{T+4}, 0x0403020c"); A(f"s_mov_b32 s{T+5}, 0x0504030c"); A(f"s_mov_b32 s{T+6}, 0xffffff00")
    U = 32
    for i in range(3):
        g = 16 + 4*i; u = U + 4*i
        A(f"v_and_b32 v{u}, s{T+6}, v{g}")
        A(f"v_perm_b32 v{u+1}, v{g}, v{g+1}, s{T+4}")
        A(f"v_perm_b32 v{u+2}, v{g+1}, v{g+2}, s{T+5}")
        A(f"v_lshlrev_b32 v{u+3}, 8, v{g+2}")
    for r in range(4):
        A(f"v_add_f32 v{U+r}, v{U+r}, v{U+4+r}")
    for swap in ("v_permlane32_swap_b32", "v_permlane16_swap_b32"):
        for r in range(4): A(f"v_mov_b32 v{44+r}, v{U+r}")
        A("s_nop 1")
        for r in range(4): A(f"{swap} v{U+r}, v{44+r}")
        for r in range(4): A(f"v_add_f32 v{U+r}, v{U+r}, v{44+r}")
    for r in range(4):
        A(f"v_add_f32 v{U+r}, v{U+r}, v{U+8+r}")
    A(f"s_lshl_b32 s{T+1}, s{S_WAVE}, 8")
    A("v_lshlrev_b32 v5, 4, v2")
    A(f"v_add_u32 v5, s{T+1}, v5")
    A(f"v_add_u32 v5, {M_RED}, v5")
    A("s_mov_b64 exec, 0xffff")
    A(f"ds_write_b128 v5, {p4(U)}")
    A("s_mov_b64 exec, -1")
    A("s_waitcnt lgkmcnt(0)")
    A("s_barrier")
    L = A.newlabel("L_nofin")
    A(f"s_cmp_lg_u32 s{S_WAVE}, 0")
    A(f"s_cbranch_scc1 {L}")
    A("v_lshlrev_b32 v6, 4, v50")
    A("v_lshl_add_u32 v6, v51, 2, v6")
    A(f"v_add_u32 v6, {M_RED}, v6")
    for w in range(8): A(f"ds_read_b32 v{16+w}, v6 offset:{256*w}")
    A(f"v_mul_u32_u24 v7, {XS_RS}, v53")
    A("v_lshl_add_u32 v7, v54, 1, v7")
    A(f"v_add_u32 v7, {M_XS}, v7")
    A("ds_read_u16 v24, v7")
    A("v_lshlrev_b32 v8, 2, v53")
    A(f"v_add_u32 v8, {M_MISC}, v8")
    A("ds_read_b32 v25, v8 offset:32")
    A("ds_read_b32 v26, v8 offset:64")
    A("v_mov_b32 v5, v54")
    A("s_waitcnt lgkmcnt(0)")
    T1POLL = True
    A("v_add_f32 v16, v16, v17"); A("v_add_f32 v18, v18, v19"); A("v_add_f32 v20, v20, v21"); A("v_add_f32 v22, v22, v23")
    A("v_add_f32 v16, v16, v18"); A("v_add_f32 v20, v20, v22"); A("v_add_f32 v16, v16, v20")
    rnd(16)
    A("v_mul_f32 v16, v16, v26")
    rnd(16)
    A("v_lshlrev_b32 v24, 16, v24")
    A("v_add_f32 v16, v24, v16")
    rnd(16)
    A("v_and_b32 v25, 0x7ff, v25")
    A("v_mul_u32_u24 v25, 1152, v25")
    A("v_lshl_add_u32 v25, v5, 1, v25")
    tagcheck_loop(lambda: A(f"global_load_dwordx2 v[28:29], v55, {sp(S_WS)} sc1"), [29], 10, 12, sleep=0)
    A("v_add_f32 v16, v28, v16")
    A("v_cvt_pk_bf16_f32 v16, v16, v16")
    A(f"global_store_short v25, v16, {sp(S_OUT)}")
    A.label(L)

def lds_init_list():
    T = S_T
    A(f"s_lshl_b32 s{T+1}, s{S_WAVE}, 10")
    A("v_lshlrev_b32 v110, 4, v0")
    A(f"v_add_u32 v111, s{T+1}, v110")
    A(f"v_add_u32 v111, {M_LIST}, v111")
    for i in range(4): A(f"v_mov_b32 v{112+i}, 0xff800000")
    A(f"ds_write_b128 v111, {p4(112)}")
    L0 = A.newlabel("L_ni")
    A(f"s_cmp_lg_u32 s{S_WAVE}, 0")
    A(f"s_cbranch_scc1 {L0}")
    A(f"v_add_u32 v111, {M_LIST+8192}, v110")
    A("s_mov_b64 exec, 0xf")
    A(f"ds_write_b128 v111, {p4(112)}")
    A("s_mov_b64 exec, -1")
    for i in range(4): A(f"v_mov_b32 v{116+i}, 0")
    A(f"v_add_u32 v111, {M_MISC}, v110")
    A("s_mov_b64 exec, 0x3ff")
    A(f"ds_write_b128 v111, {p4(116)}")
    A("s_mov_b64 exec, -1")
    A.label(L0)

def sel_top8():
    T = S_T
    A(f"s_lshl_b32 s{T+1}, s{S_WAVE}, 6")
    A(f"v_add_u32 v1, s{T+1}, v0")
    A("v_lshlrev_b32 v2, 5, v1")
    add64(T+2, S_WS, WS_RG)
    K = 16
    def ld():
        for i in range(2):
            A(f"global_load_dwordx4 {p4(K+4*i)}, v2, {sp(T+2)} offset:{16*i} sc1")
    tagcheck_loop(ld, [K+2*i+1 for i in range(4)], 10, 12, sleep=1)
    stamp(5)
    tl(10, 255, 0)
    keys = [K+2*i for i in range(4)]
    A(f"v_max3_f32 v40, v{keys[0]}, v{keys[1]}, v{keys[2]}")
    A(f"v_max_f32 v40, v40, v{keys[3]}")
    for sh in (8, 4, 2, 1):
        A("s_nop 1")
        A(f"v_max_f32_dpp v40, v40, v40 row_ror:{sh} row_mask:0xf bank_mask:0xf")
    A("s_nop 1")
    A(f"v_readlane_b32 s{T+4}, v40, 16")
    A(f"v_readlane_b32 s{T+5}, v40, 32")
    A(f"v_readlane_b32 s{T+6}, v40, 48")
    A("s_nop 1")
    A(f"v_max_f32 v40, s{T+4}, v40")
    A(f"v_max_f32 v40, s{T+5}, v40")
    A(f"v_max_f32 v40, s{T+6}, v40")
    A(f"s_lshl_b32 s{T+4}, s{S_WAVE}, 2")
    A(f"s_add_u32 s{T+4}, s{T+4}, {M_MISC+96}")
    A(f"v_mov_b32 v43, s{T+4}")
    A("s_mov_b64 exec, 1")
    A(f"ds_write_b32 v43, v40")
    A("s_mov_b64 exec, -1")
    A("s_waitcnt lgkmcnt(0)")
    A("s_barrier")
    A(f"v_mov_b32 v43, {M_MISC+96}")
    A(f"ds_read_b128 {p4(44)}, v43")
    A(f"ds_read_b128 {p4(48)}, v43 offset:16")
    A("s_waitcnt lgkmcnt(0)")
    A("v_min3_f32 v40, v44, v45, v46")
    A("v_min3_f32 v41, v47, v48, v49")
    A("v_min3_f32 v40, v40, v50, v51")
    A("v_min_f32 v40, v40, v41")
    A("v_mov_b32 v41, 0")
    for i in range(4):
        A(f"v_cmp_ge_f32 {sp(T+4+2*i)}, v{keys[i]}, v40")
    for q in range(4):
        A(f"v_addc_co_u32 v41, vcc, 0, v41, {sp(T+4+2*q)}")
    A(f"v_mov_b32 v43, {M_MISC}")
    A("v_cmp_lt_u32 vcc, 0, v41")
    A(f"s_and_saveexec_b64 {sp(T+12)}, vcc")
    A("ds_add_rtn_u32 v42, v43, v41")
    A(f"s_mov_b64 exec, {sp(T+12)}")
    A("s_waitcnt lgkmcnt(0)")
    A("v_lshlrev_b32 v42, 2, v42")
    A(f"v_add_u32 v42, {M_LIST}, v42")
    A(f"v_mov_b32 v43, {S_DUMP}")
    for i in range(4):
        A(f"v_cndmask_b32 v44, v43, v42, {sp(T+4+2*i)}")
        A(f"v_cndmask_b32 v45, 0, 4, {sp(T+4+2*i)}")
        A(f"ds_write_b32 v44, v{keys[i]}")
        A(f"v_add_u32 v42, v42, v45")
    A("s_waitcnt lgkmcnt(0)")
    A("s_barrier")
    A(f"v_mov_b32 v43, {M_MISC}")
    A("ds_read_b32 v44, v43")
    A("s_waitcnt lgkmcnt(0)")
    A(f"v_readfirstlane_b32 s{T+8}, v44")
    A(f"s_mov_b32 s{T+9}, 0")
    Lc = A.newlabel("L_chunk"); Lj = A.newlabel("L_j")
    A.label(Lc)
    A(f"v_add_u32 v44, s{T+9}, v0")
    A("v_lshlrev_b32 v44, 2, v44")
    A(f"v_add_u32 v44, {M_LIST}, v44")
    A("ds_read_b32 v46, v44")
    A("v_mov_b32 v47, 0")
    A(f"v_mov_b32 v45, {M_LIST}")
    A(f"s_mov_b32 s{T+10}, 0")
    A.label(Lj)
    A(f"ds_read_b128 {p4(48)}, v45")
    A(f"ds_read_b128 {p4(52)}, v45 offset:16")
    A("v_add_u32 v45, 32, v45")
    A(f"s_add_u32 s{T+10}, s{T+10}, 8")
    A("s_waitcnt lgkmcnt(1)")
    for q in range(4):
        A(f"v_cmp_gt_f32 {sp(T+2*q)}, v{48+q}, v46")
    for q in range(4):
        A(f"v_addc_co_u32 v47, vcc, 0, v47, {sp(T+2*q)}")
    A("s_waitcnt lgkmcnt(0)")
    for q in range(4):
        A(f"v_cmp_gt_f32 {sp(T+2*q)}, v{52+q}, v46")
    for q in range(4):
        A(f"v_addc_co_u32 v47, vcc, 0, v47, {sp(T+2*q)}")
    A(f"s_cmp_lt_u32 s{T+10}, s{T+8}")
    A(f"s_cbranch_scc1 {Lj}")
    A(f"v_add_u32 v44, s{T+9}, v0")
    A(f"v_cmp_gt_u32 vcc, s{T+8}, v44")
    A(f"v_cmp_gt_u32 {sp(T)}, 8, v47")
    A("s_nop 1")
    A(f"s_and_b64 vcc, vcc, {sp(T)}")
    A(f"s_and_saveexec_b64 {sp(T+12)}, vcc")
    A("v_lshlrev_b32 v47, 2, v47")
    A(f"v_add_u32 v47, {M_MISC+32}, v47")
    A("ds_write_b32 v47, v46")
    A(f"s_mov_b64 exec, {sp(T+12)}")
    A(f"s_add_u32 s{T+9}, s{T+9}, 64")
    A(f"s_cmp_lt_u32 s{T+9}, s{T+8}")
    A(f"s_cbranch_scc1 {Lc}")
    A("s_waitcnt lgkmcnt(0)")
    stamp(6)

def sel_publish():
    T = S_T
    L = A.newlabel("L_sp")
    A(f"s_cmp_lg_u32 s{S_WAVE}, 0")
    A(f"s_cbranch_scc1 {L}")
    A("v_lshlrev_b32 v1, 2, v0")
    A(f"v_add_u32 v1, {M_MISC+32}, v1")
    A("s_mov_b64 exec, 0xff")
    A("ds_read_b32 v2, v1")
    add64(T+2, S_WS, WS_SEL)
    A(f"v_mov_b32 v3, s{S_NONCE}")
    A("v_lshlrev_b32 v4, 3, v0")
    A("s_waitcnt lgkmcnt(0)")
    A(f"global_store_dwordx2 v4, v[2:3], {sp(T+2)} sc1")
    A("s_mov_b64 exec, -1")
    A.label(L)
    stamp(7)
    tl(11, 255, 0)

def ln_pass(stok):
    ln_loads(stok, LN_Q, True)
    A("v_mov_b32 v120, 0")
    A(f"global_load_dword v121, v120, {sp(S_DBG)} sc1")
    A("s_waitcnt vmcnt(1)")
    def hook():
        Lhn = A.newlabel("L_lnn")
        A("s_waitcnt vmcnt(0)")
        A(f"v_readfirstlane_b32 s{S_NONCE}, v121")
        A(f"s_cmp_lg_u32 s{S_NONCE}, 0")
        A(f"s_cbranch_scc1 {Lhn}")
        get_nonce(124)
        A.label(Lhn)
    ln_compute_publish(LN_Q, 3, True, hook=hook)

def spare_wg():
    T = S_T
    A(f"s_sub_u32 s69, s69, {NMOE}")
    A("s_mul_i32 s68, s69, 24")
    A(f"s_lshl_b32 s{T+1}, s{S_WAVE}, 2")
    A(f"s_add_u32 s68, s68, s{T+1}")
    A("s_add_u32 s68, s68, 1152")
    Le = A.newlabel("L_lne")
    A(f"s_cmp_ge_u32 s{S_WAVE}, 6")
    A(f"s_cbranch_scc1 {Le}")
    A("s_cmp_ge_u32 s68, 2048")
    A(f"s_cbranch_scc1 {Le}")
    ln_pass(68)
    A.label(Le)
    stamp(4)
    A(f"s_cmp_lg_u32 s69, {SELIDX}")
    A("s_cbranch_scc1 L_fin")
    lds_init_list()
    get_nonce(124)
    A("s_waitcnt lgkmcnt(0)")
    A("s_barrier")
    sel_top8()
    sel_publish()
    A("s_branch L_fin")

def moe_wg():
    T = S_T
    A(f"s_sub_u32 s69, s{S_WG}, {NCONV}")
    A(f"s_cmp_ge_u32 s69, {NMOE}")
    A("s_cbranch_scc1 L_spare")
    A("s_and_b32 s70, s69, 7")
    A("s_mul_i32 s70, s70, 9")
    A(f"s_lshr_b32 s{T+1}, s69, 3")
    A(f"s_add_u32 s70, s70, s{T+1}")
    Lm = A.newlabel("L_mln")
    A(f"s_cmp_ge_u32 s{S_WAVE}, 4")
    A(f"s_cbranch_scc1 {Lm}")
    A("s_lshl_b32 s68, s69, 4")
    A(f"s_lshl_b32 s{T+1}, s{S_WAVE}, 2")
    A(f"s_add_u32 s68, s68, s{T+1}")
    ln_pass(68)
    A.label(Lm)
    if "mbar" in OPTS: A("s_barrier")
    if "mnonce" in OPTS: get_nonce(10)
    stamp(3)
    moe_dma()
    A("s_waitcnt vmcnt(4)")
    stamp(4)
    moe_sel_wait()
    stamp(5)
    tl(12, 151, 7)
    moe_row_loads()
    A("s_barrier")
    if "xsfirst" in OPTS:
        moe_gateup_addr()
        moe_gateup_preload()
        A("s_waitcnt vmcnt(0)")
    else:
        moe_down_loads()
        moe_gateup_addr()
        moe_gateup_preload()
        Lq = A.newlabel("L_w32")
        A(f"s_cmp_lg_u32 s{S_WAVE}, 0")
        A(f"s_cbranch_scc1 {Lq}")
        A("s_waitcnt vmcnt(32)")
        A.label(Lq)
        A(f"s_cmp_eq_u32 s{S_WAVE}, 0")
        A(f"s_cbranch_scc1 {Lq}_b")
        A("s_waitcnt vmcnt(16)")
        A.label(Lq + "_b")
    moe_xs_compute()
    if "xsfirst" in OPTS:
        A("s_waitcnt lgkmcnt(0)")
        A("s_barrier")
        moe_gateup()
        moe_down_loads()
        A("s_waitcnt lgkmcnt(0)")
        A("s_barrier")
        moe_h_and_down_stage()
        A("s_waitcnt lgkmcnt(0)")
        A("s_barrier")
        stamp(7)
        moe_down()
        moe_reduce()
        A("s_branch L_fin")
    stamp(6)
    tl(13, 151, 7)
    A("s_waitcnt lgkmcnt(0)")
    A("s_barrier")
    moe_gateup()
    A("s_waitcnt lgkmcnt(0)")
    A("s_barrier")
    moe_h_and_down_stage()
    A("s_waitcnt lgkmcnt(0)")
    A("s_barrier")
    stamp(7)
    moe_down()
    moe_reduce()
    A("s_branch L_fin")
    A.label("L_spare")
    spare_wg()

def main():
    prologue()
    A(f"s_cmp_ge_u32 s{S_WG}, {NCONV}")
    A("s_cbranch_scc1 L_moe")
    conv_wg()
    A.label("L_moe")
    moe_wg()
    A.label("L_fin")
    tl(15, 151, 0)
    prof_end()
    A.label("L_end")
    A("s_endpgm")

main()
K = NAME + "_kernel"
LDS = max(L_CONV_END, M_END)
txt = HDR + f"; @launch grid=(256,1,1) block=(512,1,1) lds={LDS}\n" + '.amdgcn_target "amdgcn-amd-amdhsa--gfx950"\n.text\n' + head(K) + A.text() + kd(K, 256, 102, 192, "  .amdhsa_float_denorm_mode_32 3\n")
open(OUTFN, "w").write(txt)
print("wrote", OUTFN, len(txt), "LDS", LDS)
```

```python
import sys, struct, os
sys.path.insert(0, "dev")
from asmlib import *

OUTFN = sys.argv[1] if len(sys.argv) > 1 else "k.s"
OPTS = set(sys.argv[2:])
PROF = "prof" in OPTS
NT = "nt" if "nt" in OPTS else ""
NTKV = "nt" if "ntkv" in OPTS else NT
NTH = "nt" if "nth" in OPTS else NT
NTW = "nt" if "ntw" in OPTS else NT
NTD = "nt" if "ntd" in OPTS else NT
NTP = "nt" if "ntp" in OPTS else NT
NTLN = "nt" if "ntln" in OPTS else NT
NTQ = "nt" if "ntq" in OPTS else NT

WS_KVT = 0x000000
WS_XT = 0x240000
WS_RG = 0x480000
WS_SG = 0x484000
WS_FL = 0x488000
WS_FL2 = 0x488800
WS_SEL = 0x489800
WS_T1G = 0x48A000
WS_XSG = 0x494000
WS_PART = 0x4A0000
WS_PROF = 0x800000
WS_YG = 0x1000000
SPIN_MAX = 2000 if "dbgB" in OPTS else 400000
NCONV, NMOE = 144, 72
NLN = 40
SELIDX = 39

S_WG, S_WAVE = 2, 3
S_Q, S_K, S_V, S_SK, S_H, S_D, S_BX, S_WR, S_WGT, S_WUP, S_WD, S_OUT, S_DBG, S_WS = 4, 6, 8, 10, 12, 14, 16, 18, 20, 22, 24, 26, 28, 30
SRD_K, SRD_V, SRD_Q, SRD_O = 32, 36, 40, 44
S_NONCE = 48
S_MASK, S_SELLO, S_SELHI = 50, 51, 52
S_T = 54

A = Asm()
def f32bits(x): return struct.unpack("<I", struct.pack("<f", x))[0]
def p2(r): return f"v[{r}:{r+1}]"
def p4(r): return f"v[{r}:{r+3}]"
def sp(r): return f"s[{r}:{r+1}]"

NSTAMP = 10
def stamp(i):
    if PROF: A(f"s_memtime s[{80+2*i}:{81+2*i}]")
def prof_begin():
    if PROF:
        A("s_memrealtime s[100:101]")
        stamp(0)
        for i in range(1, NSTAMP):
            A(f"s_mov_b64 s[{80+2*i}:{81+2*i}], 0")
def prof_end():
    if not PROF: return
    A(f"s_memrealtime s[{S_T+2}:{S_T+3}]")
    A("s_waitcnt lgkmcnt(0)")
    A(f"s_lshl_b32 s{S_T}, s{S_WG}, 3")
    A(f"s_add_u32 s{S_T}, s{S_T}, s{S_WAVE}")
    A(f"s_lshl_b32 s{S_T}, s{S_T}, 6")
    A(f"s_add_u32 s{S_T}, s{S_T}, {WS_PROF}")
    A(f"v_mov_b32 v1, s{S_T}")
    A("s_mov_b64 exec, 1")
    A("v_mov_b32 v2, s100")
    A(f"global_store_dword v1, v2, {sp(S_WS)}")
    A(f"v_mov_b32 v2, s{S_T+2}")
    A(f"global_store_dword v1, v2, {sp(S_WS)} offset:4")
    for i in range(1, NSTAMP):
        A(f"s_sub_u32 s{S_T+1}, s{80+2*i}, s80")
        A(f"v_mov_b32 v2, s{S_T+1}")
        A(f"global_store_dword v1, v2, {sp(S_WS)} offset:{4+4*i}")
    A("s_mov_b64 exec, -1")

TL = "tl" in OPTS
TLSET = os.environ.get("TLSET", "A")
def tl(slot, wg, wave, setname="A"):
    if not TL or setname != TLSET: return
    L = A.newlabel("L_tl")
    A(f"s_cmp_lg_u32 s{S_WG}, {wg}")
    A(f"s_cbranch_scc1 {L}")
    A(f"s_cmp_lg_u32 s{S_WAVE}, {wave}")
    A(f"s_cbranch_scc1 {L}")
    A("s_memrealtime s[98:99]")
    A("s_mov_b64 s[100:101], exec")
    A("s_mov_b64 exec, 1")
    A("v_readfirstlane_b32 s96, v126")
    A("v_readfirstlane_b32 s97, v127")
    A(f"v_mov_b32 v126, {4*slot}")
    A("s_waitcnt lgkmcnt(0)")
    A("v_mov_b32 v127, s98")
    A(f"global_store_dword v126, v127, {sp(S_DBG)}")
    A("s_nop 4")
    A("v_mov_b32 v126, s96")
    A("v_mov_b32 v127, s97")
    A("s_mov_b64 exec, s[100:101]")
    A.label(L)

def rnd(v, src=None):
    A(f"v_cvt_pk_bf16_f32 v{v}, 0, v{v if src is None else src}")
def srd(dst, base, nbytes):
    A(f"s_mov_b32 s{dst}, s{base}")
    A(f"s_and_b32 s{dst+1}, s{base+1}, 0xffff")
    A(f"s_mov_b32 s{dst+2}, {nbytes}")
    A(f"s_mov_b32 s{dst+3}, 0x00020000")
def add64(dst, src, imm):
    A(f"s_add_u32 s{dst}, s{src}, {imm}")
    A(f"s_addc_u32 s{dst+1}, s{src+1}, 0")

def get_nonce(vtmp):
    L = A.newlabel("L_nonce"); Ld = A.newlabel("L_nonced")
    A(f"v_mov_b32 v{vtmp}, 0")
    A(f"s_mov_b32 s{S_T}, 0")
    A.label(L)
    A(f"global_load_dword v{vtmp+1}, v{vtmp}, {sp(S_DBG)} sc1")
    A(f"s_waitcnt vmcnt(0)")
    A(f"v_readfirstlane_b32 s{S_NONCE}, v{vtmp+1}")
    A(f"s_add_u32 s{S_T}, s{S_T}, 1")
    A(f"s_cmp_lg_u32 s{S_NONCE}, 0")
    A(f"s_cbranch_scc1 {Ld}")
    A(f"s_cmp_lt_u32 s{S_T}, {SPIN_MAX}")
    A(f"s_cbranch_scc1 {L}")
    A.label(Ld)

def tag_acc(tagregs, vacc, vtmp):
    A(f"v_xor_b32 v{vacc}, s{S_NONCE}, v{tagregs[0]}")
    rest = tagregs[1:]
    i = 0
    while i < len(rest):
        if i + 1 < len(rest):
            A(f"v_xor_b32 v{vtmp}, s{S_NONCE}, v{rest[i]}")
            A(f"v_xor_b32 v{vtmp+1}, s{S_NONCE}, v{rest[i+1]}")
            A(f"v_or3_b32 v{vacc}, v{vacc}, v{vtmp}, v{vtmp+1}")
            i += 2
        else:
            A(f"v_xor_b32 v{vtmp}, s{S_NONCE}, v{rest[i]}")
            A(f"v_or_b32 v{vacc}, v{vacc}, v{vtmp}")
            i += 1

def tagcheck_loop(load_fn, tagregs, vacc, vtmp, sleep=1):
    T = S_T
    L = A.newlabel("L_pl"); Ld = A.newlabel("L_pld")
    A(f"s_mov_b32 s{T}, 0")
    A.label(L)
    load_fn()
    A("s_waitcnt vmcnt(0)")
    tag_acc(tagregs, vacc, vtmp)
    A(f"v_cmp_ne_u32 vcc, 0, v{vacc}")
    A(f"s_add_u32 s{T}, s{T}, 1")
    A("s_nop 3")
    A("s_cmp_eq_u64 vcc, 0")
    A(f"s_cbranch_scc1 {Ld}")
    if sleep: A(f"s_sleep {sleep}")
    A(f"s_cmp_lt_u32 s{T}, {SPIN_MAX}")
    A(f"s_cbranch_scc1 {L}")
    A.label(Ld)

def nonce_writer():
    L = A.newlabel("L_nw")
    A(f"s_cmp_ge_u32 s{S_WG}, 8")
    A(f"s_cbranch_scc1 {L}")
    A(f"s_cmp_lg_u32 s{S_WAVE}, 7")
    A(f"s_cbranch_scc1 {L}")
    A(f"s_memrealtime {sp(S_T)}")
    A("s_waitcnt lgkmcnt(0)")
    A(f"s_or_b32 s{S_T}, s{S_T}, 1")
    A(f"v_mov_b32 v10, s{S_T}")
    A("v_mov_b32 v11, 0")
    A("v_mov_b32 v12, 0")
    A("s_mov_b64 exec, 1")
    A(f"global_atomic_cmpswap v12, v[10:11], {sp(S_DBG)} sc1")
    A("s_mov_b64 exec, -1")
    A.label(L)

def code_prefetch():
    T = S_T
    L = A.newlabel("L_cpf")
    A(f"s_cmp_lg_u32 s{S_WAVE}, 6")
    A(f"s_cbranch_scc1 {L}")
    A(f"s_lshr_b32 s{T+2}, s{S_WG}, 3")
    A(f"s_cmp_ge_u32 s{T+2}, (L_end - {NAME}_kernel + 1023) / 1024")
    A(f"s_cbranch_scc1 {L}")
    A(f"s_getpc_b64 {sp(T)}")
    A.label(L + "_pc")
    A(f"s_sub_u32 s{T}, s{T}, {L}_pc - {NAME}_kernel")
    A(f"s_subb_u32 s{T+1}, s{T+1}, 0")
    A(f"s_lshl_b32 s{T+2}, s{T+2}, 10")
    A("v_lshlrev_b32 v1, 4, v0")
    A(f"v_add_u32 v1, s{T+2}, v1")
    A(f"global_load_dwordx4 a[60:63], v1, {sp(T)}")
    A.label(L)

def prologue():
    A(f"s_cmp_ge_u32 s{S_WG}, 256")
    A("s_cbranch_scc1 L_end")
    prof_begin()
    A("s_load_dwordx16 s[4:19], s[0:1], 0")
    A("s_load_dwordx8 s[20:27], s[0:1], 64")
    A("s_load_dwordx4 s[28:31], s[0:1], 96")
    A("v_lshrrev_b32 v1, 6, v0")
    A("v_and_b32 v0, 63, v0")
    A(f"v_readfirstlane_b32 s{S_WAVE}, v1")
    A(f"s_mov_b32 s{S_MASK}, 0xffff0000")
    A(f"s_mov_b32 s{S_SELLO}, 0x05040100")
    A(f"s_mov_b32 s{S_SELHI}, 0x07060302")
    A("s_waitcnt lgkmcnt(0)")
    stamp(1)
    tl(1, 0, 0); tl(2, 7, 0); tl(3, 4, 0)
    nonce_writer()
    code_prefetch()

def dpp_sum16(v):
    for sh in (8, 4, 2, 1):
        A("s_nop 1")
        A(f"v_add_f32_dpp v{v}, v{v}, v{v} row_ror:{sh} row_mask:0xf bank_mask:0xf")

LN_Q, LN_W, LN_Q2 = 10, 28, 46
def ln_loads(stok, Q, with_w):
    T = S_T
    A(f"s_mov_b32 s{T}, s{stok}")
    A("v_lshrrev_b32 v1, 4, v0")
    A("v_and_b32 v2, 15, v0")
    A(f"v_add_u32 v3, s{T}, v1")
    A(f"v_mul_u32_u24 v4, 1152, v3")
    A(f"v_lshl_add_u32 v5, v2, 4, v4")
    A(f"v_lshl_add_u32 v6, v2, 3, v4")
    for i in range(4):
        A(f"global_load_dwordx4 {p4(Q+4*i)}, v5, {sp(S_Q)} offset:{256*i} {NTLN}")
    A(f"global_load_dwordx2 {p2(Q+16)}, v6, {sp(S_Q)} offset:1024 {NTLN}")
    if with_w:
        W = LN_W
        A(f"v_lshlrev_b32 v7, 4, v2")
        A(f"v_lshlrev_b32 v8, 3, v2")
        for i in range(4):
            A(f"global_load_dwordx4 {p4(W+4*i)}, v7, {sp(S_WR)} offset:{256*i}")
        A(f"global_load_dwordx2 {p2(W+16)}, v8, {sp(S_WR)} offset:1024")

def dpp_sum16x(vs):
    for sh in (8, 4, 2, 1):
        if len(vs) < 3: A("s_nop 1")
        for v in vs:
            A(f"v_add_f32_dpp v{v}, v{v}, v{v} row_ror:{sh} row_mask:0xf bank_mask:0xf")

def ln_compute_publish(Q, vtok, first, vc=2, hook=None, publish=True):
    T = S_T
    W = LN_W
    A(f"s_mov_b32 s{T+8}, 0x3f803f80"); A(f"s_mov_b32 s{T+9}, 0x00003f80"); A(f"s_mov_b32 s{T+10}, 0x3f800000")
    accs = [64, 65, 66, 67] + ([68, 69] if first else [])
    for a in accs: A(f"v_mov_b32 v{a}, 0")
    for i in range(18):
        A(f"v_dot2_f32_bf16 v{64+(i&1)}, v{Q+i}, s{T+8}, v{64+(i&1)}")
        A(f"v_dot2_f32_bf16 v{66+(i&1)}, v{Q+i}, v{W+i}, v{66+(i&1)}")
        if first: A(f"v_dot2_f32_bf16 v{68+(i&1)}, v{W+i}, s{T+8}, v{68+(i&1)}")
    A("s_nop 2")
    A("v_add_f32 v64, v64, v65")
    A("v_add_f32 v66, v66, v67")
    if first:
        A("v_add_f32 v122, v68, v69")
        A("s_nop 0")
        dpp_sum16x([64, 66, 122])
    else:
        A("s_nop 0")
        dpp_sum16x([64, 66])
    A(f"v_mul_f32 v64, 0x{f32bits(1.0/576):08x}, v64")
    A("v_sub_f32 v65, 0, v64")
    for a in (68, 69, 70, 71): A(f"v_mov_b32 v{a}, 0")
    for i in range(0, 18, 2):
        A(f"v_dot2_f32_bf16 v72, v{Q+i}, s{T+9}, v65")
        A(f"v_dot2_f32_bf16 v73, v{Q+i}, s{T+10}, v65")
        A(f"v_dot2_f32_bf16 v74, v{Q+i+1}, s{T+9}, v65")
        A(f"v_dot2_f32_bf16 v75, v{Q+i+1}, s{T+10}, v65")
        A("s_nop 1")
        A(f"v_fma_f32 v68, v72, v72, v68")
        A(f"v_fma_f32 v69, v73, v73, v69")
        A(f"v_fma_f32 v70, v74, v74, v70")
        A(f"v_fma_f32 v71, v75, v75, v71")
    A("v_add_f32 v68, v68, v69"); A("v_add_f32 v70, v70, v71"); A("v_add_f32 v68, v68, v70")
    dpp_sum16x([68])
    A(f"v_mul_f32 v68, 0x{f32bits(1.0/576):08x}, v68")
    rnd(68)
    A(f"v_add_f32 v68, 0x{f32bits(1e-5):08x}, v68")
    rnd(68)
    A("v_sqrt_f32 v69, v68")
    A("s_nop 0")
    A("v_rcp_f32 v70, v69")
    A("v_fma_f32 v71, -v69, v69, v68")
    A("v_mul_f32 v70, 0.5, v70")
    A("v_fma_f32 v69, v71, v70, v69")
    rnd(69)
    A("v_rcp_f32 v70, v69")
    rnd(64)
    A("v_fma_f32 v66, -v64, v122, v66")
    A("v_mul_f32 v112, v66, v70")
    rnd(112)
    A(f"v_xor_b32 v113, 0x7ff, v{vtok}")
    A("v_or_b32 v112, v112, v113")
    A("v_cvt_pk_bf16_f32 v114, v64, v69")
    if not publish:
        A("v_mov_b32 v32, v112"); A("v_mov_b32 v34, v114")
        return
    if hook: hook()
    ln_publish(vtok, vc)

def ln_publish(vtok, vc):
    T = S_T
    A(f"v_mov_b32 v113, s{S_NONCE}")
    A(f"v_mov_b32 v115, s{S_NONCE}")
    A(f"v_lshlrev_b32 v116, 3, v{vtok}")
    add64(T+2, S_WS, WS_RG)
    add64(T+4, S_WS, WS_SG)
    A(f"v_cmp_eq_u32 vcc, 0, v{vc}")
    A(f"s_and_saveexec_b64 {sp(T+6)}, vcc")
    A(f"global_store_dwordx2 v116, v[112:113], {sp(T+2)} sc1")
    A(f"global_store_dwordx2 v116, v[114:115], {sp(T+4)} sc1")
    A(f"s_mov_b64 exec, {sp(T+6)}")

P_CH = 4128
L_P = 0
L_Q = L_P + 4 * P_CH
Q_CPY = 1152
Q_CH = 4 * Q_CPY
L_KVL = L_Q + 4 * Q_CH
L_MC = L_KVL + 16384
L_SELT = L_MC + 64
L_ST = L_SELT + 128
L_TAP = L_ST + 1024
TBLK = 1040
L_TK = (L_TAP + 640 + 15) // 16 * 16
L_TV = L_TK + 17 * TBLK
L_TQ = L_TV + 16 * TBLK
L_OT = L_TK
L_CONV_END = L_TQ + 16 * TBLK

def dma(voff, srdreg, soff, m0, flag=None):
    A(f"s_mov_b32 m0, {m0}")
    A("s_nop 0")
    A(f"buffer_load_dwordx4 v{voff}, s[{srdreg}:{srdreg+3}], {soff} offen {NT if flag is None else flag} lds")

def conv_tile():
    T = S_T
    A(f"s_sub_u32 s72, s{S_WAVE}, 4")
    A(f"s_mul_hi_u32 s77, s{S_WG}, {(2**32 + 8)//9}")
    A(f"s_mul_i32 s76, s77, 9")
    A(f"s_sub_u32 s76, s{S_WG}, s76")
    srd(SRD_K, S_K, 2359296)
    srd(SRD_V, S_V, 2359296)
    A("v_lshrrev_b32 v1, 3, v0")
    A("v_and_b32 v2, 7, v0")
    A(f"s_mul_i32 s{T+2}, s77, {128*1152}")
    A(f"s_lshl_b32 s{T+3}, s76, 7")
    A(f"s_add_u32 s{T+2}, s{T+2}, s{T+3}")
    A(f"v_mul_u32_u24 v3, 1152, v1")
    A(f"v_lshl_add_u32 v3, v2, 4, v3")
    A(f"v_add_u32 v3, s{T+2}, v3")
    A(f"s_mul_i32 s{T+4}, s{S_WAVE}, {2*9216}")
    A(f"s_mul_i32 s{T+6}, s{S_WAVE}, {2*TBLK}")
    for i in range(2):
        A(f"s_add_u32 s{T+7}, s{T+6}, {L_TK + TBLK + i*TBLK}")
        A(f"s_add_u32 s{T+5}, s{T+4}, {9216*i}")
        dma(3, SRD_K, f"s{T+5}", f"s{T+7}", flag=NTKV)
        A(f"s_add_u32 s{T+7}, s{T+6}, {L_TV + i*TBLK}")
        dma(3, SRD_V, f"s{T+5}", f"s{T+7}", flag=NTKV)
    L7 = A.newlabel("L_w7")
    A(f"s_cmp_lg_u32 s{S_WAVE}, 7")
    A(f"s_cbranch_scc1 {L7}")
    A(f"v_subrev_u32 v4, 9216, v3")
    A(f"s_cmp_lg_u32 s77, 0")
    A(f"s_cbranch_scc1 {L7}_a")
    A("v_bfrev_b32 v4, 1")
    A.label(L7 + "_a")
    dma(4, SRD_K, "0", L_TK, flag=NTKV)
    for i in range(4): A(f"v_mov_b32 v{52+i}, 0")
    A("v_lshlrev_b32 v56, 4, v0")
    A(f"v_add_u32 v56, {L_MC}, v56")
    A("s_mov_b64 exec, 0xfff")
    A(f"ds_write_b128 v56, {p4(52)}")
    A("s_mov_b64 exec, -1")
    A.label(L7)
    TR = 48
    A(f"s_lshr_b32 s{T+9}, s{S_WAVE}, 1")
    A(f"s_and_b32 s{T+10}, s{S_WAVE}, 1")
    Lt = A.newlabel("L_tap")
    A(f"s_cmp_lg_u32 s{S_WAVE}, 0")
    A(f"s_cbranch_scc1 {Lt}")
    srd(SRD_Q, S_SK, 4608)
    A(f"s_lshl_b32 s{T+11}, s76, 9")
    A("v_lshlrev_b32 v5, 4, v0")
    A("s_mov_b64 exec, 0xffffffff")
    dma(5, SRD_Q, f"s{T+11}", L_TAP, flag="")
    srd(SRD_Q, S_D, 1152)
    A(f"s_lshl_b32 s{T+11}, s76, 7")
    A("v_lshlrev_b32 v5, 2, v0")
    A(f"s_mov_b32 m0, {L_TAP+512}")
    A("s_nop 0")
    A(f"buffer_load_dword v5, s[{SRD_Q}:{SRD_Q+3}], s{T+11} offen lds")
    A("s_mov_b64 exec, -1")
    A.label(Lt)
    A("v_mov_b32 v120, 0")
    A(f"global_load_dword v121, v120, {sp(S_DBG)} sc1")
    A(f"s_and_b32 s{T+13}, s{S_WG}, 7")
    A(f"s_mul_i32 s{T+13}, s{T+13}, 18")
    A(f"s_lshr_b32 s{T+12}, s{S_WG}, 3")
    A(f"s_add_u32 s{T+13}, s{T+13}, s{T+12}")
    A(f"s_lshl_b32 s71, s{T+13}, 2")
    A(f"s_and_b32 s{T+12}, s{S_WAVE}, 3")
    A(f"s_add_u32 s78, s71, s{T+12}")
    A(f"s_lshl_b32 s79, s78, 12")
    A(f"s_lshl_b32 s{T+12}, s{T+10}, 3")
    A(f"v_add_u32 v6, s{T+12}, v2")
    A(f"s_lshl_b32 s{T+12}, s{T+9}, 3")
    A(f"v_add_u32 v7, s{T+12}, v1")
    A(f"v_mul_u32_u24 v9, {TBLK}, v6")
    A(f"v_lshl_add_u32 v9, v7, 2, v9")
    A(f"v_add_u32 v9, {L_TK}, v9")
    A(f"s_lshl_b32 s{T+11}, s76, 19")
    A(f"s_lshl_b32 s{T+12}, s77, 9")
    A(f"s_add_u32 s{T+11}, s{T+11}, s{T+12}")
    A(f"s_lshl_b32 s{T+12}, s{T+10}, 8")
    A(f"s_add_u32 s{T+11}, s{T+11}, s{T+12}")
    A("v_lshlrev_b32 v8, 14, v7")
    A("v_lshl_add_u32 v8, v2, 4, v8")
    A(f"v_add_u32 v8, s{T+11}, v8")
    if "ibar" in OPTS: A("s_barrier")
    if "hearly" in OPTS:
        Lh = A.newlabel("L_noh"); Lh2 = A.newlabel("L_noh2")
        A(f"s_cmp_ge_u32 s{S_WAVE}, 4")
        A(f"s_cbranch_scc1 {Lh}")
        srd(SRD_Q, S_H, 2359296)
        A("v_lshlrev_b32 v4, 4, v0")
        A(f"s_mul_i32 s74, s{S_WAVE}, {P_CH}")
        for q in range(4):
            A(f"s_add_u32 s{T+9}, s79, {1024*q}")
            A(f"s_add_u32 s{T+5}, s74, {32 + 1024*q}")
            dma(4, SRD_Q, f"s{T+9}", f"s{T+5}", flag=NTH)
        if "dbgB" in OPTS: stamp(5)
        A("s_waitcnt vmcnt(4) lgkmcnt(0)")
        A(f"s_branch {Lh2}")
        A.label(Lh)
        if "dbgB" in OPTS: stamp(5)
        if "pfe" in OPTS:
            n = gu_prefetch(int(os.environ.get("PFE0", "72")), int(os.environ.get("PFEN", "8")), vb=110)
            A(f"s_waitcnt vmcnt({n}) lgkmcnt(0)")
        else:
            A("s_waitcnt vmcnt(0) lgkmcnt(0)")
        A.label(Lh2)
        if "dbgB" in OPTS: stamp(6)
    else:
        A("s_waitcnt vmcnt(0) lgkmcnt(0)")
    A(f"v_readfirstlane_b32 s{S_NONCE}, v121")
    A("s_barrier")
    stamp(2)
    tl(4, 7, 0)
    KR, VR = 10, 21
    for j in range(11):
        off = (640 + 128*j if j < 3 else TBLK + 128*(j-3))
        A(f"ds_read_b32 v{KR+j}, v9 offset:{off}")
    A("v_lshlrev_b32 v5, 2, v7")
    A("v_lshlrev_b32 v5, 2, v5")
    A(f"v_add_u32 v5, {L_TAP}, v5")
    A(f"ds_read_b128 {p4(TR)}, v5")
    for j in range(8):
        A(f"ds_read_b32 v{VR+j}, v9 offset:{L_TV - L_TK + 128*j}")
    A("s_waitcnt lgkmcnt(8)")
    Ln = A.newlabel("L_hasn")
    A(f"s_cmp_lg_u32 s{S_NONCE}, 0")
    A(f"s_cbranch_scc1 {Ln}")
    get_nonce(30)
    A.label(Ln)
    TP = 52
    A(f"v_lshlrev_b32 v{TP+0}, 16, v{TR}"); A(f"v_lshlrev_b32 v{TP+1}, 16, v{TR+2}")
    A(f"v_and_b32 v{TP+2}, s{S_MASK}, v{TR}"); A(f"v_and_b32 v{TP+3}, s{S_MASK}, v{TR+2}")
    A(f"v_lshlrev_b32 v{TP+4}, 16, v{TR+1}"); A(f"v_lshlrev_b32 v{TP+5}, 16, v{TR+3}")
    A(f"v_and_b32 v{TP+6}, s{S_MASK}, v{TR+1}"); A(f"v_and_b32 v{TP+7}, s{S_MASK}, v{TR+3}")
    KP = 80
    for j in range(11):
        A(f"v_lshlrev_b32 v{KP+2*j}, 16, v{KR+j}")
        A(f"v_and_b32 v{KP+2*j+1}, s{S_MASK}, v{KR+j}")
    R = 102
    tp = lambda tap: p2(TP+2*tap)
    for i in range(8): A(f"v_pk_mul_f32 {p2(R+2*i)}, {p2(KP+2*i)}, {tp(3)}")
    for i in range(8): A(f"v_pk_fma_f32 {p2(R+2*i)}, {p2(KP+2*(i+1))}, {tp(2)}, {p2(R+2*i)}")
    for i in range(8): A(f"v_pk_fma_f32 {p2(R+2*i)}, {p2(KP+2*(i+2))}, {tp(1)}, {p2(R+2*i)}")
    for i in range(8): A(f"v_pk_fma_f32 {p2(R+2*i)}, {p2(KP+2*(i+3))}, {tp(0)}, {p2(R+2*i)}")
    A("s_waitcnt lgkmcnt(0)")
    VP = 60
    for i in range(8):
        A(f"v_lshlrev_b32 v{VP+2*i}, 16, v{VR+i}"); A(f"v_and_b32 v{VP+2*i+1}, s{S_MASK}, v{VR+i}")
    for i in range(8): A(f"v_pk_mul_f32 {p2(R+2*i)}, {p2(R+2*i)}, {p2(VP+2*i)}")
    GQ = 80
    for c in range(2):
        for q in range(4):
            A(f"v_cvt_pk_bf16_f32 v{GQ+8*c+2*q}, v{R+4*q+c}, v{R+4*q+2+c}")
            A(f"v_mov_b32 v{GQ+8*c+2*q+1}, s{S_NONCE}")
    add64(T+2, S_WS, WS_KVT)
    add64(T+8, S_WS, WS_KVT+8192)
    A(f"global_store_dwordx4 v8, {p4(GQ)}, {sp(T+2)} sc1")
    A(f"global_store_dwordx4 v8, {p4(GQ+4)}, {sp(T+2)} offset:128 sc1")
    A(f"global_store_dwordx4 v8, {p4(GQ+8)}, {sp(T+8)} sc1")
    A(f"global_store_dwordx4 v8, {p4(GQ+12)}, {sp(T+8)} offset:128 sc1")
    for c in range(2):
        for q in range(4): A(f"v_mov_b32 v{120+4*c+q}, v{GQ+8*c+2*q}")
    A(f"s_lshl_b32 s{T+1}, s{S_WAVE}, 11")
    A("v_lshlrev_b32 v4, 5, v0")
    A(f"v_add_u32 v4, s{T+1}, v4")
    A(f"v_add_u32 v4, {L_KVL}, v4")
    A(f"ds_write_b128 v4, {p4(120)}")
    A(f"ds_write_b128 v4, {p4(124)} offset:16")
    stamp(3)
    if "hearly" not in OPTS:
        Lh = A.newlabel("L_noh")
        A(f"s_cmp_ge_u32 s{S_WAVE}, 4")
        A(f"s_cbranch_scc1 {Lh}")
        srd(SRD_V, S_H, 2359296)
        A("v_lshlrev_b32 v4, 4, v0")
        A(f"s_mul_i32 s74, s{S_WAVE}, {P_CH}")
        for q in range(4):
            A(f"s_add_u32 s{T+9}, s79, {1024*q}")
            A(f"s_add_u32 s{T+10}, s74, {32 + 1024*q}")
            dma(4, SRD_V, f"s{T+9}", f"s{T+10}")
        A.label(Lh)
    A("s_waitcnt lgkmcnt(0)")
    A("s_barrier")
    stamp(4)
    tl(5, 7, 0)
    if "dbgA" in OPTS or "dbgB" in OPTS: A("s_branch L_fin")

class LdsQ:
    def __init__(self): self.q = []
    def issue(self, instr, tag=None):
        A(instr); self.q.append(tag)
    def wait(self, tag):
        idxs = [i for i, t in enumerate(self.q) if t == tag]
        if not idxs: return
        last = idxs[-1]
        n = len(self.q) - 1 - last
        A(f"s_waitcnt lgkmcnt({min(n, 15)})")
        if n <= 15: self.q = self.q[last+1:]
        else: self.q = self.q[len(self.q)-15:]

def conv_mfma_wave():
    T = S_T
    A(f"s_mul_i32 s75, s{S_WAVE}, {Q_CH}")
    A(f"s_add_u32 s75, s75, {L_Q}")
    for i in range(4): A(f"v_mov_b32 v{16+i}, 0")
    A("v_lshlrev_b32 v2, 4, v0")
    A("v_add_u32 v2, s74, v2")
    A("s_mov_b64 exec, 3")
    A(f"ds_write_b128 v2, {p4(16)}")
    A("s_mov_b64 exec, -1")
    A("v_lshrrev_b32 v2, 3, v0")
    A(f"v_mul_u32_u24 v2, {Q_CPY}, v2")
    A("v_and_b32 v3, 7, v0")
    A("v_lshl_add_u32 v2, v3, 4, v2")
    A("v_add_u32 v2, s75, v2")
    A("s_mov_b64 exec, 0xffffffff")
    A(f"ds_write_b128 v2, {p4(16)}")
    A("s_mov_b64 exec, -1")
    A("v_and_b32 v3, 3, v0")
    A("v_bfe_u32 v4, v0, 2, 2")
    A("v_sub_u32 v3, v3, v4")
    A("v_lshlrev_b32 v3, 3, v3")
    A("v_lshrrev_b32 v4, 4, v0")
    A("v_lshl_add_u32 v3, v4, 6, v3")
    A("v_add_u32 v3, s74, v3")
    A("v_add_u32 v3, 32, v3")
    A("s_waitcnt vmcnt(4) lgkmcnt(0)" if "hearly" in OPTS else "s_waitcnt vmcnt(0) lgkmcnt(0)")
    def greg(e, s1): return 4*(8*e + s1)
    for s1 in range(8):
        for e in range(2):
            g = greg(e, s1)
            A(f"ds_read_b64_tr_b16 a[{g}:{g+1}], v3 offset:{512*s1+256*e+32}")
            A(f"ds_read_b64_tr_b16 a[{g+2}:{g+3}], v3 offset:{512*s1+256*e}")
        if s1 % 3 == 2: A("s_waitcnt lgkmcnt(4)")
    A("v_and_b32 v5, 15, v0")
    A("v_lshlrev_b32 v6, 3, v5")
    A("v_lshlrev_b32 v7, 4, v4")
    A("v_sub_u32 v6, v6, v7")
    A("v_add_u32 v6, s75, v6")
    A("v_add_u32 v6, 56, v6")
    A("v_lshlrev_b32 v7, 6, v5")
    A("v_lshl_add_u32 v7, v4, 4, v7")
    A(f"s_lshl_b32 s{T+1}, s78, 13")
    A(f"v_add_u32 v7, s{T+1}, v7")
    A(f"v_add_u32 v11, 4096, v7")
    add64(62, S_WS, WS_YG)
    A("v_subrev_u32 v8, 16, v0")
    A("v_add_u32 v9, 47, v0")
    A("v_cmp_gt_u32 vcc, 16, v0")
    A("s_nop 1")
    A("v_cndmask_b32 v8, v8, v9, vcc")
    A("v_mov_b32 v9, 63")
    A("v_cmp_eq_u32 vcc, 0, v0")
    A("s_nop 1")
    A("v_cndmask_b32 v8, v8, v9, vcc")
    A("v_lshlrev_b32 v8, 2, v8")
    A(f"v_mov_b32 v9, {L_MC}")
    A("v_mov_b32 v10, 1")
    A(f"s_mov_b64 {sp(66)}, 1")
    add64(64, S_WS, WS_KVT)
    A(f"s_lshl_b32 s{T+1}, s78, 13")
    A("v_lshlrev_b32 v1, 4, v0")
    A(f"v_add_u32 v1, s{T+1}, v1")
    A("v_add_u32 v12, 4096, v1")
    A("v_lshrrev_b32 v2, 4, v0")
    A("v_lshlrev_b32 v2, 4, v2")
    A("v_and_b32 v13, 7, v0")
    A("v_lshl_add_u32 v2, v13, 1, v2")
    A("v_bfe_u32 v13, v0, 3, 1")
    A("v_add_u32 v2, v2, v13")
    A("v_lshlrev_b32 v2, 1, v2")
    A("v_add_u32 v2, s75, v2")
    A("v_and_b32 v13, 15, v0")
    A("v_lshlrev_b32 v13, 9, v13")
    A(f"v_add_u32 v13, s{T+1}, v13")
    A("v_add_u32 v13, 504, v13")
    stamp(5)
    KV = 16
    def ldkv():
        for q in range(8):
            A(f"global_load_dwordx4 {p4(KV+4*q)}, v{1 if q < 4 else 12}, {sp(64)} offset:{1024*(q % 4)} sc1")
    kvtags = [KV+4*q+1+2*h for q in range(8) for h in range(2)]
    Lok = A.newlabel("L_kvok")
    if "spec" in OPTS:
        ldkv()
        A("s_waitcnt vmcnt(0)")
        tag_acc(kvtags, 14, 48)
        A("v_cmp_ne_u32 vcc, 0, v14")
        A("s_nop 3")
        A("s_cmp_eq_u64 vcc, 0")
        A(f"s_cbranch_scc1 {Lok}")
    tagcheck_loop(lambda: A(f"global_load_dwordx2 v[14:15], v13, {sp(64)} sc1"), [15], 16, 17, sleep=1)
    stamp(6)
    tl(6, 7, 0)
    tagcheck_loop(ldkv, kvtags, 14, 48, sleep=1)
    A.label(Lok)
    for q in range(8):
        r = KV + 4*q
        o = 128 + 128*q
        A(f"ds_write_b16 v2, v{r} offset:{0*Q_CPY+o}")
        A(f"ds_write_b16_d16_hi v2, v{r} offset:{1*Q_CPY+o}")
        A(f"ds_write_b16 v2, v{r+2} offset:{2*Q_CPY+o}")
        A(f"ds_write_b16_d16_hi v2, v{r+2} offset:{3*Q_CPY+o}")
    A("s_waitcnt lgkmcnt(0)")
    for i in range(3): A(f"v_mov_b32 v{40+i}, 0")
    A(f"v_add_u32 v3, {Q_CPY}, v6"); A(f"v_add_u32 v4, {2*Q_CPY}, v6"); A(f"v_add_u32 v5, {3*Q_CPY}, v6")
    A(f"v_mov_b32 v45, s{S_NONCE}"); A(f"v_mov_b32 v47, s{S_NONCE}")
    stamp(7)
    tl(7, 7, 0)
    if "dry" in OPTS:
        A("s_mov_b32 s73, 0")
        A.label("L_stream")
    lq = LdsQ()
    classes = [(c1, sg, e) for c1 in range(8) for sg in range(4) for e in range(2)]
    FA = [6, 3, 4, 5]
    free = [("v", 48), ("v", 52), ("v", 56), ("v", 60)]
    fbuf = {}
    def rr(b): return f"{b[0]}[{b[1]}:{b[1]+3}]"
    def fread(k):
        c1, sg, e = classes[k]
        b = free.pop(0); fbuf[k] = b
        o = 16*c1 + 8*(1-e)
        lq.issue(f"ds_read2_b64 {rr(b)}, v{FA[sg]} offset0:{o} offset1:{o+1}", ("F", k))
    def acc(sg, t): return 64 + (sg*8 + t)*4
    def combine_ops(t):
        a0, a1, a2, a3 = acc(0, t), acc(1, t), acc(2, t), acc(3, t)
        ops = []
        C = 32
        P = 36 + 4*(t & 1)
        Pp = 36 + 4*((t+1) & 1)
        ops.append(lambda: A(f"v_add_f32 v{a0+1}, v{a0+1}, v{a1}"))
        ops.append(lambda: A(f"v_add_f32 v{a0+2}, v{a0+2}, v{a1+1}"))
        ops.append(lambda: A(f"v_add_f32 v{a0+3}, v{a0+3}, v{a1+2}"))
        ops.append(lambda: A(f"v_add_f32 v{C}, v{a1+3}, v{a2+2}"))
        ops.append(lambda: A(f"v_add_f32 v{a0+2}, v{a0+2}, v{a2}"))
        ops.append(lambda: A(f"v_add_f32 v{a0+3}, v{a0+3}, v{a2+1}"))
        ops.append(lambda: A(f"v_add_f32 v{C+1}, v{a2+3}, v{a3+2}"))
        ops.append(lambda: A(f"v_add_f32 v{C}, v{C}, v{a3+1}"))
        ops.append(lambda: lq.issue(f"ds_bpermute_b32 v{P+2}, v8, v{a3+3}", ("B", t)))
        ops.append(lambda: lq.issue(f"ds_bpermute_b32 v{P+1}, v8, v{C+1}", ("B", t)))
        ops.append(lambda: lq.issue(f"ds_bpermute_b32 v{P}, v8, v{C}", ("B", t)))
        ops.append(lambda: A(f"v_add_f32 v{a0+3}, v{a0+3}, v{a3}"))
        ops.append(lambda: lq.wait(("B", t)))
        for i in range(3):
            ops.append(lambda i=i: A(f"v_cndmask_b32 v{28+i}, v{P+i}, v{Pp+i}, {sp(66)}"))
        for i in range(3):
            ops.append(lambda i=i: A(f"v_add_f32 v{a0+i}, v{a0+i}, v{28+i}"))
        ops.append(lambda: A(f"v_cvt_pk_bf16_f32 v44, v{a0}, v{a0+1}"))
        ops.append(lambda: A(f"v_cvt_pk_bf16_f32 v46, v{a0+2}, v{a0+3}"))
        ops.append(lambda: A(f"global_store_dwordx4 v{7 if t < 4 else 11}, {p4(44)}, {sp(62)} offset:{1024*(t % 4)} sc1"))
        return ops
    nxt = 0
    LA = int(os.environ.get("LA", "5"))
    SLOTS = int(os.environ.get("SLOTS", "1"))
    def can_fread(k):
        return free and nxt < len(classes) and nxt - k < LA and len(lq.q) <= 13
    for _ in range(3):
        fread(nxt); nxt += 1
    pending = []
    k = 0
    total_m = sum(8*(8-c) for c in range(8))
    done_m = 0
    for c1 in range(8):
        nm_step = 8*(8-c1)
        if c1 > 0:
            assert not pending or True
            pending.extend(combine_ops(c1-1))
            free.extend([("a", greg(0, 8-c1)), ("a", greg(1, 8-c1))])
        mi = 0
        for sg in range(4):
            for e in range(2):
                while nxt <= k:
                    fread(nxt); nxt += 1
                lq.wait(("F", k))
                b = fbuf[k]
                for s1 in range(8-c1):
                    t = s1 + c1
                    d = acc(sg, t)
                    cin = "0" if (c1 == 0 and e == 0) else f"v[{d}:{d+3}]"
                    g = greg(e, s1)
                    A(f"v_mfma_f32_16x16x32_bf16 v[{d}:{d+3}], a[{g}:{g+3}], {rr(b)}, {cin}")
                    mi += 1; done_m += 1
                    rem_m = total_m - done_m
                    left_in_step = nm_step - mi
                    slots = SLOTS
                    if pending and mi >= 3:
                        need = len(pending) + (8 - (k % 8))
                        if left_in_step * SLOTS < need: slots = -(-need // max(1, left_in_step + 1))
                    used = 0
                    if can_fread(k) and (nxt - k <= 2 or not pending or mi < 3):
                        fread(nxt); nxt += 1; used += 1
                    while used < slots and pending and mi >= 3:
                        pending.pop(0)(); used += 1
                    if used < slots - 1 and can_fread(k):
                        fread(nxt); nxt += 1; used += 1
                free.append(b)
                k += 1
        while pending: pending.pop(0)()
    A("s_nop 7"); A("s_nop 1")
    for op in combine_ops(7): op()
    if "dry" in OPTS:
        A("s_cmp_eq_u32 s73, 1")
        A("s_cbranch_scc1 L_dry_ret")
    A("s_mov_b64 exec, 1")
    A("ds_add_u32 v9, v10")
    A("s_mov_b64 exec, -1")
    stamp(8)
    tl(8, 7, 0)

def lds_spin(addr_off, target, va, vb, sleep=1):
    T = S_T
    L = A.newlabel("L_ls")
    A(f"v_mov_b32 v{va}, {L_MC}")
    A(f"s_mov_b32 s{T+1}, 0")
    A.label(L)
    A(f"ds_read_b32 v{vb}, v{va} offset:{addr_off}")
    A("s_waitcnt lgkmcnt(0)")
    A(f"v_readfirstlane_b32 s{T}, v{vb}")
    A(f"s_add_u32 s{T+1}, s{T+1}, 1")
    A(f"s_cmp_ge_u32 s{T+1}, {SPIN_MAX*4}")
    A(f"s_cbranch_scc1 {L}_d")
    A(f"s_cmp_ge_u32 s{T}, {target}")
    A(f"s_cbranch_scc1 {L}_d")
    if sleep: A(f"s_sleep {sleep}")
    A(f"s_branch {L}")
    A.label(L + "_d")

def gu_prefetch(R0, NR, vb=10):
    T = S_T
    assert NR % 4 == 0
    RW = NR // 4
    v0_, v1_, v2_, v3_ = vb, vb+1, vb+2, vb+3
    A(f"s_and_b32 s{T+1}, s{S_WG}, 7")
    A(f"s_mul_i32 s{T+1}, s{T+1}, 1152")
    A(f"s_lshr_b32 s{T+2}, s{S_WG}, 3")
    A(f"s_mul_i32 s{T+2}, s{T+2}, {NR}")
    A(f"s_mul_i32 s{T+3}, s72, {RW}")
    A(f"s_add_u32 s{T+2}, s{T+2}, s{T+3}")
    A(f"s_add_u32 s{T+2}, s{T+2}, {R0}")
    A(f"s_mul_i32 s{T+2}, s{T+2}, 9216")
    A(f"s_add_u32 s{T+1}, s{T+1}, s{T+2}")
    A(f"v_lshlrev_b32 v{v0_}, 4, v0")
    A(f"v_add_u32 v{v0_}, s{T+1}, v{v0_}")
    A(f"v_lshrrev_b32 v{v1_}, 3, v0")
    A(f"v_mul_u32_u24 v{v1_}, 9216, v{v1_}")
    A(f"v_and_b32 v{v2_}, 7, v0")
    A(f"v_lshl_add_u32 v{v1_}, v{v2_}, 4, v{v1_}")
    A(f"v_add_u32 v{v1_}, s{T+1}, v{v1_}")
    A(f"v_add_u32 v{v1_}, 1024, v{v1_}")
    n = 0
    for base in (S_WGT, S_WUP):
        A(f"v_mov_b32 v{v3_}, v{v0_}")
        for r in range(RW):
            A(f"global_load_dwordx4 a[0:3], v{v3_}, {sp(base)} {NTP}"); n += 1
            if r < RW - 1: A(f"v_add_u32 v{v3_}, 9216, v{v3_}")
        nl = 8*RW
        if nl < 64:
            A(f"s_mov_b32 exec_lo, {hex((1 << min(nl, 32)) - 1)}")
            A(f"s_mov_b32 exec_hi, {hex((1 << (nl - 32)) - 1) if nl > 32 else '0'}")
        A(f"global_load_dwordx4 a[0:3], v{v1_}, {sp(base)} {NTP}"); n += 1
        A("s_mov_b64 exec, -1")
    return n

def conv_helper_prep():
    T = S_T
    if "gupf" in OPTS:
        R0 = int(os.environ.get("PFROW", "144")); NR = (576 - R0) // 18
        gu_prefetch(R0, NR)
        ar = 0
        if "dpf" in OPTS:
            A(f"s_and_b32 s{T+1}, s{S_WG}, 7")
            A(f"s_mul_i32 s{T+1}, s{T+1}, {576*1152}")
            A(f"s_lshr_b32 s{T+2}, s{S_WG}, 3")
            A(f"s_mul_i32 s{T+2}, s{T+2}, 36864")
            A(f"s_add_u32 s{T+1}, s{T+1}, s{T+2}")
            A(f"s_mul_i32 s{T+2}, s72, 9216")
            A(f"s_add_u32 s{T+1}, s{T+1}, s{T+2}")
            A("v_lshlrev_b32 v19, 4, v0")
            A(f"v_add_u32 v19, s{T+1}, v19")
            DPF = []
            for i in range(9):
                DPF.append(f"global_load_dwordx4 a[0:3], v18, {sp(S_WD)} offset:{1024*(i%4)}")
            assert ar <= 124, ar
            global DPF_CODE
            DPF_CODE = DPF
    srd(SRD_Q, S_Q, 2359296)
    A(f"s_mul_i32 s{T+4}, s72, {4*9216}")
    A(f"s_mul_i32 s{T+6}, s72, {4*TBLK}")
    A(f"s_add_u32 s{T+6}, s{T+6}, {L_TQ}")
    for i in range(4):
        dma(3, SRD_Q, f"s{T+4}", f"s{T+6}", flag=NTQ)
        A(f"s_add_u32 s{T+4}, s{T+4}, 9216")
        A(f"s_add_u32 s{T+6}, s{T+6}, {TBLK}")
    if "dry" in OPTS:
        Ld = A.newlabel("L_nodry")
        A(f"s_cmp_lg_u32 s{S_WAVE}, 7")
        A(f"s_cbranch_scc1 {Ld}")
        A("v_mov_b32 v6, 0"); A("v_mov_b32 v7, 0"); A("v_mov_b32 v11, 0"); A("v_mov_b32 v8, 0")
        add64(62, S_WS, WS_YG)
        A(f"s_mov_b64 {sp(66)}, 1")
        A("s_mov_b32 s73, 1")
        A("s_mov_b64 exec, 0")
        A("s_branch L_stream")
        A.label("L_dry_ret")
        A("s_mov_b64 exec, -1")
        A.label(Ld)
    L4 = A.newlabel("L_h4"); L5 = A.newlabel("L_h5"); Le = A.newlabel("L_he")
    A(f"s_cmp_eq_u32 s{S_WAVE}, 4")
    A(f"s_cbranch_scc1 {L4}")
    A(f"s_cmp_eq_u32 s{S_WAVE}, 5")
    A(f"s_cbranch_scc1 {L5}")
    A(f"s_branch {Le}")
    A.label(L4)
    A(f"s_lshl_b32 s{T+1}, s77, 10")
    A("v_lshlrev_b32 v10, 4, v0")
    A(f"v_add_u32 v11, s{T+1}, v10")
    add64(T+2, S_WS, WS_SG)
    tagcheck_loop(lambda: A(f"global_load_dwordx4 {p4(12)}, v11, {sp(T+2)} sc1"), [13, 15], 16, 17, sleep=4)
    A("v_lshlrev_b32 v20, 16, v12"); A(f"v_and_b32 v21, s{S_MASK}, v12")
    A("v_lshlrev_b32 v22, 16, v14"); A(f"v_and_b32 v23, s{S_MASK}, v14")
    A("v_rcp_f32 v21, v21"); A("v_rcp_f32 v23, v23")
    A(f"v_add_u32 v10, {L_ST}, v10")
    A("s_nop 0")
    A(f"ds_write_b128 v10, {p4(20)}")
    A(f"s_branch {Le}")
    A.label(L5)
    A("v_and_b32 v10, 7, v0")
    A("v_lshlrev_b32 v11, 3, v10")
    add64(T+2, S_WS, WS_SEL)
    tagcheck_loop(lambda: A(f"global_load_dwordx2 v[12:13], v11, {sp(T+2)} sc1"), [13], 16, 17, sleep=4)
    A("v_and_b32 v12, 0x7ff, v12")
    A("v_xor_b32 v12, 0x7ff, v12")
    A(f"s_lshl_b32 s{T+1}, s77, 7")
    A(f"v_subrev_u32 v12, s{T+1}, v12")
    A("v_cmp_gt_u32 vcc, 128, v12")
    A("v_or_b32 v13, 0x80, v10")
    A(f"v_add_u32 v12, {L_SELT}, v12")
    A("s_and_b32 vcc_lo, vcc_lo, 0xff")
    A("s_mov_b32 vcc_hi, 0")
    A("s_mov_b64 exec, vcc")
    Lk = A.newlabel("L_nsel")
    A(f"s_cbranch_execz {Lk}")
    A("ds_write_b8 v12, v13")
    A.label(Lk)
    A("s_mov_b64 exec, -1")
    A.label(Le)
    A("s_waitcnt vmcnt(0) lgkmcnt(0)")
    A(f"v_mov_b32 v10, {L_MC}")
    A("v_mov_b32 v11, 1")
    A("s_mov_b64 exec, 1")
    A("ds_add_u32 v10, v11 offset:4")
    A("s_mov_b64 exec, -1")
    stamp(5)
    if "dpf" in OPTS:
        for i, ins in enumerate(DPF_CODE):
            if i % 4 == 0: A(f"v_add_u32 v18, {4096*(i//4)}, v19")
            A(ins)
    lds_spin(0, 4, 10, 11, sleep=2)
    stamp(6)

def conv_epilogue():
    T = S_T
    A("; ---- epilogue ----")
    lds_spin(4, 4, 10, 11, sleep=1)
    A("v_and_b32 v2, 7, v0"); A("v_lshrrev_b32 v1, 3, v0")
    A(f"s_and_b32 s{T+1}, s{S_WAVE}, 1"); A(f"s_lshl_b32 s{T+1}, s{T+1}, 3")
    A(f"v_add_u32 v6, s{T+1}, v2")
    A(f"s_lshr_b32 s{T+2}, s{S_WAVE}, 1"); A(f"s_lshl_b32 s{T+2}, s{T+2}, 3")
    A(f"v_add_u32 v7, s{T+2}, v1")
    A(f"s_lshl_b32 s{T+1}, s76, 19")
    A(f"s_lshl_b32 s{T+2}, s77, 9")
    A(f"s_add_u32 s{T+1}, s{T+1}, s{T+2}")
    A("v_lshlrev_b32 v8, 14, v7")
    A("v_lshl_add_u32 v8, v6, 5, v8")
    A(f"v_add_u32 v8, s{T+1}, v8")
    A("v_add_u32 v9, 8192, v8")
    add64(62, S_WS, WS_YG)
    A(f"v_mul_u32_u24 v10, {TBLK}, v6")
    A("v_lshl_add_u32 v10, v7, 2, v10")
    A(f"v_add_u32 v11, {L_TQ}, v10")
    XR = 16
    for i in range(8): A(f"ds_read_b32 v{XR+i}, v11 offset:{128*i}")
    A(f"s_lshl_b32 s{T+1}, s{S_WAVE}, 11")
    A("v_lshlrev_b32 v12, 5, v0")
    A(f"v_add_u32 v12, s{T+1}, v12")
    A(f"v_add_u32 v12, {L_KVL}, v12")
    KV = 24
    A(f"ds_read_b128 {p4(KV)}, v12")
    A(f"ds_read_b128 {p4(KV+4)}, v12 offset:16")
    A("v_lshlrev_b32 v12, 6, v6")
    A(f"v_add_u32 v12, {L_ST}, v12")
    SR = 32
    for i in range(4): A(f"ds_read_b128 {p4(SR+4*i)}, v12 offset:{16*i}")
    A("v_lshlrev_b32 v12, 3, v6")
    A(f"v_add_u32 v12, {L_SELT}, v12")
    A("ds_read_b64 v[48:49], v12")
    A("v_lshlrev_b32 v13, 2, v7")
    A(f"v_add_u32 v13, {L_TAP+512}, v13")
    A("ds_read_b32 v50, v13")
    YR = 64
    def ld():
        A(f"global_load_dwordx4 {p4(YR)}, v8, {sp(62)} sc1")
        A(f"global_load_dwordx4 {p4(YR+4)}, v8, {sp(62)} offset:16 sc1")
        A(f"global_load_dwordx4 {p4(YR+8)}, v9, {sp(62)} sc1")
        A(f"global_load_dwordx4 {p4(YR+12)}, v9, {sp(62)} offset:16 sc1")
    A("s_waitcnt lgkmcnt(0)")
    A(f"v_lshlrev_b32 v52, 16, v50"); A(f"v_and_b32 v53, s{S_MASK}, v50")
    XN, SS = 80, 96
    for i in range(8):
        m, rs = SR+2*i, SR+2*i+1
        A(f"v_lshlrev_b32 v{SS+2*i}, 16, v{XR+i}"); A(f"v_and_b32 v{SS+2*i+1}, s{S_MASK}, v{XR+i}")
        A(f"v_sub_f32 v{XN+2*i}, v{SS+2*i}, v{m}"); A(f"v_sub_f32 v{XN+2*i+1}, v{SS+2*i+1}, v{m}")
        A(f"v_mul_f32 v{XN+2*i}, v{XN+2*i}, v{rs}"); A(f"v_mul_f32 v{XN+2*i+1}, v{XN+2*i+1}, v{rs}")
        for c in range(2):
            kr = KV + 4*c + (i >> 1)
            t = 54 + c
            if i & 1: A(f"v_and_b32 v{t}, s{S_MASK}, v{kr}")
            else: A(f"v_lshlrev_b32 v{t}, 16, v{kr}")
            A(f"v_fma_f32 v{t}, v{t}, v{52+c}, 1.0")
            A(f"v_fma_f32 v{SS+2*i+c}, v{XN+2*i+c}, v{t}, v{SS+2*i+c}")
    A(f"v_add_u32 v11, {L_OT}, v10")
    A(f"s_lshl_b32 s{T+1}, s{S_WAVE}, 3")
    A(f"v_add_u32 v120, s{T+1}, v1")
    A("v_lshrrev_b32 v121, 3, v120")
    A(f"v_mul_u32_u24 v121, {TBLK}, v121")
    A("v_and_b32 v122, 7, v120")
    A("v_lshl_add_u32 v121, v122, 7, v121")
    A("v_lshl_add_u32 v121, v2, 4, v121")
    A(f"v_add_u32 v121, {L_OT}, v121")
    A(f"v_add_u32 v122, {L_SELT}, v120")
    A("ds_read_u8 v124, v122")
    A("ds_read_u8 v125, v122 offset:64")
    srd(SRD_O, S_OUT, 2359296)
    A(f"s_mul_i32 s{T+1}, s77, {128*1152}")
    A(f"s_lshl_b32 s{T+2}, s76, 7")
    A(f"s_add_u32 s{T+1}, s{T+1}, s{T+2}")
    A("v_mul_u32_u24 v122, 1152, v120")
    A("v_lshl_add_u32 v122, v2, 4, v122")
    A(f"v_add_u32 v122, s{T+1}, v122")
    A(f"v_add_u32 v123, {64*1152}, v122")
    A("s_waitcnt lgkmcnt(0)")
    for va, vs in ((122, 124), (123, 125)):
        A(f"v_lshlrev_b32 v{vs}, 24, v{vs}")
        A(f"v_and_b32 v{vs}, 0x80000000, v{vs}")
        A(f"v_or_b32 v{va}, v{va}, v{vs}")
    if "dbgE" in OPTS: stamp(5)
    tagcheck_loop(ld, [YR+2*j+1 for j in range(8)], 14, 52, sleep=1)
    if "dbgE" in OPTS: stamp(6)
    O = 112
    for i in range(8):
        for c in range(2):
            yr = YR + 8*c + 2*(i >> 1)
            t0 = 54 + c
            if i & 1: A(f"v_and_b32 v{t0}, s{S_MASK}, v{yr}")
            else: A(f"v_lshlrev_b32 v{t0}, 16, v{yr}")
            A(f"v_fma_f32 v{SS+2*i+c}, v{XN+2*i+c}, v{t0}, v{SS+2*i+c}")
        A(f"v_cvt_pk_bf16_f32 v{O+i}, v{SS+2*i}, v{SS+2*i+1}")
        A(f"ds_write_b32 v11, v{O+i} offset:{128*i}")
    Lx = A.newlabel("L_nt1")
    A("v_or_b32 v12, v48, v49")
    A("v_cmp_ne_u32 vcc, 0, v12")
    A("s_nop 3")
    A("s_cmp_eq_u64 vcc, 0")
    A(f"s_cbranch_scc1 {Lx}")
    add64(64, S_WS, WS_T1G)
    A(f"s_lshl_b32 s{T+1}, s76, 6")
    A("v_lshlrev_b32 v13, 1, v7")
    A(f"v_add_u32 v13, s{T+1}, v13")
    for i in range(8):
        Li = A.newlabel("L_t1i")
        A(f"v_bfe_u32 v12, v{48 + (i >> 2)}, {8*(i & 3)}, 8")
        A("v_cmp_lt_u32 vcc, 0x7f, v12")
        A(f"s_and_saveexec_b64 {sp(T+12)}, vcc")
        A(f"s_cbranch_execz {Li}")
        A("v_and_b32 v12, 7, v12")
        A("v_mul_u32_u24 v12, 576, v12")
        A("v_add_u32 v12, v12, v13")
        A("v_lshlrev_b32 v12, 3, v12")
        A(f"v_sub_f32 v56, v{SS+2*i}, v{XN+2*i}")
        A(f"v_mov_b32 v57, s{S_NONCE}")
        A(f"v_sub_f32 v58, v{SS+2*i+1}, v{XN+2*i+1}")
        A(f"v_mov_b32 v59, s{S_NONCE}")
        A(f"global_store_dwordx4 v12, {p4(56)}, {sp(64)} sc1")
        A.label(Li)
        A(f"s_mov_b64 exec, {sp(T+12)}")
    A.label(Lx)
    A("s_waitcnt lgkmcnt(0)")
    A("s_barrier")
    A(f"ds_read_b128 {p4(16)}, v121")
    A(f"ds_read_b128 {p4(20)}, v121 offset:{8*TBLK}")
    A("s_waitcnt lgkmcnt(1)")
    A(f"buffer_store_dwordx4 {p4(16)}, v122, s[{SRD_O}:{SRD_O+3}], 0 offen " + os.environ.get("OUTF", "sc1"))
    A("s_waitcnt lgkmcnt(0)")
    A(f"buffer_store_dwordx4 {p4(20)}, v123, s[{SRD_O}:{SRD_O+3}], 0 offen " + os.environ.get("OUTF", "sc1"))
    stamp(9)
    tl(9, 7, 0)

def conv_wg():
    conv_tile()
    A(f"s_cmp_ge_u32 s{S_WAVE}, 4")
    A("s_cbranch_scc1 L_helper")
    conv_mfma_wave()
    A("s_branch L_epi")
    A.label("L_helper")
    conv_helper_prep()
    A.label("L_epi")
    conv_epilogue()
    A("s_branch L_fin")

M_WG = 0
M_WU = 73728
M_XS = 147456
XS_RS = 1168
M_H = M_XS + 8*XS_RS
H_RS = 144
M_GU = M_H + 8*H_RS
M_RED = M_GU
M_MISC = M_GU + 4096
M_END = M_MISC + 160
M_LIST = 0
S_DUMP = 16384

def moe_dma():
    T = S_T
    srd(SRD_K, S_WGT, 5308416)
    srd(SRD_V, S_WUP, 5308416)
    A("v_lshrrev_b32 v1, 3, v0")
    A("v_and_b32 v2, 7, v0")
    A("v_bfe_u32 v3, v0, 4, 1")
    A(f"s_and_b32 s{T+1}, s{S_WAVE}, 1")
    A(f"s_lshl_b32 s{T+1}, s{T+1}, 1")
    A(f"v_add_u32 v3, s{T+1}, v3")
    A("v_lshlrev_b32 v3, 1, v3")
    A("v_xor_b32 v2, v2, v3")
    A("v_mul_u32_u24 v1, 9216, v1")
    A("v_lshl_add_u32 v1, v2, 4, v1")
    A(f"s_lshl_b32 s{T+1}, s70, 7")
    A(f"v_add_u32 v1, s{T+1}, v1")
    A(f"s_mul_i32 s{T+3}, s{S_WAVE}, 73728")
    A(f"s_lshl_b32 s{T+4}, s{S_WAVE}, 10")
    A(f"s_mov_b32 s{T+5}, 0")
    L = A.newlabel("L_dma")
    A.label(L)
    A(f"s_add_u32 m0, s{T+4}, {M_WG}")
    A("s_nop 0")
    A(f"buffer_load_dwordx4 v1, s[{SRD_K}:{SRD_K+3}], s{T+3} offen {NTW} lds")
    A(f"s_add_u32 m0, s{T+4}, {M_WU}")
    A(f"s_add_u32 s{T+5}, s{T+5}, 1")
    A(f"buffer_load_dwordx4 v1, s[{SRD_V}:{SRD_V+3}], s{T+3} offen {NTW} lds")
    A(f"s_add_u32 s{T+3}, s{T+3}, {8*73728}")
    A(f"s_add_u32 s{T+4}, s{T+4}, {8*1024}")
    A(f"s_cmp_lt_u32 s{T+5}, 9")
    A(f"s_cbranch_scc1 {L}")

def moe_sel_wait():
    T = S_T
    A(f"s_lshl_b32 s{T+1}, s{S_WAVE}, 3")
    A(f"s_add_u32 s{T+1}, s{T+1}, {WS_SEL}")
    A(f"v_mov_b32 v3, s{T+1}")
    A("v_mov_b32 v4, 0")
    L = A.newlabel("L_sw"); Ld = A.newlabel("L_swd")
    A(f"s_mov_b32 s{T}, 0")
    A.label(L)
    A(f"global_load_dwordx2 v[16:17], v3, {sp(S_WS)} sc1")
    A(f"global_load_dword v30, v4, {sp(S_DBG)} sc1")
    A("s_waitcnt vmcnt(0)")
    A(f"v_readfirstlane_b32 s{S_NONCE}, v30")
    A(f"v_readfirstlane_b32 s{T+2}, v17")
    A(f"s_add_u32 s{T}, s{T}, 1")
    A(f"s_cmp_ge_u32 s{T}, {SPIN_MAX}")
    A(f"s_cbranch_scc1 {Ld}")
    A(f"s_cmp_eq_u32 s{S_NONCE}, 0")
    A(f"s_cbranch_scc1 {L}_s")
    A(f"s_cmp_eq_u32 s{T+2}, s{S_NONCE}")
    A(f"s_cbranch_scc1 {Ld}")
    A.label(L + "_s")
    A("s_sleep 3")
    A(f"s_branch {L}")
    A.label(Ld)

def moe_row_loads():
    T = S_T
    A("v_and_b32 v18, 0x7ff, v16")
    A("v_xor_b32 v18, 0x7ff, v18")
    A("v_mul_u32_u24 v20, 1152, v18")
    A("v_and_b32 v21, 31, v0")
    A("v_mul_u32_u24 v21, 36, v21")
    A("v_add_u32 v20, v20, v21")
    A(f"global_load_dwordx4 {p4(24)}, v20, {sp(S_Q)}")
    A(f"global_load_dwordx4 {p4(28)}, v20, {sp(S_Q)} offset:16")
    A(f"global_load_dword v32, v20, {sp(S_Q)} offset:32")
    A("v_lshlrev_b32 v22, 3, v18")
    A(f"v_add_u32 v22, {WS_SG}, v22")
    A(f"global_load_dwordx2 v[40:41], v22, {sp(S_WS)} sc1")

def moe_xs_compute():
    T = S_T
    L = A.newlabel("L_sg"); Ld = A.newlabel("L_sgd")
    A(f"s_mov_b32 s{T}, 0")
    A.label(L)
    A(f"v_readfirstlane_b32 s{T+2}, v41")
    A(f"s_add_u32 s{T}, s{T}, 1")
    A(f"s_cmp_eq_u32 s{T+2}, s{S_NONCE}")
    A(f"s_cbranch_scc1 {Ld}")
    A(f"s_cmp_ge_u32 s{T}, {SPIN_MAX}")
    A(f"s_cbranch_scc1 {Ld}")
    A(f"global_load_dwordx2 v[40:41], v22, {sp(S_WS)} sc1")
    A("s_waitcnt vmcnt(0)")
    A(f"s_branch {L}")
    A.label(Ld)
    A(f"v_lshlrev_b32 v44, 16, v40")
    A(f"v_and_b32 v45, s{S_MASK}, v40")
    A("v_rcp_f32 v46, v45")
    A(f"v_and_b32 v52, s{S_MASK}, v16")
    A("v_fma_f32 v47, -v45, v46, 1.0")
    A("v_fma_f32 v46, v47, v46, v46")
    A(f"v_mul_f32 v52, 0x{f32bits(-1.4426950408889634):08x}, v52")
    A("v_exp_f32 v52, v52")
    for i in range(9):
        r = 24 + i
        t = 48 + 2*(i & 1)
        A(f"v_lshlrev_b32 v{t}, 16, v{r}")
        A(f"v_and_b32 v{t+1}, s{S_MASK}, v{r}")
        A(f"v_pk_add_f32 {p2(t)}, {p2(t)}, v[44:45] op_sel_hi:[1,0] neg_lo:[0,1] neg_hi:[0,1]")
        rnd(t); rnd(t+1)
        A(f"v_pk_mul_f32 {p2(t)}, {p2(t)}, v[46:47] op_sel_hi:[1,0]")
        A(f"v_cvt_pk_bf16_f32 v{r}, v{t}, v{t+1}")
    A("v_add_f32 v52, 1.0, v52")
    A("v_rcp_f32 v52, v52")
    A(f"s_mul_i32 s{T+4}, s{S_WAVE}, {XS_RS}")
    A(f"s_add_u32 s{T+4}, s{T+4}, {M_XS}")
    A("v_add_u32 v21, s%d, v21" % (T+4))
    rnd(52)
    A("s_mov_b64 exec, 0xffffffff")
    A("ds_write2_b32 v21, v24, v25 offset0:0 offset1:1")
    A("ds_write2_b32 v21, v26, v27 offset0:2 offset1:3")
    A("ds_write2_b32 v21, v28, v29 offset0:4 offset1:5")
    A("ds_write2_b32 v21, v30, v31 offset0:6 offset1:7")
    A("ds_write_b32 v21, v32 offset:32")
    A(f"s_lshl_b32 s{T+4}, s{S_WAVE}, 2")
    A(f"s_add_u32 s{T+4}, s{T+4}, {M_MISC+32}")
    A(f"v_mov_b32 v53, s{T+4}")
    A("s_mov_b64 exec, 1")
    A("ds_write_b32 v53, v16")
    A("ds_write_b32 v53, v52 offset:32")
    A("s_mov_b64 exec, -1")
    A(f"s_lshl_b32 s{T+1}, s{S_WAVE}, 6")
    A(f"v_add_u32 v1, s{T+1}, v0")

DRA, DRB = 64, 96
def moe_down_loads():
    T = S_T
    A("v_lshrrev_b32 v6, 4, v0")
    A("v_mul_u32_u24 v5, 9216, v6")
    A("v_and_b32 v6, 15, v0")
    A("v_lshl_add_u32 v5, v6, 3, v5")
    A(f"s_mul_i32 s{T+1}, s70, 73728")
    A(f"s_lshl_b32 s{T+2}, s{S_WAVE}, 7")
    A(f"s_add_u32 s{T+1}, s{T+1}, s{T+2}")
    A(f"v_add_u32 v5, s{T+1}, v5")
    srd(SRD_Q, S_WD, 5308416)
    def panel(R, extra):
        for ks in range(2):
            for jj in range(8):
                so = 36864*ks + 4608*(jj//4) + extra
                A(f"s_mov_b32 s{T+3}, {so}")
                r = R + 16*ks + 2*jj
                A(f"buffer_load_dwordx2 {p2(r)}, v5, s[{SRD_Q}:{SRD_Q+3}], s{T+3} offen offset:{1152*(jj%4)} {NTD}")
    panel(DRA, 0)
    L = A.newlabel("L_np8")
    A(f"s_cmp_lg_u32 s{S_WAVE}, 0")
    A(f"s_cbranch_scc1 {L}")
    panel(DRB, 1024)
    A.label(L)

def down_perm(R, F):
    for ks in range(2):
        for e in range(4):
            sel = S_SELLO if (e & 1) == 0 else S_SELHI
            for q in range(4):
                A(f"v_perm_b32 v{F+16*ks+4*e+q}, v{R+16*ks+2*(2*q+1)+e//2}, v{R+16*ks+2*(2*q)+e//2}, s{sel}")

def moe_gateup_addr():
    T = S_T
    A(f"s_lshr_b32 s{T+1}, s{S_WAVE}, 2")
    A(f"s_and_b32 s{T+2}, s{S_WAVE}, 3")
    A("v_lshrrev_b32 v6, 4, v0")
    A("v_bfe_u32 v7, v0, 2, 2")
    A("v_and_b32 v8, 3, v0")
    A("v_lshrrev_b32 v9, 1, v7")
    A("v_and_b32 v10, 1, v6")
    A("v_lshl_add_u32 v9, v10, 1, v9")
    A("v_lshlrev_b32 v9, 1, v9")
    A("v_lshrrev_b32 v10, 1, v8")
    A(f"s_lshl_b32 s{T+3}, s{T+2}, 1")
    A(f"v_add_u32 v10, s{T+3}, v10")
    A("v_xor_b32 v10, v10, v9")
    A("v_lshlrev_b32 v34, 10, v6")
    A("v_lshl_add_u32 v34, v7, 7, v34")
    A("v_lshl_add_u32 v34, v10, 4, v34")
    A("v_and_b32 v8, 1, v8")
    A("v_lshl_add_u32 v34, v8, 3, v34")
    A(f"s_mul_i32 s{T+3}, s{T+1}, {M_WU}")
    A(f"v_add_u32 v34, s{T+3}, v34")
    A(f"v_add_u32 v35, {4096*9}, v34")

def gu_areg(t):
    return f"v[{128+4*t}:{128+4*t+3}]" if t < 16 else f"a[{4*(t-16)}:{4*(t-16)+3}]"
def gu_areg2(t, h):
    if t < 16: return f"v[{128+4*t+2*h}:{128+4*t+2*h+1}]"
    return f"a[{4*(t-16)+2*h}:{4*(t-16)+2*h+1}]"
def moe_gateup_preload():
    for t in range(18):
        a, o = (34, 4096*t) if t < 9 else (35, 4096*(t-9))
        A(f"ds_read_b64_tr_b16 {gu_areg2(t,0)}, v{a} offset:{o}")
        A(f"ds_read_b64_tr_b16 {gu_areg2(t,1)}, v{a} offset:{o+512}")
        if t % 6 == 5: A("s_waitcnt lgkmcnt(2)")

def moe_gateup():
    T = S_T
    A(f"s_lshr_b32 s{T+1}, s{S_WAVE}, 2")
    A(f"s_and_b32 s{T+2}, s{S_WAVE}, 3")
    A("v_lshrrev_b32 v6, 4, v0")
    A("v_and_b32 v3, 7, v0")
    A(f"v_mul_u32_u24 v3, {XS_RS}, v3")
    A("v_lshl_add_u32 v3, v6, 4, v3")
    A(f"v_add_u32 v3, {M_XS}, v3")
    B0 = 8
    def rd(t):
        b = B0 + 4*(t % 12)
        A(f"ds_read_b128 a[{b}:{b+3}], v3 offset:{64*t}")
    for t in range(12): rd(t)
    for t in range(18):
        rem = min(17, t+11) - t
        A(f"s_waitcnt lgkmcnt({min(rem, 15)})")
        b = B0 + 4*(t % 12)
        acc = 8 + 4*(t & 1)
        cin = "0" if t < 2 else f"v[{acc}:{acc+3}]"
        A(f"v_mfma_f32_16x16x32_bf16 v[{acc}:{acc+3}], {gu_areg(t)}, a[{b}:{b+3}], {cin}")
        if t + 12 < 18: rd(t+12)
    A("v_and_b32 v3, 15, v0")
    A("v_lshlrev_b32 v4, 8, v3")
    A("v_lshl_add_u32 v4, v6, 4, v4")
    A(f"s_lshl_b32 s{T+3}, s{T+1}, 11")
    A(f"s_lshl_b32 s{T+4}, s{T+2}, 6")
    A(f"s_add_u32 s{T+3}, s{T+3}, s{T+4}")
    A(f"s_add_u32 s{T+3}, s{T+3}, {M_GU}")
    A(f"v_add_u32 v4, s{T+3}, v4")
    A("v_cmp_gt_u32 vcc, 8, v3")
    A(f"s_and_saveexec_b64 {sp(T+12)}, vcc")
    A("s_nop 1")
    A("v_pk_add_f32 v[8:9], v[8:9], v[12:13]")
    A("v_pk_add_f32 v[10:11], v[10:11], v[14:15]")
    A(f"ds_write_b128 v4, {p4(8)}")
    A(f"s_mov_b64 exec, {sp(T+12)}")

def moe_h_and_down_stage():
    T = S_T
    A("v_lshlrev_b32 v2, 2, v1")
    A(f"v_add_u32 v2, {M_GU}, v2")
    A("ds_read_b32 v8, v2")
    A("ds_read_b32 v9, v2 offset:2048")
    A("v_lshrrev_b32 v3, 6, v1")
    A(f"v_mul_u32_u24 v3, {H_RS}, v3")
    A("v_lshl_add_u32 v3, v0, 1, v3")
    A(f"v_add_u32 v3, {M_H}, v3")
    A("s_waitcnt lgkmcnt(0)")
    rnd(8); rnd(9)
    A(f"v_mul_f32 v10, 0x{f32bits(-1.4426950408889634):08x}, v8")
    A("v_exp_f32 v10, v10")
    A("s_nop 0")
    A("v_add_f32 v10, 1.0, v10")
    A("v_rcp_f32 v10, v10")
    A("s_nop 0")
    A("v_mul_f32 v10, v8, v10")
    rnd(10)
    A("v_mul_f32 v10, v10, v9")
    A("v_cvt_pk_bf16_f32 v10, v10, v10")
    A("ds_write_b16 v3, v10")
    A("s_waitcnt vmcnt(0)")
    down_perm(DRA, 32)
    L = A.newlabel("L_np8b")
    A(f"s_cmp_lg_u32 s{S_WAVE}, 0")
    A(f"s_cbranch_scc1 {L}")
    down_perm(DRB, 64)
    A.label(L)

def moe_down():
    T = S_T
    A("v_and_b32 v2, 7, v0")
    A(f"v_mul_u32_u24 v2, {H_RS}, v2")
    A("v_lshrrev_b32 v6, 4, v0")
    A("v_lshl_add_u32 v2, v6, 4, v2")
    A(f"v_add_u32 v2, {M_H}, v2")
    A(f"ds_read_b128 {p4(16)}, v2")
    A(f"ds_read_b128 {p4(20)}, v2 offset:64")
    A("v_and_b32 v4, 15, v0")
    A("v_lshlrev_b32 v5, 4, v4")
    A("v_lshl_add_u32 v5, v6, 9, v5")
    A(f"s_mul_i32 s{T+1}, s70, 18432")
    A(f"s_lshl_b32 s{T+2}, s{S_WAVE}, 11")
    A(f"s_add_u32 s{T+1}, s{T+1}, s{T+2}")
    A(f"v_add_u32 v5, s{T+1}, v5")
    add64(T+2, S_WS, WS_PART)
    A(f"s_mov_b32 s{T+4}, 0x07060503"); A(f"s_mov_b32 s{T+5}, 0x06050302"); A(f"s_mov_b32 s{T+6}, 0x05030201")
    A("v_cmp_gt_u32 vcc, 8, v4")
    A(f"s_mov_b64 {sp(T+12)}, vcc")
    A("s_waitcnt lgkmcnt(0)")
    def panel(F, ACC, G, vaddr):
        for e in range(4):
            A(f"v_mfma_f32_16x16x32_bf16 {p4(ACC+4*e)}, {p4(F+4*e)}, {p4(16)}, 0")
        for e in range(4):
            A(f"v_mfma_f32_16x16x32_bf16 {p4(ACC+4*e)}, {p4(F+16+4*e)}, {p4(20)}, {p4(ACC+4*e)}")
        A("s_nop 7"); A("s_nop 1")
        for r in range(4):
            g = G + 4*r
            a, b, c, d = ACC+r, ACC+4+r, ACC+8+r, ACC+12+r
            A(f"v_perm_b32 v{g}, v{a}, v{b}, s{T+4}")
            A(f"v_perm_b32 v{g+1}, v{b}, v{c}, s{T+5}")
            A(f"v_perm_b32 v{g+2}, v{c}, v{d}, s{T+6}")
            A(f"v_mov_b32 v{g+3}, s{S_NONCE}")
        A(f"s_mov_b64 exec, {sp(T+12)}")
        for r in range(4):
            A(f"global_store_dwordx4 v{vaddr}, {p4(G+4*r)}, {sp(T+2)} offset:{128*r} sc1")
        A("s_mov_b64 exec, -1")
    panel(32, 96, 112, 5)
    L = A.newlabel("L_np8c")
    A(f"s_cmp_lg_u32 s{S_WAVE}, 0")
    A(f"s_cbranch_scc1 {L}")
    A(f"v_add_u32 v7, {8*2048}, v5")
    panel(64, 96, 32, 7)
    A.label(L)

def moe_reduce():
    T = S_T
    A("v_lshrrev_b32 v6, 4, v0")
    A(f"s_mul_i32 s{T+1}, s{S_WAVE}, 9")
    A(f"v_add_u32 v1, s{T+1}, v6")
    A(f"v_mul_u32_u24 v1, 18432, v1")
    A("v_and_b32 v2, 15, v0")
    A("v_lshl_add_u32 v1, v2, 4, v1")
    A(f"s_lshl_b32 s{T+1}, s70, 8")
    A(f"v_add_u32 v1, s{T+1}, v1")
    A(f"v_add_u32 v3, {4*18432}, v1")
    A(f"v_mul_u32_u24 v4, 18432, v6")
    A(f"v_sub_u32 v4, v1, v4")
    A(f"v_add_u32 v4, {8*18432}, v4")
    A("v_lshrrev_b32 v50, 2, v0")
    A("v_and_b32 v51, 3, v0")
    A(f"s_lshl_b32 s{T+1}, s70, 4")
    A(f"v_add_u32 v52, s{T+1}, v50")
    A("v_and_b32 v53, 7, v52")
    A("v_lshrrev_b32 v54, 3, v52")
    A("v_lshl_add_u32 v54, v54, 2, v51")
    A("v_mul_u32_u24 v55, 576, v53")
    A("v_add_u32 v55, v55, v54")
    A("v_lshlrev_b32 v55, 3, v55")
    A(f"v_add_u32 v55, {WS_T1G}, v55")
    add64(T+2, S_WS, WS_PART)
    def ld():
        A(f"global_load_dwordx4 {p4(16)}, v1, {sp(T+2)} sc1")
        A(f"global_load_dwordx4 {p4(20)}, v3, {sp(T+2)} sc1")
        A(f"global_load_dwordx4 {p4(24)}, v4, {sp(T+2)} sc1")
    tagcheck_loop(ld, [19, 23, 27], 10, 12, sleep=1)
    stamp(8)
    tl(14, 151, 0)
    A(f"s_mov_b32 s{T+4}, 0x0403020c"); A(f"s_mov_b32 s{T+5}, 0x0504030c"); A(f"s_mov_b32 s{T+6}, 0xffffff00")
    U = 32
    for i in range(3):
        g = 16 + 4*i; u = U + 4*i
        A(f"v_and_b32 v{u}, s{T+6}, v{g}")
        A(f"v_perm_b32 v{u+1}, v{g}, v{g+1}, s{T+4}")
        A(f"v_perm_b32 v{u+2}, v{g+1}, v{g+2}, s{T+5}")
        A(f"v_lshlrev_b32 v{u+3}, 8, v{g+2}")
    for r in range(4):
        A(f"v_add_f32 v{U+r}, v{U+r}, v{U+4+r}")
    for swap in ("v_permlane32_swap_b32", "v_permlane16_swap_b32"):
        for r in range(4): A(f"v_mov_b32 v{44+r}, v{U+r}")
        A("s_nop 1")
        for r in range(4): A(f"{swap} v{U+r}, v{44+r}")
        for r in range(4): A(f"v_add_f32 v{U+r}, v{U+r}, v{44+r}")
    for r in range(4):
        A(f"v_add_f32 v{U+r}, v{U+r}, v{U+8+r}")
    A(f"s_lshl_b32 s{T+1}, s{S_WAVE}, 8")
    A("v_lshlrev_b32 v5, 4, v2")
    A(f"v_add_u32 v5, s{T+1}, v5")
    A(f"v_add_u32 v5, {M_RED}, v5")
    A("s_mov_b64 exec, 0xffff")
    A(f"ds_write_b128 v5, {p4(U)}")
    A("s_mov_b64 exec, -1")
    A("s_waitcnt lgkmcnt(0)")
    A("s_barrier")
    L = A.newlabel("L_nofin")
    A(f"s_cmp_lg_u32 s{S_WAVE}, 0")
    A(f"s_cbranch_scc1 {L}")
    A("v_lshlrev_b32 v6, 4, v50")
    A("v_lshl_add_u32 v6, v51, 2, v6")
    A(f"v_add_u32 v6, {M_RED}, v6")
    for w in range(8): A(f"ds_read_b32 v{16+w}, v6 offset:{256*w}")
    A(f"v_mul_u32_u24 v7, {XS_RS}, v53")
    A("v_lshl_add_u32 v7, v54, 1, v7")
    A(f"v_add_u32 v7, {M_XS}, v7")
    A("ds_read_u16 v24, v7")
    A("v_lshlrev_b32 v8, 2, v53")
    A(f"v_add_u32 v8, {M_MISC}, v8")
    A("ds_read_b32 v25, v8 offset:32")
    A("ds_read_b32 v26, v8 offset:64")
    A("v_mov_b32 v5, v54")
    A("s_waitcnt lgkmcnt(0)")
    T1POLL = True
    A("v_add_f32 v16, v16, v17"); A("v_add_f32 v18, v18, v19"); A("v_add_f32 v20, v20, v21"); A("v_add_f32 v22, v22, v23")
    A("v_add_f32 v16, v16, v18"); A("v_add_f32 v20, v20, v22"); A("v_add_f32 v16, v16, v20")
    rnd(16)
    A("v_mul_f32 v16, v16, v26")
    rnd(16)
    A("v_lshlrev_b32 v24, 16, v24")
    A("v_add_f32 v16, v24, v16")
    rnd(16)
    A("v_and_b32 v25, 0x7ff, v25")
    A("v_xor_b32 v25, 0x7ff, v25")
    A("v_mul_u32_u24 v25, 1152, v25")
    A("v_lshl_add_u32 v25, v5, 1, v25")
    tagcheck_loop(lambda: A(f"global_load_dwordx2 v[28:29], v55, {sp(S_WS)} sc1"), [29], 10, 12, sleep=0)
    A("v_add_f32 v16, v28, v16")
    A("v_cvt_pk_bf16_f32 v16, v16, v16")
    A(f"global_store_short v25, v16, {sp(S_OUT)}")
    A.label(L)

def lds_init_list():
    T = S_T
    A(f"s_lshl_b32 s{T+1}, s{S_WAVE}, 10")
    A("v_lshlrev_b32 v110, 4, v0")
    A(f"v_add_u32 v111, s{T+1}, v110")
    A(f"v_add_u32 v111, {M_LIST}, v111")
    for i in range(4): A(f"v_mov_b32 v{112+i}, 0xff800000")
    A(f"ds_write_b128 v111, {p4(112)}")
    L0 = A.newlabel("L_ni")
    A(f"s_cmp_lg_u32 s{S_WAVE}, 0")
    A(f"s_cbranch_scc1 {L0}")
    A(f"v_add_u32 v111, {M_LIST+8192}, v110")
    A("s_mov_b64 exec, 0xf")
    A(f"ds_write_b128 v111, {p4(112)}")
    A("s_mov_b64 exec, -1")
    for i in range(4): A(f"v_mov_b32 v{116+i}, 0")
    A(f"v_add_u32 v111, {M_MISC}, v110")
    A("s_mov_b64 exec, 0x3ff")
    A(f"ds_write_b128 v111, {p4(116)}")
    A("s_mov_b64 exec, -1")
    A.label(L0)

def sel_top8():
    T = S_T
    A(f"s_lshl_b32 s{T+1}, s{S_WAVE}, 6")
    A(f"v_add_u32 v1, s{T+1}, v0")
    A("v_lshlrev_b32 v2, 5, v1")
    add64(T+2, S_WS, WS_RG)
    K = 16
    def ld():
        for i in range(2):
            A(f"global_load_dwordx4 {p4(K+4*i)}, v2, {sp(T+2)} offset:{16*i} sc1")
    tagcheck_loop(ld, [K+2*i+1 for i in range(4)], 10, 12, sleep=1)
    stamp(5)
    tl(10, 255, 0)
    keys = [K+2*i for i in range(4)]
    A(f"v_max3_f32 v40, v{keys[0]}, v{keys[1]}, v{keys[2]}")
    A(f"v_max_f32 v40, v40, v{keys[3]}")
    for sh in (8, 4, 2, 1):
        A("s_nop 1")
        A(f"v_max_f32_dpp v40, v40, v40 row_ror:{sh} row_mask:0xf bank_mask:0xf")
    A("s_nop 1")
    A(f"v_readlane_b32 s{T+4}, v40, 16")
    A(f"v_readlane_b32 s{T+5}, v40, 32")
    A(f"v_readlane_b32 s{T+6}, v40, 48")
    A("s_nop 1")
    A(f"v_max_f32 v40, s{T+4}, v40")
    A(f"v_max_f32 v40, s{T+5}, v40")
    A(f"v_max_f32 v40, s{T+6}, v40")
    A(f"s_lshl_b32 s{T+4}, s{S_WAVE}, 2")
    A(f"s_add_u32 s{T+4}, s{T+4}, {M_MISC+96}")
    A(f"v_mov_b32 v43, s{T+4}")
    A("s_mov_b64 exec, 1")
    A(f"ds_write_b32 v43, v40")
    A("s_mov_b64 exec, -1")
    A("s_waitcnt lgkmcnt(0)")
    A("s_barrier")
    A(f"v_mov_b32 v43, {M_MISC+96}")
    A(f"ds_read_b128 {p4(44)}, v43")
    A(f"ds_read_b128 {p4(48)}, v43 offset:16")
    A("s_waitcnt lgkmcnt(0)")
    A("v_min3_f32 v40, v44, v45, v46")
    A("v_min3_f32 v41, v47, v48, v49")
    A("v_min3_f32 v40, v40, v50, v51")
    A("v_min_f32 v40, v40, v41")
    A("v_mov_b32 v41, 0")
    for i in range(4):
        A(f"v_cmp_ge_f32 {sp(T+4+2*i)}, v{keys[i]}, v40")
    for q in range(4):
        A(f"v_addc_co_u32 v41, vcc, 0, v41, {sp(T+4+2*q)}")
    A(f"v_mov_b32 v43, {M_MISC}")
    A("v_cmp_lt_u32 vcc, 0, v41")
    A(f"s_and_saveexec_b64 {sp(T+12)}, vcc")
    A("ds_add_rtn_u32 v42, v43, v41")
    A(f"s_mov_b64 exec, {sp(T+12)}")
    A("s_waitcnt lgkmcnt(0)")
    A("v_lshlrev_b32 v42, 2, v42")
    A(f"v_add_u32 v42, {M_LIST}, v42")
    A(f"v_mov_b32 v43, {S_DUMP}")
    for i in range(4):
        A(f"v_cndmask_b32 v44, v43, v42, {sp(T+4+2*i)}")
        A(f"v_cndmask_b32 v45, 0, 4, {sp(T+4+2*i)}")
        A(f"ds_write_b32 v44, v{keys[i]}")
        A(f"v_add_u32 v42, v42, v45")
    A("s_waitcnt lgkmcnt(0)")
    A("s_barrier")
    A(f"v_mov_b32 v43, {M_MISC}")
    A("ds_read_b32 v44, v43")
    A("s_waitcnt lgkmcnt(0)")
    A(f"v_readfirstlane_b32 s{T+8}, v44")
    A(f"s_mov_b32 s{T+9}, 0")
    Lc = A.newlabel("L_chunk"); Lj = A.newlabel("L_j")
    A.label(Lc)
    A(f"v_add_u32 v44, s{T+9}, v0")
    A("v_lshlrev_b32 v44, 2, v44")
    A(f"v_add_u32 v44, {M_LIST}, v44")
    A("ds_read_b32 v46, v44")
    A("v_mov_b32 v47, 0")
    A(f"v_mov_b32 v45, {M_LIST}")
    A(f"s_mov_b32 s{T+10}, 0")
    A.label(Lj)
    A(f"ds_read_b128 {p4(48)}, v45")
    A(f"ds_read_b128 {p4(52)}, v45 offset:16")
    A("v_add_u32 v45, 32, v45")
    A(f"s_add_u32 s{T+10}, s{T+10}, 8")
    A("s_waitcnt lgkmcnt(1)")
    for q in range(4):
        A(f"v_cmp_gt_f32 {sp(T+2*q)}, v{48+q}, v46")
    for q in range(4):
        A(f"v_addc_co_u32 v47, vcc, 0, v47, {sp(T+2*q)}")
    A("s_waitcnt lgkmcnt(0)")
    for q in range(4):
        A(f"v_cmp_gt_f32 {sp(T+2*q)}, v{52+q}, v46")
    for q in range(4):
        A(f"v_addc_co_u32 v47, vcc, 0, v47, {sp(T+2*q)}")
    A(f"s_cmp_lt_u32 s{T+10}, s{T+8}")
    A(f"s_cbranch_scc1 {Lj}")
    A(f"v_add_u32 v44, s{T+9}, v0")
    A(f"v_cmp_gt_u32 vcc, s{T+8}, v44")
    A(f"v_cmp_gt_u32 {sp(T)}, 8, v47")
    A("s_nop 1")
    A(f"s_and_b64 vcc, vcc, {sp(T)}")
    A(f"s_and_saveexec_b64 {sp(T+12)}, vcc")
    A("v_lshlrev_b32 v47, 2, v47")
    A(f"v_add_u32 v47, {M_MISC+32}, v47")
    A("ds_write_b32 v47, v46")
    A(f"s_mov_b64 exec, {sp(T+12)}")
    A(f"s_add_u32 s{T+9}, s{T+9}, 64")
    A(f"s_cmp_lt_u32 s{T+9}, s{T+8}")
    A(f"s_cbranch_scc1 {Lc}")
    A("s_waitcnt lgkmcnt(0)")
    stamp(6)

def sel_publish():
    T = S_T
    L = A.newlabel("L_sp")
    A(f"s_cmp_lg_u32 s{S_WAVE}, 0")
    A(f"s_cbranch_scc1 {L}")
    A("v_lshlrev_b32 v1, 2, v0")
    A(f"v_add_u32 v1, {M_MISC+32}, v1")
    A("s_mov_b64 exec, 0xff")
    A("ds_read_b32 v2, v1")
    add64(T+2, S_WS, WS_SEL)
    A(f"v_mov_b32 v3, s{S_NONCE}")
    A("v_lshlrev_b32 v4, 3, v0")
    A("s_waitcnt lgkmcnt(0)")
    A(f"global_store_dwordx2 v4, v[2:3], {sp(T+2)} sc1")
    A("s_mov_b64 exec, -1")
    A.label(L)
    stamp(7)
    tl(11, 255, 0)

def ln_pass(stok):
    ln_loads(stok, LN_Q, True)
    A("v_mov_b32 v120, 0")
    A(f"global_load_dword v121, v120, {sp(S_DBG)} sc1")
    A("s_waitcnt vmcnt(1)")
    def hook():
        Lhn = A.newlabel("L_lnn")
        A("s_waitcnt vmcnt(0)")
        A(f"v_readfirstlane_b32 s{S_NONCE}, v121")
        A(f"s_cmp_lg_u32 s{S_NONCE}, 0")
        A(f"s_cbranch_scc1 {Lhn}")
        get_nonce(124)
        A.label(Lhn)
    ln_compute_publish(LN_Q, 3, True, hook=hook)

def spare_wg():
    T = S_T
    A(f"s_sub_u32 s69, s69, {NMOE}")
    A("s_mul_i32 s68, s69, 24")
    A(f"s_lshl_b32 s{T+1}, s{S_WAVE}, 2")
    A(f"s_add_u32 s68, s68, s{T+1}")
    A("s_add_u32 s68, s68, 1152")
    Le = A.newlabel("L_lne")
    A(f"s_cmp_ge_u32 s{S_WAVE}, 6")
    A(f"s_cbranch_scc1 {Le}")
    A("s_cmp_ge_u32 s68, 2048")
    A(f"s_cbranch_scc1 {Le}")
    ln_pass(68)
    A.label(Le)
    stamp(4)
    A(f"s_cmp_lg_u32 s69, {SELIDX}")
    A("s_cbranch_scc1 L_fin")
    lds_init_list()
    get_nonce(124)
    A("s_waitcnt lgkmcnt(0)")
    A("s_barrier")
    sel_top8()
    sel_publish()
    A("s_branch L_fin")

def moe_wg():
    T = S_T
    A(f"s_sub_u32 s69, s{S_WG}, {NCONV}")
    A(f"s_cmp_ge_u32 s69, {NMOE}")
    A("s_cbranch_scc1 L_spare")
    A("s_and_b32 s70, s69, 7")
    A("s_mul_i32 s70, s70, 9")
    A(f"s_lshr_b32 s{T+1}, s69, 3")
    A(f"s_add_u32 s70, s70, s{T+1}")
    Lm = A.newlabel("L_mln")
    A(f"s_cmp_ge_u32 s{S_WAVE}, 4")
    A(f"s_cbranch_scc1 {Lm}")
    A("s_lshl_b32 s68, s69, 4")
    A(f"s_lshl_b32 s{T+1}, s{S_WAVE}, 2")
    A(f"s_add_u32 s68, s68, s{T+1}")
    ln_pass(68)
    A.label(Lm)
    if "mbar" in OPTS: A("s_barrier")
    if "mnonce" in OPTS: get_nonce(10)
    stamp(3)
    moe_dma()
    A("s_waitcnt vmcnt(4)")
    stamp(4)
    moe_sel_wait()
    stamp(5)
    tl(12, 151, 7)
    moe_row_loads()
    A("s_barrier")
    if "xsfirst" in OPTS:
        moe_gateup_addr()
        moe_gateup_preload()
        A("s_waitcnt vmcnt(0)")
    else:
        moe_down_loads()
        moe_gateup_addr()
        moe_gateup_preload()
        Lq = A.newlabel("L_w32")
        A(f"s_cmp_lg_u32 s{S_WAVE}, 0")
        A(f"s_cbranch_scc1 {Lq}")
        A("s_waitcnt vmcnt(32)")
        A.label(Lq)
        A(f"s_cmp_eq_u32 s{S_WAVE}, 0")
        A(f"s_cbranch_scc1 {Lq}_b")
        A("s_waitcnt vmcnt(16)")
        A.label(Lq + "_b")
    moe_xs_compute()
    if "xsfirst" in OPTS:
        A("s_waitcnt lgkmcnt(0)")
        A("s_barrier")
        moe_gateup()
        moe_down_loads()
        A("s_waitcnt lgkmcnt(0)")
        A("s_barrier")
        moe_h_and_down_stage()
        A("s_waitcnt lgkmcnt(0)")
        A("s_barrier")
        stamp(7)
        moe_down()
        moe_reduce()
        A("s_branch L_fin")
    stamp(6)
    tl(13, 151, 7)
    A("s_waitcnt lgkmcnt(0)")
    A("s_barrier")
    moe_gateup()
    A("s_waitcnt lgkmcnt(0)")
    A("s_barrier")
    moe_h_and_down_stage()
    A("s_waitcnt lgkmcnt(0)")
    A("s_barrier")
    stamp(7)
    moe_down()
    moe_reduce()
    A("s_branch L_fin")
    A.label("L_spare")
    spare_wg()

def main():
    prologue()
    A(f"s_cmp_ge_u32 s{S_WG}, {NCONV}")
    A("s_cbranch_scc1 L_moe")
    conv_wg()
    A.label("L_moe")
    moe_wg()
    A.label("L_fin")
    tl(15, 151, 0)
    prof_end()
    A.label("L_end")
    A("s_endpgm")

main()
K = NAME + "_kernel"
LDS = max(L_CONV_END, M_END)
txt = HDR + f"; @launch grid=(256,1,1) block=(512,1,1) lds={LDS}\n" + '.amdgcn_target "amdgcn-amd-amdhsa--gfx950"\n.text\n' + head(K) + A.text() + kd(K, 256, 102, 192, "  .amdhsa_float_denorm_mode_32 3\n")
open(OUTFN, "w").write(txt)
print("wrote", OUTFN, len(txt), "LDS", LDS)
```

```python
import sys, struct, os
sys.path.insert(0, "dev")
from asmlib import *

OUTFN = sys.argv[1] if len(sys.argv) > 1 else "k.s"
OPTS = set(sys.argv[2:])
PROF = "prof" in OPTS
NT = "nt" if "nt" in OPTS else ""
NTKV = "nt" if "ntkv" in OPTS else NT
NTH = "nt" if "nth" in OPTS else NT
NTW = "nt" if "ntw" in OPTS else NT
NTD = "nt" if "ntd" in OPTS else NT
NTP = "nt" if "ntp" in OPTS else NT
NTLN = "nt" if "ntln" in OPTS else NT
NTQ = "nt" if "ntq" in OPTS else NT

WS_KVT = 0x000000
WS_XT = 0x240000
WS_RG = 0x480000
WS_SG = 0x484000
WS_FL = 0x488000
WS_FL2 = 0x488800
WS_SEL = 0x489800
WS_T1G = 0x48A000
WS_XSG = 0x494000
WS_PART = 0x4A0000
WS_PROF = 0x800000
WS_YG = 0x1000000
SPIN_MAX = 2000 if "dbgB" in OPTS else 400000
NCONV, NMOE = 144, 72
NLN = 40
SELIDX = 39

S_WG, S_WAVE = 2, 3
S_Q, S_K, S_V, S_SK, S_H, S_D, S_BX, S_WR, S_WGT, S_WUP, S_WD, S_OUT, S_DBG, S_WS = 4, 6, 8, 10, 12, 14, 16, 18, 20, 22, 24, 26, 28, 30
SRD_K, SRD_V, SRD_Q, SRD_O = 32, 36, 40, 44
S_NONCE = 48
S_MASK, S_SELLO, S_SELHI = 50, 51, 52
S_T = 54

A = Asm()
def f32bits(x): return struct.unpack("<I", struct.pack("<f", x))[0]
def p2(r): return f"v[{r}:{r+1}]"
def p4(r): return f"v[{r}:{r+3}]"
def sp(r): return f"s[{r}:{r+1}]"

NSTAMP = 10
def stamp(i):
    if PROF: A(f"s_memtime s[{80+2*i}:{81+2*i}]")
def prof_begin():
    if PROF:
        A("s_memrealtime s[100:101]")
        stamp(0)
        for i in range(1, NSTAMP):
            A(f"s_mov_b64 s[{80+2*i}:{81+2*i}], 0")
def prof_end():
    if not PROF: return
    A(f"s_memrealtime s[{S_T+2}:{S_T+3}]")
    A("s_waitcnt lgkmcnt(0)")
    A(f"s_lshl_b32 s{S_T}, s{S_WG}, 3")
    A(f"s_add_u32 s{S_T}, s{S_T}, s{S_WAVE}")
    A(f"s_lshl_b32 s{S_T}, s{S_T}, 6")
    A(f"s_add_u32 s{S_T}, s{S_T}, {WS_PROF}")
    A(f"v_mov_b32 v1, s{S_T}")
    A("s_mov_b64 exec, 1")
    A("v_mov_b32 v2, s100")
    A(f"global_store_dword v1, v2, {sp(S_WS)}")
    A(f"v_mov_b32 v2, s{S_T+2}")
    A(f"global_store_dword v1, v2, {sp(S_WS)} offset:4")
    for i in range(1, NSTAMP):
        A(f"s_sub_u32 s{S_T+1}, s{80+2*i}, s80")
        A(f"v_mov_b32 v2, s{S_T+1}")
        A(f"global_store_dword v1, v2, {sp(S_WS)} offset:{4+4*i}")
    A("s_mov_b64 exec, -1")

TL = "tl" in OPTS
TLSET = os.environ.get("TLSET", "A")
def tl(slot, wg, wave, setname="A"):
    if not TL or setname != TLSET: return
    L = A.newlabel("L_tl")
    A(f"s_cmp_lg_u32 s{S_WG}, {wg}")
    A(f"s_cbranch_scc1 {L}")
    A(f"s_cmp_lg_u32 s{S_WAVE}, {wave}")
    A(f"s_cbranch_scc1 {L}")
    A("s_memrealtime s[98:99]")
    A("s_mov_b64 s[100:101], exec")
    A("s_mov_b64 exec, 1")
    A("v_readfirstlane_b32 s96, v126")
    A("v_readfirstlane_b32 s97, v127")
    A(f"v_mov_b32 v126, {4*slot}")
    A("s_waitcnt lgkmcnt(0)")
    A("v_mov_b32 v127, s98")
    A(f"global_store_dword v126, v127, {sp(S_DBG)}")
    A("s_nop 4")
    A("v_mov_b32 v126, s96")
    A("v_mov_b32 v127, s97")
    A("s_mov_b64 exec, s[100:101]")
    A.label(L)

def rnd(v, src=None):
    A(f"v_cvt_pk_bf16_f32 v{v}, 0, v{v if src is None else src}")
def srd(dst, base, nbytes):
    A(f"s_mov_b32 s{dst}, s{base}")
    A(f"s_and_b32 s{dst+1}, s{base+1}, 0xffff")
    A(f"s_mov_b32 s{dst+2}, {nbytes}")
    A(f"s_mov_b32 s{dst+3}, 0x00020000")
def add64(dst, src, imm):
    A(f"s_add_u32 s{dst}, s{src}, {imm}")
    A(f"s_addc_u32 s{dst+1}, s{src+1}, 0")

def get_nonce(vtmp):
    L = A.newlabel("L_nonce"); Ld = A.newlabel("L_nonced")
    A(f"v_mov_b32 v{vtmp}, 0")
    A(f"s_mov_b32 s{S_T}, 0")
    A.label(L)
    A(f"global_load_dword v{vtmp+1}, v{vtmp}, {sp(S_DBG)} sc1")
    A(f"s_waitcnt vmcnt(0)")
    A(f"v_readfirstlane_b32 s{S_NONCE}, v{vtmp+1}")
    A(f"s_add_u32 s{S_T}, s{S_T}, 1")
    A(f"s_cmp_lg_u32 s{S_NONCE}, 0")
    A(f"s_cbranch_scc1 {Ld}")
    A(f"s_cmp_lt_u32 s{S_T}, {SPIN_MAX}")
    A(f"s_cbranch_scc1 {L}")
    A.label(Ld)

def tag_acc(tagregs, vacc, vtmp):
    A(f"v_xor_b32 v{vacc}, s{S_NONCE}, v{tagregs[0]}")
    rest = tagregs[1:]
    i = 0
    while i < len(rest):
        if i + 1 < len(rest):
            A(f"v_xor_b32 v{vtmp}, s{S_NONCE}, v{rest[i]}")
            A(f"v_xor_b32 v{vtmp+1}, s{S_NONCE}, v{rest[i+1]}")
            A(f"v_or3_b32 v{vacc}, v{vacc}, v{vtmp}, v{vtmp+1}")
            i += 2
        else:
            A(f"v_xor_b32 v{vtmp}, s{S_NONCE}, v{rest[i]}")
            A(f"v_or_b32 v{vacc}, v{vacc}, v{vtmp}")
            i += 1

def tagcheck_loop(load_fn, tagregs, vacc, vtmp, sleep=1):
    T = S_T
    L = A.newlabel("L_pl"); Ld = A.newlabel("L_pld")
    A(f"s_mov_b32 s{T}, 0")
    A.label(L)
    load_fn()
    A("s_waitcnt vmcnt(0)")
    tag_acc(tagregs, vacc, vtmp)
    A(f"v_cmp_ne_u32 vcc, 0, v{vacc}")
    A(f"s_add_u32 s{T}, s{T}, 1")
    A("s_nop 3")
    A("s_cmp_eq_u64 vcc, 0")
    A(f"s_cbranch_scc1 {Ld}")
    if sleep: A(f"s_sleep {sleep}")
    A(f"s_cmp_lt_u32 s{T}, {SPIN_MAX}")
    A(f"s_cbranch_scc1 {L}")
    A.label(Ld)

def nonce_writer():
    L = A.newlabel("L_nw")
    A(f"s_cmp_ge_u32 s{S_WG}, 8")
    A(f"s_cbranch_scc1 {L}")
    A(f"s_cmp_lg_u32 s{S_WAVE}, 7")
    A(f"s_cbranch_scc1 {L}")
    A(f"s_memrealtime {sp(S_T)}")
    A("s_waitcnt lgkmcnt(0)")
    A(f"s_or_b32 s{S_T}, s{S_T}, 1")
    A(f"v_mov_b32 v10, s{S_T}")
    A("v_mov_b32 v11, 0")
    A("v_mov_b32 v12, 0")
    A("s_mov_b64 exec, 1")
    A(f"global_atomic_cmpswap v12, v[10:11], {sp(S_DBG)} sc1")
    A("s_mov_b64 exec, -1")
    A.label(L)

def code_prefetch():
    T = S_T
    L = A.newlabel("L_cpf")
    A(f"s_cmp_lg_u32 s{S_WAVE}, 6")
    A(f"s_cbranch_scc1 {L}")
    A(f"s_lshr_b32 s{T+2}, s{S_WG}, 3")
    A(f"s_cmp_ge_u32 s{T+2}, (L_end - {NAME}_kernel + 1023) / 1024")
    A(f"s_cbranch_scc1 {L}")
    A(f"s_getpc_b64 {sp(T)}")
    A.label(L + "_pc")
    A(f"s_sub_u32 s{T}, s{T}, {L}_pc - {NAME}_kernel")
    A(f"s_subb_u32 s{T+1}, s{T+1}, 0")
    A(f"s_lshl_b32 s{T+2}, s{T+2}, 10")
    A("v_lshlrev_b32 v1, 4, v0")
    A(f"v_add_u32 v1, s{T+2}, v1")
    A(f"global_load_dwordx4 a[60:63], v1, {sp(T)}")
    A.label(L)

def prologue():
    A(f"s_cmp_ge_u32 s{S_WG}, 256")
    A("s_cbranch_scc1 L_end")
    prof_begin()
    A("s_load_dwordx16 s[4:19], s[0:1], 0")
    A("s_load_dwordx8 s[20:27], s[0:1], 64")
    A("s_load_dwordx4 s[28:31], s[0:1], 96")
    A("v_lshrrev_b32 v1, 6, v0")
    A("v_and_b32 v0, 63, v0")
    A(f"v_readfirstlane_b32 s{S_WAVE}, v1")
    A(f"s_mov_b32 s{S_MASK}, 0xffff0000")
    A(f"s_mov_b32 s{S_SELLO}, 0x05040100")
    A(f"s_mov_b32 s{S_SELHI}, 0x07060302")
    if "cpfe" in OPTS: code_prefetch()
    A("s_waitcnt lgkmcnt(0)")
    stamp(1)
    tl(1, 0, 0); tl(2, 7, 0); tl(3, 4, 0)
    nonce_writer()
    if "cpfe" not in OPTS and "nocpf" not in OPTS: code_prefetch()

def dpp_sum16(v):
    for sh in (8, 4, 2, 1):
        A("s_nop 1")
        A(f"v_add_f32_dpp v{v}, v{v}, v{v} row_ror:{sh} row_mask:0xf bank_mask:0xf")

LN_Q, LN_W, LN_Q2 = 10, 28, 46
def ln_loads(stok, Q, with_w):
    T = S_T
    A(f"s_mov_b32 s{T}, s{stok}")
    A("v_lshrrev_b32 v1, 4, v0")
    A("v_and_b32 v2, 15, v0")
    A(f"v_add_u32 v3, s{T}, v1")
    A(f"v_mul_u32_u24 v4, 1152, v3")
    A(f"v_lshl_add_u32 v5, v2, 4, v4")
    A(f"v_lshl_add_u32 v6, v2, 3, v4")
    for i in range(4):
        A(f"global_load_dwordx4 {p4(Q+4*i)}, v5, {sp(S_Q)} offset:{256*i} {NTLN}")
    A(f"global_load_dwordx2 {p2(Q+16)}, v6, {sp(S_Q)} offset:1024 {NTLN}")
    if with_w:
        W = LN_W
        A(f"v_lshlrev_b32 v7, 4, v2")
        A(f"v_lshlrev_b32 v8, 3, v2")
        for i in range(4):
            A(f"global_load_dwordx4 {p4(W+4*i)}, v7, {sp(S_WR)} offset:{256*i}")
        A(f"global_load_dwordx2 {p2(W+16)}, v8, {sp(S_WR)} offset:1024")

def dpp_sum16x(vs):
    for sh in (8, 4, 2, 1):
        if len(vs) < 3: A("s_nop 1")
        for v in vs:
            A(f"v_add_f32_dpp v{v}, v{v}, v{v} row_ror:{sh} row_mask:0xf bank_mask:0xf")

def ln_compute_publish(Q, vtok, first, vc=2, hook=None, publish=True):
    T = S_T
    W = LN_W
    A(f"s_mov_b32 s{T+8}, 0x3f803f80"); A(f"s_mov_b32 s{T+9}, 0x00003f80"); A(f"s_mov_b32 s{T+10}, 0x3f800000")
    accs = [64, 65, 66, 67] + ([68, 69] if first else [])
    for a in accs: A(f"v_mov_b32 v{a}, 0")
    for i in range(18):
        A(f"v_dot2_f32_bf16 v{64+(i&1)}, v{Q+i}, s{T+8}, v{64+(i&1)}")
        A(f"v_dot2_f32_bf16 v{66+(i&1)}, v{Q+i}, v{W+i}, v{66+(i&1)}")
        if first: A(f"v_dot2_f32_bf16 v{68+(i&1)}, v{W+i}, s{T+8}, v{68+(i&1)}")
    A("s_nop 2")
    A("v_add_f32 v64, v64, v65")
    A("v_add_f32 v66, v66, v67")
    if first:
        A("v_add_f32 v122, v68, v69")
        A("s_nop 0")
        dpp_sum16x([64, 66, 122])
    else:
        A("s_nop 0")
        dpp_sum16x([64, 66])
    A(f"v_mul_f32 v64, 0x{f32bits(1.0/576):08x}, v64")
    A("v_sub_f32 v65, 0, v64")
    for a in (68, 69, 70, 71): A(f"v_mov_b32 v{a}, 0")
    for i in range(0, 18, 2):
        A(f"v_dot2_f32_bf16 v72, v{Q+i}, s{T+9}, v65")
        A(f"v_dot2_f32_bf16 v73, v{Q+i}, s{T+10}, v65")
        A(f"v_dot2_f32_bf16 v74, v{Q+i+1}, s{T+9}, v65")
        A(f"v_dot2_f32_bf16 v75, v{Q+i+1}, s{T+10}, v65")
        A("s_nop 1")
        A(f"v_fma_f32 v68, v72, v72, v68")
        A(f"v_fma_f32 v69, v73, v73, v69")
        A(f"v_fma_f32 v70, v74, v74, v70")
        A(f"v_fma_f32 v71, v75, v75, v71")
    A("v_add_f32 v68, v68, v69"); A("v_add_f32 v70, v70, v71"); A("v_add_f32 v68, v68, v70")
    dpp_sum16x([68])
    A(f"v_mul_f32 v68, 0x{f32bits(1.0/576):08x}, v68")
    rnd(68)
    A(f"v_add_f32 v68, 0x{f32bits(1e-5):08x}, v68")
    rnd(68)
    A("v_sqrt_f32 v69, v68")
    A("s_nop 0")
    A("v_rcp_f32 v70, v69")
    A("v_fma_f32 v71, -v69, v69, v68")
    A("v_mul_f32 v70, 0.5, v70")
    A("v_fma_f32 v69, v71, v70, v69")
    rnd(69)
    A("v_rcp_f32 v70, v69")
    rnd(64)
    A("v_fma_f32 v66, -v64, v122, v66")
    A("v_mul_f32 v112, v66, v70")
    rnd(112)
    A(f"v_xor_b32 v113, 0x7ff, v{vtok}")
    A("v_or_b32 v112, v112, v113")
    A("v_cvt_pk_bf16_f32 v114, v64, v69")
    if not publish:
        A("v_mov_b32 v32, v112"); A("v_mov_b32 v34, v114")
        return
    if hook: hook()
    ln_publish(vtok, vc)

def ln_publish(vtok, vc):
    T = S_T
    A(f"v_mov_b32 v113, s{S_NONCE}")
    A(f"v_mov_b32 v115, s{S_NONCE}")
    A(f"v_lshlrev_b32 v116, 3, v{vtok}")
    add64(T+2, S_WS, WS_RG)
    add64(T+4, S_WS, WS_SG)
    A(f"v_cmp_eq_u32 vcc, 0, v{vc}")
    A(f"s_and_saveexec_b64 {sp(T+6)}, vcc")
    A(f"global_store_dwordx2 v116, v[112:113], {sp(T+2)} sc1")
    A(f"global_store_dwordx2 v116, v[114:115], {sp(T+4)} sc1")
    A(f"s_mov_b64 exec, {sp(T+6)}")

P_CH = 4128
L_P = 0
L_Q = L_P + 4 * P_CH
Q_CPY = 1152
Q_CH = 4 * Q_CPY
L_KVL = L_Q + 4 * Q_CH
L_MC = L_KVL + 16384
L_SELT = L_MC + 64
L_ST = L_SELT + 128
L_TAP = L_ST + 1024
TBLK = 1040
L_TK = (L_TAP + 640 + 15) // 16 * 16
L_TV = L_TK + 17 * TBLK
L_TQ = L_TV + 16 * TBLK
L_OT = L_TK
L_CONV_END = L_TQ + 16 * TBLK

def dma(voff, srdreg, soff, m0, flag=None):
    A(f"s_mov_b32 m0, {m0}")
    A("s_nop 0")
    A(f"buffer_load_dwordx4 v{voff}, s[{srdreg}:{srdreg+3}], {soff} offen {NT if flag is None else flag} lds")

def conv_tile():
    T = S_T
    A(f"s_sub_u32 s72, s{S_WAVE}, 4")
    A(f"s_mul_hi_u32 s77, s{S_WG}, {(2**32 + 8)//9}")
    A(f"s_mul_i32 s76, s77, 9")
    A(f"s_sub_u32 s76, s{S_WG}, s76")
    srd(SRD_K, S_K, 2359296)
    srd(SRD_V, S_V, 2359296)
    A("v_lshrrev_b32 v1, 3, v0")
    A("v_and_b32 v2, 7, v0")
    A(f"s_mul_i32 s{T+2}, s77, {128*1152}")
    A(f"s_lshl_b32 s{T+3}, s76, 7")
    A(f"s_add_u32 s{T+2}, s{T+2}, s{T+3}")
    A(f"v_mul_u32_u24 v3, 1152, v1")
    A(f"v_lshl_add_u32 v3, v2, 4, v3")
    A(f"v_add_u32 v3, s{T+2}, v3")
    A(f"s_mul_i32 s{T+4}, s{S_WAVE}, {2*9216}")
    A(f"s_mul_i32 s{T+6}, s{S_WAVE}, {2*TBLK}")
    for i in range(2):
        A(f"s_add_u32 s{T+7}, s{T+6}, {L_TK + TBLK + i*TBLK}")
        A(f"s_add_u32 s{T+5}, s{T+4}, {9216*i}")
        dma(3, SRD_K, f"s{T+5}", f"s{T+7}", flag=NTKV)
        A(f"s_add_u32 s{T+7}, s{T+6}, {L_TV + i*TBLK}")
        dma(3, SRD_V, f"s{T+5}", f"s{T+7}", flag=NTKV)
    L7 = A.newlabel("L_w7")
    A(f"s_cmp_lg_u32 s{S_WAVE}, 7")
    A(f"s_cbranch_scc1 {L7}")
    A(f"v_subrev_u32 v4, 9216, v3")
    A(f"s_cmp_lg_u32 s77, 0")
    A(f"s_cbranch_scc1 {L7}_a")
    A("v_bfrev_b32 v4, 1")
    A.label(L7 + "_a")
    dma(4, SRD_K, "0", L_TK, flag=NTKV)
    for i in range(4): A(f"v_mov_b32 v{52+i}, 0")
    A("v_lshlrev_b32 v56, 4, v0")
    A(f"v_add_u32 v56, {L_MC}, v56")
    A("s_mov_b64 exec, 0xfff")
    A(f"ds_write_b128 v56, {p4(52)}")
    A("s_mov_b64 exec, -1")
    A.label(L7)
    TR = 48
    A(f"s_lshr_b32 s{T+9}, s{S_WAVE}, 1")
    A(f"s_and_b32 s{T+10}, s{S_WAVE}, 1")
    Lt = A.newlabel("L_tap")
    A(f"s_cmp_lg_u32 s{S_WAVE}, 0")
    A(f"s_cbranch_scc1 {Lt}")
    srd(SRD_Q, S_SK, 4608)
    A(f"s_lshl_b32 s{T+11}, s76, 9")
    A("v_lshlrev_b32 v5, 4, v0")
    A("s_mov_b64 exec, 0xffffffff")
    dma(5, SRD_Q, f"s{T+11}", L_TAP, flag="")
    srd(SRD_Q, S_D, 1152)
    A(f"s_lshl_b32 s{T+11}, s76, 7")
    A("v_lshlrev_b32 v5, 2, v0")
    A(f"s_mov_b32 m0, {L_TAP+512}")
    A("s_nop 0")
    A(f"buffer_load_dword v5, s[{SRD_Q}:{SRD_Q+3}], s{T+11} offen lds")
    A("s_mov_b64 exec, -1")
    A.label(Lt)
    A("v_mov_b32 v120, 0")
    A(f"global_load_dword v121, v120, {sp(S_DBG)} sc1")
    A(f"s_and_b32 s{T+13}, s{S_WG}, 7")
    A(f"s_mul_i32 s{T+13}, s{T+13}, 18")
    A(f"s_lshr_b32 s{T+12}, s{S_WG}, 3")
    A(f"s_add_u32 s{T+13}, s{T+13}, s{T+12}")
    A(f"s_lshl_b32 s71, s{T+13}, 2")
    A(f"s_and_b32 s{T+12}, s{S_WAVE}, 3")
    A(f"s_add_u32 s78, s71, s{T+12}")
    A(f"s_lshl_b32 s79, s78, 12")
    A(f"s_lshl_b32 s{T+12}, s{T+10}, 3")
    A(f"v_add_u32 v6, s{T+12}, v2")
    A(f"s_lshl_b32 s{T+12}, s{T+9}, 3")
    A(f"v_add_u32 v7, s{T+12}, v1")
    A(f"v_mul_u32_u24 v9, {TBLK}, v6")
    A(f"v_lshl_add_u32 v9, v7, 2, v9")
    A(f"v_add_u32 v9, {L_TK}, v9")
    A(f"s_lshl_b32 s{T+11}, s76, 19")
    A(f"s_lshl_b32 s{T+12}, s77, 9")
    A(f"s_add_u32 s{T+11}, s{T+11}, s{T+12}")
    A(f"s_lshl_b32 s{T+12}, s{T+10}, 8")
    A(f"s_add_u32 s{T+11}, s{T+11}, s{T+12}")
    A("v_lshlrev_b32 v8, 14, v7")
    A("v_lshl_add_u32 v8, v2, 4, v8")
    A(f"v_add_u32 v8, s{T+11}, v8")
    if "ibar" in OPTS: A("s_barrier")
    if "hearly" in OPTS:
        Lh = A.newlabel("L_noh"); Lh2 = A.newlabel("L_noh2")
        A(f"s_cmp_ge_u32 s{S_WAVE}, 4")
        A(f"s_cbranch_scc1 {Lh}")
        srd(SRD_Q, S_H, 2359296)
        A("v_lshlrev_b32 v4, 4, v0")
        A(f"s_mul_i32 s74, s{S_WAVE}, {P_CH}")
        for q in range(4):
            A(f"s_add_u32 s{T+9}, s79, {1024*q}")
            A(f"s_add_u32 s{T+5}, s74, {32 + 1024*q}")
            dma(4, SRD_Q, f"s{T+9}", f"s{T+5}", flag=NTH)
        if "dbgB" in OPTS: stamp(5)
        A("s_waitcnt vmcnt(4) lgkmcnt(0)")
        A(f"s_branch {Lh2}")
        A.label(Lh)
        if "dbgB" in OPTS: stamp(5)
        if "pfe" in OPTS:
            n = gu_prefetch(int(os.environ.get("PFE0", "72")), int(os.environ.get("PFEN", "8")), vb=110)
            A(f"s_waitcnt vmcnt({n}) lgkmcnt(0)")
        else:
            A("s_waitcnt vmcnt(0) lgkmcnt(0)")
        A.label(Lh2)
        if "dbgB" in OPTS: stamp(6)
    else:
        A("s_waitcnt vmcnt(0) lgkmcnt(0)")
    A(f"v_readfirstlane_b32 s{S_NONCE}, v121")
    A("s_barrier")
    stamp(2)
    tl(4, 7, 0)
    KR, VR = 10, 21
    for j in range(11):
        off = (640 + 128*j if j < 3 else TBLK + 128*(j-3))
        A(f"ds_read_b32 v{KR+j}, v9 offset:{off}")
    A("v_lshlrev_b32 v5, 2, v7")
    A("v_lshlrev_b32 v5, 2, v5")
    A(f"v_add_u32 v5, {L_TAP}, v5")
    A(f"ds_read_b128 {p4(TR)}, v5")
    for j in range(8):
        A(f"ds_read_b32 v{VR+j}, v9 offset:{L_TV - L_TK + 128*j}")
    A("s_waitcnt lgkmcnt(8)")
    Ln = A.newlabel("L_hasn")
    A(f"s_cmp_lg_u32 s{S_NONCE}, 0")
    A(f"s_cbranch_scc1 {Ln}")
    get_nonce(30)
    A.label(Ln)
    TP = 52
    A(f"v_lshlrev_b32 v{TP+0}, 16, v{TR}"); A(f"v_lshlrev_b32 v{TP+1}, 16, v{TR+2}")
    A(f"v_and_b32 v{TP+2}, s{S_MASK}, v{TR}"); A(f"v_and_b32 v{TP+3}, s{S_MASK}, v{TR+2}")
    A(f"v_lshlrev_b32 v{TP+4}, 16, v{TR+1}"); A(f"v_lshlrev_b32 v{TP+5}, 16, v{TR+3}")
    A(f"v_and_b32 v{TP+6}, s{S_MASK}, v{TR+1}"); A(f"v_and_b32 v{TP+7}, s{S_MASK}, v{TR+3}")
    KP = 80
    for j in range(11):
        A(f"v_lshlrev_b32 v{KP+2*j}, 16, v{KR+j}")
        A(f"v_and_b32 v{KP+2*j+1}, s{S_MASK}, v{KR+j}")
    R = 102
    tp = lambda tap: p2(TP+2*tap)
    for i in range(8): A(f"v_pk_mul_f32 {p2(R+2*i)}, {p2(KP+2*i)}, {tp(3)}")
    for i in range(8): A(f"v_pk_fma_f32 {p2(R+2*i)}, {p2(KP+2*(i+1))}, {tp(2)}, {p2(R+2*i)}")
    for i in range(8): A(f"v_pk_fma_f32 {p2(R+2*i)}, {p2(KP+2*(i+2))}, {tp(1)}, {p2(R+2*i)}")
    for i in range(8): A(f"v_pk_fma_f32 {p2(R+2*i)}, {p2(KP+2*(i+3))}, {tp(0)}, {p2(R+2*i)}")
    A("s_waitcnt lgkmcnt(0)")
    VP = 60
    for i in range(8):
        A(f"v_lshlrev_b32 v{VP+2*i}, 16, v{VR+i}"); A(f"v_and_b32 v{VP+2*i+1}, s{S_MASK}, v{VR+i}")
    for i in range(8): A(f"v_pk_mul_f32 {p2(R+2*i)}, {p2(R+2*i)}, {p2(VP+2*i)}")
    GQ = 80
    for c in range(2):
        for q in range(4):
            A(f"v_cvt_pk_bf16_f32 v{GQ+8*c+2*q}, v{R+4*q+c}, v{R+4*q+2+c}")
            A(f"v_mov_b32 v{GQ+8*c+2*q+1}, s{S_NONCE}")
    add64(T+2, S_WS, WS_KVT)
    add64(T+8, S_WS, WS_KVT+8192)
    A(f"global_store_dwordx4 v8, {p4(GQ)}, {sp(T+2)} sc1")
    A(f"global_store_dwordx4 v8, {p4(GQ+4)}, {sp(T+2)} offset:128 sc1")
    A(f"global_store_dwordx4 v8, {p4(GQ+8)}, {sp(T+8)} sc1")
    A(f"global_store_dwordx4 v8, {p4(GQ+12)}, {sp(T+8)} offset:128 sc1")
    for c in range(2):
        for q in range(4): A(f"v_mov_b32 v{120+4*c+q}, v{GQ+8*c+2*q}")
    A(f"s_lshl_b32 s{T+1}, s{S_WAVE}, 11")
    A("v_lshlrev_b32 v4, 5, v0")
    A(f"v_add_u32 v4, s{T+1}, v4")
    A(f"v_add_u32 v4, {L_KVL}, v4")
    A(f"ds_write_b128 v4, {p4(120)}")
    A(f"ds_write_b128 v4, {p4(124)} offset:16")
    stamp(3)
    if "hearly" not in OPTS:
        Lh = A.newlabel("L_noh")
        A(f"s_cmp_ge_u32 s{S_WAVE}, 4")
        A(f"s_cbranch_scc1 {Lh}")
        srd(SRD_V, S_H, 2359296)
        A("v_lshlrev_b32 v4, 4, v0")
        A(f"s_mul_i32 s74, s{S_WAVE}, {P_CH}")
        for q in range(4):
            A(f"s_add_u32 s{T+9}, s79, {1024*q}")
            A(f"s_add_u32 s{T+10}, s74, {32 + 1024*q}")
            dma(4, SRD_V, f"s{T+9}", f"s{T+10}")
        A.label(Lh)
    A("s_waitcnt lgkmcnt(0)")
    A("s_barrier")
    stamp(4)
    tl(5, 7, 0)
    if "dbgA" in OPTS or "dbgB" in OPTS: A("s_branch L_fin")

class LdsQ:
    def __init__(self): self.q = []
    def issue(self, instr, tag=None):
        A(instr); self.q.append(tag)
    def wait(self, tag):
        idxs = [i for i, t in enumerate(self.q) if t == tag]
        if not idxs: return
        last = idxs[-1]
        n = len(self.q) - 1 - last
        A(f"s_waitcnt lgkmcnt({min(n, 15)})")
        if n <= 15: self.q = self.q[last+1:]
        else: self.q = self.q[len(self.q)-15:]

def conv_mfma_wave():
    T = S_T
    A(f"s_mul_i32 s75, s{S_WAVE}, {Q_CH}")
    A(f"s_add_u32 s75, s75, {L_Q}")
    for i in range(4): A(f"v_mov_b32 v{16+i}, 0")
    A("v_lshlrev_b32 v2, 4, v0")
    A("v_add_u32 v2, s74, v2")
    A("s_mov_b64 exec, 3")
    A(f"ds_write_b128 v2, {p4(16)}")
    A("s_mov_b64 exec, -1")
    A("v_lshrrev_b32 v2, 3, v0")
    A(f"v_mul_u32_u24 v2, {Q_CPY}, v2")
    A("v_and_b32 v3, 7, v0")
    A("v_lshl_add_u32 v2, v3, 4, v2")
    A("v_add_u32 v2, s75, v2")
    A("s_mov_b64 exec, 0xffffffff")
    A(f"ds_write_b128 v2, {p4(16)}")
    A("s_mov_b64 exec, -1")
    A("v_and_b32 v3, 3, v0")
    A("v_bfe_u32 v4, v0, 2, 2")
    A("v_sub_u32 v3, v3, v4")
    A("v_lshlrev_b32 v3, 3, v3")
    A("v_lshrrev_b32 v4, 4, v0")
    A("v_lshl_add_u32 v3, v4, 6, v3")
    A("v_add_u32 v3, s74, v3")
    A("v_add_u32 v3, 32, v3")
    A("s_waitcnt vmcnt(4) lgkmcnt(0)" if "hearly" in OPTS else "s_waitcnt vmcnt(0) lgkmcnt(0)")
    def greg(e, s1): return 4*(8*e + s1)
    for s1 in range(8):
        for e in range(2):
            g = greg(e, s1)
            A(f"ds_read_b64_tr_b16 a[{g}:{g+1}], v3 offset:{512*s1+256*e+32}")
            A(f"ds_read_b64_tr_b16 a[{g+2}:{g+3}], v3 offset:{512*s1+256*e}")
        if s1 % 3 == 2: A("s_waitcnt lgkmcnt(4)")
    A("v_and_b32 v5, 15, v0")
    A("v_lshlrev_b32 v6, 3, v5")
    A("v_lshlrev_b32 v7, 4, v4")
    A("v_sub_u32 v6, v6, v7")
    A("v_add_u32 v6, s75, v6")
    A("v_add_u32 v6, 56, v6")
    A("v_lshlrev_b32 v7, 6, v5")
    A("v_lshl_add_u32 v7, v4, 4, v7")
    A(f"s_lshl_b32 s{T+1}, s78, 13")
    A(f"v_add_u32 v7, s{T+1}, v7")
    A(f"v_add_u32 v11, 4096, v7")
    add64(62, S_WS, WS_YG)
    A("v_subrev_u32 v8, 16, v0")
    A("v_add_u32 v9, 47, v0")
    A("v_cmp_gt_u32 vcc, 16, v0")
    A("s_nop 1")
    A("v_cndmask_b32 v8, v8, v9, vcc")
    A("v_mov_b32 v9, 63")
    A("v_cmp_eq_u32 vcc, 0, v0")
    A("s_nop 1")
    A("v_cndmask_b32 v8, v8, v9, vcc")
    A("v_lshlrev_b32 v8, 2, v8")
    A(f"v_mov_b32 v9, {L_MC}")
    A("v_mov_b32 v10, 1")
    A(f"s_mov_b64 {sp(66)}, 1")
    add64(64, S_WS, WS_KVT)
    A(f"s_lshl_b32 s{T+1}, s78, 13")
    A("v_lshlrev_b32 v1, 4, v0")
    A(f"v_add_u32 v1, s{T+1}, v1")
    A("v_add_u32 v12, 4096, v1")
    A("v_lshrrev_b32 v2, 4, v0")
    A("v_lshlrev_b32 v2, 4, v2")
    A("v_and_b32 v13, 7, v0")
    A("v_lshl_add_u32 v2, v13, 1, v2")
    A("v_bfe_u32 v13, v0, 3, 1")
    A("v_add_u32 v2, v2, v13")
    A("v_lshlrev_b32 v2, 1, v2")
    A("v_add_u32 v2, s75, v2")
    A("v_and_b32 v13, 15, v0")
    A("v_lshlrev_b32 v13, 9, v13")
    A(f"v_add_u32 v13, s{T+1}, v13")
    A("v_add_u32 v13, 504, v13")
    stamp(5)
    KV = 16
    def ldkv():
        for q in range(8):
            A(f"global_load_dwordx4 {p4(KV+4*q)}, v{1 if q < 4 else 12}, {sp(64)} offset:{1024*(q % 4)} sc1")
    kvtags = [KV+4*q+1+2*h for q in range(8) for h in range(2)]
    Lok = A.newlabel("L_kvok")
    if "spec" in OPTS:
        ldkv()
        A("s_waitcnt vmcnt(0)")
        tag_acc(kvtags, 14, 48)
        A("v_cmp_ne_u32 vcc, 0, v14")
        A("s_nop 3")
        A("s_cmp_eq_u64 vcc, 0")
        A(f"s_cbranch_scc1 {Lok}")
    tagcheck_loop(lambda: A(f"global_load_dwordx2 v[14:15], v13, {sp(64)} sc1"), [15], 16, 17, sleep=1)
    stamp(6)
    tl(6, 7, 0)
    tagcheck_loop(ldkv, kvtags, 14, 48, sleep=1)
    A.label(Lok)
    for q in range(8):
        r = KV + 4*q
        o = 128 + 128*q
        A(f"ds_write_b16 v2, v{r} offset:{0*Q_CPY+o}")
        A(f"ds_write_b16_d16_hi v2, v{r} offset:{1*Q_CPY+o}")
        A(f"ds_write_b16 v2, v{r+2} offset:{2*Q_CPY+o}")
        A(f"ds_write_b16_d16_hi v2, v{r+2} offset:{3*Q_CPY+o}")
    A("s_waitcnt lgkmcnt(0)")
    for i in range(3): A(f"v_mov_b32 v{40+i}, 0")
    A(f"v_add_u32 v3, {Q_CPY}, v6"); A(f"v_add_u32 v4, {2*Q_CPY}, v6"); A(f"v_add_u32 v5, {3*Q_CPY}, v6")
    A(f"v_mov_b32 v45, s{S_NONCE}"); A(f"v_mov_b32 v47, s{S_NONCE}")
    stamp(7)
    tl(7, 7, 0)
    if "dry" in OPTS:
        A("s_mov_b32 s73, 0")
        A.label("L_stream")
    lq = LdsQ()
    classes = [(c1, sg, e) for c1 in range(8) for sg in range(4) for e in range(2)]
    FA = [6, 3, 4, 5]
    free = [("v", 48), ("v", 52), ("v", 56), ("v", 60)]
    fbuf = {}
    def rr(b): return f"{b[0]}[{b[1]}:{b[1]+3}]"
    def fread(k):
        c1, sg, e = classes[k]
        b = free.pop(0); fbuf[k] = b
        o = 16*c1 + 8*(1-e)
        lq.issue(f"ds_read2_b64 {rr(b)}, v{FA[sg]} offset0:{o} offset1:{o+1}", ("F", k))
    def acc(sg, t): return 64 + (sg*8 + t)*4
    def combine_ops(t):
        a0, a1, a2, a3 = acc(0, t), acc(1, t), acc(2, t), acc(3, t)
        ops = []
        C = 32
        P = 36 + 4*(t & 1)
        Pp = 36 + 4*((t+1) & 1)
        ops.append(lambda: A(f"v_add_f32 v{a0+1}, v{a0+1}, v{a1}"))
        ops.append(lambda: A(f"v_add_f32 v{a0+2}, v{a0+2}, v{a1+1}"))
        ops.append(lambda: A(f"v_add_f32 v{a0+3}, v{a0+3}, v{a1+2}"))
        ops.append(lambda: A(f"v_add_f32 v{C}, v{a1+3}, v{a2+2}"))
        ops.append(lambda: A(f"v_add_f32 v{a0+2}, v{a0+2}, v{a2}"))
        ops.append(lambda: A(f"v_add_f32 v{a0+3}, v{a0+3}, v{a2+1}"))
        ops.append(lambda: A(f"v_add_f32 v{C+1}, v{a2+3}, v{a3+2}"))
        ops.append(lambda: A(f"v_add_f32 v{C}, v{C}, v{a3+1}"))
        ops.append(lambda: lq.issue(f"ds_bpermute_b32 v{P+2}, v8, v{a3+3}", ("B", t)))
        ops.append(lambda: lq.issue(f"ds_bpermute_b32 v{P+1}, v8, v{C+1}", ("B", t)))
        ops.append(lambda: lq.issue(f"ds_bpermute_b32 v{P}, v8, v{C}", ("B", t)))
        ops.append(lambda: A(f"v_add_f32 v{a0+3}, v{a0+3}, v{a3}"))
        ops.append(lambda: lq.wait(("B", t)))
        for i in range(3):
            ops.append(lambda i=i: A(f"v_cndmask_b32 v{28+i}, v{P+i}, v{Pp+i}, {sp(66)}"))
        for i in range(3):
            ops.append(lambda i=i: A(f"v_add_f32 v{a0+i}, v{a0+i}, v{28+i}"))
        ops.append(lambda: A(f"v_cvt_pk_bf16_f32 v44, v{a0}, v{a0+1}"))
        ops.append(lambda: A(f"v_cvt_pk_bf16_f32 v46, v{a0+2}, v{a0+3}"))
        ops.append(lambda: A(f"global_store_dwordx4 v{7 if t < 4 else 11}, {p4(44)}, {sp(62)} offset:{1024*(t % 4)} sc1"))
        return ops
    nxt = 0
    LA = int(os.environ.get("LA", "5"))
    SLOTS = int(os.environ.get("SLOTS", "1"))
    def can_fread(k):
        return free and nxt < len(classes) and nxt - k < LA and len(lq.q) <= 13
    for _ in range(3):
        fread(nxt); nxt += 1
    pending = []
    k = 0
    total_m = sum(8*(8-c) for c in range(8))
    done_m = 0
    for c1 in range(8):
        nm_step = 8*(8-c1)
        if c1 > 0:
            assert not pending or True
            pending.extend(combine_ops(c1-1))
            free.extend([("a", greg(0, 8-c1)), ("a", greg(1, 8-c1))])
        mi = 0
        for sg in range(4):
            for e in range(2):
                while nxt <= k:
                    fread(nxt); nxt += 1
                lq.wait(("F", k))
                b = fbuf[k]
                for s1 in range(8-c1):
                    t = s1 + c1
                    d = acc(sg, t)
                    cin = "0" if (c1 == 0 and e == 0) else f"v[{d}:{d+3}]"
                    g = greg(e, s1)
                    A(f"v_mfma_f32_16x16x32_bf16 v[{d}:{d+3}], a[{g}:{g+3}], {rr(b)}, {cin}")
                    mi += 1; done_m += 1
                    rem_m = total_m - done_m
                    left_in_step = nm_step - mi
                    slots = SLOTS
                    if pending and mi >= 3:
                        need = len(pending) + (8 - (k % 8))
                        if left_in_step * SLOTS < need: slots = -(-need // max(1, left_in_step + 1))
                    used = 0
                    if can_fread(k) and (nxt - k <= 2 or not pending or mi < 3):
                        fread(nxt); nxt += 1; used += 1
                    while used < slots and pending and mi >= 3:
                        pending.pop(0)(); used += 1
                    if used < slots - 1 and can_fread(k):
                        fread(nxt); nxt += 1; used += 1
                free.append(b)
                k += 1
        while pending: pending.pop(0)()
    A("s_nop 7"); A("s_nop 1")
    for op in combine_ops(7): op()
    if "dry" in OPTS:
        A("s_cmp_eq_u32 s73, 1")
        A("s_cbranch_scc1 L_dry_ret")
    A("s_mov_b64 exec, 1")
    A("ds_add_u32 v9, v10")
    A("s_mov_b64 exec, -1")
    stamp(8)
    tl(8, 7, 0)

def lds_spin(addr_off, target, va, vb, sleep=1):
    T = S_T
    L = A.newlabel("L_ls")
    A(f"v_mov_b32 v{va}, {L_MC}")
    A(f"s_mov_b32 s{T+1}, 0")
    A.label(L)
    A(f"ds_read_b32 v{vb}, v{va} offset:{addr_off}")
    A("s_waitcnt lgkmcnt(0)")
    A(f"v_readfirstlane_b32 s{T}, v{vb}")
    A(f"s_add_u32 s{T+1}, s{T+1}, 1")
    A(f"s_cmp_ge_u32 s{T+1}, {SPIN_MAX*4}")
    A(f"s_cbranch_scc1 {L}_d")
    A(f"s_cmp_ge_u32 s{T}, {target}")
    A(f"s_cbranch_scc1 {L}_d")
    if sleep: A(f"s_sleep {sleep}")
    A(f"s_branch {L}")
    A.label(L + "_d")

def gu_prefetch(R0, NR, vb=10):
    T = S_T
    assert NR % 4 == 0
    RW = NR // 4
    v0_, v1_, v2_, v3_ = vb, vb+1, vb+2, vb+3
    A(f"s_and_b32 s{T+1}, s{S_WG}, 7")
    A(f"s_mul_i32 s{T+1}, s{T+1}, 1152")
    A(f"s_lshr_b32 s{T+2}, s{S_WG}, 3")
    A(f"s_mul_i32 s{T+2}, s{T+2}, {NR}")
    A(f"s_mul_i32 s{T+3}, s72, {RW}")
    A(f"s_add_u32 s{T+2}, s{T+2}, s{T+3}")
    A(f"s_add_u32 s{T+2}, s{T+2}, {R0}")
    A(f"s_mul_i32 s{T+2}, s{T+2}, 9216")
    A(f"s_add_u32 s{T+1}, s{T+1}, s{T+2}")
    A(f"v_lshlrev_b32 v{v0_}, 4, v0")
    A(f"v_add_u32 v{v0_}, s{T+1}, v{v0_}")
    A(f"v_lshrrev_b32 v{v1_}, 3, v0")
    A(f"v_mul_u32_u24 v{v1_}, 9216, v{v1_}")
    A(f"v_and_b32 v{v2_}, 7, v0")
    A(f"v_lshl_add_u32 v{v1_}, v{v2_}, 4, v{v1_}")
    A(f"v_add_u32 v{v1_}, s{T+1}, v{v1_}")
    A(f"v_add_u32 v{v1_}, 1024, v{v1_}")
    n = 0
    for base in (S_WGT, S_WUP):
        A(f"v_mov_b32 v{v3_}, v{v0_}")
        for r in range(RW):
            A(f"global_load_dwordx4 a[0:3], v{v3_}, {sp(base)} {NTP}"); n += 1
            if r < RW - 1: A(f"v_add_u32 v{v3_}, 9216, v{v3_}")
        nl = 8*RW
        if nl < 64:
            A(f"s_mov_b32 exec_lo, {hex((1 << min(nl, 32)) - 1)}")
            A(f"s_mov_b32 exec_hi, {hex((1 << (nl - 32)) - 1) if nl > 32 else '0'}")
        A(f"global_load_dwordx4 a[0:3], v{v1_}, {sp(base)} {NTP}"); n += 1
        A("s_mov_b64 exec, -1")
    return n

def conv_helper_prep():
    T = S_T
    if "gupf" in OPTS:
        R0 = int(os.environ.get("PFROW", "144")); NR = (576 - R0) // 18
        gu_prefetch(R0, NR)
        ar = 0
        if "dpf" in OPTS:
            A(f"s_and_b32 s{T+1}, s{S_WG}, 7")
            A(f"s_mul_i32 s{T+1}, s{T+1}, {576*1152}")
            A(f"s_lshr_b32 s{T+2}, s{S_WG}, 3")
            A(f"s_mul_i32 s{T+2}, s{T+2}, 36864")
            A(f"s_add_u32 s{T+1}, s{T+1}, s{T+2}")
            A(f"s_mul_i32 s{T+2}, s72, 9216")
            A(f"s_add_u32 s{T+1}, s{T+1}, s{T+2}")
            A("v_lshlrev_b32 v19, 4, v0")
            A(f"v_add_u32 v19, s{T+1}, v19")
            DPF = []
            for i in range(9):
                DPF.append(f"global_load_dwordx4 a[0:3], v18, {sp(S_WD)} offset:{1024*(i%4)}")
            assert ar <= 124, ar
            global DPF_CODE
            DPF_CODE = DPF
    srd(SRD_Q, S_Q, 2359296)
    A(f"s_mul_i32 s{T+4}, s72, {4*9216}")
    A(f"s_mul_i32 s{T+6}, s72, {4*TBLK}")
    A(f"s_add_u32 s{T+6}, s{T+6}, {L_TQ}")
    for i in range(4):
        dma(3, SRD_Q, f"s{T+4}", f"s{T+6}", flag=NTQ)
        A(f"s_add_u32 s{T+4}, s{T+4}, 9216")
        A(f"s_add_u32 s{T+6}, s{T+6}, {TBLK}")
    if "dry" in OPTS:
        Ld = A.newlabel("L_nodry")
        A(f"s_cmp_lg_u32 s{S_WAVE}, 7")
        A(f"s_cbranch_scc1 {Ld}")
        A("v_mov_b32 v6, 0"); A("v_mov_b32 v7, 0"); A("v_mov_b32 v11, 0"); A("v_mov_b32 v8, 0")
        add64(62, S_WS, WS_YG)
        A(f"s_mov_b64 {sp(66)}, 1")
        A("s_mov_b32 s73, 1")
        A("s_mov_b64 exec, 0")
        A("s_branch L_stream")
        A.label("L_dry_ret")
        A("s_mov_b64 exec, -1")
        A.label(Ld)
    L4 = A.newlabel("L_h4"); L5 = A.newlabel("L_h5"); Le = A.newlabel("L_he")
    A(f"s_cmp_eq_u32 s{S_WAVE}, 4")
    A(f"s_cbranch_scc1 {L4}")
    A(f"s_cmp_eq_u32 s{S_WAVE}, 5")
    A(f"s_cbranch_scc1 {L5}")
    A(f"s_branch {Le}")
    A.label(L4)
    A(f"s_lshl_b32 s{T+1}, s77, 10")
    A("v_lshlrev_b32 v10, 4, v0")
    A(f"v_add_u32 v11, s{T+1}, v10")
    add64(T+2, S_WS, WS_SG)
    tagcheck_loop(lambda: A(f"global_load_dwordx4 {p4(12)}, v11, {sp(T+2)} sc1"), [13, 15], 16, 17, sleep=4)
    A("v_lshlrev_b32 v20, 16, v12"); A(f"v_and_b32 v21, s{S_MASK}, v12")
    A("v_lshlrev_b32 v22, 16, v14"); A(f"v_and_b32 v23, s{S_MASK}, v14")
    A("v_rcp_f32 v21, v21"); A("v_rcp_f32 v23, v23")
    A(f"v_add_u32 v10, {L_ST}, v10")
    A("s_nop 0")
    A(f"ds_write_b128 v10, {p4(20)}")
    A(f"s_branch {Le}")
    A.label(L5)
    A("v_and_b32 v10, 7, v0")
    A("v_lshlrev_b32 v11, 3, v10")
    add64(T+2, S_WS, WS_SEL)
    tagcheck_loop(lambda: A(f"global_load_dwordx2 v[12:13], v11, {sp(T+2)} sc1"), [13], 16, 17, sleep=4)
    A("v_and_b32 v12, 0x7ff, v12")
    A("v_xor_b32 v12, 0x7ff, v12")
    A(f"s_lshl_b32 s{T+1}, s77, 7")
    A(f"v_subrev_u32 v12, s{T+1}, v12")
    A("v_cmp_gt_u32 vcc, 128, v12")
    A("v_or_b32 v13, 0x80, v10")
    A(f"v_add_u32 v12, {L_SELT}, v12")
    A("s_and_b32 vcc_lo, vcc_lo, 0xff")
    A("s_mov_b32 vcc_hi, 0")
    A("s_mov_b64 exec, vcc")
    Lk = A.newlabel("L_nsel")
    A(f"s_cbranch_execz {Lk}")
    A("ds_write_b8 v12, v13")
    A.label(Lk)
    A("s_mov_b64 exec, -1")
    A.label(Le)
    A("s_waitcnt vmcnt(0) lgkmcnt(0)")
    A(f"v_mov_b32 v10, {L_MC}")
    A("v_mov_b32 v11, 1")
    A("s_mov_b64 exec, 1")
    A("ds_add_u32 v10, v11 offset:4")
    A("s_mov_b64 exec, -1")
    stamp(5)
    if "dpf" in OPTS:
        for i, ins in enumerate(DPF_CODE):
            if i % 4 == 0: A(f"v_add_u32 v18, {4096*(i//4)}, v19")
            A(ins)
    if "mlate" not in OPTS: lds_spin(0, 4, 10, 11, sleep=2)
    stamp(6)

def conv_epilogue():
    T = S_T
    A("; ---- epilogue ----")
    lds_spin(4, 4, 10, 11, sleep=1)
    A("v_and_b32 v2, 7, v0"); A("v_lshrrev_b32 v1, 3, v0")
    A(f"s_and_b32 s{T+1}, s{S_WAVE}, 1"); A(f"s_lshl_b32 s{T+1}, s{T+1}, 3")
    A(f"v_add_u32 v6, s{T+1}, v2")
    A(f"s_lshr_b32 s{T+2}, s{S_WAVE}, 1"); A(f"s_lshl_b32 s{T+2}, s{T+2}, 3")
    A(f"v_add_u32 v7, s{T+2}, v1")
    A(f"s_lshl_b32 s{T+1}, s76, 19")
    A(f"s_lshl_b32 s{T+2}, s77, 9")
    A(f"s_add_u32 s{T+1}, s{T+1}, s{T+2}")
    A("v_lshlrev_b32 v8, 14, v7")
    A("v_lshl_add_u32 v8, v6, 5, v8")
    A(f"v_add_u32 v8, s{T+1}, v8")
    A("v_add_u32 v9, 8192, v8")
    add64(62, S_WS, WS_YG)
    A(f"v_mul_u32_u24 v10, {TBLK}, v6")
    A("v_lshl_add_u32 v10, v7, 2, v10")
    A(f"v_add_u32 v11, {L_TQ}, v10")
    XR = 16
    for i in range(8): A(f"ds_read_b32 v{XR+i}, v11 offset:{128*i}")
    A(f"s_lshl_b32 s{T+1}, s{S_WAVE}, 11")
    A("v_lshlrev_b32 v12, 5, v0")
    A(f"v_add_u32 v12, s{T+1}, v12")
    A(f"v_add_u32 v12, {L_KVL}, v12")
    KV = 24
    A(f"ds_read_b128 {p4(KV)}, v12")
    A(f"ds_read_b128 {p4(KV+4)}, v12 offset:16")
    A("v_lshlrev_b32 v12, 6, v6")
    A(f"v_add_u32 v12, {L_ST}, v12")
    SR = 32
    for i in range(4): A(f"ds_read_b128 {p4(SR+4*i)}, v12 offset:{16*i}")
    A("v_lshlrev_b32 v12, 3, v6")
    A(f"v_add_u32 v12, {L_SELT}, v12")
    A("ds_read_b64 v[48:49], v12")
    A("v_lshlrev_b32 v13, 2, v7")
    A(f"v_add_u32 v13, {L_TAP+512}, v13")
    A("ds_read_b32 v50, v13")
    YR = 64
    def ld():
        A(f"global_load_dwordx4 {p4(YR)}, v8, {sp(62)} sc1")
        A(f"global_load_dwordx4 {p4(YR+4)}, v8, {sp(62)} offset:16 sc1")
        A(f"global_load_dwordx4 {p4(YR+8)}, v9, {sp(62)} sc1")
        A(f"global_load_dwordx4 {p4(YR+12)}, v9, {sp(62)} offset:16 sc1")
    A("s_waitcnt lgkmcnt(0)")
    A(f"v_lshlrev_b32 v52, 16, v50"); A(f"v_and_b32 v53, s{S_MASK}, v50")
    XN, SS = 80, 96
    for i in range(8):
        m, rs = SR+2*i, SR+2*i+1
        A(f"v_lshlrev_b32 v{SS+2*i}, 16, v{XR+i}"); A(f"v_and_b32 v{SS+2*i+1}, s{S_MASK}, v{XR+i}")
        A(f"v_sub_f32 v{XN+2*i}, v{SS+2*i}, v{m}"); A(f"v_sub_f32 v{XN+2*i+1}, v{SS+2*i+1}, v{m}")
        A(f"v_mul_f32 v{XN+2*i}, v{XN+2*i}, v{rs}"); A(f"v_mul_f32 v{XN+2*i+1}, v{XN+2*i+1}, v{rs}")
        for c in range(2):
            kr = KV + 4*c + (i >> 1)
            t = 54 + c
            if i & 1: A(f"v_and_b32 v{t}, s{S_MASK}, v{kr}")
            else: A(f"v_lshlrev_b32 v{t}, 16, v{kr}")
            A(f"v_fma_f32 v{t}, v{t}, v{52+c}, 1.0")
            A(f"v_fma_f32 v{SS+2*i+c}, v{XN+2*i+c}, v{t}, v{SS+2*i+c}")
    A(f"v_add_u32 v11, {L_OT}, v10")
    A(f"s_lshl_b32 s{T+1}, s{S_WAVE}, 3")
    A(f"v_add_u32 v120, s{T+1}, v1")
    A("v_lshrrev_b32 v121, 3, v120")
    A(f"v_mul_u32_u24 v121, {TBLK}, v121")
    A("v_and_b32 v122, 7, v120")
    A("v_lshl_add_u32 v121, v122, 7, v121")
    A("v_lshl_add_u32 v121, v2, 4, v121")
    A(f"v_add_u32 v121, {L_OT}, v121")
    A(f"v_add_u32 v122, {L_SELT}, v120")
    A("ds_read_u8 v124, v122")
    A("ds_read_u8 v125, v122 offset:64")
    srd(SRD_O, S_OUT, 2359296)
    A(f"s_mul_i32 s{T+1}, s77, {128*1152}")
    A(f"s_lshl_b32 s{T+2}, s76, 7")
    A(f"s_add_u32 s{T+1}, s{T+1}, s{T+2}")
    A("v_mul_u32_u24 v122, 1152, v120")
    A("v_lshl_add_u32 v122, v2, 4, v122")
    A(f"v_add_u32 v122, s{T+1}, v122")
    A(f"v_add_u32 v123, {64*1152}, v122")
    A("s_waitcnt lgkmcnt(0)")
    for va, vs in ((122, 124), (123, 125)):
        A(f"v_lshlrev_b32 v{vs}, 24, v{vs}")
        A(f"v_and_b32 v{vs}, 0x80000000, v{vs}")
        A(f"v_or_b32 v{va}, v{va}, v{vs}")
    if "mlate" in OPTS: lds_spin(0, 4, 56, 57, sleep=2)
    if "dbgE" in OPTS: stamp(5)
    tagcheck_loop(ld, [YR+2*j+1 for j in range(8)], 14, 52, sleep=1)
    if "dbgE" in OPTS: stamp(6)
    O = 112
    for i in range(8):
        for c in range(2):
            yr = YR + 8*c + 2*(i >> 1)
            t0 = 54 + c
            if i & 1: A(f"v_and_b32 v{t0}, s{S_MASK}, v{yr}")
            else: A(f"v_lshlrev_b32 v{t0}, 16, v{yr}")
            A(f"v_fma_f32 v{SS+2*i+c}, v{XN+2*i+c}, v{t0}, v{SS+2*i+c}")
        A(f"v_cvt_pk_bf16_f32 v{O+i}, v{SS+2*i}, v{SS+2*i+1}")
        A(f"ds_write_b32 v11, v{O+i} offset:{128*i}")
    Lx = A.newlabel("L_nt1")
    A("v_or_b32 v12, v48, v49")
    A("v_cmp_ne_u32 vcc, 0, v12")
    A("s_nop 3")
    A("s_cmp_eq_u64 vcc, 0")
    A(f"s_cbranch_scc1 {Lx}")
    add64(64, S_WS, WS_T1G)
    A(f"s_lshl_b32 s{T+1}, s76, 6")
    A("v_lshlrev_b32 v13, 1, v7")
    A(f"v_add_u32 v13, s{T+1}, v13")
    for i in range(8):
        Li = A.newlabel("L_t1i")
        A(f"v_bfe_u32 v12, v{48 + (i >> 2)}, {8*(i & 3)}, 8")
        A("v_cmp_lt_u32 vcc, 0x7f, v12")
        A(f"s_and_saveexec_b64 {sp(T+12)}, vcc")
        A(f"s_cbranch_execz {Li}")
        A("v_and_b32 v12, 7, v12")
        A("v_mul_u32_u24 v12, 576, v12")
        A("v_add_u32 v12, v12, v13")
        A("v_lshlrev_b32 v12, 3, v12")
        A(f"v_sub_f32 v56, v{SS+2*i}, v{XN+2*i}")
        A(f"v_mov_b32 v57, s{S_NONCE}")
        A(f"v_sub_f32 v58, v{SS+2*i+1}, v{XN+2*i+1}")
        A(f"v_mov_b32 v59, s{S_NONCE}")
        A(f"global_store_dwordx4 v12, {p4(56)}, {sp(64)} sc1")
        A.label(Li)
        A(f"s_mov_b64 exec, {sp(T+12)}")
    A.label(Lx)
    A("s_waitcnt lgkmcnt(0)")
    A("s_barrier")
    A(f"ds_read_b128 {p4(16)}, v121")
    A(f"ds_read_b128 {p4(20)}, v121 offset:{8*TBLK}")
    A("s_waitcnt lgkmcnt(1)")
    A(f"buffer_store_dwordx4 {p4(16)}, v122, s[{SRD_O}:{SRD_O+3}], 0 offen " + os.environ.get("OUTF", "sc1"))
    A("s_waitcnt lgkmcnt(0)")
    A(f"buffer_store_dwordx4 {p4(20)}, v123, s[{SRD_O}:{SRD_O+3}], 0 offen " + os.environ.get("OUTF", "sc1"))
    stamp(9)
    tl(9, 7, 0)

def conv_wg():
    conv_tile()
    A(f"s_cmp_ge_u32 s{S_WAVE}, 4")
    A("s_cbranch_scc1 L_helper")
    conv_mfma_wave()
    A("s_branch L_epi")
    A.label("L_helper")
    conv_helper_prep()
    A.label("L_epi")
    conv_epilogue()
    A("s_branch L_fin")

M_WG = 0
M_WU = 73728
M_XS = 147456
XS_RS = 1168
M_H = M_XS + 8*XS_RS
H_RS = 144
M_GU = M_H + 8*H_RS
M_RED = M_GU
M_MISC = M_GU + 4096
M_END = M_MISC + 160
M_LIST = 0
S_DUMP = 16384

def moe_dma():
    T = S_T
    srd(SRD_K, S_WGT, 5308416)
    srd(SRD_V, S_WUP, 5308416)
    A("v_lshrrev_b32 v1, 3, v0")
    A("v_and_b32 v2, 7, v0")
    A("v_bfe_u32 v3, v0, 4, 1")
    A(f"s_and_b32 s{T+1}, s{S_WAVE}, 1")
    A(f"s_lshl_b32 s{T+1}, s{T+1}, 1")
    A(f"v_add_u32 v3, s{T+1}, v3")
    A("v_lshlrev_b32 v3, 1, v3")
    A("v_xor_b32 v2, v2, v3")
    A("v_mul_u32_u24 v1, 9216, v1")
    A("v_lshl_add_u32 v1, v2, 4, v1")
    A(f"s_lshl_b32 s{T+1}, s70, 7")
    A(f"v_add_u32 v1, s{T+1}, v1")
    A(f"s_mul_i32 s{T+3}, s{S_WAVE}, 73728")
    A(f"s_lshl_b32 s{T+4}, s{S_WAVE}, 10")
    A(f"s_mov_b32 s{T+5}, 0")
    L = A.newlabel("L_dma")
    A.label(L)
    A(f"s_add_u32 m0, s{T+4}, {M_WG}")
    A("s_nop 0")
    A(f"buffer_load_dwordx4 v1, s[{SRD_K}:{SRD_K+3}], s{T+3} offen {NTW} lds")
    A(f"s_add_u32 m0, s{T+4}, {M_WU}")
    A(f"s_add_u32 s{T+5}, s{T+5}, 1")
    A(f"buffer_load_dwordx4 v1, s[{SRD_V}:{SRD_V+3}], s{T+3} offen {NTW} lds")
    A(f"s_add_u32 s{T+3}, s{T+3}, {8*73728}")
    A(f"s_add_u32 s{T+4}, s{T+4}, {8*1024}")
    A(f"s_cmp_lt_u32 s{T+5}, 9")
    A(f"s_cbranch_scc1 {L}")

def moe_sel_wait():
    T = S_T
    A(f"s_lshl_b32 s{T+1}, s{S_WAVE}, 3")
    A(f"s_add_u32 s{T+1}, s{T+1}, {WS_SEL}")
    A(f"v_mov_b32 v3, s{T+1}")
    A("v_mov_b32 v4, 0")
    L = A.newlabel("L_sw"); Ld = A.newlabel("L_swd")
    A(f"s_mov_b32 s{T}, 0")
    A.label(L)
    A(f"global_load_dwordx2 v[16:17], v3, {sp(S_WS)} sc1")
    A(f"global_load_dword v30, v4, {sp(S_DBG)} sc1")
    A("s_waitcnt vmcnt(0)")
    A(f"v_readfirstlane_b32 s{S_NONCE}, v30")
    A(f"v_readfirstlane_b32 s{T+2}, v17")
    A(f"s_add_u32 s{T}, s{T}, 1")
    A(f"s_cmp_ge_u32 s{T}, {SPIN_MAX}")
    A(f"s_cbranch_scc1 {Ld}")
    A(f"s_cmp_eq_u32 s{S_NONCE}, 0")
    A(f"s_cbranch_scc1 {L}_s")
    A(f"s_cmp_eq_u32 s{T+2}, s{S_NONCE}")
    A(f"s_cbranch_scc1 {Ld}")
    A.label(L + "_s")
    A("s_sleep 3")
    A(f"s_branch {L}")
    A.label(Ld)

def moe_row_loads():
    T = S_T
    A("v_and_b32 v18, 0x7ff, v16")
    A("v_xor_b32 v18, 0x7ff, v18")
    A("v_mul_u32_u24 v20, 1152, v18")
    A("v_and_b32 v21, 31, v0")
    A("v_mul_u32_u24 v21, 36, v21")
    A("v_add_u32 v20, v20, v21")
    A(f"global_load_dwordx4 {p4(24)}, v20, {sp(S_Q)}")
    A(f"global_load_dwordx4 {p4(28)}, v20, {sp(S_Q)} offset:16")
    A(f"global_load_dword v32, v20, {sp(S_Q)} offset:32")
    A("v_lshlrev_b32 v22, 3, v18")
    A(f"v_add_u32 v22, {WS_SG}, v22")
    A(f"global_load_dwordx2 v[40:41], v22, {sp(S_WS)} sc1")

def moe_xs_compute():
    T = S_T
    L = A.newlabel("L_sg"); Ld = A.newlabel("L_sgd")
    A(f"s_mov_b32 s{T}, 0")
    A.label(L)
    A(f"v_readfirstlane_b32 s{T+2}, v41")
    A(f"s_add_u32 s{T}, s{T}, 1")
    A(f"s_cmp_eq_u32 s{T+2}, s{S_NONCE}")
    A(f"s_cbranch_scc1 {Ld}")
    A(f"s_cmp_ge_u32 s{T}, {SPIN_MAX}")
    A(f"s_cbranch_scc1 {Ld}")
    A(f"global_load_dwordx2 v[40:41], v22, {sp(S_WS)} sc1")
    A("s_waitcnt vmcnt(0)")
    A(f"s_branch {L}")
    A.label(Ld)
    A(f"v_lshlrev_b32 v44, 16, v40")
    A(f"v_and_b32 v45, s{S_MASK}, v40")
    A("v_rcp_f32 v46, v45")
    A(f"v_and_b32 v52, s{S_MASK}, v16")
    A("v_fma_f32 v47, -v45, v46, 1.0")
    A("v_fma_f32 v46, v47, v46, v46")
    A(f"v_mul_f32 v52, 0x{f32bits(-1.4426950408889634):08x}, v52")
    A("v_exp_f32 v52, v52")
    for i in range(9):
        r = 24 + i
        t = 48 + 2*(i & 1)
        A(f"v_lshlrev_b32 v{t}, 16, v{r}")
        A(f"v_and_b32 v{t+1}, s{S_MASK}, v{r}")
        A(f"v_pk_add_f32 {p2(t)}, {p2(t)}, v[44:45] op_sel_hi:[1,0] neg_lo:[0,1] neg_hi:[0,1]")
        rnd(t); rnd(t+1)
        A(f"v_pk_mul_f32 {p2(t)}, {p2(t)}, v[46:47] op_sel_hi:[1,0]")
        A(f"v_cvt_pk_bf16_f32 v{r}, v{t}, v{t+1}")
    A("v_add_f32 v52, 1.0, v52")
    A("v_rcp_f32 v52, v52")
    A(f"s_mul_i32 s{T+4}, s{S_WAVE}, {XS_RS}")
    A(f"s_add_u32 s{T+4}, s{T+4}, {M_XS}")
    A("v_add_u32 v21, s%d, v21" % (T+4))
    rnd(52)
    A("s_mov_b64 exec, 0xffffffff")
    A("ds_write2_b32 v21, v24, v25 offset0:0 offset1:1")
    A("ds_write2_b32 v21, v26, v27 offset0:2 offset1:3")
    A("ds_write2_b32 v21, v28, v29 offset0:4 offset1:5")
    A("ds_write2_b32 v21, v30, v31 offset0:6 offset1:7")
    A("ds_write_b32 v21, v32 offset:32")
    A(f"s_lshl_b32 s{T+4}, s{S_WAVE}, 2")
    A(f"s_add_u32 s{T+4}, s{T+4}, {M_MISC+32}")
    A(f"v_mov_b32 v53, s{T+4}")
    A("s_mov_b64 exec, 1")
    A("ds_write_b32 v53, v16")
    A("ds_write_b32 v53, v52 offset:32")
    A("s_mov_b64 exec, -1")
    A(f"s_lshl_b32 s{T+1}, s{S_WAVE}, 6")
    A(f"v_add_u32 v1, s{T+1}, v0")

DRA, DRB = 64, 96
def moe_down_loads():
    T = S_T
    A("v_lshrrev_b32 v6, 4, v0")
    A("v_mul_u32_u24 v5, 9216, v6")
    A("v_and_b32 v6, 15, v0")
    A("v_lshl_add_u32 v5, v6, 3, v5")
    A(f"s_mul_i32 s{T+1}, s70, 73728")
    A(f"s_lshl_b32 s{T+2}, s{S_WAVE}, 7")
    A(f"s_add_u32 s{T+1}, s{T+1}, s{T+2}")
    A(f"v_add_u32 v5, s{T+1}, v5")
    srd(SRD_Q, S_WD, 5308416)
    def panel(R, extra):
        for ks in range(2):
            for jj in range(8):
                so = 36864*ks + 4608*(jj//4) + extra
                A(f"s_mov_b32 s{T+3}, {so}")
                r = R + 16*ks + 2*jj
                A(f"buffer_load_dwordx2 {p2(r)}, v5, s[{SRD_Q}:{SRD_Q+3}], s{T+3} offen offset:{1152*(jj%4)} {NTD}")
    panel(DRA, 0)
    L = A.newlabel("L_np8")
    A(f"s_cmp_lg_u32 s{S_WAVE}, 0")
    A(f"s_cbranch_scc1 {L}")
    panel(DRB, 1024)
    A.label(L)

def down_perm(R, F):
    for ks in range(2):
        for e in range(4):
            sel = S_SELLO if (e & 1) == 0 else S_SELHI
            for q in range(4):
                A(f"v_perm_b32 v{F+16*ks+4*e+q}, v{R+16*ks+2*(2*q+1)+e//2}, v{R+16*ks+2*(2*q)+e//2}, s{sel}")

def moe_gateup_addr():
    T = S_T
    A(f"s_lshr_b32 s{T+1}, s{S_WAVE}, 2")
    A(f"s_and_b32 s{T+2}, s{S_WAVE}, 3")
    A("v_lshrrev_b32 v6, 4, v0")
    A("v_bfe_u32 v7, v0, 2, 2")
    A("v_and_b32 v8, 3, v0")
    A("v_lshrrev_b32 v9, 1, v7")
    A("v_and_b32 v10, 1, v6")
    A("v_lshl_add_u32 v9, v10, 1, v9")
    A("v_lshlrev_b32 v9, 1, v9")
    A("v_lshrrev_b32 v10, 1, v8")
    A(f"s_lshl_b32 s{T+3}, s{T+2}, 1")
    A(f"v_add_u32 v10, s{T+3}, v10")
    A("v_xor_b32 v10, v10, v9")
    A("v_lshlrev_b32 v34, 10, v6")
    A("v_lshl_add_u32 v34, v7, 7, v34")
    A("v_lshl_add_u32 v34, v10, 4, v34")
    A("v_and_b32 v8, 1, v8")
    A("v_lshl_add_u32 v34, v8, 3, v34")
    A(f"s_mul_i32 s{T+3}, s{T+1}, {M_WU}")
    A(f"v_add_u32 v34, s{T+3}, v34")
    A(f"v_add_u32 v35, {4096*9}, v34")

def gu_areg(t):
    return f"v[{128+4*t}:{128+4*t+3}]" if t < 16 else f"a[{4*(t-16)}:{4*(t-16)+3}]"
def gu_areg2(t, h):
    if t < 16: return f"v[{128+4*t+2*h}:{128+4*t+2*h+1}]"
    return f"a[{4*(t-16)+2*h}:{4*(t-16)+2*h+1}]"
def moe_gateup_preload():
    for t in range(18):
        a, o = (34, 4096*t) if t < 9 else (35, 4096*(t-9))
        A(f"ds_read_b64_tr_b16 {gu_areg2(t,0)}, v{a} offset:{o}")
        A(f"ds_read_b64_tr_b16 {gu_areg2(t,1)}, v{a} offset:{o+512}")
        if t % 6 == 5: A("s_waitcnt lgkmcnt(2)")

def moe_gateup():
    T = S_T
    A(f"s_lshr_b32 s{T+1}, s{S_WAVE}, 2")
    A(f"s_and_b32 s{T+2}, s{S_WAVE}, 3")
    A("v_lshrrev_b32 v6, 4, v0")
    A("v_and_b32 v3, 7, v0")
    A(f"v_mul_u32_u24 v3, {XS_RS}, v3")
    A("v_lshl_add_u32 v3, v6, 4, v3")
    A(f"v_add_u32 v3, {M_XS}, v3")
    B0 = 8
    def rd(t):
        b = B0 + 4*(t % 12)
        A(f"ds_read_b128 a[{b}:{b+3}], v3 offset:{64*t}")
    for t in range(12): rd(t)
    for t in range(18):
        rem = min(17, t+11) - t
        A(f"s_waitcnt lgkmcnt({min(rem, 15)})")
        b = B0 + 4*(t % 12)
        acc = 8 + 4*(t & 1)
        cin = "0" if t < 2 else f"v[{acc}:{acc+3}]"
        A(f"v_mfma_f32_16x16x32_bf16 v[{acc}:{acc+3}], {gu_areg(t)}, a[{b}:{b+3}], {cin}")
        if t + 12 < 18: rd(t+12)
    A("v_and_b32 v3, 15, v0")
    A("v_lshlrev_b32 v4, 8, v3")
    A("v_lshl_add_u32 v4, v6, 4, v4")
    A(f"s_lshl_b32 s{T+3}, s{T+1}, 11")
    A(f"s_lshl_b32 s{T+4}, s{T+2}, 6")
    A(f"s_add_u32 s{T+3}, s{T+3}, s{T+4}")
    A(f"s_add_u32 s{T+3}, s{T+3}, {M_GU}")
    A(f"v_add_u32 v4, s{T+3}, v4")
    A("v_cmp_gt_u32 vcc, 8, v3")
    A(f"s_and_saveexec_b64 {sp(T+12)}, vcc")
    A("s_nop 1")
    A("v_pk_add_f32 v[8:9], v[8:9], v[12:13]")
    A("v_pk_add_f32 v[10:11], v[10:11], v[14:15]")
    A(f"ds_write_b128 v4, {p4(8)}")
    A(f"s_mov_b64 exec, {sp(T+12)}")

def moe_h_and_down_stage():
    T = S_T
    A("v_lshlrev_b32 v2, 2, v1")
    A(f"v_add_u32 v2, {M_GU}, v2")
    A("ds_read_b32 v8, v2")
    A("ds_read_b32 v9, v2 offset:2048")
    A("v_lshrrev_b32 v3, 6, v1")
    A(f"v_mul_u32_u24 v3, {H_RS}, v3")
    A("v_lshl_add_u32 v3, v0, 1, v3")
    A(f"v_add_u32 v3, {M_H}, v3")
    A("s_waitcnt lgkmcnt(0)")
    rnd(8); rnd(9)
    A(f"v_mul_f32 v10, 0x{f32bits(-1.4426950408889634):08x}, v8")
    A("v_exp_f32 v10, v10")
    A("s_nop 0")
    A("v_add_f32 v10, 1.0, v10")
    A("v_rcp_f32 v10, v10")
    A("s_nop 0")
    A("v_mul_f32 v10, v8, v10")
    rnd(10)
    A("v_mul_f32 v10, v10, v9")
    A("v_cvt_pk_bf16_f32 v10, v10, v10")
    A("ds_write_b16 v3, v10")
    A("s_waitcnt vmcnt(0)")
    down_perm(DRA, 32)
    L = A.newlabel("L_np8b")
    A(f"s_cmp_lg_u32 s{S_WAVE}, 0")
    A(f"s_cbranch_scc1 {L}")
    down_perm(DRB, 64)
    A.label(L)

def moe_down():
    T = S_T
    A("v_and_b32 v2, 7, v0")
    A(f"v_mul_u32_u24 v2, {H_RS}, v2")
    A("v_lshrrev_b32 v6, 4, v0")
    A("v_lshl_add_u32 v2, v6, 4, v2")
    A(f"v_add_u32 v2, {M_H}, v2")
    A(f"ds_read_b128 {p4(16)}, v2")
    A(f"ds_read_b128 {p4(20)}, v2 offset:64")
    A("v_and_b32 v4, 15, v0")
    A("v_lshlrev_b32 v5, 4, v4")
    A("v_lshl_add_u32 v5, v6, 9, v5")
    A(f"s_mul_i32 s{T+1}, s70, 18432")
    A(f"s_lshl_b32 s{T+2}, s{S_WAVE}, 11")
    A(f"s_add_u32 s{T+1}, s{T+1}, s{T+2}")
    A(f"v_add_u32 v5, s{T+1}, v5")
    add64(T+2, S_WS, WS_PART)
    A(f"s_mov_b32 s{T+4}, 0x07060503"); A(f"s_mov_b32 s{T+5}, 0x06050302"); A(f"s_mov_b32 s{T+6}, 0x05030201")
    A("v_cmp_gt_u32 vcc, 8, v4")
    A(f"s_mov_b64 {sp(T+12)}, vcc")
    A("s_waitcnt lgkmcnt(0)")
    def panel(F, ACC, G, vaddr):
        for e in range(4):
            A(f"v_mfma_f32_16x16x32_bf16 {p4(ACC+4*e)}, {p4(F+4*e)}, {p4(16)}, 0")
        for e in range(4):
            A(f"v_mfma_f32_16x16x32_bf16 {p4(ACC+4*e)}, {p4(F+16+4*e)}, {p4(20)}, {p4(ACC+4*e)}")
        A("s_nop 7"); A("s_nop 1")
        for r in range(4):
            g = G + 4*r
            a, b, c, d = ACC+r, ACC+4+r, ACC+8+r, ACC+12+r
            A(f"v_perm_b32 v{g}, v{a}, v{b}, s{T+4}")
            A(f"v_perm_b32 v{g+1}, v{b}, v{c}, s{T+5}")
            A(f"v_perm_b32 v{g+2}, v{c}, v{d}, s{T+6}")
            A(f"v_mov_b32 v{g+3}, s{S_NONCE}")
        A(f"s_mov_b64 exec, {sp(T+12)}")
        for r in range(4):
            A(f"global_store_dwordx4 v{vaddr}, {p4(G+4*r)}, {sp(T+2)} offset:{128*r} sc1")
        A("s_mov_b64 exec, -1")
    panel(32, 96, 112, 5)
    L = A.newlabel("L_np8c")
    A(f"s_cmp_lg_u32 s{S_WAVE}, 0")
    A(f"s_cbranch_scc1 {L}")
    A(f"v_add_u32 v7, {8*2048}, v5")
    panel(64, 96, 32, 7)
    A.label(L)

def moe_reduce():
    T = S_T
    A("v_lshrrev_b32 v6, 4, v0")
    A(f"s_mul_i32 s{T+1}, s{S_WAVE}, 9")
    A(f"v_add_u32 v1, s{T+1}, v6")
    A(f"v_mul_u32_u24 v1, 18432, v1")
    A("v_and_b32 v2, 15, v0")
    A("v_lshl_add_u32 v1, v2, 4, v1")
    A(f"s_lshl_b32 s{T+1}, s70, 8")
    A(f"v_add_u32 v1, s{T+1}, v1")
    A(f"v_add_u32 v3, {4*18432}, v1")
    A(f"v_mul_u32_u24 v4, 18432, v6")
    A(f"v_sub_u32 v4, v1, v4")
    A(f"v_add_u32 v4, {8*18432}, v4")
    A("v_lshrrev_b32 v50, 2, v0")
    A("v_and_b32 v51, 3, v0")
    A(f"s_lshl_b32 s{T+1}, s70, 4")
    A(f"v_add_u32 v52, s{T+1}, v50")
    A("v_and_b32 v53, 7, v52")
    A("v_lshrrev_b32 v54, 3, v52")
    A("v_lshl_add_u32 v54, v54, 2, v51")
    A("v_mul_u32_u24 v55, 576, v53")
    A("v_add_u32 v55, v55, v54")
    A("v_lshlrev_b32 v55, 3, v55")
    A(f"v_add_u32 v55, {WS_T1G}, v55")
    add64(T+2, S_WS, WS_PART)
    def ld():
        A(f"global_load_dwordx4 {p4(16)}, v1, {sp(T+2)} sc1")
        A(f"global_load_dwordx4 {p4(20)}, v3, {sp(T+2)} sc1")
        A(f"global_load_dwordx4 {p4(24)}, v4, {sp(T+2)} sc1")
    tagcheck_loop(ld, [19, 23, 27], 10, 12, sleep=1)
    stamp(8)
    tl(14, 151, 0)
    A(f"s_mov_b32 s{T+4}, 0x0403020c"); A(f"s_mov_b32 s{T+5}, 0x0504030c"); A(f"s_mov_b32 s{T+6}, 0xffffff00")
    U = 32
    for i in range(3):
        g = 16 + 4*i; u = U + 4*i
        A(f"v_and_b32 v{u}, s{T+6}, v{g}")
        A(f"v_perm_b32 v{u+1}, v{g}, v{g+1}, s{T+4}")
        A(f"v_perm_b32 v{u+2}, v{g+1}, v{g+2}, s{T+5}")
        A(f"v_lshlrev_b32 v{u+3}, 8, v{g+2}")
    for r in range(4):
        A(f"v_add_f32 v{U+r}, v{U+r}, v{U+4+r}")
    for swap in ("v_permlane32_swap_b32", "v_permlane16_swap_b32"):
        for r in range(4): A(f"v_mov_b32 v{44+r}, v{U+r}")
        A("s_nop 1")
        for r in range(4): A(f"{swap} v{U+r}, v{44+r}")
        for r in range(4): A(f"v_add_f32 v{U+r}, v{U+r}, v{44+r}")
    for r in range(4):
        A(f"v_add_f32 v{U+r}, v{U+r}, v{U+8+r}")
    A(f"s_lshl_b32 s{T+1}, s{S_WAVE}, 8")
    A("v_lshlrev_b32 v5, 4, v2")
    A(f"v_add_u32 v5, s{T+1}, v5")
    A(f"v_add_u32 v5, {M_RED}, v5")
    A("s_mov_b64 exec, 0xffff")
    A(f"ds_write_b128 v5, {p4(U)}")
    A("s_mov_b64 exec, -1")
    A("s_waitcnt lgkmcnt(0)")
    A("s_barrier")
    L = A.newlabel("L_nofin")
    A(f"s_cmp_lg_u32 s{S_WAVE}, 0")
    A(f"s_cbranch_scc1 {L}")
    A("v_lshlrev_b32 v6, 4, v50")
    A("v_lshl_add_u32 v6, v51, 2, v6")
    A(f"v_add_u32 v6, {M_RED}, v6")
    for w in range(8): A(f"ds_read_b32 v{16+w}, v6 offset:{256*w}")
    A(f"v_mul_u32_u24 v7, {XS_RS}, v53")
    A("v_lshl_add_u32 v7, v54, 1, v7")
    A(f"v_add_u32 v7, {M_XS}, v7")
    A("ds_read_u16 v24, v7")
    A("v_lshlrev_b32 v8, 2, v53")
    A(f"v_add_u32 v8, {M_MISC}, v8")
    A("ds_read_b32 v25, v8 offset:32")
    A("ds_read_b32 v26, v8 offset:64")
    A("v_mov_b32 v5, v54")
    A("s_waitcnt lgkmcnt(0)")
    T1POLL = True
    A("v_add_f32 v16, v16, v17"); A("v_add_f32 v18, v18, v19"); A("v_add_f32 v20, v20, v21"); A("v_add_f32 v22, v22, v23")
    A("v_add_f32 v16, v16, v18"); A("v_add_f32 v20, v20, v22"); A("v_add_f32 v16, v16, v20")
    rnd(16)
    A("v_mul_f32 v16, v16, v26")
    rnd(16)
    A("v_lshlrev_b32 v24, 16, v24")
    A("v_add_f32 v16, v24, v16")
    rnd(16)
    A("v_and_b32 v25, 0x7ff, v25")
    A("v_xor_b32 v25, 0x7ff, v25")
    A("v_mul_u32_u24 v25, 1152, v25")
    A("v_lshl_add_u32 v25, v5, 1, v25")
    tagcheck_loop(lambda: A(f"global_load_dwordx2 v[28:29], v55, {sp(S_WS)} sc1"), [29], 10, 12, sleep=0)
    A("v_add_f32 v16, v28, v16")
    A("v_cvt_pk_bf16_f32 v16, v16, v16")
    A(f"global_store_short v25, v16, {sp(S_OUT)}")
    A.label(L)

def lds_init_list():
    T = S_T
    A(f"s_lshl_b32 s{T+1}, s{S_WAVE}, 10")
    A("v_lshlrev_b32 v110, 4, v0")
    A(f"v_add_u32 v111, s{T+1}, v110")
    A(f"v_add_u32 v111, {M_LIST}, v111")
    for i in range(4): A(f"v_mov_b32 v{112+i}, 0xff800000")
    A(f"ds_write_b128 v111, {p4(112)}")
    L0 = A.newlabel("L_ni")
    A(f"s_cmp_lg_u32 s{S_WAVE}, 0")
    A(f"s_cbranch_scc1 {L0}")
    A(f"v_add_u32 v111, {M_LIST+8192}, v110")
    A("s_mov_b64 exec, 0xf")
    A(f"ds_write_b128 v111, {p4(112)}")
    A("s_mov_b64 exec, -1")
    for i in range(4): A(f"v_mov_b32 v{116+i}, 0")
    A(f"v_add_u32 v111, {M_MISC}, v110")
    A("s_mov_b64 exec, 0x3ff")
    A(f"ds_write_b128 v111, {p4(116)}")
    A("s_mov_b64 exec, -1")
    A.label(L0)

def sel_top8():
    T = S_T
    A(f"s_lshl_b32 s{T+1}, s{S_WAVE}, 6")
    A(f"v_add_u32 v1, s{T+1}, v0")
    A("v_lshlrev_b32 v2, 5, v1")
    add64(T+2, S_WS, WS_RG)
    K = 16
    def ld():
        for i in range(2):
            A(f"global_load_dwordx4 {p4(K+4*i)}, v2, {sp(T+2)} offset:{16*i} sc1")
    tagcheck_loop(ld, [K+2*i+1 for i in range(4)], 10, 12, sleep=1)
    stamp(5)
    tl(10, 255, 0)
    keys = [K+2*i for i in range(4)]
    A(f"v_max3_f32 v40, v{keys[0]}, v{keys[1]}, v{keys[2]}")
    A(f"v_max_f32 v40, v40, v{keys[3]}")
    for sh in (8, 4, 2, 1):
        A("s_nop 1")
        A(f"v_max_f32_dpp v40, v40, v40 row_ror:{sh} row_mask:0xf bank_mask:0xf")
    A("s_nop 1")
    A(f"v_readlane_b32 s{T+4}, v40, 16")
    A(f"v_readlane_b32 s{T+5}, v40, 32")
    A(f"v_readlane_b32 s{T+6}, v40, 48")
    A("s_nop 1")
    A(f"v_max_f32 v40, s{T+4}, v40")
    A(f"v_max_f32 v40, s{T+5}, v40")
    A(f"v_max_f32 v40, s{T+6}, v40")
    A(f"s_lshl_b32 s{T+4}, s{S_WAVE}, 2")
    A(f"s_add_u32 s{T+4}, s{T+4}, {M_MISC+96}")
    A(f"v_mov_b32 v43, s{T+4}")
    A("s_mov_b64 exec, 1")
    A(f"ds_write_b32 v43, v40")
    A("s_mov_b64 exec, -1")
    A("s_waitcnt lgkmcnt(0)")
    A("s_barrier")
    A(f"v_mov_b32 v43, {M_MISC+96}")
    A(f"ds_read_b128 {p4(44)}, v43")
    A(f"ds_read_b128 {p4(48)}, v43 offset:16")
    A("s_waitcnt lgkmcnt(0)")
    A("v_min3_f32 v40, v44, v45, v46")
    A("v_min3_f32 v41, v47, v48, v49")
    A("v_min3_f32 v40, v40, v50, v51")
    A("v_min_f32 v40, v40, v41")
    A("v_mov_b32 v41, 0")
    for i in range(4):
        A(f"v_cmp_ge_f32 {sp(T+4+2*i)}, v{keys[i]}, v40")
    for q in range(4):
        A(f"v_addc_co_u32 v41, vcc, 0, v41, {sp(T+4+2*q)}")
    A(f"v_mov_b32 v43, {M_MISC}")
    A("v_cmp_lt_u32 vcc, 0, v41")
    A(f"s_and_saveexec_b64 {sp(T+12)}, vcc")
    A("ds_add_rtn_u32 v42, v43, v41")
    A(f"s_mov_b64 exec, {sp(T+12)}")
    A("s_waitcnt lgkmcnt(0)")
    A("v_lshlrev_b32 v42, 2, v42")
    A(f"v_add_u32 v42, {M_LIST}, v42")
    A(f"v_mov_b32 v43, {S_DUMP}")
    for i in range(4):
        A(f"v_cndmask_b32 v44, v43, v42, {sp(T+4+2*i)}")
        A(f"v_cndmask_b32 v45, 0, 4, {sp(T+4+2*i)}")
        A(f"ds_write_b32 v44, v{keys[i]}")
        A(f"v_add_u32 v42, v42, v45")
    A("s_waitcnt lgkmcnt(0)")
    A("s_barrier")
    A(f"v_mov_b32 v43, {M_MISC}")
    A("ds_read_b32 v44, v43")
    A("s_waitcnt lgkmcnt(0)")
    A(f"v_readfirstlane_b32 s{T+8}, v44")
    A(f"s_mov_b32 s{T+9}, 0")
    Lc = A.newlabel("L_chunk"); Lj = A.newlabel("L_j")
    A.label(Lc)
    A(f"v_add_u32 v44, s{T+9}, v0")
    A("v_lshlrev_b32 v44, 2, v44")
    A(f"v_add_u32 v44, {M_LIST}, v44")
    A("ds_read_b32 v46, v44")
    A("v_mov_b32 v47, 0")
    A(f"v_mov_b32 v45, {M_LIST}")
    A(f"s_mov_b32 s{T+10}, 0")
    A.label(Lj)
    A(f"ds_read_b128 {p4(48)}, v45")
    A(f"ds_read_b128 {p4(52)}, v45 offset:16")
    A("v_add_u32 v45, 32, v45")
    A(f"s_add_u32 s{T+10}, s{T+10}, 8")
    A("s_waitcnt lgkmcnt(1)")
    for q in range(4):
        A(f"v_cmp_gt_f32 {sp(T+2*q)}, v{48+q}, v46")
    for q in range(4):
        A(f"v_addc_co_u32 v47, vcc, 0, v47, {sp(T+2*q)}")
    A("s_waitcnt lgkmcnt(0)")
    for q in range(4):
        A(f"v_cmp_gt_f32 {sp(T+2*q)}, v{52+q}, v46")
    for q in range(4):
        A(f"v_addc_co_u32 v47, vcc, 0, v47, {sp(T+2*q)}")
    A(f"s_cmp_lt_u32 s{T+10}, s{T+8}")
    A(f"s_cbranch_scc1 {Lj}")
    A(f"v_add_u32 v44, s{T+9}, v0")
    A(f"v_cmp_gt_u32 vcc, s{T+8}, v44")
    A(f"v_cmp_gt_u32 {sp(T)}, 8, v47")
    A("s_nop 1")
    A(f"s_and_b64 vcc, vcc, {sp(T)}")
    A(f"s_and_saveexec_b64 {sp(T+12)}, vcc")
    A("v_lshlrev_b32 v47, 2, v47")
    A(f"v_add_u32 v47, {M_MISC+32}, v47")
    A("ds_write_b32 v47, v46")
    A(f"s_mov_b64 exec, {sp(T+12)}")
    A(f"s_add_u32 s{T+9}, s{T+9}, 64")
    A(f"s_cmp_lt_u32 s{T+9}, s{T+8}")
    A(f"s_cbranch_scc1 {Lc}")
    A("s_waitcnt lgkmcnt(0)")
    stamp(6)

def sel_publish():
    T = S_T
    L = A.newlabel("L_sp")
    A(f"s_cmp_lg_u32 s{S_WAVE}, 0")
    A(f"s_cbranch_scc1 {L}")
    A("v_lshlrev_b32 v1, 2, v0")
    A(f"v_add_u32 v1, {M_MISC+32}, v1")
    A("s_mov_b64 exec, 0xff")
    A("ds_read_b32 v2, v1")
    add64(T+2, S_WS, WS_SEL)
    A(f"v_mov_b32 v3, s{S_NONCE}")
    A("v_lshlrev_b32 v4, 3, v0")
    A("s_waitcnt lgkmcnt(0)")
    A(f"global_store_dwordx2 v4, v[2:3], {sp(T+2)} sc1")
    A("s_mov_b64 exec, -1")
    A.label(L)
    stamp(7)
    tl(11, 255, 0)

def ln_pass(stok):
    ln_loads(stok, LN_Q, True)
    A("v_mov_b32 v120, 0")
    A(f"global_load_dword v121, v120, {sp(S_DBG)} sc1")
    A("s_waitcnt vmcnt(1)")
    def hook():
        Lhn = A.newlabel("L_lnn")
        A("s_waitcnt vmcnt(0)")
        A(f"v_readfirstlane_b32 s{S_NONCE}, v121")
        A(f"s_cmp_lg_u32 s{S_NONCE}, 0")
        A(f"s_cbranch_scc1 {Lhn}")
        get_nonce(124)
        A.label(Lhn)
    ln_compute_publish(LN_Q, 3, True, hook=hook)

def spare_wg():
    T = S_T
    A(f"s_sub_u32 s69, s69, {NMOE}")
    A("s_mul_i32 s68, s69, 24")
    A(f"s_lshl_b32 s{T+1}, s{S_WAVE}, 2")
    A(f"s_add_u32 s68, s68, s{T+1}")
    A("s_add_u32 s68, s68, 1152")
    Le = A.newlabel("L_lne")
    A(f"s_cmp_ge_u32 s{S_WAVE}, 6")
    A(f"s_cbranch_scc1 {Le}")
    A("s_cmp_ge_u32 s68, 2048")
    A(f"s_cbranch_scc1 {Le}")
    ln_pass(68)
    A.label(Le)
    stamp(4)
    A(f"s_cmp_lg_u32 s69, {SELIDX}")
    A("s_cbranch_scc1 L_fin")
    lds_init_list()
    get_nonce(124)
    A("s_waitcnt lgkmcnt(0)")
    A("s_barrier")
    sel_top8()
    sel_publish()
    A("s_branch L_fin")

def moe_wg():
    T = S_T
    A(f"s_sub_u32 s69, s{S_WG}, {NCONV}")
    A(f"s_cmp_ge_u32 s69, {NMOE}")
    A("s_cbranch_scc1 L_spare")
    A("s_and_b32 s70, s69, 7")
    A("s_mul_i32 s70, s70, 9")
    A(f"s_lshr_b32 s{T+1}, s69, 3")
    A(f"s_add_u32 s70, s70, s{T+1}")
    Lm = A.newlabel("L_mln")
    A(f"s_cmp_ge_u32 s{S_WAVE}, 4")
    A(f"s_cbranch_scc1 {Lm}")
    A("s_lshl_b32 s68, s69, 4")
    A(f"s_lshl_b32 s{T+1}, s{S_WAVE}, 2")
    A(f"s_add_u32 s68, s68, s{T+1}")
    ln_pass(68)
    A.label(Lm)
    if "mbar" in OPTS: A("s_barrier")
    if "mnonce" in OPTS: get_nonce(10)
    stamp(3)
    moe_dma()
    A("s_waitcnt vmcnt(4)")
    stamp(4)
    moe_sel_wait()
    stamp(5)
    tl(12, 151, 7)
    moe_row_loads()
    A("s_barrier")
    if "xsfirst" in OPTS:
        moe_gateup_addr()
        moe_gateup_preload()
        A("s_waitcnt vmcnt(0)")
    else:
        moe_down_loads()
        moe_gateup_addr()
        moe_gateup_preload()
        Lq = A.newlabel("L_w32")
        A(f"s_cmp_lg_u32 s{S_WAVE}, 0")
        A(f"s_cbranch_scc1 {Lq}")
        A("s_waitcnt vmcnt(32)")
        A.label(Lq)
        A(f"s_cmp_eq_u32 s{S_WAVE}, 0")
        A(f"s_cbranch_scc1 {Lq}_b")
        A("s_waitcnt vmcnt(16)")
        A.label(Lq + "_b")
    moe_xs_compute()
    if "xsfirst" in OPTS:
        A("s_waitcnt lgkmcnt(0)")
        A("s_barrier")
        moe_gateup()
        moe_down_loads()
        A("s_waitcnt lgkmcnt(0)")
        A("s_barrier")
        moe_h_and_down_stage()
        A("s_waitcnt lgkmcnt(0)")
        A("s_barrier")
        stamp(7)
        moe_down()
        moe_reduce()
        A("s_branch L_fin")
    stamp(6)
    tl(13, 151, 7)
    A("s_waitcnt lgkmcnt(0)")
    A("s_barrier")
    moe_gateup()
    A("s_waitcnt lgkmcnt(0)")
    A("s_barrier")
    moe_h_and_down_stage()
    A("s_waitcnt lgkmcnt(0)")
    A("s_barrier")
    stamp(7)
    moe_down()
    moe_reduce()
    A("s_branch L_fin")
    A.label("L_spare")
    spare_wg()

def main():
    prologue()
    A(f"s_cmp_ge_u32 s{S_WG}, {NCONV}")
    A("s_cbranch_scc1 L_moe")
    conv_wg()
    A.label("L_moe")
    moe_wg()
    A.label("L_fin")
    tl(15, 151, 0)
    prof_end()
    A.label("L_end")
    A("s_endpgm")

main()
DOC = """; Design (one launch, 256 workgroups x 8 waves, one workgroup per CU, hand-offs through d_ws):
;    workspace contents are never taken for data; all spin loops are bounded.
"""
K = NAME + "_kernel"
LDS = max(L_CONV_END, M_END)
txt = HDR + f"; @launch grid=(256,1,1) block=(512,1,1) lds={LDS}\n" + DOC + '.amdgcn_target "amdgcn-amd-amdhsa--gfx950"\n.text\n' + head(K) + A.text() + kd(K, 256, 102, 192, "  .amdhsa_float_denorm_mode_32 3\n")
open(OUTFN, "w").write(txt)
print("wrote", OUTFN, len(txt), "LDS", LDS)
```
